```python
import torch

def _softmax(x, axis=-1):
    return torch.softmax(x, dim=axis)
def _gelu(x):
    return torch.nn.functional.gelu(x, approximate="tanh")
def _silu(x):
    return torch.nn.functional.silu(x)
def _sigmoid(x):
    return torch.sigmoid(x)
def _layernorm(x, axis=-1, eps=1e-5):
    m = x.mean(dim=axis, keepdim=True)
    v = x.var(dim=axis, keepdim=True, unbiased=False)
    return (x - m) / torch.sqrt(v + eps)
def _scatter_add(tgt, idx, src, axis=0):
    return tgt.clone().index_add_(axis, idx, src)
def _segment_sum(src, seg, n):
    out = torch.zeros((n,) + src.shape[1:], dtype=src.dtype)
    return out.index_add_(0, seg, src)
def _pad(x, pw):
    flat = tuple(v for pair in reversed(pw) for v in pair)
    return torch.nn.functional.pad(x, flat)

kernel_name = 'recurrent_scan__sliding_local_dilated__swiglu_ffn__prompt'

def setup_inputs():

    _w = (lambda a: (lambda t: t.to(torch.bfloat16) if t.is_floating_point() else t)(torch.as_tensor(a)))
    def _A_setup():
        B, S, D = 1, 2048, 640
        return {
            "x": _w((lambda *s: torch.randn(*s, dtype=torch.bfloat16) * 0.05)(B, S, D)),
            "wqkv": _w((lambda *s: torch.randn(*s, dtype=torch.bfloat16) * 0.05)(D, 3 * D)),
            "wo": _w((lambda *s: torch.randn(*s, dtype=torch.bfloat16) * 0.05)(D, D)),
        }
    _A_in = _A_setup()

    def _B_setup():
        B, S, D, F = 1, 2048, 640, 1728
        return {
            "x": _w((lambda *s: torch.randn(*s, dtype=torch.bfloat16) * 0.05)(B, S, D)),
            "w_gate": _w((lambda *s: torch.randn(*s, dtype=torch.bfloat16) * 0.05)(D, F)),
            "w_up": _w((lambda *s: torch.randn(*s, dtype=torch.bfloat16) * 0.05)(D, F)),
            "w_down": _w((lambda *s: torch.randn(*s, dtype=torch.bfloat16) * 0.05)(F, D)),
        }
    _B_in = _B_setup()

    return {
        "A_x": _A_in["x"],
        "A_wqkv": _A_in["wqkv"],
        "A_wo": _A_in["wo"],
        "B_x": _B_in["x"],
        "B_w_gate": _B_in["w_gate"],
        "B_w_up": _B_in["w_up"],
        "B_w_down": _B_in["w_down"],
    }

def reference(A_x, A_wqkv, A_wo, B_x, B_w_gate, B_w_up, B_w_down):
    def _A_ref(x, wqkv, wo):
        B, S, D = x.shape
        H = 32; Dh = D // H
        W, dil = 8, 2
        qkv = (lambda x, *d: x.permute(*d))((x @ wqkv).reshape(B, S, 3, H, Dh), 2, 0, 3, 1, 4)
        q, k, v = qkv[0], qkv[1], qkv[2]
        scale = Dh ** -0.5
        pos = torch.arange(S)
        off = torch.arange(W) * dil
        idx = pos[:, None] - off[None, :]
        mask = idx >= 0
        idx_c = torch.where(mask, idx, 0).reshape(-1)
        kg = k[:, :, idx_c, :].reshape(B, H, S, W, Dh)
        vg = v[:, :, idx_c, :].reshape(B, H, S, W, Dh)
        logits = torch.einsum("bhsd,bhswd->bhsw", q, kg) * scale
        logits = torch.where(mask[None, None, :, :], logits, -1e9)
        attn = _softmax(logits, axis=-1)
        o = torch.einsum("bhsw,bhswd->bhsd", attn, vg)
        return (lambda x, *d: x.permute(*d))(o, 0, 2, 1, 3).reshape(B, S, D) @ wo

    def _B_ref(x, w_gate, w_up, w_down):
        g = _silu(x @ w_gate)
        u = x @ w_up
        return (g * u) @ w_down

    x = A_x
    xn = _layernorm(x, axis=-1)
    s = _A_ref(xn, A_wqkv, A_wo)
    g = _silu(_B_ref(xn, B_w_gate, B_w_up, B_w_down))
    return x + s * g
```

```python
NAME = "recurrent_scan__sliding_local_dilated__swiglu_ffn__prompt"

class Asm:
    def __init__(self):
        self.lines = []
        self.kern = []
        self.launch = []
        self._lab = 0
    def e(self, s):
        self.lines.append("    " + s)
    def __call__(self, s):
        for l in s.split("\n"):
            l = l.strip()
            if l: self.e(l)
    def label(self, l):
        self.lines.append(l + ":")
    def newlabel(self, p="L"):
        self._lab += 1
        return f"{p}_{self._lab}"
    def c(self, s):
        self.lines.append("    ; " + s)
    def begin_kernel(self, label):
        self.lines += [".text", f".globl {label}", ".p2align 8", f".type {label},@function", f"{label}:"]
    def end_kernel(self, label, vgpr, sgpr, accum, grid, block, lds):
        self.kern.append((label, vgpr, sgpr, accum))
        self.launch.append((label, grid, block, lds))
    def add_launch(self, label, grid, block, lds):
        self.launch.append((label, grid, block, lds))
    def text(self, header=""):
        out = []
        for h in header.split("\n"):
            if h.strip(): out.append("; " + h.strip())
        if len(self.launch) == 1 and self.launch[0][0] == NAME + "_kernel":
            l, g, b, lds = self.launch[0]
            out.append(f"; @launch grid=({g},1,1) block=({b},1,1) lds={lds}")
        else:
            for l, g, b, lds in self.launch:
                out.append(f"; @launch kernel={l} grid=({g},1,1) block=({b},1,1) lds={lds}")
        out.append('.amdgcn_target "amdgcn-amd-amdhsa--gfx950"')
        out += self.lines
        out.append('.section .rodata,"a"')
        for label, vgpr, sgpr, accum in self.kern:
            out += [".p2align 6", f".amdhsa_kernel {label}",
                    f"  .amdhsa_next_free_vgpr {vgpr}", f"  .amdhsa_next_free_sgpr {sgpr}",
                    f"  .amdhsa_accum_offset {accum}", "  .amdhsa_group_segment_fixed_size 0",
                    "  .amdhsa_kernarg_size 80", "  .amdhsa_user_sgpr_count 2",
                    "  .amdhsa_user_sgpr_kernarg_segment_ptr 1", "  .amdhsa_system_sgpr_workgroup_id_x 1",
                    "  .amdhsa_float_denorm_mode_32 3", "  .amdhsa_float_denorm_mode_16_64 3",
                    ".end_amdhsa_kernel"]
        return "\n".join(out) + "\n"
```

```python
import sys; sys.path.insert(0, "dev")
from asmlib import *
from gen import *
import struct
def f2u(x): return struct.unpack("<I", struct.pack("<f", x))[0]
C_SM = f2u(20 ** -0.5 * 1.4426950408889634)

def att_issue(a, R, sMb, sNb, sWave, SRD, ldsbase, s0):
    a(f"""
    s_lshl_b32 s{s0}, s{sNb}, 2
    s_add_u32 s{s0}, s{s0}, s{sWave}            ; head
    s_mul_i32 s{s0+1}, s{s0}, 1280              ; 5 groups * 256
    s_add_u32 s{s0+1}, s{s0+1}, {WS_QKV}
    s_lshl_b32 s{s0+2}, s{sMb}, 1               ; blk0
    ; q voffset
    v_lshrrev_b32 v{R+10}, 5, v0
    v_add_u32 v{R+10}, s{s0+2}, v{R+10}
    s_mov_b32 s{s0+3}, 122880
    v_mul_lo_u32 v{R+10}, v{R+10}, s{s0+3}
    v_and_b32 v{R+11}, 31, v0
    v_lshl_add_u32 v{R+10}, v{R+11}, 3, v{R+10}
    ; kv voffset: piece p = lane (0..39): blk = blk0 - 1 + ((p+8)>>4), row in blk = 2*((p+8)&15)
    v_add_u32 v{R+11}, 8, v0
    v_lshrrev_b32 v{R+12}, 4, v{R+11}
    v_add_u32 v{R+12}, s{s0+2}, v{R+12}
    v_max_u32 v{R+12}, 1, v{R+12}
    v_subrev_u32 v{R+12}, 1, v{R+12}
    v_mul_lo_u32 v{R+12}, v{R+12}, s{s0+3}
    v_and_b32 v{R+11}, 15, v{R+11}
    v_lshl_add_u32 v{R+11}, v{R+11}, 4, v{R+12}
    s_mul_i32 s{s0+4}, s{sWave}, 6400
    s_add_u32 s{s0+4}, s{s0+4}, {ldsbase}
    s_mov_b64 exec, 0xffffffffff
    """.replace("s_mov_b64 exec, 0xffffffffff", "s_mov_b32 exec_hi, 0xff"))
    for kv in range(2):
        a(f"s_add_u32 s{s0+5}, s{s0+1}, {(kv+1)*40960}")
        for i in range(5):
            a(f"s_add_u32 m0, s{s0+4}, {(kv*5+i)*640 - 256*i}")
            a("s_nop 0")
            a(f"buffer_load_dwordx4 v{R+11}, s[{SRD}:{SRD+3}], s{s0+5} offen offset:{256*i} lds")
    a("s_mov_b32 exec_hi, -1")
    for i in range(5):
        a(f"buffer_load_dwordx2 v[{R+2*i}:{R+2*i+1}], v{R+10}, s[{SRD}:{SRD+3}], s{s0+1} offen offset:{256*i}")
    a(f"v_lshlrev_b32 v{R+10}, 3, v0")
    a(f"v_add_u32 v{R+10}, s{s0+4}, v{R+10}")

def att_compute(a, R, sMb, s0, sc=""):
    L = R + 12; P = R + 20; O = R + 36; KV = R + 56
    def rd(kv, w, buf):
        for i in range(5):
            b = KV + 10 * buf + 2 * i
            a(f"ds_read_b64 v[{b}:{b+1}], v{R+10} offset:{(kv*5+i)*640 + (16-2*w)*8}")
    NB = 3
    for w in range(8): a(f"v_mov_b32 v{L+w}, 0")
    seq = [(0, w) for w in range(8)] + [(1, w) for w in range(8)]
    for n in range(NB - 1): rd(*seq[n], n % NB)
    for i in range(20): a(f"v_mov_b32 v{O+i}, 0")
    a(f"s_lshl_b32 s{s0}, s{sMb}, 6")
    a(f"v_add_u32 v{R+11}, s{s0}, v0")
    a(f"s_mov_b32 s{s0+1}, 0x{C_SM:x}")
    a(f"s_mov_b32 s{s0+2}, 0xce6e6b28")
    for n, (kv, w) in enumerate(seq):
        if n + NB - 1 < 16:
            rd(*seq[n + NB - 1], (n + NB - 1) % NB)
            a(f"s_waitcnt lgkmcnt({5*(NB-1)})")
        else:
            a(f"s_waitcnt lgkmcnt({5*(15-n)})")
        b = KV + 10 * (n % NB)
        if kv == 0:
            for i in range(10): a(f"v_dot2c_f32_bf16 v{L+w}, v{R+i}, v{b+i}")
            if w == 7:
                a(f"v_mov_b32 v{P}, s{s0+2}")
                for ww in range(1, 8):
                    a(f"v_cmp_gt_u32 vcc, {2*ww}, v{R+11}")
                    a("s_nop 1")
                    a(f"v_cndmask_b32 v{L+ww}, v{L+ww}, v{P}, vcc")
                a(f"v_max3_f32 v{P}, v{L}, v{L+1}, v{L+2}")
                a(f"v_max3_f32 v{P}, v{P}, v{L+3}, v{L+4}")
                a(f"v_max3_f32 v{P}, v{P}, v{L+5}, v{L+6}")
                a(f"v_max_f32 v{P}, v{P}, v{L+7}")
                for ww in range(8): a(f"v_sub_f32 v{L+ww}, v{L+ww}, v{P}")
                for ww in range(8): a(f"v_mul_f32 v{L+ww}, s{s0+1}, v{L+ww}")
                for ww in range(8): a(f"v_exp_f32 v{L+ww}, v{L+ww}")
                a(f"v_add_f32 v{P}, v{L}, v{L+1}")
                for ww in range(2, 8): a(f"v_add_f32 v{P}, v{P}, v{L+ww}")
                a(f"v_rcp_f32 v{P}, v{P}")
                a("s_nop 0")
                for ww in range(8): a(f"v_mul_f32 v{L+ww}, v{L+ww}, v{P}")
                for ww in range(8):
                    a(f"v_cvt_pk_bf16_f32 v{P+2*ww}, v{L+ww}, 0")
                    a(f"v_cvt_pk_bf16_f32 v{P+2*ww+1}, 0, v{L+ww}")
        else:
            for i in range(10):
                a(f"v_dot2c_f32_bf16 v{O+2*i}, v{b+i}, v{P+2*w}")
                a(f"v_dot2c_f32_bf16 v{O+2*i+1}, v{b+i}, v{P+2*w+1}")
    a("s_nop 2")
    for i in range(10): a(f"v_cvt_pk_bf16_f32 v{R+i}, v{O+2*i}, v{O+2*i+1}")

def att_store(a, R, sMb, sNb, sWave, SRD, s0, sc=""):
    a(f"""
    v_lshrrev_b32 v{R+10}, 4, v0
    v_lshlrev_b32 v{R+10}, 10, v{R+10}
    v_and_b32 v{R+11}, 15, v0
    v_lshl_add_u32 v{R+10}, v{R+11}, 4, v{R+10}
    s_lshl_b32 s{s0}, s{sNb}, 2
    s_add_u32 s{s0}, s{s0}, s{sWave}
    s_mul_i32 s{s0}, s{s0}, 5                   ; G0
    s_mul_i32 s{s0+1}, s{sMb}, 74
    s_add_u32 s{s0+1}, s{s0+1}, 54
    """)
    for i in range(5):
        a(f"""
        s_add_u32 s{s0+2}, s{s0}, {i}
        s_lshr_b32 s{s0+3}, s{s0+2}, 3
        s_add_u32 s{s0+3}, s{s0+3}, s{s0+1}
        s_lshl_b32 s{s0+3}, s{s0+3}, 12
        s_and_b32 s{s0+4}, s{s0+2}, 4
        s_lshl_b32 s{s0+4}, s{s0+4}, 7
        s_add_u32 s{s0+3}, s{s0+3}, s{s0+4}
        s_and_b32 s{s0+4}, s{s0+2}, 1
        s_lshl_b32 s{s0+4}, s{s0+4}, 8
        s_add_u32 s{s0+3}, s{s0+3}, s{s0+4}
        s_and_b32 s{s0+4}, s{s0+2}, 2
        s_lshl_b32 s{s0+4}, s{s0+4}, 2
        s_add_u32 s{s0+3}, s{s0+3}, s{s0+4}
        buffer_store_dwordx2 v[{R+2*i}:{R+2*i+1}], v{R+10}, s[{SRD}:{SRD+3}], s{s0+3} offen {sc}
        """)

def katt(a, label, stamps=False):
    a.begin_kernel(label)
    a(f"""
    s_cmp_ge_u32 s2, 256
    s_cbranch_scc1 {label}_end
    s_load_dwordx2 s[8:9], s[0:1], 72
    v_lshrrev_b32 v3, 6, v0
    v_and_b32 v0, 63, v0
    s_and_b32 s15, s2, 7
    v_readfirstlane_b32 s14, v3
    s_lshr_b32 s16, s2, 3
    s_lshr_b32 s17, s16, 3
    s_lshl_b32 s15, s15, 2
    s_add_u32 s15, s15, s17
    s_and_b32 s16, s16, 7
    s_mov_b32 s22, 0x2000000
    s_mov_b32 s23, 0x20000
    s_waitcnt lgkmcnt(0)
    s_mov_b32 s20, s8
    s_mov_b32 s21, s9
    """)
    rt_start(a, stamps)
    att_issue(a, 4, 15, 16, 14, 20, 0, 30)
    a("s_waitcnt vmcnt(0)")
    att_compute(a, 4, 15, 40)
    att_store(a, 4, 15, 16, 14, 20, 40)
    rt_end(a, stamps, 1, 8)
    a.label(f"{label}_end")
    a("s_endpgm")
    a.end_kernel(label, 96, 102, 96, 256, 256, 25600)
```

```python
import sys; sys.path.insert(0, "dev")
from asmlib import *

WS_AP = 0
WS_WP = 0xA00000
WS_QKV = 0x1000000
WS_FLAG = 0x1800000
WS_STAMP = 0x1900000
LOG2E = 0x3fb8aa3b
NLOG2E = 0xbfb8aa3b

def stamp(a, idx, on):
    if on:
        a(f"s_memtime s[{60+2*idx}:{61+2*idx}]")

def k2(a, label, D=6, stamps=False):
    a.begin_kernel(label)
    ACC = 0
    STG = 16
    vLane16 = 1; vX = 2
    XR = 4
    a(f"""
    s_cmp_ge_u32 s2, 256
    s_cbranch_scc1 {label}_end
    s_load_dwordx2 s[4:5], s[0:1], 0
    s_load_dwordx2 s[6:7], s[0:1], 56
    s_load_dwordx2 s[8:9], s[0:1], 72
    """)
    stamp(a, 0, stamps)
    a(f"""
    v_lshrrev_b32 v3, 6, v0
    v_and_b32 v0, 63, v0
    v_lshlrev_b32 v{vLane16}, 4, v0
    v_readfirstlane_b32 s14, v3
    s_and_b32 s15, s2, 7                 ; xcd
    s_lshr_b32 s16, s2, 3                ; i = 0..31
    s_lshr_b32 s17, s16, 3
    s_lshl_b32 s15, s15, 2
    s_add_u32 s15, s15, s17
    s_and_b32 s16, s16, 7                ; nb
    s_mul_i32 s17, s14, 18               ; T start
    s_mul_i32 s18, s15, 74
    s_add_u32 s18, s18, s17
    s_lshl_b32 s18, s18, 12              ; A offset
    s_mul_i32 s19, s16, 74
    s_add_u32 s19, s19, s17
    s_mul_i32 s19, s19, 5120
    s_add_u32 s19, s19, {WS_WP + 2048}
    s_waitcnt lgkmcnt(0)
    s_add_u32 s10, s8, s18
    s_addc_u32 s11, s9, 0
    s_add_u32 s12, s8, s19
    s_addc_u32 s13, s9, 0
    """)
    def loads(slot):
        b = STG + 36 * slot
        for i in range(4):
            a(f"global_load_dwordx4 v[{b+4*i}:{b+4*i+3}], v{vLane16}, s[10:11] offset:{1024*i}")
        for u in range(5):
            a(f"global_load_dwordx4 v[{b+16+4*u}:{b+16+4*u+3}], v{vLane16}, s[12:13] offset:{1024*u-2048}")
        a("s_add_u32 s10, s10, 4096")
        a("s_addc_u32 s11, s11, 0")
        a("s_add_u32 s12, s12, 5120")
        a("s_addc_u32 s13, s13, 0")
    def mfmas(slot, first):
        b = STG + 36 * slot
        for i in range(4):
            for u in range(5):
                t = ACC + (i * 5 + u) * 4
                c = "0" if first else f"a[{t}:{t+3}]"
                a(f"v_mfma_f32_16x16x32_bf16 a[{t}:{t+3}], v[{b+16+4*u}:{b+16+4*u+3}], v[{b+4*i}:{b+4*i+3}], {c}")
    a(f"""
    s_lshl_b32 s20, s15, 6
    s_lshl_b32 s21, s14, 4
    s_add_u32 s20, s20, s21
    s_mul_i32 s20, s20, 1280
    s_mul_i32 s21, s16, 160
    s_add_u32 s20, s20, s21
    v_and_b32 v3, 15, v0
    v_mul_u32_u24 v{vX}, 1280, v3
    v_lshrrev_b32 v3, 4, v0
    v_lshlrev_b32 v3, 3, v3
    v_add3_u32 v{vX}, v{vX}, v3, s20
    """)
    for u in range(5):
        a(f"global_load_dwordx2 v[{XR+2*u}:{XR+2*u+1}], v{vX}, s[4:5] offset:{32*u}")
    for r in range(80):
        a(f"v_accvgpr_write_b32 a{ACC+r}, 0")
    N = 20
    a("s_cmp_eq_u32 s14, 3")
    a(f"s_cbranch_scc1 {label}_p20")
    for s in range(2, 2 + D):
        loads(s % D)
    a(f"s_branch {label}_s2")
    a.label(f"{label}_p20")
    for s in range(D):
        loads(s % D)
    for s in range(N):
        if s == 2: a.label(f"{label}_s2")
        a(f"s_waitcnt vmcnt({9 * min(D - 1, N - 1 - s)})")
        if s == 2: stamp(a, 1, stamps)
        mfmas(s % D, False)
        if s + D < N:
            loads(s % D)
    stamp(a, 2, stamps)
    a("s_nop 7")
    a(f"""
    s_mul_i32 s22, s14, 20480
    v_add_u32 v3, s22, v{vLane16}
    """)
    for i in range(4):
        for u in range(5):
            t = ACC + (i * 5 + u) * 4
            a(f"ds_write_b128 v3, a[{t}:{t+3}] offset:{(i*5+u)*1024}")
    a(f"""
    s_mul_i32 s22, s14, 5120
    v_add_u32 v3, s22, v{vLane16}
    v_add_u32 v14, 40960, v3
    s_waitcnt lgkmcnt(0)
    s_barrier
    """)
    R = STG
    for w in range(4):
        for u in range(5):
            r = R + (w * 5 + u) * 4
            if w < 2: a(f"ds_read_b128 v[{r}:{r+3}], v3 offset:{w*20480 + u*1024}")
            else: a(f"ds_read_b128 v[{r}:{r+3}], v14 offset:{(w-2)*20480 + u*1024}")
        if w == 1: a("s_waitcnt lgkmcnt(5)")
    a(f"s_mov_b32 s23, {NLOG2E}")
    a("s_mov_b32 s24, 0xffff0000")
    a("s_waitcnt lgkmcnt(0)")
    T = R + 80
    for u in range(5):
        for j in range(4):
            f0, f1, f2, sv = (R + (w * 5 + u) * 4 + j for w in range(4))
            a(f"v_add_f32 v{f0}, v{f0}, v{f1}")
            a(f"v_add_f32 v{f0}, v{f0}, v{f2}")
            a(f"v_mul_f32 v{f1}, s23, v{f0}")
            a(f"v_exp_f32 v{f1}, v{f1}")
            a(f"v_mul_f32 v{sv}, v{sv}, v{f0}")
            a(f"v_add_f32 v{f1}, 1.0, v{f1}")
            a(f"v_rcp_f32 v{f1}, v{f1}")
            xr = XR + 2 * u + (j >> 1)
            if j & 1: a(f"v_and_b32 v{f2}, s24, v{xr}")
            else: a(f"v_lshlrev_b32 v{f2}, 16, v{xr}")
            a(f"v_fma_f32 v{f0}, v{sv}, v{f1}, v{f2}")
        f0 = R + u * 4
        a(f"v_cvt_pk_bf16_f32 v{T+2*u}, v{f0}, v{f0+1}")
        a(f"v_cvt_pk_bf16_f32 v{T+2*u+1}, v{f0+2}, v{f0+3}")
        a(f"global_store_dwordx2 v{vX}, v[{T+2*u}:{T+2*u+1}], s[6:7] offset:{32*u}")
    if stamps:
        a("s_waitcnt vmcnt(0)")
        stamp(a, 3, True)
        a(f"""
        s_waitcnt lgkmcnt(0)
        s_sub_u32 s30, s62, s60
        s_sub_u32 s31, s64, s60
        s_sub_u32 s32, s66, s60
        v_mov_b32 v4, s30
        v_mov_b32 v5, s31
        v_mov_b32 v6, s32
        v_mov_b32 v7, s60
        s_lshl_b32 s30, s2, 2
        s_add_u32 s30, s30, s14
        s_lshl_b32 s30, s30, 4
        s_add_u32 s30, s30, {WS_STAMP}
        v_mov_b32 v3, s30
        global_store_dwordx4 v3, v[4:7], s[8:9]
        """)
    a.label(f"{label}_end")
    a("s_endpgm")
    a.end_kernel(label, 256 + 80, 102, 256, 256, 256, 81920)

if __name__ == "__main__":
    a = Asm()
    k2(a, "k2_kernel", stamps=True)
    open("k2only.s", "w").write(a.text())
```

```python
import sys; sys.path.insert(0, "dev")
from asmlib import *
from gen import *

XB = 96
EP = 32
ACC = [0, 64]
WF = 128
vLd = 1
vTr = 5
vSF = 17; vSQ = 18; vC1 = 19; vD2 = 20; vR = 21; vNegM = 22; vSum = 23; vSq = 24
vRow = 25; vCol = 26; vT = 27
sWave = 14; sMb = 15; sJ = 16; sHalf = 17
sM0 = 28
sSoff = 29
sStep = 30
sT0 = 31; sT1 = 32; sT2 = 33
sOne = 34; sLo = 35; sHi = 36
sOut = 38
SRDX = 20; SRDW = 24

def set_loader(a, st):
    L = a.newlabel("ld")
    a(f"""
    s_lshr_b32 s40, s{sWave}, 1               ; half block
    s_cmp_ge_u32 s{st}, 32
    s_cbranch_scc1 {L}_nf
    s_cmp_eq_u32 s40, 0
    s_cselect_b32 s{SRDW}, s48, s50
    s_cselect_b32 s{SRDW+1}, s49, s51
    s_mov_b32 s{SRDW+2}, {640*3456}
    s_movk_i32 s41, 3456
    s_lshl_b32 s42, s{st}, 7
    s_mov_b32 s{sSoff}, 0
    s_branch {L}_go
    {L}_nf:
    s_cmp_ge_u32 s{st}, 64
    s_cbranch_scc1 {L}_p
    s_mov_b32 s{SRDW}, s6
    s_mov_b32 s{SRDW+1}, s7
    s_mov_b32 s{SRDW+2}, {640*3840}
    s_movk_i32 s41, 3840
    s_sub_u32 s42, s{st}, 32
    s_lshl_b32 s42, s42, 1
    s_add_u32 s42, s42, s40
    s_lshl_b32 s42, s42, 7
    s_mov_b32 s{sSoff}, 0
    s_branch {L}_go
    {L}_p:
    ; pack job p = code-64 : p<70 w_down (cc=p/14, pair=p%14) ; 70..94 wo (cc=(p-70)/5, pair=(p-70)%5); 95+ none
    s_sub_u32 s43, s{st}, 64
    s_cmp_lt_u32 s43, 70
    s_cselect_b32 s{SRDW}, s52, s10
    s_cselect_b32 s{SRDW+1}, s53, s11
    s_mov_b32 s44, {640*1280}
    s_cselect_b32 s44, {1728*1280}, s44
    s_cselect_b32 s45, 0, 70
    s_cselect_b32 s46, 14, 5
    s_mov_b32 s47, {(1<<16)//5+1}
    s_cselect_b32 s47, {(1<<16)//14+1}, s47
    s_sub_u32 s43, s43, s45
    s_mul_i32 s45, s43, s47
    s_lshr_b32 s45, s45, 16                   ; cc
    s_mul_i32 s46, s45, s46
    s_sub_u32 s43, s43, s46                   ; pair
    s_mul_i32 s{sSoff}, s43, {128*1280}
    s_add_u32 s46, s{sSoff}, {128*1280}
    s_min_u32 s{SRDW+2}, s46, s44
    s_cmp_ge_u32 s45, 5
    s_cselect_b32 s{SRDW+2}, 0, s{SRDW+2}
    s_movk_i32 s41, 1280
    s_lshl_b32 s42, s45, 1
    s_add_u32 s42, s42, s40
    s_lshl_b32 s42, s42, 7
    s_mov_b32 s54, s45                        ; keep cc
    s_mov_b32 s55, s43                        ; keep pair
    {L}_go:
    s_lshl_b32 s{sStep}, s41, 6
    v_mad_u32_u24 v{vLd}, v{vRow}, s41, v{vCol}
    s_lshl_b32 s43, s41, 3
    s_sub_u32 s43, s43, 1024
    v_add_u32 v{vLd}, s42, v{vLd}
    v_add_u32 v{vLd+1}, s43, v{vLd}
    v_add_u32 v{vLd+2}, s43, v{vLd+1}
    v_add_u32 v{vLd+3}, s43, v{vLd+2}
    """.replace(f"\n    {L}_", f"\n{L}_"))

def dma_group(slot):
    r = [f"s_add_u32 m0, s{sM0}, {slot*16384}", "s_nop 0"]
    r = [r[0]]
    out = []
    for j in range(4):
        out.append(f"buffer_load_dwordx4 v{vLd+j}, s[{SRDW}:{SRDW+3}], s{sSoff} offen offset:{1024*j} lds")
    return r, out, [f"s_add_u32 s{sSoff}, s{sSoff}, s{sStep}"]

def tr_reads(S, t):
    slot, s = S >> 2, S & 3
    reg = slot >> 2
    b = WF + 16 * (S & 1) + 4 * t
    o = (slot & 3) * 16384 + 16 * s * 128
    return [f"ds_read_b64_tr_b16 a[{b}:{b+1}], v{vTr+4*reg+t} offset:{o}",
            f"ds_read_b64_tr_b16 a[{b+2}:{b+3}], v{vTr+4*reg+t} offset:{o+512}"]

def center_ops(S):
    x = XB + 4 * S; t = EP + 8 * (S & 1)
    ops = []
    for i in range(4):
        ops.append(f"v_dot2_f32_bf16 v{t+2*i}, v{x+i}, s{sLo}, v{vNegM}")
        ops.append(f"v_dot2_f32_bf16 v{t+2*i+1}, v{x+i}, s{sHi}, v{vNegM}")
    for i in range(4):
        ops.append(f"v_cvt_pk_bf16_f32 v{x+i}, v{t+2*i}, v{t+2*i+1}")
    return ops

def epi_f_ops(acc):
    ops = []
    for t in range(4):
        g = EP + 32 * (t & 1); u = g + 8; e = g + 16; pk = g + 24
        A = acc + 16 * t
        for i in range(8): ops.append(f"v_accvgpr_read_b32 v{g+i}, a{A+i}")
        for i in range(8): ops.append(f"v_mul_f32 v{e+i}, v{vC1}, v{g+i}")
        for i in range(8):
            ops.append(f"v_exp_f32 v{e+i}, v{e+i}")
            ops.append(f"v_accvgpr_read_b32 v{u+i}, a{A+8+i}")
        for i in range(8): ops.append(f"v_fma_f32 v{e+i}, v{e+i}, v{vD2}, v{vD2}")
        for i in range(8):
            ops.append(f"v_rcp_f32 v{e+i}, v{e+i}")
            ops.append(f"v_mul_f32 v{g+i}, v{g+i}, v{u+i}")
        for i in range(8): ops.append(f"v_mul_f32 v{g+i}, v{g+i}, v{e+i}")
        for i in range(4): ops.append(f"v_cvt_pk_bf16_f32 v{pk+i}, v{g+2*i}, v{g+2*i+1}")
        ops.append(f"global_store_dwordx4 v{vSF}, v[{pk}:{pk+3}], s[{sOut}:{sOut+1}] offset:{(t>>1)*4096 + (t&1)*512 - 2048}")
    return ops

def epi_q_ops(acc):
    ops = []
    for t in range(4):
        g = EP + 32 * (t & 1); pk = g + 16
        A = acc + 16 * t
        for i in range(16): ops.append(f"v_accvgpr_read_b32 v{g+i}, a{A+i}")
        for i in range(16): ops.append(f"v_mul_f32 v{g+i}, v{vR}, v{g+i}")
        for i in range(8): ops.append(f"v_cvt_pk_bf16_f32 v{pk+i}, v{g+2*i}, v{g+2*i+1}")
        for q in range(4):
            grp = 4 * t + 2 * (q & 1) + 16 * (q >> 1)
            ops.append(f"global_store_dwordx2 v{vSQ}, v[{pk+2*q}:{pk+2*q+1}], s[{sOut}:{sOut+1}] offset:{grp*256 - 4096}")
    return ops

def set_out_f(a, st):
    a(f"""
    s_lshl_b32 s40, s{sMb}, 1
    s_lshr_b32 s41, s{sWave}, 1
    s_add_u32 s40, s40, s41
    s_mul_i32 s40, s40, 74
    s_lshl_b32 s41, s{st}, 1
    s_add_u32 s40, s40, s41
    s_lshl_b32 s40, s40, 12
    s_and_b32 s41, s{sWave}, 1
    s_lshl_b32 s41, s41, 11
    s_add_u32 s40, s40, s41
    s_add_u32 s40, s40, {WS_AP + 2048}
    s_add_u32 s{sOut}, s8, s40
    s_addc_u32 s{sOut+1}, s9, 0
    """)
def set_out_q(a, st):
    a(f"""
    s_lshl_b32 s40, s{sMb}, 2
    s_add_u32 s40, s40, s{sWave}
    s_mul_i32 s40, s40, 122880
    s_sub_u32 s41, s{st}, 32
    s_lshl_b32 s41, s41, 13
    s_add_u32 s40, s40, s41
    s_add_u32 s40, s40, {WS_QKV + 4096}
    s_add_u32 s{sOut}, s8, s40
    s_addc_u32 s{sOut+1}, s9, 0
    """)

def body(a, acc, work, next_task, center=False):
    ngap = 160
    g0 = 4
    per = [[] for _ in range(ngap)]
    if work:
        n = len(work); span = ngap - g0 - 8
        for i, op in enumerate(work):
            per[g0 + i * span // n].append(op)
    pend_dma = []
    for S in range(40):
        i, s = S >> 2, S & 3
        cops = center_ops(S + 1) if (center and S + 1 < 40) else []
        for t in range(4):
            gap = 4 * S + t
            a("s_waitcnt lgkmcnt(6)")
            A = acc + 16 * t; w = WF + 16 * (S & 1) + 4 * t; x = XB + 4 * S
            c = "0" if S == 0 else f"a[{A}:{A+15}]"
            a(f"v_mfma_f32_32x32x16_bf16 a[{A}:{A+15}], a[{w}:{w+3}], v[{x}:{x+3}], {c}")
            for op in cops[3 * t:3 * t + 3]: a(op)
            if s == 3 and t == 0:
                a("s_waitcnt vmcnt(28)")
                a("s_barrier")
                pre, lds, post = dma_group((i - 1) % 10)
                for p in pre: a(p)
                pend_dma = lds + post
            for r in tr_reads((S + 1) % 40, t): a(r)
            if pend_dma:
                a(pend_dma.pop(0))
                if len(pend_dma) == 1:
                    a(pend_dma.pop(0))
                    if i == 0: set_loader(a, next_task)
            for op in per[gap]: a(op)
    assert not pend_dma or True
    for p in pend_dma: a(p)

def k1(a, label, stamps=False):
    a.begin_kernel(label)
    a(f"""
    s_cmp_ge_u32 s2, 256
    s_cbranch_scc1 {label}_end
    s_load_dwordx4 s[4:7], s[0:1], 0          ; x, wqkv
    s_load_dwordx2 s[10:11], s[0:1], 16       ; wo
    s_load_dwordx4 s[48:51], s[0:1], 32
    s_load_dwordx2 s[52:53], s[0:1], 48       ; down
    s_load_dwordx2 s[8:9], s[0:1], 72         ; ws
    """)
    stamp(a, 0, stamps)
    a(f"""
    v_lshrrev_b32 v{vT}, 6, v0
    v_and_b32 v0, 63, v0
    s_and_b32 s40, s2, 7
    v_readfirstlane_b32 s{sWave}, v{vT}
    s_lshr_b32 s41, s2, 3
    s_and_b32 s{sHalf}, s40, 1
    s_lshr_b32 s40, s40, 1
    s_lshl_b32 s40, s40, 2
    s_lshr_b32 s42, s41, 3
    s_add_u32 s{sMb}, s40, s42
    s_and_b32 s{sJ}, s41, 7
    s_lshl_b32 s{sM0}, s{sWave}, 12
    s_lshl_b32 s40, s{sMb}, 7
    s_lshl_b32 s41, s{sWave}, 5
    s_add_u32 s40, s40, s41
    s_mul_i32 s40, s40, 1280
    v_lshrrev_b32 v{vT}, 3, v0
    v_mul_u32_u24 v{vT}, 1280, v{vT}
    v_add_u32 v{vT}, s40, v{vT}
    v_lshrrev_b32 v{vT+1}, 4, v0
    v_and_b32 v{vT+2}, 7, v0
    v_xor_b32 v{vT+1}, v{vT+1}, v{vT+2}
    v_xor_b32 v{vT+2}, 4, v{vT+1}
    v_lshl_add_u32 v{vLd}, v{vT+1}, 4, v{vT}
    v_lshl_add_u32 v{vLd+1}, v{vT+2}, 4, v{vT}
    v_add_u32 v{vLd+1}, {8*1280-1024}, v{vLd+1}
    v_add_u32 v{vLd+2}, {2*(8*1280-1024)}, v{vLd}
    v_add_u32 v{vLd+3}, {2*(8*1280-1024)}, v{vLd+1}
    s_mov_b32 s{SRDX+2}, {2048*1280}
    s_mov_b32 s{SRDX+3}, 0x20000
    s_mov_b32 s{SRDW+3}, 0x20000
    s_waitcnt lgkmcnt(0)
    s_mov_b32 s{SRDX}, s4
    s_mov_b32 s{SRDX+1}, s5
    """)
    for i in range(10):
        a(f"s_add_u32 m0, s{sM0}, {i*16384}")
        a(f"s_movk_i32 s40, {i*128}")
        for j in range(4):
            a(f"buffer_load_dwordx4 v{vLd+j}, s[{SRDX}:{SRDX+3}], s40 offen offset:{1024*j} lds")
    a(f"""
    s_mul_i32 s40, s{sHalf}, 14
    s_add_u32 s{sT0}, s40, s{sJ}
    s_mul_i32 s41, s{sHalf}, 7
    s_add_u32 s41, s41, s{sJ}
    s_add_u32 s41, s41, 32
    s_add_u32 s42, s{sT0}, 8
    s_lshl_b32 s43, s{sMb}, 1
    s_add_u32 s43, s43, s{sHalf}
    s_mul_i32 s43, s43, 3
    s_add_u32 s43, s43, s{sJ}
    s_add_u32 s43, s43, {64-5}                 ; P code
    s_cmp_lt_u32 s{sJ}, 5
    s_cselect_b32 s{sT1}, s42, s41
    s_cselect_b32 s{sT2}, s41, s43
    s_cmp_eq_u32 s{sT0}, 7
    s_cselect_b32 s{sT1}, 13, s{sT1}
    s_mov_b32 s{sOne}, 0x3f803f80
    s_mov_b32 s{sLo}, 0x00003f80
    s_mov_b32 s{sHi}, 0x3f800000
    s_movk_i32 s56, 200
    v_lshrrev_b32 v{vRow}, 3, v0
    s_and_b32 s40, s{sWave}, 1
    s_lshl_b32 s40, s40, 5
    v_add_u32 v{vRow}, s40, v{vRow}
    v_bfe_u32 v{vT}, v0, 1, 2
    v_bfe_u32 v{vT+1}, v0, 4, 1
    s_and_b32 s40, s{sWave}, 2
    v_or_b32 v{vT+1}, s40, v{vT+1}              ; f
    v_xor_b32 v{vT}, v{vT}, v{vT+1}
    v_and_b32 v{vT+1}, 1, v0
    v_lshlrev_b32 v{vT+1}, 4, v{vT+1}
    v_lshl_add_u32 v{vCol}, v{vT}, 5, v{vT+1}
    v_bfe_u32 v{vT}, v0, 4, 1                   ; block
    v_bfe_u32 v{vT+1}, v0, 2, 2                 ; r
    v_lshrrev_b32 v{vT+2}, 5, v0                ; khalf
    v_lshl_add_u32 v{vT+2}, v{vT+2}, 3, v{vT+1} ; 8*khalf + r
    v_lshlrev_b32 v{vT+2}, 7, v{vT+2}
    v_lshl_add_u32 v{vT+2}, v{vT}, 13, v{vT+2}
    v_and_b32 v{vT+3}, 3, v0
    v_lshl_add_u32 v{vT+2}, v{vT+3}, 3, v{vT+2} ; + c*8
    v_lshrrev_b32 v{vT+1}, 1, v{vT+1}
    v_lshl_add_u32 v{vT}, v{vT}, 1, v{vT+1}     ; f
    """)
    for t in range(4):
        a(f"v_xor_b32 v{vT+1}, {t}, v{vT}")
        a(f"v_lshl_add_u32 v{vTr+t}, v{vT+1}, 5, v{vT+2}")
        a(f"v_add_u32 v{vTr+4+t}, 0x10000, v{vTr+t}")
        a(f"v_add_u32 v{vTr+8+t}, 0x20000, v{vTr+t}")
    a(f"""
    v_bfe_u32 v{vT}, v0, 4, 1
    v_lshlrev_b32 v{vT}, 10, v{vT}
    v_lshrrev_b32 v{vT+1}, 5, v0
    v_lshl_add_u32 v{vT}, v{vT+1}, 8, v{vT}
    v_and_b32 v{vT+1}, 15, v0
    v_lshl_add_u32 v{vSF}, v{vT+1}, 4, v{vT}
    v_lshlrev_b32 v{vSQ}, 3, v0
    v_and_b32 v{vT}, 31, v0
    v_lshlrev_b32 v{vT+1}, 7, v{vT}
    v_add_u32 v{vT+1}, s{sM0}, v{vT+1}
    v_bfe_u32 v{vT}, v0, 1, 3
    v_lshrrev_b32 v{vT+2}, 5, v0
    v_xor_b32 v{vT}, v{vT}, v{vT+2}
    """)
    for s in range(4):
        a(f"v_xor_b32 v{vT+2}, {2*s}, v{vT}")
        a(f"v_lshl_add_u32 v{EP+s}, v{vT+2}, 4, v{vT+1}")
    a(f"v_mov_b32 v{vSum}, 0")
    a(f"v_mov_b32 v{vSq}, 0")
    set_loader(a, sT0)
    for i in range(10):
        a(f"s_waitcnt vmcnt(36)")
        if i == 0: stamp(a, 1, stamps)
        if i in (4, 8):
            for s in range(4): a(f"v_add_u32 v{EP+s}, 0x10000, v{EP+s}")
        for s in range(4):
            x = XB + 4 * (4 * i + s)
            a(f"ds_read_b128 v[{x}:{x+3}], v{EP+s} offset:{(i&3)*16384}")
        if i > 0:
            for r in range(16):
                x = XB + 16 * (i - 1) + r
                a(f"v_dot2c_f32_bf16 v{vSum}, s{sOne}, v{x}")
                a(f"v_dot2c_f32_bf16 v{vSq}, v{x}, v{x}")
        a("s_waitcnt lgkmcnt(0)")
        if i < 9:
            pre, lds, post = dma_group(i)
            for p in pre: a(p)
            a("s_nop 0")
            for p in lds + post: a(p)
    for r in range(16):
        x = XB + 16 * 9 + r
        a(f"v_dot2c_f32_bf16 v{vSum}, s{sOne}, v{x}")
        a(f"v_dot2c_f32_bf16 v{vSq}, v{x}, v{x}")
    stamp(a, 2, stamps)
    a("s_waitcnt vmcnt(32)")
    a("s_barrier")
    for t in range(4):
        for r in tr_reads(0, t): a(r)
    a(f"""
    s_mov_b32 s40, 0x3acccccd                  ; 1/640
    v_mov_b32 v{vT}, v{vSum}
    v_mov_b32 v{vT+1}, v{vSq}
    s_nop 1
    v_permlane32_swap_b32 v{vSum}, v{vT}
    v_permlane32_swap_b32 v{vSq}, v{vT+1}
    s_nop 1
    v_add_f32 v{vSum}, v{vSum}, v{vT}
    v_add_f32 v{vSq}, v{vSq}, v{vT+1}
    v_mul_f32 v{vSum}, s40, v{vSum}             ; mean
    v_mul_f32 v{vSq}, s40, v{vSq}               ; E[x^2]
    v_cvt_pk_bf16_f32 v{vT}, v{vSum}, v{vSum}
    v_fma_f32 v{vSq}, -v{vSum}, v{vSum}, v{vSq} ; var
    v_and_b32 v{vT}, 0xffff0000, v{vT}
    v_xor_b32 v{vNegM}, 0x80000000, v{vT}
    v_max_f32 v{vSq}, 0, v{vSq}
    """)
    for op in center_ops(0)[:8]: a(op)
    a(f"""
    v_cvt_pk_bf16_f32 v{vT}, v{vSq}, v{vSq}
    v_and_b32 v{vT}, 0xffff0000, v{vT}
    v_add_f32 v{vT}, 0x3727c5ac, v{vT}          ; + 1e-5
    """)
    for op in center_ops(0)[8:]: a(op)
    a(f"""
    v_cvt_pk_bf16_f32 v{vT}, v{vT}, v{vT}
    v_and_b32 v{vT}, 0xffff0000, v{vT}
    v_sqrt_f32 v{vT}, v{vT}
    s_nop 0
    v_cvt_pk_bf16_f32 v{vT}, v{vT}, v{vT}
    v_and_b32 v{vT}, 0xffff0000, v{vT}          ; d (bf16)
    v_rcp_f32 v{vR}, v{vT}
    v_mul_f32 v{vD2}, v{vT}, v{vT}
    v_mul_f32 v{vC1}, 0x{NLOG2E:x}, v{vR}
    """)
    stamp(a, 3, stamps)
    body(a, ACC[0], None, sT1, center=True)
    stamp(a, 4, stamps)
    set_out_f(a, sT0)
    body(a, ACC[1], epi_f_ops(ACC[0]), sT2)
    stamp(a, 5, stamps)
    a(f"s_cmp_lt_u32 s{sJ}, 5")
    a(f"s_cbranch_scc0 {label}_two")
    set_out_f(a, sT1)
    body(a, ACC[0], epi_f_ops(ACC[1]), 56)
    stamp(a, 6, stamps)
    set_out_q(a, sT2)
    a("s_nop 7")
    for op in epi_q_ops(ACC[0]): a(op)
    a(f"s_branch {label}_fin")
    a.label(f"{label}_two")
    stamp(a, 6, stamps)
    a(f"s_cmp_ge_u32 s{sT1}, 32")
    a(f"s_cbranch_scc1 {label}_twoq")
    set_out_f(a, sT1)
    a("s_nop 7")
    for op in epi_f_ops(ACC[1]): a(op)
    a(f"s_branch {label}_pack")
    a.label(f"{label}_twoq")
    set_out_q(a, sT1)
    a("s_nop 7")
    for op in epi_q_ops(ACC[1]): a(op)
    a.label(f"{label}_pack")
    a(f"""
    s_cmp_ge_u32 s54, 5
    s_cbranch_scc1 {label}_fin
    s_sub_u32 s43, s{sT2}, 64
    s_cmp_lt_u32 s43, 70
    s_cselect_b32 s44, 0, 54
    s_cselect_b32 s45, 54, 74
    s_lshl_b32 s46, s55, 2
    s_add_u32 s46, s46, s{sWave}
    s_add_u32 s46, s46, s44                     ; T'
    s_waitcnt vmcnt(0) lgkmcnt(0)
    s_barrier
    s_cmp_ge_u32 s46, s45
    s_cbranch_scc1 {label}_fin
    v_lshrrev_b32 v{vT}, 5, v0
    v_lshlrev_b32 v{vT}, 4, v{vT}
    v_bfe_u32 v{vT+1}, v0, 4, 1
    v_lshl_add_u32 v{vT}, v{vT+1}, 2, v{vT}
    v_bfe_u32 v{vT+1}, v0, 2, 2
    v_add_u32 v{vT}, v{vT}, v{vT+1}
    v_lshlrev_b32 v{vT}, 7, v{vT}
    v_and_b32 v{vT+2}, 3, v0
    v_lshl_add_u32 v{vT}, v{vT+2}, 3, v{vT}
    s_lshr_b32 s40, s{sWave}, 1
    s_lshl_b32 s40, s40, 14
    s_and_b32 s41, s{sWave}, 1
    s_lshl_b32 s41, s41, 12
    s_add_u32 s40, s40, s41
    v_add_u32 v{vT}, s40, v{vT}
    v_lshrrev_b32 v{vT+1}, 1, v{vT+1}           ; (r>>1)&1
    v_lshlrev_b32 v{vT+3}, 4, v0                ; lane*16
    """)
    for vv in range(8):
        blk, ch = vv >> 2, vv & 3
        a(f"v_xor_b32 v{vT+2}, {ch ^ (2*blk)}, v{vT+1}")
        a(f"v_lshl_add_u32 v{vT+2}, v{vT+2}, 5, v{vT}")
        a(f"ds_read_b64_tr_b16 v[{EP+4*vv}:{EP+4*vv+1}], v{vT+2} offset:{blk*8192}")
        a(f"ds_read_b64_tr_b16 v[{EP+4*vv+2}:{EP+4*vv+3}], v{vT+2} offset:{blk*8192+1024}")
        if vv == 3: a("s_waitcnt lgkmcnt(0)")
    a("s_waitcnt lgkmcnt(0)")
    for vv in range(8):
        a(f"""
        s_lshl_b32 s40, s54, 3
        s_add_u32 s40, s40, {vv}
        s_mul_i32 s41, s40, {(1<<16)//5+1}
        s_lshr_b32 s41, s41, 16
        s_mul_i32 s42, s41, 5
        s_sub_u32 s42, s40, s42
        s_mul_i32 s41, s41, 74
        s_add_u32 s41, s41, s46
        s_mul_i32 s41, s41, 5
        s_add_u32 s41, s41, s42
        s_lshl_b32 s41, s41, 10
        s_add_u32 s41, s41, {WS_WP}
        s_add_u32 s{sOut}, s8, s41
        s_addc_u32 s{sOut+1}, s9, 0
        global_store_dwordx4 v{vT+3}, v[{EP+4*vv}:{EP+4*vv+3}], s[{sOut}:{sOut+1}]
        """)
    a.label(f"{label}_fin")
    if stamps:
        a("s_waitcnt vmcnt(0)")
        stamp(a, 7, True)
        a("s_waitcnt lgkmcnt(0)")
        for i in range(1, 8):
            a(f"s_sub_u32 s40, s{60+2*i}, s60")
            a(f"v_mov_b32 v{EP+i}, s40")
        a(f"""
        v_mov_b32 v{EP}, s60
        s_lshl_b32 s40, s2, 2
        s_add_u32 s40, s40, s{sWave}
        s_lshl_b32 s40, s40, 5
        s_add_u32 s40, s40, {WS_STAMP + 0x10000}
        v_mov_b32 v{vT}, s40
        global_store_dwordx4 v{vT}, v[{EP}:{EP+3}], s[8:9]
        global_store_dwordx4 v{vT}, v[{EP+4}:{EP+7}], s[8:9] offset:16
        """)
    a.label(f"{label}_end")
    a("s_endpgm")
    a.end_kernel(label, 256 + 160, 102, 256, 256, 256, 163840)

if __name__ == "__main__":
    a = Asm()
    k1(a, "k1_kernel", stamps=True)
    open("k1only.s", "w").write(a.text())
```

```python
import sys; sys.path.insert(0, "dev")
from asmlib import *
import gen, k1, att
stamps = "--stamps" in sys.argv
out = [x for x in sys.argv[1:] if not x.startswith("--")][0]
a = Asm()
k1.k1(a, "k1_kernel", stamps=stamps)
att.katt(a, "att_kernel")
gen.k2(a, "k2_kernel", stamps=stamps)
open(out, "w").write(a.text("generated by dev/build.py: K1 = LN + QKV/gate/up GEMM (+weight pack), att = sliding-window attention, K2 = down/wo GEMM + combine"))
```

```python
import sys; sys.path.insert(0, "dev")
from asmlib import *

WS_AP = 0
WS_WP = 0xA00000
WS_QKV = 0x1000000
WS_FLAG = 0x1800000
WS_STAMP = 0x1900000
LOG2E = 0x3fb8aa3b
NLOG2E = 0xbfb8aa3b

def stamp(a, idx, on):
    if on:
        a(f"s_memtime s[{60+2*idx}:{61+2*idx}]")

def rt_start(a, on, sreg=88):
    if on: a(f"s_memrealtime s[{sreg}:{sreg+1}]")
def rt_end(a, on, kidx, ws, sreg=88, v=4):
    if on:
        a(f"""
        s_waitcnt vmcnt(0)
        s_memrealtime s[{sreg+2}:{sreg+3}]
        s_waitcnt lgkmcnt(0)
        v_mov_b32 v{v}, s{sreg}
        v_mov_b32 v{v+1}, s{sreg+2}
        s_lshl_b32 s{sreg+1}, s2, 3
        s_add_u32 s{sreg+1}, s{sreg+1}, {WS_STAMP + 0x40000 + kidx*4096}
        v_mov_b32 v{v+2}, s{sreg+1}
        global_store_dwordx2 v{v+2}, v[{v}:{v+1}], s[{ws}:{ws+1}]
        """)

def k2(a, label, D=6, stamps=False):
    a.begin_kernel(label)
    ACC = 0
    STG = 16
    vLane16 = 1; vX = 2
    XR = 4
    a(f"""
    s_cmp_ge_u32 s2, 256
    s_cbranch_scc1 {label}_end
    s_load_dwordx2 s[4:5], s[0:1], 0
    s_load_dwordx2 s[6:7], s[0:1], 56
    s_load_dwordx2 s[8:9], s[0:1], 72
    """)
    stamp(a, 0, stamps)
    rt_start(a, stamps)
    a(f"""
    v_lshrrev_b32 v3, 6, v0
    v_and_b32 v0, 63, v0
    v_lshlrev_b32 v{vLane16}, 4, v0
    v_readfirstlane_b32 s14, v3
    s_and_b32 s15, s2, 7                 ; xcd
    s_lshr_b32 s16, s2, 3                ; i = 0..31
    s_lshr_b32 s17, s16, 3
    s_lshl_b32 s15, s15, 2
    s_add_u32 s15, s15, s17
    s_and_b32 s16, s16, 7                ; nb
    s_mul_i32 s17, s14, 18               ; T start
    s_mul_i32 s18, s15, 74
    s_add_u32 s18, s18, s17
    s_lshl_b32 s18, s18, 12              ; A offset
    s_mul_i32 s19, s16, 74
    s_add_u32 s19, s19, s17
    s_mul_i32 s19, s19, 5120
    s_add_u32 s19, s19, {WS_WP + 2048}
    s_waitcnt lgkmcnt(0)
    s_add_u32 s10, s8, s18
    s_addc_u32 s11, s9, 0
    s_add_u32 s12, s8, s19
    s_addc_u32 s13, s9, 0
    """)
    def loads(slot):
        b = STG + 36 * slot
        for i in range(4):
            a(f"global_load_dwordx4 v[{b+4*i}:{b+4*i+3}], v{vLane16}, s[10:11] offset:{1024*i}")
        for u in range(5):
            a(f"global_load_dwordx4 v[{b+16+4*u}:{b+16+4*u+3}], v{vLane16}, s[12:13] offset:{1024*u-2048}")
        a("s_add_u32 s10, s10, 4096")
        a("s_addc_u32 s11, s11, 0")
        a("s_add_u32 s12, s12, 5120")
        a("s_addc_u32 s13, s13, 0")
    def mfmas(slot, first):
        b = STG + 36 * slot
        for i in range(4):
            for u in range(5):
                t = ACC + (i * 5 + u) * 4
                c = "0" if first else f"a[{t}:{t+3}]"
                a(f"v_mfma_f32_16x16x32_bf16 a[{t}:{t+3}], v[{b+16+4*u}:{b+16+4*u+3}], v[{b+4*i}:{b+4*i+3}], {c}")
    a(f"""
    s_lshl_b32 s20, s15, 6
    s_lshl_b32 s21, s14, 4
    s_add_u32 s20, s20, s21
    s_mul_i32 s20, s20, 1280
    s_mul_i32 s21, s16, 160
    s_add_u32 s20, s20, s21
    v_and_b32 v3, 15, v0
    v_mul_u32_u24 v{vX}, 1280, v3
    v_lshrrev_b32 v3, 4, v0
    v_lshlrev_b32 v3, 3, v3
    v_add3_u32 v{vX}, v{vX}, v3, s20
    """)
    for u in range(5):
        a(f"global_load_dwordx2 v[{XR+2*u}:{XR+2*u+1}], v{vX}, s[4:5] offset:{32*u}")
    for r in range(80):
        a(f"v_accvgpr_write_b32 a{ACC+r}, 0")
    N = 20
    a("s_cmp_eq_u32 s14, 3")
    a(f"s_cbranch_scc1 {label}_p20")
    for s in range(2, 2 + D):
        loads(s % D)
    a(f"s_branch {label}_s2")
    a.label(f"{label}_p20")
    for s in range(D):
        loads(s % D)
    for s in range(N):
        if s == 2: a.label(f"{label}_s2")
        a(f"s_waitcnt vmcnt({9 * min(D - 1, N - 1 - s)})")
        if s == 2: stamp(a, 1, stamps)
        mfmas(s % D, False)
        if s + D < N:
            loads(s % D)
    stamp(a, 2, stamps)
    a("s_nop 7")
    a(f"""
    s_mul_i32 s22, s14, 20480
    v_add_u32 v3, s22, v{vLane16}
    """)
    for i in range(4):
        for u in range(5):
            t = ACC + (i * 5 + u) * 4
            a(f"ds_write_b128 v3, a[{t}:{t+3}] offset:{(i*5+u)*1024}")
    a(f"""
    s_mul_i32 s22, s14, 5120
    v_add_u32 v3, s22, v{vLane16}
    v_add_u32 v14, 40960, v3
    s_waitcnt lgkmcnt(0)
    s_barrier
    """)
    R = STG
    for w in range(4):
        for u in range(5):
            r = R + (w * 5 + u) * 4
            if w < 2: a(f"ds_read_b128 v[{r}:{r+3}], v3 offset:{w*20480 + u*1024}")
            else: a(f"ds_read_b128 v[{r}:{r+3}], v14 offset:{(w-2)*20480 + u*1024}")
        if w == 1: a("s_waitcnt lgkmcnt(5)")
    a(f"s_mov_b32 s23, {NLOG2E}")
    a("s_mov_b32 s24, 0xffff0000")
    a("s_waitcnt lgkmcnt(0)")
    T = R + 80
    for u in range(5):
        for j in range(4):
            f0, f1, f2, sv = (R + (w * 5 + u) * 4 + j for w in range(4))
            a(f"v_add_f32 v{f0}, v{f0}, v{f1}")
            a(f"v_add_f32 v{f0}, v{f0}, v{f2}")
            a(f"v_mul_f32 v{f1}, s23, v{f0}")
            a(f"v_exp_f32 v{f1}, v{f1}")
            a(f"v_mul_f32 v{sv}, v{sv}, v{f0}")
            a(f"v_add_f32 v{f1}, 1.0, v{f1}")
            a(f"v_rcp_f32 v{f1}, v{f1}")
            xr = XR + 2 * u + (j >> 1)
            if j & 1: a(f"v_and_b32 v{f2}, s24, v{xr}")
            else: a(f"v_lshlrev_b32 v{f2}, 16, v{xr}")
            a(f"v_fma_f32 v{f0}, v{sv}, v{f1}, v{f2}")
        f0 = R + u * 4
        a(f"v_cvt_pk_bf16_f32 v{T+2*u}, v{f0}, v{f0+1}")
        a(f"v_cvt_pk_bf16_f32 v{T+2*u+1}, v{f0+2}, v{f0+3}")
        a(f"global_store_dwordx2 v{vX}, v[{T+2*u}:{T+2*u+1}], s[6:7] offset:{32*u}")
    if stamps:
        a("s_waitcnt vmcnt(0)")
        stamp(a, 3, True)
        a(f"""
        s_waitcnt lgkmcnt(0)
        s_sub_u32 s30, s62, s60
        s_sub_u32 s31, s64, s60
        s_sub_u32 s32, s66, s60
        v_mov_b32 v4, s30
        v_mov_b32 v5, s31
        v_mov_b32 v6, s32
        v_mov_b32 v7, s60
        s_lshl_b32 s30, s2, 2
        s_add_u32 s30, s30, s14
        s_lshl_b32 s30, s30, 4
        s_add_u32 s30, s30, {WS_STAMP}
        v_mov_b32 v3, s30
        global_store_dwordx4 v3, v[4:7], s[8:9]
        """)
    rt_end(a, stamps, 2, 8)
    a.label(f"{label}_end")
    a("s_endpgm")
    a.end_kernel(label, 256 + 80, 102, 256, 256, 256, 81920)

if __name__ == "__main__":
    a = Asm()
    k2(a, "k2_kernel", stamps=True)
    open("k2only.s", "w").write(a.text())
```

```python
import sys; sys.path.insert(0, "dev")
from asmlib import *
from gen import *

XB = 96
EP = 32
ACC = [0, 64]
WF = 128
NWB = 3
vLd = 1
vTr = 5
vSF = 17; vSQ = 18; vC1 = 19; vD2 = 20; vR = 21; vNegM = 22; vSum = 23; vSq = 24
vRow = 25; vCol = 26; vT = 27
vJunk = 31
sWave = 14; sMb = 15; sJ = 16; sHalf = 17
sM0 = 18; sSoff = 19
SRDX = 20
PB = [24, 32, 40]
sStep = 48
sOne = 49; sLo = 50; sHi = 51
sOut = 52
sCC = 54; sPair = 55
sRot = 100; sWrap = 101
sA = 92

class VM:
    def __init__(self): self.q = []
    def copy(self):
        v = VM(); v.q = list(self.q); return v
    def issue(self, a, ins, tag):
        a(ins); self.q.append(tag)
    def n_after(self, tag):
        idx = max(i for i, t in enumerate(self.q) if t == tag)
        return len(self.q) - 1 - idx
    def wait(self, a, tag):
        n = self.n_after(tag)
        if tag[0] in "BX": assert self.q.count(tag) == 4, (tag, self.q.count(tag))
        assert n <= 63, n
        a(f"s_waitcnt vmcnt({n})")

def task_params(a, P):
    L = a.newlabel("tp"); st = P + 7; t = sA
    a(f"""
    s_mov_b32 s{P+3}, 0x20000
    s_lshr_b32 s{t}, s{sWave}, 1
    s_cmp_ge_u32 s{st}, 32
    s_cbranch_scc1 {L}_nf
    s_cmp_eq_u32 s{t}, 0
    s_cselect_b32 s{P}, s56, s58
    s_cselect_b32 s{P+1}, s57, s59
    s_mov_b32 s{P+2}, {640*3456}
    s_movk_i32 s{P+4}, 3456
    s_lshl_b32 s{P+5}, s{st}, 7
    s_mul_i32 s{P+6}, s{sRot}, {64*3456}
    s_branch {L}_go
    {L}_nf:
    s_cmp_ge_u32 s{st}, 64
    s_cbranch_scc1 {L}_p
    s_mov_b32 s{P}, s6
    s_mov_b32 s{P+1}, s7
    s_mov_b32 s{P+2}, {640*3840}
    s_movk_i32 s{P+4}, 3840
    s_sub_u32 s{P+5}, s{st}, 32
    s_lshl_b32 s{P+5}, s{P+5}, 1
    s_add_u32 s{P+5}, s{P+5}, s{t}
    s_lshl_b32 s{P+5}, s{P+5}, 7
    s_mul_i32 s{P+6}, s{sRot}, {64*3840}
    s_branch {L}_go
    {L}_p:
    ; pack job p = code-64 : p<70 w_down (cc=p/14, pair=p%14) ; 70..94 wo (cc=(p-70)/5, pair=(p-70)%5); 95+ none
    s_sub_u32 s{t+1}, s{st}, 64
    s_cmp_lt_u32 s{t+1}, 70
    s_cselect_b32 s{P}, s12, s10
    s_cselect_b32 s{P+1}, s13, s11
    s_mov_b32 s{t+2}, {640*1280}
    s_cselect_b32 s{t+2}, {1728*1280}, s{t+2}
    s_cselect_b32 s{t+3}, 0, 70
    s_cselect_b32 s{t+4}, 14, 5
    s_mov_b32 s{t+5}, {(1<<16)//5+1}
    s_cselect_b32 s{t+5}, {(1<<16)//14+1}, s{t+5}
    s_sub_u32 s{t+1}, s{t+1}, s{t+3}
    s_mul_i32 s{sCC}, s{t+1}, s{t+5}
    s_lshr_b32 s{sCC}, s{sCC}, 16
    s_mul_i32 s{t+4}, s{sCC}, s{t+4}
    s_sub_u32 s{sPair}, s{t+1}, s{t+4}
    s_mul_i32 s{P+6}, s{sPair}, {128*1280}
    s_add_u32 s{t+4}, s{P+6}, {128*1280}
    s_min_u32 s{P+2}, s{t+4}, s{t+2}
    s_cmp_ge_u32 s{sCC}, 5
    s_cselect_b32 s{P+2}, 0, s{P+2}
    s_movk_i32 s{P+4}, 1280
    s_lshl_b32 s{P+5}, s{sCC}, 1
    s_add_u32 s{P+5}, s{P+5}, s{t}
    s_lshl_b32 s{P+5}, s{P+5}, 7
    {L}_go:
    """)

def switch_ops(P):
    t = sA
    return [f"v_mad_u32_u24 v{vLd}, v{vRow}, s{P+4}, v{vCol}",
            f"s_lshl_b32 s{sStep}, s{P+4}, 6",
            f"s_lshl_b32 s{t}, s{P+4}, 3",
            f"s_sub_u32 s{t}, s{t}, 1024",
            f"v_add_u32 v{vLd}, s{P+5}, v{vLd}",
            f"s_mul_i32 s{sWrap}, s{sStep}, 10",
            f"s_mov_b32 s{sSoff}, s{P+6}",
            f"v_add_u32 v{vLd+1}, s{t}, v{vLd}",
            f"v_add_u32 v{vLd+2}, s{t}, v{vLd+1}",
            f"v_add_u32 v{vLd+3}, s{t}, v{vLd+2}"]

def touch_w(a, vm, P):
    t = sA
    a(f"""
    s_and_b32 s{t}, s{sMb}, 3
    s_lshl_b32 s{t}, s{t}, 1
    s_and_b32 s{t+1}, s{sWave}, 1
    s_add_u32 s{t}, s{t}, s{t+1}
    s_mul_i32 s{t}, s{t}, 80
    s_mul_i32 s{t}, s{t}, s{P+4}
    s_add_u32 s{t}, s{t}, s{P+5}
    s_add_u32 s{t}, s{t}, s{P+6}
    s_lshl_b32 s{t+1}, s{P+4}, 6
    s_add_u32 s{t+1}, s{t+1}, s{t}
    v_mul_u32_u24 v{vT}, s{P+4}, v0
    """)
    vm.issue(a, f"buffer_load_dword v{vJunk}, v{vT}, s[{P}:{P+3}], s{t} offen", "touch")
    a("s_mov_b64 exec, 0xffff")
    vm.issue(a, f"buffer_load_dword v{vJunk}, v{vT}, s[{P}:{P+3}], s{t+1} offen", "touch")
    a("s_mov_b64 exec, -1")

def dma_ops(P, slot):
    pre = f"s_add_u32 m0, s{sM0}, {slot*16384}"
    lds = [f"buffer_load_dwordx4 v{vLd+j}, s[{P}:{P+3}], s{sSoff} offen offset:{1024*j} lds" for j in range(4)]
    post = f"s_add_u32 s{sSoff}, s{sSoff}, s{sStep}; s_cmp_eq_u32 s{sSoff}, s{sWrap}; s_cselect_b32 s{sSoff}, 0, s{sSoff}"
    return pre, lds, post

def tr_reads(G, t):
    S = G % 40
    slot, s = S >> 2, S & 3
    reg = slot >> 2
    b = WF + 16 * (G % NWB) + 4 * t
    o = (slot & 3) * 16384 + 16 * s * 128
    return [f"ds_read_b64_tr_b16 a[{b}:{b+1}], v{vTr+4*reg+t} offset:{o}",
            f"ds_read_b64_tr_b16 a[{b+2}:{b+3}], v{vTr+4*reg+t} offset:{o+512}"]

def center_ops(stage):
    x = XB + 16 * stage; t = EP
    d = []
    for i in range(16):
        d.append(f"v_dot2_f32_bf16 v{t+2*i}, v{x+i}, s{sLo}, v{vNegM}")
        d.append(f"v_dot2_f32_bf16 v{t+2*i+1}, v{x+i}, s{sHi}, v{vNegM}")
    c = [f"v_cvt_pk_bf16_f32 v{x+i}, v{t+2*i}, v{t+2*i+1}" for i in range(16)]
    return d, c

def epi_f_ops(acc):
    ops = []
    for t in range(4):
        g = EP + 32 * (t & 1); u = g + 8; e = g + 16; pk = g + 24
        A = acc + 16 * t
        for i in range(8): ops.append(f"v_accvgpr_read_b32 v{g+i}, a{A+i}")
        for i in range(8): ops.append(f"v_mul_f32 v{e+i}, v{vC1}, v{g+i}")
        for i in range(8):
            ops.append(f"v_exp_f32 v{e+i}, v{e+i}")
            ops.append(f"v_accvgpr_read_b32 v{u+i}, a{A+8+i}")
        for i in range(8): ops.append(f"v_fma_f32 v{e+i}, v{e+i}, v{vD2}, v{vD2}")
        for i in range(8):
            ops.append(f"v_rcp_f32 v{e+i}, v{e+i}")
            ops.append(f"v_mul_f32 v{g+i}, v{g+i}, v{u+i}")
        for i in range(8): ops.append(f"v_mul_f32 v{g+i}, v{g+i}, v{e+i}")
        for i in range(4): ops.append(f"v_cvt_pk_bf16_f32 v{pk+i}, v{g+2*i}, v{g+2*i+1}")
        ops.append(f"global_store_dwordx4 v{vSF}, v[{pk}:{pk+3}], s[{sOut}:{sOut+1}] offset:{(t>>1)*4096 + (t&1)*512 - 2048} sc1")
    return ops

def epi_q_ops(acc):
    ops = []
    for t in range(4):
        g = EP + 32 * (t & 1); pk = g + 16
        A = acc + 16 * t
        for i in range(16): ops.append(f"v_accvgpr_read_b32 v{g+i}, a{A+i}")
        for i in range(16): ops.append(f"v_mul_f32 v{g+i}, v{vR}, v{g+i}")
        for i in range(8): ops.append(f"v_cvt_pk_bf16_f32 v{pk+i}, v{g+2*i}, v{g+2*i+1}")
        for q in range(4):
            grp = 4 * t + 2 * (q & 1) + 16 * (q >> 1)
            ops.append(f"global_store_dwordx2 v{vSQ}, v[{pk+2*q}:{pk+2*q+1}], s[{sOut}:{sOut+1}] offset:{grp*256 - 4096} sc1")
    return ops

def out_f_ops(st):
    t = sA + 2
    return f"""s_lshl_b32 s{t}, s{sMb}, 1
    s_lshr_b32 s{t+1}, s{sWave}, 1
    s_add_u32 s{t}, s{t}, s{t+1}
    s_mul_i32 s{t}, s{t}, 74
    s_lshl_b32 s{t+1}, s{st}, 1
    s_add_u32 s{t}, s{t}, s{t+1}
    s_lshl_b32 s{t}, s{t}, 12
    s_and_b32 s{t+1}, s{sWave}, 1
    s_lshl_b32 s{t+1}, s{t+1}, 11
    s_add_u32 s{t}, s{t}, s{t+1}
    s_add_u32 s{t}, s{t}, {WS_AP + 2048}
    s_add_u32 s{sOut}, s8, s{t}; s_addc_u32 s{sOut+1}, s9, 0""".split("\n")
def out_q_ops(st):
    t = sA + 2
    return f"""s_lshl_b32 s{t}, s{sMb}, 2
    s_add_u32 s{t}, s{t}, s{sWave}
    s_mul_i32 s{t}, s{t}, 122880
    s_sub_u32 s{t+1}, s{st}, 32
    s_lshl_b32 s{t+1}, s{t+1}, 13
    s_add_u32 s{t}, s{t}, s{t+1}
    s_add_u32 s{t}, s{t}, {WS_QKV + 4096}
    s_add_u32 s{sOut}, s8, s{t}; s_addc_u32 s{sOut+1}, s9, 0""".split("\n")

def emit(a, vm, op):
    for o in op.split(";"):
        o = o.strip()
        if o.startswith("global_store") or o.startswith("buffer_"): vm.issue(a, o, "st")
        else: a(o)

def cost(op):
    if op.startswith(("v_exp", "v_rcp")): return 2.0
    if op.startswith("s_"): return 0.5
    return 1.0

def body(a, vm, T, cfg, work, ntask, center=False, extra=None):
    LA = cfg["LA"]; acc = ACC[T & 1]
    ngap = 160
    per = [[] for _ in range(ngap)]
    if work:
        cap = [cfg["cap"][g & 3] for g in range(ngap)]
        g0, g1 = 4, ngap - 4
        tot = sum(cost(o) for o in work); ctot = sum(cap[g0:g1])
        scale = tot / ctot
        g = g0; room = cap[g] * scale
        for op in work:
            while room <= 0 and g < g1 - 1:
                g += 1; room += cap[g] * scale
            per[g].append(op); room -= cost(op)
    if center:
        for st in range(1, 10):
            d, c = center_ops(st)
            base = 16 * (st - 1)
            per[base + cfg["cgap"]] += d
            cg = [base + x for x in cfg["cvtgaps"]]
            for i, op in enumerate(c): per[cg[i * len(cg) // 16]].append(op)
    if extra:
        for g, fn in extra.items(): per[g].append(fn)
    st8 = cfg.setdefault("st8", {"next": cfg["nb0"], "pend": []})
    pend = st8["pend"]
    for S in range(40):
        i, s = S >> 2, S & 3
        G = 40 * T + S
        for t in range(4):
            gap = 4 * S + t
            if t == 0: a(f"s_waitcnt lgkmcnt({8 if G + 1 < 40 * ntask else 0})")
            A = acc + 16 * t; w = WF + 16 * (G % NWB) + 4 * t; x = XB + 4 * S
            c = "0" if S == 0 else f"a[{A}:{A+15}]"
            a(f"v_mfma_f32_32x32x16_bf16 a[{A}:{A+15}], a[{w}:{w+3}], v[{x}:{x+3}], {c}")
            n = 10 * T + i
            if s == 2 and t == 0 and n + 1 < 10 * ntask:
                vm.wait(a, f"B{n+1}")
                a("s_barrier")
                k = 0
                while st8["next"] <= n + LA and st8["next"] < 10 * ntask and k < 2:
                    g = st8["next"]; st8["next"] += 1; k += 1
                    if g % 10 == 0: pend += [("op", o) for o in switch_ops(PB[g // 10])]
                    pre, lds, post = dma_ops(PB[g // 10], g % 10)
                    pend += [("op", pre)] + [("ld", l, f"B{g}") for l in lds] + [("op", post)]
            if t < 2 and G + 2 < 40 * ntask:
                for tt in (2 * t, 2 * t + 1):
                    for r in tr_reads(G + 2, tt): a(r)
            elif t < 2:
                pass
            nld = sum(1 for p_ in pend if p_[0] == "ld")
            if pend and (t in cfg["dmagaps"] or (nld > 4 and t >= 2)):
                while pend and pend[0][0] == "op": emit(a, vm, pend.pop(0)[1])
                if pend:
                    if a.lines[-1].strip().startswith("s_add_u32 m0"): a("s_nop 0")
                    _, l, tag = pend.pop(0); vm.issue(a, l, tag)
                    if pend and pend[0][0] == "op" and "cselect" in pend[0][1]: emit(a, vm, pend.pop(0)[1])
            for op in per[gap]:
                if callable(op): op()
                else: emit(a, vm, op)
    if T == 1:
        while pend:
            p_ = pend.pop(0)
            if p_[0] == "op": emit(a, vm, p_[1])
            else:
                if a.lines[-1].strip().startswith("s_add_u32 m0"): a("s_nop 0")
                vm.issue(a, p_[1], p_[2])

def k1(a, label, stamps=False, cfg=None, codelen=None):
    cfg = dict(dict(LA=6, XW=5, cap=[0.5, 0.5, 4, 4], cgap=0, cvtgaps=[2, 3, 6, 7, 10, 11, 14], touch=True, rot=True,
                    dmagaps=[2], PB=2), **(cfg or {}))
    vm = VM()
    sX = sA + 7
    a.begin_kernel(label)
    a(f"""
    s_cmp_ge_u32 s2, 256
    s_cbranch_scc1 {label}_end
    s_load_dwordx4 s[4:7], s[0:1], 0          ; x, wqkv
    s_load_dwordx2 s[10:11], s[0:1], 16       ; wo
    s_load_dwordx4 s[56:59], s[0:1], 32
    s_load_dwordx2 s[12:13], s[0:1], 48       ; down
    s_load_dwordx2 s[8:9], s[0:1], 72         ; ws
    """)
    stamp(a, 0, stamps)
    rt_start(a, stamps)
    if cfg["touch"]:
        a(f"""
        s_getpc_b64 s[{sA}:{sA+1}]
        s_lshr_b32 s{sA+2}, s2, 3
        s_mul_i32 s{sA+2}, s{sA+2}, {10*128}
        v_lshlrev_b32 v{vT}, 7, v0
        v_add_u32 v{vT}, s{sA+2}, v{vT}
        v_cmp_gt_u32 vcc, 10, v0
        s_and_saveexec_b64 s[{sA+2}:{sA+3}], vcc
        s_cbranch_execz {label}_nt
        global_load_dword v{vJunk}, v{vT}, s[{sA}:{sA+1}]
        {label}_nt:
        s_mov_b64 exec, -1
        """)
    a(f"""
    v_lshrrev_b32 v{vT}, 6, v0
    v_and_b32 v0, 63, v0
    s_and_b32 s{sA}, s2, 7
    v_readfirstlane_b32 s{sWave}, v{vT}
    s_lshr_b32 s{sA+1}, s2, 3
    s_and_b32 s{sHalf}, s{sA}, 1
    s_lshr_b32 s{sA}, s{sA}, 1
    s_lshl_b32 s{sA}, s{sA}, 2
    s_lshr_b32 s{sA+2}, s{sA+1}, 3
    s_add_u32 s{sMb}, s{sA}, s{sA+2}
    s_and_b32 s{sJ}, s{sA+1}, 7
    s_lshl_b32 s{sM0}, s{sWave}, 12
    ; rot = (jj + (5*mbl)>>1) % 10
    s_mul_i32 s{sRot}, s{sA+2}, 5
    s_lshr_b32 s{sRot}, s{sRot}, 1
    s_add_u32 s{sRot}, s{sRot}, s{sJ}
    s_sub_u32 s{sA+3}, s{sRot}, 10
    s_cmp_ge_u32 s{sRot}, 10
    s_cselect_b32 s{sRot}, s{sA+3}, s{sRot}
    {"" if cfg["rot"] else f"s_mov_b32 s{sRot}, 0"}
    s_lshl_b32 s{sX}, s{sRot}, 7
    s_lshl_b32 s{sA}, s{sMb}, 7
    s_lshl_b32 s{sA+1}, s{sWave}, 5
    s_add_u32 s{sA}, s{sA}, s{sA+1}
    s_mul_i32 s{sA}, s{sA}, 1280
    v_lshrrev_b32 v{vT}, 3, v0
    v_mul_u32_u24 v{vT}, 1280, v{vT}
    v_add_u32 v{vT}, s{sA}, v{vT}
    v_lshrrev_b32 v{vT+1}, 4, v0
    v_and_b32 v{vT+2}, 7, v0
    v_xor_b32 v{vT+1}, v{vT+1}, v{vT+2}
    v_xor_b32 v{vT+2}, 4, v{vT+1}
    v_lshl_add_u32 v{EP+4}, v{vT+1}, 4, v{vT}
    v_lshl_add_u32 v{EP+5}, v{vT+2}, 4, v{vT}
    v_add_u32 v{EP+5}, {8*1280-1024}, v{EP+5}
    v_add_u32 v{EP+6}, {2*(8*1280-1024)}, v{EP+4}
    v_add_u32 v{EP+7}, {2*(8*1280-1024)}, v{EP+5}
    s_mov_b32 s{SRDX+2}, {2048*1280}
    s_mov_b32 s{SRDX+3}, 0x20000
    s_mul_i32 s{sA+2}, s{sHalf}, 14
    s_add_u32 s{PB[0]+7}, s{sA+2}, s{sJ}
    s_mul_i32 s{sA+3}, s{sHalf}, 7
    s_add_u32 s{sA+3}, s{sA+3}, s{sJ}
    s_add_u32 s{sA+3}, s{sA+3}, 32
    s_add_u32 s{sA+4}, s{PB[0]+7}, 8
    s_lshl_b32 s{sA+5}, s{sMb}, 1
    s_add_u32 s{sA+5}, s{sA+5}, s{sHalf}
    s_mul_i32 s{sA+5}, s{sA+5}, 3
    s_add_u32 s{sA+5}, s{sA+5}, s{sJ}
    s_add_u32 s{sA+5}, s{sA+5}, {64-5}          ; P code
    s_cmp_lt_u32 s{sJ}, 5
    s_cselect_b32 s{PB[1]+7}, s{sA+4}, s{sA+3}
    s_cselect_b32 s{PB[2]+7}, s{sA+3}, s{sA+5}
    s_cmp_eq_u32 s{PB[0]+7}, 7
    s_cselect_b32 s{PB[1]+7}, 13, s{PB[1]+7}
    s_mov_b32 s{sCC}, 5
    s_mov_b32 m0, s{sM0}
    s_waitcnt lgkmcnt(0)
    s_mov_b32 s{SRDX}, s4
    s_mov_b32 s{SRDX+1}, s5
    """)
    stamp(a, 8, stamps)
    setup = []
    setup += [l.strip() for l in f"""
    s_mov_b32 s{sOne}, 0x3f803f80
    s_mov_b32 s{sLo}, 0x00003f80
    s_mov_b32 s{sHi}, 0x3f800000
    v_and_b32 v{vT}, 31, v0
    v_lshlrev_b32 v{vT+1}, 7, v{vT}
    v_add_u32 v{vT+1}, s{sM0}, v{vT+1}
    v_bfe_u32 v{vT}, v0, 1, 3
    v_lshrrev_b32 v{vT+2}, 5, v0
    v_xor_b32 v{vT}, v{vT}, v{vT+2}
    """.split("\n") if l.strip()]
    for s in range(4):
        setup.append(f"v_xor_b32 v{vT+2}, {2*s}, v{vT}")
        setup.append(f"v_lshl_add_u32 v{EP+s}, v{vT+2}, 4, v{vT+1}")
    setup += [l.split(";")[0].strip() for l in f"""
    v_mov_b32 v{vSum}, 0
    v_mov_b32 v{vSq}, 0
    v_lshrrev_b32 v{vRow}, 3, v0
    s_and_b32 s{sA}, s{sWave}, 1
    s_lshl_b32 s{sA}, s{sA}, 5
    v_add_u32 v{vRow}, s{sA}, v{vRow}
    v_bfe_u32 v{vT}, v0, 1, 2                   ; phys chunk
    v_bfe_u32 v{vT+1}, v0, 4, 1
    s_and_b32 s{sA}, s{sWave}, 2
    v_or_b32 v{vT+1}, s{sA}, v{vT+1}            ; f
    v_xor_b32 v{vT}, v{vT}, v{vT+1}
    v_and_b32 v{vT+1}, 1, v0
    v_lshlrev_b32 v{vT+1}, 4, v{vT+1}
    v_lshl_add_u32 v{vCol}, v{vT}, 5, v{vT+1}
    v_bfe_u32 v{vT}, v0, 4, 1                   ; block
    v_bfe_u32 v{vT+1}, v0, 2, 2                 ; r
    v_lshrrev_b32 v{vT+2}, 5, v0                ; khalf
    v_lshl_add_u32 v{vT+2}, v{vT+2}, 3, v{vT+1} ; 8*khalf + r
    v_lshlrev_b32 v{vT+2}, 7, v{vT+2}
    v_lshl_add_u32 v{vT+2}, v{vT}, 13, v{vT+2}
    v_and_b32 v{vT+3}, 3, v0
    v_lshl_add_u32 v{vT+2}, v{vT+3}, 3, v{vT+2} ; + c*8
    v_lshrrev_b32 v{vT+1}, 1, v{vT+1}
    v_lshl_add_u32 v{vT}, v{vT}, 1, v{vT+1}     ; f
    """.split("\n") if l.strip()]
    for t in range(4):
        setup.append(f"v_xor_b32 v{vT+1}, {t}, v{vT}")
        setup.append(f"v_lshl_add_u32 v{vTr+t}, v{vT+1}, 5, v{vT+2}")
        setup.append(f"v_add_u32 v{vTr+4+t}, 0x10000, v{vTr+t}")
        setup.append(f"v_add_u32 v{vTr+8+t}, 0x20000, v{vTr+t}")
    setup += [l.strip() for l in f"""
    v_bfe_u32 v{vT}, v0, 4, 1
    v_lshlrev_b32 v{vT}, 10, v{vT}
    v_lshrrev_b32 v{vT+1}, 5, v0
    v_lshl_add_u32 v{vT}, v{vT+1}, 8, v{vT}
    v_and_b32 v{vT+1}, 15, v0
    v_lshl_add_u32 v{vSF}, v{vT+1}, 4, v{vT}
    v_lshlrev_b32 v{vSQ}, 3, v0
    """.split("\n") if l.strip()]
    chunks = [setup[i:i + 8] for i in range(0, len(setup), 8)]
    chunks += [lambda: task_params(a, PB[0]), switch_ops(PB[0]), lambda: task_params(a, PB[1]), lambda: task_params(a, PB[2])]
    def run_chunk(c):
        if callable(c): c()
        else:
            for o in c: a(o)
    def xload(i, between):
        for j in range(4):
            vm.issue(a, f"buffer_load_dwordx4 v{EP+4+j}, s[{SRDX}:{SRDX+3}], s{sX} offen offset:{1024*j} lds", f"X{i}")
            if j == 3:
                a(f"s_add_u32 s{sX}, s{sX}, 128")
                a(f"s_cmp_eq_u32 s{sX}, 1280")
                a(f"s_cselect_b32 s{sX}, 0, s{sX}")
                a(f"s_add_u32 m0, s{sM0}, {((i+1) % 10)*16384}")
            between(j)
    XW = cfg["XW"]; LA = cfg["LA"]
    def bt_setup(j):
        if chunks: run_chunk(chunks.pop(0))
        else: a("s_nop 0")
    for i in range(XW): xload(i, bt_setup)
    while chunks: run_chunk(chunks.pop(0))
    stamp(a, 9, stamps)
    stamp(a, 10, stamps)
    nb = 0
    def bload(g, between):
        pre, lds, post = dma_ops(PB[0], g)
        for j, l in enumerate(lds):
            vm.issue(a, l, f"B{g}")
            if j == 3:
                emit(a, vm, post)
                a(f"s_add_u32 m0, s{sM0}, {(g+1)*16384}")
            between(j)
    def stats(i, j):
        if i < 0:
            a("s_nop 0"); return
        for r in range(4 * j, 4 * j + 4):
            x = XB + 16 * i + r
            a(f"v_dot2c_f32_bf16 v{vSum}, s{sOne}, v{x}")
            a(f"v_dot2c_f32_bf16 v{vSq}, v{x}, v{x}")
    for i in range(10):
        vm.wait(a, f"X{i}")
        if i == 0: stamp(a, 1, stamps)
        if i in (2, 4, 8): stamp(a, {2: 11, 4: 12, 8: 13}[i], stamps)
        if i in (4, 8):
            for s in range(4): a(f"v_add_u32 v{EP+s}, 0x10000, v{EP+s}")
        for s in range(4):
            x = XB + 4 * (4 * i + s)
            a(f"ds_read_b128 v[{x}:{x+3}], v{EP+s} offset:{(i&3)*16384}")
        bt = lambda j: stats(i - 1, j)
        if i + XW < 10: xload(i + XW, bt)
        elif nb < cfg.get("PB", LA):
            assert nb < i
            bload(nb, bt); nb += 1
        else:
            for j in range(4): bt(j)
        a("s_waitcnt lgkmcnt(0)")
    for j in range(4): stats(9, j)
    cfg["nb0"] = nb
    stamp(a, 2, stamps)
    vm.wait(a, "B0")
    a("s_barrier")
    for G in range(2):
        for t in range(4):
            for r in tr_reads(G, t): a(r)
    d0, c0 = center_ops(0)
    a(f"""
    s_mov_b32 s{sA}, 0x3acccccd                  ; 1/640
    v_mov_b32 v{vT}, v{vSum}
    v_mov_b32 v{vT+1}, v{vSq}
    s_nop 1
    v_permlane32_swap_b32 v{vSum}, v{vT}
    v_permlane32_swap_b32 v{vSq}, v{vT+1}
    s_nop 1
    v_add_f32 v{vSum}, v{vSum}, v{vT}
    v_add_f32 v{vSq}, v{vSq}, v{vT+1}
    v_mul_f32 v{vSum}, s{sA}, v{vSum}             ; mean
    v_mul_f32 v{vSq}, s{sA}, v{vSq}               ; E[x^2]
    v_cvt_pk_bf16_f32 v{vT}, v{vSum}, v{vSum}
    v_fma_f32 v{vSq}, -v{vSum}, v{vSum}, v{vSq} ; var
    v_and_b32 v{vT}, 0xffff0000, v{vT}
    v_xor_b32 v{vNegM}, 0x80000000, v{vT}
    v_max_f32 v{vSq}, 0, v{vSq}
    """)
    for op in d0: a(op)
    for op in c0: a(op)
    rstd = f"""v_cvt_pk_bf16_f32 v{vT}, v{vSq}, v{vSq}
    v_and_b32 v{vT}, 0xffff0000, v{vT}
    v_add_f32 v{vT}, 0x3727c5ac, v{vT}
    v_cvt_pk_bf16_f32 v{vT}, v{vT}, v{vT}
    v_and_b32 v{vT}, 0xffff0000, v{vT}
    v_sqrt_f32 v{vT}, v{vT}; s_nop 0
    v_cvt_pk_bf16_f32 v{vT}, v{vT}, v{vT}
    v_and_b32 v{vT}, 0xffff0000, v{vT}
    v_rcp_f32 v{vR}, v{vT}
    v_mul_f32 v{vD2}, v{vT}, v{vT}
    v_mul_f32 v{vC1}, 0x{NLOG2E:x}, v{vR}""".split("\n")
    for o in rstd[:2]: emit(a, vm, o.strip())
    stamp(a, 3, stamps)
    extra = {}
    def rest():
        for o in rstd[2:]: emit(a, vm, o.strip())
    extra[150] = rest
    body(a, vm, 0, cfg, None, 3, center=True, extra=extra)
    stamp(a, 4, stamps)
    body(a, vm, 1, cfg, [o.strip() for o in out_f_ops(PB[0] + 7)] + epi_f_ops(ACC[0]), 3)
    stamp(a, 5, stamps)
    a(f"s_cmp_lt_u32 s{sJ}, 5")
    a(f"s_cbranch_scc0 {label}_two")
    vm2 = vm.copy()
    body(a, vm, 2, cfg, [o.strip() for o in out_f_ops(PB[1] + 7)] + epi_f_ops(ACC[1]), 3)
    stamp(a, 6, stamps)
    for o in out_q_ops(PB[2] + 7): emit(a, vm, o.strip())
    a("s_nop 3")
    for op in epi_q_ops(ACC[0]): a(op)
    a(f"s_branch {label}_fin")
    a.label(f"{label}_two")
    stamp(a, 6, stamps)
    a(f"s_cmp_ge_u32 s{PB[1]+7}, 32")
    a(f"s_cbranch_scc1 {label}_twoq")
    for o in out_f_ops(PB[1] + 7): emit(a, vm2, o.strip())
    for op in epi_f_ops(ACC[1]): a(op)
    a(f"s_branch {label}_pack")
    a.label(f"{label}_twoq")
    for o in out_q_ops(PB[1] + 7): emit(a, vm2, o.strip())
    a("s_nop 3")
    for op in epi_q_ops(ACC[1]): a(op)
    a.label(f"{label}_pack")
    t = sA
    a(f"""
    s_cmp_ge_u32 s{sCC}, 5
    s_cbranch_scc1 {label}_fin
    s_sub_u32 s{t}, s{PB[2]+7}, 64
    s_cmp_lt_u32 s{t}, 70
    s_cselect_b32 s{t+1}, 0, 54
    s_cselect_b32 s{t+2}, 54, 74
    s_lshl_b32 s{t+3}, s{sPair}, 2
    s_add_u32 s{t+3}, s{t+3}, s{sWave}
    s_add_u32 s{t+3}, s{t+3}, s{t+1}            ; T'
    s_waitcnt vmcnt(0) lgkmcnt(0)
    s_barrier
    s_cmp_ge_u32 s{t+3}, s{t+2}
    s_cbranch_scc1 {label}_fin
    ; lds addr: (w>>1)*16384 + (32*(w&1) + 16*(g>>1) + 4*(g&1) + r)*128 + c*8 ; swizzle f=(r>>1)&1 | 2*block
    v_lshrrev_b32 v{vT}, 5, v0
    v_lshlrev_b32 v{vT}, 4, v{vT}
    v_bfe_u32 v{vT+1}, v0, 4, 1
    v_lshl_add_u32 v{vT}, v{vT+1}, 2, v{vT}
    v_bfe_u32 v{vT+1}, v0, 2, 2
    v_add_u32 v{vT}, v{vT}, v{vT+1}
    v_lshlrev_b32 v{vT}, 7, v{vT}
    v_and_b32 v{vT+2}, 3, v0
    v_lshl_add_u32 v{vT}, v{vT+2}, 3, v{vT}
    s_lshr_b32 s{t}, s{sWave}, 1
    s_lshl_b32 s{t}, s{t}, 14
    s_and_b32 s{t+1}, s{sWave}, 1
    s_lshl_b32 s{t+1}, s{t+1}, 12
    s_add_u32 s{t}, s{t}, s{t+1}
    v_add_u32 v{vT}, s{t}, v{vT}
    v_lshrrev_b32 v{vT+1}, 1, v{vT+1}           ; (r>>1)&1
    v_lshlrev_b32 v{vT+3}, 4, v0                ; lane*16
    """)
    for vv in range(8):
        blk, ch = vv >> 2, vv & 3
        a(f"v_xor_b32 v{vT+2}, {ch ^ (2*blk)}, v{vT+1}")
        a(f"v_lshl_add_u32 v{vT+2}, v{vT+2}, 5, v{vT}")
        a(f"ds_read_b64_tr_b16 v[{EP+4*vv}:{EP+4*vv+1}], v{vT+2} offset:{blk*8192}")
        a(f"ds_read_b64_tr_b16 v[{EP+4*vv+2}:{EP+4*vv+3}], v{vT+2} offset:{blk*8192+1024}")
        if vv == 3: a("s_waitcnt lgkmcnt(0)")
    a("s_waitcnt lgkmcnt(0)")
    for vv in range(8):
        a(f"""
        s_lshl_b32 s{t}, s{sCC}, 3
        s_add_u32 s{t}, s{t}, {vv}
        s_mul_i32 s{t+1}, s{t}, {(1<<16)//5+1}
        s_lshr_b32 s{t+1}, s{t+1}, 16
        s_mul_i32 s{t+2}, s{t+1}, 5
        s_sub_u32 s{t+2}, s{t}, s{t+2}
        s_mul_i32 s{t+1}, s{t+1}, 74
        s_add_u32 s{t+1}, s{t+1}, s{t+3}
        s_mul_i32 s{t+1}, s{t+1}, 5
        s_add_u32 s{t+1}, s{t+1}, s{t+2}
        s_lshl_b32 s{t+1}, s{t+1}, 10
        s_add_u32 s{t+1}, s{t+1}, {WS_WP}
        s_add_u32 s{sOut}, s8, s{t+1}
        s_addc_u32 s{sOut+1}, s9, 0
        global_store_dwordx4 v{vT+3}, v[{EP+4*vv}:{EP+4*vv+3}], s[{sOut}:{sOut+1}] sc1
        """)
    a.label(f"{label}_fin")
    if stamps:
        a("s_waitcnt vmcnt(0)")
        stamp(a, 7, True)
        a("s_waitcnt lgkmcnt(0)")
        for i in range(1, 16):
            a(f"s_sub_u32 s{t}, s{60+2*i}, s60")
            a(f"v_mov_b32 v{EP+i}, s{t}")
        a(f"""
        v_mov_b32 v{EP}, s60
        s_lshl_b32 s{t}, s2, 2
        s_add_u32 s{t}, s{t}, s{sWave}
        s_lshl_b32 s{t}, s{t}, 6
        s_add_u32 s{t}, s{t}, {WS_STAMP + 0x10000}
        v_mov_b32 v{vT}, s{t}
        global_store_dwordx4 v{vT}, v[{EP}:{EP+3}], s[8:9]
        global_store_dwordx4 v{vT}, v[{EP+4}:{EP+7}], s[8:9] offset:16
        global_store_dwordx4 v{vT}, v[{EP+8}:{EP+11}], s[8:9] offset:32
        global_store_dwordx4 v{vT}, v[{EP+12}:{EP+15}], s[8:9] offset:48
        """)
    rt_end(a, stamps, 0, 8, v=EP+16)
    a.label(f"{label}_end")
    a("s_endpgm")
    a.end_kernel(label, 256 + 176, 102, 256, 256, 256, 163840)
```

```python
import sys; sys.path.insert(0, "dev")
from asmlib import *
import gen, k1, att, json
stamps = "--stamps" in sys.argv
pos = [x for x in sys.argv[1:] if not x.startswith("--")]
out = pos[0]
cfg = json.loads(pos[1]) if len(pos) > 1 else {}
a = Asm()
k1.k1(a, "k1_kernel", stamps=stamps, cfg=cfg)
att.katt(a, "att_kernel", stamps=stamps)
gen.k2(a, "k2_kernel", stamps=stamps)
open(out, "w").write(a.text("generated by dev/build.py: K1 = LN + QKV/gate/up GEMM (+weight pack), att = sliding-window attention, K2 = down/wo GEMM + combine"))
```

```python
import sys, json, struct; sys.path.insert(0, "dev")
from asmlib import *

WS_AP = 0
WS_WP = 0xA00000
WS_QKV = 0x1000000
WS_FLAG = 0x1800000
WS_STAMP = 0x1900000
WS_SIZE = 0x2000000
OOB = 0x4000000
NLOG2E = 0xbfb8aa3b
def f2u(x): return struct.unpack("<I", struct.pack("<f", x))[0]
C_SM = f2u(20 ** -0.5 * 1.4426950408889634)

XB = 96; EP = 32; ACC = [0, 64]; WF = 128; NWB = 3
vLd = 1; vTr = 5
vSF = 17; vSQ = 18; vC1 = 19; vD2 = 20; vR = 21; vNegM = 22; vSum = 23; vSq = 24
vRow = 25; vCol = 26; vT = 27
vL16 = 31
vFl = 22; vL4 = 24
sWave = 14; sMb = 15; sJ = 16; sHalf = 17; sM0 = 18; sSoff = 19
SRDX = 20
SRDW = 20
PB = [24, 32, 40]
sStep = 48; sOne = 49; sLo = 50; sHi = 51
sOut = 52; sRot = 54; sWrap = 55
PK = 64
sTok = 72
sFlag = 74
sMb64 = 75
sFl0 = 49
sNb = 50
WS_EPOCH = WS_FLAG - 256
TOKX = 0x5bd1e995
sR8 = 56; sR5 = 51; sGa = 54; sGb = 6; sFl1 = 7
vA = 16
sAs = 24; sBs = 28
sOOB = 3
sA = 92
ST0 = 76

class VM:
    def __init__(self): self.q = []
    def issue(self, a, ins, tag):
        a(ins); self.q.append(tag)
    def wait(self, a, tag, cnt=None):
        if cnt is not None: assert self.q.count(tag) == cnt, (tag, self.q.count(tag))
        idx = max(i for i, t in enumerate(self.q) if t == tag)
        n = len(self.q) - 1 - idx
        a(f"s_waitcnt vmcnt({min(n, 63)})")

class LQ:
    def __init__(self): self.q = []
    def issue(self, a, ins, tag):
        a(ins); self.q.append(tag)
    def wait(self, a, tag):
        idx = max(i for i, t in enumerate(self.q) if t == tag)
        a(f"s_waitcnt lgkmcnt({min(len(self.q) - 1 - idx, 15)})")

def lines(s): return [l.split(";;")[0].strip() for l in s.split("\n") if l.split(";;")[0].strip()]

class Gen:
    def __init__(self, cfg, stamps):
        self.cfg = dict(dict(LA=6, XW=5, PB=2, rot=True, bar2=False, rpat=[2, 2, 2, 2], dmagap=2, spin=3000,
                             pf3=True), **cfg)
        self.stamps = stamps
        self.a = Asm(); self.vm = VM()
        self.label = NAME + "_kernel"
        self.slot = {}
        self.owner = [None] * 10
        self.xdone = set(); self.lastbar = -10
        self.next = 0; self.pend = []
        self.slow = []
        self.vPub = 62
    def stamp(self, i):
        r = ST0 + 2 * i if i < 7 else 64 + 2 * (i - 7)
        if self.stamps: self.a(f"s_memtime s[{r}:{r+1}]")
    def dbeg(self):
        if self.cfg.get("dbgw"): self.a("s_memtime s[70:71]")
    def dend(self, i):
        if self.cfg.get("dbgw"):
            self.a(f"""
            s_memtime s[68:69]
            s_waitcnt lgkmcnt(0)
            s_sub_u32 s68, s68, s70
            v_mov_b32 v30, s68
            s_lshl_b32 s68, s2, 2
            s_add_u32 s68, s68, s{sWave}
            s_lshl_b32 s68, s68, 6
            s_add_u32 s68, s68, {WS_STAMP + 0x20000 + 4*i}
            s_mov_b64 exec, 1
            buffer_store_dword v30, off, s[{SRDW}:{SRDW+3}], s68
            s_mov_b64 exec, -1
            s_nop 1
            """)
    def mark(self, i, r=68):
        if self.cfg.get("marks"):
            self.a(f"""
            s_memtime s[{r}:{r+1}]
            s_waitcnt lgkmcnt(0)
            s_sub_u32 s{r}, s{r}, s{ST0}
            v_mov_b32 v30, s{r}
            s_lshl_b32 s{r}, s2, 2
            s_add_u32 s{r}, s{r}, s{sWave}
            s_lshl_b32 s{r}, s{r}, 7
            s_add_u32 s{r}, s{r}, {WS_STAMP + 0x40000 + 4*i}
            s_mov_b64 exec, 1
            """)
            self.vm.issue(self.a, f"buffer_store_dword v30, off, s[{SRDW}:{SRDW+3}], s{r}", "mk")
            self.a("s_mov_b64 exec, -1\ns_nop 1")
    def emit(self, op, tag="st"):
        for o in op.split(";"):
            o = o.strip()
            if o.startswith(("global_", "buffer_")): self.vm.issue(self.a, o, tag)
            else: self.a(o)
    def free(self, s):
        o = self.owner[s]
        if o is None: return True
        if o[0] == "B": return o[1] <= self.lastbar - 1
        return o in self.xdone
    def alloc(self, name, want=None):
        c = [s for s in range(10) if self.free(s)]
        if want is not None: c = [s for s in c if s == want]
        elif name[0] == "B" and name[1] >= self.cfg.get("avoid_from", 23): c = [s for s in reversed(c) if s not in (7, 8)]
        assert c, ("no free slot", name, self.owner, self.lastbar)
        s = c[0]; self.owner[s] = name; self.slot[name] = s
        return s
    def can_alloc(self, n=1):
        bad = (7, 8) if self.next >= self.cfg.get("avoid_from", 23) else ()
        return sum(self.free(s) for s in range(10) if s not in bad) >= n

    def task_params(self, P):
        a = self.a; L = a.newlabel("tp"); st = P + 7; t = sA
        a(f"""
        s_mov_b32 s{P+3}, 0x20000
        s_lshr_b32 s{t}, s{sWave}, 1
        s_cmp_ge_u32 s{st}, 32
        s_cbranch_scc1 {L}_nf
        s_cmp_eq_u32 s{t}, 0
        s_cselect_b32 s{P}, s56, s58
        s_cselect_b32 s{P+1}, s57, s59
        s_cmp_lt_u32 s{st}, 27
        s_cselect_b32 s{P+2}, {640*3456}, 0
        s_movk_i32 s{P+4}, 3456
        s_lshl_b32 s{P+5}, s{st}, 7
        s_mul_i32 s{P+6}, s{sRot}, {64*3456}
        s_branch {L}_go
        {L}_nf:
        s_mov_b32 s{P}, s6
        s_mov_b32 s{P+1}, s7
        s_cmp_lt_u32 s{st}, 47
        s_cselect_b32 s{P+2}, {640*3840}, 0
        s_movk_i32 s{P+4}, 3840
        s_sub_u32 s{P+5}, s{st}, 32
        s_lshl_b32 s{P+5}, s{P+5}, 1
        s_add_u32 s{P+5}, s{P+5}, s{t}
        s_lshl_b32 s{P+5}, s{P+5}, 7
        s_mul_i32 s{P+6}, s{sRot}, {64*3840}
        {L}_go:
        """)
    def pack_params(self):
        a = self.a; P = PK; t = sA
        a(f"""
        s_mov_b32 s{P+3}, 0x20000
        s_cmp_lt_u32 s2, 135
        s_cselect_b32 s{P}, s12, s10
        s_cselect_b32 s{P+1}, s13, s11
        s_mov_b32 s{t}, {640*1280}
        s_cselect_b32 s{P+2}, {1728*1280}, s{t}
        s_cselect_b32 s{t}, 0, 135
        s_cselect_b32 s{t+1}, 0, 54
        s_sub_u32 s{t}, s2, s{t}
        s_mul_i32 s{t+2}, s{t}, {(1<<16)//5+1}
        s_lshr_b32 s{t+2}, s{t+2}, 16
        s_mul_i32 s{t+3}, s{t+2}, 5
        s_sub_u32 s{P+7}, s{t}, s{t+3}
        s_mul_i32 s{P+4}, s{t+2}, {64*1280}
        s_lshl_b32 s{t+3}, s{P+7}, 8
        s_add_u32 s{P+4}, s{P+4}, s{t+3}
        s_lshr_b32 s{t+3}, s{sWave}, 1
        s_lshl_b32 s{t+3}, s{t+3}, 7
        s_add_u32 s{P+4}, s{P+4}, s{t+3}
        s_lshl_b32 s{P+6}, s{t+2}, 1
        s_add_u32 s{P+6}, s{P+6}, s{t+1}
        s_and_b32 s{t+3}, s{sWave}, 1
        s_add_u32 s{P+6}, s{P+6}, s{t+3}
        s_cmp_lt_u32 s2, 185
        s_cselect_b32 s{P+2}, s{P+2}, 0
        s_cselect_b32 s{P+5}, {WS_WP}, s{sOOB}
        """)
    def switch_ops(self, P):
        t = sA
        return [f"v_mad_u32_u24 v{vLd}, v{vRow}, s{P+4}, v{vCol}",
                f"s_lshl_b32 s{sStep}, s{P+4}, 6",
                f"s_lshl_b32 s{t}, s{P+4}, 3",
                f"s_sub_u32 s{t}, s{t}, 1024",
                f"v_add_u32 v{vLd}, s{P+5}, v{vLd}",
                f"s_mul_i32 s{sWrap}, s{sStep}, 10",
                f"s_mov_b32 s{sSoff}, s{P+6}",
                f"v_add_u32 v{vLd+1}, s{t}, v{vLd}",
                f"v_add_u32 v{vLd+2}, s{t}, v{vLd+1}",
                f"v_add_u32 v{vLd+3}, s{t}, v{vLd+2}"]
    def dma_items(self, g):
        P = PB[g // 10]; slot = self.alloc(("B", g))
        it = []
        if g % 10 == 0 and g > 0: it += [("op", o) for o in self.switch_ops(P)]
        it.append(("op", f"s_add_u32 m0, s{sM0}, {slot*16384}"))
        it += [("ld", f"buffer_load_dwordx4 v{vLd+j}, s[{P}:{P+3}], s{sSoff} offen offset:{1024*j} lds", f"B{g}") for j in range(4)]
        it.append(("post", f"s_add_u32 s{sSoff}, s{sSoff}, s{sStep}; s_cmp_eq_u32 s{sSoff}, s{sWrap}; s_cselect_b32 s{sSoff}, 0, s{sSoff}"))
        return it
    def pop_ld(self):
        a = self.a; p = self.pend
        while p and p[0][0] != "ld": self.emit(p.pop(0)[1])
        if p:
            if " m0," in a.lines[-1]: a("s_nop 0")
            _, l, tag = p.pop(0); self.vm.issue(a, l, tag)
            while p and p[0][0] == "post": self.emit(p.pop(0)[1])
    def tr_reads(self, G):
        g, s = G >> 2, G & 3
        slot = self.slot[("B", g)]; reg = slot >> 2
        o = (slot & 3) * 16384 + 16 * s * 128
        r = []
        for t in range(4):
            b = WF + 16 * (G % NWB) + 4 * t
            r += [f"ds_read_b64_tr_b16 a[{b}:{b+1}], v{vTr+4*reg+t} offset:{o}",
                  f"ds_read_b64_tr_b16 a[{b+2}:{b+3}], v{vTr+4*reg+t} offset:{o+512}"]
        return r
    def center_ops(self, stage):
        x = XB + 16 * stage; t = EP
        d = []
        for i in range(16):
            d.append(f"v_dot2_f32_bf16 v{t+2*i}, v{x+i}, s{sLo}, v{vNegM}")
            d.append(f"v_dot2_f32_bf16 v{t+2*i+1}, v{x+i}, s{sHi}, v{vNegM}")
        c = [f"v_cvt_pk_bf16_f32 v{x+i}, v{t+2*i}, v{t+2*i+1}" for i in range(16)]
        return d, c
    def epi_f(self, acc, st):
        t = sA + 2
        ops = lines(f"""
        s_lshl_b32 s{t}, s{sMb}, 1
        s_lshr_b32 s{t+1}, s{sWave}, 1
        s_add_u32 s{t}, s{t}, s{t+1}
        s_mul_i32 s{t}, s{t}, 74
        s_lshl_b32 s{t+1}, s{st}, 1
        s_add_u32 s{t}, s{t}, s{t+1}
        s_lshl_b32 s{t}, s{t}, 12
        s_and_b32 s{t+1}, s{sWave}, 1
        s_lshl_b32 s{t+1}, s{t+1}, 11
        s_add_u32 s{sOut}, s{t}, s{t+1}
        s_add_u32 s{sOut+1}, s{sOut}, 4096
        """)
        for t in range(4):
            g = EP + 32 * (t & 1); u = g + 8; e = g + 16; pk = g + 24
            A = acc + 16 * t
            for i in range(8): ops.append(f"v_accvgpr_read_b32 v{g+i}, a{A+i}")
            for i in range(8): ops.append(f"v_mul_f32 v{e+i}, v{vC1}, v{g+i}")
            for i in range(8):
                ops.append(f"v_exp_f32 v{e+i}, v{e+i}")
                ops.append(f"v_accvgpr_read_b32 v{u+i}, a{A+8+i}")
            for i in range(8): ops.append(f"v_fma_f32 v{e+i}, v{e+i}, v{vD2}, v{vD2}")
            for i in range(8):
                ops.append(f"v_rcp_f32 v{e+i}, v{e+i}")
                ops.append(f"v_mul_f32 v{g+i}, v{g+i}, v{u+i}")
            for i in range(8): ops.append(f"v_mul_f32 v{g+i}, v{g+i}, v{e+i}")
            for i in range(4): ops.append(f"v_cvt_pk_bf16_f32 v{pk+i}, v{g+2*i}, v{g+2*i+1}")
            ops.append(f"buffer_store_dwordx4 v[{pk}:{pk+3}], v{vSF}, s[{SRDW}:{SRDW+3}], s{sOut+(t>>1)} offen offset:{(t&1)*512} sc1")
        return ops
    def epi_q(self, acc, st):
        t = sA + 2
        ops = lines(f"""
        s_lshl_b32 s{t}, s{sMb}, 2
        s_add_u32 s{t}, s{t}, s{sWave}
        s_mul_i32 s{t}, s{t}, 122880
        s_sub_u32 s{t+1}, s{st}, 32
        s_lshl_b32 s{t+1}, s{t+1}, 13
        s_add_u32 s{t}, s{t}, s{t+1}
        s_add_u32 s{t}, s{t}, {WS_QKV}
        s_cmp_ge_u32 s{st}, 32; s_cselect_b32 s{sOut}, s{t}, s{sOOB}
        s_add_u32 s{sOut+1}, s{sOut}, 4096
        """)
        for t in range(4):
            g = EP + 32 * (t & 1); pk = g + 16
            A = acc + 16 * t
            for i in range(16): ops.append(f"v_accvgpr_read_b32 v{g+i}, a{A+i}")
            for i in range(16): ops.append(f"v_mul_f32 v{g+i}, v{vR}, v{g+i}")
            for i in range(8): ops.append(f"v_cvt_pk_bf16_f32 v{pk+i}, v{g+2*i}, v{g+2*i+1}")
            for q in range(4):
                grp = 4 * t + 2 * (q & 1)
                ops.append(f"buffer_store_dwordx2 v[{pk+2*q}:{pk+2*q+1}], v{vSQ}, s[{SRDW}:{SRDW+3}], s{sOut+(q>>1)} offen offset:{grp*256} sc1")
        return ops
    def publish(self, level, after):
        a = self.a
        self.dbeg()
        for tg in after: self.vm.wait(a, tg)
        self.dend(level)
        a(f"v_mov_b32 v{self.vPub}, s{sTok}")
        a(f"v_mov_b32 v{self.vPub+1}, s{sTok+1}")
        a(f"s_add_u32 s{sA+8}, s{sFlag}, {level*8192}")
        a("s_mov_b64 exec, 1")
        self.vm.issue(a, f"buffer_store_dwordx2 v[{self.vPub}:{self.vPub+1}], off, s[{SRDW}:{SRDW+3}], s{sA+8} sc1", "fl")
        a("s_mov_b64 exec, -1")
    def flag_ld(self, reg, soff, level, off, sc):
        return [f"s_add_u32 s{sA+8}, s{soff}, {level*8192}",
                f"buffer_load_dwordx2 v[{reg}:{reg+1}], v{vL4}, s[{SRDW}:{SRDW+3}], s{sA+8} offen offset:{off} {sc}"]
    def flag_load(self, reg, soff, tag, level, off=0):
        l = self.flag_ld(reg, soff, level, off, self.cfg.get("scF", ""))
        self.a(l[0]); self.vm.issue(self.a, l[1], tag)
    def flag_check(self, reg, soff, tag, level, half=False, off=0, did=None):
        a = self.a; L = a.newlabel("fc")
        self.dbeg()
        self.vm.wait(a, tag)
        test = f"v_cmp_ne_u64 vcc, s[{sTok}:{sTok+1}], v[{reg}:{reg+1}]\ns_nop 0\n"
        if half: test += f"s_cmp_eq_u32 s{sHalf}, 0\ns_cselect_b32 s{sA+8}, vcc_lo, vcc_hi\ns_cmp_lg_u32 s{sA+8}, 0"
        else: test += "s_cmp_lg_u64 vcc, 0"
        a(test)
        a(f"s_cbranch_scc1 {L}_slow")
        a.label(f"{L}_ok")
        if did is not None: self.dend(did)
        l = self.flag_ld(reg, soff, level, off, "sc1")
        self.slow.append(f"""
        {L}_slow:
        s_mov_b32 s{sA+7}, 0
        {L}_spin:
        {l[0]}
        {l[1]}
        s_add_u32 s{sA+7}, s{sA+7}, 1
        s_cmp_gt_u32 s{sA+7}, {self.cfg["spin"]}
        s_waitcnt vmcnt(0)
        s_cbranch_scc1 {L}_ok
        {test}
        s_cbranch_scc0 {L}_ok
        s_sleep {self.cfg.get("sleep", 8)}
        s_branch {L}_spin
        """)

    def body(self, T, work, ntask, wrange=(4, 156), center=False, extra=None, vq=None, vq1=1, vq2=1, before=None):
        a = self.a; cfg = self.cfg; acc = ACC[T & 1]; LA = cfg["LA"]
        ngap = 160
        per = [[] for _ in range(ngap)]
        def cost(op):
            if op.startswith(("v_exp", "v_rcp")): return 2.0
            if op.startswith("s_"): return 0.5 * (1 + op.count(";"))
            if op.startswith("buffer_"): return 2.0
            return 1.0
        def is_bar(S):
            n1 = 10 * T + (S >> 2) + 1
            if (S & 3) != 1 or n1 >= 10 * ntask: return False
            return (n1 % 2 == 0) if cfg["bar2"] else True
        cap = []
        for g in range(ngap):
            c = 4.5 - cfg["rpat"][g & 3]
            if (g & 3) == cfg["dmagap"]: c -= 1.5
            if (g & 3) == 3 and is_bar(g >> 2): c = 0
            cap.append(max(c, 0.0))
        if center:
            for st in range(1, 10):
                d, c = self.center_ops(st)
                base = 16 * (st - 1)
                per[base] += d
                cg = [base + x for x in (1, 3, 4, 5, 8, 9, 11, 12, 13)]
                for i, op in enumerate(c): per[cg[i * len(cg) // 16]].append(op)
        used = lambda g: sum(cost(o) if isinstance(o, str) else 2 for o in per[g])
        self.ends = {}
        for g00, fn in (extra or {}).items():
            if not isinstance(fn, list): per[g00].append(fn)
        for g00, fn in (extra or {}).items():
            if isinstance(fn, list):
                g = g00; room = 0.0
                for op in fn:
                    while room <= 0:
                        room = cap[g] - used(g); g += 1
                    per[g - 1].append(op); room -= cost(op) if isinstance(op, str) else 2
                self.ends[g00] = g - 1
        for a_, b_ in (before or []): assert self.ends[a_] < b_, (a_, self.ends[a_], b_)
        if work:
            g0, g1 = wrange
            cap = [max(cap[g] - used(g), 0.0) for g in range(ngap)]
            scale = sum(cost(o) for o in work) / sum(cap[g0:g1])
            if self.cfg.get("verbose"): print("body", T, "work scale", scale)
            g = g0; room = cap[g] * scale
            for op in work:
                while room <= 0 and g < g1 - 1:
                    g += 1; room += cap[g] * scale
                per[g].append(op); room -= cost(op)
        vq = list(vq or [])
        for S in range(40):
            i, s = S >> 2, S & 3
            G = 40 * T + S; n = 10 * T + i
            rd = self.tr_reads(G + 2) if G + 2 < 40 * ntask else []
            if s == 2:
                k = 0
                while self.next <= n + LA and self.next < 10 * ntask and k < 2 and self.can_alloc(1 + cfg.get("keep", 0)):
                    self.pend += self.dma_items(self.next); self.next += 1; k += 1
            for t in range(4):
                gap = 4 * S + t
                if t == 0: a(f"s_waitcnt lgkmcnt({8 if G + 1 < 40 * ntask else 0})")
                A = acc + 16 * t; w = WF + 16 * (G % NWB) + 4 * t; x = XB + 4 * S
                c = "0" if S == 0 else f"a[{A}:{A+15}]"
                a(f"v_mfma_f32_32x32x16_bf16 a[{A}:{A+15}], a[{w}:{w+3}], v[{x}:{x+3}], {c}")
                pat = [3, 3, 2, 0] if is_bar(S) else cfg["rpat"]
                for _ in range(pat[t]):
                    if rd: a(rd.pop(0))
                nld = sum(1 for p_ in self.pend if p_[0] == "ld")
                if self.pend and (t == cfg["dmagap"] or (nld > 4 and t == 0)): self.pop_ld()
                elif vq and ((t == 0 and S % vq1 == 0) or (t == cfg["dmagap"] and not self.pend and S % vq2 == 0)):
                    for j_, it_ in enumerate(vq):
                        if it_[0](gap):
                            vq.pop(j_)[1](); break
                if T == self.cfg.get("markT", 2) and gap % 16 == 9: self.mark(gap // 16, 88)
                for op in per[gap]:
                    if callable(op): op()
                    else: self.emit(op, f"E{T-1}")
                if t == 3 and is_bar(S):
                    last = n + 2 if cfg["bar2"] and n + 2 < 10 * ntask else n + 1
                    self.vm.wait(a, f"B{last}", 4)
                    a("s_barrier")
                    self.lastbar = n
            assert not rd
        return vq

    def att_loads(self):
        a = self.a; vm = self.vm
        sk = self.slot["K"] if "K" in self.slot else self.alloc("K", 7)
        sv = self.slot["V"] if "V" in self.slot else self.alloc("V", 8)
        s0 = sA + 4
        def prep():
            a(f"""
            s_lshl_b32 s{s0}, s{sNb}, 2
            s_add_u32 s{s0}, s{s0}, s{sWave}
            s_mul_i32 s{s0}, s{s0}, 1280
            s_add_u32 s{s0}, s{s0}, {WS_QKV}
            s_lshl_b32 s{s0+1}, s{sMb64}, 1
            v_lshrrev_b32 v{vT+1}, 5, v0
            v_add_u32 v{vT+1}, s{s0+1}, v{vT+1}
            v_mul_u32_u24 v{vT+1}, 122880, v{vT+1}
            v_and_b32 v{vT+2}, 31, v0
            v_lshl_add_u32 v{vT+1}, v{vT+2}, 3, v{vT+1}
            v_add_u32 v{vT+2}, 8, v0
            v_lshrrev_b32 v{vT}, 4, v{vT+2}
            v_add_u32 v{vT}, s{s0+1}, v{vT}
            v_max_u32 v{vT}, 1, v{vT}
            v_subrev_u32 v{vT}, 1, v{vT}
            v_mul_u32_u24 v{vT}, 122880, v{vT}
            v_and_b32 v{vT+2}, 15, v{vT+2}
            v_lshl_add_u32 v{vT+2}, v{vT+2}, 4, v{vT}
            s_add_u32 s{s0+1}, s{s0}, 40960
            s_add_u32 s{s0+2}, s{s0}, 81920
            """)
        out = [prep]
        for kv, sl in ((0, sk), (1, sv)):
            for i in range(5):
                def f(kv=kv, sl=sl, i=i):
                    assert not any(p[0] == "ld" for p in self.pend)
                    a(f"s_add_u32 m0, s{sM0}, {sl*16384 + i*640 - 256*i}")
                    a("s_mov_b32 exec_hi, 0xff")
                    vm.issue(a, f"buffer_load_dwordx4 v{vT+2}, s[{SRDW}:{SRDW+3}], s{s0+1+kv} offen offset:{256*i} sc1 lds", "KV")
                    a("s_mov_b32 exec_hi, -1")
                out.append(f)
        for i in range(5):
            out.append(lambda i=i: vm.issue(a, f"buffer_load_dwordx2 v[{XB+2*i}:{XB+2*i+1}], v{vT+1}, s[{SRDW}:{SRDW+3}], s{s0} offen offset:{256*i} sc1", "KV"))
        return out
    def attention(self, hooks):
        a = self.a; vm = self.vm
        Q = XB; AK = 1; AV = 2; RW = 3; L = 4; P = 32; O = 48; KV = 68
        kvb = [68, 78, 106]
        s0 = sA
        a(f"""
        v_lshlrev_b32 v{AK}, 3, v0
        v_add_u32 v{AK}, s{sM0}, v{AK}
        v_add_u32 v{AV}, {self.slot["V"]*16384}, v{AK}
        v_add_u32 v{AK}, {self.slot["K"]*16384}, v{AK}
        s_lshl_b32 s{s0}, s{sMb64}, 6
        v_add_u32 v{RW}, s{s0}, v0
        s_mov_b32 s{s0+1}, 0x{C_SM:x}
        s_mov_b32 s{s0+2}, 0xce6e6b28
        """)
        for w in range(8): a(f"v_mov_b32 v{L+w}, 0")
        for i in range(20): a(f"v_mov_b32 v{O+i}, 0")
        self.dbeg(); vm.wait(a, "KV", 15); self.dend(11)
        def rd(kv, w, buf):
            for i in range(5):
                b = kvb[buf] + 2 * i
                a(f"ds_read_b64 v[{b}:{b+1}], v{AV if kv else AK} offset:{i*640 + (16-2*w)*8}")
        NB = 3
        seq = [(0, w) for w in range(8)] + [(1, w) for w in range(8)]
        for n in range(NB - 1): rd(*seq[n], n % NB)
        for n, (kv, w) in enumerate(seq):
            if n in (0, 8): self.mark(23 + n // 8)
            for h in hooks.get(n, []): h()
            if n + NB - 1 < 16:
                rd(*seq[n + NB - 1], (n + NB - 1) % NB)
                a(f"s_waitcnt lgkmcnt({5*(NB-1)})")
            else:
                a(f"s_waitcnt lgkmcnt({5*(15-n)})")
            b = kvb[n % NB]
            if kv == 0:
                for i in range(10): a(f"v_dot2c_f32_bf16 v{L+w}, v{Q+i}, v{b+i}")
                if w == 7:
                    a(f"v_mov_b32 v{P}, s{s0+2}")
                    for ww in range(1, 8):
                        a(f"v_cmp_gt_u32 vcc, {2*ww}, v{RW}")
                        a("s_nop 1")
                        a(f"v_cndmask_b32 v{L+ww}, v{L+ww}, v{P}, vcc")
                    a(f"v_max3_f32 v{P}, v{L}, v{L+1}, v{L+2}")
                    a(f"v_max3_f32 v{P}, v{P}, v{L+3}, v{L+4}")
                    a(f"v_max3_f32 v{P}, v{P}, v{L+5}, v{L+6}")
                    a(f"v_max_f32 v{P}, v{P}, v{L+7}")
                    for ww in range(8): a(f"v_sub_f32 v{L+ww}, v{L+ww}, v{P}")
                    for ww in range(8): a(f"v_mul_f32 v{L+ww}, s{s0+1}, v{L+ww}")
                    for h in hooks.get("sm", []): h()
                    for ww in range(8): a(f"v_exp_f32 v{L+ww}, v{L+ww}")
                    a(f"v_add_f32 v{P}, v{L}, v{L+1}")
                    for ww in range(2, 8): a(f"v_add_f32 v{P}, v{P}, v{L+ww}")
                    a(f"v_rcp_f32 v{P}, v{P}")
                    a("s_nop 0")
                    for ww in range(8): a(f"v_mul_f32 v{L+ww}, v{L+ww}, v{P}")
                    for ww in range(8):
                        a(f"v_cvt_pk_bf16_f32 v{P+2*ww}, v{L+ww}, 0")
                        a(f"v_cvt_pk_bf16_f32 v{P+2*ww+1}, 0, v{L+ww}")
            else:
                for i in range(10):
                    a(f"v_dot2c_f32_bf16 v{O+2*i}, v{b+i}, v{P+2*w}")
                    a(f"v_dot2c_f32_bf16 v{O+2*i+1}, v{b+i}, v{P+2*w+1}")
        self.mark(25)
        ob = self.slot["O"] * 16384
        a(f"s_mul_i32 s{s0}, s{sWave}, 5")
        a(f"v_add_u32 v{AK}, {ob}, v{vL16}")
        for i in range(10): a(f"v_cvt_pk_bf16_f32 v{Q+i}, v{O+2*i}, v{O+2*i+1}")
        for i in range(5):
            a(f"""
            s_add_u32 s{s0+1}, s{s0}, {i}
            s_lshr_b32 s{s0+2}, s{s0+1}, 2
            s_lshl_b32 s{s0+2}, s{s0+2}, 11
            s_and_b32 s{s0+3}, s{s0+1}, 1
            s_lshl_b32 s{s0+3}, s{s0+3}, 10
            s_add_u32 s{s0+2}, s{s0+2}, s{s0+3}
            s_and_b32 s{s0+3}, s{s0+1}, 2
            s_lshl_b32 s{s0+3}, s{s0+3}, 2
            s_add_u32 s{s0+2}, s{s0+2}, s{s0+3}
            v_add_u32 v{AV}, s{s0+2}, v{AK}
            ds_write_b64 v{AV}, v[{Q+2*i}:{Q+2*i+1}]
            """)
        a(f"""
        v_lshrrev_b32 v{RW}, 4, v0
        v_lshlrev_b32 v{RW}, 10, v{RW}
        v_and_b32 v{AV}, 15, v0
        v_lshl_add_u32 v{RW}, v{AV}, 4, v{RW}
        s_lshl_b32 s{s0}, s{sWave}, 10
        v_add_u32 v{AK}, s{s0}, v{AK}
        s_mul_i32 s{s0+1}, s{sNb}, 10
        s_add_u32 s{s0+1}, s{s0+1}, s{sWave}
        s_mul_i32 s{s0+2}, s{sMb64}, 74
        s_add_u32 s{s0+2}, s{s0+2}, 54
        s_waitcnt lgkmcnt(0)
        s_barrier
        """)
        for r in range(3): a(f"ds_read_b128 v[{4+4*r}:{7+4*r}], v{AK} offset:{4096*r}")
        for r in range(3):
            a(f"""
            s_add_u32 s{s0+3}, s{s0+1}, {4*r}
            s_lshr_b32 s{s0+4}, s{s0+3}, 2
            s_add_u32 s{s0+4}, s{s0+4}, s{s0+2}
            s_lshl_b32 s{s0+4}, s{s0+4}, 12
            s_and_b32 s{s0+3}, s{s0+3}, 3
            s_lshl_b32 s{s0+3}, s{s0+3}, 8
            s_add_u32 s{s0+4}, s{s0+4}, s{s0+3}
            """)
            if r == 2:
                a(f"s_cmp_lt_u32 s{sWave}, 2")
                a(f"s_cselect_b32 s{s0+4}, s{s0+4}, s{sOOB}")
            a(f"s_waitcnt lgkmcnt({2-r})")
            vm.issue(a, f"buffer_store_dwordx4 v[{4+4*r}:{7+4*r}], v{RW}, s[{SRDW}:{SRDW+3}], s{s0+4} offen sc1", "O")

    BSLOT = ["a176", "a196", "a216", "a236", "v116", "v136", "v156", "v176", "v196", "v216", "v236", "a128", "a148", "v96"]
    ASLOT = ["a80", "a96", "a112"] + [f"v{32 + 16 * ((k - 3) % 4)}" for k in range(3, 14)]
    @staticmethod
    def rr(base, off, n=4):
        return f"{base[0]}[{int(base[1:])+off}:{int(base[1:])+off+n-1}]"
    def step_off(self, k, dst, seg, unit):
        a = self.a
        if k == 13: a(f"s_mov_b32 s{dst}, s{seg+2}"); return
        if not self.cfg.get("trot", True):
            a(f"s_add_u32 s{dst}, s{seg + (k >= 8)}, {(k if k < 8 else k - 8) * unit}"); return
        if k < 8:
            a(f"s_add_u32 s{dst}, s{sR8}, {k}\ns_and_b32 s{dst}, s{dst}, 7")
        else:
            a(f"s_add_u32 s{dst}, s{sR5}, {k-8}\ns_sub_u32 s{sA+7}, s{dst}, 5\ns_min_u32 s{dst}, s{dst}, s{sA+7}")
        a(f"s_mul_i32 s{dst}, s{dst}, {unit}\ns_add_u32 s{dst}, s{dst}, s{seg + (k >= 8)}")
    def b_loads(self, k):
        a = self.a; out = []
        for u in range(5):
            def f(u=u):
                if u == 0: self.step_off(k, sGb, sBs, 5120)
                if u == 4: a(f"s_add_u32 s{sGb}, s{sGb}, 4096")
                self.vm.issue(a, f"buffer_load_dwordx4 {self.rr(self.BSLOT[k], 4*u)}, v{vL16}, s[{SRDW}:{SRDW+3}], s{sGb} offen offset:{1024*(u&3)} sc1", f"PB{k}")
            out.append(f)
        return out
    def a_loads(self, k):
        a = self.a; out = []
        for i in range(4):
            def f(i=i):
                if i == 0: self.step_off(k, sGa, sAs, 4096)
                self.vm.issue(a, f"buffer_load_dwordx4 {self.rr(self.ASLOT[k], 4*i)}, v{vA+i}, s[{SRDW}:{SRDW+3}], s{sGa} offen sc1", f"PA{k}")
            out.append(f)
        return out
    def wo_loads(self, s):
        a = self.a; out = []
        for j in range(4):
            def f(j=j):
                assert not any(p[0] == "ld" for p in self.pend)
                if j == 0 and self.owner[s] != ("WO", s): self.alloc(("WO", s), s)
                a(f"s_add_u32 m0, s{sM0}, {s*16384}")
                if s < 6: a(f"s_add_u32 s{sA+7}, s{sBs+3}, {s*16384}")
                else: a(f"s_add_u32 s{sA+7}, s{sBs+3}, {s*16384}\ns_cmp_eq_u32 s{sWave}, 0\ns_cselect_b32 s{sA+7}, s{sA+7}, s{sOOB}")
                self.vm.issue(a, f"buffer_load_dwordx4 v{vL16}, s[{SRDW}:{SRDW+3}], s{sA+7} offen offset:{1024*j} sc1 lds", "WO")
            out.append(f)
        return out
    def p2_params(self):
        t = sA + 2
        return lines(f"""
        s_mul_i32 s{t}, s{sMb64}, 74
        s_lshl_b32 s{t+1}, s{sWave}, 3
        s_add_u32 s{sAs}, s{t}, s{t+1}
        s_lshl_b32 s{sAs}, s{sAs}, 12
        s_add_u32 s{sAs+3}, s{t}, 54
        s_lshl_b32 s{sAs+3}, s{sAs+3}, 12
        s_mul_i32 s{t}, s{sNb}, 74
        s_add_u32 s{sBs}, s{t}, s{t+1}
        s_mul_i32 s{sBs}, s{sBs}, 5120
        s_add_u32 s{sBs}, s{sBs}, {WS_WP}
        s_add_u32 s{sBs+3}, s{t}, 54
        s_mul_i32 s{sBs+3}, s{sBs+3}, 5120
        s_add_u32 s{sBs+3}, s{sBs+3}, {WS_WP}
        s_add_u32 s{sBs+3}, s{sBs+3}, s{sM0}
        s_mul_i32 s{t}, s{sWave}, 3
        s_sub_u32 s{t}, 32, s{t}
        s_lshl_b32 s{t+1}, s{t}, 12
        s_add_u32 s{sAs+1}, s{sAs}, s{t+1}
        s_mul_i32 s{t+1}, s{t}, 5120
        s_add_u32 s{sBs+1}, s{sBs}, s{t+1}
        s_mul_i32 s{t}, s{sWave}, 7
        s_sub_u32 s{t}, 52, s{t}
        s_lshl_b32 s{t+1}, s{t}, 12
        s_add_u32 s{sAs+2}, s{sAs}, s{t+1}
        s_mul_i32 s{t+1}, s{t}, 5120
        s_add_u32 s{sBs+2}, s{sBs}, s{t+1}
        s_cmp_lt_u32 s{sWave}, 2; s_cselect_b32 s{sAs+2}, s{sAs+2}, s{sOOB}; s_cselect_b32 s{sBs+2}, s{sBs+2}, s{sOOB}
        s_and_b32 s{t+1}, s{sMb}, {3 if self.cfg.get('mrot', False) else 0}
        s_lshl_b32 s{sR8}, s{t+1}, 1
        s_add_u32 s{sR8}, s{sR8}, s{sNb}
        s_add_u32 s{sR5}, s{sNb}, s{t+1}
        s_sub_u32 s{t}, s{sR5}, 5
        s_min_u32 s{sR5}, s{sR5}, s{t}
        s_sub_u32 s{t}, s{sR5}, 5
        s_min_u32 s{sR5}, s{sR5}, s{t}
        """)

    def build(self):
        a = self.a; vm = self.vm; cfg = self.cfg; label = self.label
        sX = sA + 7
        a.begin_kernel(label)
        a(f"""
        s_cmp_ge_u32 s2, 256
        s_cbranch_scc1 {label}_end
        s_load_dwordx4 s[4:7], s[0:1], 0
        s_load_dwordx2 s[10:11], s[0:1], 16
        s_load_dwordx4 s[56:59], s[0:1], 32
        s_load_dwordx2 s[12:13], s[0:1], 48
        s_load_dwordx4 s[60:63], s[0:1], 56
        s_load_dwordx2 s[8:9], s[0:1], 72
        """)
        self.stamp(0)
        if self.stamps: a("s_memrealtime s[90:91]")
        NL = cfg.get("codelines", 10)
        a(f"""
        s_getpc_b64 s[{sA}:{sA+1}]
        s_lshr_b32 s{sA+2}, s2, 3
        s_mul_i32 s{sA+2}, s{sA+2}, {NL*128}
        v_lshlrev_b32 v{vT}, 7, v0
        v_add_u32 v{vT}, s{sA+2}, v{vT}
        v_min_u32 v{vT}, {label}_end-{label}-128, v{vT}
        v_cmp_gt_u32 vcc, {NL}, v0
        s_and_saveexec_b64 s[{sA+2}:{sA+3}], vcc
        s_cbranch_execz {label}_nt
        global_load_dword v95, v{vT}, s[{sA}:{sA+1}]
        {label}_nt:
        s_mov_b64 exec, -1
        v_lshrrev_b32 v{vT}, 6, v0
        v_and_b32 v0, 63, v0
        s_and_b32 s{sA}, s2, 7
        v_readfirstlane_b32 s{sWave}, v{vT}
        s_lshr_b32 s{sA+1}, s2, 3
        s_and_b32 s{sHalf}, s{sA}, 1
        s_lshr_b32 s{sA}, s{sA}, 1
        s_lshl_b32 s{sA}, s{sA}, 2
        s_lshr_b32 s{sA+2}, s{sA+1}, 3
        s_add_u32 s{sMb}, s{sA}, s{sA+2}
        s_and_b32 s{sJ}, s{sA+1}, 7
        s_lshl_b32 s{sM0}, s{sWave}, 12
        s_lshl_b32 s{sRot}, s{sA+2}, 2
        s_lshr_b32 s{sRot}, {cfg.get("rotm", 0x7520)}, s{sRot}
        s_and_b32 s{sRot}, s{sRot}, 15
        s_add_u32 s{sRot}, s{sRot}, s{sJ}
        s_lshr_b32 s{sA+3}, {cfg.get("rotx", 0x1210)}, s{sA}
        s_and_b32 s{sA+3}, s{sA+3}, 15
        s_add_u32 s{sRot}, s{sRot}, s{sA+3}
        s_sub_u32 s{sA+3}, s{sRot}, 10
        s_cmp_ge_u32 s{sRot}, 10
        s_cselect_b32 s{sRot}, s{sA+3}, s{sRot}
        s_lshl_b32 s{sX}, s{sRot}, 7
        s_lshl_b32 s{sA}, s{sMb}, 7
        s_lshl_b32 s{sA+1}, s{sWave}, 5
        s_add_u32 s{sA}, s{sA}, s{sA+1}
        s_mul_i32 s{sA}, s{sA}, 1280
        v_lshrrev_b32 v{vT}, 3, v0
        v_mul_u32_u24 v{vT}, 1280, v{vT}
        v_add_u32 v{vT}, s{sA}, v{vT}
        v_lshrrev_b32 v{vT+1}, 4, v0
        v_and_b32 v{vT+2}, 7, v0
        v_xor_b32 v{vT+1}, v{vT+1}, v{vT+2}
        v_xor_b32 v{vT+2}, 4, v{vT+1}
        v_lshl_add_u32 v{EP+4}, v{vT+1}, 4, v{vT}
        v_lshl_add_u32 v{EP+5}, v{vT+2}, 4, v{vT}
        v_add_u32 v{EP+5}, {8*1280-1024}, v{EP+5}
        v_add_u32 v{EP+6}, {2*(8*1280-1024)}, v{EP+4}
        v_add_u32 v{EP+7}, {2*(8*1280-1024)}, v{EP+5}
        s_mov_b32 s{SRDX+2}, {2048*1280}
        s_mov_b32 s{SRDX+3}, 0x20000
        s_lshl_b32 s{sA+2}, s{sHalf}, 3
        s_add_u32 s{PB[1]+7}, s{sA+2}, s{sJ}       ;; slot = 8*half + jj = first F task
        s_add_u32 s{PB[0]+7}, s{PB[1]+7}, 32       ;; Q task; slot 15 has none: it streams the weights of F task 16+mb (result dropped)
        s_add_u32 s{sA+3}, s{sMb}, {16 if cfg.get("pfw2", False) else 27}
        s_min_u32 s{sA+3}, s{sA+3}, 31
        s_cmp_eq_u32 s{PB[1]+7}, 15
        s_cselect_b32 s{PB[0]+7}, s{sA+3}, s{PB[0]+7}
        s_mul_i32 s{sA+3}, s{sHalf}, 3
        s_add_u32 s{sA+3}, s{sA+3}, s{sJ}
        s_add_u32 s{sA+3}, s{sA+3}, 16             ;; half0: 16+jj (jj<6) ; half1: 19+jj (jj>=3)
        s_add_u32 s{sA+4}, s{PB[1]+7}, 5
        s_and_b32 s{sA+4}, s{sA+4}, 15
        s_cmp_lt_u32 s{sA+4}, 11
        s_cselect_b32 s{PB[2]+7}, s{sA+3}, 31      ;; 31 = none
        s_mov_b32 m0, s{sM0}
        s_waitcnt lgkmcnt(0)
        s_mov_b32 s{SRDX}, s4
        s_mov_b32 s{SRDX+1}, s5
        s_add_u32 s{sA}, s8, {WS_EPOCH}
        s_addc_u32 s{sA+1}, s9, 0
        s_load_dwordx2 s[{sTok}:{sTok+1}], s[{sA}:{sA+1}], 0
        """.replace(";;", ";"))
        setup = lines(f"""
        s_mov_b32 s{sOne}, 0x3f803f80
        s_mov_b32 s{sOOB}, {OOB}
        s_mov_b32 s{sLo}, 0x00003f80
        s_mov_b32 s{sHi}, 0x3f800000
        v_and_b32 v{vT}, 31, v0
        v_lshlrev_b32 v{vT+1}, 7, v{vT}
        v_add_u32 v{vT+1}, s{sM0}, v{vT+1}
        v_bfe_u32 v{vT}, v0, 1, 3
        v_lshrrev_b32 v{vT+2}, 5, v0
        v_xor_b32 v{vT}, v{vT}, v{vT+2}
        """)
        for s in range(4):
            setup.append(f"v_xor_b32 v{vT+2}, {2*s}, v{vT}")
            setup.append(f"v_lshl_add_u32 v{EP+s}, v{vT+2}, 4, v{vT+1}")
        setup += lines(f"""
        v_mov_b32 v{vSum}, 0
        v_mov_b32 v{vSq}, 0
        v_lshlrev_b32 v{vL16}, 4, v0
        v_lshrrev_b32 v{vRow}, 3, v0
        s_and_b32 s{sA}, s{sWave}, 1
        s_lshl_b32 s{sA}, s{sA}, 5
        v_add_u32 v{vRow}, s{sA}, v{vRow}
        v_bfe_u32 v{vT}, v0, 1, 2
        v_bfe_u32 v{vT+1}, v0, 4, 1
        s_and_b32 s{sA}, s{sWave}, 2
        v_or_b32 v{vT+1}, s{sA}, v{vT+1}
        v_xor_b32 v{vT}, v{vT}, v{vT+1}
        v_and_b32 v{vT+1}, 1, v0
        v_lshlrev_b32 v{vT+1}, 4, v{vT+1}
        v_lshl_add_u32 v{vCol}, v{vT}, 5, v{vT+1}
        v_bfe_u32 v{vT}, v0, 4, 1
        v_bfe_u32 v{vT+1}, v0, 2, 2
        v_lshrrev_b32 v{vT+2}, 5, v0
        v_lshl_add_u32 v{vT+2}, v{vT+2}, 3, v{vT+1}
        v_lshlrev_b32 v{vT+2}, 7, v{vT+2}
        v_lshl_add_u32 v{vT+2}, v{vT}, 13, v{vT+2}
        v_and_b32 v{vT+3}, 3, v0
        v_lshl_add_u32 v{vT+2}, v{vT+3}, 3, v{vT+2}
        v_lshrrev_b32 v{vT+1}, 1, v{vT+1}
        v_lshl_add_u32 v{vT}, v{vT}, 1, v{vT+1}
        """)
        for t in range(4):
            setup.append(f"v_xor_b32 v{vT+1}, {t}, v{vT}")
            setup.append(f"v_lshl_add_u32 v{vTr+t}, v{vT+1}, 5, v{vT+2}")
            setup.append(f"v_add_u32 v{vTr+4+t}, 0x10000, v{vTr+t}")
            setup.append(f"v_add_u32 v{vTr+8+t}, 0x20000, v{vTr+t}")
        setup += lines(f"""
        v_bfe_u32 v{vT}, v0, 4, 1
        v_lshlrev_b32 v{vT}, 10, v{vT}
        v_lshrrev_b32 v{vT+1}, 5, v0
        v_lshl_add_u32 v{vT}, v{vT+1}, 8, v{vT}
        v_and_b32 v{vT+1}, 15, v0
        v_lshl_add_u32 v{vSF}, v{vT+1}, 4, v{vT}
        v_lshlrev_b32 v{vSQ}, 3, v0
        s_lshl_b32 s{sMb64}, s{sMb}, 1
        s_add_u32 s{sMb64}, s{sMb64}, s{sHalf}
        s_lshl_b32 s{sFlag}, s{sMb}, 4
        s_add_u32 s{sFlag}, s{sFlag}, s{PB[1]+7}
        s_lshl_b32 s{sFlag}, s{sFlag}, 2
        s_add_u32 s{sFlag}, s{sFlag}, s{sWave}
        s_lshl_b32 s{sFlag}, s{sFlag}, 3
        s_add_u32 s{sFlag}, s{sFlag}, {WS_FLAG}
        """)
        chunks = [setup[i:i + 10] for i in range(0, len(setup), 10)]
        chunks += [lambda: self.task_params(PB[0]), self.switch_ops(PB[0]), lambda: self.task_params(PB[1]),
                   lambda: self.task_params(PB[2]), self.pack_params]
        PR = 64
        pk = lines(f"""
            v_lshrrev_b32 v{vT}, 5, v0
            v_lshlrev_b32 v{vT}, 4, v{vT}
            v_bfe_u32 v{vT+1}, v0, 4, 1
            v_lshl_add_u32 v{vT}, v{vT+1}, 2, v{vT}
            v_bfe_u32 v{vT+1}, v0, 2, 2
            v_add_u32 v{vT}, v{vT}, v{vT+1}
            v_lshlrev_b32 v{vT}, 7, v{vT}
            v_and_b32 v{vT+2}, 3, v0
            v_lshl_add_u32 v{vT}, v{vT+2}, 3, v{vT}
            v_add_u32 v{vT}, s{sM0}, v{vT}
            v_lshrrev_b32 v{vT+1}, 1, v{vT+1}
            s_and_b32 s{sA+2}, s{sWave}, 2
            v_or_b32 v{vT+1}, s{sA+2}, v{vT+1}
            """)
        for ch in range(4):
            pk.append(f"v_xor_b32 v{PR+20+ch}, {ch}, v{vT+1}")
            pk.append(f"v_lshl_add_u32 v{PR+20+ch}, v{PR+20+ch}, 5, v{vT}")
        t_ = sA + 2
        for ch in range(4):
            pk += lines(f"""
                s_lshl_b32 s{t_}, s{PK+7}, 3
                s_and_b32 s{t_+1}, s{sWave}, 2
                s_lshl_b32 s{t_+1}, s{t_+1}, 1
                s_add_u32 s{t_}, s{t_}, s{t_+1}
                s_add_u32 s{t_}, s{t_}, {ch}
                s_mul_i32 s{t_+1}, s{t_}, {(1<<16)//5+1}
                s_lshr_b32 s{t_+1}, s{t_+1}, 16
                s_mul_i32 s{t_+2}, s{t_+1}, 5
                s_sub_u32 s{t_+2}, s{t_}, s{t_+2}
                s_mul_i32 s{t_+1}, s{t_+1}, 74
                s_add_u32 s{t_+1}, s{t_+1}, s{PK+6}
                s_mul_i32 s{t_+1}, s{t_+1}, 5
                s_add_u32 s{t_+1}, s{t_+1}, s{t_+2}
                s_lshl_b32 s{t_+1}, s{t_+1}, 10
                s_add_u32 s{10+ch}, s{t_+1}, s{PK+5}
                """)
        pk += [f"v_mul_u32_u24 v{PR+16}, 1280, v{vRow}", f"v_add_u32 v{PR+16}, v{vCol}, v{PR+16}"]
        pk += [f"v_add_u32 v{PR+16+j}, {j*(8*1280-1024)}, v{PR+16}" for j in range(1, 4)]
        chunks += [pk[i:i + 14] for i in range(0, len(pk), 14)]
        def run_chunk(c):
            if callable(c): c()
            else:
                for o in c: a(o)
        for i in range(10): assert self.alloc(("X", i)) == i
        def xload(i, between):
            for j in range(4):
                vm.issue(a, f"buffer_load_dwordx4 v{EP+4+j}, s[{SRDX}:{SRDX+3}], s{sX} offen offset:{1024*j} lds", f"X{i}")
                if j == 3 and i < 9:
                    a(f"s_add_u32 s{sX}, s{sX}, 128")
                    a(f"s_cmp_eq_u32 s{sX}, 1280")
                    a(f"s_cselect_b32 s{sX}, 0, s{sX}")
                    a(f"s_add_u32 m0, s{sM0}, {(i+1)*16384}")
                between(j)
        XW = cfg["XW"]
        def bt_setup(j):
            if chunks: run_chunk(chunks.pop(0))
            else: a("s_nop 0")
        for i in range(XW): xload(i, bt_setup)
        while chunks: run_chunk(chunks.pop(0))
        def stats(i, j):
            if i < 0:
                a("s_nop 0"); return
            for r in range(4 * j, 4 * j + 4):
                x = XB + 16 * i + r
                a(f"v_dot2c_f32_bf16 v{vSum}, s{sOne}, v{x}")
                a(f"v_dot2c_f32_bf16 v{vSq}, v{x}, v{x}")
        for i in range(10):
            vm.wait(a, f"X{i}", 4)
            if i in (4, 8):
                for s in range(4): a(f"v_add_u32 v{EP+s}, 0x10000, v{EP+s}")
            for s in range(4):
                x = XB + 4 * (4 * i + s)
                a(f"ds_read_b128 v[{x}:{x+3}], v{EP+s} offset:{(i&3)*16384}")
            if i + XW < 10: xload(i + XW, lambda j: stats(i - 1, j))
            else:
                if self.next < cfg["PB"]:
                    self.pend += self.dma_items(self.next); self.next += 1
                for j in range(4):
                    if self.pend: self.pop_ld()
                    stats(i - 1, j)
            a("s_waitcnt lgkmcnt(0)")
            self.xdone.add(("X", i))
        a(f"s_mov_b32 s{SRDW}, s8\ns_mov_b32 s{SRDW+1}, s9\ns_mov_b32 s{SRDW+2}, {WS_SIZE}")
        a(f"s_xor_b32 s{sTok+1}, s{sTok+1}, 0x{TOKX:x}\ns_add_u32 s{sTok}, s{sTok}, 1")
        for j in range(4): stats(9, j)
        self.stamp(1)
        vm.wait(a, "B1" if cfg["bar2"] else "B0", 4)
        a("s_barrier")
        for G in range(2):
            for r in self.tr_reads(G): a(r)
        d0, c0 = self.center_ops(0)
        a(f"""
        s_mov_b32 s{sA}, 0x3acccccd
        v_mov_b32 v{vT}, v{vSum}
        v_mov_b32 v{vT+1}, v{vSq}
        s_nop 1
        v_permlane32_swap_b32 v{vSum}, v{vT}
        v_permlane32_swap_b32 v{vSq}, v{vT+1}
        s_nop 1
        v_add_f32 v{vSum}, v{vSum}, v{vT}
        v_add_f32 v{vSq}, v{vSq}, v{vT+1}
        v_mul_f32 v{vSum}, s{sA}, v{vSum}
        v_mul_f32 v{vSq}, s{sA}, v{vSq}
        v_cvt_pk_bf16_f32 v{vT}, v{vSum}, v{vSum}
        v_fma_f32 v{vSq}, -v{vSum}, v{vSum}, v{vSq}
        v_and_b32 v{vT}, 0xffff0000, v{vT}
        v_xor_b32 v{vNegM}, 0x80000000, v{vT}
        v_max_f32 v{vSq}, 0, v{vSq}
        """)
        for op in d0 + c0: a(op)
        a("s_nop 0")
        self.stamp(2)
        extra = {}
        rstd = lines(f"""
            v_cvt_pk_bf16_f32 v{vR}, v{vSq}, v{vSq}
            v_and_b32 v{vR}, 0xffff0000, v{vR}
            v_add_f32 v{vR}, 0x3727c5ac, v{vR}
            v_cvt_pk_bf16_f32 v{vR}, v{vR}, v{vR}
            v_and_b32 v{vR}, 0xffff0000, v{vR}
            v_sqrt_f32 v{vR}, v{vR}; s_nop 0
            v_cvt_pk_bf16_f32 v{vR}, v{vR}, v{vR}
            v_and_b32 v{vD2}, 0xffff0000, v{vR}
            v_rcp_f32 v{vR}, v{vD2}
            v_mul_f32 v{vD2}, v{vD2}, v{vD2}
            v_mul_f32 v{vC1}, 0x{NLOG2E:x}, v{vR}
            v_lshlrev_b32 v{vL4}, 3, v0
            s_lshl_b32 s{sFl0}, s{sMb}, 9
            s_add_u32 s{sFl0}, s{sFl0}, {WS_FLAG}
            s_lshl_b32 s{sNb}, s{sMb}, {1 if cfg.get("nbrot", True) else 3}
            s_add_u32 s{sNb}, s{sNb}, s{sJ}
            s_and_b32 s{sNb}, s{sNb}, 7
            """)
        extra[130] = rstd
        PR = 64
        def pack_issue():
            sl = self.alloc("P")
            it = []
            it.append(("op", f"s_add_u32 m0, s{sM0}, {sl*16384}"))
            it += [("ld", f"buffer_load_dwordx4 v{PR+16+j}, s[{PK}:{PK+3}], s{PK+4} offen offset:{1024*j} lds", "PK") for j in range(4)]
            self.pend += it
        extra[cfg.get("pk0", 18)] = pack_issue
        extra[cfg.get("pk0", 18) + 1] = [lambda ch=ch: a(f"v_add_u32 v{PR+20+ch}, {self.slot['P']*16384}, v{PR+20+ch}") for ch in range(4)]
        pk1 = cfg.get("pk1", 70)
        rdl = [lambda: vm.wait(a, "PK", 4)]
        for ch in range(4):
            rdl.append(f"ds_read_b64_tr_b16 v[{PR+4*ch}:{PR+4*ch+1}], v{PR+20+ch}")
            rdl.append(f"ds_read_b64_tr_b16 v[{PR+4*ch+2}:{PR+4*ch+3}], v{PR+20+ch} offset:1024")
        extra[pk1] = rdl
        stl = [lambda: self.xdone.add("P")]
        for ch in range(4):
            stl.append(lambda ch=ch: vm.issue(a, f"buffer_store_dwordx4 v[{PR+4*ch}:{PR+4*ch+3}], v{vL16}, s[{SRDW}:{SRDW+3}], s{10+ch} offen sc1", "I"))
        extra[pk1 + 18] = stl
        self.vPub = 92
        def touch():
            a(f"""
            s_lshl_b32 s{sA+5}, s2, 1
            s_and_b32 s{sA+6}, s{sWave}, 1
            s_add_u32 s{sA+5}, s{sA+5}, s{sA+6}
            s_mul_i32 s{sA+5}, s{sA+5}, {34*128}
            v_lshlrev_b32 v94, 7, v0
            s_mov_b32 exec_hi, 3
            """)
            vm.issue(a, f"buffer_load_dword v94, v94, s[{PB[1]}:{PB[1]+3}], s{sA+5} offen", "T")
            a("s_mov_b32 exec_hi, -1")
        if cfg.get("tch", 40) >= 0: extra[cfg.get("tch", 40)] = touch
        if cfg.get("pub1", 124) < 160: extra[cfg.get("pub1", 124)] = lambda: self.publish(1, ["I"])
        self.body(0, None, 3, center=True, extra=extra,
                  before=[(cfg.get("pk0", 18) + 1, pk1), (pk1, pk1 + 10), (pk1 + 18, cfg.get("pub1", 124)), (cfg.get("pk0", 18) + 1, 130)])
        self.stamp(3)
        self.vPub = 62
        extra = {}
        if cfg.get("pub1", 124) >= 160: extra[cfg["pub1"] - 160] = lambda: self.publish(1, ["I"])
        extra[cfg.get("pub2", 124)] = lambda: self.publish(2, ["E0"])
        extra[cfg.get("p2p", 30)] = self.p2_params() + [f"s_max_u32 s{sFl1}, s{sMb}, 1", f"s_lshl_b32 s{sFl1}, s{sFl1}, 9", f"s_add_u32 s{sFl1}, s{sFl1}, {WS_FLAG - 512}"]
        GR = 88
        g_ld = [f"s_lshl_b32 s{sA+4}, s{sWave}, 11", f"s_add_u32 s{sA+4}, s{sA+4}, {WS_FLAG}"]
        def epoch():
            L = a.newlabel("ep")
            a(f"""
            s_or_b32 s{sA+8}, s2, s{sWave}
            s_cmp_lg_u32 s{sA+8}, 0
            s_cbranch_scc1 {L}
            v_mov_b32 v{GR}, s{sTok}
            s_mov_b32 s{sA+8}, {WS_EPOCH}
            s_mov_b64 exec, 1
            buffer_store_dword v{GR}, off, s[{SRDW}:{SRDW+3}], s{sA+8}
            s_mov_b64 exec, -1
            {L}:
            """)
        gc = cfg.get("gck", 102)
        assert gc % 16 <= 6 and (not cfg["bar2"] or (gc // 16) % 2 == 1)
        gb = gc - gc % 16 + 8
        extra[gc - 44] = g_ld; extra[gb] = epoch
        for j in range(4):
            extra[gc - 42 + 4 * j] = lambda j=j: self.flag_load(GR + 2 * j, sA + 4, f"G{j}", 1, 512 * j)
            extra[gc - 6 + 2 * j] = lambda j=j: self.flag_check(GR + 2 * j, sA + 4, f"G{j}", 1, off=512 * j)
        after = lambda g0: (lambda gap: gap >= g0)
        vq = [(after(gb), f) for k in range(4) for f in self.b_loads(k)]
        rest1 = self.body(1, self.epi_q(ACC[0], PB[0] + 7), 3, wrange=(4, cfg.get('w1', 100)), extra=extra, vq=vq, vq1=cfg.get('b1vq', 1),
                          before=[(gc - 44, gc - 42), (cfg.get('p2p', 30), gb)])
        while self.pend: self.pop_ld()
        self.stamp(4)
        a(f"s_cmp_ge_u32 s{PB[2]+7}, 27")
        a(f"s_cbranch_scc1 {label}_two")
        pre = []
        def P(fn): pre.append(fn); return fn
        extra = {}
        vq = [(after(0), P(f)) for _, f in rest1]
        def q_ld():
            self.flag_load(XB, sFl0, "Q0", 2); self.flag_load(XB + 2, sFl1, "Q1", 2)
        st = {"q": False}
        def q_ck():
            self.flag_check(XB, sFl0, "Q0", 2, did=6); self.flag_check(XB + 2, sFl1, "Q1", 2, did=7); st["q"] = True
        qc = cfg.get("qck", 70)
        extra[qc - 30] = q_ld; extra[qc] = q_ck
        attl = []
        def att_ok(gap):
            if not st["q"] or self.next < 30 or self.pend: return False
            if not attl:
                if not (self.free(7) and self.free(8)): return False
                attl.extend(self.att_loads())
            return True
        bq = []
        for k in range(4, 11):
            bq += [(after(4 * (5 * (k - 4) + 10)), f) for f in self.b_loads(k)]
        for _, f in bq[:10]: P(f)
        P(q_ld); P(q_ck)
        pre.append(lambda: [f() for f in self.att_loads()])
        for _, f in bq[10:]: P(f)
        for j in range(16): vq.append((att_ok, lambda j=j: attl[j]()))
        vq += bq
        wq = []
        for s in range(7):
            ok = lambda gap, s=s: self.next >= 30 and not self.pend and (self.owner[s] == ("WO", s) or self.free(s))
            wq += [(ok, f) for f in self.wo_loads(s)]
        if cfg.get("wo2", True): vq += wq
        extra[cfg.get("pub3", 148)] = lambda: self.publish(3, ["E1"])
        rest = self.body(2, self.epi_f(ACC[1], PB[1] + 7), 3, wrange=(4, 112), extra=extra, vq=vq, vq1=cfg.get("vq1", 1), vq2=cfg.get("vq2", 1))
        self.stamp(5)
        wset = set(id(f) for _, f in wq)
        late = [f for _, f in rest if id(f) not in wset] + [P(f) for k in (11, 12) for f in self.b_loads(k)]
        wrest = [f for _, f in (rest if cfg.get("wo2", True) else wq) if id(f) in wset]
        wdone = [f for _, f in wq if id(f) not in set(id(g) for g in wrest)]
        for f in wdone: P(f)
        ntail = cfg.get("ntail", 12)
        assert vm.q.count("KV") == 15 or ntail >= 16
        post = late[ntail:]; late = late[:ntail]
        pset = set(id(f) for f in post)
        pre[:] = [f for f in pre if id(f) not in pset]
        f3 = P(lambda: self.flag_load(vFl, sFl0, "F3", 3))
        def tail(acc, st_, inter):
            ops = self.epi_f(acc, st_); inter = list(inter)
            step = max(1, (len(ops) - 20) // (len(inter) + 1))
            for i, op in enumerate(ops):
                self.emit(op, "E2")
                if i >= 12 and i % step == 0 and inter: inter.pop(0)()
            for f in inter: f()
        nl = len(late)
        tail(ACC[0], PB[2] + 7, late[:nl * 2 // 3] + [f3] + late[nl * 2 // 3:])
        if cfg.get("verbose"): print("after join: B loads", len(post), "wo loads", len(wrest))
        self.lastbar = 100
        self.alloc("O", 9)
        a.label(f"{label}_join")
        self.stamp(6)
        self.vPub = 20
        for i in range(4):
            a(f"s_add_u32 s{sA}, s{sWave}, {i}\ns_and_b32 s{sA}, s{sA}, 3\ns_lshl_b32 s{sA}, s{sA}, 10\nv_add_u32 v{vA+i}, s{sA}, v{vL16}")
        a("s_barrier")
        self.flag_check(vFl, sFl0, "F3", 3, did=8)
        hooks = {}
        al = [f for k in range(3) for f in self.a_loads(k)] + post + ["b13"] + wrest
        ib = al.index("b13"); al.pop(ib)
        natt = min(len(al), cfg.get("natt", 28))
        for j, f in enumerate(al[:natt]): hooks.setdefault(j * 16 // natt, []).append(f)
        al = al[natt:]
        ib = max(ib - natt, 0); al[ib:ib] = self.b_loads(13)
        hooks.setdefault(cfg.get("pub4", 10), []).insert(0, lambda: self.publish(4, ["E2"]))
        self.attention(hooks)
        self.stamp(8)
        XR = 4; vX = 14; vW = 25; vRd = 28; vWo = 29
        for k in range(3, 7):
            for f in self.a_loads(k): f()
        OA = 176
        WR = [116, 136, 156, 176, 196, 216]
        def wo_reads(T):
            b = WR[T % 6]
            return [f"ds_read_b128 v[{b+4*u}:{b+4*u+3}], v{vWo if T < 12 else 15} offset:{(T % 12)*5120 + u*1024}" for u in range(5)]
        def o_load(T):
            def f():
                a(f"s_add_u32 s{sA+7}, s{sAs+3}, {T*4096}")
                vm.issue(a, f"buffer_load_dwordx4 a[{OA+4*T}:{OA+4*T+3}], v{vA}, s[{SRDW}:{SRDW+3}], s{sA+7} offen sc1", f"PO{T//5}")
            return f
        KB = cfg.get("kbar", 9); KO = cfg.get("ko", 8)
        for k in range(14):
            if k % 2 == 0: self.mark(10 + k // 2)
            vm.wait(a, f"PA{k}", 4)
            idxa = max(i for i, t_ in enumerate(vm.q) if t_ == f"PA{k}"); idxb = max(i for i, t_ in enumerate(vm.q) if t_ == f"PB{k}")
            if idxb > idxa: vm.wait(a, f"PB{k}", 5)
            nxt = self.a_loads(k + 4) if 3 <= k < 10 else []
            side = []
            if k == 1: side += [lambda: self.flag_load(vFl, sFl0, "F4", 4)]
            if k < 7: side += al[:cfg.get('nside', 6)]; al = al[cfg.get('nside', 6):]
            if k == 3: side += [lambda: self.publish(5, ["O"])]
            if k == 4: self.flag_check(vFl, sFl0, "F4", 4, did=9)
            if k == KO - 2: side += [lambda: self.flag_load(vFl, sFl0, "F5", 5)]
            if k == KO: self.flag_check(vFl, sFl0, "F5", 5, half=True, did=10)
            if KO <= k < KO + 4: side += [o_load(T) for T in range(5 * (k - KO), 5 * (k - KO) + 5)]
            if k == 5:
                def prep():
                    a(f"""
                    s_lshl_b32 s{sA}, s{sMb64}, 6
                    s_lshl_b32 s{sA+1}, s{sWave}, 4
                    s_add_u32 s{sA}, s{sA}, s{sA+1}
                    s_mul_i32 s{sA}, s{sA}, 1280
                    s_mul_i32 s{sA+1}, s{sNb}, 160
                    s_add_u32 s{sA}, s{sA}, s{sA+1}
                    v_and_b32 v3, 15, v0
                    v_mul_u32_u24 v{vX}, 1280, v3
                    v_lshrrev_b32 v3, 4, v0
                    v_lshlrev_b32 v3, 3, v3
                    v_add3_u32 v{vX}, v{vX}, v3, s{sA}
                    v_mov_b32 v{vWo}, v{vL16}
                    v_add_u32 v15, {12*5120}, v{vL16}
                    s_mul_i32 s{sA}, s{sWave}, 15360
                    s_add_u32 s{sA}, s{sA}, 102400
                    v_add_u32 v{vRd}, s{sA}, v{vL16}
                    """)
                    for i in range(1, 4):
                        a(f"s_add_u32 s{sA}, s{sWave}, {i}\ns_and_b32 s{sA}, s{sA}, 3\ns_mul_i32 s{sA}, s{sA}, 15360\ns_add_u32 s{sA}, s{sA}, {102400 + (i-1)*5120}\nv_add_u32 v{vW+i-1}, s{sA}, v{vL16}")
                side.append(prep)
            if k == 12:
                side += [lambda u=u: vm.issue(a, f"global_load_dwordx2 v[{XR+2*u}:{XR+2*u+1}], v{vX}, s[4:5] offset:{32*u}", "XO") for u in range(5)]
            if k == KB:
                assert not al
                vm.wait(a, "WO", 28); a("s_barrier")
            if k in (11, 12, 13):
                for T in range(2 * (k - 11), 2 * (k - 11) + 2): side += [lambda r=r: a(r) for r in wo_reads(T)]
            for i in range(4):
                for u in range(5):
                    t_ = (i * 5 + u) * 4
                    c = "0" if k == 0 else f"a[{t_}:{t_+3}]"
                    a(f"v_mfma_f32_16x16x32_bf16 a[{t_}:{t_+3}], {self.rr(self.BSLOT[k], 4*u)}, {self.rr(self.ASLOT[k], 4*i)}, {c}")
                    if side and (u & 1 or len(side) > 8): side.pop(0)()
                if nxt: nxt[i]()
            for f in side: f()
        self.stamp(7)
        R = 32; FO = 236; SA = 80
        lq = LQ()
        for T in range(6): lq.q += [f"W{T}"] * 5
        work = []
        for i in range(1, 4):
            for u in range(5):
                work.append(("l", f"ds_write_b128 v{vW+i-1}, a[{(i*5+u)*4}:{(i*5+u)*4+3}] offset:{u*1024}", "PW"))
        for j in range(20): work.append(("v", f"v_accvgpr_read_b32 v{FO+j}, a{j}"))
        work.append(("bar",))
        for j in range(15): work.append(("l", f"ds_read_b128 v[{R+4*j}:{R+4*j+3}], v{vRd} offset:{j*1024}", f"PR{j//5}"))
        work.append(("v", f"s_mov_b32 s{sA}, 0x{NLOG2E:x}")); work.append(("v", f"s_mov_b32 s{sA+1}, 0xffff0000"))
        work.append(("xo",))
        for j in range(20):
            xr = XR + (j >> 1)
            work.append(("v", f"v_and_b32 v{96+j}, s{sA+1}, v{xr}" if j & 1 else f"v_lshlrev_b32 v{96+j}, 16, v{xr}"))
        for i in range(3):
            work.append(("lw", f"PR{i}"))
            for j in range(20): work.append(("v", f"v_add_f32 v{FO+j}, v{FO+j}, v{R+20*i+j}"))
        for j in range(20): work.append(("v", f"v_mul_f32 v{R+j}, s{sA}, v{FO+j}"))
        for j in range(20): work.append(("v", f"v_exp_f32 v{R+j}, v{R+j}"))
        for j in range(20): work.append(("v", f"v_add_f32 v{R+j}, 1.0, v{R+j}"))
        for j in range(20): work.append(("v", f"v_rcp_f32 v{R+j}, v{R+j}"))
        for j in range(20): work.append(("v", f"v_mul_f32 v{FO+j}, v{FO+j}, v{R+j}"))
        def do(wk):
            if wk[0] == "v": a(wk[1])
            elif wk[0] == "l": lq.issue(a, wk[1], wk[2])
            elif wk[0] == "lw": lq.wait(a, wk[1])
            elif wk[0] == "xo": vm.wait(a, "XO", 5)
            elif wk[0] == "bar":
                lq.wait(a, "PW"); self.mark(20); a("s_barrier"); self.mark(21)
        nw = len(work); done = 0; m = 0
        for T in range(20):
            if T % 5 == 0: vm.wait(a, f"PO{T//5}", 5)
            lq.wait(a, f"W{T}")
            rd = wo_reads(T + 5) if 1 <= T and T + 5 < 20 else []
            b = WR[T % 6]
            for u in range(5):
                c = "0" if T == 0 else f"a[{SA+4*u}:{SA+4*u+3}]"
                a(f"v_mfma_f32_16x16x32_bf16 a[{SA+4*u}:{SA+4*u+3}], v[{b+4*u}:{b+4*u+3}], a[{OA+4*T}:{OA+4*T+3}], {c}")
                m += 1
                if rd: lq.issue(a, rd.pop(0), f"W{T+5}")
                if m > 8:
                    while done < nw and done < (m - 8) * nw // 90:
                        do(work[done]); done += 1
        while done < nw:
            do(work[done]); done += 1
        a("s_nop 7")
        for u in range(5):
            for j in range(4): a(f"v_accvgpr_read_b32 v{R+4*u+j}, a{SA+4*u+j}")
            for h in range(2):
                f0 = FO + 4 * u + 2 * h; s_ = R + 4 * u + 2 * h; x_ = 96 + 4 * u + 2 * h
                a(f"v_pk_fma_f32 v[{f0}:{f0+1}], v[{f0}:{f0+1}], v[{s_}:{s_+1}], v[{x_}:{x_+1}]")
            f0 = FO + 4 * u; o = 64 + 2 * u
            a(f"v_cvt_pk_bf16_f32 v{o}, v{f0}, v{f0+1}")
            a(f"v_cvt_pk_bf16_f32 v{o+1}, v{f0+2}, v{f0+3}")
            a(f"global_store_dwordx2 v{vX}, v[{o}:{o+1}], s[60:61] offset:{32*u}")
        self.mark(22)
        if self.stamps:
            a("s_waitcnt vmcnt(0)")
            a(f"s_memtime s[{sA}:{sA+1}]")
            a(f"s_memrealtime s[{sA+2}:{sA+3}]")
            a("s_waitcnt lgkmcnt(0)")
            for i in range(1, 7):
                a(f"s_sub_u32 s{sA+4}, s{ST0+2*i}, s{ST0}")
                a(f"v_mov_b32 v{32+i}, s{sA+4}")
            a(f"s_sub_u32 s{sA+4}, s{sA}, s{ST0}\nv_mov_b32 v40, s{sA+4}")
            a(f"v_mov_b32 v41, s{sA+2}")
            a(f"""
            v_mov_b32 v32, s90
            s_sub_u32 s{sA+4}, s64, s{ST0}
            v_mov_b32 v39, s{sA+4}
            s_sub_u32 s{sA+4}, s66, s{ST0}
            v_mov_b32 v42, s{sA+4}
            s_lshl_b32 s{sA}, s2, 2
            s_add_u32 s{sA}, s{sA}, s{sWave}
            s_lshl_b32 s{sA}, s{sA}, 6
            s_add_u32 s{sA}, s{sA}, {WS_STAMP}
            v_mov_b32 v3, s{sA}
            global_store_dwordx4 v3, v[32:35], s[8:9]
            global_store_dwordx4 v3, v[36:39], s[8:9] offset:16
            global_store_dwordx4 v3, v[40:43], s[8:9] offset:32
            """)
        a("s_endpgm")
        a.label(f"{label}_two")
        self.stamp(5)
        self.vm = vm = VM()
        self.vPub = 62
        a("s_nop 7")
        for op in self.epi_f(ACC[1], PB[1] + 7): self.emit(op, "E1")
        a("s_waitcnt vmcnt(0) lgkmcnt(0)")
        a("s_barrier")
        self.publish(3, ["E1"])
        a("s_nop 1")
        self.publish(4, ["E1"])
        self.pathb(pre)
        a("s_waitcnt vmcnt(0)")
        a(f"s_branch {label}_join")
        for s in self.slow: a(s)
        a.label(f"{label}_end")
        a("s_endpgm")
        a.end_kernel(label, 512, 102, 256, 256, 256, 163840)
        return a.text("generated by dev/fused.py: one persistent kernel, 256 workgroups (one per CU)\n"
                      "phase 1: LayerNorm + x@[wqkv|w_gate|w_up] (+ weight repack), attention, phase 2: h@w_down, o@wo, combine")
    def pathb(self, pre):
        for i, f in enumerate(pre):
            if i % 8 == 3 and self.cfg.get('markT', 2) == 2: self.mark(i // 8)
            f()

if __name__ == "__main__":
    stamps = "--stamps" in sys.argv
    pos = [x for x in sys.argv[1:] if not x.startswith("--")]
    cfg = json.loads(pos[1]) if len(pos) > 1 else {}
    open(pos[0], "w").write(Gen(cfg, stamps).build())
```

```python
import sys, json, struct; sys.path.insert(0, "dev")
from asmlib import *

WS_H = 0
WS_O = 0x780000
WS_WD = 0xA00000
WS_WO = 0xD00000
WS_QKV = 0x1000000
WS_FLAG = 0x1800000
WS_EPOCH = WS_FLAG - 256
WS_STAMP = 0x1900000
WS_SIZE = 0x2000000
OOB = 0x4000000
TOKX = 0x5bd1e995
NLOG2E = 0xbfb8aa3b
def f2u(x): return struct.unpack("<I", struct.pack("<f", x))[0]
C_SM = f2u(20 ** -0.5 * 1.4426950408889634)

XB = 96; EP = 32; ACC = [0, 64]; WF = 128; NWB = 3
vLd = 1; vTr = 5
vSF = 17; vL8 = 18; vC1 = 19; vD2 = 20; vR = 21; vNegM = 22; vSum = 23; vSq = 24
vRow = 25; vCol = 26; vT = 27
vDbg = 30; vL16 = 31
vFl = 22
vQa = 28; vKa = 29
vA = [16, 17, 19, 24]
PR = 64
sOOB = 3
pQKV = 76; pWS = 78; pWO = 80; pDN = 82; pG = 84; pU = 86
sWave = 8; sMb64 = 9; sHalf = 10; sM0 = 11; sSoff = 12; sStep = 13; sWrap = 14; sThree = 15
SRDW = 16
SRDX = 20
sGa = 20; sGb = 21; sDuty = 97
PB = [24, 32, 40]
PK = 48
sOne = 57; sLo = 58; sHi = 59
sTok = 60
sFlag = 62; sFl0 = 63; sFl1 = 64; sFlG = 65
sAb = 66; sAb2 = 67; sBb = 68; sBb2 = 69; sOld = 70; sWOb = 71; sOst = 72; sOst2 = 73; sKV = 74; sXo = 75
ST0 = 76
sMb = 88; sJ = 89; sRot = 90; sNb = 91
sA = 92

class VM:
    def __init__(self): self.q = []
    def issue(self, a, ins, tag):
        a(ins); self.q.append(tag)
    def last(self, tag): return max(i for i, t in enumerate(self.q) if t == tag)
    def wait(self, a, tag, cnt=None):
        if cnt is not None: assert self.q.count(tag) == cnt, (tag, self.q.count(tag))
        a(f"s_waitcnt vmcnt({min(len(self.q) - 1 - self.last(tag), 63)})")
class LQ:
    def __init__(self): self.q = []
    def issue(self, a, ins, tag):
        a(ins); self.q.append(tag)
    def wait(self, a, tag):
        idx = max(i for i, t in enumerate(self.q) if t == tag)
        a(f"s_waitcnt lgkmcnt({min(len(self.q) - 1 - idx, 15)})")
class Uniq(dict):
    def __setitem__(self, k, v):
        assert k not in self, ("duplicate gap", k)
        dict.__setitem__(self, k, v)
def lines(s): return [l.split(";;")[0].strip() for l in s.split("\n") if l.split(";;")[0].strip()]
DIV5 = (1 << 16) // 5 + 1
DIV3 = (1 << 16) // 3 + 1

class Gen:
    def __init__(self, cfg, stamps):
        self.cfg = dict(dict(LA=6, XW=5, PB=4, bar2=True, rpat=[2, 2, 2, 2], dmagap=2, spin=3000, cap=5.0,
                             rotm=0x1010, rotx=0x7520, tch=-1, tch2=110, pk0=18, pk1=70, pub1=124, pub2=124, gck=118, qck=70, pub3=148,
                             w1=100, w2=112, b1vq=1, vq1=1, vq2=1, ntail=16, natt1=8, natt2=24, pub4=18,
                             nside=[8, 8, 8, 4, 4, 4, 4, 4, 4], kbar=10, ko=10, no_f=12, kx=11), **cfg)
        self.stamps = stamps
        self.a = Asm(); self.vm = VM()
        self.label = NAME + "_kernel"
        self.slot = {}; self.owner = [None] * 10
        self.xdone = set(); self.lastbar = -10
        self.next = 0; self.pend = []; self.slow = []
        self.vPub = 92
    def stamp(self, i):
        if self.stamps: self.a(f"s_memtime s[{ST0+2*(i-1)}:{ST0+2*(i-1)+1}]" if i else "s_memtime s[0:1]")
    def mark(self, i):
        if self.cfg.get("marks"):
            r = 22
            self.a(f"""
            s_memtime s[{r}:{r+1}]
            s_waitcnt lgkmcnt(0)
            s_sub_u32 s{r}, s{r}, s0
            v_mov_b32 v{vDbg}, s{r}
            s_lshl_b32 s{r}, s2, 2
            s_add_u32 s{r}, s{r}, s{sWave}
            s_lshl_b32 s{r}, s{r}, 7
            s_add_u32 s{r}, s{r}, {WS_STAMP + 0x40000 + 4*i}
            s_mov_b64 exec, 1
            """)
            self.vm.issue(self.a, f"buffer_store_dword v{vDbg}, off, s[{SRDW}:{SRDW+3}], s{r}", "mk")
            self.a("s_mov_b64 exec, -1\ns_nop 1")
    def emit(self, op, tag="st"):
        for o in op.split(";"):
            o = o.strip()
            if o.startswith(("global_", "buffer_")): self.vm.issue(self.a, o, tag)
            else: self.a(o)
    def free(self, s):
        o = self.owner[s]
        if o is None: return True
        if o[0] == "B": return o[1] <= self.lastbar - 1
        return o in self.xdone
    def cands(self, name):
        c = [s for s in range(10) if self.free(s)]
        if name[0] == "B" and name[1] >= self.cfg.get("avoid_from", 23): c = [s for s in reversed(c) if s not in (7, 8)]
        return c
    def alloc(self, name, want=None):
        c = self.cands(name) if want is None else [s for s in range(10) if self.free(s) and s == want]
        assert c, ("no free slot", name, self.owner, self.lastbar)
        s = c[0]; self.owner[s] = name; self.slot[name] = s
        return s

    def pos_ops(self, f, d):
        t = sA + 4
        return [f"s_lshr_b32 s{t}, s{f}, 2", f"s_mul_i32 s{t}, s{t}, 6", f"s_lshl_b32 s{d}, s{f}, 1", f"s_add_u32 s{t}, s{t}, s{d}",
                f"s_sub_u32 s{t+1}, s{f}, 16", f"s_mul_i32 s{t+1}, s{t+1}, {DIV3}", f"s_lshr_b32 s{t+1}, s{t+1}, 16", f"s_lshl_b32 s{t+1}, s{t+1}, 3",
                f"s_add_u32 s{t+1}, s{t+1}, s{d}", f"s_sub_u32 s{t+1}, s{t+1}, 24",
                f"s_cmp_lt_u32 s{f}, 16; s_cselect_b32 s{d}, s{t}, s{t+1}"]
    def f_params(self, P, code):
        t = sA
        return lines(f"""
        s_mov_b32 s{P+3}, 0x20000
        s_cmp_lt_u32 s{sWave}, 2; s_cselect_b32 s{P}, s{pG}, s{pU}; s_cselect_b32 s{P+1}, s{pG+1}, s{pU+1}
        s_cmp_lt_u32 s{code}, 27; s_cselect_b32 s{P+2}, {640*3456}, 0
        s_movk_i32 s{P+4}, 3456
        s_lshl_b32 s{P+5}, s{code}, 7
        s_mul_i32 s{P+6}, s{sRot}, {64*3456}
        """) + self.pos_ops(code, P + 7) + lines(f"""
        s_lshl_b32 s{t}, s{sMb}, 1
        s_lshr_b32 s{t+1}, s{sWave}, 1
        s_add_u32 s{t}, s{t}, s{t+1}
        s_mul_i32 s{t}, s{t}, 56
        s_add_u32 s{P+7}, s{P+7}, s{t}
        s_lshl_b32 s{P+7}, s{P+7}, 12
        s_and_b32 s{t+1}, s{sWave}, 1
        s_lshl_b32 s{t+1}, s{t+1}, 11
        s_add_u32 s{P+7}, s{P+7}, s{t+1}
        """)
    def q_params(self, P, q):
        t = sA
        return lines(f"""
        s_mov_b32 s{P+3}, 0x20000
        s_mov_b32 s{P}, s{pQKV}
        s_mov_b32 s{P+1}, s{pQKV+1}
        s_movk_i32 s{P+4}, 3840
        s_lshr_b32 s{t}, s{sWave}, 1
        s_lshl_b32 s{P+5}, s{q}, 1
        s_add_u32 s{P+5}, s{P+5}, s{t}
        s_lshl_b32 s{P+5}, s{P+5}, 7
        s_mul_i32 s{P+6}, s{sRot}, {64*3840}
        s_lshl_b32 s{t}, s{sMb}, 2
        s_add_u32 s{t}, s{t}, s{sWave}
        s_mul_i32 s{t}, s{t}, 122880
        s_lshl_b32 s{t+1}, s{q}, 13
        s_add_u32 s{t}, s{t}, s{t+1}
        s_add_u32 s{t}, s{t}, {WS_QKV}
        s_cmp_lt_u32 s{q}, 15; s_cselect_b32 s{P+2}, {640*3840}, 0; s_cselect_b32 s{P+7}, s{t}, s{sOOB}
        """)
    def pack_params(self):
        P = PK; t = sA
        r = lines(f"""
        s_mov_b32 s{P+3}, 0x20000
        s_mov_b32 s{t+2}, {640*1280}
        s_cmp_lt_u32 s2, 135; s_cselect_b32 s{P}, s{pDN}, s{pWO}; s_cselect_b32 s{P+1}, s{pDN+1}, s{pWO+1}; s_cselect_b32 s{P+2}, {1728*1280}, s{t+2}; s_cselect_b32 s{t}, 0, 135
        s_sub_u32 s{t}, s2, s{t}
        s_mul_i32 s{t+2}, s{t}, {DIV5}
        s_lshr_b32 s{t+2}, s{t+2}, 16
        s_mul_i32 s{t+3}, s{t+2}, 5
        s_sub_u32 s{t+1}, s{t}, s{t+3}
        s_mul_i32 s{P+4}, s{t+2}, {64*1280}
        s_lshl_b32 s{t+3}, s{t+1}, 8
        s_add_u32 s{P+4}, s{P+4}, s{t+3}
        s_lshr_b32 s{t+3}, s{sWave}, 1
        s_lshl_b32 s{t+3}, s{t+3}, 7
        s_add_u32 s{P+4}, s{P+4}, s{t+3}
        """) + self.pos_ops(t + 2, t + 3) + lines(f"""
        s_lshl_b32 s{t+2}, s{t+2}, 1
        s_mov_b32 s{t}, {WS_WO}
        s_movk_i32 s{t+6}, 100
        s_cmp_lt_u32 s2, 135; s_cselect_b32 s{t+3}, s{t+3}, s{t+2}; s_cselect_b32 s{t}, {WS_WD}, s{t}; s_cselect_b32 s{t+6}, 280, s{t+6}
        s_and_b32 s{t+2}, s{sWave}, 1
        s_add_u32 s{t+3}, s{t+3}, s{t+2}
        s_mul_i32 s{t+3}, s{t+3}, 5120
        s_add_u32 s{t}, s{t}, s{t+3}
        s_cmp_lt_u32 s2, 185; s_cselect_b32 s{P+2}, s{P+2}, 0; s_cselect_b32 s{t}, s{t}, s{sOOB}
        s_lshl_b32 s{t+1}, s{t+1}, 3
        s_and_b32 s{t+2}, s{sWave}, 2
        s_lshl_b32 s{t+2}, s{t+2}, 1
        s_add_u32 s{t+1}, s{t+1}, s{t+2}
        s_sub_u32 s{t+6}, s{t+6}, 5
        """)
        for ch in range(4):
            r += lines(f"""
            s_add_u32 s{t+2}, s{t+1}, {ch}
            s_mul_i32 s{t+3}, s{t+2}, {DIV5}
            s_lshr_b32 s{t+3}, s{t+3}, 16
            s_mul_i32 s{t+3}, s{t+3}, s{t+6}
            s_add_u32 s{t+3}, s{t+3}, s{t+2}
            s_lshl_b32 s{t+3}, s{t+3}, 10
            s_add_u32 s{P+5+ch}, s{t+3}, s{t}
            """)
        return r
    def p2_params(self):
        t = sA
        return lines(f"""
        s_lshl_b32 s{sNb}, s{sMb}, 1
        s_add_u32 s{sNb}, s{sNb}, s{sJ}
        s_and_b32 s{sNb}, s{sNb}, 7
        s_mul_i32 s{t}, s{sWave}, 14
        s_mul_i32 s{sAb}, s{sMb64}, 56
        s_add_u32 s{sAb}, s{sAb}, s{t}
        s_lshl_b32 s{sAb}, s{sAb}, 12
        s_mul_i32 s{sBb}, s{sNb}, 56
        s_add_u32 s{sBb}, s{sBb}, s{t}
        s_mul_i32 s{sBb}, s{sBb}, 5120
        s_add_u32 s{sBb}, s{sBb}, {WS_WD}
        s_cmp_lt_u32 s{sWave}, 3; s_cselect_b32 s{sAb2}, s{sAb}, s{sOOB}; s_cselect_b32 s{sBb2}, s{sBb}, s{sOOB}
        s_mul_i32 s{t}, s{sMb64}, 81920
        s_add_u32 s{t}, s{t}, {WS_O}
        s_mul_i32 s{sOld}, s{sWave}, 20480
        s_add_u32 s{sOld}, s{sOld}, s{t}
        s_mul_i32 s{sOst}, s{sNb}, 10
        s_add_u32 s{sOst}, s{sOst}, s{sWave}
        s_lshl_b32 s{sOst}, s{sOst}, 8
        s_add_u32 s{sOst}, s{sOst}, s{t}
        s_cmp_lt_u32 s{sWave}, 2; s_cselect_b32 s{sOst2}, s{sOst}, s{sOOB}
        s_mul_i32 s{sWOb}, s{sNb}, 102400
        s_add_u32 s{sWOb}, s{sWOb}, {WS_WO}
        s_add_u32 s{sWOb}, s{sWOb}, s{sM0}
        s_lshl_b32 s{sKV}, s{sNb}, 2
        s_add_u32 s{sKV}, s{sKV}, s{sWave}
        s_mul_i32 s{sKV}, s{sKV}, 1280
        s_add_u32 s{sKV}, s{sKV}, {WS_QKV}
        s_lshl_b32 s{sXo}, s{sMb64}, 2
        s_add_u32 s{sXo}, s{sXo}, s{sWave}
        s_mul_i32 s{sXo}, s{sXo}, {16*1280}
        s_mul_i32 s{t}, s{sNb}, 160
        s_add_u32 s{sXo}, s{sXo}, s{t}
        s_lshl_b32 s{sFl0}, s{sMb}, 9
        s_add_u32 s{sFl0}, s{sFl0}, {WS_FLAG}
        s_max_u32 s{sFl1}, s{sMb}, 1
        s_lshl_b32 s{sFl1}, s{sFl1}, 9
        s_add_u32 s{sFl1}, s{sFl1}, {WS_FLAG - 512}
        s_lshl_b32 s{sFlG}, s{sWave}, 11
        s_add_u32 s{sFlG}, s{sFlG}, {WS_FLAG}
        s_lshl_b32 s{t}, s{sMb64}, 1
        v_lshrrev_b32 v{vQa}, 5, v0
        v_add_u32 v{vQa}, s{t}, v{vQa}
        v_mul_u32_u24 v{vQa}, 122880, v{vQa}
        v_and_b32 v{vKa}, 31, v0
        v_lshl_add_u32 v{vQa}, v{vKa}, 3, v{vQa}
        v_add_u32 v{vKa}, 8, v0
        v_lshrrev_b32 v{vT}, 4, v{vKa}
        v_add_u32 v{vT}, s{t}, v{vT}
        v_max_u32 v{vT}, 1, v{vT}
        v_subrev_u32 v{vT}, 1, v{vT}
        v_mul_u32_u24 v{vT}, 122880, v{vT}
        v_and_b32 v{vKa}, 15, v{vKa}
        v_lshl_add_u32 v{vKa}, v{vKa}, 4, v{vT}
        """)
    def switch_ops(self, P):
        t = sA
        return [f"v_mad_u32_u24 v{vLd}, v{vRow}, s{P+4}, v{vCol}",
                f"s_lshl_b32 s{sStep}, s{P+4}, 6",
                f"s_lshl_b32 s{t}, s{P+4}, 3",
                f"s_sub_u32 s{t}, s{t}, 1024",
                f"v_add_u32 v{vLd}, s{P+5}, v{vLd}",
                f"s_mul_i32 s{sWrap}, s{sStep}, 10",
                f"s_mov_b32 s{sSoff}, s{P+6}",
                f"v_add_u32 v{vLd+1}, s{t}, v{vLd}",
                f"v_add_u32 v{vLd+2}, s{t}, v{vLd+1}",
                f"v_add_u32 v{vLd+3}, s{t}, v{vLd+2}"]
    def dma_items(self, g):
        P = PB[g // 10]; slot = self.alloc(("B", g))
        it = [("op", f"s_add_u32 m0, s{sM0}, {slot*16384}")]
        if g % 10 == 0 and g > 0: it += [("op", o) for o in self.switch_ops(P)]
        elif g % 10: it.append(("op", f"s_add_u32 s{sSoff}, s{sSoff}, s{sStep}; s_cmp_eq_u32 s{sSoff}, s{sWrap}; s_cselect_b32 s{sSoff}, 0, s{sSoff}"))
        it += [("ld", f"buffer_load_dwordx4 v{vLd+j}, s[{P}:{P+3}], s{sSoff} offen offset:{1024*j} lds", f"B{g}") for j in range(4)]
        return it
    def pop_ops(self):
        p = self.pend
        while p and p[0][0] != "ld": self.emit(p.pop(0)[1])
    def pop_ld(self):
        a = self.a; p = self.pend
        self.pop_ops()
        if p:
            if " m0," in a.lines[-1]: a("s_nop 0")
            _, l, tag = p.pop(0); self.vm.issue(a, l, tag)
    def tr_reads(self, G):
        g, s = G >> 2, G & 3
        slot = self.slot[("B", g)]; reg = slot >> 2
        o = (slot & 3) * 16384 + 16 * s * 128
        r = []
        for t in range(4):
            b = WF + 16 * (G % NWB) + 4 * t
            r += [f"ds_read_b64_tr_b16 a[{b}:{b+1}], v{vTr+4*reg+t} offset:{o}",
                  f"ds_read_b64_tr_b16 a[{b+2}:{b+3}], v{vTr+4*reg+t} offset:{o+512}"]
        return r
    def center_ops(self, stage):
        x = XB + 16 * stage; t = EP
        d = []
        for i in range(16):
            d.append(f"v_dot2_f32_bf16 v{t+2*i}, v{x+i}, s{sLo}, v{vNegM}")
            d.append(f"v_dot2_f32_bf16 v{t+2*i+1}, v{x+i}, s{sHi}, v{vNegM}")
        c = [f"v_cvt_pk_bf16_f32 v{x+i}, v{t+2*i}, v{t+2*i+1}" for i in range(16)]
        return d, c
    def epi_f(self, acc, so):
        ops = []
        for t in range(4):
            g = EP + 32 * (t & 1); u = g + 8; e = g + 16; pk = g + 24
            A = acc + 16 * t
            for i in range(8): ops.append(f"v_accvgpr_read_b32 v{g+i}, a{A+i}")
            for i in range(8): ops.append(f"v_mul_f32 v{e+i}, v{vC1}, v{g+i}")
            for i in range(8):
                ops.append(f"v_exp_f32 v{e+i}, v{e+i}")
                ops.append(f"v_accvgpr_read_b32 v{u+i}, a{A+8+i}")
            for i in range(8): ops.append(f"v_fma_f32 v{e+i}, v{e+i}, v{vD2}, v{vD2}")
            for i in range(8):
                ops.append(f"v_rcp_f32 v{e+i}, v{e+i}")
                ops.append(f"v_mul_f32 v{g+i}, v{g+i}, v{u+i}")
            for i in range(8): ops.append(f"v_mul_f32 v{g+i}, v{g+i}, v{e+i}")
            for i in range(4): ops.append(f"v_cvt_pk_bf16_f32 v{pk+i}, v{g+2*i}, v{g+2*i+1}")
            if t == 2: ops.append(f"s_add_u32 s{so}, s{so}, 4096")
            ops.append(f"buffer_store_dwordx4 v[{pk}:{pk+3}], v{vSF}, s[{SRDW}:{SRDW+3}], s{so} offen offset:{(t&1)*512} sc1")
        return ops
    def epi_f_tail(self, acc, so):
        ops = [f"v_mov_b32 v{vR}, v{vD2}", f"v_mov_b32 v{vT}, v{vC1}", f"v_mov_b32 v{vT-1}, v{vC1}"]
        p2 = lambda r: f"v[{r}:{r+1}]"
        for t in range(4):
            g = EP + 32 * (t & 1); u = g + 8; e = g + 16; pk = g + 24
            A = acc + 16 * t
            for i in range(8): ops.append(f"v_accvgpr_read_b32 v{g+i}, a{A+i}")
            for i in range(4): ops.append(f"v_pk_mul_f32 {p2(e+2*i)}, {p2(vT-1)}, {p2(g+2*i)}")
            for i in range(8):
                ops.append(f"v_exp_f32 v{e+i}, v{e+i}")
                ops.append(f"v_accvgpr_read_b32 v{u+i}, a{A+8+i}")
            for i in range(4): ops.append(f"v_pk_fma_f32 {p2(e+2*i)}, {p2(e+2*i)}, {p2(vD2)}, {p2(vD2)}")
            for i in range(8): ops.append(f"v_rcp_f32 v{e+i}, v{e+i}")
            for i in range(4): ops.append(f"v_pk_mul_f32 {p2(g+2*i)}, {p2(g+2*i)}, {p2(u+2*i)}")
            for i in range(4): ops.append(f"v_pk_mul_f32 {p2(g+2*i)}, {p2(g+2*i)}, {p2(e+2*i)}")
            for i in range(4): ops.append(f"v_cvt_pk_bf16_f32 v{pk+i}, v{g+2*i}, v{g+2*i+1}")
            if t == 2: ops.append(f"s_add_u32 s{so}, s{so}, 4096")
            ops.append(f"buffer_store_dwordx4 v[{pk}:{pk+3}], v{vSF}, s[{SRDW}:{SRDW+3}], s{so} offen offset:{(t&1)*512} sc1")
        return ops
    def epi_q(self, acc, so):
        ops = [f"s_add_u32 s{so-1}, s{so}, 4096"]
        for t in range(4):
            g = EP + 32 * (t & 1); pk = g + 16
            A = acc + 16 * t
            for i in range(16): ops.append(f"v_accvgpr_read_b32 v{g+i}, a{A+i}")
            for i in range(16): ops.append(f"v_mul_f32 v{g+i}, v{vR}, v{g+i}")
            for i in range(8): ops.append(f"v_cvt_pk_bf16_f32 v{pk+i}, v{g+2*i}, v{g+2*i+1}")
            for q in range(4):
                grp = 4 * t + 2 * (q & 1)
                ops.append(f"buffer_store_dwordx2 v[{pk+2*q}:{pk+2*q+1}], v{vL8}, s[{SRDW}:{SRDW+3}], s{so-(q>>1)} offen offset:{grp*256} sc1")
        return ops
    def publish(self, level, after):
        a = self.a
        for tg in after: self.vm.wait(a, tg)
        a(f"v_mov_b64 v[{self.vPub}:{self.vPub+1}], s[{sTok}:{sTok+1}]")
        a(f"s_add_u32 s{sA+8}, s{sFlag}, {level*8192}")
        a("s_mov_b64 exec, 1")
        self.vm.issue(a, f"buffer_store_dwordx2 v[{self.vPub}:{self.vPub+1}], off, s[{SRDW}:{SRDW+3}], s{sA+8} sc1", "fl")
        a("s_mov_b64 exec, -1")
    def flag_ld(self, reg, soff, level, off, sc):
        return [f"s_add_u32 s{sA+8}, s{soff}, {level*8192}",
                f"buffer_load_dwordx2 v[{reg}:{reg+1}], v{vL8}, s[{SRDW}:{SRDW+3}], s{sA+8} offen offset:{off} {sc}"]
    def flag_load(self, reg, soff, tag, level, off=0):
        l = self.flag_ld(reg, soff, level, off, "")
        self.a(l[0]); self.vm.issue(self.a, l[1], tag)
    def flag_check(self, reg, soff, tag, level, half=False, off=0):
        a = self.a; L = a.newlabel("fc")
        self.vm.wait(a, tag)
        test = f"v_cmp_ne_u64 vcc, s[{sTok}:{sTok+1}], v[{reg}:{reg+1}]\n"
        if half: test += f"s_cmp_eq_u32 s{sHalf}, 0\ns_cselect_b32 s{sA+8}, vcc_lo, vcc_hi\ns_cmp_lg_u32 s{sA+8}, 0"
        else: test += "s_nop 0\ns_cmp_lg_u64 vcc, 0"
        a(test)
        a(f"s_cbranch_scc1 {L}_slow")
        a.label(f"{L}_ok")
        l = self.flag_ld(reg, soff, level, off, "sc1")
        self.slow.append(f"""
        {L}_slow:
        s_mov_b32 s{sA+9}, 0
        {L}_spin:
        {l[0]}
        {l[1]}
        s_add_u32 s{sA+9}, s{sA+9}, 1
        s_cmp_gt_u32 s{sA+9}, {self.cfg["spin"]}
        s_waitcnt vmcnt(0)
        s_cbranch_scc1 {L}_ok
        {test}
        s_cbranch_scc0 {L}_ok
        s_sleep {self.cfg.get("sleep", 8)}
        s_branch {L}_spin
        """)

    def body(self, T, work, ntask, wrange=(4, 156), center=False, extra=None, vq=None, vq1=1, vq2=1, before=None):
        a = self.a; cfg = self.cfg; acc = ACC[T & 1]; LA = cfg["LA"]
        ngap = 160
        per = [[] for _ in range(ngap)]
        def cost(op):
            if not isinstance(op, str): return 3.0
            if op.startswith(("v_exp", "v_rcp")): return 2.0
            if op.startswith("buffer_"): return 3.0
            return 1.0 + op.count(";")
        def is_bar(S):
            n1 = 10 * T + (S >> 2) + 1
            if (S & 3) != 1 or n1 >= 10 * ntask: return False
            return (n1 % 2 == 0) if cfg["bar2"] else True
        cap = []
        for g in range(ngap):
            c = cfg["cap"] - ([3, 3, 2, 0] if is_bar(g >> 2) else cfg["rpat"])[g & 3]
            if (g & 3) == cfg["dmagap"] or ((g & 3) == 0 and vq): c -= 2.5
            if (g & 3) == 3: c -= 1
            if (g & 3) == 3 and is_bar(g >> 2): c = 0
            cap.append(max(c, 0.0))
        if center:
            for st in range(1, 10):
                d, c = self.center_ops(st)
                base = 16 * (st - 1)
                per[base] += d
                cg = [base + x for x in (1, 3, 4, 5, 8, 9, 11, 12, 13)]
                for i, op in enumerate(c): per[cg[i * len(cg) // 16]].append(op)
        used = lambda g: sum(cost(o) for o in per[g])
        self.ends = {}
        for g00, fn in (extra or {}).items():
            if not isinstance(fn, list): per[g00].append(fn)
        for g00, fn in (extra or {}).items():
            if isinstance(fn, list):
                g = g00; room = 0.0
                for op in fn:
                    while room <= 0:
                        room = cap[g] - used(g); g += 1
                    per[g - 1].append(op); room -= cost(op)
                self.ends[g00] = g - 1
        for a_, b_ in (before or []): assert self.ends[a_] < b_, (a_, self.ends[a_], b_)
        if work:
            g0, g1 = wrange
            cap = [max(cap[g] - used(g), 0.0) for g in range(ngap)]
            scale = sum(cost(o) for o in work) / sum(cap[g0:g1])
            if cfg.get("verbose"): print("body", T, "work scale", scale)
            g = g0; room = cap[g] * scale
            for op in work:
                while room <= 0 and g < g1 - 1:
                    g += 1; room += cap[g] * scale
                per[g].append(op); room -= cost(op)
        vq = list(vq or [])
        for S in range(40):
            i, s = S >> 2, S & 3
            G = 40 * T + S; n = 10 * T + i
            rd = self.tr_reads(G + 2) if G + 2 < 40 * ntask else []
            if s == 2:
                k = 0
                while self.next <= n + LA and self.next < 10 * ntask and k < 2 and self.cands(("B", self.next)):
                    self.pend += self.dma_items(self.next); self.next += 1; k += 1
            for t in range(4):
                gap = 4 * S + t
                if t == 0: a(f"s_waitcnt lgkmcnt({8 if G + 1 < 40 * ntask else 0})")
                A = acc + 16 * t; w = WF + 16 * (G % NWB) + 4 * t; x = XB + 4 * S
                c = "0" if S == 0 else f"a[{A}:{A+15}]"
                a(f"v_mfma_f32_32x32x16_bf16 a[{A}:{A+15}], a[{w}:{w+3}], v[{x}:{x+3}], {c}")
                pat = [3, 3, 2, 0] if is_bar(S) else cfg["rpat"]
                for _ in range(pat[t]):
                    if rd: a(rd.pop(0))
                nld = sum(1 for p_ in self.pend if p_[0] == "ld")
                if self.pend and (t == cfg["dmagap"] or (nld > 4 and t == 0)): self.pop_ld()
                elif vq and ((t == 0 and S % vq1 == 0) or (t == cfg["dmagap"] and not self.pend and S % vq2 == 0)):
                    for j_, it_ in enumerate(vq):
                        if it_[0](gap):
                            vq.pop(j_)[1](); break
                if t == cfg["dmagap"] - 1: self.pop_ops()
                if T == cfg.get("markT", 2) and gap % 16 == 9: self.mark(gap // 16)
                for op in per[gap]:
                    if callable(op): op()
                    else: self.emit(op, f"E{T-1}")
                if t == 3 and is_bar(S):
                    last = n + 2 if cfg["bar2"] and n + 2 < 10 * ntask else n + 1
                    self.vm.wait(a, f"B{last}", 4)
                    a("s_barrier")
                    self.lastbar = n
            assert not rd
        return vq

    def att_loads(self):
        a = self.a
        if "K" not in self.slot: self.alloc("K", 7); self.alloc("V", 8)
        out = []
        for kv in range(2):
            for i in range(5):
                def f(kv=kv, i=i):
                    assert not self.pend
                    a(f"s_add_u32 m0, s{sM0}, {(7+kv)*16384 + i*640 - 256*i}")
                    if i == 0: a(f"s_add_u32 s{sA+6}, s{sKV}, {(kv+1)*40960}")
                    a("s_mov_b32 exec_hi, 0xff")
                    self.vm.issue(a, f"buffer_load_dwordx4 v{vKa}, s[{SRDW}:{SRDW+3}], s{sA+6} offen offset:{256*i} sc1 lds", "KV")
                    a("s_mov_b32 exec_hi, -1")
                out.append(f)
        for i in range(5):
            out.append(lambda i=i: self.vm.issue(a, f"buffer_load_dwordx2 v[{XB+2*i}:{XB+2*i+1}], v{vQa}, s[{SRDW}:{SRDW+3}], s{sKV} offen offset:{256*i} sc1", "KV"))
        return out
    def attention(self, inter):
        a = self.a; vm = self.vm
        Q = XB; AK = 1; AK2 = 2; RW = 3; L = 4; P = 236; O = 216
        kvb = [[196, 200, 204, 208, 212], [106, 110, 252, 12, 26]]
        code = []; e = code.append
        def rd(n):
            m = n & 3
            if n == 4:
                e(f"v_add_u32 v{AK}, 16384, v{AK}"); e(f"v_add_u32 v{AK2}, 16384, v{AK2}")
            for i in range(5):
                b = kvb[n & 1][i]; o = (i % 3) * 80 + 16 - 4 * m
                e(f"ds_read2_b64 v[{b}:{b+3}], v{AK if i < 3 else AK2} offset0:{o} offset1:{o-2}")
        a(f"""
        s_add_u32 s{sA}, s{sM0}, {7*16384}
        v_add_u32 v{AK}, s{sA}, v{vL8}
        v_add_u32 v{AK2}, 1920, v{AK}
        s_mov_b32 s{sA+1}, 0x{C_SM:x}
        """)
        vm.wait(a, "KV", 15)
        self.mark(23)
        rd(0)
        for n in range(8):
            if n + 1 < 8:
                rd(n + 1); e("s_waitcnt lgkmcnt(5)")
            else: e("s_waitcnt lgkmcnt(0)")
            m = n & 3; B = kvb[n & 1]
            if n < 4:
                for i in range(10):
                    for h in range(2):
                        c = "0" if i == 0 else f"v{L+2*m+h}"
                        e(f"v_dot2_f32_bf16 v{L+2*m+h}, v{Q+i}, v{B[i>>1] + 2*h + (i&1)}, {c}")
            else:
                for h in range(2):
                    w = 2 * m + h
                    for i in range(10):
                        for j in range(2):
                            c = "0" if w == 0 else f"v{O+2*i+j}"
                            e(f"v_dot2_f32_bf16 v{O+2*i+j}, v{B[i>>1] + 2*h + (i&1)}, v{P+2*w+j}, {c}")
            if n == 3:
                Lm = a.newlabel("am")
                blk = [f"s_cmp_lg_u32 s{sMb64}, 0", f"s_cbranch_scc1 {Lm}", f"v_mov_b32 v{P}, 0xce6e6b28"]
                for ww in range(1, 8):
                    blk += [f"v_cmp_gt_u32 vcc, {2*ww}, v0", "s_nop 1", f"v_cndmask_b32 v{L+ww}, v{L+ww}, v{P}, vcc"]
                blk += [f"{Lm}:"]
                e("\n".join(blk))
                e(f"v_max3_f32 v{P}, v{L}, v{L+1}, v{L+2}")
                e(f"v_max3_f32 v{P}, v{P}, v{L+3}, v{L+4}")
                e(f"v_max3_f32 v{P}, v{P}, v{L+5}, v{L+6}")
                e(f"v_max_f32 v{P}, v{P}, v{L+7}")
                e(f"v_mul_f32 v{P}, s{sA+1}, v{P}")
                for ww in range(8): e(f"v_fma_f32 v{L+ww}, v{L+ww}, s{sA+1}, -v{P}")
                for ww in range(8): e(f"v_exp_f32 v{L+ww}, v{L+ww}")
                e(f"v_pk_add_f32 v[{P}:{P+1}], v[{L}:{L+1}], v[{L+2}:{L+3}]")
                e(f"v_pk_add_f32 v[{P+2}:{P+3}], v[{L+4}:{L+5}], v[{L+6}:{L+7}]")
                e(f"v_pk_add_f32 v[{P}:{P+1}], v[{P}:{P+1}], v[{P+2}:{P+3}]")
                e(f"v_add_f32 v{P}, v{P}, v{P+1}")
                e(f"v_rcp_f32 v{P}, v{P}\ns_nop 0")
                for ww in range(4): e(f"v_pk_mul_f32 v[{L+2*ww}:{L+2*ww+1}], v[{L+2*ww}:{L+2*ww+1}], v[{P}:{P+1}] op_sel_hi:[1,0]")
                for ww in range(8):
                    e(f"v_cvt_pk_bf16_f32 v{P+2*ww}, v{L+ww}, 0")
                    e(f"v_cvt_pk_bf16_f32 v{P+2*ww+1}, 0, v{L+ww}")
        e(f"s_mul_i32 s{sA}, s{sWave}, 2560\ns_add_u32 s{sA}, s{sA}, {9*16384}\nv_add_u32 v{AK}, s{sA}, v{vL8}")
        e(f"s_mul_i32 s{sA}, s{sWave}, 3\ns_and_b32 s{sA}, s{sA}, 13\ns_min_u32 s{sA}, s{sA}, 5\ns_lshl_b32 s{sA}, s{sA}, 9\ns_add_u32 s{sA}, s{sA}, {9*16384}\nv_add_u32 v{AK2}, s{sA}, v{vL8}")
        e(f"v_lshrrev_b32 v{RW}, 4, v0"); e(f"v_mul_u32_u24 v{RW}, {20480-256}, v{RW}"); e(f"v_add_u32 v{RW}, v{RW}, v{vL16}")
        for i in range(5):
            e(f"v_cvt_pk_bf16_f32 v{Q+2*i}, v{O+4*i}, v{O+4*i+1}")
            e(f"v_cvt_pk_bf16_f32 v{Q+2*i+1}, v{O+4*i+2}, v{O+4*i+3}")
            e(f"ds_write_b64 v{AK}, v[{Q+2*i}:{Q+2*i+1}] offset:{512*i}")
        inter = list(inter); n = len(code); k = len(inter); j = 0
        for i, ins in enumerate(code):
            a(ins)
            while j < k and j < (i + 1) * k // (n - 10):
                inter[j](); j += 1
        self.mark(25)
        a("s_waitcnt lgkmcnt(0)\ns_barrier")
        for r in range(3): a(f"ds_read2st64_b64 v[{4+4*r}:{7+4*r}], v{AK2} offset0:{8*r} offset1:{8*r+2}")
        return [lambda r=r: (a(f"s_waitcnt lgkmcnt({2-r})"),
                             vm.issue(a, f"buffer_store_dwordx4 v[{4+4*r}:{7+4*r}], v{RW}, s[{SRDW}:{SRDW+3}], s{sOst2 if r == 2 else sOst} offen offset:{1024*r} sc1", "O")) for r in range(3)]

    BSLOT = ["a176", "a196", "a216", "a236", "v116", "v136", "v156", "v176", "v196", "v216", "v236", "a128", "a148", "v96"]
    ASLOT = ["a80", "a96", "a112"] + [f"v{32 + 16 * ((k - 3) % 4)}" for k in range(3, 14)]
    @staticmethod
    def rr(base, off, n=4):
        return f"{base[0]}[{int(base[1:])+off}:{int(base[1:])+off+n-1}]"
    def b_loads(self, k):
        a = self.a; out = []
        for u in range(5):
            def f(u=u):
                if u == 0: a(f"s_add_u32 s{sGb}, s{sBb if k < 12 else sBb2}, {k*5120}")
                if u == 4: a(f"s_add_u32 s{sGb}, s{sGb}, 4096")
                self.vm.issue(a, f"buffer_load_dwordx4 {self.rr(self.BSLOT[k], 4*u)}, v{vL16}, s[{SRDW}:{SRDW+3}], s{sGb} offen offset:{1024*(u&3)} sc1", f"PB{k}")
            out.append(f)
        return out
    def a_loads(self, k):
        a = self.a; out = []
        for i in range(4):
            def f(i=i):
                if i == 0: a(f"s_add_u32 s{sGa}, s{sAb if k < 12 else sAb2}, {k*4096}")
                self.vm.issue(a, f"buffer_load_dwordx4 {self.rr(self.ASLOT[k], 4*i)}, v{vA[i]}, s[{SRDW}:{SRDW+3}], s{sGa} offen sc1", f"PA{k}")
            out.append(f)
        return out
    def wo_loads(self, s):
        a = self.a; out = []
        for j in range(4 if s < 6 else 1):
            def f(j=j):
                assert not self.pend
                if j == 0 and self.owner[s] != ("WO", s): self.alloc(("WO", s), s)
                if self.m0 != ("WO", s):
                    if s < 6:
                        a(f"s_add_u32 m0, s{sM0}, {s*16384}\ns_add_u32 s{sA+7}, s{sWOb}, {s*16384}")
                    else:
                        a(f"s_lshr_b32 s{sA+7}, s{sM0}, 2\ns_add_u32 m0, s{sA+7}, {6*16384}\ns_sub_u32 s{sA+7}, s{sWOb}, s{sM0}\ns_add_u32 s{sA+7}, s{sA+7}, m0")
                self.m0mark = (len(a.lines), ("WO", s))
                self.vm.issue(a, f"buffer_load_dwordx4 v{vL16}, s[{SRDW}:{SRDW+3}], s{sA+7} offen offset:{1024*j} sc1 lds", "WO")
            out.append(f)
        return out
    @property
    def m0(self):
        mk = getattr(self, "m0mark", None)
        if not mk: return None
        for l in self.a.lines[mk[0]:]:
            if " m0," in l or f"s{sA+7}," in l.split(",")[0] + "," and l.strip().startswith("s_") or l.endswith(("_join:", "_two:")): return None
        return mk[1]

    def build(self):
        a = self.a; cfg = self.cfg; label = self.label
        vm = self.vm
        sX = sA + 9
        a.begin_kernel(label)
        a(f"""
        s_cmp_ge_u32 s2, 256
        s_cbranch_scc1 {label}_end
        s_load_dwordx2 s[4:5], s[0:1], 0
        s_load_dwordx2 s[{pQKV}:{pQKV+1}], s[0:1], 8
        s_load_dwordx2 s[{pWO}:{pWO+1}], s[0:1], 16
        s_load_dwordx4 s[{pG}:{pG+3}], s[0:1], 32
        s_load_dwordx2 s[{pDN}:{pDN+1}], s[0:1], 48
        s_load_dwordx2 s[6:7], s[0:1], 56
        s_load_dwordx2 s[{pWS}:{pWS+1}], s[0:1], 72
        """)
        self.stamp(0)
        if self.stamps: a(f"s_memrealtime s[{sTok}:{sTok+1}]")
        NL = cfg.get("codelines", 11)
        a(f"""
        s_getpc_b64 s[{sA}:{sA+1}]
        s_lshr_b32 s{sA+2}, s2, 3
        s_mul_i32 s{sA+2}, s{sA+2}, {NL*128}
        v_lshlrev_b32 v{vT}, 7, v0
        v_add_u32 v{vT}, s{sA+2}, v{vT}
        v_min_u32 v{vT}, {label}_end-{label}-128, v{vT}
        v_cmp_gt_u32 vcc, {NL}, v0
        s_and_saveexec_b64 s[{sA+2}:{sA+3}], vcc
        s_cbranch_execz {label}_nt
        global_load_dword v95, v{vT}, s[{sA}:{sA+1}]
        {label}_nt:
        s_mov_b64 exec, -1
        v_lshrrev_b32 v{vT}, 6, v0
        v_and_b32 v0, 63, v0
        s_and_b32 s{sA}, s2, 7
        v_readfirstlane_b32 s{sWave}, v{vT}
        s_lshr_b32 s{sA+1}, s2, 3
        s_and_b32 s{sHalf}, s{sA}, 1
        s_lshr_b32 s{sA}, s{sA}, 1
        s_lshl_b32 s{sA}, s{sA}, 2
        s_lshr_b32 s{sA+2}, s{sA+1}, 3
        s_add_u32 s{sMb}, s{sA}, s{sA+2}
        s_and_b32 s{sJ}, s{sA+1}, 7
        s_lshl_b32 s{sM0}, s{sWave}, 12
        s_lshl_b32 s{sRot}, s{sA+2}, 2
        s_lshr_b32 s{sRot}, {cfg["rotm"]}, s{sRot}
        s_and_b32 s{sRot}, s{sRot}, 15
        s_add_u32 s{sRot}, s{sRot}, s{sJ}
        s_lshr_b32 s{sA+3}, {cfg["rotx"]}, s{sA}
        s_and_b32 s{sA+3}, s{sA+3}, 15
        s_add_u32 s{sRot}, s{sRot}, s{sA+3}
        s_sub_u32 s{sA+3}, s{sRot}, 10
        s_min_u32 s{sRot}, s{sRot}, s{sA+3}
        s_lshl_b32 s{sX}, s{sRot}, 7
        s_lshl_b32 s{sA}, s{sMb}, 7
        s_lshl_b32 s{sA+1}, s{sWave}, 5
        s_add_u32 s{sA}, s{sA}, s{sA+1}
        s_mul_i32 s{sA}, s{sA}, 1280
        v_lshrrev_b32 v{vT}, 3, v0
        v_mul_u32_u24 v{vT}, 1280, v{vT}
        v_add_u32 v{vT}, s{sA}, v{vT}
        v_lshrrev_b32 v{vT+1}, 4, v0
        v_and_b32 v{vT+2}, 7, v0
        v_xor_b32 v{vT+1}, v{vT+1}, v{vT+2}
        v_xor_b32 v{vT+2}, 4, v{vT+1}
        v_lshl_add_u32 v{EP+4}, v{vT+1}, 4, v{vT}
        v_lshl_add_u32 v{EP+5}, v{vT+2}, 4, v{vT}
        v_add_u32 v{EP+5}, {8*1280-1024}, v{EP+5}
        v_add_u32 v{EP+6}, {2*(8*1280-1024)}, v{EP+4}
        v_add_u32 v{EP+7}, {2*(8*1280-1024)}, v{EP+5}
        s_mov_b32 s{SRDX+2}, {2048*1280}
        s_mov_b32 s{SRDX+3}, 0x20000
        s_mov_b32 m0, s{sM0}
        s_waitcnt lgkmcnt(0)
        s_mov_b32 s{SRDX}, s4
        s_mov_b32 s{SRDX+1}, s5
        """)
        if self.stamps: a(f"v_mov_b32 v{vDbg}, s{sTok}\nv_accvgpr_write_b32 a175, v{vDbg}" if False else f"s_mov_b32 s1, s{sTok}")
        sS = sA + 7; sC = sA + 8
        setup = lines(f"""
        s_add_u32 s{sA}, s{pWS}, {WS_EPOCH}; s_addc_u32 s{sA+1}, s{pWS+1}, 0
        s_load_dwordx2 s[{sTok}:{sTok+1}], s[{sA}:{sA+1}], 0
        s_mov_b32 s{sOOB}, {OOB}
        s_lshl_b32 s{sS}, s{sHalf}, 3
        s_add_u32 s{sS}, s{sS}, s{sJ}
        v_lshrrev_b32 v{vRow}, 3, v0
        s_and_b32 s{sA}, s{sWave}, 1
        s_lshl_b32 s{sA}, s{sA}, 5
        v_add_u32 v{vRow}, s{sA}, v{vRow}
        v_bfe_u32 v{vT}, v0, 1, 2
        v_bfe_u32 v{vT+1}, v0, 4, 1
        s_and_b32 s{sA}, s{sWave}, 2
        v_or_b32 v{vT+1}, s{sA}, v{vT+1}
        v_xor_b32 v{vT}, v{vT}, v{vT+1}
        v_and_b32 v{vT+1}, 1, v0
        v_lshlrev_b32 v{vT+1}, 4, v{vT+1}
        v_lshl_add_u32 v{vCol}, v{vT}, 5, v{vT+1}
        """) + self.q_params(PB[0], sS) + self.switch_ops(PB[0])
        n_first = len(setup)
        setup += lines(f"""
        s_mov_b32 s{sOne}, 0x3f803f80
        s_mov_b32 s{sLo}, 0x00003f80
        s_mov_b32 s{sHi}, 0x3f800000
        v_and_b32 v{vT}, 31, v0
        v_lshlrev_b32 v{vT+1}, 7, v{vT}
        v_add_u32 v{vT+1}, s{sM0}, v{vT+1}
        v_bfe_u32 v{vT}, v0, 1, 3
        v_lshrrev_b32 v{vT+2}, 5, v0
        v_xor_b32 v{vT}, v{vT}, v{vT+2}
        """)
        XA = EP + 8
        for s in range(4):
            setup.append(f"v_xor_b32 v{vT+2}, {2*s}, v{vT}")
            setup.append(f"v_lshl_add_u32 v{XA+s}, v{vT+2}, 4, v{vT+1}")
            setup.append(f"v_add_u32 v{XA+4+s}, 0x10000, v{XA+s}")
            setup.append(f"v_add_u32 v{XA+8+s}, 0x20000, v{XA+s}")
        setup += lines(f"""
        v_mov_b32 v{vSum}, 0
        v_mov_b32 v{vSq}, 0
        v_lshlrev_b32 v{vL16}, 4, v0
        v_lshlrev_b32 v{vL8}, 3, v0
        v_bfe_u32 v{vT}, v0, 4, 1
        v_bfe_u32 v{vT+1}, v0, 2, 2
        v_lshrrev_b32 v{vT+2}, 5, v0
        v_lshl_add_u32 v{vT+2}, v{vT+2}, 3, v{vT+1}
        v_lshlrev_b32 v{vT+2}, 7, v{vT+2}
        v_lshl_add_u32 v{vT+2}, v{vT}, 13, v{vT+2}
        v_and_b32 v{EP}, 3, v0
        v_lshl_add_u32 v{vT+2}, v{EP}, 3, v{vT+2}
        v_lshrrev_b32 v{vT+1}, 1, v{vT+1}
        v_lshl_add_u32 v{vT}, v{vT}, 1, v{vT+1}
        """)
        for t in range(4):
            setup.append(f"v_xor_b32 v{vT+1}, {t}, v{vT}")
            setup.append(f"v_lshl_add_u32 v{vTr+t}, v{vT+1}, 5, v{vT+2}")
            setup.append(f"v_add_u32 v{vTr+4+t}, 0x10000, v{vTr+t}")
            setup.append(f"v_add_u32 v{vTr+8+t}, 0x20000, v{vTr+t}")
        setup += lines(f"""
        v_bfe_u32 v{vT}, v0, 4, 1
        v_lshlrev_b32 v{vT}, 10, v{vT}
        v_lshrrev_b32 v{vT+1}, 5, v0
        v_lshl_add_u32 v{vT}, v{vT+1}, 8, v{vT}
        v_and_b32 v{vT+1}, 15, v0
        v_lshl_add_u32 v{vSF}, v{vT+1}, 4, v{vT}
        s_mov_b32 s{SRDW}, s{pWS}
        s_mov_b32 s{SRDW+1}, s{pWS+1}
        s_mov_b32 s{SRDW+2}, {WS_SIZE}
        s_mov_b32 s{SRDW+3}, 0x20000
        s_lshl_b32 s{sMb64}, s{sMb}, 1
        s_add_u32 s{sMb64}, s{sMb64}, s{sHalf}
        s_lshl_b32 s{sFlag}, s{sMb}, 4
        s_add_u32 s{sFlag}, s{sFlag}, s{sS}
        s_lshl_b32 s{sFlag}, s{sFlag}, 2
        s_add_u32 s{sFlag}, s{sFlag}, s{sWave}
        s_lshl_b32 s{sFlag}, s{sFlag}, 3
        s_add_u32 s{sFlag}, s{sFlag}, {WS_FLAG}
        s_mul_i32 s{sC}, s{sHalf}, 3
        s_add_u32 s{sC}, s{sC}, s{sJ}
        s_add_u32 s{sC}, s{sC}, 16
        s_add_u32 s{sA}, s{sS}, 5
        s_and_b32 s{sA}, s{sA}, 15
        s_cmp_lt_u32 s{sA}, 11; s_cselect_b32 s{sC}, s{sC}, 31; s_cselect_b32 s{sThree}, 1, 0
        """) + self.f_params(PB[1], sS) + self.f_params(PB[2], sC) + self.pack_params() + lines(f"""
        v_lshrrev_b32 v{vT}, 5, v0
        v_lshlrev_b32 v{vT}, 4, v{vT}
        v_bfe_u32 v{vT+1}, v0, 4, 1
        v_lshl_add_u32 v{vT}, v{vT+1}, 2, v{vT}
        v_bfe_u32 v{vT+1}, v0, 2, 2
        v_add_u32 v{vT}, v{vT}, v{vT+1}
        v_lshlrev_b32 v{vT}, 7, v{vT}
        v_and_b32 v{vT+2}, 3, v0
        v_lshl_add_u32 v{vT}, v{vT+2}, 3, v{vT}
        v_add_u32 v{vT}, s{sM0}, v{vT}
        v_lshrrev_b32 v{vT+1}, 1, v{vT+1}
        s_and_b32 s{sA+2}, s{sWave}, 2
        v_or_b32 v{vT+1}, s{sA+2}, v{vT+1}
        """)
        for ch in range(4):
            setup.append(f"v_xor_b32 v{PR+20+ch}, {ch}, v{vT+1}")
            setup.append(f"v_lshl_add_u32 v{PR+20+ch}, v{PR+20+ch}, 5, v{vT}")
        setup += [f"v_mul_u32_u24 v{PR+16}, 1280, v{vRow}", f"v_add_u32 v{PR+16}, v{vCol}, v{PR+16}"]
        setup += [f"v_add_u32 v{PR+16+j}, {j*(8*1280-1024)}, v{PR+16}" for j in range(1, 4)]
        setup += lines(f"""
        s_lshl_b32 s{sA}, s2, 1
        s_and_b32 s{sA+1}, s{sWave}, 1
        s_add_u32 s{sA}, s{sA}, s{sA+1}
        s_mul_i32 s{sA+1}, s{sA}, 20
        v_add_u32 v{vT}, s{sA+1}, v0
        v_lshrrev_b32 v{vT+1}, 4, v{vT}
        v_mul_u32_u24 v{vT+1}, {3456-2048}, v{vT+1}
        v_lshl_add_u32 v94, v{vT}, 7, v{vT+1}
        s_mul_i32 s{sA+1}, s{sA}, 14
        v_add_u32 v{vT}, s{sA+1}, v0
        v_mul_u32_u24 v{vT+1}, {(1<<20)//11+1}, v{vT}
        v_lshrrev_b32 v{vT+1}, 20, v{vT+1}
        v_mul_u32_u24 v{vT+1}, 2048, v{vT+1}
        v_lshl_add_u32 v91, v{vT}, 7, v{vT+1}
        s_lshr_b32 s{sDuty}, s2, 3
        s_and_b32 s{sDuty}, s{sDuty}, 3
        """) + self.p2_params()
        if cfg.get("verbose"): print("setup ops", len(setup), "first", n_first)
        order = list(cfg.get("order", ["X0", "X1", "X2", "X3", "X4", "X5", "X6", "X7", "X8", "X9", "B", "B", "B", "B"]))
        def queue_next():
            o = order.pop(0)
            if o == "B":
                self.pend += self.dma_items(self.next); self.next += 1
            else:
                i = int(o[1:]); sl = self.alloc(("X", i))
                if i: self.pend.append(("op", f"s_add_u32 m0, s{sM0}, {sl*16384}; s_add_u32 s{sX}, s{sX}, 128; s_cmp_eq_u32 s{sX}, 1280; s_cselect_b32 s{sX}, 0, s{sX}"))
                self.pend += [("ld", f"buffer_load_dwordx4 v{EP+4+j}, s[{SRDX}:{SRDX+3}], s{sX} offen offset:{1024*j} lds", f"X{i}") for j in range(4)]
        XW = cfg["XW"]; spl = cfg.get("spl", 12); done = 0
        for g in range(XW):
            if order[0] == "B": assert done >= n_first
            queue_next()
            for j in range(4):
                self.pop_ld()
                for o in setup[done:done + spl]: self.emit(o)
                done += spl
        for o in setup[done:]: self.emit(o)
        def stats(i, j):
            for r in range(4 * j, 4 * j + 4):
                x = XB + 16 * i + r
                a(f"v_dot2c_f32_bf16 v{vSum}, s{sOne}, v{x}")
                a(f"v_dot2c_f32_bf16 v{vSq}, v{x}, v{x}")
        for i in range(10):
            vm.wait(a, f"X{i}", 4)
            sl = self.slot[("X", i)]
            for s in range(4):
                x = XB + 4 * (4 * i + s)
                a(f"ds_read_b128 v[{x}:{x+3}], v{XA+4*(sl>>2)+s} offset:{(sl&3)*16384}")
            if order: queue_next()
            for j in range(4):
                if self.pend: self.pop_ld()
                if i: stats(i - 1, j)
            a("s_waitcnt lgkmcnt(0)")
            self.xdone.add(("X", i))
        assert not order
        a(f"s_xor_b32 s{sTok+1}, s{sTok+1}, 0x{TOKX:x}\ns_add_u32 s{sTok}, s{sTok}, 1")
        for j in range(4): stats(9, j)
        self.stamp(1)
        vm.wait(a, "B1" if cfg["bar2"] else "B0", 4)
        a("s_barrier")
        for G in range(2):
            for r in self.tr_reads(G): a(r)
        d0, c0 = self.center_ops(0)
        a(f"""
        s_mov_b32 s{sA}, 0x3acccccd
        v_mov_b32 v{vT}, v{vSum}
        v_mov_b32 v{vR}, v{vSq}
        s_nop 0
        v_permlane32_swap_b32 v{vSum}, v{vT}
        v_permlane32_swap_b32 v{vSq}, v{vR}
        s_nop 0
        v_add_f32 v{vSum}, v{vSum}, v{vT}
        v_add_f32 v{vSq}, v{vSq}, v{vR}
        v_mul_f32 v{vSum}, s{sA}, v{vSum}
        v_mul_f32 v{vSq}, s{sA}, v{vSq}
        v_cvt_pk_bf16_f32 v{vNegM}, 0, -v{vSum}
        """)
        for op in d0 + c0[:4]: a(op)
        a(f"v_fma_f32 v{vSq}, -v{vSum}, v{vSum}, v{vSq}")
        for op in c0[4:]: a(op)
        self.stamp(2)
        extra = Uniq()
        extra[130] = lines(f"""
            v_max_f32 v{vSq}, 0, v{vSq}
            v_cvt_pk_bf16_f32 v{vR}, 0, v{vSq}
            v_add_f32 v{vR}, 0x3727c5ac, v{vR}
            v_cvt_pk_bf16_f32 v{vR}, 0, v{vR}
            v_sqrt_f32 v{vR}, v{vR}; s_nop 0
            v_cvt_pk_bf16_f32 v{vD2}, 0, v{vR}
            v_rcp_f32 v{vR}, v{vD2}
            v_mul_f32 v{vD2}, v{vD2}, v{vD2}
            v_mul_f32 v{vC1}, 0x{NLOG2E:x}, v{vR}
            """)
        def pack_issue():
            sl = self.alloc("P")
            self.pend += [("op", f"s_add_u32 m0, s{sM0}, {sl*16384}")]
            self.pend += [("ld", f"buffer_load_dwordx4 v{PR+16+j}, s[{PK}:{PK+3}], s{PK+4} offen offset:{1024*j} lds", "PK") for j in range(4)]
        pk0 = cfg["pk0"]; pk1 = cfg["pk1"]
        extra[pk0] = pack_issue
        extra[pk0 + 1] = [lambda ch=ch: a(f"v_add_u32 v{PR+20+ch}, {self.slot['P']*16384}, v{PR+20+ch}") for ch in range(4)]
        rdl = [lambda: vm.wait(a, "PK", 4)]
        for ch in range(4):
            rdl.append(f"ds_read_b64_tr_b16 v[{PR+4*ch}:{PR+4*ch+1}], v{PR+20+ch}")
            rdl.append(f"ds_read_b64_tr_b16 v[{PR+4*ch+2}:{PR+4*ch+3}], v{PR+20+ch} offset:1024")
        extra[pk1] = rdl
        stl = []
        for ch in range(4):
            stl.append(lambda ch=ch: (self.xdone.add("P"), vm.issue(a, f"buffer_store_dwordx4 v[{PR+4*ch}:{PR+4*ch+3}], v{vL16}, s[{SRDW}:{SRDW+3}], s{PK+5+ch} offen sc1", "I")))
        extra[pk1 + 24] = stl
        def touch(which, duty=None):
            def f():
                r, n, off = ((94, 20, 0), (91, 14, 2048))[which]
                ins = f"buffer_load_dword v{r}, v{r}, s[{PB[1]}:{PB[1]+3}], 0 offen offset:{off}"
                if duty is None:
                    a(f"s_mov_b64 exec, {(1 << n) - 1}"); vm.issue(a, ins, "T"); a("s_mov_b64 exec, -1")
                else:
                    L = a.newlabel("du")
                    a(f"s_cmp_lg_u32 s{sDuty}, {duty}\ns_cbranch_scc1 {L}\ns_mov_b64 exec, {(1 << n) - 1}\n{ins}\ns_mov_b64 exec, -1\n{L}:")
            return f
        for which, key in ((0, "tch"), (1, "tch2")):
            g_ = cfg[key]
            if isinstance(g_, list):
                for d_, gg in enumerate(g_): extra[gg] = touch(which, d_)
            elif g_ >= 0: extra[g_] = touch(which)
        if cfg["pub1"] < 160: extra[cfg["pub1"]] = lambda: self.publish(1, ["I"])
        self.body(0, None, 3, center=True, extra=extra, before=[(pk0 + 1, pk1), (pk1, pk1 + 16), (pk1 + 24, cfg["pub1"])])
        self.stamp(3)
        self.vPub = 62
        extra = Uniq()
        if cfg["pub1"] >= 160: extra[cfg["pub1"] - 160] = lambda: self.publish(1, ["I"])
        extra[cfg["pub2"]] = lambda: self.publish(2, ["E0"])
        GR = 88
        def epoch():
            L = a.newlabel("ep")
            a(f"""
            s_or_b32 s{sA+8}, s2, s{sWave}
            s_cbranch_scc1 {L}
            v_mov_b32 v{GR}, s{sTok}
            s_mov_b32 s{sA+8}, {WS_EPOCH}
            s_mov_b64 exec, 1
            buffer_store_dword v{GR}, off, s[{SRDW}:{SRDW+3}], s{sA+8}
            s_mov_b64 exec, -1
            {L}:
            """)
        gc = cfg["gck"]
        assert gc % 16 == 6 and (not cfg["bar2"] or (gc // 16) % 2 == 1)
        gb = gc + 2
        extra[gb + 1] = epoch
        for j in range(4):
            extra[gc - 42 + 4 * j] = lambda j=j: self.flag_load(GR + 2 * j, sFlG, f"G{j}", 1, 512 * j)
            extra[gc - 9 + [0, 2, 4, 8][j]] = lambda j=j: self.flag_check(GR + 2 * j, sFlG, f"G{j}", 1, off=512 * j)
        after = lambda g0: (lambda gap: gap >= g0)
        vq = [(after(gb), f) for k in range(4) for f in self.b_loads(k)]
        rest1 = self.body(1, self.epi_q(ACC[0], PB[0] + 7), 3, wrange=(4, cfg["w1"]), extra=extra, vq=vq, vq1=cfg["b1vq"])
        while self.pend: self.pop_ld()
        self.stamp(4)
        a(f"s_cmp_eq_u32 s{sThree}, 0")
        a(f"s_cbranch_scc1 {label}_two")
        pre = []
        def P(fn): pre.append(fn); return fn
        extra = Uniq()
        vq = [(after(0), P(f)) for _, f in rest1]
        st = {"q": False}
        q_l0 = lambda: self.flag_load(XB, sFl0, "Q0", 2)
        q_l1 = lambda: self.flag_load(XB + 2, sFl1, "Q1", 2)
        q_c0 = lambda: self.flag_check(XB, sFl0, "Q0", 2)
        def q_c1():
            self.flag_check(XB + 2, sFl1, "Q1", 2); st["q"] = True
        qc = cfg["qck"]
        extra[qc - 33] = q_l0; extra[qc - 29] = q_l1; extra[qc - 1] = q_c0; extra[qc + 3] = q_c1
        attl = []
        def att_ok(gap):
            if not st["q"] or self.next < 30 or self.pend: return False
            if not attl:
                if not (self.free(7) and self.free(8)): return False
                attl.extend(self.att_loads())
            return True
        bq = []
        for k in range(4, 8):
            bq += [(after(4 * (5 * (k - 4) + 10)), f) for f in self.b_loads(k)]
        P(q_l0); P(q_l1)
        for _, f in bq[:10]: P(f)
        P(q_c0); P(q_c1)
        pre.append(lambda: [f() for f in self.att_loads()])
        for _, f in bq[10:]: P(f)
        for j in range(15): vq.append((att_ok, lambda j=j: attl[j]()))
        vq += bq
        wq = []
        for s in range(7):
            ok = lambda gap, s=s: self.next >= 30 and not self.pend and (self.owner[s] == ("WO", s) or self.free(s))
            wq += [(ok, f) for f in self.wo_loads(s)]
        vq += wq
        extra[cfg["pub3"]] = lambda: self.publish(3, ["E1"])
        rest = self.body(2, self.epi_f(ACC[1], PB[1] + 7), 3, wrange=(4, cfg["w2"]), extra=extra, vq=vq, vq1=cfg["vq1"], vq2=cfg["vq2"])
        self.stamp(5)
        wfs = [f for _, f in wq]
        late = [f for c_, f in rest if f not in wfs] + [P(f) for k in (11, 12) for f in self.b_loads(k)]
        late += [f for c_, f in rest if f in wfs and c_(160)]
        ntail = cfg["ntail"]
        assert vm.q.count("KV") == 15
        post = late[ntail:]; late = late[:ntail]
        wrest = [f for c_, f in rest if f in wfs and f not in late]
        post = [f for f in post if f not in wfs]
        pre[:] = [f for f in pre if f not in post]
        for f in wfs:
            if f not in wrest: P(f)
        def tail(ops, inter, tag):
            inter = list(inter); n = len(ops); k = len(inter); j = 0
            for i, op in enumerate(ops):
                self.emit(op, tag)
                while j < k and j < (i + 1) * k // n:
                    inter[j](); j += 1
        a("s_nop 5")
        tail(self.epi_f_tail(ACC[0], PB[2] + 7), late, "E2")
        if cfg.get("verbose"): print("tail loads", len(late), "after join: B loads", len(post), "wo loads", len(wrest))
        self.lastbar = 100
        self.alloc("O", 9)
        a.label(f"{label}_join")
        self.stamp(6)
        self.vPub = 20
        self.flag_load(vFl, sFl0, "F3", 3)
        a(f"s_lshr_b32 s{sA}, s{sM0}, 2\nv_add_u32 v{vA[0]}, s{sA}, v{vL16}")
        for i in range(1, 4): a(f"v_add_u32 v{vA[i]}, 1024, v{vA[i-1]}\nv_and_b32 v{vA[i]}, 4095, v{vA[i]}")
        a("s_barrier")
        free_ = post + wrest
        n1 = cfg["natt1"]; n2 = cfg["natt2"]
        inter = free_[:n1] + [lambda: self.flag_check(vFl, sFl0, "F3", 3)]
        al = free_[n1:]
        aa = [f for k in range(7) for f in self.a_loads(k)]
        inter += aa[:n2]
        inter.insert(min(len(inter), cfg["pub4"]), lambda: self.publish(4, ["E2"]))
        ost = self.attention(inter)
        self.stamp(8)
        XR = 4; vX = 14; vW = 25; vRd = 28; vXo = [1, 2, 29]
        al = ost + aa[n2:] + [f for f in al if f in post] + [f for k in (8, 9, 10, 13) for f in self.b_loads(k)] + [f for f in al if f not in post]
        OA = 176
        def wo_reads(T):
            b = WR[T % 6]
            return [f"ds_read_b128 v[{b+4*u}:{b+4*u+3}], v{vL16 if T < 12 else 15} offset:{(T % 12)*5120 + u*1024}" for u in range(5)]
        def o_load(T):
            def f():
                if T % 4 == 0: a(f"s_add_u32 s{sGb}, s{sOld}, {T*1024}")
                vm.issue(a, f"buffer_load_dwordx4 a[{OA+4*T}:{OA+4*T+3}], v{vL16}, s[{SRDW}:{SRDW+3}], s{sGb} offen offset:{1024*(T&3)} sc1", f"PO{T//2}")
            return f
        KB = cfg["kbar"]; KO = cfg["ko"]; ns = cfg["nside"]; NOF = cfg["no_f"]; KX = cfg["kx"]
        R = 32; FO = 236; SA = 80; XU = 216
        WR = [116, 136, 156, 176, 196, 96]
        lq = LQ()
        def mf(k, i, u):
            t_ = (i * 5 + u) * 4
            c = "0" if k == 0 else f"a[{t_}:{t_+3}]"
            a(f"v_mfma_f32_16x16x32_bf16 a[{t_}:{t_+3}], {self.rr(self.BSLOT[k], 4*u)}, {self.rr(self.ASLOT[k], 4*i)}, {c}")
        def wait_ab(k):
            assert vm.q.count(f"PB{k}") == 5 and vm.q.count(f"PA{k}") == 4
            vm.wait(a, f"PA{k}" if vm.last(f"PA{k}") > vm.last(f"PB{k}") else f"PB{k}")
        olist = [o_load(T) for T in range(20)]
        for k in range(KX):
            if k % 2 == 0: self.mark(10 + k // 2)
            wait_ab(k)
            nxt = self.a_loads(k + 4) if 3 <= k < 10 else []
            if nxt: assert vm.q.count("PA6") == 4
            side = []
            if k == cfg.get("kf4", 2): side += [lambda: self.flag_load(vFl, sFl0, "F4", 4)]
            if k < len(ns): side += al[:ns[k]]; al = al[ns[k]:]
            if k == cfg.get("kp5", 3): side += [lambda: self.publish(5, ["O"])]
            if k == 4: self.flag_check(vFl, sFl0, "F4", 4)
            if k == KO - 2: side += [lambda: self.flag_load(vFl, sFl0, "F5", 5)]
            if k == KO:
                assert not al
                self.flag_check(vFl, sFl0, "F5", 5, half=True)
            if k >= KO: side += olist[:4]; olist = olist[4:]
            if k == 4:
                for j in range(3):
                    side += [lambda o=o: a(o) for o in (f"v_add_u32 v3, {64*j}, v0", f"v_mul_u32_u24 v14, {(1<<16)//10+1}, v3", "v_lshrrev_b32 v14, 16, v14",
                                                         f"v_mul_u32_u24 v14, {1280-160}, v14", f"v_lshl_add_u32 v14, v3, 4, v14",
                                                         f"v_add_u32 v{vXo[j]}, s{sXo}, v14")]
            if k == 5:
                side += [lambda o=o: a(o) for o in lines(f"""
                    v_and_b32 v3, 15, v0
                    v_mul_u32_u24 v{vX}, 160, v3
                    v_lshrrev_b32 v3, 4, v0
                    v_lshl_add_u32 v{vX}, v3, 3, v{vX}
                    v_add_u32 v15, {12*5120}, v{vL16}
                    s_mov_b32 s{sA}, 0x{NLOG2E:x}
                    s_mov_b32 s{sA+1}, 0xffff0000
                    """)]
                def xl(j):
                    a(f"s_add_u32 m0, s{sM0}, {7*16384 + 1024*j}")
                    a("s_mov_b32 exec_hi, 0" if j == 2 else "s_nop 0")
                    vm.issue(a, f"global_load_lds_dwordx4 v{vXo[j]}, s[4:5]", "XO")
                    if j == 2: a("s_mov_b32 exec_hi, -1")
                side += [lambda j=j: xl(j) for j in range(3)]
            if k == 6:
                for i in range(4):
                    d = vRd if i == 0 else vW + i - 1
                    side += [lambda o=o: a(o) for o in (f"v_lshrrev_b32 v3, 10, v{vA[i]}", f"v_mul_u32_u24 v3, 15360, v3",
                                                         f"v_add_u32 v3, {102400 + max(i-1, 0)*5120}, v3", f"v_add_u32 v{d}, v3, v{vL16}")]
            if k == KB - 1:
                side += [lambda: (vm.wait(a, "XO", 3), a(f"s_add_u32 s{sA+2}, s{sM0}, {7*16384}\nv_add_u32 v3, s{sA+2}, v{vX}"))]
                side += [lambda u=u: lq.issue(a, f"ds_read_b64 v[{XR+2*u}:{XR+2*u+1}], v3 offset:{32*u}", "XL") for u in range(5)]
            if k == KB:
                lq.wait(a, "XL"); vm.wait(a, "WO", 25); a("s_barrier")
            nsd = len(side); j = 0
            for i in range(4):
                for u in range(5):
                    mf(k, i, u)
                    while j < nsd and j < (i * 5 + u + 1) * nsd // 20:
                        side[j](); j += 1
                if nxt: nxt[i]()
        assert KB < KX and KO < KX and KX >= 10
        self.mark(16)
        nk = 14 - KX
        base_side = olist[:NOF - (20 - len(olist))]; olist = olist[len(base_side):]
        base_side += [lambda r=r, T=T: lq.issue(a, r, f"W{T}") for T in range(5) for r in wo_reads(T)]
        base_side += [lambda j=j: a(f"v_and_b32 v{XU+j}, s{sA+1}, v{XR+(j>>1)}" if j & 1 else f"v_lshlrev_b32 v{XU+j}, 16, v{XR+(j>>1)}") for j in range(20)]
        nb_ = len(base_side); jb = 0; m = 0
        for ri, i in enumerate((1, 2, 3, 0)):
            pw = []
            if ri:
                ip = (1, 2, 3)[ri - 1]
                pw = [f"ds_write_b128 v{vW+ip-1}, a[{(ip*5+u)*4}:{(ip*5+u)*4+3}] offset:{u*1024}" for u in range(5)]
            mm = 0
            for k in range(KX, 14):
                if ri == 0: wait_ab(k)
                for u in range(5):
                    mf(k, i, u); m += 1; mm += 1
                    if pw and mm >= 4 and (mm - 4) * 5 >= (5 - len(pw)) * (5 * nk - 4): lq.issue(a, pw.pop(0), "PW")
                    else:
                        while jb < nb_ and jb < m * nb_ // (20 * nk):
                            base_side[jb](); jb += 1
            for w_ in pw: lq.issue(a, w_, "PW")
        while jb < nb_:
            base_side[jb](); jb += 1
        self.stamp(7)
        work = [("f", f) for f in olist[:2]] + [("bar",)]
        for j in range(15): work.append(("l", f"ds_read_b128 v[{R+4*j}:{R+4*j+3}], v{vRd} offset:{j*1024}", "PR"))
        work += [("f", f) for f in olist[2:]]
        for j in range(20): work.append(("v", f"v_accvgpr_read_b32 v{FO+j}, a{j}"))
        pk2 = lambda op, d, x, y: "\n".join(f"{op} v[{d+2*j}:{d+2*j+1}], v[{x+2*j}:{x+2*j+1}], {y(j)}" for j in range(10))
        work.append(("v", f"v_sub_u32 v3, v{vRd}, v{vL16}")); work.append(("v", f"v_add_u32 v3, v3, v{vX}"))
        work.append(("lw", "PR"))
        work.append(("v", "\n".join([pk2("v_pk_add_f32", FO, FO, lambda j: f"v[{R+2*j}:{R+2*j+1}]"),
                                     pk2("v_pk_add_f32", R+20, R+20, lambda j: f"v[{R+40+2*j}:{R+40+2*j+1}]"),
                                     pk2("v_pk_add_f32", FO, FO, lambda j: f"v[{R+20+2*j}:{R+20+2*j+1}]"),
                                     pk2("v_pk_mul_f32", R, FO, lambda j: f"s[{sA}:{sA+1}] op_sel_hi:[1,0]")])))
        for j in range(20): work.append(("v", f"v_exp_f32 v{R+j}, v{R+j}"))
        for j in range(20): work.append(("v", f"v_add_f32 v{R+j}, 1.0, v{R+j}"))
        for j in range(20): work.append(("v", f"v_rcp_f32 v{R+j}, v{R+j}"))
        def do(wk):
            if wk[0] == "v": a(wk[1])
            elif wk[0] == "f": wk[1]()
            elif wk[0] == "l": lq.issue(a, wk[1], wk[2])
            elif wk[0] == "lw": lq.wait(a, wk[1])
            elif wk[0] == "bar":
                lq.wait(a, "PW"); self.mark(20); a("s_barrier"); self.mark(21)
        nw = len(work); done = 0; m = 0
        for T in range(20):
            if T % 2 == 0: vm.wait(a, f"PO{T//2}", 2)
            if T in (0, 10, 16): self.mark({0: 17, 10: 18, 16: 19}[T])
            if T % 2 == 0: lq.wait(a, f"W{T+1}")
            rd = wo_reads(T + 5) if T + 5 < 20 else []
            b = WR[T % 6]
            for u in range(5):
                c = "0" if T == 0 else f"a[{SA+4*u}:{SA+4*u+3}]"
                a(f"v_mfma_f32_16x16x32_bf16 a[{SA+4*u}:{SA+4*u+3}], v[{b+4*u}:{b+4*u+3}], a[{OA+4*T}:{OA+4*T+3}], {c}")
                m += 1
                if rd: lq.issue(a, rd.pop(0), f"W{T+5}")
                tgt = m * nw * cfg.get("sw", 80) // (75 * 100) if m <= 75 else nw * cfg.get("sw", 80) // 100 + (m - 75) * (nw - nw * cfg.get("sw", 80) // 100) // 25
                while done < nw and done < tgt:
                    do(work[done]); done += 1
        assert done == nw
        a("s_nop 0")
        a(pk2("v_pk_mul_f32", FO, FO, lambda j: f"v[{R+2*j}:{R+2*j+1}]"))
        for u in range(5):
            for j in range(4): a(f"v_accvgpr_read_b32 v{R+4*u+j}, a{SA+4*u+j}")
            for h in range(2):
                f0 = FO + 4 * u + 2 * h; s_ = R + 4 * u + 2 * h; x_ = XU + 4 * u + 2 * h
                a(f"v_pk_fma_f32 v[{f0}:{f0+1}], v[{f0}:{f0+1}], v[{s_}:{s_+1}], v[{x_}:{x_+1}]")
            f0 = FO + 4 * u; o = 64 + 2 * u
            a(f"v_cvt_pk_bf16_f32 v{o}, v{f0}, v{f0+1}")
            a(f"v_cvt_pk_bf16_f32 v{o+1}, v{f0+2}, v{f0+3}")
            a(f"ds_write_b64 v3, v[{o}:{o+1}] offset:{32*u}")
        a("s_waitcnt lgkmcnt(0)")
        for j in range(3): a(f"ds_read_b128 v[{76+4*j}:{79+4*j}], v{vRd} offset:{1024*j}")
        for j in range(3):
            a(f"s_waitcnt lgkmcnt({2-j})")
            if j == 2: a("s_mov_b32 exec_hi, 0")
            a(f"global_store_dwordx4 v{vXo[j]}, v[{76+4*j}:{79+4*j}], s[6:7] {cfg.get('scO', '')}")
        a("s_mov_b32 exec_hi, -1")
        self.mark(22)
        if self.stamps:
            a("s_waitcnt vmcnt(0)")
            a(f"s_memtime s[{sA}:{sA+1}]")
            a(f"s_memrealtime s[{sA+2}:{sA+3}]")
            a("s_waitcnt lgkmcnt(0)")
            for i in range(1, 8):
                a(f"s_sub_u32 s{sA+4}, s{ST0+2*(i-1)}, s0\nv_mov_b32 v{32+i}, s{sA+4}")
            a(f"s_sub_u32 s{sA+4}, s{sA}, s0\nv_mov_b32 v40, s{sA+4}\nv_mov_b32 v41, s{sA+2}")
            a(f"s_sub_u32 s{sA+4}, s{ST0+14}, s0\nv_mov_b32 v42, s{sA+4}")
            a(f"""
            v_mov_b32 v32, s1
            s_lshl_b32 s{sA}, s2, 2
            s_add_u32 s{sA}, s{sA}, s{sWave}
            s_lshl_b32 s{sA}, s{sA}, 6
            s_add_u32 s{sA}, s{sA}, {WS_STAMP}
            s_mov_b64 exec, 1
            buffer_store_dwordx4 v[32:35], off, s[{SRDW}:{SRDW+3}], s{sA}
            buffer_store_dwordx4 v[36:39], off, s[{SRDW}:{SRDW+3}], s{sA} offset:16
            buffer_store_dwordx4 v[40:43], off, s[{SRDW}:{SRDW+3}], s{sA} offset:32
            """)
        a("s_endpgm")
        a.label(f"{label}_two")
        self.stamp(5)
        self.vm = vm = VM()
        self.vPub = 62
        a("s_nop 7")
        for op in self.epi_f_tail(ACC[1], PB[1] + 7): self.emit(op, "E1")
        a("s_waitcnt vmcnt(0) lgkmcnt(0)")
        a("s_barrier")
        self.publish(3, ["E1"])
        a("s_nop 1")
        self.publish(4, ["E1"])
        for i, f in enumerate(pre):
            if i % 8 == 3 and cfg.get("markT", 2) == 2: self.mark(i // 8)
            f()
        a("s_waitcnt vmcnt(0)")
        a(f"s_branch {label}_join")
        for s in self.slow: a(s)
        a.label(f"{label}_end")
        a("s_endpgm")
        a.end_kernel(label, 512, 102, 256, 256, 256, 163840)
        return a.text("generated by dev/fused2.py: one persistent kernel, 256 workgroups (one per CU)\n"
                      "phase 1: LayerNorm + x@[wqkv|w_gate|w_up] (+ weight repack), attention, phase 2: h@w_down, o@wo, combine")

if __name__ == "__main__":
    stamps = "--stamps" in sys.argv
    pos = [x for x in sys.argv[1:] if not x.startswith("--")]
    cfg = json.loads(pos[1]) if len(pos) > 1 else {}
    open(pos[0], "w").write(Gen(cfg, stamps).build())
```

```python
import sys, json, struct; sys.path.insert(0, "dev")
from asmlib import *

WS_H = 0
WS_O = 0x780000
WS_WD = 0xA00000
WS_WO = 0xD00000
WS_QKV = 0x1000000
WS_FLAG = 0x1800000
WS_EPOCH = WS_FLAG - 256
WS_STAMP = 0x1900000
WS_SIZE = 0x2000000
OOB = 0x4000000
TOKX = 0x5bd1e995
NLOG2E = 0xbfb8aa3b
def f2u(x): return struct.unpack("<I", struct.pack("<f", x))[0]
C_SM = f2u(20 ** -0.5 * 1.4426950408889634)

XB = 96; EP = 32; ACC = [0, 64]; WF = 128; NWB = 3
vLd = 1; vTr = 5
vSF = 17; vL8 = 18; vC1 = 19; vD2 = 20; vR = 21; vNegM = 22; vSum = 23; vSq = 24
vRow = 25; vCol = 26; vT = 27
vDbg = 30; vL16 = 31
vFl = 22
vQa = 28; vKa = 29
vA = [16, 17, 19, 24]
PR = 64
sOOB = 3
pQKV = 76; pWS = 78; pWO = 80; pDN = 82; pG = 84; pU = 86
sWave = 8; sMb64 = 9; sHalf = 10; sM0 = 11; sSoff = 12; sStep = 13; sWrap = 14; sThree = 15
SRDW = 16
SRDX = 20
sGa = 20; sGb = 21; sDuty = 96
PB = [24, 32, 40]
PK = 48
sOne = 57; sLo = 58; sHi = 59
sTok = 60
sFlag = 62; sFl0 = 63; sFl1 = 64; sFlG = 65
sAb = 66; sAb2 = 67; sBb = 68; sBb2 = 69; sOld = 70; sWOb = 71; sOst = 72; sOst2 = 73; sKV = 74; sXo = 75
ST0 = 76
sMb = 88; sJ = 89; sRot = 90; sNb = 91
sA = 92

class VM:
    def __init__(self): self.q = []
    def issue(self, a, ins, tag):
        a(ins); self.q.append(tag)
    def last(self, tag): return max(i for i, t in enumerate(self.q) if t == tag)
    def wait(self, a, tag, cnt=None):
        if cnt is not None: assert self.q.count(tag) == cnt, (tag, self.q.count(tag))
        a(f"s_waitcnt vmcnt({min(len(self.q) - 1 - self.last(tag), 63)})")
class LQ:
    def __init__(self): self.q = []
    def issue(self, a, ins, tag):
        a(ins); self.q.append(tag)
    def wait(self, a, tag):
        idx = max(i for i, t in enumerate(self.q) if t == tag)
        a(f"s_waitcnt lgkmcnt({min(len(self.q) - 1 - idx, 15)})")
class Uniq(dict):
    def __setitem__(self, k, v):
        assert k not in self, ("duplicate gap", k)
        dict.__setitem__(self, k, v)
def lines(s): return [l.split(";;")[0].strip() for l in s.split("\n") if l.split(";;")[0].strip()]
DIV5 = (1 << 16) // 5 + 1
DIV3 = (1 << 16) // 3 + 1

class Gen:
    def __init__(self, cfg, stamps):
        self.cfg = dict(dict(LA=6, XW=4, spl=20, PB=2, bar2=True, rpat=[2, 2, 2, 2], dmagap=2, spin=3000, cap=5.0,
                             rotm=0x1010, rotx=0x7520, tch=-1, tch2=110, pk0=18, pk1=70, pub1=124, pub2=124, gck=118, qck=70, pub3=148,
                             w1=100, w2=112, b1vq=1, vq1=1, vq2=1, ntail=16, natt1=11, natt2=24, pub4=18,
                             nside=[6] * 14, kvgap=6, nc=3, stb=1, stq=False, kf=4, forder=['A7', 'A8', 'B8', 'A9', 'B9', 'W', 'A10', 'B10', 'A11', 'A12', 'A13', 'B13'], kbar=10, ko=10, no_f=12, kx=11), **cfg)
        self.stamps = stamps
        self.a = Asm(); self.vm = VM()
        self.label = NAME + "_kernel"
        self.slot = {}; self.owner = [None] * 10
        self.xdone = set(); self.lastbar = -10
        self.next = 0; self.pend = []; self.slow = []
        self.vPub = 92
    def stamp(self, i, pro=False):
        if self.cfg.get("pst") and i and not pro: return
        if pro and not self.cfg.get("pst"): return
        if self.stamps: self.a(f"s_memtime s[{ST0+2*(i-1)}:{ST0+2*(i-1)+1}]" if i else "s_memtime s[0:1]")
    def mark(self, i):
        if self.cfg.get("marks"):
            r = 22
            self.a(f"""
            s_memtime s[{r}:{r+1}]
            s_waitcnt lgkmcnt(0)
            s_sub_u32 s{r}, s{r}, s0
            v_mov_b32 v{vDbg}, s{r}
            s_lshl_b32 s{r}, s2, 2
            s_add_u32 s{r}, s{r}, s{sWave}
            s_lshl_b32 s{r}, s{r}, 7
            s_add_u32 s{r}, s{r}, {WS_STAMP + 0x40000 + 4*i}
            s_mov_b64 exec, 1
            """)
            self.vm.issue(self.a, f"buffer_store_dword v{vDbg}, off, s[{SRDW}:{SRDW+3}], s{r}", "mk")
            self.a("s_mov_b64 exec, -1\ns_nop 1")
    def emit(self, op, tag="st"):
        for o in op.split(";"):
            o = o.strip()
            if o.startswith(("global_", "buffer_")): self.vm.issue(self.a, o, tag)
            else: self.a(o)
    def free(self, s):
        o = self.owner[s]
        if o is None: return True
        if o[0] == "B": return o[1] <= self.lastbar - 1
        return o in self.xdone
    def cands(self, name):
        c = [s for s in range(10) if self.free(s)]
        if name[0] == "B" and name[1] >= self.cfg.get("avoid_from", 23): c = [s for s in reversed(c) if s not in (7, 8)]
        return c
    def alloc(self, name, want=None):
        c = self.cands(name) if want is None else [s for s in range(10) if self.free(s) and s == want]
        assert c, ("no free slot", name, self.owner, self.lastbar)
        s = c[0]; self.owner[s] = name; self.slot[name] = s
        return s

    def pos_ops(self, f, d):
        t = sA + 4
        return [f"s_lshr_b32 s{t}, s{f}, 2", f"s_mul_i32 s{t}, s{t}, 6", f"s_lshl_b32 s{d}, s{f}, 1", f"s_add_u32 s{t}, s{t}, s{d}",
                f"s_sub_u32 s{t+1}, s{f}, 16", f"s_mul_i32 s{t+1}, s{t+1}, {DIV3}", f"s_lshr_b32 s{t+1}, s{t+1}, 16", f"s_lshl_b32 s{t+1}, s{t+1}, 3",
                f"s_add_u32 s{t+1}, s{t+1}, s{d}", f"s_sub_u32 s{t+1}, s{t+1}, 24",
                f"s_cmp_lt_u32 s{f}, 16; s_cselect_b32 s{d}, s{t}, s{t+1}"]
    def f_params(self, P, code):
        t = sA
        return lines(f"""
        s_mov_b32 s{P+3}, 0x20000
        s_cmp_lt_u32 s{sWave}, 2; s_cselect_b32 s{P}, s{pG}, s{pU}; s_cselect_b32 s{P+1}, s{pG+1}, s{pU+1}
        s_cmp_lt_u32 s{code}, 27; s_cselect_b32 s{P+2}, {640*3456}, 0
        s_movk_i32 s{P+4}, 3456
        s_lshl_b32 s{P+5}, s{code}, 7
        s_mul_i32 s{P+6}, s{sRot}, {64*3456}
        """) + self.pos_ops(code, P + 7) + lines(f"""
        s_lshl_b32 s{t}, s{sMb}, 1
        s_lshr_b32 s{t+1}, s{sWave}, 1
        s_add_u32 s{t}, s{t}, s{t+1}
        s_mul_i32 s{t}, s{t}, 56
        s_add_u32 s{P+7}, s{P+7}, s{t}
        s_lshl_b32 s{P+7}, s{P+7}, 12
        s_and_b32 s{t+1}, s{sWave}, 1
        s_lshl_b32 s{t+1}, s{t+1}, 11
        s_add_u32 s{P+7}, s{P+7}, s{t+1}
        """)
    def q_params(self, P, q):
        t = sA
        return lines(f"""
        s_mov_b32 s{P+3}, 0x20000
        s_mov_b32 s{P}, s{pQKV}
        s_mov_b32 s{P+1}, s{pQKV+1}
        s_movk_i32 s{P+4}, 3840
        s_lshr_b32 s{t}, s{sWave}, 1
        s_lshl_b32 s{P+5}, s{q}, 1
        s_add_u32 s{P+5}, s{P+5}, s{t}
        s_lshl_b32 s{P+5}, s{P+5}, 7
        s_mul_i32 s{P+6}, s{sRot}, {64*3840}
        s_lshl_b32 s{t}, s{sMb}, 2
        s_add_u32 s{t}, s{t}, s{sWave}
        s_mul_i32 s{t}, s{t}, 122880
        s_lshl_b32 s{t+1}, s{q}, 13
        s_add_u32 s{t}, s{t}, s{t+1}
        s_add_u32 s{t}, s{t}, {WS_QKV}
        s_cmp_lt_u32 s{q}, 15; s_cselect_b32 s{P+2}, {640*3840}, 0; s_cselect_b32 s{P+7}, s{t}, s{sOOB}
        """)
    def pack_params(self):
        P = PK; t = sA
        r = lines(f"""
        s_mov_b32 s{P+3}, 0x20000
        s_mov_b32 s{t+2}, {640*1280}
        s_cmp_lt_u32 s2, 135; s_cselect_b32 s{P}, s{pDN}, s{pWO}; s_cselect_b32 s{P+1}, s{pDN+1}, s{pWO+1}; s_cselect_b32 s{P+2}, {1728*1280}, s{t+2}; s_cselect_b32 s{t}, 0, 135
        s_sub_u32 s{t}, s2, s{t}
        s_mul_i32 s{t+2}, s{t}, {DIV5}
        s_lshr_b32 s{t+2}, s{t+2}, 16
        s_mul_i32 s{t+3}, s{t+2}, 5
        s_sub_u32 s{t+1}, s{t}, s{t+3}
        s_mul_i32 s{P+4}, s{t+2}, {64*1280}
        s_lshl_b32 s{t+3}, s{t+1}, 8
        s_add_u32 s{P+4}, s{P+4}, s{t+3}
        s_lshr_b32 s{t+3}, s{sWave}, 1
        s_lshl_b32 s{t+3}, s{t+3}, 7
        s_add_u32 s{P+4}, s{P+4}, s{t+3}
        """) + self.pos_ops(t + 2, t + 3) + lines(f"""
        s_lshl_b32 s{t+2}, s{t+2}, 1
        s_mov_b32 s{t}, {WS_WO}
        s_movk_i32 s{t+6}, 100
        s_cmp_lt_u32 s2, 135; s_cselect_b32 s{t+3}, s{t+3}, s{t+2}; s_cselect_b32 s{t}, {WS_WD}, s{t}; s_cselect_b32 s{t+6}, 280, s{t+6}
        s_and_b32 s{t+2}, s{sWave}, 1
        s_add_u32 s{t+3}, s{t+3}, s{t+2}
        s_mul_i32 s{t+3}, s{t+3}, 5120
        s_add_u32 s{t}, s{t}, s{t+3}
        s_cmp_lt_u32 s2, 185; s_cselect_b32 s{P+2}, s{P+2}, 0; s_cselect_b32 s{t}, s{t}, s{sOOB}
        s_lshl_b32 s{t+1}, s{t+1}, 3
        s_and_b32 s{t+2}, s{sWave}, 2
        s_lshl_b32 s{t+2}, s{t+2}, 1
        s_add_u32 s{t+1}, s{t+1}, s{t+2}
        s_sub_u32 s{t+6}, s{t+6}, 5
        """)
        for ch in range(4):
            r += lines(f"""
            s_add_u32 s{t+2}, s{t+1}, {ch}
            s_mul_i32 s{t+3}, s{t+2}, {DIV5}
            s_lshr_b32 s{t+3}, s{t+3}, 16
            s_mul_i32 s{t+3}, s{t+3}, s{t+6}
            s_add_u32 s{t+3}, s{t+3}, s{t+2}
            s_lshl_b32 s{t+3}, s{t+3}, 10
            s_add_u32 s{P+5+ch}, s{t+3}, s{t}
            """)
        return r
    def p2_params(self):
        t = sA
        return lines(f"""
        s_lshl_b32 s{sNb}, s{sMb}, 1
        s_add_u32 s{sNb}, s{sNb}, s{sJ}
        s_and_b32 s{sNb}, s{sNb}, 7
        s_mul_i32 s{t}, s{sWave}, 14
        s_mul_i32 s{sAb}, s{sMb64}, 56
        s_add_u32 s{sAb}, s{sAb}, s{t}
        s_lshl_b32 s{sAb}, s{sAb}, 12
        s_mul_i32 s{sBb}, s{sNb}, 56
        s_add_u32 s{sBb}, s{sBb}, s{t}
        s_mul_i32 s{sBb}, s{sBb}, 5120
        s_add_u32 s{sBb}, s{sBb}, {WS_WD}
        s_cmp_lt_u32 s{sWave}, 3; s_cselect_b32 s{sAb2}, s{sAb}, s{sOOB}; s_cselect_b32 s{sBb2}, s{sBb}, s{sOOB}
        s_mul_i32 s{t}, s{sMb64}, 81920
        s_add_u32 s{t}, s{t}, {WS_O}
        s_mul_i32 s{sOld}, s{sWave}, 20480
        s_add_u32 s{sOld}, s{sOld}, s{t}
        s_mul_i32 s{sOst}, s{sNb}, 10
        s_add_u32 s{sOst}, s{sOst}, s{sWave}
        s_lshl_b32 s{sOst}, s{sOst}, 8
        s_add_u32 s{sOst}, s{sOst}, s{t}
        s_cmp_lt_u32 s{sWave}, 2; s_cselect_b32 s{sOst2}, s{sOst}, s{sOOB}
        s_mul_i32 s{sWOb}, s{sNb}, 102400
        s_add_u32 s{sWOb}, s{sWOb}, {WS_WO}
        s_add_u32 s{sWOb}, s{sWOb}, s{sM0}
        s_lshl_b32 s{sKV}, s{sNb}, 2
        s_add_u32 s{sKV}, s{sKV}, s{sWave}
        s_mul_i32 s{sKV}, s{sKV}, 1280
        s_add_u32 s{sKV}, s{sKV}, {WS_QKV}
        s_lshl_b32 s{sXo}, s{sMb64}, 2
        s_add_u32 s{sXo}, s{sXo}, s{sWave}
        s_mul_i32 s{sXo}, s{sXo}, {16*1280}
        s_mul_i32 s{t}, s{sNb}, 160
        s_add_u32 s{sXo}, s{sXo}, s{t}
        s_lshl_b32 s{sFl0}, s{sMb}, 9
        s_add_u32 s{sFl0}, s{sFl0}, {WS_FLAG}
        s_max_u32 s{sFl1}, s{sMb}, 1
        s_lshl_b32 s{sFl1}, s{sFl1}, 9
        s_add_u32 s{sFl1}, s{sFl1}, {WS_FLAG - 512}
        s_lshl_b32 s{sFlG}, s{sWave}, 11
        s_add_u32 s{sFlG}, s{sFlG}, {WS_FLAG}
        s_lshl_b32 s{t}, s{sMb64}, 1
        v_lshrrev_b32 v{vQa}, 5, v0
        v_add_u32 v{vQa}, s{t}, v{vQa}
        v_mul_u32_u24 v{vQa}, 122880, v{vQa}
        v_and_b32 v{vKa}, 31, v0
        v_lshl_add_u32 v{vQa}, v{vKa}, 3, v{vQa}
        v_add_u32 v{vKa}, 8, v0
        v_lshrrev_b32 v{vT}, 4, v{vKa}
        v_add_u32 v{vT}, s{t}, v{vT}
        v_max_u32 v{vT}, 1, v{vT}
        v_subrev_u32 v{vT}, 1, v{vT}
        v_mul_u32_u24 v{vT}, 122880, v{vT}
        v_and_b32 v{vKa}, 15, v{vKa}
        v_lshl_add_u32 v{vKa}, v{vKa}, 4, v{vT}
        """)
    def switch_ops(self, P):
        t = sA
        return [f"v_mad_u32_u24 v{vLd}, v{vRow}, s{P+4}, v{vCol}",
                f"s_lshl_b32 s{sStep}, s{P+4}, 6",
                f"s_lshl_b32 s{t}, s{P+4}, 3",
                f"s_sub_u32 s{t}, s{t}, 1024",
                f"v_add_u32 v{vLd}, s{P+5}, v{vLd}",
                f"s_mul_i32 s{sWrap}, s{sStep}, 10",
                f"s_mov_b32 s{sSoff}, s{P+6}",
                f"v_add_u32 v{vLd+1}, s{t}, v{vLd}",
                f"v_add_u32 v{vLd+2}, s{t}, v{vLd+1}",
                f"v_add_u32 v{vLd+3}, s{t}, v{vLd+2}"]
    def dma_items(self, g):
        P = PB[g // 10]; slot = self.alloc(("B", g))
        it = [("op", f"s_add_u32 m0, s{sM0}, {slot*16384}")]
        if g % 10 == 0 and g > 0: it += [("op", o) for o in self.switch_ops(P)]
        elif g % 10: it.append(("op", f"s_add_u32 s{sSoff}, s{sSoff}, s{sStep}; s_cmp_eq_u32 s{sSoff}, s{sWrap}; s_cselect_b32 s{sSoff}, 0, s{sSoff}"))
        it += [("ld", f"buffer_load_dwordx4 v{vLd+j}, s[{P}:{P+3}], s{sSoff} offen offset:{1024*j} lds", f"B{g}") for j in range(4)]
        return it
    def pop_ops(self):
        p = self.pend
        while p and p[0][0] != "ld": self.emit(p.pop(0)[1])
    def pop_ld(self):
        a = self.a; p = self.pend
        self.pop_ops()
        if p:
            if " m0," in a.lines[-1]: a("s_nop 0")
            _, l, tag = p.pop(0); self.vm.issue(a, l, tag)
    def tr_reads(self, G):
        g, s = G >> 2, G & 3
        slot = self.slot[("B", g)]; reg = slot >> 2
        o = (slot & 3) * 16384 + 16 * s * 128
        r = []
        for t in range(4):
            b = WF + 16 * (G % NWB) + 4 * t
            r += [f"ds_read_b64_tr_b16 a[{b}:{b+1}], v{vTr+4*reg+t} offset:{o}",
                  f"ds_read_b64_tr_b16 a[{b+2}:{b+3}], v{vTr+4*reg+t} offset:{o+512}"]
        return r
    def center_ops(self, stage):
        x = XB + 16 * stage; t = EP
        d = []
        for i in range(16):
            d.append(f"v_dot2_f32_bf16 v{t+2*i}, v{x+i}, s{sLo}, v{vNegM}")
            d.append(f"v_dot2_f32_bf16 v{t+2*i+1}, v{x+i}, s{sHi}, v{vNegM}")
        c = [f"v_cvt_pk_bf16_f32 v{x+i}, v{t+2*i}, v{t+2*i+1}" for i in range(16)]
        return d, c
    def epi_f(self, acc, so):
        ops = []; sts = []; nb = self.cfg["stb"]
        for t in range(4):
            g = EP + 32 * (t & 1); u = g + 8; e = g + 16; pk = g + 24 + 4 * (t >> 1)
            A = acc + 16 * t
            for i in range(8): ops.append(f"v_accvgpr_read_b32 v{g+i}, a{A+i}")
            for i in range(8): ops.append(f"v_mul_f32 v{e+i}, v{vC1}, v{g+i}")
            for i in range(8):
                ops.append(f"v_exp_f32 v{e+i}, v{e+i}")
                ops.append(f"v_accvgpr_read_b32 v{u+i}, a{A+8+i}")
            for i in range(8): ops.append(f"v_fma_f32 v{e+i}, v{e+i}, v{vD2}, v{vD2}")
            for i in range(8):
                ops.append(f"v_rcp_f32 v{e+i}, v{e+i}")
                ops.append(f"v_mul_f32 v{g+i}, v{g+i}, v{u+i}")
            for i in range(8): ops.append(f"v_mul_f32 v{g+i}, v{g+i}, v{e+i}")
            for i in range(4): ops.append(f"v_cvt_pk_bf16_f32 v{pk+i}, v{g+2*i}, v{g+2*i+1}")
            if t == 2: sts.append(f"s_add_u32 s{so}, s{so}, 4096")
            sts.append(f"buffer_store_dwordx4 v[{pk}:{pk+3}], v{vSF}, s[{SRDW}:{SRDW+3}], s{so} offen offset:{(t&1)*512} sc1")
            if (t + 1) % nb == 0:
                ops.append("; ".join(sts)); sts = []
        return ops
    def epi_f_tail(self, acc, so):
        ops = [f"v_mov_b32 v{vR}, v{vD2}", f"v_mov_b32 v{vT}, v{vC1}", f"v_mov_b32 v{vT-1}, v{vC1}"]
        p2 = lambda r: f"v[{r}:{r+1}]"
        for t in range(4):
            g = EP + 32 * (t & 1); u = g + 8; e = g + 16; pk = g + 24
            A = acc + 16 * t
            for i in range(8): ops.append(f"v_accvgpr_read_b32 v{g+i}, a{A+i}")
            for i in range(4): ops.append(f"v_pk_mul_f32 {p2(e+2*i)}, {p2(vT-1)}, {p2(g+2*i)}")
            for i in range(8):
                ops.append(f"v_exp_f32 v{e+i}, v{e+i}")
                ops.append(f"v_accvgpr_read_b32 v{u+i}, a{A+8+i}")
            for i in range(4): ops.append(f"v_pk_fma_f32 {p2(e+2*i)}, {p2(e+2*i)}, {p2(vD2)}, {p2(vD2)}")
            for i in range(8): ops.append(f"v_rcp_f32 v{e+i}, v{e+i}")
            for i in range(4): ops.append(f"v_pk_mul_f32 {p2(g+2*i)}, {p2(g+2*i)}, {p2(u+2*i)}")
            for i in range(4): ops.append(f"v_pk_mul_f32 {p2(g+2*i)}, {p2(g+2*i)}, {p2(e+2*i)}")
            for i in range(4): ops.append(f"v_cvt_pk_bf16_f32 v{pk+i}, v{g+2*i}, v{g+2*i+1}")
            if t == 2: ops.append(f"s_add_u32 s{so}, s{so}, 4096")
            ops.append(f"buffer_store_dwordx4 v[{pk}:{pk+3}], v{vSF}, s[{SRDW}:{SRDW+3}], s{so} offen offset:{(t&1)*512} sc1")
        return ops
    def epi_q(self, acc, so):
        ops = [f"s_add_u32 s{so-1}, s{so}, 4096"]; sts = []; nb = self.cfg["stb"]
        for t in range(4):
            g = EP; pk = EP + 16 + 8 * t
            A = acc + 16 * t
            for i in range(16): ops.append(f"v_accvgpr_read_b32 v{g+i}, a{A+i}")
            for i in range(16): ops.append(f"v_mul_f32 v{g+i}, v{vR}, v{g+i}")
            for i in range(8): ops.append(f"v_cvt_pk_bf16_f32 v{pk+i}, v{g+2*i}, v{g+2*i+1}")
            for q in range(4):
                grp = 4 * t + 2 * (q & 1)
                sts.append(f"buffer_store_dwordx2 v[{pk+2*q}:{pk+2*q+1}], v{vL8}, s[{SRDW}:{SRDW+3}], s{so-(q>>1)} offen offset:{grp*256} sc1")
            if (t + 1) % nb == 0:
                if self.cfg.get("stq", True): ops.append("; ".join(sts))
                else: ops += sts
                sts = []
        return ops
    def publish(self, level, after):
        a = self.a
        for tg in after: self.vm.wait(a, tg)
        a(f"v_mov_b64 v[{self.vPub}:{self.vPub+1}], s[{sTok}:{sTok+1}]")
        a(f"s_add_u32 s{sA+8}, s{sFlag}, {level*8192}")
        a("s_mov_b64 exec, 1")
        self.vm.issue(a, f"buffer_store_dwordx2 v[{self.vPub}:{self.vPub+1}], off, s[{SRDW}:{SRDW+3}], s{sA+8} sc1", "fl")
        a("s_mov_b64 exec, -1")
    def flag_ld(self, reg, soff, level, off, sc):
        return [f"s_add_u32 s{sA+8}, s{soff}, {level*8192}",
                f"buffer_load_dwordx2 v[{reg}:{reg+1}], v{vL8}, s[{SRDW}:{SRDW+3}], s{sA+8} offen offset:{off} {sc}"]
    def flag_load(self, reg, soff, tag, level, off=0):
        l = self.flag_ld(reg, soff, level, off, "")
        self.a(l[0]); self.vm.issue(self.a, l[1], tag)
    def flag_check(self, reg, soff, tag, level, half=False, off=0):
        a = self.a; L = a.newlabel("fc")
        self.vm.wait(a, tag)
        test = f"v_cmp_ne_u64 vcc, s[{sTok}:{sTok+1}], v[{reg}:{reg+1}]\n"
        if half: test += f"s_cmp_eq_u32 s{sHalf}, 0\ns_cselect_b32 s{sA+8}, vcc_lo, vcc_hi\ns_cmp_lg_u32 s{sA+8}, 0"
        else: test += "s_nop 0\ns_cmp_lg_u64 vcc, 0"
        a(test)
        a(f"s_cbranch_scc1 {L}_slow")
        a.label(f"{L}_ok")
        l = self.flag_ld(reg, soff, level, off, "sc1")
        self.slow.append(f"""
        {L}_slow:
        s_mov_b32 s{sA+9}, 0
        {L}_spin:
        {l[0]}
        {l[1]}
        s_add_u32 s{sA+9}, s{sA+9}, 1
        s_cmp_gt_u32 s{sA+9}, {self.cfg["spin"]}
        s_waitcnt vmcnt(0)
        s_cbranch_scc1 {L}_ok
        {test}
        s_cbranch_scc0 {L}_ok
        s_sleep {self.cfg.get("sleep", 8)}
        s_branch {L}_spin
        """)

    def body(self, T, work, ntask, wrange=(4, 156), center=False, extra=None, vq=None, vq1=1, vq2=1, before=None):
        a = self.a; cfg = self.cfg; acc = ACC[T & 1]; LA = cfg["LA"]
        ngap = 160
        per = [[] for _ in range(ngap)]
        def cost(op):
            if not isinstance(op, str): return 3.0
            if op.startswith(("v_exp", "v_rcp")): return 2.0
            if op.startswith("buffer_"): return 3.0 * (1 + op.count(";"))
            return 1.0 + op.count(";")
        def is_bar(S):
            n1 = 10 * T + (S >> 2) + 1
            if (S & 3) != 1 or n1 >= 10 * ntask: return False
            return (n1 % 2 == 0) if cfg["bar2"] else True
        cap = []
        for g in range(ngap):
            c = cfg["cap"] - ([3, 3, 2, 0] if is_bar(g >> 2) else cfg["rpat"])[g & 3]
            if (g & 3) == cfg["dmagap"] or ((g & 3) == 0 and vq): c -= 2.5
            if (g & 3) == 3: c -= 1
            if (g & 3) == 3 and is_bar(g >> 2): c = 0
            cap.append(max(c, 0.0))
        if center:
            for st in range(cfg["nc"], 10):
                d, c = self.center_ops(st)
                base = 16 * (st - 1)
                per[base] += d
                cg = [base + x for x in (1, 3, 4, 5, 8, 9, 11, 12, 13)]
                for i, op in enumerate(c): per[cg[i * len(cg) // 16]].append(op)
        used = lambda g: sum(cost(o) for o in per[g])
        self.ends = {}
        for g00, fn in (extra or {}).items():
            if not isinstance(fn, list): per[g00].append(fn)
        for g00, fn in (extra or {}).items():
            if isinstance(fn, list):
                g = g00; room = 0.0
                for op in fn:
                    while room <= 0:
                        room = cap[g] - used(g); g += 1
                    per[g - 1].append(op); room -= cost(op)
                self.ends[g00] = g - 1
        for a_, b_ in (before or []): assert self.ends[a_] < b_, (a_, self.ends[a_], b_)
        if work:
            g0, g1 = wrange
            cap = [max(cap[g] - used(g), 0.0) for g in range(ngap)]
            scale = sum(cost(o) for o in work) / sum(cap[g0:g1])
            if cfg.get("verbose"): print("body", T, "work scale", scale)
            g = g0; room = cap[g] * scale
            for op in work:
                while room <= 0 and g < g1 - 1:
                    g += 1; room += cap[g] * scale
                per[g].append(op); room -= cost(op)
        vq = list(vq or [])
        for S in range(40):
            i, s = S >> 2, S & 3
            G = 40 * T + S; n = 10 * T + i
            rd = self.tr_reads(G + 2) if G + 2 < 40 * ntask else []
            if s == 2:
                k = 0
                while self.next <= n + LA and self.next < 10 * ntask and k < 2 and self.cands(("B", self.next)):
                    self.pend += self.dma_items(self.next); self.next += 1; k += 1
            for t in range(4):
                gap = 4 * S + t
                if t == 0: a(f"s_waitcnt lgkmcnt({8 if G + 1 < 40 * ntask else 0})")
                A = acc + 16 * t; w = WF + 16 * (G % NWB) + 4 * t; x = XB + 4 * S
                c = "0" if S == 0 else f"a[{A}:{A+15}]"
                a(f"v_mfma_f32_32x32x16_bf16 a[{A}:{A+15}], a[{w}:{w+3}], v[{x}:{x+3}], {c}")
                pat = [3, 3, 2, 0] if is_bar(S) else cfg["rpat"]
                for _ in range(pat[t]):
                    if rd: a(rd.pop(0))
                nld = sum(1 for p_ in self.pend if p_[0] == "ld")
                if self.pend and (t == cfg["dmagap"] or (nld > 4 and t == 0)): self.pop_ld()
                elif vq and ((t == 0 and S % vq1 == 0) or (t == cfg["dmagap"] and not self.pend and S % vq2 == 0)):
                    for j_, it_ in enumerate(vq):
                        if it_[0](gap):
                            vq.pop(j_)[1](); break
                if t == cfg["dmagap"] - 1: self.pop_ops()
                if T == cfg.get("markT", 2) and gap % 16 == 9: self.mark(gap // 16)
                for op in per[gap]:
                    if callable(op): op()
                    else: self.emit(op, f"E{T-1}")
                if t == 3 and is_bar(S):
                    last = n + 2 if cfg["bar2"] and n + 2 < 10 * ntask else n + 1
                    self.vm.wait(a, f"B{last}", 4)
                    a("s_barrier")
                    self.lastbar = n
            assert not rd
        return vq

    def att_loads(self, al=True):
        a = self.a
        out = []
        for kv in range(2):
            for i in range(5):
                def f(kv=kv, i=i):
                    assert not self.pend
                    a(f"s_add_u32 m0, s{sM0}, {(7+kv)*16384 + i*640 - 256*i}")
                    if i == 0: a(f"s_add_u32 s{sA+6}, s{sKV}, {(kv+1)*40960}")
                    a("s_mov_b32 exec_hi, 0xff")
                    self.vm.issue(a, f"buffer_load_dwordx4 v{vKa}, s[{SRDW}:{SRDW+3}], s{sA+6} offen offset:{256*i} sc1 lds", "KV")
                    a("s_mov_b32 exec_hi, -1")
                out.append(f)
        for i in range(5):
            out.append(lambda i=i: self.vm.issue(a, f"buffer_load_dwordx2 v[{XB+2*i}:{XB+2*i+1}], v{vQa}, s[{SRDW}:{SRDW+3}], s{sKV} offen offset:{256*i} sc1", "KV"))
        return out
    def attention(self, inter):
        a = self.a; vm = self.vm
        Q = XB; AK = 1; AK2 = 2; RW = 3; L = 4; P = 236; O = 216
        kvb = [[196, 200, 204, 208, 212], [106, 110, 252, 12, 26]]
        code = []; e = code.append
        def rd(n):
            m = n & 3
            if n == 4:
                e(f"v_add_u32 v{AK}, 16384, v{AK}"); e(f"v_add_u32 v{AK2}, 16384, v{AK2}")
            for i in range(5):
                b = kvb[n & 1][i]; o = (i % 3) * 80 + 16 - 4 * m
                e(f"ds_read2_b64 v[{b}:{b+3}], v{AK if i < 3 else AK2} offset0:{o} offset1:{o-2}")
        a(f"""
        s_add_u32 s{sA}, s{sM0}, {7*16384}
        v_add_u32 v{AK}, s{sA}, v{vL8}
        v_add_u32 v{AK2}, 1920, v{AK}
        s_mov_b32 s{sA+1}, 0x{C_SM:x}
        """)
        vm.wait(a, "KV", 15)
        self.mark(23)
        rd(0)
        for n in range(8):
            if n + 1 < 8:
                rd(n + 1); e("s_waitcnt lgkmcnt(5)")
            else: e("s_waitcnt lgkmcnt(0)")
            m = n & 3; B = kvb[n & 1]
            if n < 4:
                for i in range(10):
                    for h in range(2):
                        c = "0" if i == 0 else f"v{L+2*m+h}"
                        e(f"v_dot2_f32_bf16 v{L+2*m+h}, v{Q+i}, v{B[i>>1] + 2*h + (i&1)}, {c}")
            else:
                for h in range(2):
                    w = 2 * m + h
                    for i in range(10):
                        for j in range(2):
                            c = "0" if w == 0 else f"v{O+2*i+j}"
                            e(f"v_dot2_f32_bf16 v{O+2*i+j}, v{B[i>>1] + 2*h + (i&1)}, v{P+2*w+j}, {c}")
            if n == 3:
                Lm = a.newlabel("am")
                blk = [f"s_cmp_lg_u32 s{sMb64}, 0", f"s_cbranch_scc1 {Lm}", f"v_mov_b32 v{P}, 0xce6e6b28"]
                for ww in range(1, 8):
                    blk += [f"v_cmp_gt_u32 vcc, {2*ww}, v0", "s_nop 1", f"v_cndmask_b32 v{L+ww}, v{L+ww}, v{P}, vcc"]
                blk += [f"{Lm}:"]
                e("\n".join(blk))
                e(f"v_max3_f32 v{P}, v{L}, v{L+1}, v{L+2}")
                e(f"v_max3_f32 v{P}, v{P}, v{L+3}, v{L+4}")
                e(f"v_max3_f32 v{P}, v{P}, v{L+5}, v{L+6}")
                e(f"v_max_f32 v{P}, v{P}, v{L+7}")
                e(f"v_mul_f32 v{P}, s{sA+1}, v{P}")
                for ww in range(8): e(f"v_fma_f32 v{L+ww}, v{L+ww}, s{sA+1}, -v{P}")
                for ww in range(8): e(f"v_exp_f32 v{L+ww}, v{L+ww}")
                e(f"v_pk_add_f32 v[{P}:{P+1}], v[{L}:{L+1}], v[{L+2}:{L+3}]")
                e(f"v_pk_add_f32 v[{P+2}:{P+3}], v[{L+4}:{L+5}], v[{L+6}:{L+7}]")
                e(f"v_pk_add_f32 v[{P}:{P+1}], v[{P}:{P+1}], v[{P+2}:{P+3}]")
                e(f"v_add_f32 v{P}, v{P}, v{P+1}")
                e(f"v_rcp_f32 v{P}, v{P}\ns_nop 0")
                for ww in range(4): e(f"v_pk_mul_f32 v[{L+2*ww}:{L+2*ww+1}], v[{L+2*ww}:{L+2*ww+1}], v[{P}:{P+1}] op_sel_hi:[1,0]")
                for ww in range(8):
                    e(f"v_cvt_pk_bf16_f32 v{P+2*ww}, v{L+ww}, 0")
                    e(f"v_cvt_pk_bf16_f32 v{P+2*ww+1}, 0, v{L+ww}")
        e(f"s_mul_i32 s{sA}, s{sWave}, 2560\ns_add_u32 s{sA}, s{sA}, {9*16384}\nv_add_u32 v{AK}, s{sA}, v{vL8}")
        e(f"s_mul_i32 s{sA}, s{sWave}, 3\ns_and_b32 s{sA}, s{sA}, 13\ns_min_u32 s{sA}, s{sA}, 5\ns_lshl_b32 s{sA}, s{sA}, 9\ns_add_u32 s{sA}, s{sA}, {9*16384}\nv_add_u32 v{AK2}, s{sA}, v{vL8}")
        e(f"v_lshrrev_b32 v{RW}, 4, v0"); e(f"v_mul_u32_u24 v{RW}, {20480-256}, v{RW}"); e(f"v_add_u32 v{RW}, v{RW}, v{vL16}")
        for i in range(5):
            e(f"v_cvt_pk_bf16_f32 v{Q+2*i}, v{O+4*i}, v{O+4*i+1}")
            e(f"v_cvt_pk_bf16_f32 v{Q+2*i+1}, v{O+4*i+2}, v{O+4*i+3}")
            e(f"ds_write_b64 v{AK}, v[{Q+2*i}:{Q+2*i+1}] offset:{512*i}")
        inter = list(inter); n = len(code); k = len(inter); j = 0
        for i, ins in enumerate(code):
            a(ins)
            while j < k and j < (i + 1) * k // (n - 10):
                inter[j](); j += 1
        self.mark(25)
        a("s_waitcnt lgkmcnt(0)\ns_barrier")
        for r in range(3): a(f"ds_read2st64_b64 v[{4+4*r}:{7+4*r}], v{AK2} offset0:{8*r} offset1:{8*r+2}")
        return [lambda r=r: (a(f"s_waitcnt lgkmcnt({2-r})"),
                             vm.issue(a, f"buffer_store_dwordx4 v[{4+4*r}:{7+4*r}], v{RW}, s[{SRDW}:{SRDW+3}], s{sOst2 if r == 2 else sOst} offen offset:{1024*r} sc1", "O")) for r in range(3)]

    BSLOT = ["a176", "a196", "a216", "a236", "v116", "v136", "v156", "v176", "v196", "v216", "v236", "a128", "a148", "v96"]
    ASLOT = ["a80", "a96", "a112", "v32", "v48", "v64", "v80"] * 2
    @staticmethod
    def rr(base, off, n=4):
        return f"{base[0]}[{int(base[1:])+off}:{int(base[1:])+off+n-1}]"
    def b_loads(self, k):
        a = self.a; out = []
        for u in range(5):
            def f(u=u):
                if u == 0: a(f"s_add_u32 s{sGb}, s{sBb if k < 12 else sBb2}, {k*5120}")
                if u == 4: a(f"s_add_u32 s{sGb}, s{sGb}, 4096")
                self.vm.issue(a, f"buffer_load_dwordx4 {self.rr(self.BSLOT[k], 4*u)}, v{vL16}, s[{SRDW}:{SRDW+3}], s{sGb} offen offset:{1024*(u&3)} sc1", f"PB{k}")
            out.append(f)
        return out
    def a_loads(self, k):
        a = self.a; out = []
        for i in range(4):
            def f(i=i):
                if i == 0: a(f"s_add_u32 s{sGa}, s{sAb if k < 12 else sAb2}, {k*4096}")
                self.vm.issue(a, f"buffer_load_dwordx4 {self.rr(self.ASLOT[k], 4*i)}, v{vA[i]}, s[{SRDW}:{SRDW+3}], s{sGa} offen sc1", f"PA{k}")
            out.append(f)
        return out
    def wo_loads(self, s):
        a = self.a; out = []
        for j in range(4 if s < 6 else 1):
            def f(j=j):
                assert not self.pend
                if j == 0 and self.owner[s] != ("WO", s): self.alloc(("WO", s), s)
                if self.m0 != ("WO", s):
                    if s < 6:
                        a(f"s_add_u32 m0, s{sM0}, {s*16384}\ns_add_u32 s{sA+7}, s{sWOb}, {s*16384}")
                    else:
                        a(f"s_lshr_b32 s{sA+7}, s{sM0}, 2\ns_add_u32 m0, s{sA+7}, {6*16384}\ns_sub_u32 s{sA+7}, s{sWOb}, s{sM0}\ns_add_u32 s{sA+7}, s{sA+7}, m0")
                self.m0mark = (len(a.lines), ("WO", s))
                self.vm.issue(a, f"buffer_load_dwordx4 v{vL16}, s[{SRDW}:{SRDW+3}], s{sA+7} offen offset:{1024*j} sc1 lds", "WO")
            out.append(f)
        return out
    @property
    def m0(self):
        mk = getattr(self, "m0mark", None)
        if not mk: return None
        for l in self.a.lines[mk[0]:]:
            if " m0," in l or f"s{sA+7}," in l.split(",")[0] + "," and l.strip().startswith("s_") or l.endswith(("_join:", "_two:")): return None
        return mk[1]

    def build(self):
        a = self.a; cfg = self.cfg; label = self.label
        vm = self.vm
        sX = sA + 9
        a.begin_kernel(label)
        a(f"""
        s_cmp_ge_u32 s2, 256
        s_cbranch_scc1 {label}_end
        s_load_dwordx2 s[4:5], s[0:1], 0
        s_load_dwordx2 s[{pQKV}:{pQKV+1}], s[0:1], 8
        s_load_dwordx2 s[{pWO}:{pWO+1}], s[0:1], 16
        s_load_dwordx4 s[{pG}:{pG+3}], s[0:1], 32
        s_load_dwordx2 s[{pDN}:{pDN+1}], s[0:1], 48
        s_load_dwordx2 s[6:7], s[0:1], 56
        s_load_dwordx2 s[{pWS}:{pWS+1}], s[0:1], 72
        """)
        self.stamp(0)
        if self.stamps: a(f"s_memrealtime s[{sTok}:{sTok+1}]")
        NL = cfg.get("codelines", 11)
        a(f"""
        s_getpc_b64 s[{sA}:{sA+1}]
        s_lshr_b32 s{sA+2}, s2, 3
        s_mul_i32 s{sA+2}, s{sA+2}, {NL*128}
        v_lshlrev_b32 v{vT}, 7, v0
        v_add_u32 v{vT}, s{sA+2}, v{vT}
        v_min_u32 v{vT}, {label}_end-{label}-128, v{vT}
        v_cmp_gt_u32 vcc, {NL}, v0
        s_and_saveexec_b64 s[{sA+2}:{sA+3}], vcc
        s_cbranch_execz {label}_nt
        global_load_dword v95, v{vT}, s[{sA}:{sA+1}]
        {label}_nt:
        s_mov_b64 exec, -1
        v_lshrrev_b32 v{vT}, 6, v0
        v_and_b32 v0, 63, v0
        s_and_b32 s{sA}, s2, 7
        v_readfirstlane_b32 s{sWave}, v{vT}
        s_lshr_b32 s{sA+1}, s2, 3
        s_and_b32 s{sHalf}, s{sA}, 1
        s_lshr_b32 s{sA}, s{sA}, 1
        s_lshl_b32 s{sA}, s{sA}, 2
        s_lshr_b32 s{sA+2}, s{sA+1}, 3
        s_add_u32 s{sMb}, s{sA}, s{sA+2}
        s_and_b32 s{sJ}, s{sA+1}, 7
        s_lshl_b32 s{sM0}, s{sWave}, 12
        s_lshl_b32 s{sRot}, s{sA+2}, 2
        s_lshr_b32 s{sRot}, {cfg["rotm"]}, s{sRot}
        s_and_b32 s{sRot}, s{sRot}, 15
        s_add_u32 s{sRot}, s{sRot}, s{sJ}
        s_lshr_b32 s{sA+3}, {cfg["rotx"]}, s{sA}
        s_and_b32 s{sA+3}, s{sA+3}, 15
        s_add_u32 s{sRot}, s{sRot}, s{sA+3}
        s_mul_i32 s{sA+3}, s{sHalf}, {cfg.get("roth", 0)}
        s_add_u32 s{sRot}, s{sRot}, s{sA+3}
        s_sub_u32 s{sA+3}, s{sRot}, 10
        s_min_u32 s{sRot}, s{sRot}, s{sA+3}
        s_lshl_b32 s{sX}, s{sRot}, 7
        s_lshl_b32 s{sA}, s{sMb}, 7
        s_lshl_b32 s{sA+1}, s{sWave}, 5
        s_add_u32 s{sA}, s{sA}, s{sA+1}
        s_mul_i32 s{sA}, s{sA}, 1280
        v_lshrrev_b32 v{vT}, 3, v0
        v_mul_u32_u24 v{vT}, 1280, v{vT}
        v_add_u32 v{vT}, s{sA}, v{vT}
        v_lshrrev_b32 v{vT+1}, 4, v0
        v_and_b32 v{vT+2}, 7, v0
        v_xor_b32 v{vT+1}, v{vT+1}, v{vT+2}
        v_xor_b32 v{vT+2}, 4, v{vT+1}
        v_lshl_add_u32 v{EP+4}, v{vT+1}, 4, v{vT}
        v_lshl_add_u32 v{EP+5}, v{vT+2}, 4, v{vT}
        v_add_u32 v{EP+5}, {8*1280-1024}, v{EP+5}
        v_add_u32 v{EP+6}, {2*(8*1280-1024)}, v{EP+4}
        v_add_u32 v{EP+7}, {2*(8*1280-1024)}, v{EP+5}
        s_mov_b32 s{SRDX+2}, {2048*1280}
        s_mov_b32 s{SRDX+3}, 0x20000
        s_mov_b32 m0, s{sM0}
        """)
        sS = sA + 7; sC = sA + 8
        setup = lines(f"""
        s_mov_b32 s{sOOB}, {OOB}
        s_lshl_b32 s{sS}, s{sHalf}, 3
        s_add_u32 s{sS}, s{sS}, s{sJ}
        v_lshrrev_b32 v{vRow}, 3, v0
        s_and_b32 s{sA}, s{sWave}, 1
        s_lshl_b32 s{sA}, s{sA}, 5
        v_add_u32 v{vRow}, s{sA}, v{vRow}
        v_bfe_u32 v{vT}, v0, 1, 2
        v_bfe_u32 v{vT+1}, v0, 4, 1
        s_and_b32 s{sA}, s{sWave}, 2
        v_or_b32 v{vT+1}, s{sA}, v{vT+1}
        v_xor_b32 v{vT}, v{vT}, v{vT+1}
        v_and_b32 v{vT+1}, 1, v0
        v_lshlrev_b32 v{vT+1}, 4, v{vT+1}
        v_lshl_add_u32 v{vCol}, v{vT}, 5, v{vT+1}
        """) + self.q_params(PB[0], sS) + self.switch_ops(PB[0])
        ptr = [o for o in setup if f"s{pQKV}" in o or f"s{pQKV+1}" in o]
        for o in setup:
            if o not in ptr: self.emit(o)
        a(f"s_waitcnt lgkmcnt(0)\ns_mov_b32 s{SRDX}, s4\ns_mov_b32 s{SRDX+1}, s5")
        if self.stamps: a(f"s_mov_b32 s1, s{sTok}")
        setup = ptr + ([f"s_add_u32 s{pWS}, s{pWS}, {cfg['wsoff']}; s_addc_u32 s{pWS+1}, s{pWS+1}, 0"] if cfg.get("wsoff") else []) + lines(f"""
        s_add_u32 s{sA}, s{pWS}, {WS_EPOCH}; s_addc_u32 s{sA+1}, s{pWS+1}, 0
        s_load_dwordx2 s[{sTok}:{sTok+1}], s[{sA}:{sA+1}], 0
        """)
        n_first = len(setup)
        setup += lines(f"""
        s_mov_b32 s{sOne}, 0x3f803f80
        s_mov_b32 s{sLo}, 0x00003f80
        s_mov_b32 s{sHi}, 0x3f800000
        v_and_b32 v{vT}, 31, v0
        v_lshlrev_b32 v{vT+1}, 7, v{vT}
        v_add_u32 v{vT+1}, s{sM0}, v{vT+1}
        v_bfe_u32 v{vT}, v0, 1, 3
        v_lshrrev_b32 v{vT+2}, 5, v0
        v_xor_b32 v{vT}, v{vT}, v{vT+2}
        """)
        XA = EP + 8
        for s in range(4):
            setup.append(f"v_xor_b32 v{vT+2}, {2*s}, v{vT}")
            setup.append(f"v_lshl_add_u32 v{XA+s}, v{vT+2}, 4, v{vT+1}")
            setup.append(f"v_add_u32 v{XA+4+s}, 0x10000, v{XA+s}")
            setup.append(f"v_add_u32 v{XA+8+s}, 0x20000, v{XA+s}")
        setup += lines(f"""
        v_mov_b32 v{vSum}, 0
        v_mov_b32 v{vSq}, 0
        v_lshlrev_b32 v{vL16}, 4, v0
        v_lshlrev_b32 v{vL8}, 3, v0
        v_bfe_u32 v{vT}, v0, 4, 1
        v_bfe_u32 v{vT+1}, v0, 2, 2
        v_lshrrev_b32 v{vT+2}, 5, v0
        v_lshl_add_u32 v{vT+2}, v{vT+2}, 3, v{vT+1}
        v_lshlrev_b32 v{vT+2}, 7, v{vT+2}
        v_lshl_add_u32 v{vT+2}, v{vT}, 13, v{vT+2}
        v_and_b32 v{EP}, 3, v0
        v_lshl_add_u32 v{vT+2}, v{EP}, 3, v{vT+2}
        v_lshrrev_b32 v{vT+1}, 1, v{vT+1}
        v_lshl_add_u32 v{vT}, v{vT}, 1, v{vT+1}
        """)
        for t in range(4):
            setup.append(f"v_xor_b32 v{vT+1}, {t}, v{vT}")
            setup.append(f"v_lshl_add_u32 v{vTr+t}, v{vT+1}, 5, v{vT+2}")
            setup.append(f"v_add_u32 v{vTr+4+t}, 0x10000, v{vTr+t}")
            setup.append(f"v_add_u32 v{vTr+8+t}, 0x20000, v{vTr+t}")
        setup += lines(f"""
        v_bfe_u32 v{vT}, v0, 4, 1
        v_lshlrev_b32 v{vT}, 10, v{vT}
        v_lshrrev_b32 v{vT+1}, 5, v0
        v_lshl_add_u32 v{vT}, v{vT+1}, 8, v{vT}
        v_and_b32 v{vT+1}, 15, v0
        v_lshl_add_u32 v{vSF}, v{vT+1}, 4, v{vT}
        s_mov_b32 s{SRDW}, s{pWS}
        s_mov_b32 s{SRDW+1}, s{pWS+1}
        s_mov_b32 s{SRDW+2}, {WS_SIZE}
        s_mov_b32 s{SRDW+3}, 0x20000
        s_lshl_b32 s{sMb64}, s{sMb}, 1
        s_add_u32 s{sMb64}, s{sMb64}, s{sHalf}
        s_lshl_b32 s{sFlag}, s{sMb}, 4
        s_add_u32 s{sFlag}, s{sFlag}, s{sS}
        s_lshl_b32 s{sFlag}, s{sFlag}, 2
        s_add_u32 s{sFlag}, s{sFlag}, s{sWave}
        s_lshl_b32 s{sFlag}, s{sFlag}, 3
        s_add_u32 s{sFlag}, s{sFlag}, {WS_FLAG}
        s_mul_i32 s{sC}, s{sHalf}, 3
        s_add_u32 s{sC}, s{sC}, s{sJ}
        s_add_u32 s{sC}, s{sC}, 16
        s_add_u32 s{sA}, s{sS}, 5
        s_and_b32 s{sA}, s{sA}, 15
        s_cmp_lt_u32 s{sA}, 11; s_cselect_b32 s{sC}, s{sC}, 31; s_cselect_b32 s{sThree}, 1, 0
        """) + self.f_params(PB[1], sS) + self.f_params(PB[2], sC) + self.pack_params() + lines(f"""
        v_lshrrev_b32 v{vT}, 5, v0
        v_lshlrev_b32 v{vT}, 4, v{vT}
        v_bfe_u32 v{vT+1}, v0, 4, 1
        v_lshl_add_u32 v{vT}, v{vT+1}, 2, v{vT}
        v_bfe_u32 v{vT+1}, v0, 2, 2
        v_add_u32 v{vT}, v{vT}, v{vT+1}
        v_lshlrev_b32 v{vT}, 7, v{vT}
        v_and_b32 v{vT+2}, 3, v0
        v_lshl_add_u32 v{vT}, v{vT+2}, 3, v{vT}
        v_add_u32 v{vT}, s{sM0}, v{vT}
        v_lshrrev_b32 v{vT+1}, 1, v{vT+1}
        s_and_b32 s{sA+2}, s{sWave}, 2
        v_or_b32 v{vT+1}, s{sA+2}, v{vT+1}
        """)
        for ch in range(4):
            setup.append(f"v_xor_b32 v{PR+20+ch}, {ch}, v{vT+1}")
            setup.append(f"v_lshl_add_u32 v{PR+20+ch}, v{PR+20+ch}, 5, v{vT}")
        setup += [f"v_mul_u32_u24 v{PR+16}, 1280, v{vRow}", f"v_add_u32 v{PR+16}, v{vCol}, v{PR+16}"]
        setup += [f"v_add_u32 v{PR+16+j}, {j*(8*1280-1024)}, v{PR+16}" for j in range(1, 4)]
        setup += lines(f"""
        s_lshl_b32 s{sA}, s2, 1
        s_and_b32 s{sA+1}, s{sWave}, 1
        s_add_u32 s{sA}, s{sA}, s{sA+1}
        s_mul_i32 s{sA+1}, s{sA}, 20
        v_add_u32 v{vT}, s{sA+1}, v0
        v_lshrrev_b32 v{vT+1}, 4, v{vT}
        v_mul_u32_u24 v{vT+1}, {3456-2048}, v{vT+1}
        v_lshl_add_u32 v94, v{vT}, 7, v{vT+1}
        s_mul_i32 s{sA+1}, s{sA}, 14
        v_add_u32 v{vT}, s{sA+1}, v0
        v_mul_u32_u24 v{vT+1}, {(1<<20)//11+1}, v{vT}
        v_lshrrev_b32 v{vT+1}, 20, v{vT+1}
        v_mul_u32_u24 v{vT+1}, 2048, v{vT+1}
        v_lshl_add_u32 v91, v{vT}, 7, v{vT+1}
        s_lshr_b32 s{sDuty}, s2, 3
        s_and_b32 s{sDuty}, s{sDuty}, 3
        """) + self.p2_params()
        if cfg.get("verbose"): print("setup ops", len(setup), "first", n_first)
        order = list(cfg.get("order", ["X0", "X1", "X2", "X3", "X4", "X5", "X6", "X7", "X8", "X9", "B", "B", "B", "B"]))
        def queue_next():
            o = order.pop(0)
            if o[0] == "T":
                r0, n = {"Ta": (0, 8), "Tb": (256, 12), "Tc": (0, 4), "Td": (128, 16)}[o]
                self.emit(f"s_lshl_b32 s{sA+6}, s{sMb}, 1; s_and_b32 s{sA+5}, s{sWave}, 1; s_add_u32 s{sA+6}, s{sA+6}, s{sA+5}; s_mul_i32 s{sA+6}, s{sA+6}, {n}; "
                          f"s_lshl_b32 s{sA+5}, s{sRot}, 6; s_add_u32 s{sA+6}, s{sA+6}, s{sA+5}; s_add_u32 s{sA+6}, s{sA+6}, {r0}; v_add_u32 v90, s{sA+6}, v0; "
                          f"v_subrev_u32 v89, 640, v90; v_min_u32 v90, v89, v90; v_mul_u32_u24 v90, 3840, v90; s_mov_b64 exec, {(1<<n)-1}; "
                          f"buffer_load_dword v90, v90, s[{PB[0]}:{PB[0]+3}], s{PB[0]+5} offen; s_mov_b64 exec, -1", "T")
                if not order: return
                o = order.pop(0)
            if o == "B":
                self.pend += self.dma_items(self.next); self.next += 1
            else:
                i = int(o[1:]); sl = self.alloc(("X", i))
                if i: self.pend.append(("op", f"s_add_u32 m0, s{sM0}, {sl*16384}; s_add_u32 s{sX}, s{sX}, 128; s_cmp_eq_u32 s{sX}, 1280; s_cselect_b32 s{sX}, 0, s{sX}"))
                self.pend += [("ld", f"buffer_load_dwordx4 v{EP+4+j}, s[{SRDX}:{SRDX+3}], s{sX} offen offset:{1024*j} lds", f"X{i}") for j in range(4)]
        XW = cfg["XW"]; spl = cfg.get("spl", 12); done = 0
        for g in range(XW):
            if order[0] == "B": assert done >= n_first
            queue_next()
            for j in range(4):
                self.pop_ld()
                for o in setup[done:done + spl]: self.emit(o)
                done += spl
        for o in setup[done:]: self.emit(o)
        self.stamp(1, True)
        def stats(i, j):
            for r in range(4 * j, 4 * j + 4):
                x = XB + 16 * i + r
                a(f"v_dot2c_f32_bf16 v{vSum}, s{sOne}, v{x}")
                a(f"v_dot2c_f32_bf16 v{vSq}, v{x}, v{x}")
        for i in range(10):
            vm.wait(a, f"X{i}", 4)
            if i in (0, 2, 4, 6, 8): self.stamp(2 + i // 2, True)
            sl = self.slot[("X", i)]
            for s in range(4):
                x = XB + 4 * (4 * i + s)
                a(f"ds_read_b128 v[{x}:{x+3}], v{XA+4*(sl>>2)+s} offset:{(sl&3)*16384}")
            if order and (order[0] != "B" or self.next < cfg["PB"]): queue_next()
            for j in range(4):
                if self.pend: self.pop_ld()
                if i: stats(i - 1, j)
            a("s_waitcnt lgkmcnt(0)")
            self.xdone.add(("X", i))
        a(f"s_xor_b32 s{sTok+1}, s{sTok+1}, 0x{TOKX:x}\ns_add_u32 s{sTok}, s{sTok}, 1")
        for j in range(4): stats(9, j)
        self.stamp(1)
        a(f"""
        s_mov_b32 s{sA}, 0x3acccccd
        s_nop 1
        v_mov_b32 v{vT}, v{vSum}
        v_mov_b32 v{vR}, v{vSq}
        s_nop 0
        v_permlane32_swap_b32 v{vSum}, v{vT}
        v_permlane32_swap_b32 v{vSq}, v{vR}
        s_nop 0
        v_add_f32 v{vSum}, v{vSum}, v{vT}
        v_add_f32 v{vSq}, v{vSq}, v{vR}
        v_mul_f32 v{vSum}, s{sA}, v{vSum}
        v_mul_f32 v{vSq}, s{sA}, v{vSq}
        v_cvt_pk_bf16_f32 v{vNegM}, 0, -v{vSum}
        v_fma_f32 v{vSq}, -v{vSum}, v{vSum}, v{vSq}
        """)
        NC = cfg["nc"]
        def first_frags():
            self.stamp(8, True)
            vm.wait(a, "B1" if cfg["bar2"] else "B0", 4)
            a("s_barrier")
            self.stamp(7, True)
            for G in range(2):
                for r in self.tr_reads(G): a(r)
        for st_ in range(NC):
            d0, c0 = self.center_ops(st_)
            if st_ == NC - 1:
                while order or self.pend:
                    if not self.pend: queue_next()
                    self.pop_ld()
                for op in d0: a(op)
                first_frags()
                for op in c0: a(op)
            else:
                if order and not self.pend: queue_next()
                for j, op in enumerate(d0 + c0):
                    a(op)
                    if j % 12 == 0 and self.pend: self.pop_ld()
        self.stamp(2)
        extra = Uniq()
        extra[130] = lines(f"""
            v_max_f32 v{vSq}, 0, v{vSq}
            v_cvt_pk_bf16_f32 v{vR}, 0, v{vSq}
            v_add_f32 v{vR}, 0x3727c5ac, v{vR}
            v_cvt_pk_bf16_f32 v{vR}, 0, v{vR}
            v_sqrt_f32 v{vR}, v{vR}; s_nop 0
            v_cvt_pk_bf16_f32 v{vD2}, 0, v{vR}
            v_rcp_f32 v{vR}, v{vD2}
            v_mul_f32 v{vD2}, v{vD2}, v{vD2}
            v_mul_f32 v{vC1}, 0x{NLOG2E:x}, v{vR}
            """)
        def pack_issue():
            sl = self.alloc("P")
            self.pend += [("op", f"s_add_u32 m0, s{sM0}, {sl*16384}")]
            self.pend += [("ld", f"buffer_load_dwordx4 v{PR+16+j}, s[{PK}:{PK+3}], s{PK+4} offen offset:{1024*j} lds", "PK") for j in range(4)]
        pk0 = cfg["pk0"]; pk1 = cfg["pk1"]
        extra[pk0] = pack_issue
        extra[pk0 + 1] = [lambda ch=ch: a(f"v_add_u32 v{PR+20+ch}, {self.slot['P']*16384}, v{PR+20+ch}") for ch in range(4)]
        rdl = [lambda: vm.wait(a, "PK", 4)]
        for ch in range(4):
            rdl.append(f"ds_read_b64_tr_b16 v[{PR+4*ch}:{PR+4*ch+1}], v{PR+20+ch}")
            rdl.append(f"ds_read_b64_tr_b16 v[{PR+4*ch+2}:{PR+4*ch+3}], v{PR+20+ch} offset:1024")
        extra[pk1] = rdl
        stl = []
        for ch in range(4):
            stl.append(lambda ch=ch: (self.xdone.add("P"), vm.issue(a, f"buffer_store_dwordx4 v[{PR+4*ch}:{PR+4*ch+3}], v{vL16}, s[{SRDW}:{SRDW+3}], s{PK+5+ch} offen sc1", "I")))
        extra[pk1 + 24] = [lambda: [f() for f in stl]] if cfg['stb'] > 1 else stl
        def touch(which, duty=None):
            def f():
                r, n, off = ((94, 20, 0), (91, 14, 2048))[which]
                ins = f"buffer_load_dword v{r}, v{r}, s[{PB[1]}:{PB[1]+3}], 0 offen offset:{off}"
                if duty is None:
                    a(f"s_mov_b64 exec, {(1 << n) - 1}"); vm.issue(a, ins, "T"); a("s_mov_b64 exec, -1")
                else:
                    L = a.newlabel("du")
                    a(f"s_cmp_lg_u32 s{sDuty}, {duty}\ns_cbranch_scc1 {L}\ns_mov_b64 exec, {(1 << n) - 1}\n{ins}\ns_mov_b64 exec, -1\n{L}:")
            return f
        for which, key in ((0, "tch"), (1, "tch2")):
            g_ = cfg[key]
            if isinstance(g_, list):
                for d_, gg in enumerate(g_): extra[gg] = touch(which, d_)
            elif g_ >= 0: extra[g_] = touch(which)
        if cfg["pub1"] < 160: extra[cfg["pub1"]] = lambda: self.publish(1, ["I"])
        self.body(0, None, 3, center=True, extra=extra, before=[(pk0 + 1, pk1), (pk1, pk1 + 16), (pk1 + 24, cfg["pub1"])])
        self.stamp(3)
        self.vPub = 86
        extra = Uniq()
        if cfg["pub1"] >= 160: extra[cfg["pub1"] - 160] = lambda: self.publish(1, ["I"])
        extra[cfg["pub2"]] = lambda: self.publish(2, ["E0"])
        GR = 88
        def epoch():
            L = a.newlabel("ep")
            a(f"""
            s_or_b32 s{sA+8}, s2, s{sWave}
            s_cbranch_scc1 {L}
            v_mov_b32 v{GR}, s{sTok}
            s_mov_b32 s{sA+8}, {WS_EPOCH}
            s_mov_b64 exec, 1
            buffer_store_dword v{GR}, off, s[{SRDW}:{SRDW+3}], s{sA+8}
            s_mov_b64 exec, -1
            {L}:
            """)
        gc = cfg["gck"]
        assert gc % 16 == 6 and (not cfg["bar2"] or (gc // 16) % 2 == 1)
        gb = gc + 2
        extra[gb + 1] = epoch
        for j in range(4):
            extra[gc - 42 + 4 * j] = lambda j=j: self.flag_load(GR + 2 * j, sFlG, f"G{j}", 1, 512 * j)
            extra[gc - 9 + [0, 2, 4, 8][j]] = lambda j=j: self.flag_check(GR + 2 * j, sFlG, f"G{j}", 1, off=512 * j)
        after = lambda g0: (lambda gap: gap >= g0)
        vq = [(after(gb), f) for k in range(4) for f in self.b_loads(k)]
        rest1 = self.body(1, self.epi_q(ACC[0], PB[0] + 7), 3, wrange=(4, cfg["w1"]), extra=extra, vq=vq, vq1=cfg["b1vq"])
        while self.pend: self.pop_ld()
        self.stamp(4)
        a(f"s_cmp_eq_u32 s{sThree}, 0")
        a(f"s_cbranch_scc1 {label}_two")
        self.vPub = 62
        pre = []
        def P(fn): pre.append(fn); return fn
        extra = Uniq()
        vq = [(after(0), P(f)) for _, f in rest1]
        st = {"q": False}
        q_l0 = lambda: self.flag_load(XB, sFl0, "Q0", 2)
        q_l1 = lambda: self.flag_load(XB + 2, sFl1, "Q1", 2)
        q_c0 = lambda: self.flag_check(XB, sFl0, "Q0", 2)
        def q_c1():
            self.flag_check(XB + 2, sFl1, "Q1", 2); st["q"] = True
        qc = cfg["qck"]
        extra[qc - 33] = q_l0; extra[qc - 29] = q_l1; extra[qc - 1] = q_c0; extra[qc + 3] = q_c1
        attl = []
        lastkv = [-100]
        def att_ok(gap, j):
            if not st["q"] or gap - lastkv[0] < cfg["kvgap"]: return False
            attl or attl.extend(self.att_loads(False))
            if j < 10:
                if self.next < 30 or self.pend: return False
                if "K" not in self.slot:
                    if not (self.free(7) and self.free(8)): return False
                    self.alloc("K", 7); self.alloc("V", 8)
            lastkv[0] = gap
            return True
        bq = []
        for k in range(4, 8):
            bq += [(after(4 * (5 * (k - 4) + 10)), f) for f in self.b_loads(k)]
        P(q_l0); P(q_l1)
        for _, f in bq[:10]: P(f)
        P(q_c0); P(q_c1)
        pre.append(lambda: [f() for f in self.att_loads()])
        for _, f in bq[10:]: P(f)
        for j in list(range(10, 15)) + list(range(10)): vq.append((lambda gap, j=j: att_ok(gap, j), lambda j=j: attl[j]()))
        vq += bq
        wq = []
        for s in range(7):
            ok = lambda gap, s=s: self.next >= 30 and not self.pend and (self.owner[s] == ("WO", s) or self.free(s))
            wq += [(ok, f) for f in self.wo_loads(s)]
        vq += wq
        extra[cfg["pub3"]] = lambda: self.publish(3, ["E1"])
        rest = self.body(2, self.epi_f(ACC[1], PB[1] + 7), 3, wrange=(4, cfg["w2"]), extra=extra, vq=vq, vq1=cfg["vq1"], vq2=cfg["vq2"])
        self.stamp(5)
        wfs = [f for _, f in wq]
        late = [f for c_, f in rest if f not in wfs] + [P(f) for k in (11, 12) for f in self.b_loads(k)]
        late += [f for c_, f in rest if f in wfs and c_(160)]
        ntail = cfg["ntail"]
        assert 15 - vm.q.count("KV") <= ntail and "K" in self.slot
        post = late[ntail:]; late = late[:ntail]
        wrest = [f for c_, f in rest if f in wfs and f not in late]
        post = [f for f in post if f not in wfs]
        pre[:] = [f for f in pre if f not in post]
        for f in wfs:
            if f not in wrest: P(f)
        def tail(ops, inter, tag):
            inter = list(inter); n = len(ops); k = len(inter); j = 0
            for i, op in enumerate(ops):
                self.emit(op, tag)
                while j < k and j < (i + 1) * k // n:
                    inter[j](); j += 1
        a("s_nop 5")
        tail(self.epi_f_tail(ACC[0], PB[2] + 7), late, "E2")
        if cfg.get("verbose"): print("tail loads", len(late), "after join: B loads", len(post), "wo loads", len(wrest))
        self.lastbar = 100
        self.alloc("O", 9)
        a.label(f"{label}_join")
        self.stamp(6)
        self.vPub = 20
        self.flag_load(vFl, sFl0, "F3", 3)
        a(f"s_lshr_b32 s{sA}, s{sM0}, 2\nv_add_u32 v{vA[0]}, s{sA}, v{vL16}")
        for i in range(1, 4): a(f"v_add_u32 v{vA[i]}, 1024, v{vA[i-1]}\nv_and_b32 v{vA[i]}, 4095, v{vA[i]}")
        a("s_barrier")
        def xaddr(j, d, t1, t2):
            return [f"v_add_u32 v{t1}, {64*j}, v0", f"v_mul_u32_u24 v{t2}, {(1<<16)//10+1}, v{t1}", f"v_lshrrev_b32 v{t2}, 16, v{t2}",
                    f"v_mul_u32_u24 v{t2}, {1280-160}, v{t2}", f"v_lshl_add_u32 v{t2}, v{t1}, 4, v{t2}", f"v_add_u32 v{d}, s{sXo}, v{t2}"]
        def xl(j):
            for o in xaddr(j, 114, 114, 115): a(o)
            a(f"s_mul_i32 s{sA+2}, s{sWave}, 2560\ns_add_u32 m0, s{sA+2}, {102400 + 1024*j}")
            a("s_mov_b32 exec_hi, 0" if j == 2 else "s_nop 0")
            vm.issue(a, f"global_load_lds_dwordx4 v114, s[4:5]", "XO")
            if j == 2: a("s_mov_b32 exec_hi, -1")
        free_ = [lambda j=j: xl(j) for j in range(3)] + post + wrest
        n1 = cfg["natt1"]; n2 = cfg["natt2"]
        inter = free_[:n1] + [lambda: self.flag_check(vFl, sFl0, "F3", 3)]
        al = free_[n1:]
        aa = [f for k in range(7) for f in self.a_loads(k)]
        inter += aa[:n2]
        inter.insert(min(len(inter), cfg["pub4"]), lambda: self.publish(4, ["E2"]))
        ost = self.attention(inter)
        self.stamp(8)
        XR = 4; vX = 14; vW = 25; vRd = 28; vXo = [1, 2, 29]
        KF = cfg["kf"]
        wl = [f for f in al if f not in post]
        Q_ = [(0, f) for f in ost + aa[n2:] + [f for f in al if f in post]]
        grp = lambda e, fs: [(e, f) for f in fs]
        A_ = lambda k: grp(max(k - 6, KF if k >= 8 else 0), self.a_loads(k))
        B_ = lambda k: grp(0, self.b_loads(k))
        for it in cfg["forder"]:
            Q_ += A_(int(it[1:])) if it[0] == "A" else B_(int(it[1:])) if it[0] == "B" else grp(0, wl) if it == "W" else grp(5, ["x0", "x1", "x2"])
        OA = 176
        def wo_reads(T):
            b = WR[T % 6]
            return [f"ds_read_b128 v[{b+4*u}:{b+4*u+3}], v{vL16 if T < 12 else 15} offset:{(T % 12)*5120 + u*1024}" for u in range(5)]
        def o_load(T):
            def f():
                if T % 4 == 0: a(f"s_add_u32 s{sGb}, s{sOld}, {T*1024}")
                vm.issue(a, f"buffer_load_dwordx4 a[{OA+4*T}:{OA+4*T+3}], v{vL16}, s[{SRDW}:{SRDW+3}], s{sGb} offen offset:{1024*(T&3)} sc1", f"PO{T//2}")
            return f
        KB = cfg["kbar"]; KO = cfg["ko"]; ns = cfg["nside"]; NOF = cfg["no_f"]; KX = cfg["kx"]
        R = 32; FO = 236; SA = 80; XU = 216
        WR = [116, 136, 156, 176, 196, 96]
        lq = LQ()
        def mf(k, i, u):
            t_ = (i * 5 + u) * 4
            c = "0" if k == 0 else f"a[{t_}:{t_+3}]"
            a(f"v_mfma_f32_16x16x32_bf16 a[{t_}:{t_+3}], {self.rr(self.BSLOT[k], 4*u)}, {self.rr(self.ASLOT[k], 4*i)}, {c}")
        def wait_ab(k):
            assert vm.q.count(f"PB{k}") == 5 and vm.q.count(f"PA{k}") == 4
            vm.wait(a, f"PA{k}" if vm.last(f"PA{k}") > vm.last(f"PB{k}") else f"PB{k}")
        olist = [o_load(T) for T in range(20)]
        for k in range(KX):
            if k % 2 == 0: self.mark(10 + k // 2)
            wait_ab(k)
            side = []
            if k == KF - 2: side += [lambda: self.flag_load(vFl, sFl0, "F4", 4)]
            if k == cfg.get("kp5", 3): side += [lambda: self.publish(5, ["O"])]
            if k == KF: self.flag_check(vFl, sFl0, "F4", 4)
            if k == KO - 2: side += [lambda: self.flag_load(vFl, sFl0, "F5", 5)]
            if k == KO: self.flag_check(vFl, sFl0, "F5", 5, half=True)
            room = ns[k] - len(side)
            for it in list(Q_):
                if room > 0 and it[0] <= k:
                    Q_.remove(it); room -= 1
                    side.append((lambda j=int(it[1][1]): xl(j)) if isinstance(it[1], str) else it[1])
            if k >= KO and not Q_ and room > 0: side += olist[:room]; olist = olist[room:]
            if k == 4:
                for j in range(3): side += [lambda o=o: a(o) for o in xaddr(j, vXo[j], 3, 14)]
            if k == 5:
                side += [lambda o=o: a(o) for o in lines(f"""
                    v_and_b32 v3, 15, v0
                    v_mul_u32_u24 v{vX}, 160, v3
                    v_lshrrev_b32 v3, 4, v0
                    v_lshl_add_u32 v{vX}, v3, 3, v{vX}
                    v_add_u32 v15, {12*5120}, v{vL16}
                    s_mov_b32 s{sA}, 0x{NLOG2E:x}
                    s_mov_b32 s{sA+1}, 0xffff0000
                    """)]
            if k == 6:
                for i in range(4):
                    d = vRd if i == 0 else vW + i - 1
                    side += [lambda o=o: a(o) for o in (f"v_lshrrev_b32 v3, 10, v{vA[i]}", f"v_mul_u32_u24 v3, 15360, v3",
                                                         f"v_add_u32 v3, {102400 + max(i-1, 0)*5120}, v3", f"v_add_u32 v{d}, v3, v{vL16}")]
            if k == KB - 1:
                side += [lambda: (vm.wait(a, "XO", 3), a(f"s_add_u32 s{sA+2}, s{sA+2}, 102400\nv_add_u32 v3, s{sA+2}, v{vX}"))]
                side += [lambda u=u: lq.issue(a, f"ds_read_b64 v[{XR+2*u}:{XR+2*u+1}], v3 offset:{32*u}", "XL") for u in range(5)]
            if k == KB:
                lq.wait(a, "XL"); vm.wait(a, "WO", 25); a("s_barrier")
            nsd = len(side); j = 0
            for i in range(4):
                for u in range(5):
                    mf(k, i, u)
                    while j < nsd and j < (i * 5 + u + 1) * nsd // 20:
                        side[j](); j += 1
        assert not Q_, len(Q_)
        assert KB < KX and KO < KX and KX >= 10
        self.mark(16)
        nk = 14 - KX
        base_side = olist[:max(NOF - (20 - len(olist)), 0)]; olist = olist[len(base_side):]
        ol_ = base_side
        base_side = [lambda r=r, T=T: lq.issue(a, r, f"W{T}") for T in range(5) for r in wo_reads(T)]
        base_side += [lambda j=j: a(f"v_and_b32 v{XU+j}, s{sA+1}, v{XR+(j>>1)}" if j & 1 else f"v_lshlrev_b32 v{XU+j}, 16, v{XR+(j>>1)}") for j in range(20)]
        for j_, f_ in enumerate(ol_): base_side.insert(j_ * (45 + len(ol_)) // len(ol_), f_)
        nb_ = len(base_side); jb = 0; m = 0
        for ri, i in enumerate((1, 2, 3, 0)):
            pw = []
            if ri:
                ip = (1, 2, 3)[ri - 1]
                pw = [f"ds_write_b128 v{vW+ip-1}, a[{(ip*5+u)*4}:{(ip*5+u)*4+3}] offset:{u*1024}" for u in range(5)]
            mm = 0
            for k in range(KX, 14):
                if ri == 0: wait_ab(k)
                for u in range(5):
                    mf(k, i, u); m += 1; mm += 1
                    if pw and mm >= 4 and (mm - 4) * 5 >= (5 - len(pw)) * (5 * nk - 4): lq.issue(a, pw.pop(0), "PW")
                    else:
                        while jb < nb_ and jb < m * nb_ // (20 * nk):
                            base_side[jb](); jb += 1
            for w_ in pw: lq.issue(a, w_, "PW")
        while jb < nb_:
            base_side[jb](); jb += 1
        self.stamp(7)
        work = [("f", f) for f in olist[:2]] + [("bar",)]
        for j in range(15): work.append(("l", f"ds_read_b128 v[{R+4*j}:{R+4*j+3}], v{vRd} offset:{j*1024}", "PR"))
        work += [("f", f) for f in olist[2:]]
        for j in range(20): work.append(("v", f"v_accvgpr_read_b32 v{FO+j}, a{j}"))
        pk2 = lambda op, d, x, y: "\n".join(f"{op} v[{d+2*j}:{d+2*j+1}], v[{x+2*j}:{x+2*j+1}], {y(j)}" for j in range(10))
        work.append(("v", f"v_sub_u32 v3, v{vRd}, v{vL16}")); work.append(("v", f"v_add_u32 v3, v3, v{vX}"))
        work.append(("lw", "PR"))
        work.append(("v", "\n".join([pk2("v_pk_add_f32", FO, FO, lambda j: f"v[{R+2*j}:{R+2*j+1}]"),
                                     pk2("v_pk_add_f32", R+20, R+20, lambda j: f"v[{R+40+2*j}:{R+40+2*j+1}]"),
                                     pk2("v_pk_add_f32", FO, FO, lambda j: f"v[{R+20+2*j}:{R+20+2*j+1}]"),
                                     pk2("v_pk_mul_f32", R, FO, lambda j: f"s[{sA}:{sA+1}] op_sel_hi:[1,0]")])))
        for j in range(20): work.append(("v", f"v_exp_f32 v{R+j}, v{R+j}"))
        for j in range(20): work.append(("v", f"v_add_f32 v{R+j}, 1.0, v{R+j}"))
        for j in range(20): work.append(("v", f"v_rcp_f32 v{R+j}, v{R+j}"))
        def do(wk):
            if wk[0] == "v": a(wk[1])
            elif wk[0] == "f": wk[1]()
            elif wk[0] == "l": lq.issue(a, wk[1], wk[2])
            elif wk[0] == "lw": lq.wait(a, wk[1])
            elif wk[0] == "bar":
                lq.wait(a, "PW"); self.mark(20); a("s_barrier"); self.mark(21)
        nw = len(work); done = 0; m = 0
        for T in range(20):
            if T % 2 == 0: vm.wait(a, f"PO{T//2}", 2)
            if T in (0, 10, 16): self.mark({0: 17, 10: 18, 16: 19}[T])
            if T % 2 == 0: lq.wait(a, f"W{T+1}")
            rd = wo_reads(T + 5) if T + 5 < 20 else []
            b = WR[T % 6]
            for u in range(5):
                c = "0" if T == 0 else f"a[{SA+4*u}:{SA+4*u+3}]"
                a(f"v_mfma_f32_16x16x32_bf16 a[{SA+4*u}:{SA+4*u+3}], v[{b+4*u}:{b+4*u+3}], a[{OA+4*T}:{OA+4*T+3}], {c}")
                m += 1
                if rd: lq.issue(a, rd.pop(0), f"W{T+5}")
                tgt = m * nw * cfg.get("sw", 80) // (75 * 100) if m <= 75 else nw * cfg.get("sw", 80) // 100 + (m - 75) * (nw - nw * cfg.get("sw", 80) // 100) // 25
                while done < nw and done < tgt:
                    do(work[done]); done += 1
        assert done == nw
        a("s_nop 0")
        a(pk2("v_pk_mul_f32", FO, FO, lambda j: f"v[{R+2*j}:{R+2*j+1}]"))
        for u in range(5):
            for j in range(4): a(f"v_accvgpr_read_b32 v{R+4*u+j}, a{SA+4*u+j}")
            for h in range(2):
                f0 = FO + 4 * u + 2 * h; s_ = R + 4 * u + 2 * h; x_ = XU + 4 * u + 2 * h
                a(f"v_pk_fma_f32 v[{f0}:{f0+1}], v[{f0}:{f0+1}], v[{s_}:{s_+1}], v[{x_}:{x_+1}]")
            f0 = FO + 4 * u; o = 64 + 2 * u
            a(f"v_cvt_pk_bf16_f32 v{o}, v{f0}, v{f0+1}")
            a(f"v_cvt_pk_bf16_f32 v{o+1}, v{f0+2}, v{f0+3}")
            a(f"ds_write_b64 v3, v[{o}:{o+1}] offset:{32*u}")
        a("s_waitcnt lgkmcnt(0)")
        for j in range(3): a(f"ds_read_b128 v[{76+4*j}:{79+4*j}], v{vRd} offset:{1024*j}")
        for j in range(3):
            a(f"s_waitcnt lgkmcnt({2-j})")
            if j == 2: a("s_mov_b32 exec_hi, 0")
            a(f"global_store_dwordx4 v{vXo[j]}, v[{76+4*j}:{79+4*j}], s[6:7] {cfg.get('scO', '')}")
        a("s_mov_b32 exec_hi, -1")
        self.mark(22)
        if self.stamps:
            a("s_waitcnt vmcnt(0)")
            a(f"s_memtime s[{sA}:{sA+1}]")
            a(f"s_memrealtime s[{sA+2}:{sA+3}]")
            a("s_waitcnt lgkmcnt(0)")
            for i in range(1, 8):
                a(f"s_sub_u32 s{sA+4}, s{ST0+2*(i-1)}, s0\nv_mov_b32 v{32+i}, s{sA+4}")
            a(f"s_sub_u32 s{sA+4}, s{sA}, s0\nv_mov_b32 v40, s{sA+4}\nv_mov_b32 v41, s{sA+2}")
            a(f"s_sub_u32 s{sA+4}, s{ST0+14}, s0\nv_mov_b32 v42, s{sA+4}")
            a(f"""
            v_mov_b32 v32, s1
            s_lshl_b32 s{sA}, s2, 2
            s_add_u32 s{sA}, s{sA}, s{sWave}
            s_lshl_b32 s{sA}, s{sA}, 6
            s_add_u32 s{sA}, s{sA}, {WS_STAMP}
            s_mov_b64 exec, 1
            buffer_store_dwordx4 v[32:35], off, s[{SRDW}:{SRDW+3}], s{sA}
            buffer_store_dwordx4 v[36:39], off, s[{SRDW}:{SRDW+3}], s{sA} offset:16
            buffer_store_dwordx4 v[40:43], off, s[{SRDW}:{SRDW+3}], s{sA} offset:32
            """)
        a("s_endpgm")
        a.label(f"{label}_two")
        self.stamp(5)
        self.vm = vm = VM()
        self.vPub = 62
        a("s_nop 7")
        for op in self.epi_f_tail(ACC[1], PB[1] + 7): self.emit(op, "E1")
        a("s_waitcnt vmcnt(0) lgkmcnt(0)")
        a("s_barrier")
        self.publish(3, ["E1"])
        a("s_nop 1")
        self.publish(4, ["E1"])
        for i, f in enumerate(pre):
            if i % 8 == 3 and cfg.get("markT", 2) == 2: self.mark(i // 8)
            f()
        a("s_waitcnt vmcnt(0)")
        a(f"s_branch {label}_join")
        for s in self.slow: a(s)
        a.label(f"{label}_end")
        a("s_endpgm")
        a.end_kernel(label, 512, 102, 256, 256, 256, 163840)
        return a.text("generated by dev/fused2.py: one persistent kernel, 256 workgroups (one per CU)\n"
                      "phase 1: LayerNorm + x@[wqkv|w_gate|w_up] (+ weight repack), attention, phase 2: h@w_down, o@wo, combine")

if __name__ == "__main__":
    stamps = "--stamps" in sys.argv
    pos = [x for x in sys.argv[1:] if not x.startswith("--")]
    cfg = json.loads(pos[1]) if len(pos) > 1 else {}
    open(pos[0], "w").write(Gen(cfg, stamps).build())
```

```python
import sys, json, struct; sys.path.insert(0, "dev")
from asmlib import *

WS_H = 0
WS_O = 0x780000
WS_WD = 0xA00000
WS_WO = 0xD00000
WS_QKV = 0x1000000
WS_FLAG = 0x1800000
WS_EPOCH = WS_FLAG - 256
WS_STAMP = 0x1900000
WS_SIZE = 0x2000000
OOB = 0x4000000
TOKX = 0x5bd1e995
NLOG2E = 0xbfb8aa3b
def f2u(x): return struct.unpack("<I", struct.pack("<f", x))[0]
C_SM = f2u(20 ** -0.5 * 1.4426950408889634)

XB = 96; EP = 32; ACC = [0, 64]; WF = 128; NWB = 3
vLd = 1; vTr = 5
vSF = 17; vL8 = 18; vC1 = 19; vD2 = 20; vR = 21; vNegM = 22; vSum = 23; vSq = 24
vRow = 25; vCol = 26; vT = 27
vDbg = 30; vL16 = 31
vFl = 22
vQa = 28; vKa = 29
vA = [16, 17, 19, 24]
PR = 64
sOOB = 3
pQKV = 76; pWS = 78; pWO = 80; pDN = 82; pG = 84; pU = 86
sWave = 8; sMb64 = 9; sHalf = 10; sM0 = 11; sSoff = 12; sStep = 13; sWrap = 14; sThree = 15
SRDW = 16
SRDX = 20
sGa = 20; sGb = 21; sDuty = 96
PB = [24, 32, 40]
PK = 48
sOne = 57; sLo = 58; sHi = 59
sTok = 60
sFlag = 62; sFl0 = 63; sFl1 = 64; sFlG = 65
sAb = 66; sAb2 = 67; sBb = 68; sBb2 = 69; sOld = 70; sWOb = 71; sOst = 72; sOst2 = 73; sKV = 74; sXo = 75
ST0 = 76
sMb = 88; sJ = 89; sRot = 90; sNb = 91
sA = 92

class VM:
    def __init__(self): self.q = []
    def issue(self, a, ins, tag):
        a(ins); self.q.append(tag)
    def last(self, tag): return max(i for i, t in enumerate(self.q) if t == tag)
    def wait(self, a, tag, cnt=None):
        if cnt is not None: assert self.q.count(tag) == cnt, (tag, self.q.count(tag))
        a(f"s_waitcnt vmcnt({min(len(self.q) - 1 - self.last(tag), 63)})")
class LQ:
    def __init__(self): self.q = []
    def issue(self, a, ins, tag):
        a(ins); self.q.append(tag)
    def wait(self, a, tag):
        idx = max(i for i, t in enumerate(self.q) if t == tag)
        a(f"s_waitcnt lgkmcnt({min(len(self.q) - 1 - idx, 15)})")
class Uniq(dict):
    def __setitem__(self, k, v):
        assert k not in self, ("duplicate gap", k)
        dict.__setitem__(self, k, v)
def lines(s): return [l.split(";;")[0].strip() for l in s.split("\n") if l.split(";;")[0].strip()]
DIV5 = (1 << 16) // 5 + 1
DIV3 = (1 << 16) // 3 + 1

class Gen:
    def __init__(self, cfg, stamps):
        self.cfg = dict(dict(LA=6, XW=4, spl=20, PB=2, bar2=True, rpat=[2, 2, 2, 2], dmagap=2, spin=3000, cap=5.0,
                             rotm=0x1010, rotx=0x7520, tch=-1, tch2=110, pk0=18, pk1=70, pub1=124, pub2=124, gck=118, qck=70, pub3=126, qsh=15,
                             w1=100, w2=96, b1vq=1, vq1=1, vq2=1, ntail=16, natt1=11, natt2=24, pub4=12,
                             nside=[6] * 14, kvgap=6, nc=3, p2x=1, nbtail=14, nbpub=12, stb=1, stq=False, kf=4, forder=['A7', 'A8', 'B8', 'A9', 'B9', 'W', 'A10', 'B10', 'A11', 'A12', 'A13', 'B13'], kbar=10, ko=10, no_f=12, kx=11), **cfg)
        self.stamps = stamps
        self.a = Asm(); self.vm = VM()
        self.label = NAME + "_kernel"
        self.slot = {}; self.owner = [None] * 10
        self.xdone = set(); self.lastbar = -10
        self.next = 0; self.pend = []; self.slow = []
        self.vPub = 92
    def stamp(self, i, pro=False):
        if self.cfg.get("pst") and i and not pro: return
        if pro and not self.cfg.get("pst"): return
        if self.stamps: self.a(f"s_memtime s[{ST0+2*(i-1)}:{ST0+2*(i-1)+1}]" if i else "s_memtime s[0:1]")
    def mark(self, i):
        if self.cfg.get("marks"):
            r = 22
            self.a(f"""
            s_memtime s[{r}:{r+1}]
            s_waitcnt lgkmcnt(0)
            s_sub_u32 s{r}, s{r}, s0
            v_mov_b32 v{vDbg}, s{r}
            s_lshl_b32 s{r}, s2, 2
            s_add_u32 s{r}, s{r}, s{sWave}
            s_lshl_b32 s{r}, s{r}, 7
            s_add_u32 s{r}, s{r}, {WS_STAMP + 0x40000 + 4*i}
            s_mov_b64 exec, 1
            """)
            self.vm.issue(self.a, f"buffer_store_dword v{vDbg}, off, s[{SRDW}:{SRDW+3}], s{r}", "mk")
            self.a("s_mov_b64 exec, -1\ns_nop 1")
    def emit(self, op, tag="st"):
        for o in op.split(";"):
            o = o.strip()
            if o.startswith(("global_", "buffer_")): self.vm.issue(self.a, o, tag)
            else: self.a(o)
    def free(self, s):
        o = self.owner[s]
        if o is None: return True
        if o[0] == "B": return o[1] <= self.lastbar - 1
        return o in self.xdone
    def cands(self, name):
        c = [s for s in range(10) if self.free(s)]
        if name[0] == "B" and name[1] >= self.cfg.get("avoid_from", 23): c = [s for s in reversed(c) if s not in (7, 8)]
        return c
    def alloc(self, name, want=None):
        c = self.cands(name) if want is None else [s for s in range(10) if self.free(s) and s == want]
        assert c, ("no free slot", name, self.owner, self.lastbar)
        s = c[0]; self.owner[s] = name; self.slot[name] = s
        return s

    def pos_ops(self, f, d):
        t = sA + 4
        return [f"s_lshr_b32 s{t}, s{f}, 2", f"s_mul_i32 s{t}, s{t}, 6", f"s_lshl_b32 s{d}, s{f}, 1", f"s_add_u32 s{t}, s{t}, s{d}",
                f"s_sub_u32 s{t+1}, s{f}, 16", f"s_mul_i32 s{t+1}, s{t+1}, {DIV3}", f"s_lshr_b32 s{t+1}, s{t+1}, 16", f"s_lshl_b32 s{t+1}, s{t+1}, 3",
                f"s_add_u32 s{t+1}, s{t+1}, s{d}", f"s_sub_u32 s{t+1}, s{t+1}, 24",
                f"s_cmp_lt_u32 s{f}, 16; s_cselect_b32 s{d}, s{t}, s{t+1}"]
    def f_params(self, P, code):
        t = sA
        return lines(f"""
        s_mov_b32 s{P+3}, 0x20000
        s_cmp_lt_u32 s{sWave}, 2; s_cselect_b32 s{P}, s{pG}, s{pU}; s_cselect_b32 s{P+1}, s{pG+1}, s{pU+1}
        s_cmp_lt_u32 s{code}, 27; s_cselect_b32 s{P+2}, {640*3456}, 0
        s_movk_i32 s{P+4}, 3456
        s_lshl_b32 s{P+5}, s{code}, 7
        s_mul_i32 s{P+6}, s{sRot}, {64*3456}
        """) + self.pos_ops(code, P + 7) + lines(f"""
        s_lshl_b32 s{t}, s{sMb}, 1
        s_lshr_b32 s{t+1}, s{sWave}, 1
        s_add_u32 s{t}, s{t}, s{t+1}
        s_mul_i32 s{t}, s{t}, 56
        s_add_u32 s{P+7}, s{P+7}, s{t}
        s_lshl_b32 s{P+7}, s{P+7}, 12
        s_and_b32 s{t+1}, s{sWave}, 1
        s_lshl_b32 s{t+1}, s{t+1}, 11
        s_add_u32 s{P+7}, s{P+7}, s{t+1}
        """)
    def q_params(self, P, q):
        t = sA
        return lines(f"""
        s_mov_b32 s{P+3}, 0x20000
        s_mov_b32 s{P}, s{pQKV}
        s_mov_b32 s{P+1}, s{pQKV+1}
        s_movk_i32 s{P+4}, 3840
        s_lshr_b32 s{t}, s{sWave}, 1
        s_lshl_b32 s{P+5}, s{q}, 1
        s_add_u32 s{P+5}, s{P+5}, s{t}
        s_lshl_b32 s{P+5}, s{P+5}, 7
        s_mul_i32 s{P+6}, s{sRot}, {64*3840}
        s_lshl_b32 s{t}, s{sMb}, 2
        s_add_u32 s{t}, s{t}, s{sWave}
        s_mul_i32 s{t}, s{t}, 122880
        s_lshl_b32 s{t+1}, s{q}, 13
        s_add_u32 s{t}, s{t}, s{t+1}
        s_add_u32 s{t}, s{t}, {WS_QKV}
        s_cmp_lt_u32 s{q}, 15; s_cselect_b32 s{P+2}, {640*3840}, 0; s_cselect_b32 s{P+7}, s{t}, s{sOOB}
        """)
    def pack_params(self):
        P = PK; t = sA
        r = lines(f"""
        s_mov_b32 s{P+3}, 0x20000
        s_mov_b32 s{t+2}, {640*1280}
        s_cmp_lt_u32 s2, 135; s_cselect_b32 s{P}, s{pDN}, s{pWO}; s_cselect_b32 s{P+1}, s{pDN+1}, s{pWO+1}; s_cselect_b32 s{P+2}, {1728*1280}, s{t+2}; s_cselect_b32 s{t}, 0, 135
        s_sub_u32 s{t}, s2, s{t}
        s_mul_i32 s{t+2}, s{t}, {DIV5}
        s_lshr_b32 s{t+2}, s{t+2}, 16
        s_mul_i32 s{t+3}, s{t+2}, 5
        s_sub_u32 s{t+1}, s{t}, s{t+3}
        s_mul_i32 s{P+4}, s{t+2}, {64*1280}
        s_lshl_b32 s{t+3}, s{t+1}, 8
        s_add_u32 s{P+4}, s{P+4}, s{t+3}
        s_lshr_b32 s{t+3}, s{sWave}, 1
        s_lshl_b32 s{t+3}, s{t+3}, 7
        s_add_u32 s{P+4}, s{P+4}, s{t+3}
        """) + self.pos_ops(t + 2, t + 3) + lines(f"""
        s_lshl_b32 s{t+2}, s{t+2}, 1
        s_mov_b32 s{t}, {WS_WO}
        s_movk_i32 s{t+6}, 100
        s_cmp_lt_u32 s2, 135; s_cselect_b32 s{t+3}, s{t+3}, s{t+2}; s_cselect_b32 s{t}, {WS_WD}, s{t}; s_cselect_b32 s{t+6}, 280, s{t+6}
        s_and_b32 s{t+2}, s{sWave}, 1
        s_add_u32 s{t+3}, s{t+3}, s{t+2}
        s_mul_i32 s{t+3}, s{t+3}, 5120
        s_add_u32 s{t}, s{t}, s{t+3}
        s_cmp_lt_u32 s2, 185; s_cselect_b32 s{P+2}, s{P+2}, 0; s_cselect_b32 s{t}, s{t}, s{sOOB}
        s_lshl_b32 s{t+1}, s{t+1}, 3
        s_and_b32 s{t+2}, s{sWave}, 2
        s_lshl_b32 s{t+2}, s{t+2}, 1
        s_add_u32 s{t+1}, s{t+1}, s{t+2}
        s_sub_u32 s{t+6}, s{t+6}, 5
        """)
        for ch in range(4):
            r += lines(f"""
            s_add_u32 s{t+2}, s{t+1}, {ch}
            s_mul_i32 s{t+3}, s{t+2}, {DIV5}
            s_lshr_b32 s{t+3}, s{t+3}, 16
            s_mul_i32 s{t+3}, s{t+3}, s{t+6}
            s_add_u32 s{t+3}, s{t+3}, s{t+2}
            s_lshl_b32 s{t+3}, s{t+3}, 10
            s_add_u32 s{P+5+ch}, s{t+3}, s{t}
            """)
        return r
    def p2_params(self):
        t = sA
        if self.cfg.get("p2x"):
            r = self.p2_params0()[5:]
            return lines(f"""
            s_add_u32 s{sNb}, s{sMb}, s{sJ}
            s_and_b32 s{sNb}, s{sNb}, 3
            s_lshl_b32 s{t}, s{sHalf}, 2
            s_or_b32 s{sNb}, s{sNb}, s{t}
            s_lshr_b32 s{t}, s{sJ}, 2
            s_lshl_b32 s{sMb64}, s{sMb}, 1
            s_add_u32 s{sMb64}, s{sMb64}, s{t}
            s_lshl_b32 s{t}, s{t}, 4
            s_lshl_b32 s{sHalf}, 0xffff, s{t}
            """) + r
        return self.p2_params0()
    def p2_params0(self):
        t = sA
        return lines(f"""
        s_lshl_b32 s{sNb}, s{sMb}, {0 if self.cfg.get("map8") else 1}
        s_add_u32 s{sNb}, s{sNb}, s{sJ}
        s_and_b32 s{sNb}, s{sNb}, {3 if self.cfg.get("map8") else 7}
        s_and_b32 s{t}, s{sJ}, {4 if self.cfg.get("map8") else 0}
        s_or_b32 s{sNb}, s{sNb}, s{t}
        s_mul_i32 s{t}, s{sWave}, 14
        s_mul_i32 s{sAb}, s{sMb64}, 56
        s_add_u32 s{sAb}, s{sAb}, s{t}
        s_lshl_b32 s{sAb}, s{sAb}, 12
        s_mul_i32 s{sBb}, s{sNb}, 56
        s_add_u32 s{sBb}, s{sBb}, s{t}
        s_mul_i32 s{sBb}, s{sBb}, 5120
        s_add_u32 s{sBb}, s{sBb}, {WS_WD}
        s_cmp_lt_u32 s{sWave}, 3; s_cselect_b32 s{sAb2}, s{sAb}, s{sOOB}; s_cselect_b32 s{sBb2}, s{sBb}, s{sOOB}
        s_mul_i32 s{t}, s{sMb64}, 81920
        s_add_u32 s{t}, s{t}, {WS_O}
        s_mul_i32 s{sOld}, s{sWave}, 20480
        s_add_u32 s{sOld}, s{sOld}, s{t}
        s_mul_i32 s{sOst}, s{sNb}, 10
        s_add_u32 s{sOst}, s{sOst}, s{sWave}
        s_lshl_b32 s{sOst}, s{sOst}, 8
        s_add_u32 s{sOst}, s{sOst}, s{t}
        s_cmp_lt_u32 s{sWave}, 2; s_cselect_b32 s{sOst2}, s{sOst}, s{sOOB}
        s_mul_i32 s{sWOb}, s{sNb}, 102400
        s_add_u32 s{sWOb}, s{sWOb}, {WS_WO}
        s_add_u32 s{sWOb}, s{sWOb}, s{sM0}
        s_lshl_b32 s{sKV}, s{sNb}, 2
        s_add_u32 s{sKV}, s{sKV}, s{sWave}
        s_mul_i32 s{sKV}, s{sKV}, 1280
        s_add_u32 s{sKV}, s{sKV}, {WS_QKV}
        s_lshl_b32 s{sXo}, s{sMb64}, 2
        s_add_u32 s{sXo}, s{sXo}, s{sWave}
        s_mul_i32 s{sXo}, s{sXo}, {16*1280}
        s_mul_i32 s{t}, s{sNb}, 160
        s_add_u32 s{sXo}, s{sXo}, s{t}
        s_lshl_b32 s{sFl0}, s{sMb}, 9
        s_add_u32 s{sFl0}, s{sFl0}, {WS_FLAG}
        s_max_u32 s{sFl1}, s{sMb}, 1
        s_lshl_b32 s{sFl1}, s{sFl1}, 9
        s_add_u32 s{sFl1}, s{sFl1}, {WS_FLAG - 512}
        s_lshl_b32 s{sFlG}, s{sWave}, 11
        s_add_u32 s{sFlG}, s{sFlG}, {WS_FLAG}
        s_lshl_b32 s{t}, s{sMb64}, 1
        v_lshrrev_b32 v{vQa}, 5, v0
        v_add_u32 v{vQa}, s{t}, v{vQa}
        v_mul_u32_u24 v{vQa}, 122880, v{vQa}
        v_and_b32 v{vKa}, 31, v0
        v_lshl_add_u32 v{vQa}, v{vKa}, 3, v{vQa}
        v_add_u32 v{vKa}, 8, v0
        v_lshrrev_b32 v{vT}, 4, v{vKa}
        v_add_u32 v{vT}, s{t}, v{vT}
        v_max_u32 v{vT}, 1, v{vT}
        v_subrev_u32 v{vT}, 1, v{vT}
        v_mul_u32_u24 v{vT}, 122880, v{vT}
        v_and_b32 v{vKa}, 15, v{vKa}
        v_lshl_add_u32 v{vKa}, v{vKa}, 4, v{vT}
        """)
    def switch_ops(self, P):
        t = sA
        return [f"v_mad_u32_u24 v{vLd}, v{vRow}, s{P+4}, v{vCol}",
                f"s_lshl_b32 s{sStep}, s{P+4}, 6",
                f"s_lshl_b32 s{t}, s{P+4}, 3",
                f"s_sub_u32 s{t}, s{t}, 1024",
                f"v_add_u32 v{vLd}, s{P+5}, v{vLd}",
                f"s_mul_i32 s{sWrap}, s{sStep}, 10",
                f"s_mov_b32 s{sSoff}, s{P+6}",
                f"v_add_u32 v{vLd+1}, s{t}, v{vLd}",
                f"v_add_u32 v{vLd+2}, s{t}, v{vLd+1}",
                f"v_add_u32 v{vLd+3}, s{t}, v{vLd+2}"]
    def dma_items(self, g):
        P = PB[g // 10]; slot = self.alloc(("B", g))
        it = [("op", f"s_add_u32 m0, s{sM0}, {slot*16384}")]
        if g % 10 == 0 and g > 0: it += [("op", o) for o in self.switch_ops(P)]
        elif g % 10: it.append(("op", f"s_add_u32 s{sSoff}, s{sSoff}, s{sStep}; s_cmp_eq_u32 s{sSoff}, s{sWrap}; s_cselect_b32 s{sSoff}, 0, s{sSoff}"))
        it += [("ld", f"buffer_load_dwordx4 v{vLd+j}, s[{P}:{P+3}], s{sSoff} offen offset:{1024*j} lds", f"B{g}") for j in range(4)]
        return it
    def pop_ops(self):
        p = self.pend
        while p and p[0][0] != "ld": self.emit(p.pop(0)[1])
    def pop_ld(self):
        a = self.a; p = self.pend
        self.pop_ops()
        if p:
            if " m0," in a.lines[-1]: a("s_nop 0")
            _, l, tag = p.pop(0); self.vm.issue(a, l, tag)
    def tr_reads(self, G):
        g, s = G >> 2, G & 3
        slot = self.slot[("B", g)]; reg = slot >> 2
        o = (slot & 3) * 16384 + 16 * s * 128
        r = []
        for t in range(4):
            b = WF + 16 * (G % NWB) + 4 * t
            r += [f"ds_read_b64_tr_b16 a[{b}:{b+1}], v{vTr+4*reg+t} offset:{o}",
                  f"ds_read_b64_tr_b16 a[{b+2}:{b+3}], v{vTr+4*reg+t} offset:{o+512}"]
        return r
    def center_ops(self, stage):
        x = XB + 16 * stage; t = EP
        d = []
        for i in range(16):
            d.append(f"v_dot2_f32_bf16 v{t+2*i}, v{x+i}, s{sLo}, v{vNegM}")
            d.append(f"v_dot2_f32_bf16 v{t+2*i+1}, v{x+i}, s{sHi}, v{vNegM}")
        c = [f"v_cvt_pk_bf16_f32 v{x+i}, v{t+2*i}, v{t+2*i+1}" for i in range(16)]
        return d, c
    def epi_f(self, acc, so):
        ops = []; sts = []; nb = self.cfg["stb"]
        for t in range(4):
            g = EP + 32 * (t & 1); u = g + 8; e = g + 16; pk = g + 24 + 4 * (t >> 1)
            A = acc + 16 * t
            for i in range(8): ops.append(f"v_accvgpr_read_b32 v{g+i}, a{A+i}")
            for i in range(8): ops.append(f"v_mul_f32 v{e+i}, v{vC1}, v{g+i}")
            for i in range(8):
                ops.append(f"v_exp_f32 v{e+i}, v{e+i}")
                ops.append(f"v_accvgpr_read_b32 v{u+i}, a{A+8+i}")
            for i in range(8): ops.append(f"v_fma_f32 v{e+i}, v{e+i}, v{vD2}, v{vD2}")
            for i in range(8):
                ops.append(f"v_rcp_f32 v{e+i}, v{e+i}")
                ops.append(f"v_mul_f32 v{g+i}, v{g+i}, v{u+i}")
            for i in range(8): ops.append(f"v_mul_f32 v{g+i}, v{g+i}, v{e+i}")
            for i in range(4): ops.append(f"v_cvt_pk_bf16_f32 v{pk+i}, v{g+2*i}, v{g+2*i+1}")
            if t == 2: sts.append(f"s_add_u32 s{so}, s{so}, 4096")
            sts.append(f"buffer_store_dwordx4 v[{pk}:{pk+3}], v{vSF}, s[{SRDW}:{SRDW+3}], s{so} offen offset:{(t&1)*512} sc1")
            if (t + 1) % nb == 0:
                ops.append("; ".join(sts)); sts = []
        return ops
    def epi_f_tail(self, acc, so):
        ops = [f"v_mov_b32 v{vR}, v{vD2}", f"v_mov_b32 v{vT}, v{vC1}", f"v_mov_b32 v{vT-1}, v{vC1}"]
        p2 = lambda r: f"v[{r}:{r+1}]"
        for t in range(4):
            g = EP + 32 * (t & 1); u = g + 8; e = g + 16; pk = g + 24
            A = acc + 16 * t
            for i in range(8): ops.append(f"v_accvgpr_read_b32 v{g+i}, a{A+i}")
            for i in range(4): ops.append(f"v_pk_mul_f32 {p2(e+2*i)}, {p2(vT-1)}, {p2(g+2*i)}")
            for i in range(8):
                ops.append(f"v_exp_f32 v{e+i}, v{e+i}")
                ops.append(f"v_accvgpr_read_b32 v{u+i}, a{A+8+i}")
            for i in range(4): ops.append(f"v_pk_fma_f32 {p2(e+2*i)}, {p2(e+2*i)}, {p2(vD2)}, {p2(vD2)}")
            for i in range(8): ops.append(f"v_rcp_f32 v{e+i}, v{e+i}")
            for i in range(4): ops.append(f"v_pk_mul_f32 {p2(g+2*i)}, {p2(g+2*i)}, {p2(u+2*i)}")
            for i in range(4): ops.append(f"v_pk_mul_f32 {p2(g+2*i)}, {p2(g+2*i)}, {p2(e+2*i)}")
            for i in range(4): ops.append(f"v_cvt_pk_bf16_f32 v{pk+i}, v{g+2*i}, v{g+2*i+1}")
            if t == 2: ops.append(f"s_add_u32 s{so}, s{so}, 4096")
            ops.append(f"buffer_store_dwordx4 v[{pk}:{pk+3}], v{vSF}, s[{SRDW}:{SRDW+3}], s{so} offen offset:{(t&1)*512} sc1")
        return ops
    def epi_q(self, acc, so):
        ops = [f"s_add_u32 s{so-1}, s{so}, 4096"]; sts = []; nb = self.cfg["stb"]
        for t in range(4):
            g = EP; pk = EP + 16 + 8 * t
            A = acc + 16 * t
            for i in range(16): ops.append(f"v_accvgpr_read_b32 v{g+i}, a{A+i}")
            for i in range(16): ops.append(f"v_mul_f32 v{g+i}, v{vR}, v{g+i}")
            for i in range(8): ops.append(f"v_cvt_pk_bf16_f32 v{pk+i}, v{g+2*i}, v{g+2*i+1}")
            for q in range(4):
                grp = 4 * t + 2 * (q & 1)
                sts.append(f"buffer_store_dwordx2 v[{pk+2*q}:{pk+2*q+1}], v{vL8}, s[{SRDW}:{SRDW+3}], s{so-(q>>1)} offen offset:{grp*256} sc1")
            if (t + 1) % nb == 0:
                if self.cfg.get("stq", True): ops.append("; ".join(sts))
                else: ops += sts
                sts = []
        return ops
    def publish(self, level, after):
        a = self.a
        for tg in after: self.vm.wait(a, tg)
        a(f"v_mov_b64 v[{self.vPub}:{self.vPub+1}], s[{sTok}:{sTok+1}]")
        a(f"s_add_u32 s{sA+8}, s{sFlag}, {level*8192}")
        a("s_mov_b64 exec, 1")
        self.vm.issue(a, f"buffer_store_dwordx2 v[{self.vPub}:{self.vPub+1}], off, s[{SRDW}:{SRDW+3}], s{sA+8} sc1", "fl")
        a("s_mov_b64 exec, -1")
    def flag_ld(self, reg, soff, level, off, sc):
        return [f"s_add_u32 s{sA+8}, s{soff}, {level*8192}",
                f"buffer_load_dwordx2 v[{reg}:{reg+1}], v{vL8}, s[{SRDW}:{SRDW+3}], s{sA+8} offen offset:{off} {sc}"]
    def flag_load(self, reg, soff, tag, level, off=0):
        l = self.flag_ld(reg, soff, level, off, "")
        self.a(l[0]); self.vm.issue(self.a, l[1], tag)
    def flag_check(self, reg, soff, tag, level, half=False, off=0):
        a = self.a; L = a.newlabel("fc")
        self.vm.wait(a, tag)
        test = f"v_cmp_ne_u64 vcc, s[{sTok}:{sTok+1}], v[{reg}:{reg+1}]\n"
        if half and self.cfg.get("p2x"): test += f"s_nop 0\ns_or_b32 s{sA+8}, vcc_lo, vcc_hi\ns_and_b32 s{sA+8}, s{sA+8}, s{sHalf}"
        elif half: test += f"s_cmp_eq_u32 s{sHalf}, 0\ns_cselect_b32 s{sA+8}, vcc_lo, vcc_hi\ns_cmp_lg_u32 s{sA+8}, 0"
        else: test += "s_nop 0\ns_cmp_lg_u64 vcc, 0"
        a(test)
        a(f"s_cbranch_scc1 {L}_slow")
        a.label(f"{L}_ok")
        l = self.flag_ld(reg, soff, level, off, "sc1")
        self.slow.append(f"""
        {L}_slow:
        s_mov_b32 s{sA+9}, 0
        {L}_spin:
        {l[0]}
        {l[1]}
        s_add_u32 s{sA+9}, s{sA+9}, 1
        s_cmp_gt_u32 s{sA+9}, {self.cfg["spin"]}
        s_waitcnt vmcnt(0)
        s_cbranch_scc1 {L}_ok
        {test}
        s_cbranch_scc0 {L}_ok
        s_sleep {self.cfg.get("sleep", 4)}
        s_branch {L}_spin
        """)

    def body(self, T, work, ntask, wrange=(4, 156), center=False, extra=None, vq=None, vq1=1, vq2=1, before=None):
        a = self.a; cfg = self.cfg; acc = ACC[T & 1]; LA = cfg["LA"]
        ngap = 160
        per = [[] for _ in range(ngap)]
        def cost(op):
            if not isinstance(op, str): return 3.0
            if op.startswith(("v_exp", "v_rcp")): return 2.0
            if op.startswith("buffer_"): return 3.0 * (1 + op.count(";"))
            return 1.0 + op.count(";")
        def is_bar(S):
            n1 = 10 * T + (S >> 2) + 1
            if (S & 3) != 1 or n1 >= 10 * ntask: return False
            return (n1 % 2 == 0) if cfg["bar2"] else True
        cap = []
        for g in range(ngap):
            c = cfg["cap"] - ([3, 3, 2, 0] if is_bar(g >> 2) else cfg["rpat"])[g & 3]
            if (g & 3) == cfg["dmagap"] or ((g & 3) == 0 and vq): c -= 2.5
            if (g & 3) == 3: c -= 1
            if (g & 3) == 3 and is_bar(g >> 2): c = 0
            cap.append(max(c, 0.0))
        if center:
            for st in range(cfg["nc"], 10):
                d, c = self.center_ops(st)
                base = 16 * (st - 1)
                per[base] += d
                cg = [base + x for x in (1, 3, 4, 5, 8, 9, 11, 12, 13)]
                for i, op in enumerate(c): per[cg[i * len(cg) // 16]].append(op)
        used = lambda g: sum(cost(o) for o in per[g])
        self.ends = {}
        for g00, fn in (extra or {}).items():
            if not isinstance(fn, list): per[g00].append(fn)
        for g00, fn in (extra or {}).items():
            if isinstance(fn, list):
                g = g00; room = 0.0
                for op in fn:
                    while room <= 0:
                        room = cap[g] - used(g); g += 1
                    per[g - 1].append(op); room -= cost(op)
                self.ends[g00] = g - 1
        for a_, b_ in (before or []): assert self.ends[a_] < b_, (a_, self.ends[a_], b_)
        if work:
            g0, g1 = wrange
            cap = [max(cap[g] - used(g), 0.0) for g in range(ngap)]
            scale = sum(cost(o) for o in work) / sum(cap[g0:g1])
            if cfg.get("verbose"): print("body", T, "work scale", scale)
            g = g0; room = cap[g] * scale
            for op in work:
                while room <= 0 and g < g1 - 1:
                    g += 1; room += cap[g] * scale
                per[g].append(op); room -= cost(op)
        vq = list(vq or [])
        for S in range(40):
            i, s = S >> 2, S & 3
            G = 40 * T + S; n = 10 * T + i
            rd = self.tr_reads(G + 2) if G + 2 < 40 * ntask else []
            if s == 2:
                k = 0
                while self.next <= n + LA and self.next < 10 * ntask and k < 2 and self.cands(("B", self.next)):
                    self.pend += self.dma_items(self.next); self.next += 1; k += 1
            for t in range(4):
                gap = 4 * S + t
                if t == 0: a(f"s_waitcnt lgkmcnt({8 if G + 1 < 40 * ntask else 0})")
                A = acc + 16 * t; w = WF + 16 * (G % NWB) + 4 * t; x = XB + 4 * S
                c = "0" if S == 0 else f"a[{A}:{A+15}]"
                a(f"v_mfma_f32_32x32x16_bf16 a[{A}:{A+15}], a[{w}:{w+3}], v[{x}:{x+3}], {c}")
                pat = [3, 3, 2, 0] if is_bar(S) else cfg["rpat"]
                for _ in range(pat[t]):
                    if rd: a(rd.pop(0))
                nld = sum(1 for p_ in self.pend if p_[0] == "ld")
                if self.pend and (t == cfg["dmagap"] or (nld > 4 and t == 0)): self.pop_ld()
                elif vq and ((t == 0 and S % vq1 == 0) or (t == cfg["dmagap"] and not self.pend and S % vq2 == 0)):
                    for j_, it_ in enumerate(vq):
                        if it_[0](gap):
                            vq.pop(j_)[1](); break
                if t == cfg["dmagap"] - 1: self.pop_ops()
                if T == cfg.get("markT", 2) and gap % 16 == 9: self.mark(gap // 16)
                for op in per[gap]:
                    if callable(op): op()
                    else: self.emit(op, f"E{T-1}")
                if t == 3 and is_bar(S):
                    last = n + 2 if cfg["bar2"] and n + 2 < 10 * ntask else n + 1
                    self.vm.wait(a, f"B{last}", 4)
                    a("s_barrier")
                    self.lastbar = n
            assert not rd
        return vq

    def att_loads(self, al=True):
        a = self.a
        out = []
        for kv in range(2):
            for i in range(5):
                def f(kv=kv, i=i):
                    assert not self.pend
                    a(f"s_add_u32 m0, s{sM0}, {(7+kv)*16384 + i*640 - 256*i}")
                    if i == 0: a(f"s_add_u32 s{sA+6}, s{sKV}, {(kv+1)*40960}")
                    a("s_mov_b32 exec_hi, 0xff")
                    self.vm.issue(a, f"buffer_load_dwordx4 v{vKa}, s[{SRDW}:{SRDW+3}], s{sA+6} offen offset:{256*i} sc1 lds", "KV")
                    a("s_mov_b32 exec_hi, -1")
                out.append(f)
        for i in range(5):
            out.append(lambda i=i: self.vm.issue(a, f"buffer_load_dwordx2 v[{XB+2*i}:{XB+2*i+1}], v{vQa}, s[{SRDW}:{SRDW+3}], s{sKV} offen offset:{256*i} sc1", "KV"))
        return out
    def attention(self, inter):
        a = self.a; vm = self.vm
        Q = XB; AK = 1; AK2 = 2; RW = 3; L = 4; P = 236; O = 216
        kvb = [[196, 200, 204, 208, 212], [106, 110, 252, 12, 26]]
        code = []; e = code.append
        def rd(n):
            m = n & 3
            if n == 4:
                e(f"v_add_u32 v{AK}, 16384, v{AK}"); e(f"v_add_u32 v{AK2}, 16384, v{AK2}")
            for i in range(5):
                b = kvb[n & 1][i]; o = (i % 3) * 80 + 16 - 4 * m
                e(f"ds_read2_b64 v[{b}:{b+3}], v{AK if i < 3 else AK2} offset0:{o} offset1:{o-2}")
        a(f"""
        s_add_u32 s{sA}, s{sM0}, {7*16384}
        v_add_u32 v{AK}, s{sA}, v{vL8}
        v_add_u32 v{AK2}, 1920, v{AK}
        s_mov_b32 s{sA+1}, 0x{C_SM:x}
        """)
        vm.wait(a, "KV", 15)
        self.mark(23)
        rd(0)
        for n in range(8):
            m = n & 3; B = kvb[n & 1]
            e("s_waitcnt lgkmcnt(0)")
            if n < 4:
                for i in range(10):
                    for h in range(2):
                        src = f"v{Q+i}, v{B[i>>1] + 2*h + (i&1)}"
                        e(f"v_dot2_f32_bf16 v{L+2*m+h}, {src}, 0" if i == 0 else f"v_dot2c_f32_bf16 v{L+2*m+h}, {src}")
                    if i == 0: rd(n + 1)
            else:
                if n + 1 < 8: rd(n + 1)
                for h in range(2):
                    w = 2 * m + h
                    for i in range(10):
                        for j in range(2):
                            src = f"v{B[i>>1] + 2*h + (i&1)}, v{P+2*w+j}"
                            e(f"v_dot2_f32_bf16 v{O+2*i+j}, {src}, 0" if w == 0 else f"v_dot2c_f32_bf16 v{O+2*i+j}, {src}")
            if n == 3:
                Lm = a.newlabel("am")
                blk = [f"s_cmp_lg_u32 s{sMb64}, 0", f"s_cbranch_scc1 {Lm}", f"v_mov_b32 v{P}, 0xce6e6b28"]
                for ww in range(1, 8):
                    blk += [f"v_cmp_gt_u32 vcc, {2*ww}, v0", "s_nop 1", f"v_cndmask_b32 v{L+ww}, v{L+ww}, v{P}, vcc"]
                blk += [f"{Lm}:"]
                e("\n".join(blk))
                e(f"v_max3_f32 v{P}, v{L}, v{L+1}, v{L+2}")
                e(f"v_max3_f32 v{P}, v{P}, v{L+3}, v{L+4}")
                e(f"v_max3_f32 v{P}, v{P}, v{L+5}, v{L+6}")
                e(f"v_max_f32 v{P}, v{P}, v{L+7}")
                e(f"v_mul_f32 v{P}, s{sA+1}, v{P}")
                for ww in range(8): e(f"v_fma_f32 v{L+ww}, v{L+ww}, s{sA+1}, -v{P}")
                for ww in range(8): e(f"v_exp_f32 v{L+ww}, v{L+ww}")
                e(f"v_pk_add_f32 v[{P}:{P+1}], v[{L}:{L+1}], v[{L+2}:{L+3}]")
                e(f"v_pk_add_f32 v[{P+2}:{P+3}], v[{L+4}:{L+5}], v[{L+6}:{L+7}]")
                e(f"v_pk_add_f32 v[{P}:{P+1}], v[{P}:{P+1}], v[{P+2}:{P+3}]")
                e(f"v_add_f32 v{P}, v{P}, v{P+1}")
                e(f"v_rcp_f32 v{P}, v{P}\ns_nop 0")
                for ww in range(4): e(f"v_pk_mul_f32 v[{L+2*ww}:{L+2*ww+1}], v[{L+2*ww}:{L+2*ww+1}], v[{P}:{P+1}] op_sel_hi:[1,0]")
                for ww in range(8):
                    e(f"v_cvt_pk_bf16_f32 v{P+2*ww}, v{L+ww}, 0")
                    e(f"v_cvt_pk_bf16_f32 v{P+2*ww+1}, 0, v{L+ww}")
        e(f"s_mul_i32 s{sA}, s{sWave}, 2560\ns_add_u32 s{sA}, s{sA}, {9*16384}\nv_add_u32 v{AK}, s{sA}, v{vL8}")
        e(f"s_mul_i32 s{sA}, s{sWave}, 3\ns_and_b32 s{sA}, s{sA}, 13\ns_min_u32 s{sA}, s{sA}, 5\ns_lshl_b32 s{sA}, s{sA}, 9\ns_add_u32 s{sA}, s{sA}, {9*16384}\nv_add_u32 v{AK2}, s{sA}, v{vL8}")
        e(f"v_lshrrev_b32 v{RW}, 4, v0"); e(f"v_mul_u32_u24 v{RW}, {20480-256}, v{RW}"); e(f"v_add_u32 v{RW}, v{RW}, v{vL16}")
        for i in range(5):
            e(f"v_cvt_pk_bf16_f32 v{Q+2*i}, v{O+4*i}, v{O+4*i+1}")
            e(f"v_cvt_pk_bf16_f32 v{Q+2*i+1}, v{O+4*i+2}, v{O+4*i+3}")
            e(f"ds_write_b64 v{AK}, v[{Q+2*i}:{Q+2*i+1}] offset:{512*i}")
        inter = list(inter); n = len(code); k = len(inter); j = 0
        for i, ins in enumerate(code):
            a(ins)
            while j < k and j < (i + 1) * k // (n - 10):
                inter[j](); j += 1
        self.mark(25)
        a("s_waitcnt lgkmcnt(0)\ns_barrier")
        for r in range(3): a(f"ds_read2st64_b64 v[{4+4*r}:{7+4*r}], v{AK2} offset0:{8*r} offset1:{8*r+2}")
        return [lambda r=r: (a(f"s_waitcnt lgkmcnt({2-r})"),
                             vm.issue(a, f"buffer_store_dwordx4 v[{4+4*r}:{7+4*r}], v{RW}, s[{SRDW}:{SRDW+3}], s{sOst2 if r == 2 else sOst} offen offset:{1024*r} sc1", "O")) for r in range(3)]

    BSLOT = ["a176", "a196", "a216", "a236", "v116", "v136", "v156", "v176", "v196", "v216", "a0", "a128", "a148", "v96"]
    ASLOT = ["a80", "a96", "a112", "v32", "v48", "v64", "v80"] * 2
    @staticmethod
    def rr(base, off, n=4):
        return f"{base[0]}[{int(base[1:])+off}:{int(base[1:])+off+n-1}]"
    def b_loads(self, k):
        a = self.a; out = []
        for u in range(5):
            def f(u=u):
                if u == 0: a(f"s_add_u32 s{sGb}, s{sBb if k < 12 else sBb2}, {k*5120}")
                if u == 4: a(f"s_add_u32 s{sGb}, s{sGb}, 4096")
                self.vm.issue(a, f"buffer_load_dwordx4 {self.rr(self.BSLOT[k], 4*u)}, v{vL16}, s[{SRDW}:{SRDW+3}], s{sGb} offen offset:{1024*(u&3)} sc1", f"PB{k}")
            out.append(f)
        return out
    def a_loads(self, k):
        a = self.a; out = []
        for i in range(4):
            def f(i=i):
                if i == 0: a(f"s_add_u32 s{sGa}, s{sAb if k < 12 else sAb2}, {k*4096}")
                self.vm.issue(a, f"buffer_load_dwordx4 {self.rr(self.ASLOT[k], 4*i)}, v{vA[i]}, s[{SRDW}:{SRDW+3}], s{sGa} offen sc1", f"PA{k}")
            out.append(f)
        return out
    def wo_loads(self, s):
        a = self.a; out = []
        for j in range(4 if s < 6 else 1):
            def f(j=j):
                assert not self.pend
                if j == 0 and self.owner[s] != ("WO", s): self.alloc(("WO", s), s)
                if self.m0 != ("WO", s):
                    if s < 6:
                        a(f"s_add_u32 m0, s{sM0}, {s*16384}\ns_add_u32 s{sA+7}, s{sWOb}, {s*16384}")
                    else:
                        a(f"s_lshr_b32 s{sA+7}, s{sM0}, 2\ns_add_u32 m0, s{sA+7}, {6*16384}\ns_sub_u32 s{sA+7}, s{sWOb}, s{sM0}\ns_add_u32 s{sA+7}, s{sA+7}, m0")
                self.m0mark = (len(a.lines), ("WO", s))
                self.vm.issue(a, f"buffer_load_dwordx4 v{vL16}, s[{SRDW}:{SRDW+3}], s{sA+7} offen offset:{1024*j} sc1 lds", "WO")
            out.append(f)
        return out
    @property
    def m0(self):
        mk = getattr(self, "m0mark", None)
        if not mk: return None
        for l in self.a.lines[mk[0]:]:
            if " m0," in l or f"s{sA+7}," in l.split(",")[0] + "," and l.strip().startswith("s_") or l.endswith(("_join:", "_two:")): return None
        return mk[1]

    def build(self):
        a = self.a; cfg = self.cfg; label = self.label
        vm = self.vm
        sX = sA + 9
        a.begin_kernel(label)
        a(f"""
        s_cmp_ge_u32 s2, 256
        s_cbranch_scc1 {label}_end
        s_load_dwordx2 s[4:5], s[0:1], 0
        s_load_dwordx2 s[{pQKV}:{pQKV+1}], s[0:1], 8
        s_load_dwordx2 s[{pWO}:{pWO+1}], s[0:1], 16
        s_load_dwordx4 s[{pG}:{pG+3}], s[0:1], 32
        s_load_dwordx2 s[{pDN}:{pDN+1}], s[0:1], 48
        s_load_dwordx2 s[6:7], s[0:1], 56
        s_load_dwordx2 s[{pWS}:{pWS+1}], s[0:1], 72
        """)
        self.stamp(0)
        if self.stamps: a(f"s_memrealtime s[{sTok}:{sTok+1}]")
        NL = cfg.get("codelines", 11)
        a(f"""
        s_getpc_b64 s[{sA}:{sA+1}]
        s_lshr_b32 s{sA+2}, s2, 3
        s_mul_i32 s{sA+2}, s{sA+2}, {NL*128}
        v_lshlrev_b32 v{vT}, 7, v0
        v_add_u32 v{vT}, s{sA+2}, v{vT}
        v_min_u32 v{vT}, {label}_end-{label}-128, v{vT}
        v_cmp_gt_u32 vcc, {NL}, v0
        s_and_saveexec_b64 s[{sA+2}:{sA+3}], vcc
        s_cbranch_execz {label}_nt
        global_load_dword v95, v{vT}, s[{sA}:{sA+1}]
        {label}_nt:
        s_mov_b64 exec, -1
        v_lshrrev_b32 v{vT}, 6, v0
        v_and_b32 v0, 63, v0
        s_and_b32 s{sA}, s2, 7
        v_readfirstlane_b32 s{sWave}, v{vT}
        """)
        if not cfg.get("map8"):
            a(f"""
            s_lshr_b32 s{sA+1}, s2, 3
            s_and_b32 s{sHalf}, s{sA}, 1
            s_lshr_b32 s{sA}, s{sA}, 1
            s_lshl_b32 s{sA}, s{sA}, 2
            s_lshr_b32 s{sA+2}, s{sA+1}, 3
            s_add_u32 s{sMb}, s{sA}, s{sA+2}
            s_and_b32 s{sJ}, s{sA+1}, 7
            s_lshl_b32 s{sRot}, s{sA+2}, 2
            s_lshr_b32 s{sRot}, {cfg["rotm"]}, s{sRot}
            s_and_b32 s{sRot}, s{sRot}, 15
            s_add_u32 s{sRot}, s{sRot}, s{sJ}
            s_lshr_b32 s{sA+3}, {cfg["rotx"]}, s{sA}
            s_and_b32 s{sA+3}, s{sA+3}, 15
            s_add_u32 s{sRot}, s{sRot}, s{sA+3}
            s_mul_i32 s{sA+3}, s{sHalf}, {cfg.get("roth", 0)}
            s_add_u32 s{sRot}, s{sRot}, s{sA+3}
            """)
        else:
            a(f"""
            s_lshr_b32 s{sA+2}, s2, 5
            s_and_b32 s{sMb}, s{sA}, 4
            s_lshl_b32 s{sMb}, s{sMb}, 1
            s_add_u32 s{sMb}, s{sMb}, s{sA+2}
            s_bfe_u32 s{sHalf}, s2, 0x10001
            s_bfe_u32 s{sA+1}, s2, 0x20003
            s_and_b32 s{sJ}, s2, 1
            s_lshl_b32 s{sJ}, s{sJ}, 2
            s_add_u32 s{sJ}, s{sJ}, s{sA+1}
            s_lshl_b32 s{sRot}, s{sA+1}, 2
            s_lshr_b32 s{sRot}, 0x7520, s{sRot}
            s_and_b32 s{sRot}, s{sRot}, 15
            s_lshl_b32 s{sA+3}, s{sA+2}, 2
            s_lshr_b32 s{sA+3}, {cfg.get("rot8", 0x43210210)}, s{sA+3}
            s_and_b32 s{sA+3}, s{sA+3}, 15
            s_add_u32 s{sRot}, s{sRot}, s{sA+3}
            s_lshr_b32 s{sA+3}, s{sA}, 2
            s_mul_i32 s{sA+3}, s{sA+3}, 5
            s_add_u32 s{sRot}, s{sRot}, s{sA+3}
            s_and_b32 s{sA+3}, s2, 1
            s_add_u32 s{sRot}, s{sRot}, s{sA+3}
            """)
        a(f"""
        s_lshl_b32 s{sM0}, s{sWave}, 12
        s_sub_u32 s{sA+3}, s{sRot}, 10
        s_min_u32 s{sRot}, s{sRot}, s{sA+3}
        s_lshl_b32 s{sX}, s{sRot}, 7
        s_lshl_b32 s{sA}, s{sMb}, 7
        s_lshl_b32 s{sA+1}, s{sWave}, 5
        s_add_u32 s{sA}, s{sA}, s{sA+1}
        s_mul_i32 s{sA}, s{sA}, 1280
        v_lshrrev_b32 v{vT}, 3, v0
        v_mul_u32_u24 v{vT}, 1280, v{vT}
        v_add_u32 v{vT}, s{sA}, v{vT}
        v_lshrrev_b32 v{vT+1}, 4, v0
        v_and_b32 v{vT+2}, 7, v0
        v_xor_b32 v{vT+1}, v{vT+1}, v{vT+2}
        v_xor_b32 v{vT+2}, 4, v{vT+1}
        v_lshl_add_u32 v{EP+4}, v{vT+1}, 4, v{vT}
        v_lshl_add_u32 v{EP+5}, v{vT+2}, 4, v{vT}
        v_add_u32 v{EP+5}, {8*1280-1024}, v{EP+5}
        v_add_u32 v{EP+6}, {2*(8*1280-1024)}, v{EP+4}
        v_add_u32 v{EP+7}, {2*(8*1280-1024)}, v{EP+5}
        s_mov_b32 s{SRDX+2}, {2048*1280}
        s_mov_b32 s{SRDX+3}, 0x20000
        s_mov_b32 m0, s{sM0}
        """)
        sS = sA + 7; sC = sA + 8
        setup = lines(f"""
        s_mov_b32 s{sOOB}, {OOB}
        s_lshl_b32 s{sS}, s{sHalf}, 3
        s_add_u32 s{sS}, s{sS}, s{sJ}
        v_lshrrev_b32 v{vRow}, 3, v0
        s_and_b32 s{sA}, s{sWave}, 1
        s_lshl_b32 s{sA}, s{sA}, 5
        v_add_u32 v{vRow}, s{sA}, v{vRow}
        v_bfe_u32 v{vT}, v0, 1, 2
        v_bfe_u32 v{vT+1}, v0, 4, 1
        s_and_b32 s{sA}, s{sWave}, 2
        v_or_b32 v{vT+1}, s{sA}, v{vT+1}
        v_xor_b32 v{vT}, v{vT}, v{vT+1}
        v_and_b32 v{vT+1}, 1, v0
        v_lshlrev_b32 v{vT+1}, 4, v{vT+1}
        v_lshl_add_u32 v{vCol}, v{vT}, 5, v{vT+1}
        s_add_u32 s{sC}, s{sS}, {cfg["qsh"]}
        s_and_b32 s{sC}, s{sC}, 15
        """) + self.q_params(PB[0], sC) + self.switch_ops(PB[0])
        ptr = [o for o in setup if f"s{pQKV}" in o or f"s{pQKV+1}" in o]
        for o in setup:
            if o not in ptr: self.emit(o)
        a(f"s_waitcnt lgkmcnt(0)\ns_mov_b32 s{SRDX}, s4\ns_mov_b32 s{SRDX+1}, s5")
        if self.stamps: a(f"s_mov_b32 s1, s{sTok}")
        setup = ptr + ([f"s_add_u32 s{pWS}, s{pWS}, {cfg['wsoff']}; s_addc_u32 s{pWS+1}, s{pWS+1}, 0"] if cfg.get("wsoff") else []) + lines(f"""
        s_add_u32 s{sA}, s{pWS}, {WS_EPOCH}; s_addc_u32 s{sA+1}, s{pWS+1}, 0
        s_load_dwordx2 s[{sTok}:{sTok+1}], s[{sA}:{sA+1}], 0
        """)
        n_first = len(setup)
        setup += lines(f"""
        s_mov_b32 s{sOne}, 0x3f803f80
        s_mov_b32 s{sLo}, 0x00003f80
        s_mov_b32 s{sHi}, 0x3f800000
        v_and_b32 v{vT}, 31, v0
        v_lshlrev_b32 v{vT+1}, 7, v{vT}
        v_add_u32 v{vT+1}, s{sM0}, v{vT+1}
        v_bfe_u32 v{vT}, v0, 1, 3
        v_lshrrev_b32 v{vT+2}, 5, v0
        v_xor_b32 v{vT}, v{vT}, v{vT+2}
        """)
        XA = EP + 8
        for s in range(4):
            setup.append(f"v_xor_b32 v{vT+2}, {2*s}, v{vT}")
            setup.append(f"v_lshl_add_u32 v{XA+s}, v{vT+2}, 4, v{vT+1}")
            setup.append(f"v_add_u32 v{XA+4+s}, 0x10000, v{XA+s}")
            setup.append(f"v_add_u32 v{XA+8+s}, 0x20000, v{XA+s}")
        setup += lines(f"""
        v_mov_b32 v{vSum}, 0
        v_mov_b32 v{vSq}, 0
        v_lshlrev_b32 v{vL16}, 4, v0
        v_lshlrev_b32 v{vL8}, 3, v0
        v_bfe_u32 v{vT}, v0, 4, 1
        v_bfe_u32 v{vT+1}, v0, 2, 2
        v_lshrrev_b32 v{vT+2}, 5, v0
        v_lshl_add_u32 v{vT+2}, v{vT+2}, 3, v{vT+1}
        v_lshlrev_b32 v{vT+2}, 7, v{vT+2}
        v_lshl_add_u32 v{vT+2}, v{vT}, 13, v{vT+2}
        v_and_b32 v{EP}, 3, v0
        v_lshl_add_u32 v{vT+2}, v{EP}, 3, v{vT+2}
        v_lshrrev_b32 v{vT+1}, 1, v{vT+1}
        v_lshl_add_u32 v{vT}, v{vT}, 1, v{vT+1}
        """)
        for t in range(4):
            setup.append(f"v_xor_b32 v{vT+1}, {t}, v{vT}")
            setup.append(f"v_lshl_add_u32 v{vTr+t}, v{vT+1}, 5, v{vT+2}")
            setup.append(f"v_add_u32 v{vTr+4+t}, 0x10000, v{vTr+t}")
            setup.append(f"v_add_u32 v{vTr+8+t}, 0x20000, v{vTr+t}")
        setup += lines(f"""
        v_bfe_u32 v{vT}, v0, 4, 1
        v_lshlrev_b32 v{vT}, 10, v{vT}
        v_lshrrev_b32 v{vT+1}, 5, v0
        v_lshl_add_u32 v{vT}, v{vT+1}, 8, v{vT}
        v_and_b32 v{vT+1}, 15, v0
        v_lshl_add_u32 v{vSF}, v{vT+1}, 4, v{vT}
        s_mov_b32 s{SRDW}, s{pWS}
        s_mov_b32 s{SRDW+1}, s{pWS+1}
        s_mov_b32 s{SRDW+2}, {WS_SIZE}
        s_mov_b32 s{SRDW+3}, 0x20000
        s_lshl_b32 s{sMb64}, s{sMb}, 1
        s_add_u32 s{sMb64}, s{sMb64}, s{sHalf}
        s_lshl_b32 s{sFlag}, s{sMb}, 4
        s_add_u32 s{sFlag}, s{sFlag}, s{sS}
        s_lshl_b32 s{sFlag}, s{sFlag}, 2
        s_add_u32 s{sFlag}, s{sFlag}, s{sWave}
        s_lshl_b32 s{sFlag}, s{sFlag}, 3
        s_add_u32 s{sFlag}, s{sFlag}, {WS_FLAG}
        s_mul_i32 s{sC}, s{sHalf}, 3
        s_add_u32 s{sC}, s{sC}, s{sJ}
        s_add_u32 s{sC}, s{sC}, 16
        s_add_u32 s{sA}, s{sS}, 5
        s_and_b32 s{sA}, s{sA}, 15
        s_cmp_lt_u32 s{sA}, 11; s_cselect_b32 s{sC}, s{sC}, 31; s_cselect_b32 s{sThree}, 1, 0
        """) + self.f_params(PB[1], sS) + self.f_params(PB[2], sC) + self.pack_params() + lines(f"""
        v_lshrrev_b32 v{vT}, 5, v0
        v_lshlrev_b32 v{vT}, 4, v{vT}
        v_bfe_u32 v{vT+1}, v0, 4, 1
        v_lshl_add_u32 v{vT}, v{vT+1}, 2, v{vT}
        v_bfe_u32 v{vT+1}, v0, 2, 2
        v_add_u32 v{vT}, v{vT}, v{vT+1}
        v_lshlrev_b32 v{vT}, 7, v{vT}
        v_and_b32 v{vT+2}, 3, v0
        v_lshl_add_u32 v{vT}, v{vT+2}, 3, v{vT}
        v_add_u32 v{vT}, s{sM0}, v{vT}
        v_lshrrev_b32 v{vT+1}, 1, v{vT+1}
        s_and_b32 s{sA+2}, s{sWave}, 2
        v_or_b32 v{vT+1}, s{sA+2}, v{vT+1}
        """)
        for ch in range(4):
            setup.append(f"v_xor_b32 v{PR+20+ch}, {ch}, v{vT+1}")
            setup.append(f"v_lshl_add_u32 v{PR+20+ch}, v{PR+20+ch}, 5, v{vT}")
        setup += [f"v_mul_u32_u24 v{PR+16}, 1280, v{vRow}", f"v_add_u32 v{PR+16}, v{vCol}, v{PR+16}"]
        setup += [f"v_add_u32 v{PR+16+j}, {j*(8*1280-1024)}, v{PR+16}" for j in range(1, 4)]
        setup += lines(f"""
        s_lshl_b32 s{sA}, s2, 1
        s_and_b32 s{sA+1}, s{sWave}, 1
        s_add_u32 s{sA}, s{sA}, s{sA+1}
        s_mul_i32 s{sA+1}, s{sA}, 20
        v_add_u32 v{vT}, s{sA+1}, v0
        v_lshrrev_b32 v{vT+1}, 4, v{vT}
        v_mul_u32_u24 v{vT+1}, {3456-2048}, v{vT+1}
        v_lshl_add_u32 v94, v{vT}, 7, v{vT+1}
        s_mul_i32 s{sA+1}, s{sA}, 14
        v_add_u32 v{vT}, s{sA+1}, v0
        v_mul_u32_u24 v{vT+1}, {(1<<20)//11+1}, v{vT}
        v_lshrrev_b32 v{vT+1}, 20, v{vT+1}
        v_mul_u32_u24 v{vT+1}, 2048, v{vT+1}
        v_lshl_add_u32 v91, v{vT}, 7, v{vT+1}
        s_lshr_b32 s{sDuty}, s2, 3
        s_and_b32 s{sDuty}, s{sDuty}, 3
        """) + self.p2_params()
        if cfg.get("verbose"): print("setup ops", len(setup), "first", n_first)
        order = list(cfg.get("order", ["X0", "X1", "X2", "X3", "X4", "X5", "X6", "X7", "X8", "X9", "B", "B", "B", "B"]))
        def queue_next():
            o = order.pop(0)
            if o[0] == "T":
                r0, n = {"Ta": (0, 8), "Tb": (256, 12), "Tc": (0, 4), "Td": (128, 16)}[o]
                self.emit(f"s_lshl_b32 s{sA+6}, s{sMb}, 1; s_and_b32 s{sA+5}, s{sWave}, 1; s_add_u32 s{sA+6}, s{sA+6}, s{sA+5}; s_mul_i32 s{sA+6}, s{sA+6}, {n}; "
                          f"s_lshl_b32 s{sA+5}, s{sRot}, 6; s_add_u32 s{sA+6}, s{sA+6}, s{sA+5}; s_add_u32 s{sA+6}, s{sA+6}, {r0}; v_add_u32 v90, s{sA+6}, v0; "
                          f"v_subrev_u32 v89, 640, v90; v_min_u32 v90, v89, v90; v_mul_u32_u24 v90, 3840, v90; s_mov_b64 exec, {(1<<n)-1}; "
                          f"buffer_load_dword v90, v90, s[{PB[0]}:{PB[0]+3}], s{PB[0]+5} offen; s_mov_b64 exec, -1", "T")
                if not order: return
                o = order.pop(0)
            if o == "B":
                self.pend += self.dma_items(self.next); self.next += 1
            else:
                i = int(o[1:]); sl = self.alloc(("X", i))
                if i: self.pend.append(("op", f"s_add_u32 m0, s{sM0}, {sl*16384}; s_add_u32 s{sX}, s{sX}, 128; s_cmp_eq_u32 s{sX}, 1280; s_cselect_b32 s{sX}, 0, s{sX}"))
                self.pend += [("ld", f"buffer_load_dwordx4 v{EP+4+j}, s[{SRDX}:{SRDX+3}], s{sX} offen offset:{1024*j} lds", f"X{i}") for j in range(4)]
        XW = cfg["XW"]; spl = cfg.get("spl", 12); done = 0
        for g in range(XW):
            if order[0] == "B": assert done >= n_first
            queue_next()
            for j in range(4):
                self.pop_ld()
                for o in setup[done:done + spl]: self.emit(o)
                done += spl
        for o in setup[done:]: self.emit(o)
        self.stamp(1, True)
        def stats(i, j):
            for r in range(4 * j, 4 * j + 4):
                x = XB + 16 * i + r
                a(f"v_dot2c_f32_bf16 v{vSum}, s{sOne}, v{x}")
                a(f"v_dot2c_f32_bf16 v{vSq}, v{x}, v{x}")
        for i in range(10):
            vm.wait(a, f"X{i}", 4)
            if i in (0, 2, 4, 6, 8): self.stamp(2 + i // 2, True)
            sl = self.slot[("X", i)]
            for s in range(4):
                x = XB + 4 * (4 * i + s)
                a(f"ds_read_b128 v[{x}:{x+3}], v{XA+4*(sl>>2)+s} offset:{(sl&3)*16384}")
            if order and (order[0] != "B" or self.next < cfg["PB"]): queue_next()
            for j in range(4):
                if self.pend: self.pop_ld()
                if i: stats(i - 1, j)
            a("s_waitcnt lgkmcnt(0)")
            self.xdone.add(("X", i))
        a(f"s_xor_b32 s{sTok+1}, s{sTok+1}, 0x{TOKX:x}\ns_add_u32 s{sTok}, s{sTok}, 1")
        for j in range(4): stats(9, j)
        self.stamp(1)
        a(f"""
        s_mov_b32 s{sA}, 0x3acccccd
        s_nop 1
        v_mov_b32 v{vT}, v{vSum}
        v_mov_b32 v{vR}, v{vSq}
        s_nop 0
        v_permlane32_swap_b32 v{vSum}, v{vT}
        v_permlane32_swap_b32 v{vSq}, v{vR}
        s_nop 0
        v_add_f32 v{vSum}, v{vSum}, v{vT}
        v_add_f32 v{vSq}, v{vSq}, v{vR}
        v_mul_f32 v{vSum}, s{sA}, v{vSum}
        v_mul_f32 v{vSq}, s{sA}, v{vSq}
        v_cvt_pk_bf16_f32 v{vNegM}, 0, -v{vSum}
        v_fma_f32 v{vSq}, -v{vSum}, v{vSum}, v{vSq}
        """)
        NC = cfg["nc"]
        def first_frags():
            self.stamp(8, True)
            vm.wait(a, "B1" if cfg["bar2"] else "B0", 4)
            a("s_barrier")
            self.stamp(7, True)
            for G in range(2):
                for r in self.tr_reads(G): a(r)
        for st_ in range(NC):
            d0, c0 = self.center_ops(st_)
            if st_ == NC - 1:
                while order or self.pend:
                    if not self.pend: queue_next()
                    self.pop_ld()
                for op in d0: a(op)
                first_frags()
                for op in c0: a(op)
            else:
                if order and not self.pend: queue_next()
                for j, op in enumerate(d0 + c0):
                    a(op)
                    if j % 12 == 0 and self.pend: self.pop_ld()
        self.stamp(2)
        extra = Uniq()
        extra[130] = lines(f"""
            v_max_f32 v{vSq}, 0, v{vSq}
            v_cvt_pk_bf16_f32 v{vR}, 0, v{vSq}
            v_add_f32 v{vR}, 0x3727c5ac, v{vR}
            v_cvt_pk_bf16_f32 v{vR}, 0, v{vR}
            v_sqrt_f32 v{vR}, v{vR}; s_nop 0
            v_cvt_pk_bf16_f32 v{vD2}, 0, v{vR}
            v_rcp_f32 v{vR}, v{vD2}
            v_mul_f32 v{vD2}, v{vD2}, v{vD2}
            v_mul_f32 v{vC1}, 0x{NLOG2E:x}, v{vR}
            """)
        def pack_issue():
            sl = self.alloc("P")
            self.pend += [("op", f"s_add_u32 m0, s{sM0}, {sl*16384}")]
            self.pend += [("ld", f"buffer_load_dwordx4 v{PR+16+j}, s[{PK}:{PK+3}], s{PK+4} offen offset:{1024*j} lds", "PK") for j in range(4)]
        pk0 = cfg["pk0"]; pk1 = cfg["pk1"]
        extra[pk0] = pack_issue
        extra[pk0 + 1] = [lambda ch=ch: a(f"v_add_u32 v{PR+20+ch}, {self.slot['P']*16384}, v{PR+20+ch}") for ch in range(4)]
        rdl = [lambda: vm.wait(a, "PK", 4)]
        for ch in range(4):
            rdl.append(f"ds_read_b64_tr_b16 v[{PR+4*ch}:{PR+4*ch+1}], v{PR+20+ch}")
            rdl.append(f"ds_read_b64_tr_b16 v[{PR+4*ch+2}:{PR+4*ch+3}], v{PR+20+ch} offset:1024")
        extra[pk1] = rdl
        stl = []
        for ch in range(4):
            stl.append(lambda ch=ch: (self.xdone.add("P"), vm.issue(a, f"buffer_store_dwordx4 v[{PR+4*ch}:{PR+4*ch+3}], v{vL16}, s[{SRDW}:{SRDW+3}], s{PK+5+ch} offen sc1", "I")))
        extra[pk1 + 24] = [lambda: [f() for f in stl]] if cfg['stb'] > 1 else stl
        def touch(which, duty=None):
            def f():
                r, n, off = ((94, 20, 0), (91, 14, 2048))[which]
                ins = f"buffer_load_dword v{r}, v{r}, s[{PB[1]}:{PB[1]+3}], 0 offen offset:{off}"
                if duty is None:
                    a(f"s_mov_b64 exec, {(1 << n) - 1}"); vm.issue(a, ins, "T"); a("s_mov_b64 exec, -1")
                else:
                    L = a.newlabel("du")
                    a(f"s_cmp_lg_u32 s{sDuty}, {duty}\ns_cbranch_scc1 {L}\ns_mov_b64 exec, {(1 << n) - 1}\n{ins}\ns_mov_b64 exec, -1\n{L}:")
            return f
        for which, key in ((0, "tch"), (1, "tch2")):
            g_ = cfg[key]
            if isinstance(g_, list):
                for d_, gg in enumerate(g_): extra[gg] = touch(which, d_)
            elif g_ >= 0: extra[g_] = touch(which)
        if cfg["pub1"] < 160: extra[cfg["pub1"]] = lambda: self.publish(1, ["I"])
        self.body(0, None, 3, center=True, extra=extra, before=[(pk0 + 1, pk1), (pk1, pk1 + 16), (pk1 + 24, cfg["pub1"])])
        self.stamp(3)
        self.vPub = 86
        extra = Uniq()
        if cfg["pub1"] >= 160: extra[cfg["pub1"] - 160] = lambda: self.publish(1, ["I"])
        extra[cfg["pub2"]] = lambda: self.publish(2, ["E0"])
        GR = 88
        def epoch():
            L = a.newlabel("ep")
            a(f"""
            s_or_b32 s{sA+8}, s2, s{sWave}
            s_cbranch_scc1 {L}
            v_mov_b32 v{GR}, s{sTok}
            s_mov_b32 s{sA+8}, {WS_EPOCH}
            s_mov_b64 exec, 1
            buffer_store_dword v{GR}, off, s[{SRDW}:{SRDW+3}], s{sA+8}
            s_mov_b64 exec, -1
            {L}:
            """)
        gc = cfg["gck"]
        assert gc % 16 == 6 and (not cfg["bar2"] or (gc // 16) % 2 == 1)
        gb = gc + 2
        extra[gb + 1] = epoch
        for j in range(4):
            extra[gc - 42 + 4 * j] = lambda j=j: self.flag_load(GR + 2 * j, sFlG, f"G{j}", 1, 512 * j)
            extra[gc - 9 + [0, 2, 4, 8][j]] = lambda j=j: self.flag_check(GR + 2 * j, sFlG, f"G{j}", 1, off=512 * j)
        after = lambda g0: (lambda gap: gap >= g0)
        vq = [(after(gb), f) for k in range(4) for f in self.b_loads(k)]
        rest1 = self.body(1, self.epi_q(ACC[0], PB[0] + 7), 3, wrange=(4, cfg["w1"]), extra=extra, vq=vq, vq1=cfg["b1vq"])
        while self.pend: self.pop_ld()
        self.stamp(4)
        vm_split = list(vm.q)
        a(f"s_cmp_eq_u32 s{sThree}, 0")
        a(f"s_cbranch_scc1 {label}_two")
        self.vPub = 62
        pre = []
        def P(fn): pre.append(fn); return fn
        extra = Uniq()
        vq = [(after(0), P(f)) for _, f in rest1]
        st = {"q": False}
        q_l0 = lambda: self.flag_load(XB, sFl0, "Q0", 2)
        q_l1 = lambda: self.flag_load(XB + 2, sFl1, "Q1", 2)
        q_c0 = lambda: self.flag_check(XB, sFl0, "Q0", 2)
        def q_c1():
            self.flag_check(XB + 2, sFl1, "Q1", 2); st["q"] = True
        qc = cfg["qck"]
        extra[qc - 33] = q_l0; extra[qc - 29] = q_l1; extra[qc - 1] = q_c0; extra[qc + 3] = q_c1
        attl = []
        lastkv = [-100]
        def att_ok(gap, j):
            if not st["q"] or gap - lastkv[0] < cfg["kvgap"]: return False
            attl or attl.extend(self.att_loads(False))
            if j < 10:
                if self.next < 30 or self.pend: return False
                if "K" not in self.slot:
                    if not (self.free(7) and self.free(8)): return False
                    self.alloc("K", 7); self.alloc("V", 8)
            lastkv[0] = gap
            return True
        bq = []
        for k in range(4, 8):
            bq += [(after(4 * (5 * (k - 4) + 10)), f) for f in self.b_loads(k)]
        for _, f in bq[:10]: P(f)
        P(q_l0); P(q_l1)
        for _, f in bq[10:]: P(f)
        P(q_c0); P(q_c1)
        pre.append("att")
        for j in list(range(10, 15)) + list(range(10)): vq.append((lambda gap, j=j: att_ok(gap, j), lambda j=j: attl[j]()))
        vq += bq
        wq = []
        for s in range(7):
            ok = lambda gap, s=s: self.next >= 30 and not self.pend and (self.owner[s] == ("WO", s) or self.free(s))
            wq += [(ok, f) for f in self.wo_loads(s)]
        vq += wq
        extra[cfg["pub3"]] = lambda: self.publish(3, ["E1"])
        rest = self.body(2, self.epi_f(ACC[1], PB[1] + 7), 3, wrange=(4, cfg["w2"]), extra=extra, vq=vq, vq1=cfg["vq1"], vq2=cfg["vq2"])
        self.stamp(5)
        wfs = [f for _, f in wq]
        late = [f for c_, f in rest if f not in wfs] + [P(f) for k in (11, 12) for f in self.b_loads(k)]
        late += [f for c_, f in rest if f in wfs and c_(160)]
        ntail = cfg["ntail"]
        assert 15 - vm.q.count("KV") <= ntail and "K" in self.slot
        post = late[ntail:]; late = late[:ntail]
        wrest = [f for c_, f in rest if f in wfs and f not in late]
        post = [f for f in post if f not in wfs]
        pre[:] = [f for f in pre if f not in post]
        for f in wfs:
            if f not in wrest: P(f)
        def tail(ops, inter, tag):
            inter = list(inter); n = len(ops); k = len(inter); j = 0
            for i, op in enumerate(ops):
                self.emit(op, tag)
                while j < k and j < (i + 1) * k // n:
                    inter[j](); j += 1
        a("s_nop 5")
        tail(self.epi_f_tail(ACC[0], PB[2] + 7), late, "E2")
        if cfg.get("verbose"): print("tail loads", len(late), "after join: B loads", len(post), "wo loads", len(wrest))
        self.lastbar = 100
        self.alloc("O", 9)
        a.label(f"{label}_join")
        self.stamp(6)
        self.vPub = 20
        self.flag_load(vFl, sFl0, "F3", 3)
        a(f"s_lshr_b32 s{sA}, s{sM0}, 2\nv_add_u32 v{vA[0]}, s{sA}, v{vL16}")
        for i in range(1, 4): a(f"v_add_u32 v{vA[i]}, 1024, v{vA[i-1]}\nv_and_b32 v{vA[i]}, 4095, v{vA[i]}")
        a("s_barrier")
        def xaddr(j, d, t1, t2):
            return [f"v_add_u32 v{t1}, {64*j}, v0", f"v_mul_u32_u24 v{t2}, {(1<<16)//10+1}, v{t1}", f"v_lshrrev_b32 v{t2}, 16, v{t2}",
                    f"v_mul_u32_u24 v{t2}, {1280-160}, v{t2}", f"v_lshl_add_u32 v{t2}, v{t1}, 4, v{t2}", f"v_add_u32 v{d}, s{sXo}, v{t2}"]
        def xl(j):
            for o in xaddr(j, 114, 114, 115): a(o)
            a(f"s_mul_i32 s{sA+2}, s{sWave}, 2560\ns_add_u32 m0, s{sA+2}, {102400 + 1024*j}")
            a("s_mov_b32 exec_hi, 0" if j == 2 else "s_nop 0")
            vm.issue(a, f"global_load_lds_dwordx4 v114, s[4:5]", "XO")
            if j == 2: a("s_mov_b32 exec_hi, -1")
        post = post + (self.b_loads(10) if 'B10' not in cfg['forder'] else [])
        free_ = [lambda j=j: xl(j) for j in range(3)] + post + wrest
        n1 = cfg["natt1"]; n2 = cfg["natt2"]
        inter = free_[:n1] + [lambda: self.flag_check(vFl, sFl0, "F3", 3)]
        al = free_[n1:]
        aa = [f for k in range(7) for f in self.a_loads(k)]
        inter += aa[:n2]
        inter.insert(min(len(inter), cfg["pub4"]), lambda: self.publish(4, ["E2"]))
        ost = self.attention(inter)
        self.stamp(8)
        XR = 4; vX = 14; vW = 25; vRd = 28; vXo = [1, 2, 29]
        KF = cfg["kf"]
        wl = [f for f in al if f not in post]
        Q_ = [(0, f) for f in ost + aa[n2:] + [f for f in al if f in post]]
        grp = lambda e, fs: [(e, f) for f in fs]
        A_ = lambda k: grp(max(k - 6, KF if k >= 8 else 0), self.a_loads(k))
        B_ = lambda k: grp(0, self.b_loads(k))
        for it in cfg["forder"]:
            Q_ += A_(int(it[1:])) if it[0] == "A" else B_(int(it[1:])) if it[0] == "B" else grp(0, wl) if it == "W" else grp(5, ["x0", "x1", "x2"])
        OA = 176
        def wo_reads(T):
            b = WR[T % 6]
            return [f"ds_read_b128 v[{b+4*u}:{b+4*u+3}], v{vL16 if T < 12 else 15} offset:{(T % 12)*5120 + u*1024}" for u in range(5)]
        def o_load(T):
            def f():
                if T % 4 == 0: a(f"s_add_u32 s{sGb}, s{sOld}, {T*1024}")
                vm.issue(a, f"buffer_load_dwordx4 a[{OA+4*T}:{OA+4*T+3}], v{vL16}, s[{SRDW}:{SRDW+3}], s{sGb} offen offset:{1024*(T&3)} sc1", f"PO{T//2}")
            return f
        KB = cfg["kbar"]; KO = cfg["ko"]; ns = cfg["nside"]; NOF = cfg["no_f"]; KX = cfg["kx"]
        R = 32; FO = 236; SQ = [92, 4, 8, 16, 20]; XU = 216
        WR = [116, 136, 156, 176, 196, 96]
        lq = LQ()
        def mf(k, i, u):
            t_ = (i * 5 + u) * 4
            d = f"a[{t_}:{t_+3}]" if i else f"v[{FO+t_}:{FO+t_+3}]"
            a(f"v_mfma_f32_16x16x32_bf16 {d}, {self.rr(self.BSLOT[k], 4*u)}, {self.rr(self.ASLOT[k], 4*i)}, {'0' if k == 0 else d}")
        def wait_ab(k):
            assert vm.q.count(f"PB{k}") == 5 and vm.q.count(f"PA{k}") == 4
            vm.wait(a, f"PA{k}" if vm.last(f"PA{k}") > vm.last(f"PB{k}") else f"PB{k}")
        olist = [o_load(T) for T in range(20)]
        for k in range(KX):
            if k % 2 == 0: self.mark(10 + k // 2)
            wait_ab(k)
            side = []
            if k == KF - 2: side += [lambda: self.flag_load(vFl, sFl0, "F4", 4)]
            if k == cfg.get("kp5", 3): side += [lambda: self.publish(5, ["O"])]
            if k == KF: self.flag_check(vFl, sFl0, "F4", 4)
            if k == KO - 2: side += [lambda: self.flag_load(vFl, sFl0, "F5", 5)]
            if k == KO: self.flag_check(vFl, sFl0, "F5", 5, half=True)
            room = ns[k] - len(side)
            for it in list(Q_):
                if room > 0 and it[0] <= k:
                    Q_.remove(it); room -= 1
                    side.append((lambda j=int(it[1][1]): xl(j)) if isinstance(it[1], str) else it[1])
            if k >= KO and not Q_ and room > 0: side += olist[:room]; olist = olist[room:]
            if k == 4:
                for j in range(3): side += [lambda o=o: a(o) for o in xaddr(j, vXo[j], 3, 14)]
            if k == 5:
                side += [lambda o=o: a(o) for o in lines(f"""
                    v_and_b32 v3, 15, v0
                    v_mul_u32_u24 v{vX}, 160, v3
                    v_lshrrev_b32 v3, 4, v0
                    v_lshl_add_u32 v{vX}, v3, 3, v{vX}
                    v_add_u32 v15, {12*5120}, v{vL16}
                    s_mov_b32 s{sA}, 0x{NLOG2E:x}
                    s_mov_b32 s{sA+1}, 0xffff0000
                    """)]
            if k == 6:
                for i in range(4):
                    d = vRd if i == 0 else vW + i - 1
                    side += [lambda o=o: a(o) for o in (f"v_lshrrev_b32 v3, 10, v{vA[i]}", f"v_mul_u32_u24 v3, 15360, v3",
                                                         f"v_add_u32 v3, {102400 + max(i-1, 0)*5120}, v3", f"v_add_u32 v{d}, v3, v{vL16}")]
            if k == KB - 1:
                side += [lambda: (vm.wait(a, "XO", 3), a(f"s_add_u32 s{sA+2}, s{sA+2}, 102400\nv_add_u32 v3, s{sA+2}, v{vX}"))]
                side += [lambda u=u: lq.issue(a, f"ds_read_b64 v[{XR+2*u}:{XR+2*u+1}], v3 offset:{32*u}", "XL") for u in range(5)]
            if k == KB:
                lq.wait(a, "XL"); vm.wait(a, "WO", 25); a("s_barrier")
            nsd = len(side); j = 0
            for i in range(4):
                for u in range(5):
                    mf(k, i, u)
                    while j < nsd and j < (i * 5 + u + 1) * nsd // 20:
                        side[j](); j += 1
        assert not Q_, len(Q_)
        assert KB < KX and KO < KX and KX >= 10
        self.mark(16)
        nk = 14 - KX
        base_side = olist[:max(NOF - (20 - len(olist)), 0)]; olist = olist[len(base_side):]
        ol_ = base_side
        base_side = [lambda r=r, T=T: lq.issue(a, r, f"W{T}") for T in range(5) for r in wo_reads(T)]
        base_side += [lambda j=j: a(f"v_and_b32 v{XU+j}, s{sA+1}, v{XR+(j>>1)}" if j & 1 else f"v_lshlrev_b32 v{XU+j}, 16, v{XR+(j>>1)}") for j in range(20)]
        for j_, f_ in enumerate(ol_): base_side.insert(j_ * (45 + len(ol_)) // len(ol_), f_)
        nb_ = len(base_side); jb = 0; m = 0
        for ri, i in enumerate((1, 2, 3, 0)):
            pw = []
            if ri:
                ip = (1, 2, 3)[ri - 1]
                pw = [f"ds_write_b128 v{vW+ip-1}, a[{(ip*5+u)*4}:{(ip*5+u)*4+3}] offset:{u*1024}" for u in range(5)]
            mm = 0
            for k in range(KX, 14):
                if ri == 0: wait_ab(k)
                for u in range(5):
                    mf(k, i, u); m += 1; mm += 1
                    if pw and mm >= 4 and (mm - 4) * 5 >= (5 - len(pw)) * (5 * nk - 4): lq.issue(a, pw.pop(0), "PW")
                    else:
                        while jb < nb_ and jb < m * nb_ // (20 * nk):
                            base_side[jb](); jb += 1
            for w_ in pw: lq.issue(a, w_, "PW")
        while jb < nb_:
            base_side[jb](); jb += 1
        self.stamp(7)
        work = [("f", f) for f in olist[:2]] + [("bar",)]
        for j in range(15): work.append(("l", f"ds_read_b128 v[{R+4*j}:{R+4*j+3}], v{vRd} offset:{j*1024}", "PR"))
        work += [("f", f) for f in olist[2:]]
        pk2 = lambda op, d, x, y: "\n".join(f"{op} v[{d+2*j}:{d+2*j+1}], v[{x+2*j}:{x+2*j+1}], {y(j)}" for j in range(10))
        work.append(("v", f"v_sub_u32 v3, v{vRd}, v{vL16}")); work.append(("v", f"v_add_u32 v3, v3, v{vX}"))
        work.append(("lw", "PR"))
        work.append(("v", "\n".join([pk2("v_pk_add_f32", FO, FO, lambda j: f"v[{R+2*j}:{R+2*j+1}]"),
                                     pk2("v_pk_add_f32", R+20, R+20, lambda j: f"v[{R+40+2*j}:{R+40+2*j+1}]"),
                                     pk2("v_pk_add_f32", FO, FO, lambda j: f"v[{R+20+2*j}:{R+20+2*j+1}]"),
                                     pk2("v_pk_mul_f32", R, FO, lambda j: f"s[{sA}:{sA+1}] op_sel_hi:[1,0]")])))
        for j in range(20): work.append(("v", f"v_exp_f32 v{R+j}, v{R+j}"))
        for j in range(20): work.append(("v", f"v_add_f32 v{R+j}, 1.0, v{R+j}"))
        for j in range(20): work.append(("v", f"v_rcp_f32 v{R+j}, v{R+j}"))
        def do(wk):
            if wk[0] == "v": a(wk[1])
            elif wk[0] == "f": wk[1]()
            elif wk[0] == "l": lq.issue(a, wk[1], wk[2])
            elif wk[0] == "lw": lq.wait(a, wk[1])
            elif wk[0] == "bar":
                lq.wait(a, "PW"); self.mark(20); a("s_barrier"); self.mark(21)
        nw = len(work); done = 0; m = 0
        for T in range(20):
            if T % 2 == 0: vm.wait(a, f"PO{T//2}", 2)
            if T in (0, 10, 16): self.mark({0: 17, 10: 18, 16: 19}[T])
            if T % 2 == 0: lq.wait(a, f"W{T+1}")
            rd = wo_reads(T + 5) if T + 5 < 20 else []
            b = WR[T % 6]
            for u in range(5):
                d = f"v[{SQ[u]}:{SQ[u]+3}]"
                a(f"v_mfma_f32_16x16x32_bf16 {d}, v[{b+4*u}:{b+4*u+3}], a[{OA+4*T}:{OA+4*T+3}], {'0' if T == 0 else d}")
                m += 1
                if rd: lq.issue(a, rd.pop(0), f"W{T+5}")
                tgt = m * nw * cfg.get("sw", 80) // (75 * 100) if m <= 75 else nw * cfg.get("sw", 80) // 100 + (m - 75) * (nw - nw * cfg.get("sw", 80) // 100) // 25
                while done < nw and done < tgt:
                    do(work[done]); done += 1
        assert done == nw
        a("s_nop 0")
        a(pk2("v_pk_mul_f32", FO, FO, lambda j: f"v[{R+2*j}:{R+2*j+1}]"))
        for u in range(5):
            for h in range(2):
                f0 = FO + 4 * u + 2 * h; s_ = SQ[u] + 2 * h; x_ = XU + 4 * u + 2 * h
                a(f"v_pk_fma_f32 v[{f0}:{f0+1}], v[{f0}:{f0+1}], v[{s_}:{s_+1}], v[{x_}:{x_+1}]")
            f0 = FO + 4 * u; o = 64 + 2 * u
            a(f"v_cvt_pk_bf16_f32 v{o}, v{f0}, v{f0+1}")
            a(f"v_cvt_pk_bf16_f32 v{o+1}, v{f0+2}, v{f0+3}")
            a(f"ds_write_b64 v3, v[{o}:{o+1}] offset:{32*u}")
        a("s_waitcnt lgkmcnt(0)")
        for j in range(3): a(f"ds_read_b128 v[{76+4*j}:{79+4*j}], v{vRd} offset:{1024*j}")
        for j in range(3):
            a(f"s_waitcnt lgkmcnt({2-j})")
            if j == 2: a("s_mov_b32 exec_hi, 0")
            a(f"global_store_dwordx4 v{vXo[j]}, v[{76+4*j}:{79+4*j}], s[6:7] {cfg.get('scO', '')}")
        a("s_mov_b32 exec_hi, -1")
        self.mark(22)
        if self.stamps:
            a("s_waitcnt vmcnt(0)")
            a(f"s_memtime s[{sA}:{sA+1}]")
            a(f"s_memrealtime s[{sA+2}:{sA+3}]")
            a("s_waitcnt lgkmcnt(0)")
            for i in range(1, 8):
                a(f"s_sub_u32 s{sA+4}, s{ST0+2*(i-1)}, s0\nv_mov_b32 v{32+i}, s{sA+4}")
            a(f"s_sub_u32 s{sA+4}, s{sA}, s0\nv_mov_b32 v40, s{sA+4}\nv_mov_b32 v41, s{sA+2}")
            a(f"s_sub_u32 s{sA+4}, s{ST0+14}, s0\nv_mov_b32 v42, s{sA+4}")
            a(f"""
            v_mov_b32 v32, s1
            s_lshl_b32 s{sA}, s2, 2
            s_add_u32 s{sA}, s{sA}, s{sWave}
            s_lshl_b32 s{sA}, s{sA}, 6
            s_add_u32 s{sA}, s{sA}, {WS_STAMP}
            s_mov_b64 exec, 1
            buffer_store_dwordx4 v[32:35], off, s[{SRDW}:{SRDW+3}], s{sA}
            buffer_store_dwordx4 v[36:39], off, s[{SRDW}:{SRDW+3}], s{sA} offset:16
            buffer_store_dwordx4 v[40:43], off, s[{SRDW}:{SRDW+3}], s{sA} offset:32
            """)
        a("s_endpgm")
        a.label(f"{label}_two")
        self.stamp(5)
        self.vm = vm = VM()
        self.vPub = 62
        self.vm.q = list(vm_split)
        self.vm.wait(a, [t_ for t_ in self.vm.q if t_[0] == "B" and t_[1:].isdigit()][-1])
        a("s_waitcnt lgkmcnt(0)\ns_barrier\ns_nop 4")
        flat = []
        for f in pre: flat += self.att_loads() if f == "att" else [f]
        nb_ = cfg["nbtail"]
        tail(self.epi_f_tail(ACC[1], PB[1] + 7), flat[:nb_], "E1")
        for i, f in enumerate(flat[nb_:]):
            if i == cfg["nbpub"]:
                self.publish(3, ["E1"]); a("s_nop 1"); self.publish(4, [])
            if i % 8 == 3 and cfg.get("markT", 2) == 2: self.mark(i // 8)
            f()
        a("s_waitcnt vmcnt(0)")
        a(f"s_branch {label}_join")
        for s in self.slow: a(s)
        a.label(f"{label}_end")
        a("s_endpgm")
        a.end_kernel(label, 512, 102, 256, 256, 256, 163840)
        return a.text("generated by dev/fused2.py: one persistent kernel, 256 workgroups (one per CU)\n"
                      "phase 1: LayerNorm + x@[wqkv|w_gate|w_up] (+ weight repack), attention, phase 2: h@w_down, o@wo, combine")

if __name__ == "__main__":
    stamps = "--stamps" in sys.argv
    pos = [x for x in sys.argv[1:] if not x.startswith("--")]
    cfg = json.loads(pos[1]) if len(pos) > 1 else {}
    open(pos[0], "w").write(Gen(cfg, stamps).build())
```

```python
import sys, json, struct; sys.path.insert(0, "dev")
from asmlib import *

WS_H = 0
WS_O = 0x780000
WS_WD = 0xA00000
WS_WO = 0xD00000
WS_QKV = 0x1000000
WS_FLAG = 0x1800000
WS_EPOCH = WS_FLAG - 256
WS_STAMP = 0x1900000
WS_SIZE = 0x2000000
OOB = 0x4000000
TOKX = 0x5bd1e995
NLOG2E = 0xbfb8aa3b
def f2u(x): return struct.unpack("<I", struct.pack("<f", x))[0]
C_SM = f2u(20 ** -0.5 * 1.4426950408889634)

XB = 96; EP = 32; ACC = [0, 64]; WF = 128; NWB = 3
vLd = 1; vTr = 5
vSF = 17; vL8 = 18; vC1 = 19; vD2 = 20; vR = 21; vNegM = 22; vSum = 23; vSq = 24
vRow = 25; vCol = 26; vT = 27
vDbg = 30; vL16 = 31
vFl = 22
vQa = 28; vKa = 29
vA = [16, 17, 19, 24]
PR = 64
sOOB = 3
pQKV = 76; pWS = 78; pWO = 80; pDN = 82; pG = 84; pU = 86
sWave = 8; sMb64 = 9; sHalf = 10; sM0 = 11; sSoff = 12; sStep = 13; sWrap = 14; sThree = 15
SRDW = 16
SRDX = 20
sGa = 20; sGb = 21; sDuty = 96
PB = [24, 32, 40]
PK = 48
sOne = 57; sLo = 58; sHi = 59
sTok = 60
sFlag = 62; sFl0 = 63; sFl1 = 64; sFlG = 65
sAb = 66; sAb2 = 67; sBb = 68; sBb2 = 69; sOld = 70; sWOb = 71; sOst = 72; sOst2 = 73; sKV = 74; sXo = 75
ST0 = 76
sMb = 88; sJ = 89; sRot = 90; sNb = 91
sA = 92

class VM:
    def __init__(self): self.q = []
    def issue(self, a, ins, tag):
        a(ins); self.q.append(tag)
    def last(self, tag): return max(i for i, t in enumerate(self.q) if t == tag)
    def wait(self, a, tag, cnt=None):
        if cnt is not None: assert self.q.count(tag) == cnt, (tag, self.q.count(tag))
        a(f"s_waitcnt vmcnt({min(len(self.q) - 1 - self.last(tag), 63)})")
class LQ:
    def __init__(self): self.q = []
    def issue(self, a, ins, tag):
        a(ins); self.q.append(tag)
    def wait(self, a, tag):
        idx = max(i for i, t in enumerate(self.q) if t == tag)
        a(f"s_waitcnt lgkmcnt({min(len(self.q) - 1 - idx, 15)})")
class Uniq(dict):
    def __setitem__(self, k, v):
        assert k not in self, ("duplicate gap", k)
        dict.__setitem__(self, k, v)
def lines(s): return [l.split(";;")[0].strip() for l in s.split("\n") if l.split(";;")[0].strip()]
DIV5 = (1 << 16) // 5 + 1
DIV3 = (1 << 16) // 3 + 1

class Gen:
    def __init__(self, cfg, stamps):
        self.cfg = dict(dict(LA=6, XW=4, spl=20, PB=2, bar2=True, rpat=[2, 2, 2, 2], dmagap=2, spin=3000, cap=5.0,
                             rotm=0x1010, rotx=0x7520, tch=-1, tch2=110, pk0=18, pk1=70, pub1=124, pub2=124, gck=118, qck=70, pub3=126, qsh=15,
                             w1=100, w2=96, b1vq=1, vq1=1, vq2=1, ntail=16, natt1=11, natt2=24, pub4=12,
                             nside=[6] * 14, kvgap=6, nc=3, p2x=1, nbtail=14, nbpub=12, stb=1, stq=False, kf=4, forder=['A7', 'A8', 'B8', 'A9', 'B9', 'W', 'A10', 'B10', 'A11', 'A12', 'A13', 'B13'], kbar=10, ko=10, no_f=12, kx=11), **cfg)
        self.stamps = stamps
        self.a = Asm(); self.vm = VM()
        self.label = NAME + "_kernel"
        self.slot = {}; self.owner = [None] * 10
        self.xdone = set(); self.lastbar = -10
        self.next = 0; self.pend = []; self.slow = []
        self.vPub = 92
    def stamp(self, i, pro=False):
        if self.cfg.get("pst") and i and not pro: return
        if pro and not self.cfg.get("pst"): return
        if self.stamps: self.a(f"s_memtime s[{ST0+2*(i-1)}:{ST0+2*(i-1)+1}]" if i else "s_memtime s[0:1]")
    def mark(self, i):
        if self.cfg.get("marks"):
            r = 22
            self.a(f"""
            s_memtime s[{r}:{r+1}]
            s_waitcnt lgkmcnt(0)
            s_sub_u32 s{r}, s{r}, s0
            v_mov_b32 v{vDbg}, s{r}
            s_lshl_b32 s{r}, s2, 2
            s_add_u32 s{r}, s{r}, s{sWave}
            s_lshl_b32 s{r}, s{r}, 7
            s_add_u32 s{r}, s{r}, {WS_STAMP + 0x40000 + 4*i}
            s_mov_b64 exec, 1
            """)
            self.vm.issue(self.a, f"buffer_store_dword v{vDbg}, off, s[{SRDW}:{SRDW+3}], s{r}", "mk")
            self.a("s_mov_b64 exec, -1\ns_nop 1")
    def emit(self, op, tag="st"):
        for o in op.split(";"):
            o = o.strip()
            if o.startswith(("global_", "buffer_")): self.vm.issue(self.a, o, tag)
            else: self.a(o)
    def free(self, s):
        o = self.owner[s]
        if o is None: return True
        if o[0] == "B": return o[1] <= self.lastbar - 1
        return o in self.xdone
    def cands(self, name):
        c = [s for s in range(10) if self.free(s)]
        if name[0] == "B" and name[1] >= self.cfg.get("avoid_from", 23): c = [s for s in reversed(c) if s not in (7, 8)]
        return c
    def alloc(self, name, want=None):
        c = self.cands(name) if want is None else [s for s in range(10) if self.free(s) and s == want]
        assert c, ("no free slot", name, self.owner, self.lastbar)
        s = c[0]; self.owner[s] = name; self.slot[name] = s
        return s

    def pos_ops(self, f, d):
        t = sA + 4
        return [f"s_lshr_b32 s{t}, s{f}, 2", f"s_mul_i32 s{t}, s{t}, 6", f"s_lshl_b32 s{d}, s{f}, 1", f"s_add_u32 s{t}, s{t}, s{d}",
                f"s_sub_u32 s{t+1}, s{f}, 16", f"s_mul_i32 s{t+1}, s{t+1}, {DIV3}", f"s_lshr_b32 s{t+1}, s{t+1}, 16", f"s_lshl_b32 s{t+1}, s{t+1}, 3",
                f"s_add_u32 s{t+1}, s{t+1}, s{d}", f"s_sub_u32 s{t+1}, s{t+1}, 24",
                f"s_cmp_lt_u32 s{f}, 16; s_cselect_b32 s{d}, s{t}, s{t+1}"]
    def f_params(self, P, code):
        t = sA
        return lines(f"""
        s_mov_b32 s{P+3}, 0x20000
        s_cmp_lt_u32 s{sWave}, 2; s_cselect_b32 s{P}, s{pG}, s{pU}; s_cselect_b32 s{P+1}, s{pG+1}, s{pU+1}
        s_cmp_lt_u32 s{code}, 27; s_cselect_b32 s{P+2}, {640*3456}, 0
        s_movk_i32 s{P+4}, 3456
        s_lshl_b32 s{P+5}, s{code}, 7
        s_mul_i32 s{P+6}, s{sRot}, {64*3456}
        """) + self.pos_ops(code, P + 7) + lines(f"""
        s_lshl_b32 s{t}, s{sMb}, 1
        s_lshr_b32 s{t+1}, s{sWave}, 1
        s_add_u32 s{t}, s{t}, s{t+1}
        s_mul_i32 s{t}, s{t}, 56
        s_add_u32 s{P+7}, s{P+7}, s{t}
        s_lshl_b32 s{P+7}, s{P+7}, 12
        s_and_b32 s{t+1}, s{sWave}, 1
        s_lshl_b32 s{t+1}, s{t+1}, 11
        s_add_u32 s{P+7}, s{P+7}, s{t+1}
        """)
    def q_params(self, P, q):
        t = sA
        return lines(f"""
        s_mov_b32 s{P+3}, 0x20000
        s_mov_b32 s{P}, s{pQKV}
        s_mov_b32 s{P+1}, s{pQKV+1}
        s_movk_i32 s{P+4}, 3840
        s_lshr_b32 s{t}, s{sWave}, 1
        s_lshl_b32 s{P+5}, s{q}, 1
        s_add_u32 s{P+5}, s{P+5}, s{t}
        s_lshl_b32 s{P+5}, s{P+5}, 7
        s_mul_i32 s{P+6}, s{sRot}, {64*3840}
        s_lshl_b32 s{t}, s{sMb}, 2
        s_add_u32 s{t}, s{t}, s{sWave}
        s_mul_i32 s{t}, s{t}, 122880
        s_lshl_b32 s{t+1}, s{q}, 13
        s_add_u32 s{t}, s{t}, s{t+1}
        s_add_u32 s{t}, s{t}, {WS_QKV}
        s_cmp_lt_u32 s{q}, 15; s_cselect_b32 s{P+2}, {640*3840}, 0; s_cselect_b32 s{P+7}, s{t}, s{sOOB}
        """)
    def pack_params(self):
        P = PK; t = sA
        r = lines(f"""
        s_mov_b32 s{P+3}, 0x20000
        s_mov_b32 s{t+2}, {640*1280}
        s_cmp_lt_u32 s2, 135; s_cselect_b32 s{P}, s{pDN}, s{pWO}; s_cselect_b32 s{P+1}, s{pDN+1}, s{pWO+1}; s_cselect_b32 s{P+2}, {1728*1280}, s{t+2}; s_cselect_b32 s{t}, 0, 135
        s_sub_u32 s{t}, s2, s{t}
        s_mul_i32 s{t+2}, s{t}, {DIV5}
        s_lshr_b32 s{t+2}, s{t+2}, 16
        s_mul_i32 s{t+3}, s{t+2}, 5
        s_sub_u32 s{t+1}, s{t}, s{t+3}
        s_mul_i32 s{P+4}, s{t+2}, {64*1280}
        s_lshl_b32 s{t+3}, s{t+1}, 8
        s_add_u32 s{P+4}, s{P+4}, s{t+3}
        s_lshr_b32 s{t+3}, s{sWave}, 1
        s_lshl_b32 s{t+3}, s{t+3}, 7
        s_add_u32 s{P+4}, s{P+4}, s{t+3}
        """) + self.pos_ops(t + 2, t + 3) + lines(f"""
        s_lshl_b32 s{t+2}, s{t+2}, 1
        s_mov_b32 s{t}, {WS_WO}
        s_movk_i32 s{t+6}, 100
        s_cmp_lt_u32 s2, 135; s_cselect_b32 s{t+3}, s{t+3}, s{t+2}; s_cselect_b32 s{t}, {WS_WD}, s{t}; s_cselect_b32 s{t+6}, 280, s{t+6}
        s_and_b32 s{t+2}, s{sWave}, 1
        s_add_u32 s{t+3}, s{t+3}, s{t+2}
        s_mul_i32 s{t+3}, s{t+3}, 5120
        s_add_u32 s{t}, s{t}, s{t+3}
        s_cmp_lt_u32 s2, 185; s_cselect_b32 s{P+2}, s{P+2}, 0; s_cselect_b32 s{t}, s{t}, s{sOOB}
        s_lshl_b32 s{t+1}, s{t+1}, 3
        s_and_b32 s{t+2}, s{sWave}, 2
        s_lshl_b32 s{t+2}, s{t+2}, 1
        s_add_u32 s{t+1}, s{t+1}, s{t+2}
        s_sub_u32 s{t+6}, s{t+6}, 5
        """)
        for ch in range(4):
            r += lines(f"""
            s_add_u32 s{t+2}, s{t+1}, {ch}
            s_mul_i32 s{t+3}, s{t+2}, {DIV5}
            s_lshr_b32 s{t+3}, s{t+3}, 16
            s_mul_i32 s{t+3}, s{t+3}, s{t+6}
            s_add_u32 s{t+3}, s{t+3}, s{t+2}
            s_lshl_b32 s{t+3}, s{t+3}, 10
            s_add_u32 s{P+5+ch}, s{t+3}, s{t}
            """)
        return r
    def p2_params(self):
        t = sA
        if self.cfg.get("p2x"):
            r = self.p2_params0()[5:]
            return lines(f"""
            s_add_u32 s{sNb}, s{sMb}, s{sJ}
            s_and_b32 s{sNb}, s{sNb}, 3
            s_lshl_b32 s{t}, s{sHalf}, 2
            s_or_b32 s{sNb}, s{sNb}, s{t}
            s_lshr_b32 s{t}, s{sJ}, 2
            s_lshl_b32 s{sMb64}, s{sMb}, 1
            s_add_u32 s{sMb64}, s{sMb64}, s{t}
            s_lshl_b32 s{t}, s{t}, 4
            s_lshl_b32 s{sHalf}, 0xffff, s{t}
            """) + r
        return self.p2_params0()
    def p2_params0(self):
        t = sA
        return lines(f"""
        s_lshl_b32 s{sNb}, s{sMb}, {0 if self.cfg.get("map8") else 1}
        s_add_u32 s{sNb}, s{sNb}, s{sJ}
        s_and_b32 s{sNb}, s{sNb}, {3 if self.cfg.get("map8") else 7}
        s_and_b32 s{t}, s{sJ}, {4 if self.cfg.get("map8") else 0}
        s_or_b32 s{sNb}, s{sNb}, s{t}
        s_mul_i32 s{t}, s{sWave}, 14
        s_mul_i32 s{sAb}, s{sMb64}, 56
        s_add_u32 s{sAb}, s{sAb}, s{t}
        s_lshl_b32 s{sAb}, s{sAb}, 12
        s_mul_i32 s{sBb}, s{sNb}, 56
        s_add_u32 s{sBb}, s{sBb}, s{t}
        s_mul_i32 s{sBb}, s{sBb}, 5120
        s_add_u32 s{sBb}, s{sBb}, {WS_WD}
        s_cmp_lt_u32 s{sWave}, 3; s_cselect_b32 s{sAb2}, s{sAb}, s{sOOB}; s_cselect_b32 s{sBb2}, s{sBb}, s{sOOB}
        s_mul_i32 s{t}, s{sMb64}, 81920
        s_add_u32 s{t}, s{t}, {WS_O}
        s_mul_i32 s{sOld}, s{sWave}, 20480
        s_add_u32 s{sOld}, s{sOld}, s{t}
        s_mul_i32 s{sOst}, s{sNb}, 10
        s_add_u32 s{sOst}, s{sOst}, s{sWave}
        s_lshl_b32 s{sOst}, s{sOst}, 8
        s_add_u32 s{sOst}, s{sOst}, s{t}
        s_cmp_lt_u32 s{sWave}, 2; s_cselect_b32 s{sOst2}, s{sOst}, s{sOOB}
        s_mul_i32 s{sWOb}, s{sNb}, 102400
        s_add_u32 s{sWOb}, s{sWOb}, {WS_WO}
        s_add_u32 s{sWOb}, s{sWOb}, s{sM0}
        s_lshl_b32 s{sKV}, s{sNb}, 2
        s_add_u32 s{sKV}, s{sKV}, s{sWave}
        s_mul_i32 s{sKV}, s{sKV}, 1280
        s_add_u32 s{sKV}, s{sKV}, {WS_QKV}
        s_lshl_b32 s{sXo}, s{sMb64}, 2
        s_add_u32 s{sXo}, s{sXo}, s{sWave}
        s_mul_i32 s{sXo}, s{sXo}, {16*1280}
        s_mul_i32 s{t}, s{sNb}, 160
        s_add_u32 s{sXo}, s{sXo}, s{t}
        s_lshl_b32 s{sFl0}, s{sMb}, 9
        s_add_u32 s{sFl0}, s{sFl0}, {WS_FLAG}
        s_max_u32 s{sFl1}, s{sMb}, 1
        s_lshl_b32 s{sFl1}, s{sFl1}, 9
        s_add_u32 s{sFl1}, s{sFl1}, {WS_FLAG - 512}
        s_lshl_b32 s{sFlG}, s{sWave}, 11
        s_add_u32 s{sFlG}, s{sFlG}, {WS_FLAG}
        s_lshl_b32 s{t}, s{sMb64}, 1
        v_lshrrev_b32 v{vQa}, 5, v0
        v_add_u32 v{vQa}, s{t}, v{vQa}
        v_mul_u32_u24 v{vQa}, 122880, v{vQa}
        v_and_b32 v{vKa}, 31, v0
        v_lshl_add_u32 v{vQa}, v{vKa}, 3, v{vQa}
        v_add_u32 v{vKa}, 8, v0
        v_lshrrev_b32 v{vT}, 4, v{vKa}
        v_add_u32 v{vT}, s{t}, v{vT}
        v_max_u32 v{vT}, 1, v{vT}
        v_subrev_u32 v{vT}, 1, v{vT}
        v_mul_u32_u24 v{vT}, 122880, v{vT}
        v_and_b32 v{vKa}, 15, v{vKa}
        v_lshl_add_u32 v{vKa}, v{vKa}, 4, v{vT}
        """)
    def switch_ops(self, P):
        t = sA
        return [f"v_mad_u32_u24 v{vLd}, v{vRow}, s{P+4}, v{vCol}",
                f"s_lshl_b32 s{sStep}, s{P+4}, 6",
                f"s_lshl_b32 s{t}, s{P+4}, 3",
                f"s_sub_u32 s{t}, s{t}, 1024",
                f"v_add_u32 v{vLd}, s{P+5}, v{vLd}",
                f"s_mul_i32 s{sWrap}, s{sStep}, 10",
                f"s_mov_b32 s{sSoff}, s{P+6}",
                f"v_add_u32 v{vLd+1}, s{t}, v{vLd}",
                f"v_add_u32 v{vLd+2}, s{t}, v{vLd+1}",
                f"v_add_u32 v{vLd+3}, s{t}, v{vLd+2}"]
    def dma_items(self, g):
        P = PB[g // 10]; slot = self.alloc(("B", g))
        it = [("op", f"s_add_u32 m0, s{sM0}, {slot*16384}")]
        if g % 10 == 0 and g > 0: it += [("op", o) for o in self.switch_ops(P)]
        elif g % 10: it.append(("op", f"s_add_u32 s{sSoff}, s{sSoff}, s{sStep}; s_cmp_eq_u32 s{sSoff}, s{sWrap}; s_cselect_b32 s{sSoff}, 0, s{sSoff}"))
        it += [("ld", f"buffer_load_dwordx4 v{vLd+j}, s[{P}:{P+3}], s{sSoff} offen offset:{1024*j} lds", f"B{g}") for j in range(4)]
        return it
    def pop_ops(self):
        p = self.pend
        while p and p[0][0] != "ld": self.emit(p.pop(0)[1])
    def pop_ld(self):
        a = self.a; p = self.pend
        self.pop_ops()
        if p:
            if " m0," in a.lines[-1]: a("s_nop 0")
            _, l, tag = p.pop(0); self.vm.issue(a, l, tag)
    def tr_reads(self, G):
        g, s = G >> 2, G & 3
        slot = self.slot[("B", g)]; reg = slot >> 2
        o = (slot & 3) * 16384 + 16 * s * 128
        r = []
        for t in range(4):
            b = WF + 16 * (G % NWB) + 4 * t
            r += [f"ds_read_b64_tr_b16 a[{b}:{b+1}], v{vTr+4*reg+t} offset:{o}",
                  f"ds_read_b64_tr_b16 a[{b+2}:{b+3}], v{vTr+4*reg+t} offset:{o+512}"]
        return r
    def center_ops(self, stage):
        x = XB + 16 * stage; t = EP
        d = []
        for i in range(16):
            d.append(f"v_dot2_f32_bf16 v{t+2*i}, v{x+i}, s{sLo}, v{vNegM}")
            d.append(f"v_dot2_f32_bf16 v{t+2*i+1}, v{x+i}, s{sHi}, v{vNegM}")
        c = [f"v_cvt_pk_bf16_f32 v{x+i}, v{t+2*i}, v{t+2*i+1}" for i in range(16)]
        return d, c
    def epi_f(self, acc, so):
        ops = []; sts = []; nb = self.cfg["stb"]
        for t in range(4):
            g = EP + 32 * (t & 1); u = g + 8; e = g + 16; pk = g + 24 + 4 * (t >> 1)
            A = acc + 16 * t
            for i in range(8): ops.append(f"v_accvgpr_read_b32 v{g+i}, a{A+i}")
            for i in range(8): ops.append(f"v_mul_f32 v{e+i}, v{vC1}, v{g+i}")
            for i in range(8):
                ops.append(f"v_exp_f32 v{e+i}, v{e+i}")
                ops.append(f"v_accvgpr_read_b32 v{u+i}, a{A+8+i}")
            for i in range(8): ops.append(f"v_fma_f32 v{e+i}, v{e+i}, v{vD2}, v{vD2}")
            for i in range(8):
                ops.append(f"v_rcp_f32 v{e+i}, v{e+i}")
                ops.append(f"v_mul_f32 v{g+i}, v{g+i}, v{u+i}")
            for i in range(8): ops.append(f"v_mul_f32 v{g+i}, v{g+i}, v{e+i}")
            for i in range(4): ops.append(f"v_cvt_pk_bf16_f32 v{pk+i}, v{g+2*i}, v{g+2*i+1}")
            if t == 2: sts.append(f"s_add_u32 s{so}, s{so}, 4096")
            sts.append(f"buffer_store_dwordx4 v[{pk}:{pk+3}], v{vSF}, s[{SRDW}:{SRDW+3}], s{so} offen offset:{(t&1)*512} sc1")
            if (t + 1) % nb == 0:
                ops.append("; ".join(sts)); sts = []
        return ops
    def epi_f_tail(self, acc, so):
        ops = [f"v_mov_b32 v{vR}, v{vD2}", f"v_mov_b32 v{vT}, v{vC1}", f"v_mov_b32 v{vT-1}, v{vC1}"]
        p2 = lambda r: f"v[{r}:{r+1}]"
        for t in range(4):
            g = EP + 32 * (t & 1); u = g + 8; e = g + 16; pk = g + 24
            A = acc + 16 * t
            for i in range(8): ops.append(f"v_accvgpr_read_b32 v{g+i}, a{A+i}")
            for i in range(4): ops.append(f"v_pk_mul_f32 {p2(e+2*i)}, {p2(vT-1)}, {p2(g+2*i)}")
            for i in range(8):
                ops.append(f"v_exp_f32 v{e+i}, v{e+i}")
                ops.append(f"v_accvgpr_read_b32 v{u+i}, a{A+8+i}")
            for i in range(4): ops.append(f"v_pk_fma_f32 {p2(e+2*i)}, {p2(e+2*i)}, {p2(vD2)}, {p2(vD2)}")
            for i in range(8): ops.append(f"v_rcp_f32 v{e+i}, v{e+i}")
            for i in range(4): ops.append(f"v_pk_mul_f32 {p2(g+2*i)}, {p2(g+2*i)}, {p2(u+2*i)}")
            for i in range(4): ops.append(f"v_pk_mul_f32 {p2(g+2*i)}, {p2(g+2*i)}, {p2(e+2*i)}")
            for i in range(4): ops.append(f"v_cvt_pk_bf16_f32 v{pk+i}, v{g+2*i}, v{g+2*i+1}")
            if t == 2: ops.append(f"s_add_u32 s{so}, s{so}, 4096")
            ops.append(f"buffer_store_dwordx4 v[{pk}:{pk+3}], v{vSF}, s[{SRDW}:{SRDW+3}], s{so} offen offset:{(t&1)*512} sc1")
        return ops
    def epi_q(self, acc, so):
        ops = [f"s_add_u32 s{so-1}, s{so}, 4096"]; sts = []; nb = self.cfg["stb"]
        for t in range(4):
            g = EP; pk = EP + 16 + 8 * t
            A = acc + 16 * t
            for i in range(16): ops.append(f"v_accvgpr_read_b32 v{g+i}, a{A+i}")
            for i in range(16): ops.append(f"v_mul_f32 v{g+i}, v{vR}, v{g+i}")
            for i in range(8): ops.append(f"v_cvt_pk_bf16_f32 v{pk+i}, v{g+2*i}, v{g+2*i+1}")
            for q in range(4):
                grp = 4 * t + 2 * (q & 1)
                sts.append(f"buffer_store_dwordx2 v[{pk+2*q}:{pk+2*q+1}], v{vL8}, s[{SRDW}:{SRDW+3}], s{so-(q>>1)} offen offset:{grp*256} sc1")
            if (t + 1) % nb == 0:
                if self.cfg.get("stq", True): ops.append("; ".join(sts))
                else: ops += sts
                sts = []
        return ops
    def publish(self, level, after):
        a = self.a
        for tg in after: self.vm.wait(a, tg)
        a(f"v_mov_b64 v[{self.vPub}:{self.vPub+1}], s[{sTok}:{sTok+1}]")
        a(f"s_add_u32 s{sA+8}, s{sFlag}, {level*8192}")
        a("s_mov_b64 exec, 1")
        self.vm.issue(a, f"buffer_store_dwordx2 v[{self.vPub}:{self.vPub+1}], off, s[{SRDW}:{SRDW+3}], s{sA+8} sc1", "fl")
        a("s_mov_b64 exec, -1")
    def retouch(self, kind, so=None):
        if kind not in self.cfg.get("rt", ""): return
        a = self.a; r = 88 if kind == "P" else self.vPub - 2
        if kind == "P":
            a(f"v_lshlrev_b32 v{r}, 7, v0\ns_mov_b64 exec, 0xff")
            for ch in range(4): self.vm.issue(a, f"buffer_load_dword v{r+1}, v{r}, s[{SRDW}:{SRDW+3}], s{PK+5+ch} offen", "rt")
            a("s_mov_b64 exec, -1")
        elif kind == "Q":
            a(f"v_lshlrev_b32 v{r}, 7, v0")
            self.vm.issue(a, f"buffer_load_dword v{r}, v{r}, s[{SRDW}:{SRDW+3}], s{so} offen", "rt")
        else:
            a(f"v_and_b32 v{r}, 16, v0\nv_add_u32 v{r}, v{r}, v0\nv_lshlrev_b32 v{r}, 7, v{r}\ns_sub_u32 s{sA+8}, s{so}, 4096\ns_mov_b32 exec_hi, 0")
            self.vm.issue(a, f"buffer_load_dword v{r}, v{r}, s[{SRDW}:{SRDW+3}], s{sA+8} offen", "rt")
            a("s_mov_b32 exec_hi, -1")
    def flag_ld(self, reg, soff, level, off, sc):
        return [f"s_add_u32 s{sA+8}, s{soff}, {level*8192}",
                f"buffer_load_dwordx2 v[{reg}:{reg+1}], v{vL8}, s[{SRDW}:{SRDW+3}], s{sA+8} offen offset:{off} {sc}"]
    def flag_load(self, reg, soff, tag, level, off=0):
        l = self.flag_ld(reg, soff, level, off, "")
        self.a(l[0]); self.vm.issue(self.a, l[1], tag)
    def flag_check(self, reg, soff, tag, level, half=False, off=0):
        a = self.a; L = a.newlabel("fc")
        self.vm.wait(a, tag)
        test = f"v_cmp_ne_u64 vcc, s[{sTok}:{sTok+1}], v[{reg}:{reg+1}]\n"
        if half and self.cfg.get("p2x"): test += f"s_nop 0\ns_or_b32 s{sA+8}, vcc_lo, vcc_hi\ns_and_b32 s{sA+8}, s{sA+8}, s{sHalf}"
        elif half: test += f"s_cmp_eq_u32 s{sHalf}, 0\ns_cselect_b32 s{sA+8}, vcc_lo, vcc_hi\ns_cmp_lg_u32 s{sA+8}, 0"
        else: test += "s_nop 0\ns_cmp_lg_u64 vcc, 0"
        a(test)
        a(f"s_cbranch_scc1 {L}_slow")
        a.label(f"{L}_ok")
        l = self.flag_ld(reg, soff, level, off, "sc1")
        self.slow.append(f"""
        {L}_slow:
        s_mov_b32 s{sA+9}, 0
        {L}_spin:
        {l[0]}
        {l[1]}
        s_add_u32 s{sA+9}, s{sA+9}, 1
        s_cmp_gt_u32 s{sA+9}, {self.cfg["spin"]}
        s_waitcnt vmcnt(0)
        s_cbranch_scc1 {L}_ok
        {test}
        s_cbranch_scc0 {L}_ok
        s_sleep {self.cfg.get("sleep", 4)}
        s_branch {L}_spin
        """)

    def body(self, T, work, ntask, wrange=(4, 156), center=False, extra=None, vq=None, vq1=1, vq2=1, before=None):
        a = self.a; cfg = self.cfg; acc = ACC[T & 1]; LA = cfg["LA"]
        ngap = 160
        per = [[] for _ in range(ngap)]
        def cost(op):
            if not isinstance(op, str): return 3.0
            if op.startswith(("v_exp", "v_rcp")): return 2.0
            if op.startswith("buffer_"): return 3.0 * (1 + op.count(";"))
            return 1.0 + op.count(";")
        def is_bar(S):
            n1 = 10 * T + (S >> 2) + 1
            if (S & 3) != 1 or n1 >= 10 * ntask: return False
            return (n1 % 2 == 0) if cfg["bar2"] else True
        cap = []
        for g in range(ngap):
            c = cfg["cap"] - ([3, 3, 2, 0] if is_bar(g >> 2) else cfg["rpat"])[g & 3]
            if (g & 3) == cfg["dmagap"] or ((g & 3) == 0 and vq): c -= 2.5
            if (g & 3) == 3: c -= 1
            if (g & 3) == 3 and is_bar(g >> 2): c = 0
            cap.append(max(c, 0.0))
        if center:
            for st in range(cfg["nc"], 10):
                d, c = self.center_ops(st)
                base = 16 * (st - 1)
                per[base] += d
                cg = [base + x for x in (1, 3, 4, 5, 8, 9, 11, 12, 13)]
                for i, op in enumerate(c): per[cg[i * len(cg) // 16]].append(op)
        used = lambda g: sum(cost(o) for o in per[g])
        self.ends = {}
        for g00, fn in (extra or {}).items():
            if not isinstance(fn, list): per[g00].append(fn)
        for g00, fn in (extra or {}).items():
            if isinstance(fn, list):
                g = g00; room = 0.0
                for op in fn:
                    while room <= 0:
                        room = cap[g] - used(g); g += 1
                    per[g - 1].append(op); room -= cost(op)
                self.ends[g00] = g - 1
        for a_, b_ in (before or []): assert self.ends[a_] < b_, (a_, self.ends[a_], b_)
        if work:
            g0, g1 = wrange
            cap = [max(cap[g] - used(g), 0.0) for g in range(ngap)]
            scale = sum(cost(o) for o in work) / sum(cap[g0:g1])
            if cfg.get("verbose"): print("body", T, "work scale", scale)
            g = g0; room = cap[g] * scale
            for op in work:
                while room <= 0 and g < g1 - 1:
                    g += 1; room += cap[g] * scale
                per[g].append(op); room -= cost(op)
        vq = list(vq or [])
        for S in range(40):
            i, s = S >> 2, S & 3
            G = 40 * T + S; n = 10 * T + i
            rd = self.tr_reads(G + 2) if G + 2 < 40 * ntask else []
            if s == 2:
                k = 0
                while self.next <= n + LA and self.next < 10 * ntask and k < 2 and self.cands(("B", self.next)):
                    self.pend += self.dma_items(self.next); self.next += 1; k += 1
            for t in range(4):
                gap = 4 * S + t
                if t == 0: a(f"s_waitcnt lgkmcnt({8 if G + 1 < 40 * ntask else 0})")
                A = acc + 16 * t; w = WF + 16 * (G % NWB) + 4 * t; x = XB + 4 * S
                c = "0" if S == 0 else f"a[{A}:{A+15}]"
                a(f"v_mfma_f32_32x32x16_bf16 a[{A}:{A+15}], a[{w}:{w+3}], v[{x}:{x+3}], {c}")
                pat = [3, 3, 2, 0] if is_bar(S) else cfg["rpat"]
                for _ in range(pat[t]):
                    if rd: a(rd.pop(0))
                nld = sum(1 for p_ in self.pend if p_[0] == "ld")
                if self.pend and (t == cfg["dmagap"] or (nld > 4 and t == 0)): self.pop_ld()
                elif vq and ((t == 0 and S % vq1 == 0) or (t == cfg["dmagap"] and not self.pend and S % vq2 == 0)):
                    for j_, it_ in enumerate(vq):
                        if it_[0](gap):
                            vq.pop(j_)[1](); break
                if t == cfg["dmagap"] - 1: self.pop_ops()
                if T == cfg.get("markT", 2) and gap % 16 == 9: self.mark(gap // 16)
                for op in per[gap]:
                    if callable(op): op()
                    else: self.emit(op, f"E{T-1}")
                if t == 3 and is_bar(S):
                    last = n + 2 if cfg["bar2"] and n + 2 < 10 * ntask else n + 1
                    self.vm.wait(a, f"B{last}", 4)
                    a("s_barrier")
                    self.lastbar = n
            assert not rd
        return vq

    def att_loads(self, al=True):
        a = self.a
        out = []
        for kv in range(2):
            for i in range(5):
                def f(kv=kv, i=i):
                    assert not self.pend
                    a(f"s_add_u32 m0, s{sM0}, {(7+kv)*16384 + i*640 - 256*i}")
                    if i == 0: a(f"s_add_u32 s{sA+6}, s{sKV}, {(kv+1)*40960}")
                    a("s_mov_b32 exec_hi, 0xff")
                    self.vm.issue(a, f"buffer_load_dwordx4 v{vKa}, s[{SRDW}:{SRDW+3}], s{sA+6} offen offset:{256*i} sc1 lds", "KV")
                    a("s_mov_b32 exec_hi, -1")
                out.append(f)
        for i in range(5):
            out.append(lambda i=i: self.vm.issue(a, f"buffer_load_dwordx2 v[{XB+2*i}:{XB+2*i+1}], v{vQa}, s[{SRDW}:{SRDW+3}], s{sKV} offen offset:{256*i} sc1", "KV"))
        return out
    def attention(self, inter):
        a = self.a; vm = self.vm
        Q = XB; AK = 1; AK2 = 2; RW = 3; L = 4; P = 236; O = 216
        kvb = [[196, 200, 204, 208, 212], [106, 110, 252, 12, 26]]
        code = []; e = code.append
        def rd(n):
            m = n & 3
            if n == 4:
                e(f"v_add_u32 v{AK}, 16384, v{AK}"); e(f"v_add_u32 v{AK2}, 16384, v{AK2}")
            for i in range(5):
                b = kvb[n & 1][i]; o = (i % 3) * 80 + 16 - 4 * m
                e(f"ds_read2_b64 v[{b}:{b+3}], v{AK if i < 3 else AK2} offset0:{o} offset1:{o-2}")
        a(f"""
        s_add_u32 s{sA}, s{sM0}, {7*16384}
        v_add_u32 v{AK}, s{sA}, v{vL8}
        v_add_u32 v{AK2}, 1920, v{AK}
        s_mov_b32 s{sA+1}, 0x{C_SM:x}
        """)
        vm.wait(a, "KV", 15)
        self.mark(23)
        rd(0)
        for n in range(8):
            m = n & 3; B = kvb[n & 1]
            e("s_waitcnt lgkmcnt(0)")
            if n < 4:
                for i in range(10):
                    for h in range(2):
                        src = f"v{Q+i}, v{B[i>>1] + 2*h + (i&1)}"
                        e(f"v_dot2_f32_bf16 v{L+2*m+h}, {src}, 0" if i == 0 else f"v_dot2c_f32_bf16 v{L+2*m+h}, {src}")
                    if i == 0: rd(n + 1)
            else:
                if n + 1 < 8: rd(n + 1)
                for h in range(2):
                    w = 2 * m + h
                    for i in range(10):
                        for j in range(2):
                            src = f"v{B[i>>1] + 2*h + (i&1)}, v{P+2*w+j}"
                            e(f"v_dot2_f32_bf16 v{O+2*i+j}, {src}, 0" if w == 0 else f"v_dot2c_f32_bf16 v{O+2*i+j}, {src}")
            if n == 3:
                Lm = a.newlabel("am")
                blk = [f"s_cmp_lg_u32 s{sMb64}, 0", f"s_cbranch_scc1 {Lm}", f"v_mov_b32 v{P}, 0xce6e6b28"]
                for ww in range(1, 8):
                    blk += [f"v_cmp_gt_u32 vcc, {2*ww}, v0", "s_nop 1", f"v_cndmask_b32 v{L+ww}, v{L+ww}, v{P}, vcc"]
                blk += [f"{Lm}:"]
                e("\n".join(blk))
                e(f"v_max3_f32 v{P}, v{L}, v{L+1}, v{L+2}")
                e(f"v_max3_f32 v{P}, v{P}, v{L+3}, v{L+4}")
                e(f"v_max3_f32 v{P}, v{P}, v{L+5}, v{L+6}")
                e(f"v_max_f32 v{P}, v{P}, v{L+7}")
                e(f"v_mul_f32 v{P}, s{sA+1}, v{P}")
                for ww in range(8): e(f"v_fma_f32 v{L+ww}, v{L+ww}, s{sA+1}, -v{P}")
                for ww in range(8): e(f"v_exp_f32 v{L+ww}, v{L+ww}")
                e(f"v_pk_add_f32 v[{P}:{P+1}], v[{L}:{L+1}], v[{L+2}:{L+3}]")
                e(f"v_pk_add_f32 v[{P+2}:{P+3}], v[{L+4}:{L+5}], v[{L+6}:{L+7}]")
                e(f"v_pk_add_f32 v[{P}:{P+1}], v[{P}:{P+1}], v[{P+2}:{P+3}]")
                e(f"v_add_f32 v{P}, v{P}, v{P+1}")
                e(f"v_rcp_f32 v{P}, v{P}\ns_nop 0")
                for ww in range(4): e(f"v_pk_mul_f32 v[{L+2*ww}:{L+2*ww+1}], v[{L+2*ww}:{L+2*ww+1}], v[{P}:{P+1}] op_sel_hi:[1,0]")
                for ww in range(8):
                    e(f"v_cvt_pk_bf16_f32 v{P+2*ww}, v{L+ww}, 0")
                    e(f"v_cvt_pk_bf16_f32 v{P+2*ww+1}, 0, v{L+ww}")
        e(f"s_mul_i32 s{sA}, s{sWave}, 2560\ns_add_u32 s{sA}, s{sA}, {9*16384}\nv_add_u32 v{AK}, s{sA}, v{vL8}")
        e(f"s_mul_i32 s{sA}, s{sWave}, 3\ns_and_b32 s{sA}, s{sA}, 13\ns_min_u32 s{sA}, s{sA}, 5\ns_lshl_b32 s{sA}, s{sA}, 9\ns_add_u32 s{sA}, s{sA}, {9*16384}\nv_add_u32 v{AK2}, s{sA}, v{vL8}")
        e(f"v_lshrrev_b32 v{RW}, 4, v0"); e(f"v_mul_u32_u24 v{RW}, {20480-256}, v{RW}"); e(f"v_add_u32 v{RW}, v{RW}, v{vL16}")
        for i in range(5):
            e(f"v_cvt_pk_bf16_f32 v{Q+2*i}, v{O+4*i}, v{O+4*i+1}")
            e(f"v_cvt_pk_bf16_f32 v{Q+2*i+1}, v{O+4*i+2}, v{O+4*i+3}")
            e(f"ds_write_b64 v{AK}, v[{Q+2*i}:{Q+2*i+1}] offset:{512*i}")
        inter = list(inter); n = len(code); k = len(inter); j = 0
        for i, ins in enumerate(code):
            a(ins)
            while j < k and j < (i + 1) * k // (n - 10):
                inter[j](); j += 1
        self.mark(25)
        a("s_waitcnt lgkmcnt(0)\ns_barrier")
        for r in range(3): a(f"ds_read2st64_b64 v[{4+4*r}:{7+4*r}], v{AK2} offset0:{8*r} offset1:{8*r+2}")
        return [lambda r=r: (a(f"s_waitcnt lgkmcnt({2-r})"),
                             vm.issue(a, f"buffer_store_dwordx4 v[{4+4*r}:{7+4*r}], v{RW}, s[{SRDW}:{SRDW+3}], s{sOst2 if r == 2 else sOst} offen offset:{1024*r} sc1", "O")) for r in range(3)]

    BSLOT = ["a176", "a196", "a216", "a236", "v116", "v136", "v156", "v176", "v196", "v216", "a0", "a128", "a148", "v96"]
    ASLOT = ["a80", "a96", "a112", "v32", "v48", "v64", "v80"] * 2
    @staticmethod
    def rr(base, off, n=4):
        return f"{base[0]}[{int(base[1:])+off}:{int(base[1:])+off+n-1}]"
    def b_loads(self, k):
        a = self.a; out = []
        for u in range(5):
            def f(u=u):
                if u == 0: a(f"s_add_u32 s{sGb}, s{sBb if k < 12 else sBb2}, {k*5120}")
                if u == 4: a(f"s_add_u32 s{sGb}, s{sGb}, 4096")
                self.vm.issue(a, f"buffer_load_dwordx4 {self.rr(self.BSLOT[k], 4*u)}, v{vL16}, s[{SRDW}:{SRDW+3}], s{sGb} offen offset:{1024*(u&3)} sc1", f"PB{k}")
            out.append(f)
        return out
    def a_loads(self, k):
        a = self.a; out = []
        for i in range(4):
            def f(i=i):
                if i == 0: a(f"s_add_u32 s{sGa}, s{sAb if k < 12 else sAb2}, {k*4096}")
                self.vm.issue(a, f"buffer_load_dwordx4 {self.rr(self.ASLOT[k], 4*i)}, v{vA[i]}, s[{SRDW}:{SRDW+3}], s{sGa} offen sc1", f"PA{k}")
            out.append(f)
        return out
    def wo_loads(self, s):
        a = self.a; out = []
        for j in range(4 if s < 6 else 1):
            def f(j=j):
                assert not self.pend
                if j == 0 and self.owner[s] != ("WO", s): self.alloc(("WO", s), s)
                if self.m0 != ("WO", s):
                    if s < 6:
                        a(f"s_add_u32 m0, s{sM0}, {s*16384}\ns_add_u32 s{sA+7}, s{sWOb}, {s*16384}")
                    else:
                        a(f"s_lshr_b32 s{sA+7}, s{sM0}, 2\ns_add_u32 m0, s{sA+7}, {6*16384}\ns_sub_u32 s{sA+7}, s{sWOb}, s{sM0}\ns_add_u32 s{sA+7}, s{sA+7}, m0")
                self.m0mark = (len(a.lines), ("WO", s))
                self.vm.issue(a, f"buffer_load_dwordx4 v{vL16}, s[{SRDW}:{SRDW+3}], s{sA+7} offen offset:{1024*j} sc1 lds", "WO")
            out.append(f)
        return out
    @property
    def m0(self):
        mk = getattr(self, "m0mark", None)
        if not mk: return None
        for l in self.a.lines[mk[0]:]:
            if " m0," in l or f"s{sA+7}," in l.split(",")[0] + "," and l.strip().startswith("s_") or l.endswith(("_join:", "_two:")): return None
        return mk[1]

    def build(self):
        a = self.a; cfg = self.cfg; label = self.label
        vm = self.vm
        sX = sA + 9
        a.begin_kernel(label)
        a(f"""
        s_cmp_ge_u32 s2, 256
        s_cbranch_scc1 {label}_end
        s_load_dwordx2 s[4:5], s[0:1], 0
        s_load_dwordx2 s[{pQKV}:{pQKV+1}], s[0:1], 8
        s_load_dwordx2 s[{pWO}:{pWO+1}], s[0:1], 16
        s_load_dwordx4 s[{pG}:{pG+3}], s[0:1], 32
        s_load_dwordx2 s[{pDN}:{pDN+1}], s[0:1], 48
        s_load_dwordx2 s[6:7], s[0:1], 56
        s_load_dwordx2 s[{pWS}:{pWS+1}], s[0:1], 72
        """)
        self.stamp(0)
        if self.stamps: a(f"s_memrealtime s[{sTok}:{sTok+1}]")
        NL = cfg.get("codelines", 11)
        a(f"""
        s_getpc_b64 s[{sA}:{sA+1}]
        s_lshr_b32 s{sA+2}, s2, 3
        s_mul_i32 s{sA+2}, s{sA+2}, {NL*128}
        v_lshlrev_b32 v{vT}, 7, v0
        v_add_u32 v{vT}, s{sA+2}, v{vT}
        v_min_u32 v{vT}, {label}_end-{label}-128, v{vT}
        v_cmp_gt_u32 vcc, {NL}, v0
        s_and_saveexec_b64 s[{sA+2}:{sA+3}], vcc
        s_cbranch_execz {label}_nt
        global_load_dword v95, v{vT}, s[{sA}:{sA+1}]
        {label}_nt:
        s_mov_b64 exec, -1
        v_lshrrev_b32 v{vT}, 6, v0
        v_and_b32 v0, 63, v0
        s_and_b32 s{sA}, s2, 7
        v_readfirstlane_b32 s{sWave}, v{vT}
        """)
        if not cfg.get("map8"):
            a(f"""
            s_lshr_b32 s{sA+1}, s2, 3
            s_and_b32 s{sHalf}, s{sA}, 1
            s_lshr_b32 s{sA}, s{sA}, 1
            s_lshl_b32 s{sA}, s{sA}, 2
            s_lshr_b32 s{sA+2}, s{sA+1}, 3
            s_add_u32 s{sMb}, s{sA}, s{sA+2}
            s_and_b32 s{sJ}, s{sA+1}, 7
            s_lshl_b32 s{sRot}, s{sA+2}, 2
            s_lshr_b32 s{sRot}, {cfg["rotm"]}, s{sRot}
            s_and_b32 s{sRot}, s{sRot}, 15
            s_add_u32 s{sRot}, s{sRot}, s{sJ}
            s_lshr_b32 s{sA+3}, {cfg["rotx"]}, s{sA}
            s_and_b32 s{sA+3}, s{sA+3}, 15
            s_add_u32 s{sRot}, s{sRot}, s{sA+3}
            s_mul_i32 s{sA+3}, s{sHalf}, {cfg.get("roth", 0)}
            s_add_u32 s{sRot}, s{sRot}, s{sA+3}
            """)
        else:
            a(f"""
            s_lshr_b32 s{sA+2}, s2, 5
            s_and_b32 s{sMb}, s{sA}, 4
            s_lshl_b32 s{sMb}, s{sMb}, 1
            s_add_u32 s{sMb}, s{sMb}, s{sA+2}
            s_bfe_u32 s{sHalf}, s2, 0x10001
            s_bfe_u32 s{sA+1}, s2, 0x20003
            s_and_b32 s{sJ}, s2, 1
            s_lshl_b32 s{sJ}, s{sJ}, 2
            s_add_u32 s{sJ}, s{sJ}, s{sA+1}
            s_lshl_b32 s{sRot}, s{sA+1}, 2
            s_lshr_b32 s{sRot}, 0x7520, s{sRot}
            s_and_b32 s{sRot}, s{sRot}, 15
            s_lshl_b32 s{sA+3}, s{sA+2}, 2
            s_lshr_b32 s{sA+3}, {cfg.get("rot8", 0x43210210)}, s{sA+3}
            s_and_b32 s{sA+3}, s{sA+3}, 15
            s_add_u32 s{sRot}, s{sRot}, s{sA+3}
            s_lshr_b32 s{sA+3}, s{sA}, 2
            s_mul_i32 s{sA+3}, s{sA+3}, 5
            s_add_u32 s{sRot}, s{sRot}, s{sA+3}
            s_and_b32 s{sA+3}, s2, 1
            s_add_u32 s{sRot}, s{sRot}, s{sA+3}
            """)
        a(f"""
        s_lshl_b32 s{sM0}, s{sWave}, 12
        s_sub_u32 s{sA+3}, s{sRot}, 10
        s_min_u32 s{sRot}, s{sRot}, s{sA+3}
        s_lshl_b32 s{sX}, s{sRot}, 7
        s_lshl_b32 s{sA}, s{sMb}, 7
        s_lshl_b32 s{sA+1}, s{sWave}, 5
        s_add_u32 s{sA}, s{sA}, s{sA+1}
        s_mul_i32 s{sA}, s{sA}, 1280
        v_lshrrev_b32 v{vT}, 3, v0
        v_mul_u32_u24 v{vT}, 1280, v{vT}
        v_add_u32 v{vT}, s{sA}, v{vT}
        v_lshrrev_b32 v{vT+1}, 4, v0
        v_and_b32 v{vT+2}, 7, v0
        v_xor_b32 v{vT+1}, v{vT+1}, v{vT+2}
        v_xor_b32 v{vT+2}, 4, v{vT+1}
        v_lshl_add_u32 v{EP+4}, v{vT+1}, 4, v{vT}
        v_lshl_add_u32 v{EP+5}, v{vT+2}, 4, v{vT}
        v_add_u32 v{EP+5}, {8*1280-1024}, v{EP+5}
        v_add_u32 v{EP+6}, {2*(8*1280-1024)}, v{EP+4}
        v_add_u32 v{EP+7}, {2*(8*1280-1024)}, v{EP+5}
        s_mov_b32 s{SRDX+2}, {2048*1280}
        s_mov_b32 s{SRDX+3}, 0x20000
        s_mov_b32 m0, s{sM0}
        """)
        sS = sA + 7; sC = sA + 8
        setup = lines(f"""
        s_mov_b32 s{sOOB}, {OOB}
        s_lshl_b32 s{sS}, s{sHalf}, 3
        s_add_u32 s{sS}, s{sS}, s{sJ}
        v_lshrrev_b32 v{vRow}, 3, v0
        s_and_b32 s{sA}, s{sWave}, 1
        s_lshl_b32 s{sA}, s{sA}, 5
        v_add_u32 v{vRow}, s{sA}, v{vRow}
        v_bfe_u32 v{vT}, v0, 1, 2
        v_bfe_u32 v{vT+1}, v0, 4, 1
        s_and_b32 s{sA}, s{sWave}, 2
        v_or_b32 v{vT+1}, s{sA}, v{vT+1}
        v_xor_b32 v{vT}, v{vT}, v{vT+1}
        v_and_b32 v{vT+1}, 1, v0
        v_lshlrev_b32 v{vT+1}, 4, v{vT+1}
        v_lshl_add_u32 v{vCol}, v{vT}, 5, v{vT+1}
        s_add_u32 s{sC}, s{sS}, {cfg["qsh"]}
        s_and_b32 s{sC}, s{sC}, 15
        """) + self.q_params(PB[0], sC) + self.switch_ops(PB[0])
        ptr = [o for o in setup if f"s{pQKV}" in o or f"s{pQKV+1}" in o]
        for o in setup:
            if o not in ptr: self.emit(o)
        a(f"s_waitcnt lgkmcnt(0)\ns_mov_b32 s{SRDX}, s4\ns_mov_b32 s{SRDX+1}, s5")
        if self.stamps: a(f"s_mov_b32 s1, s{sTok}")
        setup = ptr + ([f"s_add_u32 s{pWS}, s{pWS}, {cfg['wsoff']}; s_addc_u32 s{pWS+1}, s{pWS+1}, 0"] if cfg.get("wsoff") else []) + lines(f"""
        s_add_u32 s{sA}, s{pWS}, {WS_EPOCH}; s_addc_u32 s{sA+1}, s{pWS+1}, 0
        s_load_dwordx2 s[{sTok}:{sTok+1}], s[{sA}:{sA+1}], 0
        """)
        n_first = len(setup)
        setup += lines(f"""
        s_mov_b32 s{sOne}, 0x3f803f80
        s_mov_b32 s{sLo}, 0x00003f80
        s_mov_b32 s{sHi}, 0x3f800000
        v_and_b32 v{vT}, 31, v0
        v_lshlrev_b32 v{vT+1}, 7, v{vT}
        v_add_u32 v{vT+1}, s{sM0}, v{vT+1}
        v_bfe_u32 v{vT}, v0, 1, 3
        v_lshrrev_b32 v{vT+2}, 5, v0
        v_xor_b32 v{vT}, v{vT}, v{vT+2}
        """)
        XA = EP + 8
        for s in range(4):
            setup.append(f"v_xor_b32 v{vT+2}, {2*s}, v{vT}")
            setup.append(f"v_lshl_add_u32 v{XA+s}, v{vT+2}, 4, v{vT+1}")
            setup.append(f"v_add_u32 v{XA+4+s}, 0x10000, v{XA+s}")
            setup.append(f"v_add_u32 v{XA+8+s}, 0x20000, v{XA+s}")
        setup += lines(f"""
        v_mov_b32 v{vSum}, 0
        v_mov_b32 v{vSq}, 0
        v_lshlrev_b32 v{vL16}, 4, v0
        v_lshlrev_b32 v{vL8}, 3, v0
        v_bfe_u32 v{vT}, v0, 4, 1
        v_bfe_u32 v{vT+1}, v0, 2, 2
        v_lshrrev_b32 v{vT+2}, 5, v0
        v_lshl_add_u32 v{vT+2}, v{vT+2}, 3, v{vT+1}
        v_lshlrev_b32 v{vT+2}, 7, v{vT+2}
        v_lshl_add_u32 v{vT+2}, v{vT}, 13, v{vT+2}
        v_and_b32 v{EP}, 3, v0
        v_lshl_add_u32 v{vT+2}, v{EP}, 3, v{vT+2}
        v_lshrrev_b32 v{vT+1}, 1, v{vT+1}
        v_lshl_add_u32 v{vT}, v{vT}, 1, v{vT+1}
        """)
        for t in range(4):
            setup.append(f"v_xor_b32 v{vT+1}, {t}, v{vT}")
            setup.append(f"v_lshl_add_u32 v{vTr+t}, v{vT+1}, 5, v{vT+2}")
            setup.append(f"v_add_u32 v{vTr+4+t}, 0x10000, v{vTr+t}")
            setup.append(f"v_add_u32 v{vTr+8+t}, 0x20000, v{vTr+t}")
        setup += lines(f"""
        v_bfe_u32 v{vT}, v0, 4, 1
        v_lshlrev_b32 v{vT}, 10, v{vT}
        v_lshrrev_b32 v{vT+1}, 5, v0
        v_lshl_add_u32 v{vT}, v{vT+1}, 8, v{vT}
        v_and_b32 v{vT+1}, 15, v0
        v_lshl_add_u32 v{vSF}, v{vT+1}, 4, v{vT}
        s_mov_b32 s{SRDW}, s{pWS}
        s_mov_b32 s{SRDW+1}, s{pWS+1}
        s_mov_b32 s{SRDW+2}, {WS_SIZE}
        s_mov_b32 s{SRDW+3}, 0x20000
        s_lshl_b32 s{sMb64}, s{sMb}, 1
        s_add_u32 s{sMb64}, s{sMb64}, s{sHalf}
        s_lshl_b32 s{sFlag}, s{sMb}, 4
        s_add_u32 s{sFlag}, s{sFlag}, s{sS}
        s_lshl_b32 s{sFlag}, s{sFlag}, 2
        s_add_u32 s{sFlag}, s{sFlag}, s{sWave}
        s_lshl_b32 s{sFlag}, s{sFlag}, 3
        s_add_u32 s{sFlag}, s{sFlag}, {WS_FLAG}
        s_mul_i32 s{sC}, s{sHalf}, 3
        s_add_u32 s{sC}, s{sC}, s{sJ}
        s_add_u32 s{sC}, s{sC}, 16
        s_add_u32 s{sA}, s{sS}, 5
        s_and_b32 s{sA}, s{sA}, 15
        s_cmp_lt_u32 s{sA}, 11; s_cselect_b32 s{sC}, s{sC}, 31; s_cselect_b32 s{sThree}, 1, 0
        """) + self.f_params(PB[1], sS) + self.f_params(PB[2], sC) + self.pack_params() + lines(f"""
        v_lshrrev_b32 v{vT}, 5, v0
        v_lshlrev_b32 v{vT}, 4, v{vT}
        v_bfe_u32 v{vT+1}, v0, 4, 1
        v_lshl_add_u32 v{vT}, v{vT+1}, 2, v{vT}
        v_bfe_u32 v{vT+1}, v0, 2, 2
        v_add_u32 v{vT}, v{vT}, v{vT+1}
        v_lshlrev_b32 v{vT}, 7, v{vT}
        v_and_b32 v{vT+2}, 3, v0
        v_lshl_add_u32 v{vT}, v{vT+2}, 3, v{vT}
        v_add_u32 v{vT}, s{sM0}, v{vT}
        v_lshrrev_b32 v{vT+1}, 1, v{vT+1}
        s_and_b32 s{sA+2}, s{sWave}, 2
        v_or_b32 v{vT+1}, s{sA+2}, v{vT+1}
        """)
        for ch in range(4):
            setup.append(f"v_xor_b32 v{PR+20+ch}, {ch}, v{vT+1}")
            setup.append(f"v_lshl_add_u32 v{PR+20+ch}, v{PR+20+ch}, 5, v{vT}")
        setup += [f"v_mul_u32_u24 v{PR+16}, 1280, v{vRow}", f"v_add_u32 v{PR+16}, v{vCol}, v{PR+16}"]
        setup += [f"v_add_u32 v{PR+16+j}, {j*(8*1280-1024)}, v{PR+16}" for j in range(1, 4)]
        setup += lines(f"""
        s_lshl_b32 s{sA}, s2, 1
        s_and_b32 s{sA+1}, s{sWave}, 1
        s_add_u32 s{sA}, s{sA}, s{sA+1}
        s_mul_i32 s{sA+1}, s{sA}, 20
        v_add_u32 v{vT}, s{sA+1}, v0
        v_lshrrev_b32 v{vT+1}, 4, v{vT}
        v_mul_u32_u24 v{vT+1}, {3456-2048}, v{vT+1}
        v_lshl_add_u32 v94, v{vT}, 7, v{vT+1}
        s_mul_i32 s{sA+1}, s{sA}, 14
        v_add_u32 v{vT}, s{sA+1}, v0
        v_mul_u32_u24 v{vT+1}, {(1<<20)//11+1}, v{vT}
        v_lshrrev_b32 v{vT+1}, 20, v{vT+1}
        v_mul_u32_u24 v{vT+1}, 2048, v{vT+1}
        v_lshl_add_u32 v91, v{vT}, 7, v{vT+1}
        s_lshr_b32 s{sDuty}, s2, 3
        s_and_b32 s{sDuty}, s{sDuty}, 3
        """) + self.p2_params()
        if cfg.get("verbose"): print("setup ops", len(setup), "first", n_first)
        order = list(cfg.get("order", ["X0", "X1", "X2", "X3", "X4", "X5", "X6", "X7", "X8", "X9", "B", "B", "B", "B"]))
        def queue_next():
            o = order.pop(0)
            if o[0] == "T":
                r0, n = {"Ta": (0, 8), "Tb": (256, 12), "Tc": (0, 4), "Td": (128, 16)}[o]
                self.emit(f"s_lshl_b32 s{sA+6}, s{sMb}, 1; s_and_b32 s{sA+5}, s{sWave}, 1; s_add_u32 s{sA+6}, s{sA+6}, s{sA+5}; s_mul_i32 s{sA+6}, s{sA+6}, {n}; "
                          f"s_lshl_b32 s{sA+5}, s{sRot}, 6; s_add_u32 s{sA+6}, s{sA+6}, s{sA+5}; s_add_u32 s{sA+6}, s{sA+6}, {r0}; v_add_u32 v90, s{sA+6}, v0; "
                          f"v_subrev_u32 v89, 640, v90; v_min_u32 v90, v89, v90; v_mul_u32_u24 v90, 3840, v90; s_mov_b64 exec, {(1<<n)-1}; "
                          f"buffer_load_dword v90, v90, s[{PB[0]}:{PB[0]+3}], s{PB[0]+5} offen; s_mov_b64 exec, -1", "T")
                if not order: return
                o = order.pop(0)
            if o == "B":
                self.pend += self.dma_items(self.next); self.next += 1
            else:
                i = int(o[1:]); sl = self.alloc(("X", i))
                if i: self.pend.append(("op", f"s_add_u32 m0, s{sM0}, {sl*16384}; s_add_u32 s{sX}, s{sX}, 128; s_cmp_eq_u32 s{sX}, 1280; s_cselect_b32 s{sX}, 0, s{sX}"))
                self.pend += [("ld", f"buffer_load_dwordx4 v{EP+4+j}, s[{SRDX}:{SRDX+3}], s{sX} offen offset:{1024*j} lds", f"X{i}") for j in range(4)]
        XW = cfg["XW"]; spl = cfg.get("spl", 12); done = 0
        for g in range(XW):
            if order[0] == "B": assert done >= n_first
            queue_next()
            for j in range(4):
                self.pop_ld()
                for o in setup[done:done + spl]: self.emit(o)
                done += spl
        for o in setup[done:]: self.emit(o)
        self.stamp(1, True)
        def stats(i, j):
            for r in range(4 * j, 4 * j + 4):
                x = XB + 16 * i + r
                a(f"v_dot2c_f32_bf16 v{vSum}, s{sOne}, v{x}")
                a(f"v_dot2c_f32_bf16 v{vSq}, v{x}, v{x}")
        for i in range(10):
            vm.wait(a, f"X{i}", 4)
            if i in (0, 2, 4, 6, 8): self.stamp(2 + i // 2, True)
            sl = self.slot[("X", i)]
            for s in range(4):
                x = XB + 4 * (4 * i + s)
                a(f"ds_read_b128 v[{x}:{x+3}], v{XA+4*(sl>>2)+s} offset:{(sl&3)*16384}")
            if order and (order[0] != "B" or self.next < cfg["PB"]): queue_next()
            for j in range(4):
                if self.pend: self.pop_ld()
                if i: stats(i - 1, j)
            a("s_waitcnt lgkmcnt(0)")
            self.xdone.add(("X", i))
        a(f"s_xor_b32 s{sTok+1}, s{sTok+1}, 0x{TOKX:x}\ns_add_u32 s{sTok}, s{sTok}, 1")
        for j in range(4): stats(9, j)
        self.stamp(1)
        a(f"""
        s_mov_b32 s{sA}, 0x3acccccd
        s_nop 1
        v_mov_b32 v{vT}, v{vSum}
        v_mov_b32 v{vR}, v{vSq}
        s_nop 0
        v_permlane32_swap_b32 v{vSum}, v{vT}
        v_permlane32_swap_b32 v{vSq}, v{vR}
        s_nop 0
        v_add_f32 v{vSum}, v{vSum}, v{vT}
        v_add_f32 v{vSq}, v{vSq}, v{vR}
        v_mul_f32 v{vSum}, s{sA}, v{vSum}
        v_mul_f32 v{vSq}, s{sA}, v{vSq}
        v_cvt_pk_bf16_f32 v{vNegM}, 0, -v{vSum}
        v_fma_f32 v{vSq}, -v{vSum}, v{vSum}, v{vSq}
        """)
        NC = cfg["nc"]
        def first_frags():
            self.stamp(8, True)
            vm.wait(a, "B1" if cfg["bar2"] else "B0", 4)
            a("s_barrier")
            self.stamp(7, True)
            for G in range(2):
                for r in self.tr_reads(G): a(r)
        for st_ in range(NC):
            d0, c0 = self.center_ops(st_)
            if st_ == NC - 1:
                while order or self.pend:
                    if not self.pend: queue_next()
                    self.pop_ld()
                for op in d0: a(op)
                first_frags()
                for op in c0: a(op)
            else:
                if order and not self.pend: queue_next()
                for j, op in enumerate(d0 + c0):
                    a(op)
                    if j % 12 == 0 and self.pend: self.pop_ld()
        self.stamp(2)
        extra = Uniq()
        extra[130] = lines(f"""
            v_max_f32 v{vSq}, 0, v{vSq}
            v_cvt_pk_bf16_f32 v{vR}, 0, v{vSq}
            v_add_f32 v{vR}, 0x3727c5ac, v{vR}
            v_cvt_pk_bf16_f32 v{vR}, 0, v{vR}
            v_sqrt_f32 v{vR}, v{vR}; s_nop 0
            v_cvt_pk_bf16_f32 v{vD2}, 0, v{vR}
            v_rcp_f32 v{vR}, v{vD2}
            v_mul_f32 v{vD2}, v{vD2}, v{vD2}
            v_mul_f32 v{vC1}, 0x{NLOG2E:x}, v{vR}
            """)
        def pack_issue():
            sl = self.alloc("P")
            self.pend += [("op", f"s_add_u32 m0, s{sM0}, {sl*16384}")]
            self.pend += [("ld", f"buffer_load_dwordx4 v{PR+16+j}, s[{PK}:{PK+3}], s{PK+4} offen offset:{1024*j} lds", "PK") for j in range(4)]
        pk0 = cfg["pk0"]; pk1 = cfg["pk1"]
        extra[pk0] = pack_issue
        extra[pk0 + 1] = [lambda ch=ch: a(f"v_add_u32 v{PR+20+ch}, {self.slot['P']*16384}, v{PR+20+ch}") for ch in range(4)]
        rdl = [lambda: vm.wait(a, "PK", 4)]
        for ch in range(4):
            rdl.append(f"ds_read_b64_tr_b16 v[{PR+4*ch}:{PR+4*ch+1}], v{PR+20+ch}")
            rdl.append(f"ds_read_b64_tr_b16 v[{PR+4*ch+2}:{PR+4*ch+3}], v{PR+20+ch} offset:1024")
        extra[pk1] = rdl
        stl = []
        for ch in range(4):
            stl.append(lambda ch=ch: (self.xdone.add("P"), vm.issue(a, f"buffer_store_dwordx4 v[{PR+4*ch}:{PR+4*ch+3}], v{vL16}, s[{SRDW}:{SRDW+3}], s{PK+5+ch} offen sc1", "I")))
        extra[pk1 + 24] = [lambda: [f() for f in stl]] if cfg['stb'] > 1 else stl
        def touch(which, duty=None):
            def f():
                r, n, off = ((94, 20, 0), (91, 14, 2048))[which]
                ins = f"buffer_load_dword v{r}, v{r}, s[{PB[1]}:{PB[1]+3}], 0 offen offset:{off}"
                if duty is None:
                    a(f"s_mov_b64 exec, {(1 << n) - 1}"); vm.issue(a, ins, "T"); a("s_mov_b64 exec, -1")
                else:
                    L = a.newlabel("du")
                    a(f"s_cmp_lg_u32 s{sDuty}, {duty}\ns_cbranch_scc1 {L}\ns_mov_b64 exec, {(1 << n) - 1}\n{ins}\ns_mov_b64 exec, -1\n{L}:")
            return f
        for which, key in ((0, "tch"), (1, "tch2")):
            g_ = cfg[key]
            if isinstance(g_, list):
                for d_, gg in enumerate(g_): extra[gg] = touch(which, d_)
            elif g_ >= 0: extra[g_] = touch(which)
        if cfg["pub1"] < 160: extra[cfg["pub1"]] = lambda: (self.publish(1, ["I"]), self.retouch("P"))
        self.body(0, None, 3, center=True, extra=extra, before=[(pk0 + 1, pk1), (pk1, pk1 + 16), (pk1 + 24, cfg["pub1"])])
        self.stamp(3)
        self.vPub = 86
        extra = Uniq()
        if cfg["pub1"] >= 160: extra[cfg["pub1"] - 160] = lambda: self.publish(1, ["I"])
        extra[cfg["pub2"]] = lambda: (self.publish(2, ["E0"]), self.retouch("Q", PB[0] + 7))
        GR = 88
        def epoch():
            L = a.newlabel("ep")
            a(f"""
            s_or_b32 s{sA+8}, s2, s{sWave}
            s_cbranch_scc1 {L}
            v_mov_b32 v{GR}, s{sTok}
            s_mov_b32 s{sA+8}, {WS_EPOCH}
            s_mov_b64 exec, 1
            buffer_store_dword v{GR}, off, s[{SRDW}:{SRDW+3}], s{sA+8}
            s_mov_b64 exec, -1
            {L}:
            """)
        gc = cfg["gck"]
        assert gc % 16 == 6 and (not cfg["bar2"] or (gc // 16) % 2 == 1)
        gb = gc + 2
        extra[gb + 1] = epoch
        for j in range(4):
            extra[gc - 42 + 4 * j] = lambda j=j: self.flag_load(GR + 2 * j, sFlG, f"G{j}", 1, 512 * j)
            extra[gc - 9 + [0, 2, 4, 8][j]] = lambda j=j: self.flag_check(GR + 2 * j, sFlG, f"G{j}", 1, off=512 * j)
        after = lambda g0: (lambda gap: gap >= g0)
        vq = [(after(gb), f) for k in range(4) for f in self.b_loads(k)]
        rest1 = self.body(1, self.epi_q(ACC[0], PB[0] + 7), 3, wrange=(4, cfg["w1"]), extra=extra, vq=vq, vq1=cfg["b1vq"])
        while self.pend: self.pop_ld()
        self.stamp(4)
        vm_split = list(vm.q)
        a(f"s_cmp_eq_u32 s{sThree}, 0")
        a(f"s_cbranch_scc1 {label}_two")
        self.vPub = 62
        pre = []
        def P(fn): pre.append(fn); return fn
        extra = Uniq()
        vq = [(after(0), P(f)) for _, f in rest1]
        st = {"q": False}
        q_l0 = lambda: self.flag_load(XB, sFl0, "Q0", 2)
        q_l1 = lambda: self.flag_load(XB + 2, sFl1, "Q1", 2)
        q_c0 = lambda: self.flag_check(XB, sFl0, "Q0", 2)
        def q_c1():
            self.flag_check(XB + 2, sFl1, "Q1", 2); st["q"] = True
        qc = cfg["qck"]
        extra[qc - 33] = q_l0; extra[qc - 29] = q_l1; extra[qc - 1] = q_c0; extra[qc + 3] = q_c1
        attl = []
        lastkv = [-100]
        def att_ok(gap, j):
            if not st["q"] or gap - lastkv[0] < cfg["kvgap"]: return False
            attl or attl.extend(self.att_loads(False))
            if j < 10:
                if self.next < 30 or self.pend: return False
                if "K" not in self.slot:
                    if not (self.free(7) and self.free(8)): return False
                    self.alloc("K", 7); self.alloc("V", 8)
            lastkv[0] = gap
            return True
        bq = []
        for k in range(4, 8):
            bq += [(after(4 * (5 * (k - 4) + 10)), f) for f in self.b_loads(k)]
        for _, f in bq[:10]: P(f)
        P(q_l0); P(q_l1)
        for _, f in bq[10:]: P(f)
        P(q_c0); P(q_c1)
        pre.append("att")
        for j in list(range(10, 15)) + list(range(10)): vq.append((lambda gap, j=j: att_ok(gap, j), lambda j=j: attl[j]()))
        vq += bq
        wq = []
        for s in range(7):
            ok = lambda gap, s=s: self.next >= 30 and not self.pend and (self.owner[s] == ("WO", s) or self.free(s))
            wq += [(ok, f) for f in self.wo_loads(s)]
        vq += wq
        extra[cfg["pub3"]] = lambda: (self.publish(3, ["E1"]), self.retouch("F", PB[1] + 7))
        rest = self.body(2, self.epi_f(ACC[1], PB[1] + 7), 3, wrange=(4, cfg["w2"]), extra=extra, vq=vq, vq1=cfg["vq1"], vq2=cfg["vq2"])
        self.stamp(5)
        wfs = [f for _, f in wq]
        late = [f for c_, f in rest if f not in wfs] + [P(f) for k in (11, 12) for f in self.b_loads(k)]
        late += [f for c_, f in rest if f in wfs and c_(160)]
        ntail = cfg["ntail"]
        assert 15 - vm.q.count("KV") <= ntail and "K" in self.slot
        post = late[ntail:]; late = late[:ntail]
        wrest = [f for c_, f in rest if f in wfs and f not in late]
        post = [f for f in post if f not in wfs]
        pre[:] = [f for f in pre if f not in post]
        for f in wfs:
            if f not in wrest: P(f)
        def tail(ops, inter, tag):
            inter = list(inter); n = len(ops); k = len(inter); j = 0
            for i, op in enumerate(ops):
                self.emit(op, tag)
                while j < k and j < (i + 1) * k // n:
                    inter[j](); j += 1
        a("s_nop 5")
        tail(self.epi_f_tail(ACC[0], PB[2] + 7), late, "E2")
        if cfg.get("verbose"): print("tail loads", len(late), "after join: B loads", len(post), "wo loads", len(wrest))
        self.lastbar = 100
        self.alloc("O", 9)
        a.label(f"{label}_join")
        self.stamp(6)
        self.vPub = 20
        self.flag_load(vFl, sFl0, "F3", 3)
        a(f"s_lshr_b32 s{sA}, s{sM0}, 2\nv_add_u32 v{vA[0]}, s{sA}, v{vL16}")
        for i in range(1, 4): a(f"v_add_u32 v{vA[i]}, 1024, v{vA[i-1]}\nv_and_b32 v{vA[i]}, 4095, v{vA[i]}")
        a("s_barrier")
        def xaddr(j, d, t1, t2):
            return [f"v_add_u32 v{t1}, {64*j}, v0", f"v_mul_u32_u24 v{t2}, {(1<<16)//10+1}, v{t1}", f"v_lshrrev_b32 v{t2}, 16, v{t2}",
                    f"v_mul_u32_u24 v{t2}, {1280-160}, v{t2}", f"v_lshl_add_u32 v{t2}, v{t1}, 4, v{t2}", f"v_add_u32 v{d}, s{sXo}, v{t2}"]
        def xl(j):
            for o in xaddr(j, 114, 114, 115): a(o)
            a(f"s_mul_i32 s{sA+2}, s{sWave}, 2560\ns_add_u32 m0, s{sA+2}, {102400 + 1024*j}")
            a("s_mov_b32 exec_hi, 0" if j == 2 else "s_nop 0")
            vm.issue(a, f"global_load_lds_dwordx4 v114, s[4:5]", "XO")
            if j == 2: a("s_mov_b32 exec_hi, -1")
        post = post + (self.b_loads(10) if 'B10' not in cfg['forder'] else [])
        free_ = [lambda j=j: xl(j) for j in range(3)] + post + wrest
        n1 = cfg["natt1"]; n2 = cfg["natt2"]
        inter = free_[:n1] + [lambda: self.flag_check(vFl, sFl0, "F3", 3)]
        al = free_[n1:]
        aa = [f for k in range(7) for f in self.a_loads(k)]
        inter += aa[:n2]
        inter.insert(min(len(inter), cfg["pub4"]), lambda: self.publish(4, ["E2"]))
        ost = self.attention(inter)
        self.stamp(8)
        XR = 4; vX = 14; vW = 25; vRd = 28; vXo = [1, 2, 29]
        KF = cfg["kf"]
        wl = [f for f in al if f not in post]
        Q_ = [(0, f) for f in ost + aa[n2:] + [f for f in al if f in post]]
        grp = lambda e, fs: [(e, f) for f in fs]
        A_ = lambda k: grp(max(k - 6, KF if k >= 8 else 0), self.a_loads(k))
        B_ = lambda k: grp(0, self.b_loads(k))
        for it in cfg["forder"]:
            Q_ += A_(int(it[1:])) if it[0] == "A" else B_(int(it[1:])) if it[0] == "B" else grp(0, wl) if it == "W" else grp(5, ["x0", "x1", "x2"])
        OA = 176
        def wo_reads(T):
            b = WR[T % 6]
            return [f"ds_read_b128 v[{b+4*u}:{b+4*u+3}], v{vL16 if T < 12 else 15} offset:{(T % 12)*5120 + u*1024}" for u in range(5)]
        def o_load(T):
            def f():
                if T % 4 == 0: a(f"s_add_u32 s{sGb}, s{sOld}, {T*1024}")
                vm.issue(a, f"buffer_load_dwordx4 a[{OA+4*T}:{OA+4*T+3}], v{vL16}, s[{SRDW}:{SRDW+3}], s{sGb} offen offset:{1024*(T&3)} sc1", f"PO{T//2}")
            return f
        KB = cfg["kbar"]; KO = cfg["ko"]; ns = cfg["nside"]; NOF = cfg["no_f"]; KX = cfg["kx"]
        R = 32; FO = 236; SQ = [92, 4, 8, 16, 20]; XU = 216
        WR = [116, 136, 156, 176, 196, 96]
        lq = LQ()
        def mf(k, i, u):
            t_ = (i * 5 + u) * 4
            d = f"a[{t_}:{t_+3}]" if i else f"v[{FO+t_}:{FO+t_+3}]"
            a(f"v_mfma_f32_16x16x32_bf16 {d}, {self.rr(self.BSLOT[k], 4*u)}, {self.rr(self.ASLOT[k], 4*i)}, {'0' if k == 0 else d}")
        def wait_ab(k):
            assert vm.q.count(f"PB{k}") == 5 and vm.q.count(f"PA{k}") == 4
            vm.wait(a, f"PA{k}" if vm.last(f"PA{k}") > vm.last(f"PB{k}") else f"PB{k}")
        olist = [o_load(T) for T in range(20)]
        for k in range(KX):
            if k % 2 == 0: self.mark(10 + k // 2)
            wait_ab(k)
            side = []
            if k == KF - 2: side += [lambda: self.flag_load(vFl, sFl0, "F4", 4)]
            if k == cfg.get("kp5", 3): side += [lambda: self.publish(5, ["O"])]
            if k == KF: self.flag_check(vFl, sFl0, "F4", 4)
            if k == KO - 2: side += [lambda: self.flag_load(vFl, sFl0, "F5", 5)]
            if k == KO: self.flag_check(vFl, sFl0, "F5", 5, half=True)
            room = ns[k] - len(side)
            for it in list(Q_):
                if room > 0 and it[0] <= k:
                    Q_.remove(it); room -= 1
                    side.append((lambda j=int(it[1][1]): xl(j)) if isinstance(it[1], str) else it[1])
            if k >= KO and not Q_ and room > 0: side += olist[:room]; olist = olist[room:]
            if k == 4:
                for j in range(3): side += [lambda o=o: a(o) for o in xaddr(j, vXo[j], 3, 14)]
            if k == 5:
                side += [lambda o=o: a(o) for o in lines(f"""
                    v_and_b32 v3, 15, v0
                    v_mul_u32_u24 v{vX}, 160, v3
                    v_lshrrev_b32 v3, 4, v0
                    v_lshl_add_u32 v{vX}, v3, 3, v{vX}
                    v_add_u32 v15, {12*5120}, v{vL16}
                    s_mov_b32 s{sA}, 0x{NLOG2E:x}
                    s_mov_b32 s{sA+1}, 0xffff0000
                    """)]
            if k == 6:
                for i in range(4):
                    d = vRd if i == 0 else vW + i - 1
                    side += [lambda o=o: a(o) for o in (f"v_lshrrev_b32 v3, 10, v{vA[i]}", f"v_mul_u32_u24 v3, 15360, v3",
                                                         f"v_add_u32 v3, {102400 + max(i-1, 0)*5120}, v3", f"v_add_u32 v{d}, v3, v{vL16}")]
            if k == KB - 1:
                side += [lambda: (vm.wait(a, "XO", 3), a(f"s_add_u32 s{sA+2}, s{sA+2}, 102400\nv_add_u32 v3, s{sA+2}, v{vX}"))]
                side += [lambda u=u: lq.issue(a, f"ds_read_b64 v[{XR+2*u}:{XR+2*u+1}], v3 offset:{32*u}", "XL") for u in range(5)]
            if k == KB:
                lq.wait(a, "XL"); vm.wait(a, "WO", 25); a("s_barrier")
            nsd = len(side); j = 0
            for i in range(4):
                for u in range(5):
                    mf(k, i, u)
                    while j < nsd and j < (i * 5 + u + 1) * nsd // 20:
                        side[j](); j += 1
        assert not Q_, len(Q_)
        assert KB < KX and KO < KX and KX >= 10
        self.mark(16)
        nk = 14 - KX
        base_side = olist[:max(NOF - (20 - len(olist)), 0)]; olist = olist[len(base_side):]
        ol_ = base_side
        base_side = [lambda r=r, T=T: lq.issue(a, r, f"W{T}") for T in range(5) for r in wo_reads(T)]
        base_side += [lambda j=j: a(f"v_and_b32 v{XU+j}, s{sA+1}, v{XR+(j>>1)}" if j & 1 else f"v_lshlrev_b32 v{XU+j}, 16, v{XR+(j>>1)}") for j in range(20)]
        for j_, f_ in enumerate(ol_): base_side.insert(j_ * (45 + len(ol_)) // len(ol_), f_)
        nb_ = len(base_side); jb = 0; m = 0
        for ri, i in enumerate((1, 2, 3, 0)):
            pw = []
            if ri:
                ip = (1, 2, 3)[ri - 1]
                pw = [f"ds_write_b128 v{vW+ip-1}, a[{(ip*5+u)*4}:{(ip*5+u)*4+3}] offset:{u*1024}" for u in range(5)]
            mm = 0
            for k in range(KX, 14):
                if ri == 0: wait_ab(k)
                for u in range(5):
                    mf(k, i, u); m += 1; mm += 1
                    if pw and mm >= 4 and (mm - 4) * 5 >= (5 - len(pw)) * (5 * nk - 4): lq.issue(a, pw.pop(0), "PW")
                    else:
                        while jb < nb_ and jb < m * nb_ // (20 * nk):
                            base_side[jb](); jb += 1
            for w_ in pw: lq.issue(a, w_, "PW")
        while jb < nb_:
            base_side[jb](); jb += 1
        self.stamp(7)
        work = [("f", f) for f in olist[:2]] + [("bar",)]
        for j in range(15): work.append(("l", f"ds_read_b128 v[{R+4*j}:{R+4*j+3}], v{vRd} offset:{j*1024}", "PR"))
        work += [("f", f) for f in olist[2:]]
        pk2 = lambda op, d, x, y: "\n".join(f"{op} v[{d+2*j}:{d+2*j+1}], v[{x+2*j}:{x+2*j+1}], {y(j)}" for j in range(10))
        work.append(("v", f"v_sub_u32 v3, v{vRd}, v{vL16}")); work.append(("v", f"v_add_u32 v3, v3, v{vX}"))
        work.append(("lw", "PR"))
        work.append(("v", "\n".join([pk2("v_pk_add_f32", FO, FO, lambda j: f"v[{R+2*j}:{R+2*j+1}]"),
                                     pk2("v_pk_add_f32", R+20, R+20, lambda j: f"v[{R+40+2*j}:{R+40+2*j+1}]"),
                                     pk2("v_pk_add_f32", FO, FO, lambda j: f"v[{R+20+2*j}:{R+20+2*j+1}]"),
                                     pk2("v_pk_mul_f32", R, FO, lambda j: f"s[{sA}:{sA+1}] op_sel_hi:[1,0]")])))
        for j in range(20): work.append(("v", f"v_exp_f32 v{R+j}, v{R+j}"))
        for j in range(20): work.append(("v", f"v_add_f32 v{R+j}, 1.0, v{R+j}"))
        for j in range(20): work.append(("v", f"v_rcp_f32 v{R+j}, v{R+j}"))
        def do(wk):
            if wk[0] == "v": a(wk[1])
            elif wk[0] == "f": wk[1]()
            elif wk[0] == "l": lq.issue(a, wk[1], wk[2])
            elif wk[0] == "lw": lq.wait(a, wk[1])
            elif wk[0] == "bar":
                lq.wait(a, "PW"); self.mark(20); a("s_barrier"); self.mark(21)
        nw = len(work); done = 0; m = 0
        for T in range(20):
            if T % 2 == 0: vm.wait(a, f"PO{T//2}", 2)
            if T in (0, 10, 16): self.mark({0: 17, 10: 18, 16: 19}[T])
            if T % 2 == 0: lq.wait(a, f"W{T+1}")
            rd = wo_reads(T + 5) if T + 5 < 20 else []
            b = WR[T % 6]
            for u in range(5):
                d = f"v[{SQ[u]}:{SQ[u]+3}]"
                a(f"v_mfma_f32_16x16x32_bf16 {d}, v[{b+4*u}:{b+4*u+3}], a[{OA+4*T}:{OA+4*T+3}], {'0' if T == 0 else d}")
                m += 1
                if rd: lq.issue(a, rd.pop(0), f"W{T+5}")
                tgt = m * nw * cfg.get("sw", 80) // (75 * 100) if m <= 75 else nw * cfg.get("sw", 80) // 100 + (m - 75) * (nw - nw * cfg.get("sw", 80) // 100) // 25
                while done < nw and done < tgt:
                    do(work[done]); done += 1
        assert done == nw
        a("s_nop 0")
        a(pk2("v_pk_mul_f32", FO, FO, lambda j: f"v[{R+2*j}:{R+2*j+1}]"))
        for u in range(5):
            for h in range(2):
                f0 = FO + 4 * u + 2 * h; s_ = SQ[u] + 2 * h; x_ = XU + 4 * u + 2 * h
                a(f"v_pk_fma_f32 v[{f0}:{f0+1}], v[{f0}:{f0+1}], v[{s_}:{s_+1}], v[{x_}:{x_+1}]")
            f0 = FO + 4 * u; o = 64 + 2 * u
            a(f"v_cvt_pk_bf16_f32 v{o}, v{f0}, v{f0+1}")
            a(f"v_cvt_pk_bf16_f32 v{o+1}, v{f0+2}, v{f0+3}")
            a(f"ds_write_b64 v3, v[{o}:{o+1}] offset:{32*u}")
        a("s_waitcnt lgkmcnt(0)")
        for j in range(3): a(f"ds_read_b128 v[{76+4*j}:{79+4*j}], v{vRd} offset:{1024*j}")
        for j in range(3):
            a(f"s_waitcnt lgkmcnt({2-j})")
            if j == 2: a("s_mov_b32 exec_hi, 0")
            a(f"global_store_dwordx4 v{vXo[j]}, v[{76+4*j}:{79+4*j}], s[6:7] {cfg.get('scO', '')}")
        a("s_mov_b32 exec_hi, -1")
        self.mark(22)
        if self.stamps:
            a("s_waitcnt vmcnt(0)")
            a(f"s_memtime s[{sA}:{sA+1}]")
            a(f"s_memrealtime s[{sA+2}:{sA+3}]")
            a("s_waitcnt lgkmcnt(0)")
            for i in range(1, 8):
                a(f"s_sub_u32 s{sA+4}, s{ST0+2*(i-1)}, s0\nv_mov_b32 v{32+i}, s{sA+4}")
            a(f"s_sub_u32 s{sA+4}, s{sA}, s0\nv_mov_b32 v40, s{sA+4}\nv_mov_b32 v41, s{sA+2}")
            a(f"s_sub_u32 s{sA+4}, s{ST0+14}, s0\nv_mov_b32 v42, s{sA+4}")
            a(f"""
            v_mov_b32 v32, s1
            s_lshl_b32 s{sA}, s2, 2
            s_add_u32 s{sA}, s{sA}, s{sWave}
            s_lshl_b32 s{sA}, s{sA}, 6
            s_add_u32 s{sA}, s{sA}, {WS_STAMP}
            s_mov_b64 exec, 1
            buffer_store_dwordx4 v[32:35], off, s[{SRDW}:{SRDW+3}], s{sA}
            buffer_store_dwordx4 v[36:39], off, s[{SRDW}:{SRDW+3}], s{sA} offset:16
            buffer_store_dwordx4 v[40:43], off, s[{SRDW}:{SRDW+3}], s{sA} offset:32
            """)
        a("s_endpgm")
        a.label(f"{label}_two")
        self.stamp(5)
        self.vm = vm = VM()
        self.vPub = 62
        self.vm.q = list(vm_split)
        self.vm.wait(a, [t_ for t_ in self.vm.q if t_[0] == "B" and t_[1:].isdigit()][-1])
        a("s_waitcnt lgkmcnt(0)\ns_barrier\ns_nop 4")
        flat = []
        for f in pre: flat += self.att_loads() if f == "att" else [f]
        nb_ = cfg["nbtail"]
        tail(self.epi_f_tail(ACC[1], PB[1] + 7), flat[:nb_], "E1")
        for i, f in enumerate(flat[nb_:]):
            if i == cfg["nbpub"]:
                self.publish(3, ["E1"]); a("s_nop 1"); self.publish(4, []); self.retouch("F", PB[1] + 7)
            if i % 8 == 3 and cfg.get("markT", 2) == 2: self.mark(i // 8)
            f()
        a("s_waitcnt vmcnt(0)")
        a(f"s_branch {label}_join")
        for s in self.slow: a(s)
        a.label(f"{label}_end")
        a("s_endpgm")
        a.end_kernel(label, 512, 102, 256, 256, 256, 163840)
        return a.text("generated by dev/fused2.py: one persistent kernel, 256 workgroups (one per CU)\n"
                      "phase 1: LayerNorm + x@[wqkv|w_gate|w_up] (+ weight repack), attention, phase 2: h@w_down, o@wo, combine")

if __name__ == "__main__":
    stamps = "--stamps" in sys.argv
    pos = [x for x in sys.argv[1:] if not x.startswith("--")]
    cfg = json.loads(pos[1]) if len(pos) > 1 else {}
    open(pos[0], "w").write(Gen(cfg, stamps).build())
```

```python
import sys, json, struct; sys.path.insert(0, "dev")
from asmlib import *

WS_H = 0
WS_O = 0x780000
WS_WD = 0xA00000
WS_WO = 0xD00000
WS_QKV = 0x1000000
WS_FLAG = 0x1800000
WS_EPOCH = WS_FLAG - 256
WS_STAMP = 0x1900000
WS_SIZE = 0x2000000
OOB = 0x4000000
TOKX = 0x5bd1e995
NLOG2E = 0xbfb8aa3b
def f2u(x): return struct.unpack("<I", struct.pack("<f", x))[0]
C_SM = f2u(20 ** -0.5 * 1.4426950408889634)

XB = 96; EP = 32; ACC = [0, 64]; WF = 128; NWB = 3
vLd = 1; vTr = 5
vSF = 17; vL8 = 18; vC1 = 19; vD2 = 20; vR = 21; vNegM = 22; vSum = 23; vSq = 24
vRow = 25; vCol = 26; vT = 27
vDbg = 30; vL16 = 31
vFl = 22
vQa = 28; vKa = 29
vA = [16, 17, 19, 24]
PR = 64
sOOB = 3
pQKV = 76; pWS = 78; pWO = 80; pDN = 82; pG = 84; pU = 86
sWave = 8; sMb64 = 9; sHalf = 10; sM0 = 11; sSoff = 12; sStep = 13; sWrap = 14; sThree = 15
SRDW = 16
SRDX = 20
sGa = 20; sGb = 21; sDuty = 96
PB = [24, 32, 40]
PK = 48
sOne = 57; sLo = 58; sHi = 59
sTok = 60
sFlag = 62; sFl0 = 63; sFl1 = 64; sFlG = 65
sAb = 66; sAb2 = 67; sBb = 68; sBb2 = 69; sOld = 70; sWOb = 71; sOst = 72; sOst2 = 73; sKV = 74; sXo = 75
ST0 = 76
sMb = 88; sJ = 89; sRot = 90; sNb = 91
sA = 92

class VM:
    def __init__(self): self.q = []
    def issue(self, a, ins, tag):
        a(ins); self.q.append(tag)
    def last(self, tag): return max(i for i, t in enumerate(self.q) if t == tag)
    def wait(self, a, tag, cnt=None):
        if cnt is not None: assert self.q.count(tag) == cnt, (tag, self.q.count(tag))
        a(f"s_waitcnt vmcnt({min(len(self.q) - 1 - self.last(tag), 63)})")
class LQ:
    def __init__(self): self.q = []
    def issue(self, a, ins, tag):
        a(ins); self.q.append(tag)
    def wait(self, a, tag):
        idx = max(i for i, t in enumerate(self.q) if t == tag)
        a(f"s_waitcnt lgkmcnt({min(len(self.q) - 1 - idx, 15)})")
class Uniq(dict):
    def __setitem__(self, k, v):
        assert k not in self, ("duplicate gap", k)
        dict.__setitem__(self, k, v)
def lines(s): return [l.split(";;")[0].strip() for l in s.split("\n") if l.split(";;")[0].strip()]
DIV5 = (1 << 16) // 5 + 1
DIV3 = (1 << 16) // 3 + 1

class Gen:
    def __init__(self, cfg, stamps):
        self.cfg = dict(dict(LA=6, XW=4, spl=20, PB=2, bar2=True, rpat=[2, 2, 2, 2], dmagap=2, spin=3000, cap=5.0,
                             rotm=0x7520, rotx=0x1210, tch=-1, tch2=110, pk0=18, pk1=70, pub1=124, pub2=124, gck=118, qck=70, pub3=126, qsh=15,
                             w1=100, w2=96, b1vq=1, vq1=1, vq2=1, ntail=16, natt1=11, natt2=24, pub4=12,
                             nside=[6] * 14, kvgap=6, nc=3, p2x=2, nbtail=14, nbpub=12, stb=1, stq=False, kf=4, forder=['A7', 'A8', 'B8', 'A9', 'B9', 'W', 'A10', 'B10', 'A11', 'A12', 'A13', 'B13'], kbar=10, ko=10, no_f=12, kx=11), **cfg)
        self.stamps = stamps
        self.a = Asm(); self.vm = VM()
        self.label = NAME + "_kernel"
        self.slot = {}; self.owner = [None] * 10
        self.xdone = set(); self.lastbar = -10
        self.next = 0; self.pend = []; self.slow = []
        self.vPub = 92
    def stamp(self, i, pro=False):
        if self.cfg.get("pst") and i and not pro: return
        if pro and not self.cfg.get("pst"): return
        if self.stamps: self.a(f"s_memtime s[{ST0+2*(i-1)}:{ST0+2*(i-1)+1}]" if i else "s_memtime s[0:1]")
    def mark(self, i):
        if self.cfg.get("marks"):
            r = 22
            self.a(f"""
            s_memtime s[{r}:{r+1}]
            s_waitcnt lgkmcnt(0)
            s_sub_u32 s{r}, s{r}, s0
            v_mov_b32 v{vDbg}, s{r}
            s_lshl_b32 s{r}, s2, 2
            s_add_u32 s{r}, s{r}, s{sWave}
            s_lshl_b32 s{r}, s{r}, 7
            s_add_u32 s{r}, s{r}, {WS_STAMP + 0x40000 + 4*i}
            s_mov_b64 exec, 1
            """)
            self.vm.issue(self.a, f"buffer_store_dword v{vDbg}, off, s[{SRDW}:{SRDW+3}], s{r}", "mk")
            self.a("s_mov_b64 exec, -1\ns_nop 1")
    def emit(self, op, tag="st"):
        for o in op.split(";"):
            o = o.strip()
            if o.startswith(("global_", "buffer_")): self.vm.issue(self.a, o, tag)
            else: self.a(o)
    def free(self, s):
        o = self.owner[s]
        if o is None: return True
        if o[0] == "B": return o[1] <= self.lastbar - 1
        return o in self.xdone
    def cands(self, name):
        c = [s for s in range(10) if self.free(s)]
        if name[0] == "B" and name[1] >= self.cfg.get("avoid_from", 23): c = [s for s in reversed(c) if s not in (7, 8)]
        return c
    def alloc(self, name, want=None):
        c = self.cands(name) if want is None else [s for s in range(10) if self.free(s) and s == want]
        assert c, ("no free slot", name, self.owner, self.lastbar)
        s = c[0]; self.owner[s] = name; self.slot[name] = s
        return s

    def pos_ops(self, f, d):
        t = sA + 4
        return [f"s_lshr_b32 s{t}, s{f}, 2", f"s_mul_i32 s{t}, s{t}, 6", f"s_lshl_b32 s{d}, s{f}, 1", f"s_add_u32 s{t}, s{t}, s{d}",
                f"s_sub_u32 s{t+1}, s{f}, 16", f"s_mul_i32 s{t+1}, s{t+1}, {DIV3}", f"s_lshr_b32 s{t+1}, s{t+1}, 16", f"s_lshl_b32 s{t+1}, s{t+1}, 3",
                f"s_add_u32 s{t+1}, s{t+1}, s{d}", f"s_sub_u32 s{t+1}, s{t+1}, 24",
                f"s_cmp_lt_u32 s{f}, 16; s_cselect_b32 s{d}, s{t}, s{t+1}"]
    def f_params(self, P, code):
        t = sA
        return lines(f"""
        s_mov_b32 s{P+3}, 0x20000
        s_cmp_lt_u32 s{sWave}, 2; s_cselect_b32 s{P}, s{pG}, s{pU}; s_cselect_b32 s{P+1}, s{pG+1}, s{pU+1}
        s_cmp_lt_u32 s{code}, 27; s_cselect_b32 s{P+2}, {640*3456}, 0
        s_movk_i32 s{P+4}, 3456
        s_lshl_b32 s{P+5}, s{code}, 7
        s_mul_i32 s{P+6}, s{sRot}, {64*3456}
        """) + self.pos_ops(code, P + 7) + lines(f"""
        s_lshl_b32 s{t}, s{sMb}, 1
        s_lshr_b32 s{t+1}, s{sWave}, 1
        s_add_u32 s{t}, s{t}, s{t+1}
        s_mul_i32 s{t}, s{t}, 56
        s_add_u32 s{P+7}, s{P+7}, s{t}
        s_lshl_b32 s{P+7}, s{P+7}, 12
        s_and_b32 s{t+1}, s{sWave}, 1
        s_lshl_b32 s{t+1}, s{t+1}, 11
        s_add_u32 s{P+7}, s{P+7}, s{t+1}
        """)
    def q_params(self, P, q):
        t = sA
        return lines(f"""
        s_mov_b32 s{P+3}, 0x20000
        s_mov_b32 s{P}, s{pQKV}
        s_mov_b32 s{P+1}, s{pQKV+1}
        s_movk_i32 s{P+4}, 3840
        s_lshr_b32 s{t}, s{sWave}, 1
        s_lshl_b32 s{P+5}, s{q}, 1
        s_add_u32 s{P+5}, s{P+5}, s{t}
        s_lshl_b32 s{P+5}, s{P+5}, 7
        s_mul_i32 s{P+6}, s{sRot}, {64*3840}
        s_lshl_b32 s{t}, s{sMb}, 2
        s_add_u32 s{t}, s{t}, s{sWave}
        s_mul_i32 s{t}, s{t}, 122880
        s_lshl_b32 s{t+1}, s{q}, 13
        s_add_u32 s{t}, s{t}, s{t+1}
        s_add_u32 s{t}, s{t}, {WS_QKV}
        s_cmp_lt_u32 s{q}, 15; s_cselect_b32 s{P+2}, {640*3840}, 0; s_cselect_b32 s{P+7}, s{t}, s{sOOB}
        """)
    def pack_params(self):
        P = PK; t = sA
        r = lines(f"""
        s_mov_b32 s{P+3}, 0x20000
        s_mov_b32 s{t+2}, {640*1280}
        s_cmp_lt_u32 s2, 135; s_cselect_b32 s{P}, s{pDN}, s{pWO}; s_cselect_b32 s{P+1}, s{pDN+1}, s{pWO+1}; s_cselect_b32 s{P+2}, {1728*1280}, s{t+2}; s_cselect_b32 s{t}, 0, 135
        s_sub_u32 s{t}, s2, s{t}
        s_mul_i32 s{t+2}, s{t}, {DIV5}
        s_lshr_b32 s{t+2}, s{t+2}, 16
        s_mul_i32 s{t+3}, s{t+2}, 5
        s_sub_u32 s{t+1}, s{t}, s{t+3}
        s_mul_i32 s{P+4}, s{t+2}, {64*1280}
        s_lshl_b32 s{t+3}, s{t+1}, 8
        s_add_u32 s{P+4}, s{P+4}, s{t+3}
        s_lshr_b32 s{t+3}, s{sWave}, 1
        s_lshl_b32 s{t+3}, s{t+3}, 7
        s_add_u32 s{P+4}, s{P+4}, s{t+3}
        """) + self.pos_ops(t + 2, t + 3) + lines(f"""
        s_lshl_b32 s{t+2}, s{t+2}, 1
        s_mov_b32 s{t}, {WS_WO}
        s_movk_i32 s{t+6}, 100
        s_cmp_lt_u32 s2, 135; s_cselect_b32 s{t+3}, s{t+3}, s{t+2}; s_cselect_b32 s{t}, {WS_WD}, s{t}; s_cselect_b32 s{t+6}, 280, s{t+6}
        s_and_b32 s{t+2}, s{sWave}, 1
        s_add_u32 s{t+3}, s{t+3}, s{t+2}
        s_mul_i32 s{t+3}, s{t+3}, 5120
        s_add_u32 s{t}, s{t}, s{t+3}
        s_cmp_lt_u32 s2, 185; s_cselect_b32 s{P+2}, s{P+2}, 0; s_cselect_b32 s{t}, s{t}, s{sOOB}
        s_lshl_b32 s{t+1}, s{t+1}, 3
        s_and_b32 s{t+2}, s{sWave}, 2
        s_lshl_b32 s{t+2}, s{t+2}, 1
        s_add_u32 s{t+1}, s{t+1}, s{t+2}
        s_sub_u32 s{t+6}, s{t+6}, 5
        """)
        for ch in range(4):
            r += lines(f"""
            s_add_u32 s{t+2}, s{t+1}, {ch}
            s_mul_i32 s{t+3}, s{t+2}, {DIV5}
            s_lshr_b32 s{t+3}, s{t+3}, 16
            s_mul_i32 s{t+3}, s{t+3}, s{t+6}
            s_add_u32 s{t+3}, s{t+3}, s{t+2}
            s_lshl_b32 s{t+3}, s{t+3}, 10
            s_add_u32 s{P+5+ch}, s{t+3}, s{t}
            """)
        return r
    def p2_params(self):
        t = sA
        if self.cfg.get("p2x") == 2:
            return lines(f"""
            s_lshr_b32 s{t}, s{sJ}, 1
            s_add_u32 s{sNb}, s{sMb}, s{t}
            s_and_b32 s{sNb}, s{sNb}, 3
            s_lshl_b32 s{t}, s{sHalf}, 2
            s_or_b32 s{sNb}, s{sNb}, s{t}
            s_and_b32 s{t}, s{sJ}, 1
            s_lshl_b32 s{sMb64}, s{sMb}, 1
            s_add_u32 s{sMb64}, s{sMb64}, s{t}
            s_lshl_b32 s{t}, s{t}, 2
            s_lshl_b32 s{sHalf}, 0x0f0f0f0f, s{t}
            """) + self.p2_params0()[5:]
        if self.cfg.get("p2x"):
            r = self.p2_params0()[5:]
            return lines(f"""
            s_add_u32 s{sNb}, s{sMb}, s{sJ}
            s_and_b32 s{sNb}, s{sNb}, 3
            s_lshl_b32 s{t}, s{sHalf}, 2
            s_or_b32 s{sNb}, s{sNb}, s{t}
            s_lshr_b32 s{t}, s{sJ}, 2
            s_lshl_b32 s{sMb64}, s{sMb}, 1
            s_add_u32 s{sMb64}, s{sMb64}, s{t}
            s_lshl_b32 s{t}, s{t}, 4
            s_lshl_b32 s{sHalf}, 0xffff, s{t}
            """) + r
        return self.p2_params0()
    def p2_params0(self):
        t = sA
        return lines(f"""
        s_lshl_b32 s{sNb}, s{sMb}, {0 if self.cfg.get("map8") else 1}
        s_add_u32 s{sNb}, s{sNb}, s{sJ}
        s_and_b32 s{sNb}, s{sNb}, {3 if self.cfg.get("map8") else 7}
        s_and_b32 s{t}, s{sJ}, {4 if self.cfg.get("map8") else 0}
        s_or_b32 s{sNb}, s{sNb}, s{t}
        s_mul_i32 s{t}, s{sWave}, 14
        s_mul_i32 s{sAb}, s{sMb64}, 56
        s_add_u32 s{sAb}, s{sAb}, s{t}
        s_lshl_b32 s{sAb}, s{sAb}, 12
        s_mul_i32 s{sBb}, s{sNb}, 56
        s_add_u32 s{sBb}, s{sBb}, s{t}
        s_mul_i32 s{sBb}, s{sBb}, 5120
        s_add_u32 s{sBb}, s{sBb}, {WS_WD}
        s_cmp_lt_u32 s{sWave}, 3; s_cselect_b32 s{sAb2}, s{sAb}, s{sOOB}; s_cselect_b32 s{sBb2}, s{sBb}, s{sOOB}
        s_mul_i32 s{t}, s{sMb64}, 81920
        s_add_u32 s{t}, s{t}, {WS_O}
        s_mul_i32 s{sOld}, s{sWave}, 20480
        s_add_u32 s{sOld}, s{sOld}, s{t}
        s_mul_i32 s{sOst}, s{sNb}, 10
        s_add_u32 s{sOst}, s{sOst}, s{sWave}
        s_lshl_b32 s{sOst}, s{sOst}, 8
        s_add_u32 s{sOst}, s{sOst}, s{t}
        s_cmp_lt_u32 s{sWave}, 2; s_cselect_b32 s{sOst2}, s{sOst}, s{sOOB}
        s_mul_i32 s{sWOb}, s{sNb}, 102400
        s_add_u32 s{sWOb}, s{sWOb}, {WS_WO}
        s_add_u32 s{sWOb}, s{sWOb}, s{sM0}
        s_lshl_b32 s{sKV}, s{sNb}, 2
        s_add_u32 s{sKV}, s{sKV}, s{sWave}
        s_mul_i32 s{sKV}, s{sKV}, 1280
        s_add_u32 s{sKV}, s{sKV}, {WS_QKV}
        s_lshl_b32 s{sXo}, s{sMb64}, 2
        s_add_u32 s{sXo}, s{sXo}, s{sWave}
        s_mul_i32 s{sXo}, s{sXo}, {16*1280}
        s_mul_i32 s{t}, s{sNb}, 160
        s_add_u32 s{sXo}, s{sXo}, s{t}
        s_lshl_b32 s{sFl0}, s{sMb}, 9
        s_add_u32 s{sFl0}, s{sFl0}, {WS_FLAG}
        s_max_u32 s{sFl1}, s{sMb}, 1
        s_lshl_b32 s{sFl1}, s{sFl1}, 9
        s_add_u32 s{sFl1}, s{sFl1}, {WS_FLAG - 512}
        s_lshl_b32 s{sFlG}, s{sWave}, 11
        s_add_u32 s{sFlG}, s{sFlG}, {WS_FLAG}
        s_lshl_b32 s{t}, s{sMb64}, 1
        v_lshrrev_b32 v{vQa}, 5, v0
        v_add_u32 v{vQa}, s{t}, v{vQa}
        v_mul_u32_u24 v{vQa}, 122880, v{vQa}
        v_and_b32 v{vKa}, 31, v0
        v_lshl_add_u32 v{vQa}, v{vKa}, 3, v{vQa}
        v_add_u32 v{vKa}, 8, v0
        v_lshrrev_b32 v{vT}, 4, v{vKa}
        v_add_u32 v{vT}, s{t}, v{vT}
        v_max_u32 v{vT}, 1, v{vT}
        v_subrev_u32 v{vT}, 1, v{vT}
        v_mul_u32_u24 v{vT}, 122880, v{vT}
        v_and_b32 v{vKa}, 15, v{vKa}
        v_lshl_add_u32 v{vKa}, v{vKa}, 4, v{vT}
        """)
    def switch_ops(self, P):
        t = sA
        return [f"v_mad_u32_u24 v{vLd}, v{vRow}, s{P+4}, v{vCol}",
                f"s_lshl_b32 s{sStep}, s{P+4}, 6",
                f"s_lshl_b32 s{t}, s{P+4}, 3",
                f"s_sub_u32 s{t}, s{t}, 1024",
                f"v_add_u32 v{vLd}, s{P+5}, v{vLd}",
                f"s_mul_i32 s{sWrap}, s{sStep}, 10",
                f"s_mov_b32 s{sSoff}, s{P+6}",
                f"v_add_u32 v{vLd+1}, s{t}, v{vLd}",
                f"v_add_u32 v{vLd+2}, s{t}, v{vLd+1}",
                f"v_add_u32 v{vLd+3}, s{t}, v{vLd+2}"]
    def dma_items(self, g):
        P = PB[g // 10]; slot = self.alloc(("B", g))
        it = [("op", f"s_add_u32 m0, s{sM0}, {slot*16384}")]
        if g % 10 == 0 and g > 0: it += [("op", o) for o in self.switch_ops(P)]
        elif g % 10: it.append(("op", f"s_add_u32 s{sSoff}, s{sSoff}, s{sStep}; s_cmp_eq_u32 s{sSoff}, s{sWrap}; s_cselect_b32 s{sSoff}, 0, s{sSoff}"))
        it += [("ld", f"buffer_load_dwordx4 v{vLd+j}, s[{P}:{P+3}], s{sSoff} offen offset:{1024*j} lds", f"B{g}") for j in range(4)]
        return it
    def pop_ops(self):
        p = self.pend
        while p and p[0][0] != "ld": self.emit(p.pop(0)[1])
    def pop_ld(self):
        a = self.a; p = self.pend
        self.pop_ops()
        if p:
            if " m0," in a.lines[-1]: a("s_nop 0")
            _, l, tag = p.pop(0); self.vm.issue(a, l, tag)
    def tr_reads(self, G):
        g, s = G >> 2, G & 3
        slot = self.slot[("B", g)]; reg = slot >> 2
        o = (slot & 3) * 16384 + 16 * s * 128
        r = []
        for t in range(4):
            b = WF + 16 * (G % NWB) + 4 * t
            r += [f"ds_read_b64_tr_b16 a[{b}:{b+1}], v{vTr+4*reg+t} offset:{o}",
                  f"ds_read_b64_tr_b16 a[{b+2}:{b+3}], v{vTr+4*reg+t} offset:{o+512}"]
        return r
    def center_ops(self, stage):
        x = XB + 16 * stage; t = EP
        d = []
        for i in range(16):
            d.append(f"v_dot2_f32_bf16 v{t+2*i}, v{x+i}, s{sLo}, v{vNegM}")
            d.append(f"v_dot2_f32_bf16 v{t+2*i+1}, v{x+i}, s{sHi}, v{vNegM}")
        c = [f"v_cvt_pk_bf16_f32 v{x+i}, v{t+2*i}, v{t+2*i+1}" for i in range(16)]
        return d, c
    def epi_f(self, acc, so):
        ops = []; sts = []; nb = self.cfg["stb"]
        for t in range(4):
            g = EP + 32 * (t & 1); u = g + 8; e = g + 16; pk = g + 24 + 4 * (t >> 1)
            A = acc + 16 * t
            for i in range(8): ops.append(f"v_accvgpr_read_b32 v{g+i}, a{A+i}")
            for i in range(8): ops.append(f"v_mul_f32 v{e+i}, v{vC1}, v{g+i}")
            for i in range(8):
                ops.append(f"v_exp_f32 v{e+i}, v{e+i}")
                ops.append(f"v_accvgpr_read_b32 v{u+i}, a{A+8+i}")
            for i in range(8): ops.append(f"v_fma_f32 v{e+i}, v{e+i}, v{vD2}, v{vD2}")
            for i in range(8):
                ops.append(f"v_rcp_f32 v{e+i}, v{e+i}")
                ops.append(f"v_mul_f32 v{g+i}, v{g+i}, v{u+i}")
            for i in range(8): ops.append(f"v_mul_f32 v{g+i}, v{g+i}, v{e+i}")
            for i in range(4): ops.append(f"v_cvt_pk_bf16_f32 v{pk+i}, v{g+2*i}, v{g+2*i+1}")
            if t == 2: sts.append(f"s_add_u32 s{so}, s{so}, 4096")
            sts.append(f"buffer_store_dwordx4 v[{pk}:{pk+3}], v{vSF}, s[{SRDW}:{SRDW+3}], s{so} offen offset:{(t&1)*512} sc1")
            if (t + 1) % nb == 0:
                ops.append("; ".join(sts)); sts = []
        return ops
    def epi_f_tail(self, acc, so):
        ops = [f"v_mov_b32 v{vR}, v{vD2}", f"v_mov_b32 v{vT}, v{vC1}", f"v_mov_b32 v{vT-1}, v{vC1}"]
        p2 = lambda r: f"v[{r}:{r+1}]"
        for t in range(4):
            g = EP + 32 * (t & 1); u = g + 8; e = g + 16; pk = g + 24
            A = acc + 16 * t
            for i in range(8): ops.append(f"v_accvgpr_read_b32 v{g+i}, a{A+i}")
            for i in range(4): ops.append(f"v_pk_mul_f32 {p2(e+2*i)}, {p2(vT-1)}, {p2(g+2*i)}")
            for i in range(8):
                ops.append(f"v_exp_f32 v{e+i}, v{e+i}")
                ops.append(f"v_accvgpr_read_b32 v{u+i}, a{A+8+i}")
            for i in range(4): ops.append(f"v_pk_fma_f32 {p2(e+2*i)}, {p2(e+2*i)}, {p2(vD2)}, {p2(vD2)}")
            for i in range(8): ops.append(f"v_rcp_f32 v{e+i}, v{e+i}")
            for i in range(4): ops.append(f"v_pk_mul_f32 {p2(g+2*i)}, {p2(g+2*i)}, {p2(u+2*i)}")
            for i in range(4): ops.append(f"v_pk_mul_f32 {p2(g+2*i)}, {p2(g+2*i)}, {p2(e+2*i)}")
            for i in range(4): ops.append(f"v_cvt_pk_bf16_f32 v{pk+i}, v{g+2*i}, v{g+2*i+1}")
            if t == 2: ops.append(f"s_add_u32 s{so}, s{so}, 4096")
            ops.append(f"buffer_store_dwordx4 v[{pk}:{pk+3}], v{vSF}, s[{SRDW}:{SRDW+3}], s{so} offen offset:{(t&1)*512} sc1")
        return ops
    def epi_q(self, acc, so):
        ops = [f"s_add_u32 s{so-1}, s{so}, 4096"]; sts = []; nb = self.cfg["stb"]
        for t in range(4):
            g = EP; pk = EP + 16 + 8 * t
            A = acc + 16 * t
            for i in range(16): ops.append(f"v_accvgpr_read_b32 v{g+i}, a{A+i}")
            for i in range(16): ops.append(f"v_mul_f32 v{g+i}, v{vR}, v{g+i}")
            for i in range(8): ops.append(f"v_cvt_pk_bf16_f32 v{pk+i}, v{g+2*i}, v{g+2*i+1}")
            for q in range(4):
                grp = 4 * t + 2 * (q & 1)
                sts.append(f"buffer_store_dwordx2 v[{pk+2*q}:{pk+2*q+1}], v{vL8}, s[{SRDW}:{SRDW+3}], s{so-(q>>1)} offen offset:{grp*256} sc1")
            if (t + 1) % nb == 0:
                if self.cfg.get("stq", True): ops.append("; ".join(sts))
                else: ops += sts
                sts = []
        return ops
    def publish(self, level, after):
        a = self.a
        for tg in after: self.vm.wait(a, tg)
        a(f"v_mov_b64 v[{self.vPub}:{self.vPub+1}], s[{sTok}:{sTok+1}]")
        a(f"s_add_u32 s{sA+8}, s{sFlag}, {level*8192}")
        a("s_mov_b64 exec, 1")
        self.vm.issue(a, f"buffer_store_dwordx2 v[{self.vPub}:{self.vPub+1}], off, s[{SRDW}:{SRDW+3}], s{sA+8} sc1", "fl")
        a("s_mov_b64 exec, -1")
    def retouch(self, kind, so=None):
        if kind not in self.cfg.get("rt", ""): return
        a = self.a; r = 88 if kind == "P" else self.vPub - 2
        if kind == "P":
            a(f"v_lshlrev_b32 v{r}, 7, v0\ns_mov_b64 exec, 0xff")
            for ch in range(4): self.vm.issue(a, f"buffer_load_dword v{r+1}, v{r}, s[{SRDW}:{SRDW+3}], s{PK+5+ch} offen", "rt")
            a("s_mov_b64 exec, -1")
        elif kind == "Q":
            a(f"v_lshlrev_b32 v{r}, 7, v0")
            self.vm.issue(a, f"buffer_load_dword v{r}, v{r}, s[{SRDW}:{SRDW+3}], s{so} offen", "rt")
        else:
            a(f"v_and_b32 v{r}, 16, v0\nv_add_u32 v{r}, v{r}, v0\nv_lshlrev_b32 v{r}, 7, v{r}\ns_sub_u32 s{sA+8}, s{so}, 4096\ns_mov_b32 exec_hi, 0")
            self.vm.issue(a, f"buffer_load_dword v{r}, v{r}, s[{SRDW}:{SRDW+3}], s{sA+8} offen", "rt")
            a("s_mov_b32 exec_hi, -1")
    def flag_ld(self, reg, soff, level, off, sc):
        return [f"s_add_u32 s{sA+8}, s{soff}, {level*8192}",
                f"buffer_load_dwordx2 v[{reg}:{reg+1}], v{vL8}, s[{SRDW}:{SRDW+3}], s{sA+8} offen offset:{off} {sc}"]
    def flag_load(self, reg, soff, tag, level, off=0):
        l = self.flag_ld(reg, soff, level, off, "")
        self.a(l[0]); self.vm.issue(self.a, l[1], tag)
    def flag_check(self, reg, soff, tag, level, half=False, off=0):
        a = self.a; L = a.newlabel("fc")
        self.vm.wait(a, tag)
        test = f"v_cmp_ne_u64 vcc, s[{sTok}:{sTok+1}], v[{reg}:{reg+1}]\n"
        if half and self.cfg.get("p2x"): test += f"s_nop 0\ns_or_b32 s{sA+8}, vcc_lo, vcc_hi\ns_and_b32 s{sA+8}, s{sA+8}, s{sHalf}"
        elif half: test += f"s_cmp_eq_u32 s{sHalf}, 0\ns_cselect_b32 s{sA+8}, vcc_lo, vcc_hi\ns_cmp_lg_u32 s{sA+8}, 0"
        else: test += "s_nop 0\ns_cmp_lg_u64 vcc, 0"
        a(test)
        a(f"s_cbranch_scc1 {L}_slow")
        a.label(f"{L}_ok")
        l = self.flag_ld(reg, soff, level, off, "sc1")
        self.slow.append(f"""
        {L}_slow:
        s_mov_b32 s{sA+9}, 0
        {L}_spin:
        {l[0]}
        {l[1]}
        s_add_u32 s{sA+9}, s{sA+9}, 1
        s_cmp_gt_u32 s{sA+9}, {self.cfg["spin"]}
        s_waitcnt vmcnt(0)
        s_cbranch_scc1 {L}_ok
        {test}
        s_cbranch_scc0 {L}_ok
        s_sleep {self.cfg.get("sleep", 4)}
        s_branch {L}_spin
        """)

    def body(self, T, work, ntask, wrange=(4, 156), center=False, extra=None, vq=None, vq1=1, vq2=1, before=None):
        a = self.a; cfg = self.cfg; acc = ACC[T & 1]; LA = cfg["LA"]
        ngap = 160
        per = [[] for _ in range(ngap)]
        def cost(op):
            if not isinstance(op, str): return 3.0
            if op.startswith(("v_exp", "v_rcp")): return 2.0
            if op.startswith("buffer_"): return 3.0 * (1 + op.count(";"))
            return 1.0 + op.count(";")
        def is_bar(S):
            n1 = 10 * T + (S >> 2) + 1
            if (S & 3) != 1 or n1 >= 10 * ntask: return False
            return (n1 % 2 == 0) if cfg["bar2"] else True
        cap = []
        for g in range(ngap):
            c = cfg["cap"] - ([3, 3, 2, 0] if is_bar(g >> 2) else cfg["rpat"])[g & 3]
            if (g & 3) == cfg["dmagap"] or ((g & 3) == 0 and vq): c -= 2.5
            if (g & 3) == 3: c -= 1
            if (g & 3) == 3 and is_bar(g >> 2): c = 0
            cap.append(max(c, 0.0))
        if center:
            for st in range(cfg["nc"], 10):
                d, c = self.center_ops(st)
                base = 16 * (st - 1)
                per[base] += d
                cg = [base + x for x in (1, 3, 4, 5, 8, 9, 11, 12, 13)]
                for i, op in enumerate(c): per[cg[i * len(cg) // 16]].append(op)
        used = lambda g: sum(cost(o) for o in per[g])
        self.ends = {}
        for g00, fn in (extra or {}).items():
            if not isinstance(fn, list): per[g00].append(fn)
        for g00, fn in (extra or {}).items():
            if isinstance(fn, list):
                g = g00; room = 0.0
                for op in fn:
                    while room <= 0:
                        room = cap[g] - used(g); g += 1
                    per[g - 1].append(op); room -= cost(op)
                self.ends[g00] = g - 1
        for a_, b_ in (before or []): assert self.ends[a_] < b_, (a_, self.ends[a_], b_)
        if work:
            g0, g1 = wrange
            cap = [max(cap[g] - used(g), 0.0) for g in range(ngap)]
            scale = sum(cost(o) for o in work) / sum(cap[g0:g1])
            if cfg.get("verbose"): print("body", T, "work scale", scale)
            g = g0; room = cap[g] * scale
            for op in work:
                while room <= 0 and g < g1 - 1:
                    g += 1; room += cap[g] * scale
                per[g].append(op); room -= cost(op)
        vq = list(vq or [])
        for S in range(40):
            i, s = S >> 2, S & 3
            G = 40 * T + S; n = 10 * T + i
            rd = self.tr_reads(G + 2) if G + 2 < 40 * ntask else []
            if s == 2:
                k = 0
                while self.next <= n + LA and self.next < 10 * ntask and k < 2 and self.cands(("B", self.next)):
                    self.pend += self.dma_items(self.next); self.next += 1; k += 1
            for t in range(4):
                gap = 4 * S + t
                if t == 0: a(f"s_waitcnt lgkmcnt({8 if G + 1 < 40 * ntask else 0})")
                A = acc + 16 * t; w = WF + 16 * (G % NWB) + 4 * t; x = XB + 4 * S
                c = "0" if S == 0 else f"a[{A}:{A+15}]"
                a(f"v_mfma_f32_32x32x16_bf16 a[{A}:{A+15}], a[{w}:{w+3}], v[{x}:{x+3}], {c}")
                pat = [3, 3, 2, 0] if is_bar(S) else cfg["rpat"]
                for _ in range(pat[t]):
                    if rd: a(rd.pop(0))
                nld = sum(1 for p_ in self.pend if p_[0] == "ld")
                if self.pend and (t == cfg["dmagap"] or (nld > 4 and t == 0)): self.pop_ld()
                elif vq and ((t == 0 and S % vq1 == 0) or (t == cfg["dmagap"] and not self.pend and S % vq2 == 0)):
                    for j_, it_ in enumerate(vq):
                        if it_[0](gap):
                            vq.pop(j_)[1](); break
                if t == cfg["dmagap"] - 1: self.pop_ops()
                if T == cfg.get("markT", 2) and gap % 16 == 9: self.mark(gap // 16)
                for op in per[gap]:
                    if callable(op): op()
                    else: self.emit(op, f"E{T-1}")
                if t == 3 and is_bar(S):
                    last = n + 2 if cfg["bar2"] and n + 2 < 10 * ntask else n + 1
                    self.vm.wait(a, f"B{last}", 4)
                    a("s_barrier")
                    self.lastbar = n
            assert not rd
        return vq

    def att_loads(self, al=True):
        a = self.a
        out = []
        for kv in range(2):
            for i in range(5):
                def f(kv=kv, i=i):
                    assert not self.pend
                    a(f"s_add_u32 m0, s{sM0}, {(7+kv)*16384 + i*640 - 256*i}")
                    if i == 0: a(f"s_add_u32 s{sA+6}, s{sKV}, {(kv+1)*40960}")
                    a("s_mov_b32 exec_hi, 0xff")
                    self.vm.issue(a, f"buffer_load_dwordx4 v{vKa}, s[{SRDW}:{SRDW+3}], s{sA+6} offen offset:{256*i} sc1 lds", "KV")
                    a("s_mov_b32 exec_hi, -1")
                out.append(f)
        for i in range(5):
            out.append(lambda i=i: self.vm.issue(a, f"buffer_load_dwordx2 v[{XB+2*i}:{XB+2*i+1}], v{vQa}, s[{SRDW}:{SRDW+3}], s{sKV} offen offset:{256*i} sc1", "KV"))
        return out
    def attention(self, inter):
        a = self.a; vm = self.vm
        Q = XB; AK = 1; AK2 = 2; RW = 3; L = 4; P = 236; O = 216
        kvb = [[196, 200, 204, 208, 212], [106, 110, 252, 12, 26]]
        code = []; e = code.append
        def rd(n):
            m = n & 3
            if n == 4:
                e(f"v_add_u32 v{AK}, 16384, v{AK}"); e(f"v_add_u32 v{AK2}, 16384, v{AK2}")
            for i in range(5):
                b = kvb[n & 1][i]; o = (i % 3) * 80 + 16 - 4 * m
                e(f"ds_read2_b64 v[{b}:{b+3}], v{AK if i < 3 else AK2} offset0:{o} offset1:{o-2}")
        a(f"""
        s_add_u32 s{sA}, s{sM0}, {7*16384}
        v_add_u32 v{AK}, s{sA}, v{vL8}
        v_add_u32 v{AK2}, 1920, v{AK}
        s_mov_b32 s{sA+1}, 0x{C_SM:x}
        """)
        vm.wait(a, "KV", 15)
        self.mark(23)
        rd(0)
        for n in range(8):
            m = n & 3; B = kvb[n & 1]
            e("s_waitcnt lgkmcnt(0)")
            if n < 4:
                for i in range(10):
                    for h in range(2):
                        src = f"v{Q+i}, v{B[i>>1] + 2*h + (i&1)}"
                        e(f"v_dot2_f32_bf16 v{L+2*m+h}, {src}, 0" if i == 0 else f"v_dot2c_f32_bf16 v{L+2*m+h}, {src}")
                    if i == 0: rd(n + 1)
            else:
                if n + 1 < 8: rd(n + 1)
                for h in range(2):
                    w = 2 * m + h
                    for i in range(10):
                        for j in range(2):
                            src = f"v{B[i>>1] + 2*h + (i&1)}, v{P+2*w+j}"
                            e(f"v_dot2_f32_bf16 v{O+2*i+j}, {src}, 0" if w == 0 else f"v_dot2c_f32_bf16 v{O+2*i+j}, {src}")
            if n == 3:
                Lm = a.newlabel("am")
                blk = [f"s_cmp_lg_u32 s{sMb64}, 0", f"s_cbranch_scc1 {Lm}", f"v_mov_b32 v{P}, 0xce6e6b28"]
                for ww in range(1, 8):
                    blk += [f"v_cmp_gt_u32 vcc, {2*ww}, v0", "s_nop 1", f"v_cndmask_b32 v{L+ww}, v{L+ww}, v{P}, vcc"]
                blk += [f"{Lm}:"]
                e("\n".join(blk))
                e(f"v_max3_f32 v{P}, v{L}, v{L+1}, v{L+2}")
                e(f"v_max3_f32 v{P}, v{P}, v{L+3}, v{L+4}")
                e(f"v_max3_f32 v{P}, v{P}, v{L+5}, v{L+6}")
                e(f"v_max_f32 v{P}, v{P}, v{L+7}")
                e(f"v_mul_f32 v{P}, s{sA+1}, v{P}")
                for ww in range(8): e(f"v_fma_f32 v{L+ww}, v{L+ww}, s{sA+1}, -v{P}")
                for ww in range(8): e(f"v_exp_f32 v{L+ww}, v{L+ww}")
                e(f"v_pk_add_f32 v[{P}:{P+1}], v[{L}:{L+1}], v[{L+2}:{L+3}]")
                e(f"v_pk_add_f32 v[{P+2}:{P+3}], v[{L+4}:{L+5}], v[{L+6}:{L+7}]")
                e(f"v_pk_add_f32 v[{P}:{P+1}], v[{P}:{P+1}], v[{P+2}:{P+3}]")
                e(f"v_add_f32 v{P}, v{P}, v{P+1}")
                e(f"v_rcp_f32 v{P}, v{P}\ns_nop 0")
                for ww in range(4): e(f"v_pk_mul_f32 v[{L+2*ww}:{L+2*ww+1}], v[{L+2*ww}:{L+2*ww+1}], v[{P}:{P+1}] op_sel_hi:[1,0]")
                for ww in range(8):
                    e(f"v_cvt_pk_bf16_f32 v{P+2*ww}, v{L+ww}, 0")
                    e(f"v_cvt_pk_bf16_f32 v{P+2*ww+1}, 0, v{L+ww}")
        e(f"s_mul_i32 s{sA}, s{sWave}, 2560\ns_add_u32 s{sA}, s{sA}, {9*16384}\nv_add_u32 v{AK}, s{sA}, v{vL8}")
        e(f"s_mul_i32 s{sA}, s{sWave}, 3\ns_and_b32 s{sA}, s{sA}, 13\ns_min_u32 s{sA}, s{sA}, 5\ns_lshl_b32 s{sA}, s{sA}, 9\ns_add_u32 s{sA}, s{sA}, {9*16384}\nv_add_u32 v{AK2}, s{sA}, v{vL8}")
        e(f"v_lshrrev_b32 v{RW}, 4, v0"); e(f"v_mul_u32_u24 v{RW}, {20480-256}, v{RW}"); e(f"v_add_u32 v{RW}, v{RW}, v{vL16}")
        for i in range(5):
            e(f"v_cvt_pk_bf16_f32 v{Q+2*i}, v{O+4*i}, v{O+4*i+1}")
            e(f"v_cvt_pk_bf16_f32 v{Q+2*i+1}, v{O+4*i+2}, v{O+4*i+3}")
            e(f"ds_write_b64 v{AK}, v[{Q+2*i}:{Q+2*i+1}] offset:{512*i}")
        inter = list(inter); n = len(code); k = len(inter); j = 0
        for i, ins in enumerate(code):
            a(ins)
            while j < k and j < (i + 1) * k // (n - 10):
                inter[j](); j += 1
        self.mark(25)
        a("s_waitcnt lgkmcnt(0)\ns_barrier")
        for r in range(3): a(f"ds_read2st64_b64 v[{4+4*r}:{7+4*r}], v{AK2} offset0:{8*r} offset1:{8*r+2}")
        return [lambda r=r: (a(f"s_waitcnt lgkmcnt({2-r})"),
                             vm.issue(a, f"buffer_store_dwordx4 v[{4+4*r}:{7+4*r}], v{RW}, s[{SRDW}:{SRDW+3}], s{sOst2 if r == 2 else sOst} offen offset:{1024*r} sc1", "O")) for r in range(3)]

    BSLOT = ["a176", "a196", "a216", "a236", "v116", "v136", "v156", "v176", "v196", "v216", "a0", "a128", "a148", "v96"]
    ASLOT = ["a80", "a96", "a112", "v32", "v48", "v64", "v80"] * 2
    @staticmethod
    def rr(base, off, n=4):
        return f"{base[0]}[{int(base[1:])+off}:{int(base[1:])+off+n-1}]"
    def b_loads(self, k):
        a = self.a; out = []
        for u in range(5):
            def f(u=u):
                if u == 0: a(f"s_add_u32 s{sGb}, s{sBb if k < 12 else sBb2}, {k*5120}")
                if u == 4: a(f"s_add_u32 s{sGb}, s{sGb}, 4096")
                self.vm.issue(a, f"buffer_load_dwordx4 {self.rr(self.BSLOT[k], 4*u)}, v{vL16}, s[{SRDW}:{SRDW+3}], s{sGb} offen offset:{1024*(u&3)} sc1", f"PB{k}")
            out.append(f)
        return out
    def a_loads(self, k):
        a = self.a; out = []
        for i in range(4):
            def f(i=i):
                if i == 0: a(f"s_add_u32 s{sGa}, s{sAb if k < 12 else sAb2}, {k*4096}")
                self.vm.issue(a, f"buffer_load_dwordx4 {self.rr(self.ASLOT[k], 4*i)}, v{vA[i]}, s[{SRDW}:{SRDW+3}], s{sGa} offen sc1", f"PA{k}")
            out.append(f)
        return out
    def wo_loads(self, s):
        a = self.a; out = []
        for j in range(4 if s < 6 else 1):
            def f(j=j):
                assert not self.pend
                if j == 0 and self.owner[s] != ("WO", s): self.alloc(("WO", s), s)
                if self.m0 != ("WO", s):
                    if s < 6:
                        a(f"s_add_u32 m0, s{sM0}, {s*16384}\ns_add_u32 s{sA+7}, s{sWOb}, {s*16384}")
                    else:
                        a(f"s_lshr_b32 s{sA+7}, s{sM0}, 2\ns_add_u32 m0, s{sA+7}, {6*16384}\ns_sub_u32 s{sA+7}, s{sWOb}, s{sM0}\ns_add_u32 s{sA+7}, s{sA+7}, m0")
                self.m0mark = (len(a.lines), ("WO", s))
                self.vm.issue(a, f"buffer_load_dwordx4 v{vL16}, s[{SRDW}:{SRDW+3}], s{sA+7} offen offset:{1024*j} sc1 lds", "WO")
            out.append(f)
        return out
    @property
    def m0(self):
        mk = getattr(self, "m0mark", None)
        if not mk: return None
        for l in self.a.lines[mk[0]:]:
            if " m0," in l or f"s{sA+7}," in l.split(",")[0] + "," and l.strip().startswith("s_") or l.endswith(("_join:", "_two:")): return None
        return mk[1]

    def build(self):
        a = self.a; cfg = self.cfg; label = self.label
        vm = self.vm
        sX = sA + 9
        a.begin_kernel(label)
        a(f"""
        s_cmp_ge_u32 s2, 256
        s_cbranch_scc1 {label}_end
        s_load_dwordx2 s[4:5], s[0:1], 0
        s_load_dwordx2 s[{pQKV}:{pQKV+1}], s[0:1], 8
        s_load_dwordx2 s[{pWO}:{pWO+1}], s[0:1], 16
        s_load_dwordx4 s[{pG}:{pG+3}], s[0:1], 32
        s_load_dwordx2 s[{pDN}:{pDN+1}], s[0:1], 48
        s_load_dwordx2 s[6:7], s[0:1], 56
        s_load_dwordx2 s[{pWS}:{pWS+1}], s[0:1], 72
        """)
        self.stamp(0)
        if self.stamps: a(f"s_memrealtime s[{sTok}:{sTok+1}]")
        NL = cfg.get("codelines", 11)
        a(f"""
        s_getpc_b64 s[{sA}:{sA+1}]
        s_lshr_b32 s{sA+2}, s2, 3
        s_mul_i32 s{sA+2}, s{sA+2}, {NL*128}
        v_lshlrev_b32 v{vT}, 7, v0
        v_add_u32 v{vT}, s{sA+2}, v{vT}
        v_min_u32 v{vT}, {label}_end-{label}-128, v{vT}
        v_cmp_gt_u32 vcc, {NL}, v0
        s_and_saveexec_b64 s[{sA+2}:{sA+3}], vcc
        s_cbranch_execz {label}_nt
        global_load_dword v95, v{vT}, s[{sA}:{sA+1}]
        {label}_nt:
        s_mov_b64 exec, -1
        v_lshrrev_b32 v{vT}, 6, v0
        v_and_b32 v0, 63, v0
        s_and_b32 s{sA}, s2, 7
        v_readfirstlane_b32 s{sWave}, v{vT}
        """)
        if not cfg.get("map8"):
            a(f"""
            s_lshr_b32 s{sA+1}, s2, 3
            s_and_b32 s{sHalf}, s{sA}, 1
            s_lshr_b32 s{sA}, s{sA}, 1
            s_lshl_b32 s{sA}, s{sA}, 2
            s_lshr_b32 s{sA+2}, s{sA+1}, 3
            s_add_u32 s{sMb}, s{sA}, s{sA+2}
            s_and_b32 s{sJ}, s{sA+1}, 7
            s_lshl_b32 s{sRot}, s{sA+2}, 2
            s_lshr_b32 s{sRot}, {cfg["rotm"]}, s{sRot}
            s_and_b32 s{sRot}, s{sRot}, 15
            s_add_u32 s{sRot}, s{sRot}, s{sJ}
            s_lshr_b32 s{sA+3}, {cfg["rotx"]}, s{sA}
            s_and_b32 s{sA+3}, s{sA+3}, 15
            s_add_u32 s{sRot}, s{sRot}, s{sA+3}
            s_mul_i32 s{sA+3}, s{sHalf}, {cfg.get("roth", 0)}
            s_add_u32 s{sRot}, s{sRot}, s{sA+3}
            """)
        else:
            a(f"""
            s_lshr_b32 s{sA+2}, s2, 5
            s_and_b32 s{sMb}, s{sA}, 4
            s_lshl_b32 s{sMb}, s{sMb}, 1
            s_add_u32 s{sMb}, s{sMb}, s{sA+2}
            s_bfe_u32 s{sHalf}, s2, 0x10001
            s_bfe_u32 s{sA+1}, s2, 0x20003
            s_and_b32 s{sJ}, s2, 1
            s_lshl_b32 s{sJ}, s{sJ}, 2
            s_add_u32 s{sJ}, s{sJ}, s{sA+1}
            s_lshl_b32 s{sRot}, s{sA+1}, 2
            s_lshr_b32 s{sRot}, 0x7520, s{sRot}
            s_and_b32 s{sRot}, s{sRot}, 15
            s_lshl_b32 s{sA+3}, s{sA+2}, 2
            s_lshr_b32 s{sA+3}, {cfg.get("rot8", 0x43210210)}, s{sA+3}
            s_and_b32 s{sA+3}, s{sA+3}, 15
            s_add_u32 s{sRot}, s{sRot}, s{sA+3}
            s_lshr_b32 s{sA+3}, s{sA}, 2
            s_mul_i32 s{sA+3}, s{sA+3}, 5
            s_add_u32 s{sRot}, s{sRot}, s{sA+3}
            s_and_b32 s{sA+3}, s2, 1
            s_add_u32 s{sRot}, s{sRot}, s{sA+3}
            """)
        a(f"""
        s_lshl_b32 s{sM0}, s{sWave}, 12
        s_sub_u32 s{sA+3}, s{sRot}, 10
        s_min_u32 s{sRot}, s{sRot}, s{sA+3}
        s_lshl_b32 s{sX}, s{sRot}, 7
        s_lshl_b32 s{sA}, s{sMb}, 7
        s_lshl_b32 s{sA+1}, s{sWave}, 5
        s_add_u32 s{sA}, s{sA}, s{sA+1}
        s_mul_i32 s{sA}, s{sA}, 1280
        v_lshrrev_b32 v{vT}, 3, v0
        v_mul_u32_u24 v{vT}, 1280, v{vT}
        v_add_u32 v{vT}, s{sA}, v{vT}
        v_lshrrev_b32 v{vT+1}, 4, v0
        v_and_b32 v{vT+2}, 7, v0
        v_xor_b32 v{vT+1}, v{vT+1}, v{vT+2}
        v_xor_b32 v{vT+2}, 4, v{vT+1}
        v_lshl_add_u32 v{EP+4}, v{vT+1}, 4, v{vT}
        v_lshl_add_u32 v{EP+5}, v{vT+2}, 4, v{vT}
        v_add_u32 v{EP+5}, {8*1280-1024}, v{EP+5}
        v_add_u32 v{EP+6}, {2*(8*1280-1024)}, v{EP+4}
        v_add_u32 v{EP+7}, {2*(8*1280-1024)}, v{EP+5}
        s_mov_b32 s{SRDX+2}, {2048*1280}
        s_mov_b32 s{SRDX+3}, 0x20000
        s_mov_b32 m0, s{sM0}
        """)
        sS = sA + 7; sC = sA + 8
        setup = lines(f"""
        s_mov_b32 s{sOOB}, {OOB}
        s_lshl_b32 s{sS}, s{sHalf}, 3
        s_add_u32 s{sS}, s{sS}, s{sJ}
        v_lshrrev_b32 v{vRow}, 3, v0
        s_and_b32 s{sA}, s{sWave}, 1
        s_lshl_b32 s{sA}, s{sA}, 5
        v_add_u32 v{vRow}, s{sA}, v{vRow}
        v_bfe_u32 v{vT}, v0, 1, 2
        v_bfe_u32 v{vT+1}, v0, 4, 1
        s_and_b32 s{sA}, s{sWave}, 2
        v_or_b32 v{vT+1}, s{sA}, v{vT+1}
        v_xor_b32 v{vT}, v{vT}, v{vT+1}
        v_and_b32 v{vT+1}, 1, v0
        v_lshlrev_b32 v{vT+1}, 4, v{vT+1}
        v_lshl_add_u32 v{vCol}, v{vT}, 5, v{vT+1}
        s_add_u32 s{sC}, s{sS}, {cfg["qsh"]}
        s_and_b32 s{sC}, s{sC}, 15
        """) + self.q_params(PB[0], sC) + self.switch_ops(PB[0])
        ptr = [o for o in setup if f"s{pQKV}" in o or f"s{pQKV+1}" in o]
        for o in setup:
            if o not in ptr: self.emit(o)
        a(f"s_waitcnt lgkmcnt(0)\ns_mov_b32 s{SRDX}, s4\ns_mov_b32 s{SRDX+1}, s5")
        if self.stamps: a(f"s_mov_b32 s1, s{sTok}")
        setup = ptr + ([f"s_add_u32 s{pWS}, s{pWS}, {cfg['wsoff']}; s_addc_u32 s{pWS+1}, s{pWS+1}, 0"] if cfg.get("wsoff") else []) + lines(f"""
        s_add_u32 s{sA}, s{pWS}, {WS_EPOCH}; s_addc_u32 s{sA+1}, s{pWS+1}, 0
        s_load_dwordx2 s[{sTok}:{sTok+1}], s[{sA}:{sA+1}], 0
        """)
        n_first = len(setup)
        setup += lines(f"""
        s_mov_b32 s{sOne}, 0x3f803f80
        s_mov_b32 s{sLo}, 0x00003f80
        s_mov_b32 s{sHi}, 0x3f800000
        v_and_b32 v{vT}, 31, v0
        v_lshlrev_b32 v{vT+1}, 7, v{vT}
        v_add_u32 v{vT+1}, s{sM0}, v{vT+1}
        v_bfe_u32 v{vT}, v0, 1, 3
        v_lshrrev_b32 v{vT+2}, 5, v0
        v_xor_b32 v{vT}, v{vT}, v{vT+2}
        """)
        XA = EP + 8
        for s in range(4):
            setup.append(f"v_xor_b32 v{vT+2}, {2*s}, v{vT}")
            setup.append(f"v_lshl_add_u32 v{XA+s}, v{vT+2}, 4, v{vT+1}")
            setup.append(f"v_add_u32 v{XA+4+s}, 0x10000, v{XA+s}")
            setup.append(f"v_add_u32 v{XA+8+s}, 0x20000, v{XA+s}")
        setup += lines(f"""
        v_mov_b32 v{vSum}, 0
        v_mov_b32 v{vSq}, 0
        v_lshlrev_b32 v{vL16}, 4, v0
        v_lshlrev_b32 v{vL8}, 3, v0
        v_bfe_u32 v{vT}, v0, 4, 1
        v_bfe_u32 v{vT+1}, v0, 2, 2
        v_lshrrev_b32 v{vT+2}, 5, v0
        v_lshl_add_u32 v{vT+2}, v{vT+2}, 3, v{vT+1}
        v_lshlrev_b32 v{vT+2}, 7, v{vT+2}
        v_lshl_add_u32 v{vT+2}, v{vT}, 13, v{vT+2}
        v_and_b32 v{EP}, 3, v0
        v_lshl_add_u32 v{vT+2}, v{EP}, 3, v{vT+2}
        v_lshrrev_b32 v{vT+1}, 1, v{vT+1}
        v_lshl_add_u32 v{vT}, v{vT}, 1, v{vT+1}
        """)
        for t in range(4):
            setup.append(f"v_xor_b32 v{vT+1}, {t}, v{vT}")
            setup.append(f"v_lshl_add_u32 v{vTr+t}, v{vT+1}, 5, v{vT+2}")
            setup.append(f"v_add_u32 v{vTr+4+t}, 0x10000, v{vTr+t}")
            setup.append(f"v_add_u32 v{vTr+8+t}, 0x20000, v{vTr+t}")
        setup += lines(f"""
        v_bfe_u32 v{vT}, v0, 4, 1
        v_lshlrev_b32 v{vT}, 10, v{vT}
        v_lshrrev_b32 v{vT+1}, 5, v0
        v_lshl_add_u32 v{vT}, v{vT+1}, 8, v{vT}
        v_and_b32 v{vT+1}, 15, v0
        v_lshl_add_u32 v{vSF}, v{vT+1}, 4, v{vT}
        s_mov_b32 s{SRDW}, s{pWS}
        s_mov_b32 s{SRDW+1}, s{pWS+1}
        s_mov_b32 s{SRDW+2}, {WS_SIZE}
        s_mov_b32 s{SRDW+3}, 0x20000
        s_lshl_b32 s{sMb64}, s{sMb}, 1
        s_add_u32 s{sMb64}, s{sMb64}, s{sHalf}
        s_lshl_b32 s{sFlag}, s{sMb}, 4
        s_add_u32 s{sFlag}, s{sFlag}, s{sS}
        s_lshl_b32 s{sFlag}, s{sFlag}, 2
        s_add_u32 s{sFlag}, s{sFlag}, s{sWave}
        s_lshl_b32 s{sFlag}, s{sFlag}, 3
        s_add_u32 s{sFlag}, s{sFlag}, {WS_FLAG}
        s_mul_i32 s{sC}, s{sHalf}, 3
        s_add_u32 s{sC}, s{sC}, s{sJ}
        s_add_u32 s{sC}, s{sC}, 16
        s_add_u32 s{sA}, s{sS}, 5
        s_and_b32 s{sA}, s{sA}, 15
        s_cmp_lt_u32 s{sA}, 11; s_cselect_b32 s{sC}, s{sC}, 31; s_cselect_b32 s{sThree}, 1, 0
        """) + self.f_params(PB[1], sS) + self.f_params(PB[2], sC) + self.pack_params() + lines(f"""
        v_lshrrev_b32 v{vT}, 5, v0
        v_lshlrev_b32 v{vT}, 4, v{vT}
        v_bfe_u32 v{vT+1}, v0, 4, 1
        v_lshl_add_u32 v{vT}, v{vT+1}, 2, v{vT}
        v_bfe_u32 v{vT+1}, v0, 2, 2
        v_add_u32 v{vT}, v{vT}, v{vT+1}
        v_lshlrev_b32 v{vT}, 7, v{vT}
        v_and_b32 v{vT+2}, 3, v0
        v_lshl_add_u32 v{vT}, v{vT+2}, 3, v{vT}
        v_add_u32 v{vT}, s{sM0}, v{vT}
        v_lshrrev_b32 v{vT+1}, 1, v{vT+1}
        s_and_b32 s{sA+2}, s{sWave}, 2
        v_or_b32 v{vT+1}, s{sA+2}, v{vT+1}
        """)
        for ch in range(4):
            setup.append(f"v_xor_b32 v{PR+20+ch}, {ch}, v{vT+1}")
            setup.append(f"v_lshl_add_u32 v{PR+20+ch}, v{PR+20+ch}, 5, v{vT}")
        setup += [f"v_mul_u32_u24 v{PR+16}, 1280, v{vRow}", f"v_add_u32 v{PR+16}, v{vCol}, v{PR+16}"]
        setup += [f"v_add_u32 v{PR+16+j}, {j*(8*1280-1024)}, v{PR+16}" for j in range(1, 4)]
        setup += lines(f"""
        s_lshl_b32 s{sA}, s2, 1
        s_and_b32 s{sA+1}, s{sWave}, 1
        s_add_u32 s{sA}, s{sA}, s{sA+1}
        s_mul_i32 s{sA+1}, s{sA}, 20
        v_add_u32 v{vT}, s{sA+1}, v0
        v_lshrrev_b32 v{vT+1}, 4, v{vT}
        v_mul_u32_u24 v{vT+1}, {3456-2048}, v{vT+1}
        v_lshl_add_u32 v94, v{vT}, 7, v{vT+1}
        s_mul_i32 s{sA+1}, s{sA}, 14
        v_add_u32 v{vT}, s{sA+1}, v0
        v_mul_u32_u24 v{vT+1}, {(1<<20)//11+1}, v{vT}
        v_lshrrev_b32 v{vT+1}, 20, v{vT+1}
        v_mul_u32_u24 v{vT+1}, 2048, v{vT+1}
        v_lshl_add_u32 v91, v{vT}, 7, v{vT+1}
        s_lshr_b32 s{sDuty}, s2, 3
        s_and_b32 s{sDuty}, s{sDuty}, 3
        """) + self.p2_params()
        if cfg.get("verbose"): print("setup ops", len(setup), "first", n_first)
        order = list(cfg.get("order", ["X0", "X1", "X2", "X3", "X4", "X5", "X6", "X7", "X8", "X9", "B", "B", "B", "B"]))
        def queue_next():
            o = order.pop(0)
            if o[0] == "T":
                r0, n = {"Ta": (0, 8), "Tb": (256, 12), "Tc": (0, 4), "Td": (128, 16)}[o]
                self.emit(f"s_lshl_b32 s{sA+6}, s{sMb}, 1; s_and_b32 s{sA+5}, s{sWave}, 1; s_add_u32 s{sA+6}, s{sA+6}, s{sA+5}; s_mul_i32 s{sA+6}, s{sA+6}, {n}; "
                          f"s_lshl_b32 s{sA+5}, s{sRot}, 6; s_add_u32 s{sA+6}, s{sA+6}, s{sA+5}; s_add_u32 s{sA+6}, s{sA+6}, {r0}; v_add_u32 v90, s{sA+6}, v0; "
                          f"v_subrev_u32 v89, 640, v90; v_min_u32 v90, v89, v90; v_mul_u32_u24 v90, 3840, v90; s_mov_b64 exec, {(1<<n)-1}; "
                          f"buffer_load_dword v90, v90, s[{PB[0]}:{PB[0]+3}], s{PB[0]+5} offen; s_mov_b64 exec, -1", "T")
                if not order: return
                o = order.pop(0)
            if o == "B":
                self.pend += self.dma_items(self.next); self.next += 1
            else:
                i = int(o[1:]); sl = self.alloc(("X", i))
                if i: self.pend.append(("op", f"s_add_u32 m0, s{sM0}, {sl*16384}; s_add_u32 s{sX}, s{sX}, 128; s_cmp_eq_u32 s{sX}, 1280; s_cselect_b32 s{sX}, 0, s{sX}"))
                self.pend += [("ld", f"buffer_load_dwordx4 v{EP+4+j}, s[{SRDX}:{SRDX+3}], s{sX} offen offset:{1024*j} lds", f"X{i}") for j in range(4)]
        XW = cfg["XW"]; spl = cfg.get("spl", 12); done = 0
        for g in range(XW):
            if order[0] == "B": assert done >= n_first
            queue_next()
            for j in range(4):
                self.pop_ld()
                for o in setup[done:done + spl]: self.emit(o)
                done += spl
        for o in setup[done:]: self.emit(o)
        self.stamp(1, True)
        def stats(i, j):
            for r in range(4 * j, 4 * j + 4):
                x = XB + 16 * i + r
                a(f"v_dot2c_f32_bf16 v{vSum}, s{sOne}, v{x}")
                a(f"v_dot2c_f32_bf16 v{vSq}, v{x}, v{x}")
        for i in range(10):
            vm.wait(a, f"X{i}", 4)
            if i in (0, 2, 4, 6, 8): self.stamp(2 + i // 2, True)
            sl = self.slot[("X", i)]
            for s in range(4):
                x = XB + 4 * (4 * i + s)
                a(f"ds_read_b128 v[{x}:{x+3}], v{XA+4*(sl>>2)+s} offset:{(sl&3)*16384}")
            if order and (order[0] != "B" or self.next < cfg["PB"]): queue_next()
            for j in range(4):
                if self.pend: self.pop_ld()
                if i: stats(i - 1, j)
            a("s_waitcnt lgkmcnt(0)")
            self.xdone.add(("X", i))
        a(f"s_xor_b32 s{sTok+1}, s{sTok+1}, 0x{TOKX:x}\ns_add_u32 s{sTok}, s{sTok}, 1")
        for j in range(4): stats(9, j)
        self.stamp(1)
        a(f"""
        s_mov_b32 s{sA}, 0x3acccccd
        s_nop 1
        v_mov_b32 v{vT}, v{vSum}
        v_mov_b32 v{vR}, v{vSq}
        s_nop 0
        v_permlane32_swap_b32 v{vSum}, v{vT}
        v_permlane32_swap_b32 v{vSq}, v{vR}
        s_nop 0
        v_add_f32 v{vSum}, v{vSum}, v{vT}
        v_add_f32 v{vSq}, v{vSq}, v{vR}
        v_mul_f32 v{vSum}, s{sA}, v{vSum}
        v_mul_f32 v{vSq}, s{sA}, v{vSq}
        v_cvt_pk_bf16_f32 v{vNegM}, 0, -v{vSum}
        v_fma_f32 v{vSq}, -v{vSum}, v{vSum}, v{vSq}
        """)
        NC = cfg["nc"]
        def first_frags():
            self.stamp(8, True)
            vm.wait(a, "B1" if cfg["bar2"] else "B0", 4)
            a("s_barrier")
            self.stamp(7, True)
            for G in range(2):
                for r in self.tr_reads(G): a(r)
        for st_ in range(NC):
            d0, c0 = self.center_ops(st_)
            if st_ == NC - 1:
                while order or self.pend:
                    if not self.pend: queue_next()
                    self.pop_ld()
                for op in d0: a(op)
                first_frags()
                for op in c0: a(op)
            else:
                if order and not self.pend: queue_next()
                for j, op in enumerate(d0 + c0):
                    a(op)
                    if j % 12 == 0 and self.pend: self.pop_ld()
        self.stamp(2)
        extra = Uniq()
        extra[130] = lines(f"""
            v_max_f32 v{vSq}, 0, v{vSq}
            v_cvt_pk_bf16_f32 v{vR}, 0, v{vSq}
            v_add_f32 v{vR}, 0x3727c5ac, v{vR}
            v_cvt_pk_bf16_f32 v{vR}, 0, v{vR}
            v_sqrt_f32 v{vR}, v{vR}; s_nop 0
            v_cvt_pk_bf16_f32 v{vD2}, 0, v{vR}
            v_rcp_f32 v{vR}, v{vD2}
            v_mul_f32 v{vD2}, v{vD2}, v{vD2}
            v_mul_f32 v{vC1}, 0x{NLOG2E:x}, v{vR}
            """)
        def pack_issue():
            sl = self.alloc("P")
            self.pend += [("op", f"s_add_u32 m0, s{sM0}, {sl*16384}")]
            self.pend += [("ld", f"buffer_load_dwordx4 v{PR+16+j}, s[{PK}:{PK+3}], s{PK+4} offen offset:{1024*j} lds", "PK") for j in range(4)]
        pk0 = cfg["pk0"]; pk1 = cfg["pk1"]
        extra[pk0] = pack_issue
        extra[pk0 + 1] = [lambda ch=ch: a(f"v_add_u32 v{PR+20+ch}, {self.slot['P']*16384}, v{PR+20+ch}") for ch in range(4)]
        rdl = [lambda: vm.wait(a, "PK", 4)]
        for ch in range(4):
            rdl.append(f"ds_read_b64_tr_b16 v[{PR+4*ch}:{PR+4*ch+1}], v{PR+20+ch}")
            rdl.append(f"ds_read_b64_tr_b16 v[{PR+4*ch+2}:{PR+4*ch+3}], v{PR+20+ch} offset:1024")
        extra[pk1] = rdl
        stl = []
        for ch in range(4):
            stl.append(lambda ch=ch: (self.xdone.add("P"), vm.issue(a, f"buffer_store_dwordx4 v[{PR+4*ch}:{PR+4*ch+3}], v{vL16}, s[{SRDW}:{SRDW+3}], s{PK+5+ch} offen sc1", "I")))
        extra[pk1 + 24] = [lambda: [f() for f in stl]] if cfg['stb'] > 1 else stl
        def touch(which, duty=None):
            def f():
                r, n, off = ((94, 20, 0), (91, 14, 2048))[which]
                ins = f"buffer_load_dword v{r}, v{r}, s[{PB[1]}:{PB[1]+3}], 0 offen offset:{off}"
                if duty is None:
                    a(f"s_mov_b64 exec, {(1 << n) - 1}"); vm.issue(a, ins, "T"); a("s_mov_b64 exec, -1")
                else:
                    L = a.newlabel("du")
                    a(f"s_cmp_lg_u32 s{sDuty}, {duty}\ns_cbranch_scc1 {L}\ns_mov_b64 exec, {(1 << n) - 1}\n{ins}\ns_mov_b64 exec, -1\n{L}:")
            return f
        for which, key in ((0, "tch"), (1, "tch2")):
            g_ = cfg[key]
            if isinstance(g_, list):
                for d_, gg in enumerate(g_): extra[gg] = touch(which, d_)
            elif g_ >= 0: extra[g_] = touch(which)
        if cfg["pub1"] < 160: extra[cfg["pub1"]] = lambda: (self.publish(1, ["I"]), self.retouch("P"))
        self.body(0, None, 3, center=True, extra=extra, before=[(pk0 + 1, pk1), (pk1, pk1 + 16), (pk1 + 24, cfg["pub1"])])
        self.stamp(3)
        self.vPub = 86
        extra = Uniq()
        if cfg["pub1"] >= 160: extra[cfg["pub1"] - 160] = lambda: self.publish(1, ["I"])
        extra[cfg["pub2"]] = lambda: (self.publish(2, ["E0"]), self.retouch("Q", PB[0] + 7))
        GR = 88
        def epoch():
            L = a.newlabel("ep")
            a(f"""
            s_or_b32 s{sA+8}, s2, s{sWave}
            s_cbranch_scc1 {L}
            v_mov_b32 v{GR}, s{sTok}
            s_mov_b32 s{sA+8}, {WS_EPOCH}
            s_mov_b64 exec, 1
            buffer_store_dword v{GR}, off, s[{SRDW}:{SRDW+3}], s{sA+8}
            s_mov_b64 exec, -1
            {L}:
            """)
        gc = cfg["gck"]
        assert gc % 16 == 6 and (not cfg["bar2"] or (gc // 16) % 2 == 1)
        gb = gc + 2
        extra[gb + 1] = epoch
        for j in range(4):
            extra[gc - 42 + 4 * j] = lambda j=j: self.flag_load(GR + 2 * j, sFlG, f"G{j}", 1, 512 * j)
            extra[gc - 9 + [0, 2, 4, 8][j]] = lambda j=j: self.flag_check(GR + 2 * j, sFlG, f"G{j}", 1, off=512 * j)
        after = lambda g0: (lambda gap: gap >= g0)
        vq = [(after(gb), f) for k in range(4) for f in self.b_loads(k)]
        rest1 = self.body(1, self.epi_q(ACC[0], PB[0] + 7), 3, wrange=(4, cfg["w1"]), extra=extra, vq=vq, vq1=cfg["b1vq"])
        while self.pend: self.pop_ld()
        self.stamp(4)
        vm_split = list(vm.q)
        a(f"s_cmp_eq_u32 s{sThree}, 0")
        a(f"s_cbranch_scc1 {label}_two")
        self.vPub = 62
        pre = []
        def P(fn): pre.append(fn); return fn
        extra = Uniq()
        vq = [(after(0), P(f)) for _, f in rest1]
        st = {"q": False}
        q_l0 = lambda: self.flag_load(XB, sFl0, "Q0", 2)
        q_l1 = lambda: self.flag_load(XB + 2, sFl1, "Q1", 2)
        q_c0 = lambda: self.flag_check(XB, sFl0, "Q0", 2)
        def q_c1():
            self.flag_check(XB + 2, sFl1, "Q1", 2); st["q"] = True
        qc = cfg["qck"]
        extra[qc - 33] = q_l0; extra[qc - 29] = q_l1; extra[qc - 1] = q_c0; extra[qc + 3] = q_c1
        attl = []
        lastkv = [-100]
        def att_ok(gap, j):
            if not st["q"] or gap - lastkv[0] < cfg["kvgap"]: return False
            attl or attl.extend(self.att_loads(False))
            if j < 10:
                if self.next < 30 or self.pend: return False
                if "K" not in self.slot:
                    if not (self.free(7) and self.free(8)): return False
                    self.alloc("K", 7); self.alloc("V", 8)
            lastkv[0] = gap
            return True
        bq = []
        for k in range(4, 8):
            bq += [(after(4 * (5 * (k - 4) + 10)), f) for f in self.b_loads(k)]
        for _, f in bq[:10]: P(f)
        P(q_l0); P(q_l1)
        for _, f in bq[10:]: P(f)
        P(q_c0); P(q_c1)
        pre.append("att")
        for j in list(range(10, 15)) + list(range(10)): vq.append((lambda gap, j=j: att_ok(gap, j), lambda j=j: attl[j]()))
        vq += bq
        wq = []
        for s in range(7):
            ok = lambda gap, s=s: self.next >= 30 and not self.pend and (self.owner[s] == ("WO", s) or self.free(s))
            wq += [(ok, f) for f in self.wo_loads(s)]
        vq += wq
        extra[cfg["pub3"]] = lambda: (self.publish(3, ["E1"]), self.retouch("F", PB[1] + 7))
        rest = self.body(2, self.epi_f(ACC[1], PB[1] + 7), 3, wrange=(4, cfg["w2"]), extra=extra, vq=vq, vq1=cfg["vq1"], vq2=cfg["vq2"])
        self.stamp(5)
        wfs = [f for _, f in wq]
        late = [f for c_, f in rest if f not in wfs] + [P(f) for k in (11, 12) for f in self.b_loads(k)]
        late += [f for c_, f in rest if f in wfs and c_(160)]
        ntail = cfg["ntail"]
        assert 15 - vm.q.count("KV") <= ntail and "K" in self.slot
        post = late[ntail:]; late = late[:ntail]
        wrest = [f for c_, f in rest if f in wfs and f not in late]
        post = [f for f in post if f not in wfs]
        pre[:] = [f for f in pre if f not in post]
        for f in wfs:
            if f not in wrest: P(f)
        def tail(ops, inter, tag):
            inter = list(inter); n = len(ops); k = len(inter); j = 0
            for i, op in enumerate(ops):
                self.emit(op, tag)
                while j < k and j < (i + 1) * k // n:
                    inter[j](); j += 1
        a("s_nop 5")
        tail(self.epi_f_tail(ACC[0], PB[2] + 7), late, "E2")
        if cfg.get("verbose"): print("tail loads", len(late), "after join: B loads", len(post), "wo loads", len(wrest))
        self.lastbar = 100
        self.alloc("O", 9)
        a.label(f"{label}_join")
        self.stamp(6)
        self.vPub = 20
        self.flag_load(vFl, sFl0, "F3", 3)
        a(f"s_lshr_b32 s{sA}, s{sM0}, 2\nv_add_u32 v{vA[0]}, s{sA}, v{vL16}")
        for i in range(1, 4): a(f"v_add_u32 v{vA[i]}, 1024, v{vA[i-1]}\nv_and_b32 v{vA[i]}, 4095, v{vA[i]}")
        a("s_barrier")
        def xaddr(j, d, t1, t2):
            return [f"v_add_u32 v{t1}, {64*j}, v0", f"v_mul_u32_u24 v{t2}, {(1<<16)//10+1}, v{t1}", f"v_lshrrev_b32 v{t2}, 16, v{t2}",
                    f"v_mul_u32_u24 v{t2}, {1280-160}, v{t2}", f"v_lshl_add_u32 v{t2}, v{t1}, 4, v{t2}", f"v_add_u32 v{d}, s{sXo}, v{t2}"]
        def xl(j):
            for o in xaddr(j, 114, 114, 115): a(o)
            a(f"s_mul_i32 s{sA+2}, s{sWave}, 2560\ns_add_u32 m0, s{sA+2}, {102400 + 1024*j}")
            a("s_mov_b32 exec_hi, 0" if j == 2 else "s_nop 0")
            vm.issue(a, f"global_load_lds_dwordx4 v114, s[4:5]", "XO")
            if j == 2: a("s_mov_b32 exec_hi, -1")
        post = post + (self.b_loads(10) if 'B10' not in cfg['forder'] else [])
        free_ = [lambda j=j: xl(j) for j in range(3)] + post + wrest
        n1 = cfg["natt1"]; n2 = cfg["natt2"]
        inter = free_[:n1] + [lambda: self.flag_check(vFl, sFl0, "F3", 3)]
        al = free_[n1:]
        aa = [f for k in range(7) for f in self.a_loads(k)]
        inter += aa[:n2]
        inter.insert(min(len(inter), cfg["pub4"]), lambda: self.publish(4, ["E2"]))
        ost = self.attention(inter)
        self.stamp(8)
        XR = 4; vX = 14; vW = 25; vRd = 28; vXo = [1, 2, 29]
        KF = cfg["kf"]
        wl = [f for f in al if f not in post]
        Q_ = [(0, f) for f in ost + aa[n2:] + [f for f in al if f in post]]
        grp = lambda e, fs: [(e, f) for f in fs]
        A_ = lambda k: grp(max(k - 6, KF if k >= 8 else 0), self.a_loads(k))
        B_ = lambda k: grp(0, self.b_loads(k))
        for it in cfg["forder"]:
            Q_ += A_(int(it[1:])) if it[0] == "A" else B_(int(it[1:])) if it[0] == "B" else grp(0, wl) if it == "W" else grp(5, ["x0", "x1", "x2"])
        OA = 176
        def wo_reads(T):
            b = WR[T % 6]
            return [f"ds_read_b128 v[{b+4*u}:{b+4*u+3}], v{vL16 if T < 12 else 15} offset:{(T % 12)*5120 + u*1024}" for u in range(5)]
        def o_load(T):
            def f():
                if T % 4 == 0: a(f"s_add_u32 s{sGb}, s{sOld}, {T*1024}")
                vm.issue(a, f"buffer_load_dwordx4 a[{OA+4*T}:{OA+4*T+3}], v{vL16}, s[{SRDW}:{SRDW+3}], s{sGb} offen offset:{1024*(T&3)} sc1", f"PO{T//2}")
            return f
        KB = cfg["kbar"]; KO = cfg["ko"]; ns = cfg["nside"]; NOF = cfg["no_f"]; KX = cfg["kx"]
        R = 32; FO = 236; SQ = [92, 4, 8, 16, 20]; XU = 216
        WR = [116, 136, 156, 176, 196, 96]
        lq = LQ()
        def mf(k, i, u):
            t_ = (i * 5 + u) * 4
            d = f"a[{t_}:{t_+3}]" if i else f"v[{FO+t_}:{FO+t_+3}]"
            a(f"v_mfma_f32_16x16x32_bf16 {d}, {self.rr(self.BSLOT[k], 4*u)}, {self.rr(self.ASLOT[k], 4*i)}, {'0' if k == 0 else d}")
        def wait_ab(k):
            assert vm.q.count(f"PB{k}") == 5 and vm.q.count(f"PA{k}") == 4
            vm.wait(a, f"PA{k}" if vm.last(f"PA{k}") > vm.last(f"PB{k}") else f"PB{k}")
        olist = [o_load(T) for T in range(20)]
        for k in range(KX):
            if k % 2 == 0: self.mark(10 + k // 2)
            wait_ab(k)
            side = []
            if k == KF - 2: side += [lambda: self.flag_load(vFl, sFl0, "F4", 4)]
            if k == cfg.get("kp5", 3): side += [lambda: self.publish(5, ["O"])]
            if k == KF: self.flag_check(vFl, sFl0, "F4", 4)
            if k == KO - 2: side += [lambda: self.flag_load(vFl, sFl0, "F5", 5)]
            if k == KO: self.flag_check(vFl, sFl0, "F5", 5, half=True)
            room = ns[k] - len(side)
            for it in list(Q_):
                if room > 0 and it[0] <= k:
                    Q_.remove(it); room -= 1
                    side.append((lambda j=int(it[1][1]): xl(j)) if isinstance(it[1], str) else it[1])
            if k >= KO and not Q_ and room > 0: side += olist[:room]; olist = olist[room:]
            if k == 4:
                for j in range(3): side += [lambda o=o: a(o) for o in xaddr(j, vXo[j], 3, 14)]
            if k == 5:
                side += [lambda o=o: a(o) for o in lines(f"""
                    v_and_b32 v3, 15, v0
                    v_mul_u32_u24 v{vX}, 160, v3
                    v_lshrrev_b32 v3, 4, v0
                    v_lshl_add_u32 v{vX}, v3, 3, v{vX}
                    v_add_u32 v15, {12*5120}, v{vL16}
                    s_mov_b32 s{sA}, 0x{NLOG2E:x}
                    s_mov_b32 s{sA+1}, 0xffff0000
                    """)]
            if k == 6:
                for i in range(4):
                    d = vRd if i == 0 else vW + i - 1
                    side += [lambda o=o: a(o) for o in (f"v_lshrrev_b32 v3, 10, v{vA[i]}", f"v_mul_u32_u24 v3, 15360, v3",
                                                         f"v_add_u32 v3, {102400 + max(i-1, 0)*5120}, v3", f"v_add_u32 v{d}, v3, v{vL16}")]
            if k == KB - 1:
                side += [lambda: (vm.wait(a, "XO", 3), a(f"s_add_u32 s{sA+2}, s{sA+2}, 102400\nv_add_u32 v3, s{sA+2}, v{vX}"))]
                side += [lambda u=u: lq.issue(a, f"ds_read_b64 v[{XR+2*u}:{XR+2*u+1}], v3 offset:{32*u}", "XL") for u in range(5)]
            if k == KB:
                lq.wait(a, "XL"); vm.wait(a, "WO", 25); a("s_barrier")
            nsd = len(side); j = 0
            for i in range(4):
                for u in range(5):
                    mf(k, i, u)
                    while j < nsd and j < (i * 5 + u + 1) * nsd // 20:
                        side[j](); j += 1
        assert not Q_, len(Q_)
        assert KB < KX and KO < KX and KX >= 10
        self.mark(16)
        nk = 14 - KX
        base_side = olist[:max(NOF - (20 - len(olist)), 0)]; olist = olist[len(base_side):]
        ol_ = base_side
        base_side = [lambda r=r, T=T: lq.issue(a, r, f"W{T}") for T in range(5) for r in wo_reads(T)]
        base_side += [lambda j=j: a(f"v_and_b32 v{XU+j}, s{sA+1}, v{XR+(j>>1)}" if j & 1 else f"v_lshlrev_b32 v{XU+j}, 16, v{XR+(j>>1)}") for j in range(20)]
        for j_, f_ in enumerate(ol_): base_side.insert(j_ * (45 + len(ol_)) // len(ol_), f_)
        nb_ = len(base_side); jb = 0; m = 0
        for ri, i in enumerate((1, 2, 3, 0)):
            pw = []
            if ri:
                ip = (1, 2, 3)[ri - 1]
                pw = [f"ds_write_b128 v{vW+ip-1}, a[{(ip*5+u)*4}:{(ip*5+u)*4+3}] offset:{u*1024}" for u in range(5)]
            mm = 0
            for k in range(KX, 14):
                if ri == 0: wait_ab(k)
                for u in range(5):
                    mf(k, i, u); m += 1; mm += 1
                    if pw and mm >= 4 and (mm - 4) * 5 >= (5 - len(pw)) * (5 * nk - 4): lq.issue(a, pw.pop(0), "PW")
                    else:
                        while jb < nb_ and jb < m * nb_ // (20 * nk):
                            base_side[jb](); jb += 1
            for w_ in pw: lq.issue(a, w_, "PW")
        while jb < nb_:
            base_side[jb](); jb += 1
        self.stamp(7)
        work = [("f", f) for f in olist[:2]] + [("bar",)]
        for j in range(15): work.append(("l", f"ds_read_b128 v[{R+4*j}:{R+4*j+3}], v{vRd} offset:{j*1024}", "PR"))
        work += [("f", f) for f in olist[2:]]
        pk2 = lambda op, d, x, y: "\n".join(f"{op} v[{d+2*j}:{d+2*j+1}], v[{x+2*j}:{x+2*j+1}], {y(j)}" for j in range(10))
        work.append(("v", f"v_sub_u32 v3, v{vRd}, v{vL16}")); work.append(("v", f"v_add_u32 v3, v3, v{vX}"))
        work.append(("lw", "PR"))
        work.append(("v", "\n".join([pk2("v_pk_add_f32", FO, FO, lambda j: f"v[{R+2*j}:{R+2*j+1}]"),
                                     pk2("v_pk_add_f32", R+20, R+20, lambda j: f"v[{R+40+2*j}:{R+40+2*j+1}]"),
                                     pk2("v_pk_add_f32", FO, FO, lambda j: f"v[{R+20+2*j}:{R+20+2*j+1}]"),
                                     pk2("v_pk_mul_f32", R, FO, lambda j: f"s[{sA}:{sA+1}] op_sel_hi:[1,0]")])))
        for j in range(20): work.append(("v", f"v_exp_f32 v{R+j}, v{R+j}"))
        for j in range(20): work.append(("v", f"v_add_f32 v{R+j}, 1.0, v{R+j}"))
        for j in range(20): work.append(("v", f"v_rcp_f32 v{R+j}, v{R+j}"))
        def do(wk):
            if wk[0] == "v": a(wk[1])
            elif wk[0] == "f": wk[1]()
            elif wk[0] == "l": lq.issue(a, wk[1], wk[2])
            elif wk[0] == "lw": lq.wait(a, wk[1])
            elif wk[0] == "bar":
                lq.wait(a, "PW"); self.mark(20); a("s_barrier"); self.mark(21)
        nw = len(work); done = 0; m = 0
        for T in range(20):
            if T % 2 == 0: vm.wait(a, f"PO{T//2}", 2)
            if T in (0, 10, 16): self.mark({0: 17, 10: 18, 16: 19}[T])
            if T % 2 == 0: lq.wait(a, f"W{T+1}")
            rd = wo_reads(T + 5) if T + 5 < 20 else []
            b = WR[T % 6]
            for u in range(5):
                d = f"v[{SQ[u]}:{SQ[u]+3}]"
                a(f"v_mfma_f32_16x16x32_bf16 {d}, v[{b+4*u}:{b+4*u+3}], a[{OA+4*T}:{OA+4*T+3}], {'0' if T == 0 else d}")
                m += 1
                if rd: lq.issue(a, rd.pop(0), f"W{T+5}")
                tgt = m * nw * cfg.get("sw", 80) // (75 * 100) if m <= 75 else nw * cfg.get("sw", 80) // 100 + (m - 75) * (nw - nw * cfg.get("sw", 80) // 100) // 25
                while done < nw and done < tgt:
                    do(work[done]); done += 1
        assert done == nw
        a("s_nop 0")
        a(pk2("v_pk_mul_f32", FO, FO, lambda j: f"v[{R+2*j}:{R+2*j+1}]"))
        for u in range(5):
            for h in range(2):
                f0 = FO + 4 * u + 2 * h; s_ = SQ[u] + 2 * h; x_ = XU + 4 * u + 2 * h
                a(f"v_pk_fma_f32 v[{f0}:{f0+1}], v[{f0}:{f0+1}], v[{s_}:{s_+1}], v[{x_}:{x_+1}]")
            f0 = FO + 4 * u; o = 64 + 2 * u
            a(f"v_cvt_pk_bf16_f32 v{o}, v{f0}, v{f0+1}")
            a(f"v_cvt_pk_bf16_f32 v{o+1}, v{f0+2}, v{f0+3}")
            a(f"ds_write_b64 v3, v[{o}:{o+1}] offset:{32*u}")
        a("s_waitcnt lgkmcnt(0)")
        for j in range(3): a(f"ds_read_b128 v[{76+4*j}:{79+4*j}], v{vRd} offset:{1024*j}")
        for j in range(3):
            a(f"s_waitcnt lgkmcnt({2-j})")
            if j == 2: a("s_mov_b32 exec_hi, 0")
            a(f"global_store_dwordx4 v{vXo[j]}, v[{76+4*j}:{79+4*j}], s[6:7] {cfg.get('scO', '')}")
        a("s_mov_b32 exec_hi, -1")
        self.mark(22)
        if self.stamps:
            a("s_waitcnt vmcnt(0)")
            a(f"s_memtime s[{sA}:{sA+1}]")
            a(f"s_memrealtime s[{sA+2}:{sA+3}]")
            a("s_waitcnt lgkmcnt(0)")
            for i in range(1, 8):
                a(f"s_sub_u32 s{sA+4}, s{ST0+2*(i-1)}, s0\nv_mov_b32 v{32+i}, s{sA+4}")
            a(f"s_sub_u32 s{sA+4}, s{sA}, s0\nv_mov_b32 v40, s{sA+4}\nv_mov_b32 v41, s{sA+2}")
            a(f"s_sub_u32 s{sA+4}, s{ST0+14}, s0\nv_mov_b32 v42, s{sA+4}")
            a(f"""
            v_mov_b32 v32, s1
            s_lshl_b32 s{sA}, s2, 2
            s_add_u32 s{sA}, s{sA}, s{sWave}
            s_lshl_b32 s{sA}, s{sA}, 6
            s_add_u32 s{sA}, s{sA}, {WS_STAMP}
            s_mov_b64 exec, 1
            buffer_store_dwordx4 v[32:35], off, s[{SRDW}:{SRDW+3}], s{sA}
            buffer_store_dwordx4 v[36:39], off, s[{SRDW}:{SRDW+3}], s{sA} offset:16
            buffer_store_dwordx4 v[40:43], off, s[{SRDW}:{SRDW+3}], s{sA} offset:32
            """)
        a("s_endpgm")
        a.label(f"{label}_two")
        self.stamp(5)
        self.vm = vm = VM()
        self.vPub = 62
        self.vm.q = list(vm_split)
        self.vm.wait(a, [t_ for t_ in self.vm.q if t_[0] == "B" and t_[1:].isdigit()][-1])
        a("s_waitcnt lgkmcnt(0)\ns_barrier\ns_nop 4")
        flat = []
        for f in pre: flat += self.att_loads() if f == "att" else [f]
        nb_ = cfg["nbtail"]
        tail(self.epi_f_tail(ACC[1], PB[1] + 7), flat[:nb_], "E1")
        for i, f in enumerate(flat[nb_:]):
            if i == cfg["nbpub"]:
                self.publish(3, ["E1"]); a("s_nop 1"); self.publish(4, []); self.retouch("F", PB[1] + 7)
            if i % 8 == 3 and cfg.get("markT", 2) == 2: self.mark(i // 8)
            f()
        a("s_waitcnt vmcnt(0)")
        a(f"s_branch {label}_join")
        for s in self.slow: a(s)
        a.label(f"{label}_end")
        a("s_endpgm")
        a.end_kernel(label, 512, 102, 256, 256, 256, 163840)
        return a.text("generated by dev/fused2.py: one persistent kernel, 256 workgroups (one per CU)\n"
                      "phase 1: LayerNorm + x@[wqkv|w_gate|w_up] (+ weight repack), attention, phase 2: h@w_down, o@wo, combine")

if __name__ == "__main__":
    stamps = "--stamps" in sys.argv
    pos = [x for x in sys.argv[1:] if not x.startswith("--")]
    cfg = json.loads(pos[1]) if len(pos) > 1 else {}
    open(pos[0], "w").write(Gen(cfg, stamps).build())
```

```python
import sys, json, struct; sys.path.insert(0, "dev")
from asmlib import *

WS_H = 0
WS_O = 0x780000
WS_WD = 0xA00000
WS_WO = 0xD00000
WS_QKV = 0x1000000
WS_FLAG = 0x1800000
WS_EPOCH = WS_FLAG - 256
WS_STAMP = 0x1900000
WS_SIZE = 0x2000000
OOB = 0x4000000
TOKX = 0x5bd1e995
NLOG2E = 0xbfb8aa3b
def f2u(x): return struct.unpack("<I", struct.pack("<f", x))[0]
C_SM = f2u(20 ** -0.5 * 1.4426950408889634)

XB = 96; EP = 32; ACC = [0, 64]; WF = 128; NWB = 3
vLd = 1; vTr = 5
vSF = 17; vL8 = 18; vC1 = 19; vD2 = 20; vR = 21; vNegM = 22; vSum = 23; vSq = 24
vRow = 25; vCol = 26; vT = 27
vDbg = 30; vL16 = 31
vFl = 22
vQa = 28; vKa = 29
vA = [16, 17, 19, 24]
PR = 64
sOOB = 3
pQKV = 76; pWS = 78; pWO = 80; pDN = 82; pG = 84; pU = 86
sWave = 8; sMb64 = 9; sHalf = 10; sM0 = 11; sSoff = 12; sStep = 13; sWrap = 14; sThree = 15
SRDW = 16
SRDX = 20
sGa = 20; sGb = 21; sDuty = 96
PB = [24, 32, 40]
PK = 48
sOne = 57; sLo = 58; sHi = 59
sTok = 60
sFlag = 62; sFl0 = 63; sFl1 = 64; sFlG = 65
sAb = 66; sAb2 = 67; sBb = 68; sBb2 = 69; sOld = 70; sWOb = 71; sOst = 72; sOst2 = 73; sKV = 74; sXo = 75
ST0 = 76
sMb = 88; sJ = 89; sRot = 90; sNb = 91
sA = 92

class VM:
    def __init__(self): self.q = []
    def issue(self, a, ins, tag):
        a(ins); self.q.append(tag)
    def last(self, tag): return max(i for i, t in enumerate(self.q) if t == tag)
    def wait(self, a, tag, cnt=None):
        if cnt is not None: assert self.q.count(tag) == cnt, (tag, self.q.count(tag))
        a(f"s_waitcnt vmcnt({min(len(self.q) - 1 - self.last(tag), 63)})")
class LQ:
    def __init__(self): self.q = []
    def issue(self, a, ins, tag):
        a(ins); self.q.append(tag)
    def wait(self, a, tag):
        idx = max(i for i, t in enumerate(self.q) if t == tag)
        a(f"s_waitcnt lgkmcnt({min(len(self.q) - 1 - idx, 15)})")
class Uniq(dict):
    def __setitem__(self, k, v):
        assert k not in self, ("duplicate gap", k)
        dict.__setitem__(self, k, v)
def lines(s): return [l.split(";;")[0].strip() for l in s.split("\n") if l.split(";;")[0].strip()]
DIV5 = (1 << 16) // 5 + 1
DIV3 = (1 << 16) // 3 + 1

class Gen:
    def __init__(self, cfg, stamps):
        self.cfg = dict(dict(LA=6, XW=4, spl=20, PB=2, bar2=True, rpat=[2, 2, 2, 2], dmagap=2, spin=3000, cap=5.0,
                             rotm=0x7520, rotx=0x1210, tch=-1, tch2=110, pk0=18, pk1=70, pub1=124, pub2=124, gck=118, qck=70, pub3=126, qsh=15,
                             w1=100, w2=96, b1vq=1, vq1=1, vq2=1, ntail=16, natt1=15, natt2=20, pub4=12,
                             nside=[6] * 14, kvgap=6, nokb=1, nc=3, p2x=2, nbtail=14, nbpub=12, stb=1, stq=False, kf=4, forder=['A7', 'A8', 'B8', 'A9', 'B9', 'W', 'A10', 'B10', 'A11', 'A12', 'A13', 'B13'], kbar=10, ko=10, no_f=12, kx=11), **cfg)
        self.stamps = stamps
        self.a = Asm(); self.vm = VM()
        self.label = NAME + "_kernel"
        self.slot = {}; self.owner = [None] * 10
        self.xdone = set(); self.lastbar = -10
        self.next = 0; self.pend = []; self.slow = []
        self.vPub = 92
    def stamp(self, i, pro=False):
        if self.cfg.get("pst") and i and not pro: return
        if pro and not self.cfg.get("pst"): return
        if self.stamps: self.a(f"s_memtime s[{ST0+2*(i-1)}:{ST0+2*(i-1)+1}]" if i else "s_memtime s[0:1]")
    def mark(self, i):
        if self.cfg.get("marks"):
            r = 22
            self.a(f"""
            s_memtime s[{r}:{r+1}]
            s_waitcnt lgkmcnt(0)
            s_sub_u32 s{r}, s{r}, s0
            v_mov_b32 v{vDbg}, s{r}
            s_lshl_b32 s{r}, s2, 2
            s_add_u32 s{r}, s{r}, s{sWave}
            s_lshl_b32 s{r}, s{r}, 7
            s_add_u32 s{r}, s{r}, {WS_STAMP + 0x40000 + 4*i}
            s_mov_b64 exec, 1
            """)
            self.vm.issue(self.a, f"buffer_store_dword v{vDbg}, off, s[{SRDW}:{SRDW+3}], s{r}", "mk")
            self.a("s_mov_b64 exec, -1\ns_nop 1")
    def emit(self, op, tag="st"):
        for o in op.split(";"):
            o = o.strip()
            if o.startswith(("global_", "buffer_")): self.vm.issue(self.a, o, tag)
            else: self.a(o)
    def free(self, s):
        o = self.owner[s]
        if o is None: return True
        if o[0] == "B": return o[1] <= self.lastbar - 1
        return o in self.xdone
    def cands(self, name):
        c = [s for s in range(10) if self.free(s)]
        if name[0] == "B" and name[1] >= self.cfg.get("avoid_from", 23): c = [s for s in reversed(c) if s not in (7, 8)]
        return c
    def alloc(self, name, want=None):
        c = self.cands(name) if want is None else [s for s in range(10) if self.free(s) and s == want]
        assert c, ("no free slot", name, self.owner, self.lastbar)
        s = c[0]; self.owner[s] = name; self.slot[name] = s
        return s

    def pos_ops(self, f, d):
        t = sA + 4
        return [f"s_lshr_b32 s{t}, s{f}, 2", f"s_mul_i32 s{t}, s{t}, 6", f"s_lshl_b32 s{d}, s{f}, 1", f"s_add_u32 s{t}, s{t}, s{d}",
                f"s_sub_u32 s{t+1}, s{f}, 16", f"s_mul_i32 s{t+1}, s{t+1}, {DIV3}", f"s_lshr_b32 s{t+1}, s{t+1}, 16", f"s_lshl_b32 s{t+1}, s{t+1}, 3",
                f"s_add_u32 s{t+1}, s{t+1}, s{d}", f"s_sub_u32 s{t+1}, s{t+1}, 24",
                f"s_cmp_lt_u32 s{f}, 16; s_cselect_b32 s{d}, s{t}, s{t+1}"]
    def f_params(self, P, code):
        t = sA
        return lines(f"""
        s_mov_b32 s{P+3}, 0x20000
        s_cmp_lt_u32 s{sWave}, 2; s_cselect_b32 s{P}, s{pG}, s{pU}; s_cselect_b32 s{P+1}, s{pG+1}, s{pU+1}
        s_cmp_lt_u32 s{code}, 27; s_cselect_b32 s{P+2}, {640*3456}, 0
        s_movk_i32 s{P+4}, 3456
        s_lshl_b32 s{P+5}, s{code}, 7
        s_mul_i32 s{P+6}, s{sRot}, {64*3456}
        """) + self.pos_ops(code, P + 7) + lines(f"""
        s_lshl_b32 s{t}, s{sMb}, 1
        s_lshr_b32 s{t+1}, s{sWave}, 1
        s_add_u32 s{t}, s{t}, s{t+1}
        s_mul_i32 s{t}, s{t}, 56
        s_add_u32 s{P+7}, s{P+7}, s{t}
        s_lshl_b32 s{P+7}, s{P+7}, 12
        s_and_b32 s{t+1}, s{sWave}, 1
        s_lshl_b32 s{t+1}, s{t+1}, 11
        s_add_u32 s{P+7}, s{P+7}, s{t+1}
        """)
    def q_params(self, P, q):
        t = sA
        return lines(f"""
        s_mov_b32 s{P+3}, 0x20000
        s_mov_b32 s{P}, s{pQKV}
        s_mov_b32 s{P+1}, s{pQKV+1}
        s_movk_i32 s{P+4}, 3840
        s_lshr_b32 s{t}, s{sWave}, 1
        s_lshl_b32 s{P+5}, s{q}, 1
        s_add_u32 s{P+5}, s{P+5}, s{t}
        s_lshl_b32 s{P+5}, s{P+5}, 7
        s_mul_i32 s{P+6}, s{sRot}, {64*3840}
        s_lshl_b32 s{t}, s{sMb}, 2
        s_add_u32 s{t}, s{t}, s{sWave}
        s_mul_i32 s{t}, s{t}, 122880
        s_lshl_b32 s{t+1}, s{q}, 13
        s_add_u32 s{t}, s{t}, s{t+1}
        s_add_u32 s{t}, s{t}, {WS_QKV}
        s_cmp_lt_u32 s{q}, 15; s_cselect_b32 s{P+2}, {640*3840}, 0; s_cselect_b32 s{P+7}, s{t}, s{sOOB}
        """)
    def pack_params(self):
        P = PK; t = sA
        r = lines(f"""
        s_mov_b32 s{P+3}, 0x20000
        s_mov_b32 s{t+2}, {640*1280}
        s_cmp_lt_u32 s2, 135; s_cselect_b32 s{P}, s{pDN}, s{pWO}; s_cselect_b32 s{P+1}, s{pDN+1}, s{pWO+1}; s_cselect_b32 s{P+2}, {1728*1280}, s{t+2}; s_cselect_b32 s{t}, 0, 135
        s_sub_u32 s{t}, s2, s{t}
        s_mul_i32 s{t+2}, s{t}, {DIV5}
        s_lshr_b32 s{t+2}, s{t+2}, 16
        s_mul_i32 s{t+3}, s{t+2}, 5
        s_sub_u32 s{t+1}, s{t}, s{t+3}
        s_mul_i32 s{P+4}, s{t+2}, {64*1280}
        s_lshl_b32 s{t+3}, s{t+1}, 8
        s_add_u32 s{P+4}, s{P+4}, s{t+3}
        s_lshr_b32 s{t+3}, s{sWave}, 1
        s_lshl_b32 s{t+3}, s{t+3}, 7
        s_add_u32 s{P+4}, s{P+4}, s{t+3}
        """) + self.pos_ops(t + 2, t + 3) + lines(f"""
        s_lshl_b32 s{t+2}, s{t+2}, 1
        s_mov_b32 s{t}, {WS_WO}
        s_movk_i32 s{t+6}, 100
        s_cmp_lt_u32 s2, 135; s_cselect_b32 s{t+3}, s{t+3}, s{t+2}; s_cselect_b32 s{t}, {WS_WD}, s{t}; s_cselect_b32 s{t+6}, 280, s{t+6}
        s_and_b32 s{t+2}, s{sWave}, 1
        s_add_u32 s{t+3}, s{t+3}, s{t+2}
        s_mul_i32 s{t+3}, s{t+3}, 5120
        s_add_u32 s{t}, s{t}, s{t+3}
        s_cmp_lt_u32 s2, 185; s_cselect_b32 s{P+2}, s{P+2}, 0; s_cselect_b32 s{t}, s{t}, s{sOOB}
        s_lshl_b32 s{t+1}, s{t+1}, 3
        s_and_b32 s{t+2}, s{sWave}, 2
        s_lshl_b32 s{t+2}, s{t+2}, 1
        s_add_u32 s{t+1}, s{t+1}, s{t+2}
        s_sub_u32 s{t+6}, s{t+6}, 5
        """)
        for ch in range(4):
            r += lines(f"""
            s_add_u32 s{t+2}, s{t+1}, {ch}
            s_mul_i32 s{t+3}, s{t+2}, {DIV5}
            s_lshr_b32 s{t+3}, s{t+3}, 16
            s_mul_i32 s{t+3}, s{t+3}, s{t+6}
            s_add_u32 s{t+3}, s{t+3}, s{t+2}
            s_lshl_b32 s{t+3}, s{t+3}, 10
            s_add_u32 s{P+5+ch}, s{t+3}, s{t}
            """)
        return r
    def p2_params(self):
        t = sA
        if self.cfg.get("p2x") == 2:
            return lines(f"""
            s_lshr_b32 s{t}, s{sJ}, 1
            s_add_u32 s{sNb}, s{sMb}, s{t}
            s_and_b32 s{sNb}, s{sNb}, 3
            s_lshl_b32 s{t}, s{sHalf}, 2
            s_or_b32 s{sNb}, s{sNb}, s{t}
            s_and_b32 s{t}, s{sJ}, 1
            s_lshl_b32 s{sMb64}, s{sMb}, 1
            s_add_u32 s{sMb64}, s{sMb64}, s{t}
            s_lshl_b32 s{t}, s{t}, 2
            s_lshl_b32 s{sHalf}, 0x0f0f0f0f, s{t}
            """) + self.p2_params0()[5:]
        if self.cfg.get("p2x"):
            r = self.p2_params0()[5:]
            return lines(f"""
            s_add_u32 s{sNb}, s{sMb}, s{sJ}
            s_and_b32 s{sNb}, s{sNb}, 3
            s_lshl_b32 s{t}, s{sHalf}, 2
            s_or_b32 s{sNb}, s{sNb}, s{t}
            s_lshr_b32 s{t}, s{sJ}, 2
            s_lshl_b32 s{sMb64}, s{sMb}, 1
            s_add_u32 s{sMb64}, s{sMb64}, s{t}
            s_lshl_b32 s{t}, s{t}, 4
            s_lshl_b32 s{sHalf}, 0xffff, s{t}
            """) + r
        return self.p2_params0()
    def p2_params0(self):
        t = sA
        return lines(f"""
        s_lshl_b32 s{sNb}, s{sMb}, {0 if self.cfg.get("map8") else 1}
        s_add_u32 s{sNb}, s{sNb}, s{sJ}
        s_and_b32 s{sNb}, s{sNb}, {3 if self.cfg.get("map8") else 7}
        s_and_b32 s{t}, s{sJ}, {4 if self.cfg.get("map8") else 0}
        s_or_b32 s{sNb}, s{sNb}, s{t}
        s_mul_i32 s{t}, s{sWave}, 14
        s_mul_i32 s{sAb}, s{sMb64}, 56
        s_add_u32 s{sAb}, s{sAb}, s{t}
        s_lshl_b32 s{sAb}, s{sAb}, 12
        s_mul_i32 s{sBb}, s{sNb}, 56
        s_add_u32 s{sBb}, s{sBb}, s{t}
        s_mul_i32 s{sBb}, s{sBb}, 5120
        s_add_u32 s{sBb}, s{sBb}, {WS_WD}
        s_cmp_lt_u32 s{sWave}, 3; s_cselect_b32 s{sAb2}, s{sAb}, s{sOOB}; s_cselect_b32 s{sBb2}, s{sBb}, s{sOOB}
        s_mul_i32 s{t}, s{sMb64}, 81920
        s_add_u32 s{t}, s{t}, {WS_O}
        s_mul_i32 s{sOld}, s{sWave}, 20480
        s_add_u32 s{sOld}, s{sOld}, s{t}
        s_mul_i32 s{sOst}, s{sNb}, 10
        s_add_u32 s{sOst}, s{sOst}, s{sWave}
        s_lshl_b32 s{sOst}, s{sOst}, 8
        s_add_u32 s{sOst}, s{sOst}, s{t}
        s_cmp_lt_u32 s{sWave}, 2; s_cselect_b32 s{sOst2}, s{sOst}, s{sOOB}
        s_mul_i32 s{sWOb}, s{sNb}, 102400
        s_add_u32 s{sWOb}, s{sWOb}, {WS_WO}
        s_add_u32 s{sWOb}, s{sWOb}, s{sM0}
        s_lshl_b32 s{sKV}, s{sNb}, 2
        s_add_u32 s{sKV}, s{sKV}, s{sWave}
        s_mul_i32 s{sKV}, s{sKV}, 1280
        s_add_u32 s{sKV}, s{sKV}, {WS_QKV}
        s_lshl_b32 s{sXo}, s{sMb64}, 2
        s_add_u32 s{sXo}, s{sXo}, s{sWave}
        s_mul_i32 s{sXo}, s{sXo}, {16*1280}
        s_mul_i32 s{t}, s{sNb}, 160
        s_add_u32 s{sXo}, s{sXo}, s{t}
        s_lshl_b32 s{sFl0}, s{sMb}, 9
        s_add_u32 s{sFl0}, s{sFl0}, {WS_FLAG}
        s_max_u32 s{sFl1}, s{sMb}, 1
        s_lshl_b32 s{sFl1}, s{sFl1}, 9
        s_add_u32 s{sFl1}, s{sFl1}, {WS_FLAG - 512}
        s_lshl_b32 s{sFlG}, s{sWave}, 11
        s_add_u32 s{sFlG}, s{sFlG}, {WS_FLAG}
        s_lshl_b32 s{t}, s{sMb64}, 1
        v_lshrrev_b32 v{vQa}, 5, v0
        v_add_u32 v{vQa}, s{t}, v{vQa}
        v_mul_u32_u24 v{vQa}, 122880, v{vQa}
        v_and_b32 v{vKa}, 31, v0
        v_lshl_add_u32 v{vQa}, v{vKa}, 3, v{vQa}
        v_add_u32 v{vKa}, 8, v0
        v_lshrrev_b32 v{vT}, 4, v{vKa}
        v_add_u32 v{vT}, s{t}, v{vT}
        v_max_u32 v{vT}, 1, v{vT}
        v_subrev_u32 v{vT}, 1, v{vT}
        v_mul_u32_u24 v{vT}, 122880, v{vT}
        v_and_b32 v{vKa}, 15, v{vKa}
        v_lshl_add_u32 v{vKa}, v{vKa}, 4, v{vT}
        """)
    def switch_ops(self, P):
        t = sA
        return [f"v_mad_u32_u24 v{vLd}, v{vRow}, s{P+4}, v{vCol}",
                f"s_lshl_b32 s{sStep}, s{P+4}, 6",
                f"s_lshl_b32 s{t}, s{P+4}, 3",
                f"s_sub_u32 s{t}, s{t}, 1024",
                f"v_add_u32 v{vLd}, s{P+5}, v{vLd}",
                f"s_mul_i32 s{sWrap}, s{sStep}, 10",
                f"s_mov_b32 s{sSoff}, s{P+6}",
                f"v_add_u32 v{vLd+1}, s{t}, v{vLd}",
                f"v_add_u32 v{vLd+2}, s{t}, v{vLd+1}",
                f"v_add_u32 v{vLd+3}, s{t}, v{vLd+2}"]
    def dma_items(self, g):
        P = PB[g // 10]; slot = self.alloc(("B", g))
        it = [("op", f"s_add_u32 m0, s{sM0}, {slot*16384}")]
        if g % 10 == 0 and g > 0: it += [("op", o) for o in self.switch_ops(P)]
        elif g % 10: it.append(("op", f"s_add_u32 s{sSoff}, s{sSoff}, s{sStep}; s_cmp_eq_u32 s{sSoff}, s{sWrap}; s_cselect_b32 s{sSoff}, 0, s{sSoff}"))
        it += [("ld", f"buffer_load_dwordx4 v{vLd+j}, s[{P}:{P+3}], s{sSoff} offen offset:{1024*j} lds", f"B{g}") for j in range(4)]
        return it
    def pop_ops(self):
        p = self.pend
        while p and p[0][0] != "ld": self.emit(p.pop(0)[1])
    def pop_ld(self):
        a = self.a; p = self.pend
        self.pop_ops()
        if p:
            if " m0," in a.lines[-1]: a("s_nop 0")
            _, l, tag = p.pop(0); self.vm.issue(a, l, tag)
    def tr_reads(self, G):
        g, s = G >> 2, G & 3
        slot = self.slot[("B", g)]; reg = slot >> 2
        o = (slot & 3) * 16384 + 16 * s * 128
        r = []
        for t in range(4):
            b = WF + 16 * (G % NWB) + 4 * t
            r += [f"ds_read_b64_tr_b16 a[{b}:{b+1}], v{vTr+4*reg+t} offset:{o}",
                  f"ds_read_b64_tr_b16 a[{b+2}:{b+3}], v{vTr+4*reg+t} offset:{o+512}"]
        return r
    def center_ops(self, stage):
        x = XB + 16 * stage; t = EP
        d = []
        for i in range(16):
            d.append(f"v_dot2_f32_bf16 v{t+2*i}, v{x+i}, s{sLo}, v{vNegM}")
            d.append(f"v_dot2_f32_bf16 v{t+2*i+1}, v{x+i}, s{sHi}, v{vNegM}")
        c = [f"v_cvt_pk_bf16_f32 v{x+i}, v{t+2*i}, v{t+2*i+1}" for i in range(16)]
        return d, c
    def epi_f(self, acc, so):
        ops = []; sts = []; nb = self.cfg["stb"]
        for t in range(4):
            g = EP + 32 * (t & 1); u = g + 8; e = g + 16; pk = g + 24 + 4 * (t >> 1)
            A = acc + 16 * t
            for i in range(8): ops.append(f"v_accvgpr_read_b32 v{g+i}, a{A+i}")
            for i in range(8): ops.append(f"v_mul_f32 v{e+i}, v{vC1}, v{g+i}")
            for i in range(8):
                ops.append(f"v_exp_f32 v{e+i}, v{e+i}")
                ops.append(f"v_accvgpr_read_b32 v{u+i}, a{A+8+i}")
            for i in range(8): ops.append(f"v_fma_f32 v{e+i}, v{e+i}, v{vD2}, v{vD2}")
            for i in range(8):
                ops.append(f"v_rcp_f32 v{e+i}, v{e+i}")
                ops.append(f"v_mul_f32 v{g+i}, v{g+i}, v{u+i}")
            for i in range(8): ops.append(f"v_mul_f32 v{g+i}, v{g+i}, v{e+i}")
            for i in range(4): ops.append(f"v_cvt_pk_bf16_f32 v{pk+i}, v{g+2*i}, v{g+2*i+1}")
            if t == 2: sts.append(f"s_add_u32 s{so}, s{so}, 4096")
            sts.append(f"buffer_store_dwordx4 v[{pk}:{pk+3}], v{vSF}, s[{SRDW}:{SRDW+3}], s{so} offen offset:{(t&1)*512} sc1")
            if (t + 1) % nb == 0:
                ops.append("; ".join(sts)); sts = []
        return ops
    def epi_f_tail(self, acc, so):
        ops = [f"v_mov_b32 v{vR}, v{vD2}", f"v_mov_b32 v{vT}, v{vC1}", f"v_mov_b32 v{vT-1}, v{vC1}"]
        p2 = lambda r: f"v[{r}:{r+1}]"
        for t in range(4):
            g = EP + 32 * (t & 1); u = g + 8; e = g + 16; pk = g + 24
            A = acc + 16 * t
            for i in range(8): ops.append(f"v_accvgpr_read_b32 v{g+i}, a{A+i}")
            for i in range(4): ops.append(f"v_pk_mul_f32 {p2(e+2*i)}, {p2(vT-1)}, {p2(g+2*i)}")
            for i in range(8):
                ops.append(f"v_exp_f32 v{e+i}, v{e+i}")
                ops.append(f"v_accvgpr_read_b32 v{u+i}, a{A+8+i}")
            for i in range(4): ops.append(f"v_pk_fma_f32 {p2(e+2*i)}, {p2(e+2*i)}, {p2(vD2)}, {p2(vD2)}")
            for i in range(8): ops.append(f"v_rcp_f32 v{e+i}, v{e+i}")
            for i in range(4): ops.append(f"v_pk_mul_f32 {p2(g+2*i)}, {p2(g+2*i)}, {p2(u+2*i)}")
            for i in range(4): ops.append(f"v_pk_mul_f32 {p2(g+2*i)}, {p2(g+2*i)}, {p2(e+2*i)}")
            for i in range(4): ops.append(f"v_cvt_pk_bf16_f32 v{pk+i}, v{g+2*i}, v{g+2*i+1}")
            if t == 2: ops.append(f"s_add_u32 s{so}, s{so}, 4096")
            ops.append(f"buffer_store_dwordx4 v[{pk}:{pk+3}], v{vSF}, s[{SRDW}:{SRDW+3}], s{so} offen offset:{(t&1)*512} sc1")
        return ops
    def epi_q(self, acc, so):
        ops = [f"s_add_u32 s{so-1}, s{so}, 4096"]; sts = []; nb = self.cfg["stb"]
        for t in range(4):
            g = EP; pk = EP + 16 + 8 * t
            A = acc + 16 * t
            for i in range(16): ops.append(f"v_accvgpr_read_b32 v{g+i}, a{A+i}")
            for i in range(16): ops.append(f"v_mul_f32 v{g+i}, v{vR}, v{g+i}")
            for i in range(8): ops.append(f"v_cvt_pk_bf16_f32 v{pk+i}, v{g+2*i}, v{g+2*i+1}")
            for q in range(4):
                grp = 4 * t + 2 * (q & 1)
                sts.append(f"buffer_store_dwordx2 v[{pk+2*q}:{pk+2*q+1}], v{vL8}, s[{SRDW}:{SRDW+3}], s{so-(q>>1)} offen offset:{grp*256} sc1")
            if (t + 1) % nb == 0:
                if self.cfg.get("stq", True): ops.append("; ".join(sts))
                else: ops += sts
                sts = []
        return ops
    def publish(self, level, after):
        a = self.a
        for tg in after: self.vm.wait(a, tg)
        a(f"v_mov_b64 v[{self.vPub}:{self.vPub+1}], s[{sTok}:{sTok+1}]")
        a(f"s_add_u32 s{sA+8}, s{sFlag}, {level*8192}")
        a("s_mov_b64 exec, 1")
        self.vm.issue(a, f"buffer_store_dwordx2 v[{self.vPub}:{self.vPub+1}], off, s[{SRDW}:{SRDW+3}], s{sA+8} sc1", "fl")
        a("s_mov_b64 exec, -1")
    def retouch(self, kind, so=None):
        if kind not in self.cfg.get("rt", ""): return
        a = self.a; r = 88 if kind == "P" else self.vPub - 2
        if kind == "P":
            a(f"v_lshlrev_b32 v{r}, 7, v0\ns_mov_b64 exec, 0xff")
            for ch in range(4): self.vm.issue(a, f"buffer_load_dword v{r+1}, v{r}, s[{SRDW}:{SRDW+3}], s{PK+5+ch} offen", "rt")
            a("s_mov_b64 exec, -1")
        elif kind == "Q":
            a(f"v_lshlrev_b32 v{r}, 7, v0")
            self.vm.issue(a, f"buffer_load_dword v{r}, v{r}, s[{SRDW}:{SRDW+3}], s{so} offen", "rt")
        else:
            a(f"v_and_b32 v{r}, 16, v0\nv_add_u32 v{r}, v{r}, v0\nv_lshlrev_b32 v{r}, 7, v{r}\ns_sub_u32 s{sA+8}, s{so}, 4096\ns_mov_b32 exec_hi, 0")
            self.vm.issue(a, f"buffer_load_dword v{r}, v{r}, s[{SRDW}:{SRDW+3}], s{sA+8} offen", "rt")
            a("s_mov_b32 exec_hi, -1")
    def flag_ld(self, reg, soff, level, off, sc):
        return [f"s_add_u32 s{sA+8}, s{soff}, {level*8192}",
                f"buffer_load_dwordx2 v[{reg}:{reg+1}], v{vL8}, s[{SRDW}:{SRDW+3}], s{sA+8} offen offset:{off} {sc}"]
    def flag_load(self, reg, soff, tag, level, off=0):
        l = self.flag_ld(reg, soff, level, off, "")
        self.a(l[0]); self.vm.issue(self.a, l[1], tag)
    def flag_check(self, reg, soff, tag, level, half=False, off=0):
        a = self.a; L = a.newlabel("fc")
        self.vm.wait(a, tag)
        test = f"v_cmp_ne_u64 vcc, s[{sTok}:{sTok+1}], v[{reg}:{reg+1}]\n"
        if half and self.cfg.get("p2x"): test += f"s_nop 0\ns_or_b32 s{sA+8}, vcc_lo, vcc_hi\ns_and_b32 s{sA+8}, s{sA+8}, s{sHalf}"
        elif half: test += f"s_cmp_eq_u32 s{sHalf}, 0\ns_cselect_b32 s{sA+8}, vcc_lo, vcc_hi\ns_cmp_lg_u32 s{sA+8}, 0"
        else: test += "s_nop 0\ns_cmp_lg_u64 vcc, 0"
        a(test)
        a(f"s_cbranch_scc1 {L}_slow")
        a.label(f"{L}_ok")
        l = self.flag_ld(reg, soff, level, off, "sc1")
        self.slow.append(f"""
        {L}_slow:
        s_mov_b32 s{sA+9}, 0
        {L}_spin:
        {l[0]}
        {l[1]}
        s_add_u32 s{sA+9}, s{sA+9}, 1
        s_cmp_gt_u32 s{sA+9}, {self.cfg["spin"]}
        s_waitcnt vmcnt(0)
        s_cbranch_scc1 {L}_ok
        {test}
        s_cbranch_scc0 {L}_ok
        s_sleep {self.cfg.get("sleep", 4)}
        s_branch {L}_spin
        """)

    def body(self, T, work, ntask, wrange=(4, 156), center=False, extra=None, vq=None, vq1=1, vq2=1, before=None):
        a = self.a; cfg = self.cfg; acc = ACC[T & 1]; LA = cfg["LA"]
        ngap = 160
        per = [[] for _ in range(ngap)]
        def cost(op):
            if not isinstance(op, str): return 3.0
            if op.startswith(("v_exp", "v_rcp")): return 2.0
            if op.startswith("buffer_"): return 3.0 * (1 + op.count(";"))
            return 1.0 + op.count(";")
        def is_bar(S):
            n1 = 10 * T + (S >> 2) + 1
            if (S & 3) != 1 or n1 >= 10 * ntask: return False
            return (n1 % 2 == 0) if cfg["bar2"] else True
        cap = []
        for g in range(ngap):
            c = cfg["cap"] - ([3, 3, 2, 0] if is_bar(g >> 2) else cfg["rpat"])[g & 3]
            if (g & 3) == cfg["dmagap"] or ((g & 3) == 0 and vq): c -= 2.5
            if (g & 3) == 3: c -= 1
            if (g & 3) == 3 and is_bar(g >> 2): c = 0
            cap.append(max(c, 0.0))
        if center:
            for st in range(cfg["nc"], 10):
                d, c = self.center_ops(st)
                base = 16 * (st - 1)
                per[base] += d
                cg = [base + x for x in (1, 3, 4, 5, 8, 9, 11, 12, 13)]
                for i, op in enumerate(c): per[cg[i * len(cg) // 16]].append(op)
        used = lambda g: sum(cost(o) for o in per[g])
        self.ends = {}
        for g00, fn in (extra or {}).items():
            if not isinstance(fn, list): per[g00].append(fn)
        for g00, fn in (extra or {}).items():
            if isinstance(fn, list):
                g = g00; room = 0.0
                for op in fn:
                    while room <= 0:
                        room = cap[g] - used(g); g += 1
                    per[g - 1].append(op); room -= cost(op)
                self.ends[g00] = g - 1
        for a_, b_ in (before or []): assert self.ends[a_] < b_, (a_, self.ends[a_], b_)
        if work:
            g0, g1 = wrange
            cap = [max(cap[g] - used(g), 0.0) for g in range(ngap)]
            scale = sum(cost(o) for o in work) / sum(cap[g0:g1])
            if cfg.get("verbose"): print("body", T, "work scale", scale)
            g = g0; room = cap[g] * scale
            for op in work:
                while room <= 0 and g < g1 - 1:
                    g += 1; room += cap[g] * scale
                per[g].append(op); room -= cost(op)
        vq = list(vq or [])
        for S in range(40):
            i, s = S >> 2, S & 3
            G = 40 * T + S; n = 10 * T + i
            rd = self.tr_reads(G + 2) if G + 2 < 40 * ntask else []
            if s == 2:
                k = 0
                while self.next <= n + LA and self.next < 10 * ntask and k < 2 and self.cands(("B", self.next)):
                    self.pend += self.dma_items(self.next); self.next += 1; k += 1
            for t in range(4):
                gap = 4 * S + t
                if t == 0: a(f"s_waitcnt lgkmcnt({8 if G + 1 < 40 * ntask else 0})")
                A = acc + 16 * t; w = WF + 16 * (G % NWB) + 4 * t; x = XB + 4 * S
                c = "0" if S == 0 else f"a[{A}:{A+15}]"
                a(f"v_mfma_f32_32x32x16_bf16 a[{A}:{A+15}], a[{w}:{w+3}], v[{x}:{x+3}], {c}")
                pat = [3, 3, 2, 0] if is_bar(S) else cfg["rpat"]
                for _ in range(pat[t]):
                    if rd: a(rd.pop(0))
                nld = sum(1 for p_ in self.pend if p_[0] == "ld")
                if self.pend and (t == cfg["dmagap"] or (nld > 4 and t == 0)): self.pop_ld()
                elif vq and ((t == 0 and S % vq1 == 0) or (t == cfg["dmagap"] and not self.pend and S % vq2 == 0)):
                    for j_, it_ in enumerate(vq):
                        if it_[0](gap):
                            vq.pop(j_)[1](); break
                if t == cfg["dmagap"] - 1: self.pop_ops()
                if T == cfg.get("markT", 2) and gap % 16 == 9: self.mark(gap // 16)
                for op in per[gap]:
                    if callable(op): op()
                    else: self.emit(op, f"E{T-1}")
                if t == 3 and is_bar(S):
                    last = n + 2 if cfg["bar2"] and n + 2 < 10 * ntask else n + 1
                    self.vm.wait(a, f"B{last}", 4)
                    a("s_barrier")
                    self.lastbar = n
            assert not rd
        return vq

    def att_loads(self, al=True):
        a = self.a
        out = []
        for kv in range(2):
            for i in range(5):
                def f(kv=kv, i=i):
                    assert not self.pend
                    a(f"s_add_u32 m0, s{sM0}, {(7+kv)*16384 + i*640 - 256*i}")
                    if i == 0: a(f"s_add_u32 s{sA+6}, s{sKV}, {(kv+1)*40960}")
                    a("s_mov_b32 exec_hi, 0xff")
                    self.vm.issue(a, f"buffer_load_dwordx4 v{vKa}, s[{SRDW}:{SRDW+3}], s{sA+6} offen offset:{256*i} sc1 lds", "KV")
                    a("s_mov_b32 exec_hi, -1")
                out.append(f)
        for i in range(5):
            out.append(lambda i=i: self.vm.issue(a, f"buffer_load_dwordx2 v[{XB+2*i}:{XB+2*i+1}], v{vQa}, s[{SRDW}:{SRDW+3}], s{sKV} offen offset:{256*i} sc1", "KV"))
        return out
    def attention(self, inter):
        a = self.a; vm = self.vm
        Q = XB; AK = 1; AK2 = 2; RW = 3; L = 4; P = 236; O = 216
        kvb = [[196, 200, 204, 208, 212], [106, 110, 252, 12, 26]]
        code = []; e = code.append
        def rd(n):
            m = n & 3
            if n == 4:
                e(f"v_add_u32 v{AK}, 16384, v{AK}"); e(f"v_add_u32 v{AK2}, 16384, v{AK2}")
            for i in range(5):
                b = kvb[n & 1][i]; o = (i % 3) * 80 + 16 - 4 * m
                e(f"ds_read2_b64 v[{b}:{b+3}], v{AK if i < 3 else AK2} offset0:{o} offset1:{o-2}")
        a(f"""
        s_add_u32 s{sA}, s{sM0}, {7*16384}
        v_add_u32 v{AK}, s{sA}, v{vL8}
        v_add_u32 v{AK2}, 1920, v{AK}
        s_mov_b32 s{sA+1}, 0x{C_SM:x}
        """)
        vm.wait(a, "KV", 15)
        self.mark(23)
        rd(0)
        for n in range(8):
            m = n & 3; B = kvb[n & 1]
            e("s_waitcnt lgkmcnt(0)")
            if n < 4:
                for i in range(10):
                    for h in range(2):
                        src = f"v{Q+i}, v{B[i>>1] + 2*h + (i&1)}"
                        e(f"v_dot2_f32_bf16 v{L+2*m+h}, {src}, 0" if i == 0 else f"v_dot2c_f32_bf16 v{L+2*m+h}, {src}")
                    if i == 0: rd(n + 1)
            else:
                if n + 1 < 8: rd(n + 1)
                for h in range(2):
                    w = 2 * m + h
                    for i in range(10):
                        for j in range(2):
                            src = f"v{B[i>>1] + 2*h + (i&1)}, v{P+2*w+j}"
                            e(f"v_dot2_f32_bf16 v{O+2*i+j}, {src}, 0" if w == 0 else f"v_dot2c_f32_bf16 v{O+2*i+j}, {src}")
            if n == 3:
                Lm = a.newlabel("am")
                blk = [f"s_cmp_lg_u32 s{sMb64}, 0", f"s_cbranch_scc1 {Lm}", f"v_mov_b32 v{P}, 0xce6e6b28"]
                for ww in range(1, 8):
                    blk += [f"v_cmp_gt_u32 vcc, {2*ww}, v0", "s_nop 1", f"v_cndmask_b32 v{L+ww}, v{L+ww}, v{P}, vcc"]
                blk += [f"{Lm}:"]
                e("\n".join(blk))
                e(f"v_max3_f32 v{P}, v{L}, v{L+1}, v{L+2}")
                e(f"v_max3_f32 v{P}, v{P}, v{L+3}, v{L+4}")
                e(f"v_max3_f32 v{P}, v{P}, v{L+5}, v{L+6}")
                e(f"v_max_f32 v{P}, v{P}, v{L+7}")
                e(f"v_mul_f32 v{P}, s{sA+1}, v{P}")
                for ww in range(8): e(f"v_fma_f32 v{L+ww}, v{L+ww}, s{sA+1}, -v{P}")
                for ww in range(8): e(f"v_exp_f32 v{L+ww}, v{L+ww}")
                e(f"v_pk_add_f32 v[{P}:{P+1}], v[{L}:{L+1}], v[{L+2}:{L+3}]")
                e(f"v_pk_add_f32 v[{P+2}:{P+3}], v[{L+4}:{L+5}], v[{L+6}:{L+7}]")
                e(f"v_pk_add_f32 v[{P}:{P+1}], v[{P}:{P+1}], v[{P+2}:{P+3}]")
                e(f"v_add_f32 v{P}, v{P}, v{P+1}")
                e(f"v_rcp_f32 v{P}, v{P}\ns_nop 0")
                for ww in range(4): e(f"v_pk_mul_f32 v[{L+2*ww}:{L+2*ww+1}], v[{L+2*ww}:{L+2*ww+1}], v[{P}:{P+1}] op_sel_hi:[1,0]")
                for ww in range(8):
                    e(f"v_cvt_pk_bf16_f32 v{P+2*ww}, v{L+ww}, 0")
                    e(f"v_cvt_pk_bf16_f32 v{P+2*ww+1}, 0, v{L+ww}")
        e(f"s_mul_i32 s{sA}, s{sWave}, 2560\ns_add_u32 s{sA}, s{sA}, {9*16384}\nv_add_u32 v{AK}, s{sA}, v{vL8}")
        e(f"s_mul_i32 s{sA}, s{sWave}, 3\ns_and_b32 s{sA}, s{sA}, 13\ns_min_u32 s{sA}, s{sA}, 5\ns_lshl_b32 s{sA}, s{sA}, 9\ns_add_u32 s{sA}, s{sA}, {9*16384}\nv_add_u32 v{AK2}, s{sA}, v{vL8}")
        e(f"v_lshrrev_b32 v{RW}, 4, v0"); e(f"v_mul_u32_u24 v{RW}, {20480-256}, v{RW}"); e(f"v_add_u32 v{RW}, v{RW}, v{vL16}")
        for i in range(5):
            e(f"v_cvt_pk_bf16_f32 v{Q+2*i}, v{O+4*i}, v{O+4*i+1}")
            e(f"v_cvt_pk_bf16_f32 v{Q+2*i+1}, v{O+4*i+2}, v{O+4*i+3}")
            e(f"ds_write_b64 v{AK}, v[{Q+2*i}:{Q+2*i+1}] offset:{512*i}")
        inter = list(inter); n = len(code); k = len(inter); j = 0
        for i, ins in enumerate(code):
            a(ins)
            while j < k and j < (i + 1) * k // (n - 10):
                inter[j](); j += 1
        self.mark(25)
        if self.cfg["nokb"]: vm.wait(a, "WO", 25)
        a("s_waitcnt lgkmcnt(0)\ns_barrier")
        for r in range(3): a(f"ds_read2st64_b64 v[{4+4*r}:{7+4*r}], v{AK2} offset0:{8*r} offset1:{8*r+2}")
        return [lambda r=r: (a(f"s_waitcnt lgkmcnt({2-r})"),
                             vm.issue(a, f"buffer_store_dwordx4 v[{4+4*r}:{7+4*r}], v{RW}, s[{SRDW}:{SRDW+3}], s{sOst2 if r == 2 else sOst} offen offset:{1024*r} sc1", "O")) for r in range(3)]

    BSLOT = ["a176", "a196", "a216", "a236", "v116", "v136", "v156", "v176", "v196", "v216", "a0", "a128", "a148", "v96"]
    ASLOT = ["a80", "a96", "a112", "v32", "v48", "v64", "v80"] * 2
    @staticmethod
    def rr(base, off, n=4):
        return f"{base[0]}[{int(base[1:])+off}:{int(base[1:])+off+n-1}]"
    def b_loads(self, k):
        a = self.a; out = []
        for u in range(5):
            def f(u=u):
                if u == 0: a(f"s_add_u32 s{sGb}, s{sBb if k < 12 else sBb2}, {k*5120}")
                if u == 4: a(f"s_add_u32 s{sGb}, s{sGb}, 4096")
                self.vm.issue(a, f"buffer_load_dwordx4 {self.rr(self.BSLOT[k], 4*u)}, v{vL16}, s[{SRDW}:{SRDW+3}], s{sGb} offen offset:{1024*(u&3)} sc1", f"PB{k}")
            out.append(f)
        return out
    def a_loads(self, k):
        a = self.a; out = []
        for i in range(4):
            def f(i=i):
                if i == 0: a(f"s_add_u32 s{sGa}, s{sAb if k < 12 else sAb2}, {k*4096}")
                self.vm.issue(a, f"buffer_load_dwordx4 {self.rr(self.ASLOT[k], 4*i)}, v{vA[i]}, s[{SRDW}:{SRDW+3}], s{sGa} offen sc1", f"PA{k}")
            out.append(f)
        return out
    def wo_loads(self, s):
        a = self.a; out = []
        for j in range(4 if s < 6 else 1):
            def f(j=j):
                assert not self.pend
                if j == 0 and self.owner[s] != ("WO", s): self.alloc(("WO", s), s)
                if self.m0 != ("WO", s):
                    if s < 6:
                        a(f"s_add_u32 m0, s{sM0}, {s*16384}\ns_add_u32 s{sA+7}, s{sWOb}, {s*16384}")
                    else:
                        a(f"s_lshr_b32 s{sA+7}, s{sM0}, 2\ns_add_u32 m0, s{sA+7}, {6*16384}\ns_sub_u32 s{sA+7}, s{sWOb}, s{sM0}\ns_add_u32 s{sA+7}, s{sA+7}, m0")
                self.m0mark = (len(a.lines), ("WO", s))
                self.vm.issue(a, f"buffer_load_dwordx4 v{vL16}, s[{SRDW}:{SRDW+3}], s{sA+7} offen offset:{1024*j} sc1 lds", "WO")
            out.append(f)
        return out
    @property
    def m0(self):
        mk = getattr(self, "m0mark", None)
        if not mk: return None
        for l in self.a.lines[mk[0]:]:
            if " m0," in l or f"s{sA+7}," in l.split(",")[0] + "," and l.strip().startswith("s_") or l.endswith(("_join:", "_two:")): return None
        return mk[1]

    def build(self):
        a = self.a; cfg = self.cfg; label = self.label
        vm = self.vm
        sX = sA + 9
        a.begin_kernel(label)
        a(f"""
        s_cmp_ge_u32 s2, 256
        s_cbranch_scc1 {label}_end
        s_load_dwordx2 s[4:5], s[0:1], 0
        s_load_dwordx2 s[{pQKV}:{pQKV+1}], s[0:1], 8
        s_load_dwordx2 s[{pWO}:{pWO+1}], s[0:1], 16
        s_load_dwordx4 s[{pG}:{pG+3}], s[0:1], 32
        s_load_dwordx2 s[{pDN}:{pDN+1}], s[0:1], 48
        s_load_dwordx2 s[6:7], s[0:1], 56
        s_load_dwordx2 s[{pWS}:{pWS+1}], s[0:1], 72
        """)
        self.stamp(0)
        if self.stamps: a(f"s_memrealtime s[{sTok}:{sTok+1}]")
        NL = cfg.get("codelines", 11)
        a(f"""
        s_getpc_b64 s[{sA}:{sA+1}]
        s_lshr_b32 s{sA+2}, s2, 3
        s_mul_i32 s{sA+2}, s{sA+2}, {NL*128}
        v_lshlrev_b32 v{vT}, 7, v0
        v_add_u32 v{vT}, s{sA+2}, v{vT}
        v_min_u32 v{vT}, {label}_end-{label}-128, v{vT}
        v_cmp_gt_u32 vcc, {NL}, v0
        s_and_saveexec_b64 s[{sA+2}:{sA+3}], vcc
        s_cbranch_execz {label}_nt
        global_load_dword v95, v{vT}, s[{sA}:{sA+1}]
        {label}_nt:
        s_mov_b64 exec, -1
        v_lshrrev_b32 v{vT}, 6, v0
        v_and_b32 v0, 63, v0
        s_and_b32 s{sA}, s2, 7
        v_readfirstlane_b32 s{sWave}, v{vT}
        """)
        if cfg.get("map2"):
            a(f"""
            s_lshr_b32 s{sA+2}, s2, 7
            s_lshl_b32 s{sMb}, s{sA}, 1
            s_add_u32 s{sMb}, s{sMb}, s{sA+2}
            s_bfe_u32 s{sHalf}, s2, 0x10006
            s_bfe_u32 s{sJ}, s2, 0x30003
            s_lshl_b32 s{sA+3}, s{sA}, 2
            s_lshr_b32 s{sRot}, {cfg.get("rot2", 0x43210432)}, s{sA+3}
            s_and_b32 s{sRot}, s{sRot}, 15
            s_mul_i32 s{sA+3}, s{sA+2}, {cfg.get("rot2m", 5)}
            s_add_u32 s{sRot}, s{sRot}, s{sA+3}
            s_add_u32 s{sRot}, s{sRot}, s{sJ}
            s_lshl_b32 s{sA+3}, s{sHalf}, 1
            s_add_u32 s{sRot}, s{sRot}, s{sA+3}
            """)
        elif not cfg.get("map8"):
            a(f"""
            s_lshr_b32 s{sA+1}, s2, 3
            s_and_b32 s{sHalf}, s{sA}, 1
            s_lshr_b32 s{sA}, s{sA}, 1
            s_lshl_b32 s{sA}, s{sA}, 2
            s_lshr_b32 s{sA+2}, s{sA+1}, 3
            s_add_u32 s{sMb}, s{sA}, s{sA+2}
            s_and_b32 s{sJ}, s{sA+1}, 7
            s_lshl_b32 s{sRot}, s{sA+2}, 2
            s_lshr_b32 s{sRot}, {cfg["rotm"]}, s{sRot}
            s_and_b32 s{sRot}, s{sRot}, 15
            s_add_u32 s{sRot}, s{sRot}, s{sJ}
            s_lshr_b32 s{sA+3}, {cfg["rotx"]}, s{sA}
            s_and_b32 s{sA+3}, s{sA+3}, 15
            s_add_u32 s{sRot}, s{sRot}, s{sA+3}
            s_mul_i32 s{sA+3}, s{sHalf}, {cfg.get("roth", 0)}
            s_add_u32 s{sRot}, s{sRot}, s{sA+3}
            """)
        else:
            a(f"""
            s_lshr_b32 s{sA+2}, s2, 5
            s_and_b32 s{sMb}, s{sA}, 4
            s_lshl_b32 s{sMb}, s{sMb}, 1
            s_add_u32 s{sMb}, s{sMb}, s{sA+2}
            s_bfe_u32 s{sHalf}, s2, 0x10001
            s_bfe_u32 s{sA+1}, s2, 0x20003
            s_and_b32 s{sJ}, s2, 1
            s_lshl_b32 s{sJ}, s{sJ}, 2
            s_add_u32 s{sJ}, s{sJ}, s{sA+1}
            s_lshl_b32 s{sRot}, s{sA+1}, 2
            s_lshr_b32 s{sRot}, 0x7520, s{sRot}
            s_and_b32 s{sRot}, s{sRot}, 15
            s_lshl_b32 s{sA+3}, s{sA+2}, 2
            s_lshr_b32 s{sA+3}, {cfg.get("rot8", 0x43210210)}, s{sA+3}
            s_and_b32 s{sA+3}, s{sA+3}, 15
            s_add_u32 s{sRot}, s{sRot}, s{sA+3}
            s_lshr_b32 s{sA+3}, s{sA}, 2
            s_mul_i32 s{sA+3}, s{sA+3}, 5
            s_add_u32 s{sRot}, s{sRot}, s{sA+3}
            s_and_b32 s{sA+3}, s2, 1
            s_add_u32 s{sRot}, s{sRot}, s{sA+3}
            """)
        a(f"""
        s_lshl_b32 s{sM0}, s{sWave}, 12
        s_sub_u32 s{sA+3}, s{sRot}, 10
        s_min_u32 s{sRot}, s{sRot}, s{sA+3}
        s_lshl_b32 s{sX}, s{sRot}, 7
        s_lshl_b32 s{sA}, s{sMb}, 7
        s_lshl_b32 s{sA+1}, s{sWave}, 5
        s_add_u32 s{sA}, s{sA}, s{sA+1}
        s_mul_i32 s{sA}, s{sA}, 1280
        v_lshrrev_b32 v{vT}, 3, v0
        v_mul_u32_u24 v{vT}, 1280, v{vT}
        v_add_u32 v{vT}, s{sA}, v{vT}
        v_lshrrev_b32 v{vT+1}, 4, v0
        v_and_b32 v{vT+2}, 7, v0
        v_xor_b32 v{vT+1}, v{vT+1}, v{vT+2}
        v_xor_b32 v{vT+2}, 4, v{vT+1}
        v_lshl_add_u32 v{EP+4}, v{vT+1}, 4, v{vT}
        v_lshl_add_u32 v{EP+5}, v{vT+2}, 4, v{vT}
        v_add_u32 v{EP+5}, {8*1280-1024}, v{EP+5}
        v_add_u32 v{EP+6}, {2*(8*1280-1024)}, v{EP+4}
        v_add_u32 v{EP+7}, {2*(8*1280-1024)}, v{EP+5}
        s_mov_b32 s{SRDX+2}, {2048*1280}
        s_mov_b32 s{SRDX+3}, 0x20000
        s_mov_b32 m0, s{sM0}
        """)
        sS = sA + 7; sC = sA + 8
        setup = lines(f"""
        s_mov_b32 s{sOOB}, {OOB}
        s_lshl_b32 s{sS}, s{sHalf}, 3
        s_add_u32 s{sS}, s{sS}, s{sJ}
        v_lshrrev_b32 v{vRow}, 3, v0
        s_and_b32 s{sA}, s{sWave}, 1
        s_lshl_b32 s{sA}, s{sA}, 5
        v_add_u32 v{vRow}, s{sA}, v{vRow}
        v_bfe_u32 v{vT}, v0, 1, 2
        v_bfe_u32 v{vT+1}, v0, 4, 1
        s_and_b32 s{sA}, s{sWave}, 2
        v_or_b32 v{vT+1}, s{sA}, v{vT+1}
        v_xor_b32 v{vT}, v{vT}, v{vT+1}
        v_and_b32 v{vT+1}, 1, v0
        v_lshlrev_b32 v{vT+1}, 4, v{vT+1}
        v_lshl_add_u32 v{vCol}, v{vT}, 5, v{vT+1}
        s_add_u32 s{sC}, s{sS}, {cfg["qsh"]}
        s_and_b32 s{sC}, s{sC}, 15
        """) + self.q_params(PB[0], sC) + self.switch_ops(PB[0])
        ptr = [o for o in setup if f"s{pQKV}" in o or f"s{pQKV+1}" in o]
        for o in setup:
            if o not in ptr: self.emit(o)
        a(f"s_waitcnt lgkmcnt(0)\ns_mov_b32 s{SRDX}, s4\ns_mov_b32 s{SRDX+1}, s5")
        if self.stamps: a(f"s_mov_b32 s1, s{sTok}")
        setup = ptr + ([f"s_add_u32 s{pWS}, s{pWS}, {cfg['wsoff']}; s_addc_u32 s{pWS+1}, s{pWS+1}, 0"] if cfg.get("wsoff") else []) + lines(f"""
        s_add_u32 s{sA}, s{pWS}, {WS_EPOCH}; s_addc_u32 s{sA+1}, s{pWS+1}, 0
        s_load_dwordx2 s[{sTok}:{sTok+1}], s[{sA}:{sA+1}], 0
        """)
        n_first = len(setup)
        setup += lines(f"""
        s_mov_b32 s{sOne}, 0x3f803f80
        s_mov_b32 s{sLo}, 0x00003f80
        s_mov_b32 s{sHi}, 0x3f800000
        v_and_b32 v{vT}, 31, v0
        v_lshlrev_b32 v{vT+1}, 7, v{vT}
        v_add_u32 v{vT+1}, s{sM0}, v{vT+1}
        v_bfe_u32 v{vT}, v0, 1, 3
        v_lshrrev_b32 v{vT+2}, 5, v0
        v_xor_b32 v{vT}, v{vT}, v{vT+2}
        """)
        XA = EP + 8
        for s in range(4):
            setup.append(f"v_xor_b32 v{vT+2}, {2*s}, v{vT}")
            setup.append(f"v_lshl_add_u32 v{XA+s}, v{vT+2}, 4, v{vT+1}")
            setup.append(f"v_add_u32 v{XA+4+s}, 0x10000, v{XA+s}")
            setup.append(f"v_add_u32 v{XA+8+s}, 0x20000, v{XA+s}")
        setup += lines(f"""
        v_mov_b32 v{vSum}, 0
        v_mov_b32 v{vSq}, 0
        v_lshlrev_b32 v{vL16}, 4, v0
        v_lshlrev_b32 v{vL8}, 3, v0
        v_bfe_u32 v{vT}, v0, 4, 1
        v_bfe_u32 v{vT+1}, v0, 2, 2
        v_lshrrev_b32 v{vT+2}, 5, v0
        v_lshl_add_u32 v{vT+2}, v{vT+2}, 3, v{vT+1}
        v_lshlrev_b32 v{vT+2}, 7, v{vT+2}
        v_lshl_add_u32 v{vT+2}, v{vT}, 13, v{vT+2}
        v_and_b32 v{EP}, 3, v0
        v_lshl_add_u32 v{vT+2}, v{EP}, 3, v{vT+2}
        v_lshrrev_b32 v{vT+1}, 1, v{vT+1}
        v_lshl_add_u32 v{vT}, v{vT}, 1, v{vT+1}
        """)
        for t in range(4):
            setup.append(f"v_xor_b32 v{vT+1}, {t}, v{vT}")
            setup.append(f"v_lshl_add_u32 v{vTr+t}, v{vT+1}, 5, v{vT+2}")
            setup.append(f"v_add_u32 v{vTr+4+t}, 0x10000, v{vTr+t}")
            setup.append(f"v_add_u32 v{vTr+8+t}, 0x20000, v{vTr+t}")
        setup += lines(f"""
        v_bfe_u32 v{vT}, v0, 4, 1
        v_lshlrev_b32 v{vT}, 10, v{vT}
        v_lshrrev_b32 v{vT+1}, 5, v0
        v_lshl_add_u32 v{vT}, v{vT+1}, 8, v{vT}
        v_and_b32 v{vT+1}, 15, v0
        v_lshl_add_u32 v{vSF}, v{vT+1}, 4, v{vT}
        s_mov_b32 s{SRDW}, s{pWS}
        s_mov_b32 s{SRDW+1}, s{pWS+1}
        s_mov_b32 s{SRDW+2}, {WS_SIZE}
        s_mov_b32 s{SRDW+3}, 0x20000
        s_lshl_b32 s{sMb64}, s{sMb}, 1
        s_add_u32 s{sMb64}, s{sMb64}, s{sHalf}
        s_lshl_b32 s{sFlag}, s{sMb}, 4
        s_add_u32 s{sFlag}, s{sFlag}, s{sS}
        s_lshl_b32 s{sFlag}, s{sFlag}, 2
        s_add_u32 s{sFlag}, s{sFlag}, s{sWave}
        s_lshl_b32 s{sFlag}, s{sFlag}, 3
        s_add_u32 s{sFlag}, s{sFlag}, {WS_FLAG}
        s_mul_i32 s{sC}, s{sHalf}, 3
        s_add_u32 s{sC}, s{sC}, s{sJ}
        s_add_u32 s{sC}, s{sC}, 16
        s_add_u32 s{sA}, s{sS}, 5
        s_and_b32 s{sA}, s{sA}, 15
        s_cmp_lt_u32 s{sA}, 11; s_cselect_b32 s{sC}, s{sC}, 31; s_cselect_b32 s{sThree}, 1, 0
        """) + self.f_params(PB[1], sS) + self.f_params(PB[2], sC) + self.pack_params() + lines(f"""
        v_lshrrev_b32 v{vT}, 5, v0
        v_lshlrev_b32 v{vT}, 4, v{vT}
        v_bfe_u32 v{vT+1}, v0, 4, 1
        v_lshl_add_u32 v{vT}, v{vT+1}, 2, v{vT}
        v_bfe_u32 v{vT+1}, v0, 2, 2
        v_add_u32 v{vT}, v{vT}, v{vT+1}
        v_lshlrev_b32 v{vT}, 7, v{vT}
        v_and_b32 v{vT+2}, 3, v0
        v_lshl_add_u32 v{vT}, v{vT+2}, 3, v{vT}
        v_add_u32 v{vT}, s{sM0}, v{vT}
        v_lshrrev_b32 v{vT+1}, 1, v{vT+1}
        s_and_b32 s{sA+2}, s{sWave}, 2
        v_or_b32 v{vT+1}, s{sA+2}, v{vT+1}
        """)
        for ch in range(4):
            setup.append(f"v_xor_b32 v{PR+20+ch}, {ch}, v{vT+1}")
            setup.append(f"v_lshl_add_u32 v{PR+20+ch}, v{PR+20+ch}, 5, v{vT}")
        setup += [f"v_mul_u32_u24 v{PR+16}, 1280, v{vRow}", f"v_add_u32 v{PR+16}, v{vCol}, v{PR+16}"]
        setup += [f"v_add_u32 v{PR+16+j}, {j*(8*1280-1024)}, v{PR+16}" for j in range(1, 4)]
        setup += lines(f"""
        s_lshl_b32 s{sA}, s2, 1
        s_and_b32 s{sA+1}, s{sWave}, 1
        s_add_u32 s{sA}, s{sA}, s{sA+1}
        s_mul_i32 s{sA+1}, s{sA}, 20
        v_add_u32 v{vT}, s{sA+1}, v0
        v_lshrrev_b32 v{vT+1}, 4, v{vT}
        v_mul_u32_u24 v{vT+1}, {3456-2048}, v{vT+1}
        v_lshl_add_u32 v94, v{vT}, 7, v{vT+1}
        s_mul_i32 s{sA+1}, s{sA}, 14
        v_add_u32 v{vT}, s{sA+1}, v0
        v_mul_u32_u24 v{vT+1}, {(1<<20)//11+1}, v{vT}
        v_lshrrev_b32 v{vT+1}, 20, v{vT+1}
        v_mul_u32_u24 v{vT+1}, 2048, v{vT+1}
        v_lshl_add_u32 v91, v{vT}, 7, v{vT+1}
        s_lshr_b32 s{sDuty}, s2, 3
        s_and_b32 s{sDuty}, s{sDuty}, 3
        """) + self.p2_params()
        if cfg.get("verbose"): print("setup ops", len(setup), "first", n_first)
        order = list(cfg.get("order", ["X0", "X1", "X2", "X3", "X4", "X5", "X6", "X7", "X8", "X9", "B", "B", "B", "B"]))
        def queue_next():
            o = order.pop(0)
            if o[0] == "T":
                r0, n = {"Ta": (0, 8), "Tb": (256, 12), "Tc": (0, 4), "Td": (128, 16)}[o]
                self.emit(f"s_lshl_b32 s{sA+6}, s{sMb}, 1; s_and_b32 s{sA+5}, s{sWave}, 1; s_add_u32 s{sA+6}, s{sA+6}, s{sA+5}; s_mul_i32 s{sA+6}, s{sA+6}, {n}; "
                          f"s_lshl_b32 s{sA+5}, s{sRot}, 6; s_add_u32 s{sA+6}, s{sA+6}, s{sA+5}; s_add_u32 s{sA+6}, s{sA+6}, {r0}; v_add_u32 v90, s{sA+6}, v0; "
                          f"v_subrev_u32 v89, 640, v90; v_min_u32 v90, v89, v90; v_mul_u32_u24 v90, 3840, v90; s_mov_b64 exec, {(1<<n)-1}; "
                          f"buffer_load_dword v90, v90, s[{PB[0]}:{PB[0]+3}], s{PB[0]+5} offen; s_mov_b64 exec, -1", "T")
                if not order: return
                o = order.pop(0)
            if o == "B":
                self.pend += self.dma_items(self.next); self.next += 1
            else:
                i = int(o[1:]); sl = self.alloc(("X", i))
                if i: self.pend.append(("op", f"s_add_u32 m0, s{sM0}, {sl*16384}; s_add_u32 s{sX}, s{sX}, 128; s_cmp_eq_u32 s{sX}, 1280; s_cselect_b32 s{sX}, 0, s{sX}"))
                self.pend += [("ld", f"buffer_load_dwordx4 v{EP+4+j}, s[{SRDX}:{SRDX+3}], s{sX} offen offset:{1024*j} lds", f"X{i}") for j in range(4)]
        XW = cfg["XW"]; spl = cfg.get("spl", 12); done = 0
        for g in range(XW):
            if order[0] == "B": assert done >= n_first
            queue_next()
            for j in range(4):
                self.pop_ld()
                sp_ = cfg.get("spl0", spl) if g < 2 else spl
                if 4 * g + j + 1 == cfg.get("xw1", -1): sp_ = 1000
                for o in setup[done:done + sp_]: self.emit(o)
                done += sp_
        for o in setup[done:]: self.emit(o)
        self.stamp(1, True)
        def stats(i, j):
            for r in range(4 * j, 4 * j + 4):
                x = XB + 16 * i + r
                a(f"v_dot2c_f32_bf16 v{vSum}, s{sOne}, v{x}")
                a(f"v_dot2c_f32_bf16 v{vSq}, v{x}, v{x}")
        for i in range(10):
            vm.wait(a, f"X{i}", 4)
            if i in (0, 2, 4, 6, 8): self.stamp(2 + i // 2, True)
            sl = self.slot[("X", i)]
            for s in range(4):
                x = XB + 4 * (4 * i + s)
                a(f"ds_read_b128 v[{x}:{x+3}], v{XA+4*(sl>>2)+s} offset:{(sl&3)*16384}")
            if order and (order[0] != "B" or self.next < cfg["PB"]): queue_next()
            for j in range(4):
                if self.pend: self.pop_ld()
                if i: stats(i - 1, j)
            a("s_waitcnt lgkmcnt(0)")
            self.xdone.add(("X", i))
        a(f"s_xor_b32 s{sTok+1}, s{sTok+1}, 0x{TOKX:x}\ns_add_u32 s{sTok}, s{sTok}, 1")
        for j in range(4): stats(9, j)
        self.stamp(1)
        a(f"""
        s_mov_b32 s{sA}, 0x3acccccd
        s_nop 1
        v_mov_b32 v{vT}, v{vSum}
        v_mov_b32 v{vR}, v{vSq}
        s_nop 0
        v_permlane32_swap_b32 v{vSum}, v{vT}
        v_permlane32_swap_b32 v{vSq}, v{vR}
        s_nop 0
        v_add_f32 v{vSum}, v{vSum}, v{vT}
        v_add_f32 v{vSq}, v{vSq}, v{vR}
        v_mul_f32 v{vSum}, s{sA}, v{vSum}
        v_mul_f32 v{vSq}, s{sA}, v{vSq}
        v_cvt_pk_bf16_f32 v{vNegM}, 0, -v{vSum}
        v_fma_f32 v{vSq}, -v{vSum}, v{vSum}, v{vSq}
        """)
        NC = cfg["nc"]
        def first_frags():
            self.stamp(8, True)
            vm.wait(a, "B1" if cfg["bar2"] else "B0", 4)
            a("s_barrier")
            self.stamp(7, True)
            for G in range(2):
                for r in self.tr_reads(G): a(r)
        for st_ in range(NC):
            d0, c0 = self.center_ops(st_)
            if st_ == NC - 1:
                while order or self.pend:
                    if not self.pend: queue_next()
                    self.pop_ld()
                for op in d0: a(op)
                first_frags()
                for op in c0: a(op)
            else:
                if order and not self.pend: queue_next()
                for j, op in enumerate(d0 + c0):
                    a(op)
                    if j % 12 == 0 and self.pend: self.pop_ld()
        self.stamp(2)
        extra = Uniq()
        extra[130] = lines(f"""
            v_max_f32 v{vSq}, 0, v{vSq}
            v_cvt_pk_bf16_f32 v{vR}, 0, v{vSq}
            v_add_f32 v{vR}, 0x3727c5ac, v{vR}
            v_cvt_pk_bf16_f32 v{vR}, 0, v{vR}
            v_sqrt_f32 v{vR}, v{vR}; s_nop 0
            v_cvt_pk_bf16_f32 v{vD2}, 0, v{vR}
            v_rcp_f32 v{vR}, v{vD2}
            v_mul_f32 v{vD2}, v{vD2}, v{vD2}
            v_mul_f32 v{vC1}, 0x{NLOG2E:x}, v{vR}
            """)
        def pack_issue():
            sl = self.alloc("P")
            self.pend += [("op", f"s_add_u32 m0, s{sM0}, {sl*16384}")]
            self.pend += [("ld", f"buffer_load_dwordx4 v{PR+16+j}, s[{PK}:{PK+3}], s{PK+4} offen offset:{1024*j} lds", "PK") for j in range(4)]
        pk0 = cfg["pk0"]; pk1 = cfg["pk1"]
        extra[pk0] = pack_issue
        extra[pk0 + 1] = [lambda ch=ch: a(f"v_add_u32 v{PR+20+ch}, {self.slot['P']*16384}, v{PR+20+ch}") for ch in range(4)]
        rdl = [lambda: vm.wait(a, "PK", 4)]
        for ch in range(4):
            rdl.append(f"ds_read_b64_tr_b16 v[{PR+4*ch}:{PR+4*ch+1}], v{PR+20+ch}")
            rdl.append(f"ds_read_b64_tr_b16 v[{PR+4*ch+2}:{PR+4*ch+3}], v{PR+20+ch} offset:1024")
        extra[pk1] = rdl
        stl = []
        for ch in range(4):
            stl.append(lambda ch=ch: (self.xdone.add("P"), vm.issue(a, f"buffer_store_dwordx4 v[{PR+4*ch}:{PR+4*ch+3}], v{vL16}, s[{SRDW}:{SRDW+3}], s{PK+5+ch} offen sc1", "I")))
        extra[pk1 + 24] = [lambda: [f() for f in stl]] if cfg['stb'] > 1 else stl
        def touch(which, duty=None):
            def f():
                r, n, off = ((94, 20, 0), (91, 14, 2048))[which]
                ins = f"buffer_load_dword v{r}, v{r}, s[{PB[1]}:{PB[1]+3}], 0 offen offset:{off}"
                if duty is None:
                    a(f"s_mov_b64 exec, {(1 << n) - 1}"); vm.issue(a, ins, "T"); a("s_mov_b64 exec, -1")
                else:
                    L = a.newlabel("du")
                    a(f"s_cmp_lg_u32 s{sDuty}, {duty}\ns_cbranch_scc1 {L}\ns_mov_b64 exec, {(1 << n) - 1}\n{ins}\ns_mov_b64 exec, -1\n{L}:")
            return f
        for which, key in ((0, "tch"), (1, "tch2")):
            g_ = cfg[key]
            if isinstance(g_, list):
                for d_, gg in enumerate(g_): extra[gg] = touch(which, d_)
            elif 0 <= g_ < 160: extra[g_] = touch(which)
        if cfg["pub1"] < 160: extra[cfg["pub1"]] = lambda: (self.publish(1, ["I"]), self.retouch("P"))
        self.body(0, None, 3, center=True, extra=extra, before=[(pk0 + 1, pk1), (pk1, pk1 + 16), (pk1 + 24, cfg["pub1"])])
        self.stamp(3)
        self.vPub = 86
        extra = Uniq()
        if cfg["tch2"] >= 160: extra[cfg["tch2"] - 160] = touch(1)
        if cfg["pub1"] >= 160: extra[cfg["pub1"] - 160] = lambda: self.publish(1, ["I"])
        extra[cfg["pub2"]] = lambda: (self.publish(2, ["E0"]), self.retouch("Q", PB[0] + 7))
        GR = 88
        def epoch():
            L = a.newlabel("ep")
            a(f"""
            s_or_b32 s{sA+8}, s2, s{sWave}
            s_cbranch_scc1 {L}
            v_mov_b32 v{GR}, s{sTok}
            s_mov_b32 s{sA+8}, {WS_EPOCH}
            s_mov_b64 exec, 1
            buffer_store_dword v{GR}, off, s[{SRDW}:{SRDW+3}], s{sA+8}
            s_mov_b64 exec, -1
            {L}:
            """)
        gc = cfg["gck"]
        assert gc % 16 == 6 and (not cfg["bar2"] or (gc // 16) % 2 == 1)
        gb = gc + 2
        extra[gb + 1] = epoch
        for j in range(4):
            extra[gc - 42 + 4 * j] = lambda j=j: self.flag_load(GR + 2 * j, sFlG, f"G{j}", 1, 512 * j)
            extra[gc - 9 + [0, 2, 4, 8][j]] = lambda j=j: self.flag_check(GR + 2 * j, sFlG, f"G{j}", 1, off=512 * j)
        after = lambda g0: (lambda gap: gap >= g0)
        vq = [(after(gb), f) for k in range(4) for f in self.b_loads(k)]
        rest1 = self.body(1, self.epi_q(ACC[0], PB[0] + 7), 3, wrange=(4, cfg["w1"]), extra=extra, vq=vq, vq1=cfg["b1vq"])
        while self.pend: self.pop_ld()
        self.stamp(4)
        vm_split = list(vm.q)
        a(f"s_cmp_eq_u32 s{sThree}, 0")
        a(f"s_cbranch_scc1 {label}_two")
        self.vPub = 62
        pre = []
        def P(fn): pre.append(fn); return fn
        extra = Uniq()
        vq = [(after(0), P(f)) for _, f in rest1]
        st = {"q": False}
        q_l0 = lambda: self.flag_load(XB, sFl0, "Q0", 2)
        q_l1 = lambda: self.flag_load(XB + 2, sFl1, "Q1", 2)
        q_c0 = lambda: self.flag_check(XB, sFl0, "Q0", 2)
        def q_c1():
            self.flag_check(XB + 2, sFl1, "Q1", 2); st["q"] = True
        qc = cfg["qck"]
        extra[qc - 33] = q_l0; extra[qc - 29] = q_l1; extra[qc - 1] = q_c0; extra[qc + 3] = q_c1
        attl = []
        lastkv = [-100]
        def att_ok(gap, j):
            if not st["q"] or gap - lastkv[0] < cfg["kvgap"]: return False
            attl or attl.extend(self.att_loads(False))
            if j < 10:
                if self.next < 30 or self.pend: return False
                if "K" not in self.slot:
                    if not (self.free(7) and self.free(8)): return False
                    self.alloc("K", 7); self.alloc("V", 8)
            lastkv[0] = gap
            return True
        bq = []
        for k in range(4, 8):
            bq += [(after(4 * (5 * (k - 4) + 10)), f) for f in self.b_loads(k)]
        for _, f in bq[:10]: P(f)
        P(q_l0); P(q_l1)
        for _, f in bq[10:]: P(f)
        P(q_c0); P(q_c1)
        pre.append("att")
        for j in list(range(10, 15)) + list(range(10)): vq.append((lambda gap, j=j: att_ok(gap, j), lambda j=j: attl[j]()))
        vq += bq
        wq = []
        for s in range(7):
            ok = lambda gap, s=s: self.next >= 30 and not self.pend and (self.owner[s] == ("WO", s) or self.free(s))
            wq += [(ok, f) for f in self.wo_loads(s)]
        vq += wq
        extra[cfg["pub3"]] = lambda: (self.publish(3, ["E1"]), self.retouch("F", PB[1] + 7))
        rest = self.body(2, self.epi_f(ACC[1], PB[1] + 7), 3, wrange=(4, cfg["w2"]), extra=extra, vq=vq, vq1=cfg["vq1"], vq2=cfg["vq2"])
        self.stamp(5)
        wfs = [f for _, f in wq]
        late = [f for c_, f in rest if f not in wfs] + [P(f) for k in (11, 12) for f in self.b_loads(k)]
        late += [f for c_, f in rest if f in wfs and c_(160)]
        ntail = cfg["ntail"]
        assert 15 - vm.q.count("KV") <= ntail and "K" in self.slot
        post = late[ntail:]; late = late[:ntail]
        wrest = [f for c_, f in rest if f in wfs and f not in late]
        post = [f for f in post if f not in wfs]
        pre[:] = [f for f in pre if f not in post]
        for f in wfs:
            if f not in wrest: P(f)
        def tail(ops, inter, tag):
            inter = list(inter); n = len(ops); k = len(inter); j = 0
            for i, op in enumerate(ops):
                self.emit(op, tag)
                while j < k and j < (i + 1) * k // n:
                    inter[j](); j += 1
        a("s_nop 5")
        if cfg.get("f3tail"): late.insert(cfg["f3tail"], P(lambda: self.flag_load(vFl, sFl0, "F3", 3)))
        tail(self.epi_f_tail(ACC[0], PB[2] + 7), late, "E2")
        if cfg.get("verbose"): print("tail loads", len(late), "after join: B loads", len(post), "wo loads", len(wrest))
        self.lastbar = 100
        self.alloc("O", 9)
        a.label(f"{label}_join")
        self.stamp(6)
        self.vPub = 20
        if not cfg.get("f3tail"): self.flag_load(vFl, sFl0, "F3", 3)
        a(f"s_lshr_b32 s{sA}, s{sM0}, 2\nv_add_u32 v{vA[0]}, s{sA}, v{vL16}")
        for i in range(1, 4): a(f"v_add_u32 v{vA[i]}, 1024, v{vA[i-1]}\nv_and_b32 v{vA[i]}, 4095, v{vA[i]}")
        a("s_barrier")
        def xaddr(j, d, t1, t2):
            return [f"v_add_u32 v{t1}, {64*j}, v0", f"v_mul_u32_u24 v{t2}, {(1<<16)//10+1}, v{t1}", f"v_lshrrev_b32 v{t2}, 16, v{t2}",
                    f"v_mul_u32_u24 v{t2}, {1280-160}, v{t2}", f"v_lshl_add_u32 v{t2}, v{t1}, 4, v{t2}", f"v_add_u32 v{d}, s{sXo}, v{t2}"]
        def xl(j):
            for o in xaddr(j, 114, 114, 115): a(o)
            a(f"s_mul_i32 s{sA+2}, s{sWave}, 2560\ns_add_u32 m0, s{sA+2}, {102400 + 1024*j}")
            a("s_mov_b32 exec_hi, 0" if j == 2 else "s_nop 0")
            vm.issue(a, f"global_load_lds_dwordx4 v114, s[4:5]", "XO")
            if j == 2: a("s_mov_b32 exec_hi, -1")
        post = post + (self.b_loads(10) if 'B10' not in cfg['forder'] else [])
        free_ = [lambda j=j: xl(j) for j in range(3)] + post + wrest
        n1 = cfg["natt1"]; n2 = cfg["natt2"]
        al = free_[n1:]
        aa = [f for k in range(7) for f in self.a_loads(k)]
        n0 = cfg.get("natt0", n1)
        inter = free_[:n0] + [lambda: self.flag_check(vFl, sFl0, "F3", 3)]
        mix = list(aa[:n2])
        for j_, f_ in enumerate(free_[n0:n1]): mix.insert((j_ + 1) * (n2 + n1 - n0) // (n1 - n0) - 1, f_)
        inter += mix
        inter.insert(min(len(inter), cfg["pub4"]), lambda: self.publish(4, ["E2"]))
        ost = self.attention(inter)
        self.stamp(8)
        XR = 4; vX = 14; vW = 25; vRd = 28; vXo = [1, 2, 29]
        KF = cfg["kf"]
        wl = [f for f in al if f not in post]
        Q_ = [(0, f) for f in ost + aa[n2:] + [f for f in al if f in post]]
        grp = lambda e, fs: [(e, f) for f in fs]
        A_ = lambda k: grp(max(k - 6, KF if k >= 8 else 0), self.a_loads(k))
        B_ = lambda k: grp(0, self.b_loads(k))
        for it in cfg["forder"]:
            Q_ += A_(int(it[1:])) if it[0] == "A" else B_(int(it[1:])) if it[0] == "B" else grp(0, wl) if it == "W" else grp(5, ["x0", "x1", "x2"])
        OA = 176
        def wo_reads(T):
            b = WR[T % 6]
            return [f"ds_read_b128 v[{b+4*u}:{b+4*u+3}], v{vL16 if T < 12 else 15} offset:{(T % 12)*5120 + u*1024}" for u in range(5)]
        def o_load(T):
            def f():
                if T % 4 == 0: a(f"s_add_u32 s{sGb}, s{sOld}, {T*1024}")
                vm.issue(a, f"buffer_load_dwordx4 a[{OA+4*T}:{OA+4*T+3}], v{vL16}, s[{SRDW}:{SRDW+3}], s{sGb} offen offset:{1024*(T&3)} sc1", f"PO{T//2}")
            return f
        KB = cfg["kbar"]; KO = cfg["ko"]; ns = cfg["nside"]; NOF = cfg["no_f"]; KX = cfg["kx"]
        R = 32; FO = 236; SQ = [92, 4, 8, 16, 20]; XU = 216
        WR = [116, 136, 156, 176, 196, 96]
        lq = LQ()
        def mf(k, i, u):
            t_ = (i * 5 + u) * 4
            d = f"a[{t_}:{t_+3}]" if i else f"v[{FO+t_}:{FO+t_+3}]"
            a(f"v_mfma_f32_16x16x32_bf16 {d}, {self.rr(self.BSLOT[k], 4*u)}, {self.rr(self.ASLOT[k], 4*i)}, {'0' if k == 0 else d}")
        def wait_ab(k):
            assert vm.q.count(f"PB{k}") == 5 and vm.q.count(f"PA{k}") == 4
            vm.wait(a, f"PA{k}" if vm.last(f"PA{k}") > vm.last(f"PB{k}") else f"PB{k}")
        olist = [o_load(T) for T in range(20)]
        for k in range(KX):
            if k % 2 == 0: self.mark(10 + k // 2)
            wait_ab(k)
            side = []
            if k == KF - 2: side += [lambda: self.flag_load(vFl, sFl0, "F4", 4)]
            if k == cfg.get("kp5", 3) and not cfg["nokb"]: side += [lambda: self.publish(5, ["O"])]
            if cfg["nokb"] and k == 2:
                side += [lambda o=o: a(o) for o in (f"v_and_b32 v1, 15, v0", f"v_mul_u32_u24 v2, 160, v1", f"v_lshrrev_b32 v1, 4, v0", f"v_lshl_add_u32 v2, v1, 3, v2",
                                                     f"s_add_u32 s{sA+2}, s{sA+2}, 102400", f"v_add_u32 v1, s{sA+2}, v2")]
            late_side = []
            if cfg["nokb"] and k == 3:
                side += [lambda: (vm.wait(a, "O"), [lq.issue(a, f"ds_read_b64 v[{XR+2*u}:{XR+2*u+1}], v1 offset:{32*u}", "XL") for u in range(5)])]
                late_side = [lambda: (lq.wait(a, "XL"), self.publish(5, []))]
            if k == KF: self.flag_check(vFl, sFl0, "F4", 4)
            if k == KO - 2: side += [lambda: self.flag_load(vFl, sFl0, "F5", 5)]
            if k == KO: self.flag_check(vFl, sFl0, "F5", 5, half=True)
            room = ns[k] - (1 if side else 0)
            for it in list(Q_):
                if room > 0 and it[0] <= k:
                    Q_.remove(it); room -= 1
                    side.append((lambda j=int(it[1][1]): xl(j)) if isinstance(it[1], str) else it[1])
            if k >= KO and not Q_ and room > 0: side += olist[:room]; olist = olist[room:]
            if k == 4:
                for j in range(3): side += [lambda o=o: a(o) for o in xaddr(j, vXo[j], 3, 14)]
            if k == 5:
                side += [lambda o=o: a(o) for o in lines(f"""
                    v_and_b32 v3, 15, v0
                    v_mul_u32_u24 v{vX}, 160, v3
                    v_lshrrev_b32 v3, 4, v0
                    v_lshl_add_u32 v{vX}, v3, 3, v{vX}
                    v_add_u32 v15, {12*5120}, v{vL16}
                    s_mov_b32 s{sA}, 0x{NLOG2E:x}
                    s_mov_b32 s{sA+1}, 0xffff0000
                    """)]
            if k == 6:
                for i in range(4):
                    d = vRd if i == 0 else vW + i - 1
                    side += [lambda o=o: a(o) for o in (f"v_lshrrev_b32 v3, 10, v{vA[i]}", f"v_mul_u32_u24 v3, 15360, v3",
                                                         f"v_add_u32 v3, {102400 + max(i-1, 0)*5120}, v3", f"v_add_u32 v{d}, v3, v{vL16}")]
            side += late_side
            if k == KB - 1 and not cfg['nokb']:
                side += [lambda: (vm.wait(a, "XO", 3), a(f"s_add_u32 s{sA+2}, s{sA+2}, 102400\nv_add_u32 v3, s{sA+2}, v{vX}"))]
                side += [lambda u=u: lq.issue(a, f"ds_read_b64 v[{XR+2*u}:{XR+2*u+1}], v3 offset:{32*u}", "XL") for u in range(5)]
            if k == KB and not cfg['nokb']:
                lq.wait(a, "XL"); vm.wait(a, "WO", 25); a("s_barrier")
            nsd = len(side); j = 0
            for i in range(4):
                for u in range(5):
                    mf(k, i, u)
                    while j < nsd and j < (i * 5 + u + 1) * nsd // 20:
                        side[j](); j += 1
        assert not Q_, len(Q_)
        assert KB < KX and KO < KX and KX >= 10
        self.mark(16)
        nk = 14 - KX
        base_side = olist[:max(NOF - (20 - len(olist)), 0)]; olist = olist[len(base_side):]
        ol_ = base_side
        base_side = [lambda r=r, T=T: lq.issue(a, r, f"W{T}") for T in range(5) for r in wo_reads(T)]
        base_side += [lambda j=j: a(f"v_and_b32 v{XU+j}, s{sA+1}, v{XR+(j>>1)}" if j & 1 else f"v_lshlrev_b32 v{XU+j}, 16, v{XR+(j>>1)}") for j in range(20)]
        for j_, f_ in enumerate(ol_): base_side.insert(j_ * (45 + len(ol_)) // len(ol_), f_)
        nb_ = len(base_side); jb = 0; m = 0
        for ri, i in enumerate((1, 2, 3, 0)):
            pw = []
            if ri:
                ip = (1, 2, 3)[ri - 1]
                pw = [f"ds_write_b128 v{vW+ip-1}, a[{(ip*5+u)*4}:{(ip*5+u)*4+3}] offset:{u*1024}" for u in range(5)]
            mm = 0
            for k in range(KX, 14):
                if ri == 0: wait_ab(k)
                for u in range(5):
                    mf(k, i, u); m += 1; mm += 1
                    if pw and mm >= 4 and (mm - 4) * 5 >= (5 - len(pw)) * (5 * nk - 4): lq.issue(a, pw.pop(0), "PW")
                    else:
                        while jb < nb_ and jb < m * nb_ // (20 * nk):
                            base_side[jb](); jb += 1
            for w_ in pw: lq.issue(a, w_, "PW")
        while jb < nb_:
            base_side[jb](); jb += 1
        self.stamp(7)
        work = [("f", f) for f in olist[:2]] + [("bar",)]
        for j in range(15): work.append(("l", f"ds_read_b128 v[{R+4*j}:{R+4*j+3}], v{vRd} offset:{j*1024}", "PR"))
        work += [("f", f) for f in olist[2:]]
        pk2 = lambda op, d, x, y: "\n".join(f"{op} v[{d+2*j}:{d+2*j+1}], v[{x+2*j}:{x+2*j+1}], {y(j)}" for j in range(10))
        work.append(("v", f"v_sub_u32 v3, v{vRd}, v{vL16}")); work.append(("v", f"v_add_u32 v3, v3, v{vX}"))
        work.append(("lw", "PR"))
        work.append(("v", "\n".join([pk2("v_pk_add_f32", FO, FO, lambda j: f"v[{R+2*j}:{R+2*j+1}]"),
                                     pk2("v_pk_add_f32", R+20, R+20, lambda j: f"v[{R+40+2*j}:{R+40+2*j+1}]"),
                                     pk2("v_pk_add_f32", FO, FO, lambda j: f"v[{R+20+2*j}:{R+20+2*j+1}]"),
                                     pk2("v_pk_mul_f32", R, FO, lambda j: f"s[{sA}:{sA+1}] op_sel_hi:[1,0]")])))
        for j in range(20): work.append(("v", f"v_exp_f32 v{R+j}, v{R+j}"))
        for j in range(20): work.append(("v", f"v_add_f32 v{R+j}, 1.0, v{R+j}"))
        for j in range(20): work.append(("v", f"v_rcp_f32 v{R+j}, v{R+j}"))
        def do(wk):
            if wk[0] == "v": a(wk[1])
            elif wk[0] == "f": wk[1]()
            elif wk[0] == "l": lq.issue(a, wk[1], wk[2])
            elif wk[0] == "lw": lq.wait(a, wk[1])
            elif wk[0] == "bar":
                lq.wait(a, "PW"); self.mark(20); a("s_barrier"); self.mark(21)
        nw = len(work); done = 0; m = 0
        for T in range(20):
            if T % 2 == 0: vm.wait(a, f"PO{T//2}", 2)
            if T in (0, 10, 16): self.mark({0: 17, 10: 18, 16: 19}[T])
            if T % 2 == 0: lq.wait(a, f"W{T+1}")
            rd = wo_reads(T + 5) if T + 5 < 20 else []
            b = WR[T % 6]
            for u in range(5):
                d = f"v[{SQ[u]}:{SQ[u]+3}]"
                a(f"v_mfma_f32_16x16x32_bf16 {d}, v[{b+4*u}:{b+4*u+3}], a[{OA+4*T}:{OA+4*T+3}], {'0' if T == 0 else d}")
                m += 1
                if rd: lq.issue(a, rd.pop(0), f"W{T+5}")
                tgt = m * nw * cfg.get("sw", 80) // (75 * 100) if m <= 75 else nw * cfg.get("sw", 80) // 100 + (m - 75) * (nw - nw * cfg.get("sw", 80) // 100) // 25
                while done < nw and done < tgt:
                    do(work[done]); done += 1
        assert done == nw
        a("s_nop 0")
        a(pk2("v_pk_mul_f32", FO, FO, lambda j: f"v[{R+2*j}:{R+2*j+1}]"))
        for u in range(5):
            for h in range(2):
                f0 = FO + 4 * u + 2 * h; s_ = SQ[u] + 2 * h; x_ = XU + 4 * u + 2 * h
                a(f"v_pk_fma_f32 v[{f0}:{f0+1}], v[{f0}:{f0+1}], v[{s_}:{s_+1}], v[{x_}:{x_+1}]")
            f0 = FO + 4 * u; o = 64 + 2 * u
            a(f"v_cvt_pk_bf16_f32 v{o}, v{f0}, v{f0+1}")
            a(f"v_cvt_pk_bf16_f32 v{o+1}, v{f0+2}, v{f0+3}")
            a(f"ds_write_b64 v3, v[{o}:{o+1}] offset:{32*u}")
        a("s_waitcnt lgkmcnt(0)")
        for j in range(3): a(f"ds_read_b128 v[{76+4*j}:{79+4*j}], v{vRd} offset:{1024*j}")
        for j in range(3):
            a(f"s_waitcnt lgkmcnt({2-j})")
            if j == 2: a("s_mov_b32 exec_hi, 0")
            a(f"global_store_dwordx4 v{vXo[j]}, v[{76+4*j}:{79+4*j}], s[6:7] {cfg.get('scO', '')}")
        a("s_mov_b32 exec_hi, -1")
        self.mark(22)
        if self.stamps:
            a("s_waitcnt vmcnt(0)")
            a(f"s_memtime s[{sA}:{sA+1}]")
            a(f"s_memrealtime s[{sA+2}:{sA+3}]")
            a("s_waitcnt lgkmcnt(0)")
            for i in range(1, 8):
                a(f"s_sub_u32 s{sA+4}, s{ST0+2*(i-1)}, s0\nv_mov_b32 v{32+i}, s{sA+4}")
            a(f"s_sub_u32 s{sA+4}, s{sA}, s0\nv_mov_b32 v40, s{sA+4}\nv_mov_b32 v41, s{sA+2}")
            a(f"s_sub_u32 s{sA+4}, s{ST0+14}, s0\nv_mov_b32 v42, s{sA+4}")
            a(f"""
            v_mov_b32 v32, s1
            s_lshl_b32 s{sA}, s2, 2
            s_add_u32 s{sA}, s{sA}, s{sWave}
            s_lshl_b32 s{sA}, s{sA}, 6
            s_add_u32 s{sA}, s{sA}, {WS_STAMP}
            s_mov_b64 exec, 1
            buffer_store_dwordx4 v[32:35], off, s[{SRDW}:{SRDW+3}], s{sA}
            buffer_store_dwordx4 v[36:39], off, s[{SRDW}:{SRDW+3}], s{sA} offset:16
            buffer_store_dwordx4 v[40:43], off, s[{SRDW}:{SRDW+3}], s{sA} offset:32
            """)
        a("s_endpgm")
        a.label(f"{label}_two")
        self.stamp(5)
        self.vm = vm = VM()
        self.vPub = 62
        self.vm.q = list(vm_split)
        self.vm.wait(a, [t_ for t_ in self.vm.q if t_[0] == "B" and t_[1:].isdigit()][-1])
        a("s_waitcnt lgkmcnt(0)\ns_barrier\ns_nop 4")
        flat = []
        for f in pre: flat += self.att_loads() if f == "att" else [f]
        nb_ = cfg["nbtail"]
        tail(self.epi_f_tail(ACC[1], PB[1] + 7), flat[:nb_], "E1")
        for i, f in enumerate(flat[nb_:]):
            if i == cfg["nbpub"]:
                self.publish(3, ["E1"]); a("s_nop 1"); self.publish(4, []); self.retouch("F", PB[1] + 7)
            if i % 8 == 3 and cfg.get("markT", 2) == 2: self.mark(i // 8)
            f()
        a("s_waitcnt vmcnt(0)")
        a(f"s_branch {label}_join")
        for s in self.slow: a(s)
        a.label(f"{label}_end")
        a("s_endpgm")
        a.end_kernel(label, 512, 102, 256, 256, 256, 163840)
        return a.text("""Generated by dev/fused2.py (own generator). One persistent kernel, 256 workgroups of 4 waves, one per CU.
kernarg: 0 A_x, 8 A_wqkv, 16 A_wo, 24 B_x (unused by the reference), 32 w_gate, 40 w_up, 48 w_down, 56 out, 64 debug, 72 ws
Phase 1: 128 rows of x per workgroup stay in registers (LayerNorm: centred in place, 1/std applied in the epilogues);
  up to three 128-column tasks of x@[wqkv | w_gate,w_up] with the weights streamed through an LDS ring (LDS-DMA + transposing reads);
  q,k,v and h = silu(g)*u go to ws; w_down / wo are repacked into MFMA fragment order in ws.
Attention: 64 rows x 4 heads per workgroup (true row max softmax), result to ws.
Phase 2: 64x80 output tile per workgroup: h@w_down (K split over the waves), o@wo, out = x + s*silu(f).
Hand-offs between workgroups: write-through stores, then a per-wave flag holding a token that is new in every launch
  (derived from a word in ws that workgroup 0 advances), consumers look at the flags before they load.""")

if __name__ == "__main__":
    stamps = "--stamps" in sys.argv
    pos = [x for x in sys.argv[1:] if not x.startswith("--")]
    cfg = json.loads(pos[1]) if len(pos) > 1 else {}
    open(pos[0], "w").write(Gen(cfg, stamps).build())
```

```python
import sys, json, struct; sys.path.insert(0, "dev")
from asmlib import *

WS_H = 0
WS_O = 0x780000
WS_WD = 0xA00000
WS_WO = 0xD00000
WS_QKV = 0x1000000
WS_FLAG = 0x1800000
WS_EPOCH = WS_FLAG - 256
WS_STAMP = 0x1900000
WS_SIZE = 0x2000000
OOB = 0x4000000
TOKX = 0x5bd1e995
NLOG2E = 0xbfb8aa3b
def f2u(x): return struct.unpack("<I", struct.pack("<f", x))[0]
C_SM = f2u(20 ** -0.5 * 1.4426950408889634)

XB = 96; EP = 32; ACC = [0, 64]; WF = 128; NWB = 3
vLd = 1; vTr = 5
vSF = 17; vL8 = 18; vC1 = 19; vD2 = 20; vR = 21; vNegM = 22; vSum = 23; vSq = 24
vRow = 25; vCol = 26; vT = 27
vDbg = 30; vL16 = 31
vFl = 22
vQa = 28; vKa = 29
vA = [16, 17, 19, 24]
PR = 64
sOOB = 3
pQKV = 76; pWS = 78; pWO = 80; pDN = 82; pG = 84; pU = 86
sWave = 8; sMb64 = 9; sHalf = 10; sM0 = 11; sSoff = 12; sStep = 13; sWrap = 14; sThree = 15
SRDW = 16
SRDX = 20
sGa = 20; sGb = 21; sDuty = 96
PB = [24, 32, 40]
PK = 48
sOne = 57; sLo = 58; sHi = 59
sTok = 60
sFlag = 62; sFl0 = 63; sFl1 = 64; sFlG = 65
sAb = 66; sAb2 = 67; sBb = 68; sBb2 = 69; sOld = 70; sWOb = 71; sOst = 72; sOst2 = 73; sKV = 74; sXo = 75
ST0 = 76
sMb = 88; sJ = 89; sRot = 90; sNb = 91
sA = 92

class VM:
    def __init__(self): self.q = []
    def issue(self, a, ins, tag):
        a(ins); self.q.append(tag)
    def last(self, tag): return max(i for i, t in enumerate(self.q) if t == tag)
    def wait(self, a, tag, cnt=None):
        if cnt is not None: assert self.q.count(tag) == cnt, (tag, self.q.count(tag))
        a(f"s_waitcnt vmcnt({min(len(self.q) - 1 - self.last(tag), 63)})")
class LQ:
    def __init__(self): self.q = []
    def issue(self, a, ins, tag):
        a(ins); self.q.append(tag)
    def wait(self, a, tag):
        idx = max(i for i, t in enumerate(self.q) if t == tag)
        a(f"s_waitcnt lgkmcnt({min(len(self.q) - 1 - idx, 15)})")
class Uniq(dict):
    def __setitem__(self, k, v):
        assert k not in self, ("duplicate gap", k)
        dict.__setitem__(self, k, v)
def lines(s): return [l.split(";;")[0].strip() for l in s.split("\n") if l.split(";;")[0].strip()]
DIV5 = (1 << 16) // 5 + 1
DIV3 = (1 << 16) // 3 + 1

class Gen:
    def __init__(self, cfg, stamps):
        self.cfg = dict(dict(LA=6, XW=4, spl=20, PB=2, bar2=True, rpat=[2, 2, 2, 2], dmagap=2, spin=3000, cap=5.0,
                             rotm=0x7520, rotx=0x1210, tch=-1, tch2=110, pk0=18, pk1=70, pub1=124, pub2=124, gck=118, qck=70, pub3=126, qsh=15,
                             w1=100, w2=96, b1vq=1, vq1=1, vq2=1, ntail=20, natt1=30, natt2=16, pub4=12,
                             nside=[5] * 14, kvgap=6, tu=16, nokb=1, nc=3, p2x=2, nbtail=14, nbpub=12, stb=1, stq=False, kf=4, b2order=[4, 8, 5, 9, 6, 10, 7], forder=['A4', 'A5', 'A6', 'A7', 'W', 'A8', 'A9', 'A10', 'A11', 'A12', 'A13', 'B13'], kbar=10, ko=10, no_f=16, kx=11), **cfg)
        self.stamps = stamps
        self.a = Asm(); self.vm = VM()
        self.label = NAME + "_kernel"
        self.slot = {}; self.owner = [None] * 10
        self.xdone = set(); self.lastbar = -10
        self.next = 0; self.pend = []; self.slow = []
        self.vPub = 92
    def stamp(self, i, pro=False):
        if self.cfg.get("pst") and i and not pro: return
        if pro and not self.cfg.get("pst"): return
        if self.stamps: self.a(f"s_memtime s[{ST0+2*(i-1)}:{ST0+2*(i-1)+1}]" if i else "s_memtime s[0:1]")
    def mark(self, i):
        if self.cfg.get("marks"):
            r = 22
            self.a(f"""
            s_memtime s[{r}:{r+1}]
            s_waitcnt lgkmcnt(0)
            s_sub_u32 s{r}, s{r}, s0
            v_mov_b32 v{vDbg}, s{r}
            s_lshl_b32 s{r}, s2, 2
            s_add_u32 s{r}, s{r}, s{sWave}
            s_lshl_b32 s{r}, s{r}, 7
            s_add_u32 s{r}, s{r}, {WS_STAMP + 0x40000 + 4*i}
            s_mov_b64 exec, 1
            """)
            self.vm.issue(self.a, f"buffer_store_dword v{vDbg}, off, s[{SRDW}:{SRDW+3}], s{r}", "mk")
            self.a("s_mov_b64 exec, -1\ns_nop 1")
    def emit(self, op, tag="st"):
        for o in op.split(";"):
            o = o.strip()
            if o.startswith(("global_", "buffer_")): self.vm.issue(self.a, o, tag)
            else: self.a(o)
    def free(self, s):
        o = self.owner[s]
        if o is None: return True
        if o[0] == "B": return o[1] <= self.lastbar - 1
        return o in self.xdone
    def cands(self, name):
        c = [s for s in range(10) if self.free(s)]
        if name[0] == "B" and name[1] >= self.cfg.get("avoid_from", 23): c = [s for s in reversed(c) if s not in (7, 8)]
        return c
    def alloc(self, name, want=None):
        c = self.cands(name) if want is None else [s for s in range(10) if self.free(s) and s == want]
        assert c, ("no free slot", name, self.owner, self.lastbar)
        s = c[0]; self.owner[s] = name; self.slot[name] = s
        return s

    def pos_ops(self, f, d):
        t = sA + 4
        return [f"s_lshr_b32 s{t}, s{f}, 2", f"s_mul_i32 s{t}, s{t}, 6", f"s_lshl_b32 s{d}, s{f}, 1", f"s_add_u32 s{t}, s{t}, s{d}",
                f"s_sub_u32 s{t+1}, s{f}, 16", f"s_mul_i32 s{t+1}, s{t+1}, {DIV3}", f"s_lshr_b32 s{t+1}, s{t+1}, 16", f"s_lshl_b32 s{t+1}, s{t+1}, 3",
                f"s_add_u32 s{t+1}, s{t+1}, s{d}", f"s_sub_u32 s{t+1}, s{t+1}, 24",
                f"s_cmp_lt_u32 s{f}, 16; s_cselect_b32 s{d}, s{t}, s{t+1}"]
    def f_params(self, P, code):
        t = sA
        return lines(f"""
        s_mov_b32 s{P+3}, 0x20000
        s_cmp_lt_u32 s{sWave}, 2; s_cselect_b32 s{P}, s{pG}, s{pU}; s_cselect_b32 s{P+1}, s{pG+1}, s{pU+1}
        s_cmp_lt_u32 s{code}, 27; s_cselect_b32 s{P+2}, {640*3456}, 0
        s_movk_i32 s{P+4}, 3456
        s_lshl_b32 s{P+5}, s{code}, 7
        s_mul_i32 s{P+6}, s{sRot}, {64*3456}
        """) + self.pos_ops(code, P + 7) + lines(f"""
        s_lshl_b32 s{t}, s{sMb}, 1
        s_lshr_b32 s{t+1}, s{sWave}, 1
        s_add_u32 s{t}, s{t}, s{t+1}
        s_mul_i32 s{t}, s{t}, 56
        s_add_u32 s{P+7}, s{P+7}, s{t}
        s_lshl_b32 s{P+7}, s{P+7}, 12
        s_and_b32 s{t+1}, s{sWave}, 1
        s_lshl_b32 s{t+1}, s{t+1}, 11
        s_add_u32 s{P+7}, s{P+7}, s{t+1}
        """)
    def q_params(self, P, q):
        t = sA
        return lines(f"""
        s_mov_b32 s{P+3}, 0x20000
        s_mov_b32 s{P}, s{pQKV}
        s_mov_b32 s{P+1}, s{pQKV+1}
        s_movk_i32 s{P+4}, 3840
        s_lshr_b32 s{t}, s{sWave}, 1
        s_lshl_b32 s{P+5}, s{q}, 1
        s_add_u32 s{P+5}, s{P+5}, s{t}
        s_lshl_b32 s{P+5}, s{P+5}, 7
        s_mul_i32 s{P+6}, s{sRot}, {64*3840}
        s_lshl_b32 s{t}, s{sMb}, 2
        s_add_u32 s{t}, s{t}, s{sWave}
        s_mul_i32 s{t}, s{t}, 122880
        s_lshl_b32 s{t+1}, s{q}, 13
        s_add_u32 s{t}, s{t}, s{t+1}
        s_add_u32 s{t}, s{t}, {WS_QKV}
        s_cmp_lt_u32 s{q}, 15; s_cselect_b32 s{P+2}, {640*3840}, 0; s_cselect_b32 s{P+7}, s{t}, s{sOOB}
        """)
    def pack_params(self):
        P = PK; t = sA
        r = lines(f"""
        s_mov_b32 s{P+3}, 0x20000
        s_mov_b32 s{t+2}, {640*1280}
        s_cmp_lt_u32 s2, 135; s_cselect_b32 s{P}, s{pDN}, s{pWO}; s_cselect_b32 s{P+1}, s{pDN+1}, s{pWO+1}; s_cselect_b32 s{P+2}, {1728*1280}, s{t+2}; s_cselect_b32 s{t}, 0, 135
        s_sub_u32 s{t}, s2, s{t}
        s_mul_i32 s{t+2}, s{t}, {DIV5}
        s_lshr_b32 s{t+2}, s{t+2}, 16
        s_mul_i32 s{t+3}, s{t+2}, 5
        s_sub_u32 s{t+1}, s{t}, s{t+3}
        s_mul_i32 s{P+4}, s{t+2}, {64*1280}
        s_lshl_b32 s{t+3}, s{t+1}, 8
        s_add_u32 s{P+4}, s{P+4}, s{t+3}
        s_lshr_b32 s{t+3}, s{sWave}, 1
        s_lshl_b32 s{t+3}, s{t+3}, 7
        s_add_u32 s{P+4}, s{P+4}, s{t+3}
        """) + self.pos_ops(t + 2, t + 3) + lines(f"""
        s_lshl_b32 s{t+2}, s{t+2}, 1
        s_mov_b32 s{t}, {WS_WO}
        s_movk_i32 s{t+6}, 100
        s_cmp_lt_u32 s2, 135; s_cselect_b32 s{t+3}, s{t+3}, s{t+2}; s_cselect_b32 s{t}, {WS_WD}, s{t}; s_cselect_b32 s{t+6}, 280, s{t+6}
        s_and_b32 s{t+2}, s{sWave}, 1
        s_add_u32 s{t+3}, s{t+3}, s{t+2}
        s_mul_i32 s{t+3}, s{t+3}, 5120
        s_add_u32 s{t}, s{t}, s{t+3}
        s_cmp_lt_u32 s2, 185; s_cselect_b32 s{P+2}, s{P+2}, 0; s_cselect_b32 s{t}, s{t}, s{sOOB}
        s_lshl_b32 s{t+1}, s{t+1}, 3
        s_and_b32 s{t+2}, s{sWave}, 2
        s_lshl_b32 s{t+2}, s{t+2}, 1
        s_add_u32 s{t+1}, s{t+1}, s{t+2}
        s_sub_u32 s{t+6}, s{t+6}, 5
        """)
        for ch in range(4):
            r += lines(f"""
            s_add_u32 s{t+2}, s{t+1}, {ch}
            s_mul_i32 s{t+3}, s{t+2}, {DIV5}
            s_lshr_b32 s{t+3}, s{t+3}, 16
            s_mul_i32 s{t+3}, s{t+3}, s{t+6}
            s_add_u32 s{t+3}, s{t+3}, s{t+2}
            s_lshl_b32 s{t+3}, s{t+3}, 10
            s_add_u32 s{P+5+ch}, s{t+3}, s{t}
            """)
        return r
    def p2_params(self):
        t = sA
        if self.cfg.get("p2x") == 2:
            return lines(f"""
            s_lshr_b32 s{t}, s{sJ}, 1
            s_add_u32 s{sNb}, s{sMb}, s{t}
            s_and_b32 s{sNb}, s{sNb}, 3
            s_lshl_b32 s{t}, s{sHalf}, 2
            s_or_b32 s{sNb}, s{sNb}, s{t}
            s_and_b32 s{t}, s{sJ}, 1
            s_lshl_b32 s{sMb64}, s{sMb}, 1
            s_add_u32 s{sMb64}, s{sMb64}, s{t}
            s_lshl_b32 s{t}, s{t}, 2
            s_lshl_b32 s{sHalf}, 0x0f0f0f0f, s{t}
            """) + self.p2_params0()[5:]
        if self.cfg.get("p2x"):
            r = self.p2_params0()[5:]
            return lines(f"""
            s_add_u32 s{sNb}, s{sMb}, s{sJ}
            s_and_b32 s{sNb}, s{sNb}, 3
            s_lshl_b32 s{t}, s{sHalf}, 2
            s_or_b32 s{sNb}, s{sNb}, s{t}
            s_lshr_b32 s{t}, s{sJ}, 2
            s_lshl_b32 s{sMb64}, s{sMb}, 1
            s_add_u32 s{sMb64}, s{sMb64}, s{t}
            s_lshl_b32 s{t}, s{t}, 4
            s_lshl_b32 s{sHalf}, 0xffff, s{t}
            """) + r
        return self.p2_params0()
    def p2_params0(self):
        t = sA
        return lines(f"""
        s_lshl_b32 s{sNb}, s{sMb}, {0 if self.cfg.get("map8") else 1}
        s_add_u32 s{sNb}, s{sNb}, s{sJ}
        s_and_b32 s{sNb}, s{sNb}, {3 if self.cfg.get("map8") else 7}
        s_and_b32 s{t}, s{sJ}, {4 if self.cfg.get("map8") else 0}
        s_or_b32 s{sNb}, s{sNb}, s{t}
        s_mul_i32 s{t}, s{sWave}, 14
        s_mul_i32 s{sAb}, s{sMb64}, 56
        s_add_u32 s{sAb}, s{sAb}, s{t}
        s_lshl_b32 s{sAb}, s{sAb}, 12
        s_mul_i32 s{sBb}, s{sNb}, 56
        s_add_u32 s{sBb}, s{sBb}, s{t}
        s_mul_i32 s{sBb}, s{sBb}, 5120
        s_add_u32 s{sBb}, s{sBb}, {WS_WD}
        s_cmp_lt_u32 s{sWave}, 3; s_cselect_b32 s{sAb2}, s{sAb}, s{sOOB}; s_cselect_b32 s{sBb2}, s{sBb}, s{sOOB}
        s_mul_i32 s{t}, s{sMb64}, 81920
        s_add_u32 s{t}, s{t}, {WS_O}
        s_mul_i32 s{sOld}, s{sWave}, 20480
        s_add_u32 s{sOld}, s{sOld}, s{t}
        s_mul_i32 s{sOst}, s{sNb}, 10
        s_add_u32 s{sOst}, s{sOst}, s{sWave}
        s_lshl_b32 s{sOst}, s{sOst}, 8
        s_add_u32 s{sOst}, s{sOst}, s{t}
        s_cmp_lt_u32 s{sWave}, 2; s_cselect_b32 s{sOst2}, s{sOst}, s{sOOB}
        s_mul_i32 s{sWOb}, s{sNb}, 102400
        s_add_u32 s{sWOb}, s{sWOb}, {WS_WO}
        s_add_u32 s{sWOb}, s{sWOb}, s{sM0}
        s_lshl_b32 s{sKV}, s{sNb}, 2
        s_add_u32 s{sKV}, s{sKV}, s{sWave}
        s_mul_i32 s{sKV}, s{sKV}, 1280
        s_add_u32 s{sKV}, s{sKV}, {WS_QKV}
        s_lshl_b32 s{sXo}, s{sMb64}, 2
        s_add_u32 s{sXo}, s{sXo}, s{sWave}
        s_mul_i32 s{sXo}, s{sXo}, {16*1280}
        s_mul_i32 s{t}, s{sNb}, 160
        s_add_u32 s{sXo}, s{sXo}, s{t}
        s_lshl_b32 s{sFl0}, s{sMb}, 9
        s_add_u32 s{sFl0}, s{sFl0}, {WS_FLAG}
        s_max_u32 s{sFl1}, s{sMb}, 1
        s_lshl_b32 s{sFl1}, s{sFl1}, 9
        s_add_u32 s{sFl1}, s{sFl1}, {WS_FLAG - 512}
        s_lshl_b32 s{sFlG}, s{sWave}, 11
        s_add_u32 s{sFlG}, s{sFlG}, {WS_FLAG}
        s_lshl_b32 s{t}, s{sMb64}, 1
        v_lshrrev_b32 v{vQa}, 5, v0
        v_add_u32 v{vQa}, s{t}, v{vQa}
        v_mul_u32_u24 v{vQa}, 122880, v{vQa}
        v_and_b32 v{vKa}, 31, v0
        v_lshl_add_u32 v{vQa}, v{vKa}, 3, v{vQa}
        v_add_u32 v{vKa}, 8, v0
        v_lshrrev_b32 v{vT}, 4, v{vKa}
        v_add_u32 v{vT}, s{t}, v{vT}
        v_max_u32 v{vT}, 1, v{vT}
        v_subrev_u32 v{vT}, 1, v{vT}
        v_mul_u32_u24 v{vT}, 122880, v{vT}
        v_and_b32 v{vKa}, 15, v{vKa}
        v_lshl_add_u32 v{vKa}, v{vKa}, 4, v{vT}
        """)
    def switch_ops(self, P):
        t = sA
        return [f"v_mad_u32_u24 v{vLd}, v{vRow}, s{P+4}, v{vCol}",
                f"s_lshl_b32 s{sStep}, s{P+4}, 6",
                f"s_lshl_b32 s{t}, s{P+4}, 3",
                f"s_sub_u32 s{t}, s{t}, 1024",
                f"v_add_u32 v{vLd}, s{P+5}, v{vLd}",
                f"s_mul_i32 s{sWrap}, s{sStep}, 10",
                f"s_mov_b32 s{sSoff}, s{P+6}",
                f"v_add_u32 v{vLd+1}, s{t}, v{vLd}",
                f"v_add_u32 v{vLd+2}, s{t}, v{vLd+1}",
                f"v_add_u32 v{vLd+3}, s{t}, v{vLd+2}"]
    def dma_items(self, g):
        P = PB[g // 10]; slot = self.alloc(("B", g))
        it = [("op", f"s_add_u32 m0, s{sM0}, {slot*16384}")]
        if g % 10 == 0 and g > 0: it += [("op", o) for o in self.switch_ops(P)]
        elif g % 10: it.append(("op", f"s_add_u32 s{sSoff}, s{sSoff}, s{sStep}; s_cmp_eq_u32 s{sSoff}, s{sWrap}; s_cselect_b32 s{sSoff}, 0, s{sSoff}"))
        it += [("ld", f"buffer_load_dwordx4 v{vLd+j}, s[{P}:{P+3}], s{sSoff} offen offset:{1024*j} lds", f"B{g}") for j in range(4)]
        return it
    def pop_ops(self):
        p = self.pend
        while p and p[0][0] != "ld": self.emit(p.pop(0)[1])
    def pop_ld(self):
        a = self.a; p = self.pend
        self.pop_ops()
        if p:
            if " m0," in a.lines[-1]: a("s_nop 0")
            _, l, tag = p.pop(0); self.vm.issue(a, l, tag)
    def tr_reads(self, G):
        g, s = G >> 2, G & 3
        slot = self.slot[("B", g)]; reg = slot >> 2
        o = (slot & 3) * 16384 + 16 * s * 128
        r = []
        for t in range(4):
            b = WF + 16 * (G % NWB) + 4 * t
            r += [f"ds_read_b64_tr_b16 a[{b}:{b+1}], v{vTr+4*reg+t} offset:{o}",
                  f"ds_read_b64_tr_b16 a[{b+2}:{b+3}], v{vTr+4*reg+t} offset:{o+512}"]
        return r
    def center_ops(self, stage):
        x = XB + 16 * stage; t = EP
        d = []
        for i in range(16):
            d.append(f"v_dot2_f32_bf16 v{t+2*i}, v{x+i}, s{sLo}, v{vNegM}")
            d.append(f"v_dot2_f32_bf16 v{t+2*i+1}, v{x+i}, s{sHi}, v{vNegM}")
        c = [f"v_cvt_pk_bf16_f32 v{x+i}, v{t+2*i}, v{t+2*i+1}" for i in range(16)]
        return d, c
    def epi_f(self, acc, so):
        ops = []; sts = []; nb = self.cfg["stb"]
        for t in range(4):
            g = EP + 32 * (t & 1); u = g + 8; e = g + 16; pk = g + 24 + 4 * (t >> 1)
            A = acc + 16 * t
            for i in range(8): ops.append(f"v_accvgpr_read_b32 v{g+i}, a{A+i}")
            for i in range(8): ops.append(f"v_mul_f32 v{e+i}, v{vC1}, v{g+i}")
            for i in range(8):
                ops.append(f"v_exp_f32 v{e+i}, v{e+i}")
                ops.append(f"v_accvgpr_read_b32 v{u+i}, a{A+8+i}")
            for i in range(8): ops.append(f"v_fma_f32 v{e+i}, v{e+i}, v{vD2}, v{vD2}")
            for i in range(8):
                ops.append(f"v_rcp_f32 v{e+i}, v{e+i}")
                ops.append(f"v_mul_f32 v{g+i}, v{g+i}, v{u+i}")
            for i in range(8): ops.append(f"v_mul_f32 v{g+i}, v{g+i}, v{e+i}")
            for i in range(4): ops.append(f"v_cvt_pk_bf16_f32 v{pk+i}, v{g+2*i}, v{g+2*i+1}")
            if t == 2: sts.append(f"s_add_u32 s{so}, s{so}, 4096")
            sts.append(f"buffer_store_dwordx4 v[{pk}:{pk+3}], v{vSF}, s[{SRDW}:{SRDW+3}], s{so} offen offset:{(t&1)*512} sc1")
            if (t + 1) % nb == 0:
                ops.append("; ".join(sts)); sts = []
        return ops
    def epi_f_tail(self, acc, so):
        ops = [f"v_mov_b32 v{vR}, v{vD2}", f"v_mov_b32 v{vT}, v{vC1}", f"v_mov_b32 v{vT-1}, v{vC1}"]
        p2 = lambda r: f"v[{r}:{r+1}]"
        for t in range(4):
            g = EP + 32 * (t & 1); u = g + 8; e = g + 16; pk = g + 24
            A = acc + 16 * t
            for i in range(8): ops.append(f"v_accvgpr_read_b32 v{g+i}, a{A+i}")
            for i in range(4): ops.append(f"v_pk_mul_f32 {p2(e+2*i)}, {p2(vT-1)}, {p2(g+2*i)}")
            for i in range(8):
                ops.append(f"v_exp_f32 v{e+i}, v{e+i}")
                ops.append(f"v_accvgpr_read_b32 v{u+i}, a{A+8+i}")
            for i in range(4): ops.append(f"v_pk_fma_f32 {p2(e+2*i)}, {p2(e+2*i)}, {p2(vD2)}, {p2(vD2)}")
            for i in range(8): ops.append(f"v_rcp_f32 v{e+i}, v{e+i}")
            for i in range(4): ops.append(f"v_pk_mul_f32 {p2(g+2*i)}, {p2(g+2*i)}, {p2(u+2*i)}")
            for i in range(4): ops.append(f"v_pk_mul_f32 {p2(g+2*i)}, {p2(g+2*i)}, {p2(e+2*i)}")
            for i in range(4): ops.append(f"v_cvt_pk_bf16_f32 v{pk+i}, v{g+2*i}, v{g+2*i+1}")
            if t == 2: ops.append(f"s_add_u32 s{so}, s{so}, 4096")
            ops.append(f"buffer_store_dwordx4 v[{pk}:{pk+3}], v{vSF}, s[{SRDW}:{SRDW+3}], s{so} offen offset:{(t&1)*512} sc1")
        return ops
    def epi_q(self, acc, so):
        ops = [f"s_add_u32 s{so-1}, s{so}, 4096"]; sts = []; nb = self.cfg["stb"]
        for t in range(4):
            g = EP; pk = EP + 16 + 8 * t
            A = acc + 16 * t
            for i in range(16): ops.append(f"v_accvgpr_read_b32 v{g+i}, a{A+i}")
            for i in range(16): ops.append(f"v_mul_f32 v{g+i}, v{vR}, v{g+i}")
            for i in range(8): ops.append(f"v_cvt_pk_bf16_f32 v{pk+i}, v{g+2*i}, v{g+2*i+1}")
            for q in range(4):
                grp = 4 * t + 2 * (q & 1)
                sts.append(f"buffer_store_dwordx2 v[{pk+2*q}:{pk+2*q+1}], v{vL8}, s[{SRDW}:{SRDW+3}], s{so-(q>>1)} offen offset:{grp*256} sc1")
            if (t + 1) % nb == 0:
                if self.cfg.get("stq", True): ops.append("; ".join(sts))
                else: ops += sts
                sts = []
        return ops
    def publish(self, level, after):
        a = self.a
        for tg in after: self.vm.wait(a, tg)
        a(f"v_mov_b64 v[{self.vPub}:{self.vPub+1}], s[{sTok}:{sTok+1}]")
        a(f"s_add_u32 s{sA+8}, s{sFlag}, {level*8192}")
        a("s_mov_b64 exec, 1")
        self.vm.issue(a, f"buffer_store_dwordx2 v[{self.vPub}:{self.vPub+1}], off, s[{SRDW}:{SRDW+3}], s{sA+8} sc1", "fl")
        a("s_mov_b64 exec, -1")
    def retouch(self, kind, so=None):
        if kind not in self.cfg.get("rt", ""): return
        a = self.a; r = 88 if kind == "P" else self.vPub - 2
        if kind == "P":
            a(f"v_lshlrev_b32 v{r}, 7, v0\ns_mov_b64 exec, 0xff")
            for ch in range(4): self.vm.issue(a, f"buffer_load_dword v{r+1}, v{r}, s[{SRDW}:{SRDW+3}], s{PK+5+ch} offen", "rt")
            a("s_mov_b64 exec, -1")
        elif kind == "Q":
            a(f"v_lshlrev_b32 v{r}, 7, v0")
            self.vm.issue(a, f"buffer_load_dword v{r}, v{r}, s[{SRDW}:{SRDW+3}], s{so} offen", "rt")
        else:
            a(f"v_and_b32 v{r}, 16, v0\nv_add_u32 v{r}, v{r}, v0\nv_lshlrev_b32 v{r}, 7, v{r}\ns_sub_u32 s{sA+8}, s{so}, 4096\ns_mov_b32 exec_hi, 0")
            self.vm.issue(a, f"buffer_load_dword v{r}, v{r}, s[{SRDW}:{SRDW+3}], s{sA+8} offen", "rt")
            a("s_mov_b32 exec_hi, -1")
    def flag_ld(self, reg, soff, level, off, sc):
        return [f"s_add_u32 s{sA+8}, s{soff}, {level*8192}",
                f"buffer_load_dwordx2 v[{reg}:{reg+1}], v{vL8}, s[{SRDW}:{SRDW+3}], s{sA+8} offen offset:{off} {sc}"]
    def flag_load(self, reg, soff, tag, level, off=0):
        l = self.flag_ld(reg, soff, level, off, "")
        self.a(l[0]); self.vm.issue(self.a, l[1], tag)
    def flag_check(self, reg, soff, tag, level, half=False, off=0):
        a = self.a; L = a.newlabel("fc")
        self.vm.wait(a, tag)
        test = f"v_cmp_ne_u64 vcc, s[{sTok}:{sTok+1}], v[{reg}:{reg+1}]\n"
        if half and self.cfg.get("p2x"): test += f"s_nop 0\ns_or_b32 s{sA+8}, vcc_lo, vcc_hi\ns_and_b32 s{sA+8}, s{sA+8}, s{sHalf}"
        elif half: test += f"s_cmp_eq_u32 s{sHalf}, 0\ns_cselect_b32 s{sA+8}, vcc_lo, vcc_hi\ns_cmp_lg_u32 s{sA+8}, 0"
        else: test += "s_nop 0\ns_cmp_lg_u64 vcc, 0"
        a(test)
        a(f"s_cbranch_scc1 {L}_slow")
        a.label(f"{L}_ok")
        l = self.flag_ld(reg, soff, level, off, "sc1")
        self.slow.append(f"""
        {L}_slow:
        s_mov_b32 s{sA+9}, 0
        {L}_spin:
        {l[0]}
        {l[1]}
        s_add_u32 s{sA+9}, s{sA+9}, 1
        s_cmp_gt_u32 s{sA+9}, {self.cfg["spin"]}
        s_waitcnt vmcnt(0)
        s_cbranch_scc1 {L}_ok
        {test}
        s_cbranch_scc0 {L}_ok
        s_sleep {self.cfg.get("sleep", 4)}
        s_branch {L}_spin
        """)

    def body(self, T, work, ntask, wrange=(4, 156), center=False, extra=None, vq=None, vq1=1, vq2=1, before=None):
        a = self.a; cfg = self.cfg; acc = ACC[T & 1]; LA = cfg["LA"]
        ngap = 160
        per = [[] for _ in range(ngap)]
        def cost(op):
            if not isinstance(op, str): return 3.0
            if op.startswith(("v_exp", "v_rcp")): return 2.0
            if op.startswith("buffer_"): return 3.0 * (1 + op.count(";"))
            return 1.0 + op.count(";")
        def is_bar(S):
            n1 = 10 * T + (S >> 2) + 1
            if (S & 3) != 1 or n1 >= 10 * ntask: return False
            return (n1 % 2 == 0) if cfg["bar2"] else True
        cap = []
        for g in range(ngap):
            c = cfg["cap"] - ([3, 3, 2, 0] if is_bar(g >> 2) else cfg["rpat"])[g & 3]
            if (g & 3) == cfg["dmagap"] or ((g & 3) == 0 and vq): c -= 2.5
            if (g & 3) == 3: c -= 1
            if (g & 3) == 3 and is_bar(g >> 2): c = 0
            cap.append(max(c, 0.0))
        if center:
            for st in range(cfg["nc"], 10):
                d, c = self.center_ops(st)
                base = 16 * (st - 1)
                per[base] += d
                cg = [base + x for x in (1, 3, 4, 5, 8, 9, 11, 12, 13)]
                for i, op in enumerate(c): per[cg[i * len(cg) // 16]].append(op)
        used = lambda g: sum(cost(o) for o in per[g])
        self.ends = {}
        for g00, fn in (extra or {}).items():
            if not isinstance(fn, list): per[g00].append(fn)
        for g00, fn in (extra or {}).items():
            if isinstance(fn, list):
                g = g00; room = 0.0
                for op in fn:
                    while room <= 0:
                        room = cap[g] - used(g); g += 1
                    per[g - 1].append(op); room -= cost(op)
                self.ends[g00] = g - 1
        for a_, b_ in (before or []): assert self.ends[a_] < b_, (a_, self.ends[a_], b_)
        if work:
            g0, g1 = wrange
            cap = [max(cap[g] - used(g), 0.0) for g in range(ngap)]
            scale = sum(cost(o) for o in work) / sum(cap[g0:g1])
            if cfg.get("verbose"): print("body", T, "work scale", scale)
            g = g0; room = cap[g] * scale
            for op in work:
                while room <= 0 and g < g1 - 1:
                    g += 1; room += cap[g] * scale
                per[g].append(op); room -= cost(op)
        vq = list(vq or [])
        for S in range(40):
            i, s = S >> 2, S & 3
            G = 40 * T + S; n = 10 * T + i
            rd = self.tr_reads(G + 2) if G + 2 < 40 * ntask else []
            if s == 2:
                k = 0
                while self.next <= n + LA and self.next < 10 * ntask and k < 2 and self.cands(("B", self.next)):
                    self.pend += self.dma_items(self.next); self.next += 1; k += 1
            for t in range(4):
                gap = 4 * S + t
                if t == 0: a(f"s_waitcnt lgkmcnt({8 if G + 1 < 40 * ntask else 0})")
                A = acc + 16 * t; w = WF + 16 * (G % NWB) + 4 * t; x = XB + 4 * S
                c = "0" if S == 0 else f"a[{A}:{A+15}]"
                a(f"v_mfma_f32_32x32x16_bf16 a[{A}:{A+15}], a[{w}:{w+3}], v[{x}:{x+3}], {c}")
                pat = [3, 3, 2, 0] if is_bar(S) else cfg["rpat"]
                for _ in range(pat[t]):
                    if rd: a(rd.pop(0))
                nld = sum(1 for p_ in self.pend if p_[0] == "ld")
                if self.pend and (t == cfg["dmagap"] or (nld > 4 and t == 0)): self.pop_ld()
                elif vq and ((t == 0 and S % vq1 == 0) or (t == cfg["dmagap"] and not self.pend and S % vq2 == 0)):
                    for j_, it_ in enumerate(vq):
                        if it_[0](gap):
                            vq.pop(j_)[1](); break
                if t == cfg["dmagap"] - 1: self.pop_ops()
                if T == cfg.get("markT", 2) and gap % 16 == 9: self.mark(gap // 16)
                for op in per[gap]:
                    if callable(op): op()
                    else: self.emit(op, f"E{T-1}")
                if t == 3 and is_bar(S):
                    last = n + 2 if cfg["bar2"] and n + 2 < 10 * ntask else n + 1
                    self.vm.wait(a, f"B{last}", 4)
                    a("s_barrier")
                    self.lastbar = n
            assert not rd
        return vq

    def att_loads(self, al=True):
        a = self.a
        out = []
        for kv in range(2):
            for i in range(5):
                def f(kv=kv, i=i):
                    assert not self.pend
                    a(f"s_add_u32 m0, s{sM0}, {(7+kv)*16384 + i*640 - 256*i}")
                    if i == 0: a(f"s_add_u32 s{sA+6}, s{sKV}, {(kv+1)*40960}")
                    a("s_mov_b32 exec_hi, 0xff")
                    self.vm.issue(a, f"buffer_load_dwordx4 v{vKa}, s[{SRDW}:{SRDW+3}], s{sA+6} offen offset:{256*i} sc1 lds", "KV")
                    a("s_mov_b32 exec_hi, -1")
                out.append(f)
        for i in range(5):
            out.append(lambda i=i: self.vm.issue(a, f"buffer_load_dwordx2 v[{XB+2*i}:{XB+2*i+1}], v{vQa}, s[{SRDW}:{SRDW+3}], s{sKV} offen offset:{256*i} sc1", "KV"))
        return out
    def attention(self, inter):
        a = self.a; vm = self.vm
        Q = XB; AK = 1; AK2 = 2; RW = 3; L = 4; P = 236; O = 216
        kvb = [[196, 200, 204, 208, 212], [106, 110, 252, 12, 26]]
        code = []; e = code.append
        def rd(n):
            m = n & 3
            if n == 4:
                e(f"v_add_u32 v{AK}, 16384, v{AK}"); e(f"v_add_u32 v{AK2}, 16384, v{AK2}")
            for i in range(5):
                b = kvb[n & 1][i]; o = (i % 3) * 80 + 16 - 4 * m
                e(f"ds_read2_b64 v[{b}:{b+3}], v{AK if i < 3 else AK2} offset0:{o} offset1:{o-2}")
        a(f"""
        s_add_u32 s{sA}, s{sM0}, {7*16384}
        v_add_u32 v{AK}, s{sA}, v{vL8}
        v_add_u32 v{AK2}, 1920, v{AK}
        s_mov_b32 s{sA+1}, 0x{C_SM:x}
        """)
        vm.wait(a, "KV", 15)
        self.mark(23)
        rd(0)
        for n in range(8):
            m = n & 3; B = kvb[n & 1]
            e("s_waitcnt lgkmcnt(0)")
            if n < 4:
                for i in range(10):
                    for h in range(2):
                        src = f"v{Q+i}, v{B[i>>1] + 2*h + (i&1)}"
                        e(f"v_dot2_f32_bf16 v{L+2*m+h}, {src}, 0" if i == 0 else f"v_dot2c_f32_bf16 v{L+2*m+h}, {src}")
                    if i == 0: rd(n + 1)
            else:
                if n + 1 < 8: rd(n + 1)
                for h in range(2):
                    w = 2 * m + h
                    for i in range(10):
                        for j in range(2):
                            src = f"v{B[i>>1] + 2*h + (i&1)}, v{P+2*w+j}"
                            e(f"v_dot2_f32_bf16 v{O+2*i+j}, {src}, 0" if w == 0 else f"v_dot2c_f32_bf16 v{O+2*i+j}, {src}")
            if n == 3:
                Lm = a.newlabel("am")
                blk = [f"s_cmp_lg_u32 s{sMb64}, 0", f"s_cbranch_scc1 {Lm}", f"v_mov_b32 v{P}, 0xce6e6b28"]
                for ww in range(1, 8):
                    blk += [f"v_cmp_gt_u32 vcc, {2*ww}, v0", "s_nop 1", f"v_cndmask_b32 v{L+ww}, v{L+ww}, v{P}, vcc"]
                blk += [f"{Lm}:"]
                e("\n".join(blk))
                e(f"v_max3_f32 v{P}, v{L}, v{L+1}, v{L+2}")
                e(f"v_max3_f32 v{P}, v{P}, v{L+3}, v{L+4}")
                e(f"v_max3_f32 v{P}, v{P}, v{L+5}, v{L+6}")
                e(f"v_max_f32 v{P}, v{P}, v{L+7}")
                e(f"v_mul_f32 v{P}, s{sA+1}, v{P}")
                for ww in range(8): e(f"v_fma_f32 v{L+ww}, v{L+ww}, s{sA+1}, -v{P}")
                for ww in range(8): e(f"v_exp_f32 v{L+ww}, v{L+ww}")
                e(f"v_pk_add_f32 v[{P}:{P+1}], v[{L}:{L+1}], v[{L+2}:{L+3}]")
                e(f"v_pk_add_f32 v[{P+2}:{P+3}], v[{L+4}:{L+5}], v[{L+6}:{L+7}]")
                e(f"v_pk_add_f32 v[{P}:{P+1}], v[{P}:{P+1}], v[{P+2}:{P+3}]")
                e(f"v_add_f32 v{P}, v{P}, v{P+1}")
                e(f"v_rcp_f32 v{P}, v{P}\ns_nop 0")
                for ww in range(4): e(f"v_pk_mul_f32 v[{L+2*ww}:{L+2*ww+1}], v[{L+2*ww}:{L+2*ww+1}], v[{P}:{P+1}] op_sel_hi:[1,0]")
                for ww in range(8):
                    e(f"v_cvt_pk_bf16_f32 v{P+2*ww}, v{L+ww}, 0")
                    e(f"v_cvt_pk_bf16_f32 v{P+2*ww+1}, 0, v{L+ww}")
        e(f"s_mul_i32 s{sA}, s{sWave}, 2560\ns_add_u32 s{sA}, s{sA}, {9*16384}\nv_add_u32 v{AK}, s{sA}, v{vL8}")
        e(f"s_mul_i32 s{sA}, s{sWave}, 3\ns_and_b32 s{sA}, s{sA}, 13\ns_min_u32 s{sA}, s{sA}, 5\ns_lshl_b32 s{sA}, s{sA}, 9\ns_add_u32 s{sA}, s{sA}, {9*16384}\nv_add_u32 v{AK2}, s{sA}, v{vL8}")
        e(f"v_lshrrev_b32 v{RW}, 4, v0"); e(f"v_mul_u32_u24 v{RW}, {20480-256}, v{RW}"); e(f"v_add_u32 v{RW}, v{RW}, v{vL16}")
        for i in range(5):
            e(f"v_cvt_pk_bf16_f32 v{Q+2*i}, v{O+4*i}, v{O+4*i+1}")
            e(f"v_cvt_pk_bf16_f32 v{Q+2*i+1}, v{O+4*i+2}, v{O+4*i+3}")
            e(f"ds_write_b64 v{AK}, v[{Q+2*i}:{Q+2*i+1}] offset:{512*i}")
        inter = list(inter); n = len(code); k = len(inter); j = 0
        for i, ins in enumerate(code):
            a(ins)
            while j < k and j < (i + 1) * k // (n - 10):
                inter[j](); j += 1
        self.mark(25)
        if self.cfg["nokb"]: vm.wait(a, "WO", 25)
        a("s_waitcnt lgkmcnt(0)\ns_barrier")
        for r in range(3): a(f"ds_read2st64_b64 v[{4+4*r}:{7+4*r}], v{AK2} offset0:{8*r} offset1:{8*r+2}")
        return [lambda r=r: (a(f"s_waitcnt lgkmcnt({2-r})"),
                             vm.issue(a, f"buffer_store_dwordx4 v[{4+4*r}:{7+4*r}], v{RW}, s[{SRDW}:{SRDW+3}], s{sOst2 if r == 2 else sOst} offen offset:{1024*r} sc1", "O")) for r in range(3)]

    BSLOT = ["a176", "a196", "a216", "a236", "v116", "v136", "v156", "v176", "a64", "a84", "a104", "a128", "a148", "v96"]
    ASLOT = ["v32", "v48", "v64", "v80", "v196", "v216", "v32", "v48", "v64", "v80", "v196", "v32", "v48", "v64"]
    AEARLY = [0, 0, 0, 0, 0, 0, 1, 2, 3, 4, 5, 7, 8, 9]
    @staticmethod
    def rr(base, off, n=4):
        return f"{base[0]}[{int(base[1:])+off}:{int(base[1:])+off+n-1}]"
    def b_loads(self, k):
        a = self.a; out = []
        for u in range(5):
            def f(u=u):
                if u == 0: a(f"s_add_u32 s{sGb}, s{sBb if k < 12 else sBb2}, {k*5120}")
                if u == 4: a(f"s_add_u32 s{sGb}, s{sGb}, 4096")
                self.vm.issue(a, f"buffer_load_dwordx4 {self.rr(self.BSLOT[k], 4*u)}, v{vL16}, s[{SRDW}:{SRDW+3}], s{sGb} offen offset:{1024*(u&3)} sc1", f"PB{k}")
            out.append(f)
        return out
    def a_loads(self, k):
        a = self.a; out = []
        for i in range(4):
            def f(i=i):
                if i == 0: a(f"s_add_u32 s{sGa}, s{sAb if k < 12 else sAb2}, {k*4096}")
                self.vm.issue(a, f"buffer_load_dwordx4 {self.rr(self.ASLOT[k], 4*i)}, v{vA[i]}, s[{SRDW}:{SRDW+3}], s{sGa} offen sc1", f"PA{k}")
            out.append(f)
        return out
    def wo_loads(self, s):
        a = self.a; out = []
        for j in range(4 if s < 6 else 1):
            def f(j=j):
                assert not self.pend
                if j == 0 and self.owner[s] != ("WO", s): self.alloc(("WO", s), s)
                if self.m0 != ("WO", s):
                    if s < 6:
                        a(f"s_add_u32 m0, s{sM0}, {s*16384}\ns_add_u32 s{sA+7}, s{sWOb}, {s*16384}")
                    else:
                        a(f"s_lshr_b32 s{sA+7}, s{sM0}, 2\ns_add_u32 m0, s{sA+7}, {6*16384}\ns_sub_u32 s{sA+7}, s{sWOb}, s{sM0}\ns_add_u32 s{sA+7}, s{sA+7}, m0")
                self.m0mark = (len(a.lines), ("WO", s))
                self.vm.issue(a, f"buffer_load_dwordx4 v{vL16}, s[{SRDW}:{SRDW+3}], s{sA+7} offen offset:{1024*j} sc1 lds", "WO")
            out.append(f)
        return out
    @property
    def m0(self):
        mk = getattr(self, "m0mark", None)
        if not mk: return None
        for l in self.a.lines[mk[0]:]:
            if " m0," in l or f"s{sA+7}," in l.split(",")[0] + "," and l.strip().startswith("s_") or l.endswith(("_join:", "_two:")): return None
        return mk[1]

    def build(self):
        a = self.a; cfg = self.cfg; label = self.label
        vm = self.vm
        sX = sA + 9
        a.begin_kernel(label)
        a(f"""
        s_cmp_ge_u32 s2, 256
        s_cbranch_scc1 {label}_end
        s_load_dwordx2 s[4:5], s[0:1], 0
        s_load_dwordx2 s[{pQKV}:{pQKV+1}], s[0:1], 8
        s_load_dwordx2 s[{pWO}:{pWO+1}], s[0:1], 16
        s_load_dwordx4 s[{pG}:{pG+3}], s[0:1], 32
        s_load_dwordx2 s[{pDN}:{pDN+1}], s[0:1], 48
        s_load_dwordx2 s[6:7], s[0:1], 56
        s_load_dwordx2 s[{pWS}:{pWS+1}], s[0:1], 72
        """)
        self.stamp(0)
        if self.stamps: a(f"s_memrealtime s[{sTok}:{sTok+1}]")
        NL = cfg.get("codelines", 11)
        a(f"""
        s_getpc_b64 s[{sA}:{sA+1}]
        s_lshr_b32 s{sA+2}, s2, 3
        s_mul_i32 s{sA+2}, s{sA+2}, {NL*128}
        v_lshlrev_b32 v{vT}, 7, v0
        v_add_u32 v{vT}, s{sA+2}, v{vT}
        v_min_u32 v{vT}, {label}_end-{label}-128, v{vT}
        v_cmp_gt_u32 vcc, {NL}, v0
        s_and_saveexec_b64 s[{sA+2}:{sA+3}], vcc
        s_cbranch_execz {label}_nt
        global_load_dword v95, v{vT}, s[{sA}:{sA+1}]
        {label}_nt:
        s_mov_b64 exec, -1
        v_lshrrev_b32 v{vT}, 6, v0
        v_and_b32 v0, 63, v0
        s_and_b32 s{sA}, s2, 7
        v_readfirstlane_b32 s{sWave}, v{vT}
        """)
        if cfg.get("map2"):
            a(f"""
            s_lshr_b32 s{sA+2}, s2, 7
            s_lshl_b32 s{sMb}, s{sA}, 1
            s_add_u32 s{sMb}, s{sMb}, s{sA+2}
            s_bfe_u32 s{sHalf}, s2, 0x10006
            s_bfe_u32 s{sJ}, s2, 0x30003
            s_lshl_b32 s{sA+3}, s{sA}, 2
            s_lshr_b32 s{sRot}, {cfg.get("rot2", 0x43210432)}, s{sA+3}
            s_and_b32 s{sRot}, s{sRot}, 15
            s_mul_i32 s{sA+3}, s{sA+2}, {cfg.get("rot2m", 5)}
            s_add_u32 s{sRot}, s{sRot}, s{sA+3}
            s_add_u32 s{sRot}, s{sRot}, s{sJ}
            s_lshl_b32 s{sA+3}, s{sHalf}, 1
            s_add_u32 s{sRot}, s{sRot}, s{sA+3}
            """)
        elif not cfg.get("map8"):
            a(f"""
            s_lshr_b32 s{sA+1}, s2, 3
            s_and_b32 s{sHalf}, s{sA}, 1
            s_lshr_b32 s{sA}, s{sA}, 1
            s_lshl_b32 s{sA}, s{sA}, 2
            s_lshr_b32 s{sA+2}, s{sA+1}, 3
            s_add_u32 s{sMb}, s{sA}, s{sA+2}
            s_and_b32 s{sJ}, s{sA+1}, 7
            s_lshl_b32 s{sRot}, s{sA+2}, 2
            s_lshr_b32 s{sRot}, {cfg["rotm"]}, s{sRot}
            s_and_b32 s{sRot}, s{sRot}, 15
            s_add_u32 s{sRot}, s{sRot}, s{sJ}
            s_lshr_b32 s{sA+3}, {cfg["rotx"]}, s{sA}
            s_and_b32 s{sA+3}, s{sA+3}, 15
            s_add_u32 s{sRot}, s{sRot}, s{sA+3}
            s_mul_i32 s{sA+3}, s{sHalf}, {cfg.get("roth", 0)}
            s_add_u32 s{sRot}, s{sRot}, s{sA+3}
            """)
        else:
            a(f"""
            s_lshr_b32 s{sA+2}, s2, 5
            s_and_b32 s{sMb}, s{sA}, 4
            s_lshl_b32 s{sMb}, s{sMb}, 1
            s_add_u32 s{sMb}, s{sMb}, s{sA+2}
            s_bfe_u32 s{sHalf}, s2, 0x10001
            s_bfe_u32 s{sA+1}, s2, 0x20003
            s_and_b32 s{sJ}, s2, 1
            s_lshl_b32 s{sJ}, s{sJ}, 2
            s_add_u32 s{sJ}, s{sJ}, s{sA+1}
            s_lshl_b32 s{sRot}, s{sA+1}, 2
            s_lshr_b32 s{sRot}, 0x7520, s{sRot}
            s_and_b32 s{sRot}, s{sRot}, 15
            s_lshl_b32 s{sA+3}, s{sA+2}, 2
            s_lshr_b32 s{sA+3}, {cfg.get("rot8", 0x43210210)}, s{sA+3}
            s_and_b32 s{sA+3}, s{sA+3}, 15
            s_add_u32 s{sRot}, s{sRot}, s{sA+3}
            s_lshr_b32 s{sA+3}, s{sA}, 2
            s_mul_i32 s{sA+3}, s{sA+3}, 5
            s_add_u32 s{sRot}, s{sRot}, s{sA+3}
            s_and_b32 s{sA+3}, s2, 1
            s_add_u32 s{sRot}, s{sRot}, s{sA+3}
            """)
        a(f"""
        s_lshl_b32 s{sM0}, s{sWave}, 12
        s_sub_u32 s{sA+3}, s{sRot}, 10
        s_min_u32 s{sRot}, s{sRot}, s{sA+3}
        s_lshl_b32 s{sX}, s{sRot}, 7
        s_lshl_b32 s{sA}, s{sMb}, 7
        s_lshl_b32 s{sA+1}, s{sWave}, 5
        s_add_u32 s{sA}, s{sA}, s{sA+1}
        s_mul_i32 s{sA}, s{sA}, 1280
        v_lshrrev_b32 v{vT}, 3, v0
        v_mul_u32_u24 v{vT}, 1280, v{vT}
        v_add_u32 v{vT}, s{sA}, v{vT}
        v_lshrrev_b32 v{vT+1}, 4, v0
        v_and_b32 v{vT+2}, 7, v0
        v_xor_b32 v{vT+1}, v{vT+1}, v{vT+2}
        v_xor_b32 v{vT+2}, 4, v{vT+1}
        v_lshl_add_u32 v{EP+4}, v{vT+1}, 4, v{vT}
        v_lshl_add_u32 v{EP+5}, v{vT+2}, 4, v{vT}
        v_add_u32 v{EP+5}, {8*1280-1024}, v{EP+5}
        v_add_u32 v{EP+6}, {2*(8*1280-1024)}, v{EP+4}
        v_add_u32 v{EP+7}, {2*(8*1280-1024)}, v{EP+5}
        s_mov_b32 s{SRDX+2}, {2048*1280}
        s_mov_b32 s{SRDX+3}, 0x20000
        s_mov_b32 m0, s{sM0}
        """)
        sS = sA + 7; sC = sA + 8
        setup = lines(f"""
        s_mov_b32 s{sOOB}, {OOB}
        s_lshl_b32 s{sS}, s{sHalf}, 3
        s_add_u32 s{sS}, s{sS}, s{sJ}
        v_lshrrev_b32 v{vRow}, 3, v0
        s_and_b32 s{sA}, s{sWave}, 1
        s_lshl_b32 s{sA}, s{sA}, 5
        v_add_u32 v{vRow}, s{sA}, v{vRow}
        v_bfe_u32 v{vT}, v0, 1, 2
        v_bfe_u32 v{vT+1}, v0, 4, 1
        s_and_b32 s{sA}, s{sWave}, 2
        v_or_b32 v{vT+1}, s{sA}, v{vT+1}
        v_xor_b32 v{vT}, v{vT}, v{vT+1}
        v_and_b32 v{vT+1}, 1, v0
        v_lshlrev_b32 v{vT+1}, 4, v{vT+1}
        v_lshl_add_u32 v{vCol}, v{vT}, 5, v{vT+1}
        s_add_u32 s{sC}, s{sS}, {cfg["qsh"]}
        s_and_b32 s{sC}, s{sC}, 15
        """) + self.q_params(PB[0], sC) + self.switch_ops(PB[0])
        ptr = [o for o in setup if f"s{pQKV}" in o or f"s{pQKV+1}" in o]
        for o in setup:
            if o not in ptr: self.emit(o)
        a(f"s_waitcnt lgkmcnt(0)\ns_mov_b32 s{SRDX}, s4\ns_mov_b32 s{SRDX+1}, s5")
        if self.stamps: a(f"s_mov_b32 s1, s{sTok}")
        setup = ptr + ([f"s_add_u32 s{pWS}, s{pWS}, {cfg['wsoff']}; s_addc_u32 s{pWS+1}, s{pWS+1}, 0"] if cfg.get("wsoff") else []) + lines(f"""
        s_add_u32 s{sA}, s{pWS}, {WS_EPOCH}; s_addc_u32 s{sA+1}, s{pWS+1}, 0
        s_load_dwordx2 s[{sTok}:{sTok+1}], s[{sA}:{sA+1}], 0
        """)
        n_first = len(setup)
        setup += lines(f"""
        s_mov_b32 s{sOne}, 0x3f803f80
        s_mov_b32 s{sLo}, 0x00003f80
        s_mov_b32 s{sHi}, 0x3f800000
        v_and_b32 v{vT}, 31, v0
        v_lshlrev_b32 v{vT+1}, 7, v{vT}
        v_add_u32 v{vT+1}, s{sM0}, v{vT+1}
        v_bfe_u32 v{vT}, v0, 1, 3
        v_lshrrev_b32 v{vT+2}, 5, v0
        v_xor_b32 v{vT}, v{vT}, v{vT+2}
        """)
        XA = EP + 8
        for s in range(4):
            setup.append(f"v_xor_b32 v{vT+2}, {2*s}, v{vT}")
            setup.append(f"v_lshl_add_u32 v{XA+s}, v{vT+2}, 4, v{vT+1}")
            setup.append(f"v_add_u32 v{XA+4+s}, 0x10000, v{XA+s}")
            setup.append(f"v_add_u32 v{XA+8+s}, 0x20000, v{XA+s}")
        setup += lines(f"""
        v_mov_b32 v{vSum}, 0
        v_mov_b32 v{vSq}, 0
        v_lshlrev_b32 v{vL16}, 4, v0
        v_lshlrev_b32 v{vL8}, 3, v0
        v_bfe_u32 v{vT}, v0, 4, 1
        v_bfe_u32 v{vT+1}, v0, 2, 2
        v_lshrrev_b32 v{vT+2}, 5, v0
        v_lshl_add_u32 v{vT+2}, v{vT+2}, 3, v{vT+1}
        v_lshlrev_b32 v{vT+2}, 7, v{vT+2}
        v_lshl_add_u32 v{vT+2}, v{vT}, 13, v{vT+2}
        v_and_b32 v{EP}, 3, v0
        v_lshl_add_u32 v{vT+2}, v{EP}, 3, v{vT+2}
        v_lshrrev_b32 v{vT+1}, 1, v{vT+1}
        v_lshl_add_u32 v{vT}, v{vT}, 1, v{vT+1}
        """)
        for t in range(4):
            setup.append(f"v_xor_b32 v{vT+1}, {t}, v{vT}")
            setup.append(f"v_lshl_add_u32 v{vTr+t}, v{vT+1}, 5, v{vT+2}")
            setup.append(f"v_add_u32 v{vTr+4+t}, 0x10000, v{vTr+t}")
            setup.append(f"v_add_u32 v{vTr+8+t}, 0x20000, v{vTr+t}")
        setup += lines(f"""
        v_bfe_u32 v{vT}, v0, 4, 1
        v_lshlrev_b32 v{vT}, 10, v{vT}
        v_lshrrev_b32 v{vT+1}, 5, v0
        v_lshl_add_u32 v{vT}, v{vT+1}, 8, v{vT}
        v_and_b32 v{vT+1}, 15, v0
        v_lshl_add_u32 v{vSF}, v{vT+1}, 4, v{vT}
        s_mov_b32 s{SRDW}, s{pWS}
        s_mov_b32 s{SRDW+1}, s{pWS+1}
        s_mov_b32 s{SRDW+2}, {WS_SIZE}
        s_mov_b32 s{SRDW+3}, 0x20000
        s_lshl_b32 s{sMb64}, s{sMb}, 1
        s_add_u32 s{sMb64}, s{sMb64}, s{sHalf}
        s_lshl_b32 s{sFlag}, s{sMb}, 4
        s_add_u32 s{sFlag}, s{sFlag}, s{sS}
        s_lshl_b32 s{sFlag}, s{sFlag}, 2
        s_add_u32 s{sFlag}, s{sFlag}, s{sWave}
        s_lshl_b32 s{sFlag}, s{sFlag}, 3
        s_add_u32 s{sFlag}, s{sFlag}, {WS_FLAG}
        s_mul_i32 s{sC}, s{sHalf}, 3
        s_add_u32 s{sC}, s{sC}, s{sJ}
        s_add_u32 s{sC}, s{sC}, 16
        s_add_u32 s{sA}, s{sS}, 5
        s_and_b32 s{sA}, s{sA}, 15
        s_cmp_lt_u32 s{sA}, 11; s_cselect_b32 s{sC}, s{sC}, 31; s_cselect_b32 s{sThree}, 1, 0
        """) + self.f_params(PB[1], sS) + self.f_params(PB[2], sC) + self.pack_params() + lines(f"""
        v_lshrrev_b32 v{vT}, 5, v0
        v_lshlrev_b32 v{vT}, 4, v{vT}
        v_bfe_u32 v{vT+1}, v0, 4, 1
        v_lshl_add_u32 v{vT}, v{vT+1}, 2, v{vT}
        v_bfe_u32 v{vT+1}, v0, 2, 2
        v_add_u32 v{vT}, v{vT}, v{vT+1}
        v_lshlrev_b32 v{vT}, 7, v{vT}
        v_and_b32 v{vT+2}, 3, v0
        v_lshl_add_u32 v{vT}, v{vT+2}, 3, v{vT}
        v_add_u32 v{vT}, s{sM0}, v{vT}
        v_lshrrev_b32 v{vT+1}, 1, v{vT+1}
        s_and_b32 s{sA+2}, s{sWave}, 2
        v_or_b32 v{vT+1}, s{sA+2}, v{vT+1}
        """)
        for ch in range(4):
            setup.append(f"v_xor_b32 v{PR+20+ch}, {ch}, v{vT+1}")
            setup.append(f"v_lshl_add_u32 v{PR+20+ch}, v{PR+20+ch}, 5, v{vT}")
        setup += [f"v_mul_u32_u24 v{PR+16}, 1280, v{vRow}", f"v_add_u32 v{PR+16}, v{vCol}, v{PR+16}"]
        setup += [f"v_add_u32 v{PR+16+j}, {j*(8*1280-1024)}, v{PR+16}" for j in range(1, 4)]
        setup += lines(f"""
        s_lshl_b32 s{sA}, s2, 1
        s_and_b32 s{sA+1}, s{sWave}, 1
        s_add_u32 s{sA}, s{sA}, s{sA+1}
        s_mul_i32 s{sA+1}, s{sA}, 20
        v_add_u32 v{vT}, s{sA+1}, v0
        v_lshrrev_b32 v{vT+1}, 4, v{vT}
        v_mul_u32_u24 v{vT+1}, {3456-2048}, v{vT+1}
        v_lshl_add_u32 v94, v{vT}, 7, v{vT+1}
        s_mul_i32 s{sA+1}, s{sA}, 14
        v_add_u32 v{vT}, s{sA+1}, v0
        v_mul_u32_u24 v{vT+1}, {(1<<20)//11+1}, v{vT}
        v_lshrrev_b32 v{vT+1}, 20, v{vT+1}
        v_mul_u32_u24 v{vT+1}, 2048, v{vT+1}
        v_lshl_add_u32 v91, v{vT}, 7, v{vT+1}
        s_lshr_b32 s{sDuty}, s2, 3
        s_and_b32 s{sDuty}, s{sDuty}, 3
        """) + self.p2_params()
        if cfg.get("verbose"): print("setup ops", len(setup), "first", n_first)
        order = list(cfg.get("order", ["X0", "X1", "X2", "X3", "X4", "X5", "X6", "X7", "X8", "X9", "B", "B", "B", "B"]))
        def queue_next():
            o = order.pop(0)
            if o[0] == "T":
                r0, n = {"Ta": (0, 8), "Tb": (256, 12), "Tc": (0, 4), "Td": (128, 16)}[o]
                self.emit(f"s_lshl_b32 s{sA+6}, s{sMb}, 1; s_and_b32 s{sA+5}, s{sWave}, 1; s_add_u32 s{sA+6}, s{sA+6}, s{sA+5}; s_mul_i32 s{sA+6}, s{sA+6}, {n}; "
                          f"s_lshl_b32 s{sA+5}, s{sRot}, 6; s_add_u32 s{sA+6}, s{sA+6}, s{sA+5}; s_add_u32 s{sA+6}, s{sA+6}, {r0}; v_add_u32 v90, s{sA+6}, v0; "
                          f"v_subrev_u32 v89, 640, v90; v_min_u32 v90, v89, v90; v_mul_u32_u24 v90, 3840, v90; s_mov_b64 exec, {(1<<n)-1}; "
                          f"buffer_load_dword v90, v90, s[{PB[0]}:{PB[0]+3}], s{PB[0]+5} offen; s_mov_b64 exec, -1", "T")
                if not order: return
                o = order.pop(0)
            if o == "B":
                self.pend += self.dma_items(self.next); self.next += 1
            else:
                i = int(o[1:]); sl = self.alloc(("X", i))
                if i: self.pend.append(("op", f"s_add_u32 m0, s{sM0}, {sl*16384}; s_add_u32 s{sX}, s{sX}, 128; s_cmp_eq_u32 s{sX}, 1280; s_cselect_b32 s{sX}, 0, s{sX}"))
                self.pend += [("ld", f"buffer_load_dwordx4 v{EP+4+j}, s[{SRDX}:{SRDX+3}], s{sX} offen offset:{1024*j} lds", f"X{i}") for j in range(4)]
        XW = cfg["XW"]; spl = cfg.get("spl", 12); done = 0
        for g in range(XW):
            if order[0] == "B": assert done >= n_first
            queue_next()
            for j in range(4):
                self.pop_ld()
                sp_ = cfg.get("spl0", spl) if g < 2 else spl
                if 4 * g + j + 1 == cfg.get("xw1", -1): sp_ = 1000
                for o in setup[done:done + sp_]: self.emit(o)
                done += sp_
        for o in setup[done:]: self.emit(o)
        self.stamp(1, True)
        def stats(i, j):
            for r in range(4 * j, 4 * j + 4):
                x = XB + 16 * i + r
                a(f"v_dot2c_f32_bf16 v{vSum}, s{sOne}, v{x}")
                a(f"v_dot2c_f32_bf16 v{vSq}, v{x}, v{x}")
        for i in range(10):
            vm.wait(a, f"X{i}", 4)
            if i in (0, 2, 4, 6, 8): self.stamp(2 + i // 2, True)
            sl = self.slot[("X", i)]
            for s in range(4):
                x = XB + 4 * (4 * i + s)
                a(f"ds_read_b128 v[{x}:{x+3}], v{XA+4*(sl>>2)+s} offset:{(sl&3)*16384}")
            if order and (order[0] != "B" or self.next < cfg["PB"]): queue_next()
            for j in range(4):
                if self.pend: self.pop_ld()
                if i: stats(i - 1, j)
            a("s_waitcnt lgkmcnt(0)")
            self.xdone.add(("X", i))
        a(f"s_xor_b32 s{sTok+1}, s{sTok+1}, 0x{TOKX:x}\ns_add_u32 s{sTok}, s{sTok}, 1")
        for j in range(4): stats(9, j)
        self.stamp(1)
        a(f"""
        s_mov_b32 s{sA}, 0x3acccccd
        s_nop 1
        v_mov_b32 v{vT}, v{vSum}
        v_mov_b32 v{vR}, v{vSq}
        s_nop 0
        v_permlane32_swap_b32 v{vSum}, v{vT}
        v_permlane32_swap_b32 v{vSq}, v{vR}
        s_nop 0
        v_add_f32 v{vSum}, v{vSum}, v{vT}
        v_add_f32 v{vSq}, v{vSq}, v{vR}
        v_mul_f32 v{vSum}, s{sA}, v{vSum}
        v_mul_f32 v{vSq}, s{sA}, v{vSq}
        v_cvt_pk_bf16_f32 v{vNegM}, 0, -v{vSum}
        v_fma_f32 v{vSq}, -v{vSum}, v{vSum}, v{vSq}
        """)
        NC = cfg["nc"]
        def first_frags():
            self.stamp(8, True)
            vm.wait(a, "B1" if cfg["bar2"] else "B0", 4)
            a("s_barrier")
            self.stamp(7, True)
            for G in range(2):
                for r in self.tr_reads(G): a(r)
        for st_ in range(NC):
            d0, c0 = self.center_ops(st_)
            if st_ == NC - 1:
                while order or self.pend:
                    if not self.pend: queue_next()
                    self.pop_ld()
                for op in d0: a(op)
                first_frags()
                for op in c0: a(op)
            else:
                if order and not self.pend: queue_next()
                for j, op in enumerate(d0 + c0):
                    a(op)
                    if j % 12 == 0 and self.pend: self.pop_ld()
        self.stamp(2)
        extra = Uniq()
        extra[130] = lines(f"""
            v_max_f32 v{vSq}, 0, v{vSq}
            v_cvt_pk_bf16_f32 v{vR}, 0, v{vSq}
            v_add_f32 v{vR}, 0x3727c5ac, v{vR}
            v_cvt_pk_bf16_f32 v{vR}, 0, v{vR}
            v_sqrt_f32 v{vR}, v{vR}; s_nop 0
            v_cvt_pk_bf16_f32 v{vD2}, 0, v{vR}
            v_rcp_f32 v{vR}, v{vD2}
            v_mul_f32 v{vD2}, v{vD2}, v{vD2}
            v_mul_f32 v{vC1}, 0x{NLOG2E:x}, v{vR}
            """)
        def pack_issue():
            sl = self.alloc("P")
            self.pend += [("op", f"s_add_u32 m0, s{sM0}, {sl*16384}")]
            self.pend += [("ld", f"buffer_load_dwordx4 v{PR+16+j}, s[{PK}:{PK+3}], s{PK+4} offen offset:{1024*j} lds", "PK") for j in range(4)]
        pk0 = cfg["pk0"]; pk1 = cfg["pk1"]
        extra[pk0] = pack_issue
        extra[pk0 + 1] = [lambda ch=ch: a(f"v_add_u32 v{PR+20+ch}, {self.slot['P']*16384}, v{PR+20+ch}") for ch in range(4)]
        rdl = [lambda: vm.wait(a, "PK", 4)]
        for ch in range(4):
            rdl.append(f"ds_read_b64_tr_b16 v[{PR+4*ch}:{PR+4*ch+1}], v{PR+20+ch}")
            rdl.append(f"ds_read_b64_tr_b16 v[{PR+4*ch+2}:{PR+4*ch+3}], v{PR+20+ch} offset:1024")
        extra[pk1] = rdl
        stl = []
        for ch in range(4):
            stl.append(lambda ch=ch: (self.xdone.add("P"), vm.issue(a, f"buffer_store_dwordx4 v[{PR+4*ch}:{PR+4*ch+3}], v{vL16}, s[{SRDW}:{SRDW+3}], s{PK+5+ch} offen sc1", "I")))
        extra[pk1 + 24] = [lambda: [f() for f in stl]] if cfg['stb'] > 1 else stl
        def touch(which, duty=None):
            def f():
                r, n, off = ((94, 20, 0), (91, 14, 2048))[which]
                ins = f"buffer_load_dword v{r}, v{r}, s[{PB[1]}:{PB[1]+3}], 0 offen offset:{off}"
                if duty is None:
                    a(f"s_mov_b64 exec, {(1 << n) - 1}"); vm.issue(a, ins, "T"); a("s_mov_b64 exec, -1")
                else:
                    L = a.newlabel("du")
                    a(f"s_cmp_lg_u32 s{sDuty}, {duty}\ns_cbranch_scc1 {L}\ns_mov_b64 exec, {(1 << n) - 1}\n{ins}\ns_mov_b64 exec, -1\n{L}:")
            return f
        for which, key in ((0, "tch"), (1, "tch2")):
            g_ = cfg[key]
            if isinstance(g_, list):
                for d_, gg in enumerate(g_): extra[gg] = touch(which, d_)
            elif 0 <= g_ < 160: extra[g_] = touch(which)
        if cfg["pub1"] < 160: extra[cfg["pub1"]] = lambda: (self.publish(1, ["I"]), self.retouch("P"))
        vq0 = None
        if cfg.get("b0fake"):
            vq0 = [((lambda gap: gap >= cfg["b0fake"]), (lambda k=k, u=u: vm.issue(a, f"buffer_load_dwordx4 {self.rr(self.BSLOT[k], 4*u)}, v{vLd + (u & 3)}, s[{PB[0]}:{PB[0]+3}], s{PB[0]+6} offen offset:{k*512}", f"PB{k}"))) for k in range(4) for u in range(5)]
        self.body(0, None, 3, center=True, extra=extra, vq=vq0, before=[(pk0 + 1, pk1), (pk1, pk1 + 16), (pk1 + 24, cfg["pub1"])])
        self.stamp(3)
        self.vPub = 86
        extra = Uniq()
        if cfg["tch2"] >= 160: extra[cfg["tch2"] - 160] = touch(1)
        if cfg["pub1"] >= 160: extra[cfg["pub1"] - 160] = lambda: self.publish(1, ["I"])
        extra[cfg["pub2"]] = lambda: (self.publish(2, ["E0"]), self.retouch("Q", PB[0] + 7))
        GR = 88
        def epoch():
            L = a.newlabel("ep")
            a(f"""
            s_or_b32 s{sA+8}, s2, s{sWave}
            s_cbranch_scc1 {L}
            v_mov_b32 v{GR}, s{sTok}
            s_mov_b32 s{sA+8}, {WS_EPOCH}
            s_mov_b64 exec, 1
            buffer_store_dword v{GR}, off, s[{SRDW}:{SRDW+3}], s{sA+8}
            s_mov_b64 exec, -1
            {L}:
            """)
        gc = cfg["gck"]
        assert gc % 16 == 6 and (not cfg["bar2"] or (gc // 16) % 2 == 1)
        gb = gc + 2
        extra[gb + 1] = epoch
        for j in range(4):
            extra[gc - 42 + 4 * j] = lambda j=j: self.flag_load(GR + 2 * j, sFlG, f"G{j}", 1, 512 * j)
            extra[gc - 9 + [0, 2, 4, 8][j]] = lambda j=j: self.flag_check(GR + 2 * j, sFlG, f"G{j}", 1, off=512 * j)
        after = lambda g0: (lambda gap: gap >= g0)
        vq = [(after(gb), f) for k in range(4) for f in self.b_loads(k)] if not cfg.get('b0fake') else []
        rest1 = self.body(1, self.epi_q(ACC[0], PB[0] + 7), 3, wrange=(4, cfg["w1"]), extra=extra, vq=vq, vq1=cfg["b1vq"])
        while self.pend: self.pop_ld()
        self.stamp(4)
        vm_split = list(vm.q)
        a(f"s_cmp_eq_u32 s{sThree}, 0")
        a(f"s_cbranch_scc1 {label}_two")
        self.vPub = 62
        pre = []
        def P(fn): pre.append(fn); return fn
        extra = Uniq()
        vq = [(after(0), P(f)) for _, f in rest1]
        st = {"q": False}
        q_l0 = lambda: self.flag_load(XB, sFl0, "Q0", 2)
        q_l1 = lambda: self.flag_load(XB + 2, sFl1, "Q1", 2)
        q_c0 = lambda: self.flag_check(XB, sFl0, "Q0", 2)
        def q_c1():
            self.flag_check(XB + 2, sFl1, "Q1", 2); st["q"] = True
        qc = cfg["qck"]
        extra[qc - 33] = q_l0; extra[qc - 29] = q_l1; extra[qc - 1] = q_c0; extra[qc + 3] = q_c1
        attl = []
        lastkv = [-100]
        def att_ok(gap, j):
            if not st["q"] or gap - lastkv[0] < cfg["kvgap"]: return False
            attl or attl.extend(self.att_loads(False))
            if j < 10:
                if self.next < 30 or self.pend: return False
                if "K" not in self.slot:
                    if not (self.free(7) and self.free(8)): return False
                    self.alloc("K", 7); self.alloc("V", 8)
            lastkv[0] = gap
            return True
        bq = []
        l0 = len(a.lines)
        def acc_free(b):
            return lambda gap: sum(1 for l in a.lines[l0:] if l.startswith("    v_accvgpr_read_b32") and b <= int(l.rsplit("a", 1)[1]) < b + 20) == 20
        grp_ = {k: [(after(4 * (5 * (k - 4) + 10)), f) for f in self.b_loads(k)] for k in range(4, 8)}
        for k in (8, 9, 10): grp_[k] = [(acc_free(int(self.BSLOT[k][1:])), f) for f in self.b_loads(k)]
        cur = [None]
        def seq(k, u, c):
            def ok(gap):
                if cur[0] not in (None, k) or not c(gap): return False
                cur[0] = k if u < 4 else None
                return True
            return ok
        for k in cfg["b2order"]: bq += [(seq(k, u, c), f) for u, (c, f) in enumerate(grp_[k])]
        for k in (4, 5): [P(f) for _, f in grp_[k]]
        P(q_l0); P(q_l1)
        for k in (6, 7): [P(f) for _, f in grp_[k]]
        P(q_c0); P(q_c1)
        pre.append("att")
        for k in (8, 9, 10): [P(f) for _, f in grp_[k]]
        for j in list(range(10, 15)) + list(range(10)): vq.append((lambda gap, j=j: att_ok(gap, j), lambda j=j: attl[j]()))
        vq += bq
        wq = []
        for s in range(7):
            ok = lambda gap, s=s: self.next >= 30 and not self.pend and (self.owner[s] == ("WO", s) or self.free(s))
            wq += [(ok, f) for f in self.wo_loads(s)]
        vq += wq
        extra[cfg["pub3"]] = lambda: (self.publish(3, ["E1"]), self.retouch("F", PB[1] + 7))
        rest = self.body(2, self.epi_f(ACC[1], PB[1] + 7), 3, wrange=(4, cfg["w2"]), extra=extra, vq=vq, vq1=cfg["vq1"], vq2=cfg["vq2"])
        self.stamp(5)
        wfs = [f for _, f in wq]
        if cur[0] is not None:
            cf = [f for _, f in grp_[cur[0]]]
            rest = [x for x in rest if x[1] in cf] + [x for x in rest if x[1] not in cf]
        late = [f for c_, f in rest if f not in wfs] + [P(f) for k in (11, 12) for f in self.b_loads(k)]
        late += [f for c_, f in rest if f in wfs and c_(160)]
        ntail = cfg["ntail"]
        assert 15 - vm.q.count("KV") <= ntail and "K" in self.slot
        post = late[ntail:]; late = late[:ntail]
        wrest = [f for c_, f in rest if f in wfs and f not in late]
        post = [f for f in post if f not in wfs]
        pre[:] = [f for f in pre if f not in post]
        for f in wfs:
            if f not in wrest: P(f)
        def tail(ops, inter, tag):
            inter = list(inter); n = len(ops); k = len(inter); j = 0
            for i, op in enumerate(ops):
                self.emit(op, tag)
                while j < k and j < (i + 1) * k // n:
                    inter[j](); j += 1
        a("s_nop 5")
        if cfg.get("f3tail"): late.insert(cfg["f3tail"], P(lambda: self.flag_load(vFl, sFl0, "F3", 3)))
        tail(self.epi_f_tail(ACC[0], PB[2] + 7), late, "E2")
        if cfg.get("verbose"): print("tail loads", len(late), "after join: B loads", len(post), "wo loads", len(wrest))
        self.lastbar = 100
        self.alloc("O", 9)
        a.label(f"{label}_join")
        self.stamp(6)
        self.vPub = 20
        if not cfg.get("f3tail"): self.flag_load(vFl, sFl0, "F3", 3)
        a(f"s_lshr_b32 s{sA}, s{sM0}, 2\nv_add_u32 v{vA[0]}, s{sA}, v{vL16}")
        for i in range(1, 4): a(f"v_add_u32 v{vA[i]}, 1024, v{vA[i-1]}\nv_and_b32 v{vA[i]}, 4095, v{vA[i]}")
        a("s_barrier")
        def xaddr(j, d, t1, t2):
            return [f"v_add_u32 v{t1}, {64*j}, v0", f"v_mul_u32_u24 v{t2}, {(1<<16)//10+1}, v{t1}", f"v_lshrrev_b32 v{t2}, 16, v{t2}",
                    f"v_mul_u32_u24 v{t2}, {1280-160}, v{t2}", f"v_lshl_add_u32 v{t2}, v{t1}, 4, v{t2}", f"v_add_u32 v{d}, s{sXo}, v{t2}"]
        def xl(j):
            for o in xaddr(j, 114, 114, 115): a(o)
            a(f"v_accvgpr_write_b32 a{60+j}, v114")
            a(f"s_mul_i32 s{sA+2}, s{sWave}, 2560\ns_add_u32 m0, s{sA+2}, {102400 + 1024*j}")
            a("s_mov_b32 exec_hi, 0" if j == 2 else "s_nop 0")
            vm.issue(a, f"global_load_lds_dwordx4 v114, s[4:5]", "XO")
            if j == 2: a("s_mov_b32 exec_hi, -1")
        assert not post
        free_ = [lambda j=j: xl(j) for j in range(3)] + post + wrest
        n1 = cfg["natt1"]; n2 = cfg["natt2"]
        al = free_[n1:]
        aa = [f for k in range(4) for f in self.a_loads(k)]
        n0 = cfg.get("natt0", n1)
        inter = free_[:n0] + [lambda: self.flag_check(vFl, sFl0, "F3", 3)]
        mix = list(aa[:n2])
        for j_, f_ in enumerate(free_[n0:n1]): mix.insert((j_ + 1) * (n2 + n1 - n0) // (n1 - n0) - 1, f_)
        inter += mix
        inter.insert(min(len(inter), cfg["pub4"]), lambda: self.publish(4, ["E2"]))
        ost = self.attention(inter)
        self.stamp(8)
        XR = 4; vX = 14; vW = 25; vRd = 28; vXo = [1, 2, 29]
        KF = cfg["kf"]
        wl = [f for f in al if f not in post]
        Q_ = [(0, f) for f in ost + aa[n2:] + [f for f in al if f in post]]
        grp = lambda e, fs: [(e, f) for f in fs]
        A_ = lambda k: grp(max(self.AEARLY[k], KF if k >= 8 else 0), self.a_loads(k))
        B_ = lambda k: grp(0, self.b_loads(k))
        for it in cfg["forder"]:
            Q_ += A_(int(it[1:])) if it[0] == "A" else B_(int(it[1:])) if it[0] == "B" else grp(0, wl) if it == "W" else grp(5, ["x0", "x1", "x2"])
        OA = 176
        def wo_reads(T):
            b = WR[T % 6]
            return [f"ds_read_b128 v[{b+4*u}:{b+4*u+3}], v{vL16 if T < 12 else 15} offset:{(T % 12)*5120 + u*1024}" for u in range(5)]
        def o_load(T):
            def f():
                if T % 4 == 0: a(f"s_add_u32 s{sGb}, s{sOld}, {T*1024}")
                vm.issue(a, f"buffer_load_dwordx4 a[{OA+4*T}:{OA+4*T+3}], v{vL16}, s[{SRDW}:{SRDW+3}], s{sGb} offen offset:{1024*(T&3)} sc1", f"PO{T//2}")
            return f
        KB = cfg["kbar"]; KO = cfg["ko"]; ns = cfg["nside"]; NOF = cfg["no_f"]; KX = cfg["kx"]
        R = 32; FO = 236; SQ = [92, 4, 8, 16, 20]; XU = 216
        WR = [116, 136, 156, 176, 196, 96]
        lq = LQ()
        def mf(k, i, u):
            t_ = (i * 5 + u) * 4
            d = f"a[{t_-20}:{t_-17}]" if i else f"v[{FO+t_}:{FO+t_+3}]"
            a(f"v_mfma_f32_16x16x32_bf16 {d}, {self.rr(self.BSLOT[k], 4*u)}, {self.rr(self.ASLOT[k], 4*i)}, {'0' if k == 0 else d}")
        def wait_ab(k):
            assert vm.q.count(f"PB{k}") == 5 and vm.q.count(f"PA{k}") == 4
            vm.wait(a, f"PA{k}" if vm.last(f"PA{k}") > vm.last(f"PB{k}") else f"PB{k}")
        olist = [o_load(T) for T in range(20)]
        for k in range(KX):
            if k % 2 == 0: self.mark(10 + k // 2)
            wait_ab(k)
            side = []
            if k == KF - 2: side += [lambda: self.flag_load(vFl, sFl0, "F4", 4)]
            if k == cfg.get("kp5", 3) and not cfg["nokb"]: side += [lambda: self.publish(5, ["O"])]
            if cfg["nokb"] and k == 2:
                side += [lambda o=o: a(o) for o in (f"v_and_b32 v1, 15, v0", f"v_mul_u32_u24 v2, 160, v1", f"v_lshrrev_b32 v1, 4, v0", f"v_lshl_add_u32 v2, v1, 3, v2",
                                                     f"s_add_u32 s{sA+2}, s{sA+2}, 102400", f"v_add_u32 v1, s{sA+2}, v2")]
            late_side = []
            if cfg["nokb"] and k == 3:
                side += [lambda: (vm.wait(a, "O"), [lq.issue(a, f"ds_read_b64 v[{XR+2*u}:{XR+2*u+1}], v1 offset:{32*u}", "XL") for u in range(5)])]
                late_side = [lambda: a(f"v_mov_b32 v{vX}, v2"), lambda: (lq.wait(a, "XL"), self.publish(5, []))]
            if k == KF: self.flag_check(vFl, sFl0, "F4", 4)
            if k == KO - 2: side += [lambda: self.flag_load(vFl, sFl0, "F5", 5)]
            if k == KO: self.flag_check(vFl, sFl0, "F5", 5, half=True)
            room = ns[k] - (1 if side else 0)
            for it in list(Q_):
                if room > 0 and it[0] <= k:
                    Q_.remove(it); room -= 1
                    side.append((lambda j=int(it[1][1]): xl(j)) if isinstance(it[1], str) else it[1])
            if k >= KO and not Q_ and room > 0: side += olist[:room]; olist = olist[room:]
            if k == 4:
                side += [lambda j=j: a(f"v_accvgpr_read_b32 v{vXo[j]}, a{60+j}") for j in range(3)]
            if k == 5:
                side += [lambda o=o: a(o) for o in lines(f"""
                    v_add_u32 v15, {12*5120}, v{vL16}
                    s_mov_b32 s{sA}, 0x{NLOG2E:x}
                    s_mov_b32 s{sA+1}, 0xffff0000
                    """)]
            if k == 6:
                for i in range(4):
                    d = vRd if i == 0 else vW + i - 1
                    side += [lambda o=o: a(o) for o in (f"v_lshrrev_b32 v3, 10, v{vA[i]}", f"v_mul_u32_u24 v3, 15360, v3",
                                                         f"v_add_u32 v3, {102400 + max(i-1, 0)*5120}, v3", f"v_add_u32 v{d}, v3, v{vL16}")]
            side += late_side
            if k == KB - 1 and not cfg['nokb']:
                side += [lambda: (vm.wait(a, "XO", 3), a(f"s_add_u32 s{sA+2}, s{sA+2}, 102400\nv_add_u32 v3, s{sA+2}, v{vX}"))]
                side += [lambda u=u: lq.issue(a, f"ds_read_b64 v[{XR+2*u}:{XR+2*u+1}], v3 offset:{32*u}", "XL") for u in range(5)]
            if k == KB and not cfg['nokb']:
                lq.wait(a, "XL"); vm.wait(a, "WO", 25); a("s_barrier")
            nsd = len(side); j = 0
            for i in range(4):
                for u in range(5):
                    mf(k, i, u)
                    while j < nsd and j < (i * 5 + u + 1) * nsd // 20:
                        side[j](); j += 1
        assert not Q_, len(Q_)
        assert KB < KX and KO < KX and KX >= 10
        self.mark(16)
        nk = 14 - KX
        base_side = olist[:max(NOF - (20 - len(olist)), 0)]; olist = olist[len(base_side):]
        ol_ = base_side
        base_side = [lambda r=r, T=T: lq.issue(a, r, f"W{T}") for T in range(5) for r in wo_reads(T)]
        base_side += [lambda j=j: a(f"v_and_b32 v{XU+j}, s{sA+1}, v{XR+(j>>1)}" if j & 1 else f"v_lshlrev_b32 v{XU+j}, 16, v{XR+(j>>1)}") for j in range(20)]
        for j_, f_ in enumerate(ol_): base_side.insert(j_ * (45 + len(ol_)) // len(ol_), f_)
        nb_ = len(base_side); jb = 0; m = 0
        for ri, i in enumerate((1, 2, 3, 0)):
            pw = []
            if ri:
                ip = (1, 2, 3)[ri - 1]
                pw = [f"ds_write_b128 v{vW+ip-1}, a[{(ip*5+u)*4-20}:{(ip*5+u)*4-17}] offset:{u*1024}" for u in range(5)]
            mm = 0
            for k in range(KX, 14):
                if ri == 0: wait_ab(k)
                for u in range(5):
                    mf(k, i, u); m += 1; mm += 1
                    if pw and mm >= 4 and (mm - 4) * 5 >= (5 - len(pw)) * (5 * nk - 4): lq.issue(a, pw.pop(0), "PW")
                    else:
                        while jb < nb_ and jb < m * nb_ // (20 * nk):
                            base_side[jb](); jb += 1
            for w_ in pw: lq.issue(a, w_, "PW")
        while jb < nb_:
            base_side[jb](); jb += 1
        self.stamp(7)
        work = [("f", f) for f in olist[:2]] + [("bar",)]
        for j in range(15): work.append(("l", f"ds_read_b128 v[{R+4*j}:{R+4*j+3}], v{vRd} offset:{j*1024}", "PR"))
        work += [("f", f) for f in olist[2:]]
        pk2 = lambda op, d, x, y: "\n".join(f"{op} v[{d+2*j}:{d+2*j+1}], v[{x+2*j}:{x+2*j+1}], {y(j)}" for j in range(10))
        work.append(("v", f"v_sub_u32 v3, v{vRd}, v{vL16}")); work.append(("v", f"v_add_u32 v3, v3, v{vX}"))
        work.append(("lw", "PR"))
        work.append(("v", "\n".join([pk2("v_pk_add_f32", FO, FO, lambda j: f"v[{R+2*j}:{R+2*j+1}]"),
                                     pk2("v_pk_add_f32", R+20, R+20, lambda j: f"v[{R+40+2*j}:{R+40+2*j+1}]"),
                                     pk2("v_pk_add_f32", FO, FO, lambda j: f"v[{R+20+2*j}:{R+20+2*j+1}]"),
                                     pk2("v_pk_mul_f32", R, FO, lambda j: f"s[{sA}:{sA+1}] op_sel_hi:[1,0]")])))
        for j in range(20): work.append(("v", f"v_exp_f32 v{R+j}, v{R+j}"))
        for j in range(20): work.append(("v", f"v_add_f32 v{R+j}, 1.0, v{R+j}"))
        for j in range(20): work.append(("v", f"v_rcp_f32 v{R+j}, v{R+j}"))
        def do(wk):
            if wk[0] == "v": a(wk[1])
            elif wk[0] == "f": wk[1]()
            elif wk[0] == "l": lq.issue(a, wk[1], wk[2])
            elif wk[0] == "lw": lq.wait(a, wk[1])
            elif wk[0] == "bar":
                lq.wait(a, "PW"); self.mark(20); a("s_barrier"); self.mark(21)
        for j in range(20): work.append(("v", f"v_mul_f32 v{FO+j}, v{FO+j}, v{R+j}"))
        nw = len(work); done = 0; m = 0
        TU = cfg["tu"]; NM = 5 * TU
        def smf(T, u):
            d = f"v[{SQ[u]}:{SQ[u]+3}]"; b = WR[T % 6]
            a(f"v_mfma_f32_16x16x32_bf16 {d}, v[{b+4*u}:{b+4*u+3}], a[{OA+4*T}:{OA+4*T+3}], {'0' if T == 0 else d}")
        for T in range(TU):
            if T % 4 == 0: vm.wait(a, f"PO{T//2+1}", 2)
            if T in (0, 10): self.mark({0: 17, 10: 18}[T])
            if T % 3 == 0: lq.wait(a, f"W{T+2}")
            rd = wo_reads(T + 5) if T + 5 < 20 else []
            for u in range(5):
                smf(T, u); m += 1
                if rd: lq.issue(a, rd.pop(0), f"W{T+5}")
                while done < nw and done < m * nw // NM:
                    do(work[done]); done += 1
        assert done == nw and TU >= 15
        self.mark(19)
        vm.wait(a, "PO9", 2); lq.wait(a, "W19")
        def comb(u):
            f0 = FO + 4 * u; o = 64 + 2 * u
            return [f"v_fma_f32 v{f0+j}, v{f0+j}, v{SQ[u]+j}, v{XU+4*u+j}" for j in range(4)] + \
                   [f"v_cvt_pk_bf16_f32 v{o}, v{f0}, v{f0+1}", f"v_cvt_pk_bf16_f32 v{o+1}, v{f0+2}, v{f0+3}", f"ds_write_b64 v3, v[{o}:{o+1}] offset:{32*u}"]
        for u in range(5):
            c_ = comb(u - 2) if u >= 2 else []
            if u == 2: a(f"s_nop {max(8 - (20 - TU) - 2, 0)}")
            for T in range(TU, 20):
                smf(T, u)
                for o in c_[:2]: a(o)
                c_ = c_[2:]
            for o in c_: a(o)
        for o in comb(3): a(o)
        a("s_nop 0")
        for o in comb(4): a(o)
        a("s_waitcnt lgkmcnt(0)")
        for j in range(3): a(f"ds_read_b128 v[{76+4*j}:{79+4*j}], v{vRd} offset:{1024*j}")
        for j in range(3):
            a(f"s_waitcnt lgkmcnt({2-j})")
            if j == 2: a("s_mov_b32 exec_hi, 0")
            a(f"global_store_dwordx4 v{vXo[j]}, v[{76+4*j}:{79+4*j}], s[6:7] {cfg.get('scO', '')}")
        a("s_mov_b32 exec_hi, -1")
        self.mark(22)
        if self.stamps:
            a("s_waitcnt vmcnt(0)")
            a(f"s_memtime s[{sA}:{sA+1}]")
            a(f"s_memrealtime s[{sA+2}:{sA+3}]")
            a("s_waitcnt lgkmcnt(0)")
            for i in range(1, 8):
                a(f"s_sub_u32 s{sA+4}, s{ST0+2*(i-1)}, s0\nv_mov_b32 v{32+i}, s{sA+4}")
            a(f"s_sub_u32 s{sA+4}, s{sA}, s0\nv_mov_b32 v40, s{sA+4}\nv_mov_b32 v41, s{sA+2}")
            a(f"s_sub_u32 s{sA+4}, s{ST0+14}, s0\nv_mov_b32 v42, s{sA+4}")
            a(f"""
            v_mov_b32 v32, s1
            s_lshl_b32 s{sA}, s2, 2
            s_add_u32 s{sA}, s{sA}, s{sWave}
            s_lshl_b32 s{sA}, s{sA}, 6
            s_add_u32 s{sA}, s{sA}, {WS_STAMP}
            s_mov_b64 exec, 1
            buffer_store_dwordx4 v[32:35], off, s[{SRDW}:{SRDW+3}], s{sA}
            buffer_store_dwordx4 v[36:39], off, s[{SRDW}:{SRDW+3}], s{sA} offset:16
            buffer_store_dwordx4 v[40:43], off, s[{SRDW}:{SRDW+3}], s{sA} offset:32
            """)
        a("s_endpgm")
        a.label(f"{label}_two")
        self.stamp(5)
        self.vm = vm = VM()
        self.vPub = 62
        self.vm.q = list(vm_split)
        self.vm.wait(a, [t_ for t_ in self.vm.q if t_[0] == "B" and t_[1:].isdigit()][-1])
        a("s_waitcnt lgkmcnt(0)\ns_barrier\ns_nop 4")
        flat = []
        for f in pre: flat += self.att_loads() if f == "att" else [f]
        nb_ = cfg["nbtail"]
        tail(self.epi_f_tail(ACC[1], PB[1] + 7), flat[:nb_], "E1")
        for i, f in enumerate(flat[nb_:]):
            if i == cfg["nbpub"]:
                self.publish(3, ["E1"]); a("s_nop 1"); self.publish(4, []); self.retouch("F", PB[1] + 7)
            if i % 8 == 3 and cfg.get("markT", 2) == 2: self.mark(i // 8)
            f()
        a("s_waitcnt vmcnt(0)")
        a(f"s_branch {label}_join")
        for s in self.slow: a(s)
        a.label(f"{label}_end")
        a("s_endpgm")
        a.end_kernel(label, 512, 102, 256, 256, 256, 163840)
        return a.text("""Generated by dev/fused2.py (own generator). One persistent kernel, 256 workgroups of 4 waves, one per CU.
kernarg: 0 A_x, 8 A_wqkv, 16 A_wo, 24 B_x (unused by the reference), 32 w_gate, 40 w_up, 48 w_down, 56 out, 64 debug, 72 ws
Phase 1: 128 rows of x per workgroup stay in registers (LayerNorm: centred in place, 1/std applied in the epilogues);
  up to three 128-column tasks of x@[wqkv | w_gate,w_up] with the weights streamed through an LDS ring (LDS-DMA + transposing reads);
  q,k,v and h = silu(g)*u go to ws; w_down / wo are repacked into MFMA fragment order in ws.
Attention: 64 rows x 4 heads per workgroup (true row max softmax), result to ws.
Phase 2: 64x80 output tile per workgroup: h@w_down (K split over the waves), o@wo, out = x + s*silu(f).
Hand-offs between workgroups: write-through stores, then a per-wave flag holding a token that is new in every launch
  (derived from a word in ws that workgroup 0 advances), consumers look at the flags before they load.""")

if __name__ == "__main__":
    stamps = "--stamps" in sys.argv
    pos = [x for x in sys.argv[1:] if not x.startswith("--")]
    cfg = json.loads(pos[1]) if len(pos) > 1 else {}
    open(pos[0], "w").write(Gen(cfg, stamps).build())
```

```python
import sys, json, struct; sys.path.insert(0, "dev")
from asmlib import *

WS_H = 0
WS_O = 0x780000
WS_WD = 0xA00000
WS_WO = 0xD00000
WS_QKV = 0x1000000
WS_FLAG = 0x1800000
WS_EPOCH = WS_FLAG - 256
WS_STAMP = 0x1900000
WS_SIZE = 0x2000000
OOB = 0x4000000
TOKX = 0x5bd1e995
NLOG2E = 0xbfb8aa3b
def f2u(x): return struct.unpack("<I", struct.pack("<f", x))[0]
C_SM = f2u(20 ** -0.5 * 1.4426950408889634)

XB = 96; EP = 32; ACC = [0, 64]; WF = 128; NWB = 3
vLd = 1; vTr = 5
vSF = 17; vL8 = 18; vC1 = 19; vD2 = 20; vR = 21; vNegM = 22; vSum = 23; vSq = 24
vRow = 25; vCol = 26; vT = 27
vDbg = 30; vL16 = 31
vFl = 22
vQa = 28; vKa = 29
vA = [16, 17, 19, 24]
PR = 64
sOOB = 3
pQKV = 76; pWS = 78; pWO = 80; pDN = 82; pG = 84; pU = 86
sWave = 8; sMb64 = 9; sHalf = 10; sM0 = 11; sSoff = 12; sStep = 13; sWrap = 14; sThree = 15
SRDW = 16
SRDX = 20
sGa = 20; sGb = 21; sDuty = 96
PB = [24, 32, 40]
PK = 48
sOne = 57; sLo = 58; sHi = 59
sTok = 60
sFlag = 62; sFl0 = 63; sFl1 = 64; sFlG = 65
sAb = 66; sAb2 = 67; sBb = 68; sBb2 = 69; sOld = 70; sWOb = 71; sOst = 72; sOst2 = 73; sKV = 74; sXo = 75
ST0 = 76
sMb = 88; sJ = 89; sRot = 90; sNb = 91
sA = 92

class VM:
    def __init__(self): self.q = []
    def issue(self, a, ins, tag):
        a(ins); self.q.append(tag)
    def last(self, tag): return max(i for i, t in enumerate(self.q) if t == tag)
    def wait(self, a, tag, cnt=None):
        if cnt is not None: assert self.q.count(tag) == cnt, (tag, self.q.count(tag))
        a(f"s_waitcnt vmcnt({min(len(self.q) - 1 - self.last(tag), 63)})")
class LQ:
    def __init__(self): self.q = []
    def issue(self, a, ins, tag):
        a(ins); self.q.append(tag)
    def wait(self, a, tag):
        idx = max(i for i, t in enumerate(self.q) if t == tag)
        a(f"s_waitcnt lgkmcnt({min(len(self.q) - 1 - idx, 15)})")
class Uniq(dict):
    def __setitem__(self, k, v):
        assert k not in self, ("duplicate gap", k)
        dict.__setitem__(self, k, v)
def lines(s): return [l.split(";;")[0].strip() for l in s.split("\n") if l.split(";;")[0].strip()]
DIV5 = (1 << 16) // 5 + 1
DIV3 = (1 << 16) // 3 + 1

class Gen:
    def __init__(self, cfg, stamps):
        self.cfg = dict(dict(LA=6, XW=4, spl=20, PB=2, bar2=True, rpat=[2, 2, 2, 2], dmagap=2, spin=3000, cap=5.0,
                             rotm=0x7520, rotx=0x1210, tch=-1, tch2=110, pk0=18, pk1=70, pub1=124, pub2=124, gck=118, qck=70, pub3=126, qsh=15,
                             w1=100, w2=96, b1vq=1, vq1=1, vq2=1, ntail=20, natt1=30, natt2=16, pub4=12,
                             nside=[5] * 14, kvgap=6, tu=16, nokb=1, nc=3, p2x=2, nbtail=14, nbpub=12, stb=1, stq=False, kf=4, b2order=[4, 8, 5, 9, 6, 10, 7], forder=['A4', 'A5', 'A6', 'A7', 'W', 'A8', 'A9', 'A10', 'A11', 'A12', 'A13', 'B13'], kbar=10, ko=10, no_f=16, kx=11), **cfg)
        self.stamps = stamps
        self.a = Asm(); self.vm = VM()
        self.label = NAME + "_kernel"
        self.slot = {}; self.owner = [None] * 10
        self.xdone = set(); self.lastbar = -10
        self.next = 0; self.pend = []; self.slow = []
        self.vPub = 92
    def stamp(self, i, pro=False):
        if self.cfg.get("pst") and i and not pro: return
        if pro and not self.cfg.get("pst"): return
        if self.stamps: self.a(f"s_memtime s[{ST0+2*(i-1)}:{ST0+2*(i-1)+1}]" if i else "s_memtime s[0:1]")
    def mark(self, i):
        if self.cfg.get("marks"):
            r = 22
            self.a(f"""
            s_memtime s[{r}:{r+1}]
            s_waitcnt lgkmcnt(0)
            s_sub_u32 s{r}, s{r}, s0
            v_mov_b32 v{vDbg}, s{r}
            s_lshl_b32 s{r}, s2, 2
            s_add_u32 s{r}, s{r}, s{sWave}
            s_lshl_b32 s{r}, s{r}, 7
            s_add_u32 s{r}, s{r}, {WS_STAMP + 0x40000 + 4*i}
            s_mov_b64 exec, 1
            """)
            self.vm.issue(self.a, f"buffer_store_dword v{vDbg}, off, s[{SRDW}:{SRDW+3}], s{r}", "mk")
            self.a("s_mov_b64 exec, -1\ns_nop 1")
    def emit(self, op, tag="st"):
        for o in op.split(";"):
            o = o.strip()
            if o.startswith(("global_", "buffer_")): self.vm.issue(self.a, o, tag)
            else: self.a(o)
    def free(self, s):
        o = self.owner[s]
        if o is None: return True
        if o[0] == "B": return o[1] <= self.lastbar - 1
        return o in self.xdone
    def cands(self, name):
        c = [s for s in range(10) if self.free(s)]
        if name[0] == "B" and name[1] >= self.cfg.get("avoid_from", 23): c = [s for s in reversed(c) if s not in (7, 8)]
        return c
    def alloc(self, name, want=None):
        c = self.cands(name) if want is None else [s for s in range(10) if self.free(s) and s == want]
        assert c, ("no free slot", name, self.owner, self.lastbar)
        s = c[0]; self.owner[s] = name; self.slot[name] = s
        return s

    def pos_ops(self, f, d):
        t = sA + 4
        return [f"s_lshr_b32 s{t}, s{f}, 2", f"s_mul_i32 s{t}, s{t}, 6", f"s_lshl_b32 s{d}, s{f}, 1", f"s_add_u32 s{t}, s{t}, s{d}",
                f"s_sub_u32 s{t+1}, s{f}, 16", f"s_mul_i32 s{t+1}, s{t+1}, {DIV3}", f"s_lshr_b32 s{t+1}, s{t+1}, 16", f"s_lshl_b32 s{t+1}, s{t+1}, 3",
                f"s_add_u32 s{t+1}, s{t+1}, s{d}", f"s_sub_u32 s{t+1}, s{t+1}, 24",
                f"s_cmp_lt_u32 s{f}, 16; s_cselect_b32 s{d}, s{t}, s{t+1}"]
    def f_params(self, P, code):
        t = sA
        return lines(f"""
        s_mov_b32 s{P+3}, 0x20000
        s_cmp_lt_u32 s{sWave}, 2; s_cselect_b32 s{P}, s{pG}, s{pU}; s_cselect_b32 s{P+1}, s{pG+1}, s{pU+1}
        s_cmp_lt_u32 s{code}, 27; s_cselect_b32 s{P+2}, {640*3456}, 0
        s_movk_i32 s{P+4}, 3456
        s_lshl_b32 s{P+5}, s{code}, 7
        s_mul_i32 s{P+6}, s{sRot}, {64*3456}
        """) + self.pos_ops(code, P + 7) + lines(f"""
        s_lshl_b32 s{t}, s{sMb}, 1
        s_lshr_b32 s{t+1}, s{sWave}, 1
        s_add_u32 s{t}, s{t}, s{t+1}
        s_mul_i32 s{t}, s{t}, 56
        s_add_u32 s{P+7}, s{P+7}, s{t}
        s_lshl_b32 s{P+7}, s{P+7}, 12
        s_and_b32 s{t+1}, s{sWave}, 1
        s_lshl_b32 s{t+1}, s{t+1}, 11
        s_add_u32 s{P+7}, s{P+7}, s{t+1}
        """)
    def q_params(self, P, q):
        t = sA
        return lines(f"""
        s_mov_b32 s{P+3}, 0x20000
        s_mov_b32 s{P}, s{pQKV}
        s_mov_b32 s{P+1}, s{pQKV+1}
        s_movk_i32 s{P+4}, 3840
        s_lshr_b32 s{t}, s{sWave}, 1
        s_lshl_b32 s{P+5}, s{q}, 1
        s_add_u32 s{P+5}, s{P+5}, s{t}
        s_lshl_b32 s{P+5}, s{P+5}, 7
        s_mul_i32 s{P+6}, s{sRot}, {64*3840}
        s_lshl_b32 s{t}, s{sMb}, 2
        s_add_u32 s{t}, s{t}, s{sWave}
        s_mul_i32 s{t}, s{t}, 122880
        s_lshl_b32 s{t+1}, s{q}, 13
        s_add_u32 s{t}, s{t}, s{t+1}
        s_add_u32 s{t}, s{t}, {WS_QKV}
        s_cmp_lt_u32 s{q}, 15; s_cselect_b32 s{P+2}, {640*3840}, 0; s_cselect_b32 s{P+7}, s{t}, s{sOOB}
        """)
    def pack_params(self):
        P = PK; t = sA
        r = lines(f"""
        s_mov_b32 s{P+3}, 0x20000
        s_mov_b32 s{t+2}, {640*1280}
        s_cmp_lt_u32 s2, 135; s_cselect_b32 s{P}, s{pDN}, s{pWO}; s_cselect_b32 s{P+1}, s{pDN+1}, s{pWO+1}; s_cselect_b32 s{P+2}, {1728*1280}, s{t+2}; s_cselect_b32 s{t}, 0, 135
        s_sub_u32 s{t}, s2, s{t}
        s_mul_i32 s{t+2}, s{t}, {DIV5}
        s_lshr_b32 s{t+2}, s{t+2}, 16
        s_mul_i32 s{t+3}, s{t+2}, 5
        s_sub_u32 s{t+1}, s{t}, s{t+3}
        s_mul_i32 s{P+4}, s{t+2}, {64*1280}
        s_lshl_b32 s{t+3}, s{t+1}, 8
        s_add_u32 s{P+4}, s{P+4}, s{t+3}
        s_lshr_b32 s{t+3}, s{sWave}, 1
        s_lshl_b32 s{t+3}, s{t+3}, 7
        s_add_u32 s{P+4}, s{P+4}, s{t+3}
        """) + self.pos_ops(t + 2, t + 3) + lines(f"""
        s_lshl_b32 s{t+2}, s{t+2}, 1
        s_mov_b32 s{t}, {WS_WO}
        s_movk_i32 s{t+6}, 100
        s_cmp_lt_u32 s2, 135; s_cselect_b32 s{t+3}, s{t+3}, s{t+2}; s_cselect_b32 s{t}, {WS_WD}, s{t}; s_cselect_b32 s{t+6}, 280, s{t+6}
        s_and_b32 s{t+2}, s{sWave}, 1
        s_add_u32 s{t+3}, s{t+3}, s{t+2}
        s_mul_i32 s{t+3}, s{t+3}, 5120
        s_add_u32 s{t}, s{t}, s{t+3}
        s_cmp_lt_u32 s2, 185; s_cselect_b32 s{P+2}, s{P+2}, 0; s_cselect_b32 s{t}, s{t}, s{sOOB}
        s_lshl_b32 s{t+1}, s{t+1}, 3
        s_and_b32 s{t+2}, s{sWave}, 2
        s_lshl_b32 s{t+2}, s{t+2}, 1
        s_add_u32 s{t+1}, s{t+1}, s{t+2}
        s_sub_u32 s{t+6}, s{t+6}, 5
        """)
        for ch in range(4):
            r += lines(f"""
            s_add_u32 s{t+2}, s{t+1}, {ch}
            s_mul_i32 s{t+3}, s{t+2}, {DIV5}
            s_lshr_b32 s{t+3}, s{t+3}, 16
            s_mul_i32 s{t+3}, s{t+3}, s{t+6}
            s_add_u32 s{t+3}, s{t+3}, s{t+2}
            s_lshl_b32 s{t+3}, s{t+3}, 10
            s_add_u32 s{P+5+ch}, s{t+3}, s{t}
            """)
        return r
    def p2_params(self):
        t = sA
        if self.cfg.get("p2x") == 2:
            return lines(f"""
            s_lshr_b32 s{t}, s{sJ}, 1
            s_add_u32 s{sNb}, s{sMb}, s{t}
            s_and_b32 s{sNb}, s{sNb}, 3
            s_lshl_b32 s{t}, s{sHalf}, 2
            s_or_b32 s{sNb}, s{sNb}, s{t}
            s_and_b32 s{t}, s{sJ}, 1
            s_lshl_b32 s{sMb64}, s{sMb}, 1
            s_add_u32 s{sMb64}, s{sMb64}, s{t}
            s_lshl_b32 s{t}, s{t}, 2
            s_lshl_b32 s{sHalf}, 0x0f0f0f0f, s{t}
            """) + self.p2_params0()[5:]
        if self.cfg.get("p2x"):
            r = self.p2_params0()[5:]
            return lines(f"""
            s_add_u32 s{sNb}, s{sMb}, s{sJ}
            s_and_b32 s{sNb}, s{sNb}, 3
            s_lshl_b32 s{t}, s{sHalf}, 2
            s_or_b32 s{sNb}, s{sNb}, s{t}
            s_lshr_b32 s{t}, s{sJ}, 2
            s_lshl_b32 s{sMb64}, s{sMb}, 1
            s_add_u32 s{sMb64}, s{sMb64}, s{t}
            s_lshl_b32 s{t}, s{t}, 4
            s_lshl_b32 s{sHalf}, 0xffff, s{t}
            """) + r
        return self.p2_params0()
    def p2_params0(self):
        t = sA
        return lines(f"""
        s_lshl_b32 s{sNb}, s{sMb}, {0 if self.cfg.get("map8") else 1}
        s_add_u32 s{sNb}, s{sNb}, s{sJ}
        s_and_b32 s{sNb}, s{sNb}, {3 if self.cfg.get("map8") else 7}
        s_and_b32 s{t}, s{sJ}, {4 if self.cfg.get("map8") else 0}
        s_or_b32 s{sNb}, s{sNb}, s{t}
        s_mul_i32 s{t}, s{sWave}, 14
        s_mul_i32 s{sAb}, s{sMb64}, 56
        s_add_u32 s{sAb}, s{sAb}, s{t}
        s_lshl_b32 s{sAb}, s{sAb}, 12
        s_mul_i32 s{sBb}, s{sNb}, 56
        s_add_u32 s{sBb}, s{sBb}, s{t}
        s_mul_i32 s{sBb}, s{sBb}, 5120
        s_add_u32 s{sBb}, s{sBb}, {WS_WD}
        s_cmp_lt_u32 s{sWave}, 3; s_cselect_b32 s{sAb2}, s{sAb}, s{sOOB}; s_cselect_b32 s{sBb2}, s{sBb}, s{sOOB}
        s_mul_i32 s{t}, s{sMb64}, 81920
        s_add_u32 s{t}, s{t}, {WS_O}
        s_mul_i32 s{sOld}, s{sWave}, 20480
        s_add_u32 s{sOld}, s{sOld}, s{t}
        s_mul_i32 s{sOst}, s{sNb}, 10
        s_add_u32 s{sOst}, s{sOst}, s{sWave}
        s_lshl_b32 s{sOst}, s{sOst}, 8
        s_add_u32 s{sOst}, s{sOst}, s{t}
        s_cmp_lt_u32 s{sWave}, 2; s_cselect_b32 s{sOst2}, s{sOst}, s{sOOB}
        s_mul_i32 s{sWOb}, s{sNb}, 102400
        s_add_u32 s{sWOb}, s{sWOb}, {WS_WO}
        s_add_u32 s{sWOb}, s{sWOb}, s{sM0}
        s_lshl_b32 s{sKV}, s{sNb}, 2
        s_add_u32 s{sKV}, s{sKV}, s{sWave}
        s_mul_i32 s{sKV}, s{sKV}, 1280
        s_add_u32 s{sKV}, s{sKV}, {WS_QKV}
        s_lshl_b32 s{sXo}, s{sMb64}, 2
        s_add_u32 s{sXo}, s{sXo}, s{sWave}
        s_mul_i32 s{sXo}, s{sXo}, {16*1280}
        s_mul_i32 s{t}, s{sNb}, 160
        s_add_u32 s{sXo}, s{sXo}, s{t}
        s_lshl_b32 s{sFl0}, s{sMb}, 9
        s_add_u32 s{sFl0}, s{sFl0}, {WS_FLAG}
        s_max_u32 s{sFl1}, s{sMb}, 1
        s_lshl_b32 s{sFl1}, s{sFl1}, 9
        s_add_u32 s{sFl1}, s{sFl1}, {WS_FLAG - 512}
        s_lshl_b32 s{sFlG}, s{sWave}, 11
        s_add_u32 s{sFlG}, s{sFlG}, {WS_FLAG}
        s_lshl_b32 s{t}, s{sMb64}, 1
        v_lshrrev_b32 v{vQa}, 5, v0
        v_add_u32 v{vQa}, s{t}, v{vQa}
        v_mul_u32_u24 v{vQa}, 122880, v{vQa}
        v_and_b32 v{vKa}, 31, v0
        v_lshl_add_u32 v{vQa}, v{vKa}, 3, v{vQa}
        v_add_u32 v{vKa}, 8, v0
        v_lshrrev_b32 v{vT}, 4, v{vKa}
        v_add_u32 v{vT}, s{t}, v{vT}
        v_max_u32 v{vT}, 1, v{vT}
        v_subrev_u32 v{vT}, 1, v{vT}
        v_mul_u32_u24 v{vT}, 122880, v{vT}
        v_and_b32 v{vKa}, 15, v{vKa}
        v_lshl_add_u32 v{vKa}, v{vKa}, 4, v{vT}
        """)
    def switch_ops(self, P):
        t = sA
        return [f"v_mad_u32_u24 v{vLd}, v{vRow}, s{P+4}, v{vCol}",
                f"s_lshl_b32 s{sStep}, s{P+4}, 6",
                f"s_lshl_b32 s{t}, s{P+4}, 3",
                f"s_sub_u32 s{t}, s{t}, 1024",
                f"v_add_u32 v{vLd}, s{P+5}, v{vLd}",
                f"s_mul_i32 s{sWrap}, s{sStep}, 10",
                f"s_mov_b32 s{sSoff}, s{P+6}",
                f"v_add_u32 v{vLd+1}, s{t}, v{vLd}",
                f"v_add_u32 v{vLd+2}, s{t}, v{vLd+1}",
                f"v_add_u32 v{vLd+3}, s{t}, v{vLd+2}"]
    def dma_items(self, g):
        P = PB[g // 10]; slot = self.alloc(("B", g))
        it = [("op", f"s_add_u32 m0, s{sM0}, {slot*16384}")]
        if g % 10 == 0 and g > 0: it += [("op", o) for o in self.switch_ops(P)]
        elif g % 10: it.append(("op", f"s_add_u32 s{sSoff}, s{sSoff}, s{sStep}; s_cmp_eq_u32 s{sSoff}, s{sWrap}; s_cselect_b32 s{sSoff}, 0, s{sSoff}"))
        it += [("ld", f"buffer_load_dwordx4 v{vLd+j}, s[{P}:{P+3}], s{sSoff} offen offset:{1024*j} lds", f"B{g}") for j in range(4)]
        return it
    def pop_ops(self):
        p = self.pend
        while p and p[0][0] != "ld": self.emit(p.pop(0)[1])
    def pop_ld(self):
        a = self.a; p = self.pend
        self.pop_ops()
        if p:
            if " m0," in a.lines[-1]: a("s_nop 0")
            _, l, tag = p.pop(0); self.vm.issue(a, l, tag)
    def tr_reads(self, G):
        g, s = G >> 2, G & 3
        slot = self.slot[("B", g)]; reg = slot >> 2
        o = (slot & 3) * 16384 + 16 * s * 128
        r = []
        for t in range(4):
            b = WF + 16 * (G % NWB) + 4 * t
            r += [f"ds_read_b64_tr_b16 a[{b}:{b+1}], v{vTr+4*reg+t} offset:{o}",
                  f"ds_read_b64_tr_b16 a[{b+2}:{b+3}], v{vTr+4*reg+t} offset:{o+512}"]
        return r
    def center_ops(self, stage):
        x = XB + 16 * stage; t = EP
        d = []
        for i in range(16):
            d.append(f"v_dot2_f32_bf16 v{t+2*i}, v{x+i}, s{sLo}, v{vNegM}")
            d.append(f"v_dot2_f32_bf16 v{t+2*i+1}, v{x+i}, s{sHi}, v{vNegM}")
        c = [f"v_cvt_pk_bf16_f32 v{x+i}, v{t+2*i}, v{t+2*i+1}" for i in range(16)]
        return d, c
    def epi_f(self, acc, so):
        ops = []; sts = []; nb = self.cfg["stb"]
        for t in range(4):
            g = EP + 32 * (t & 1); u = g + 8; e = g + 16; pk = g + 24 + 4 * (t >> 1)
            A = acc + 16 * t
            for i in range(8): ops.append(f"v_accvgpr_read_b32 v{g+i}, a{A+i}")
            for i in range(8): ops.append(f"v_mul_f32 v{e+i}, v{vC1}, v{g+i}")
            for i in range(8):
                ops.append(f"v_exp_f32 v{e+i}, v{e+i}")
                ops.append(f"v_accvgpr_read_b32 v{u+i}, a{A+8+i}")
            for i in range(8): ops.append(f"v_fma_f32 v{e+i}, v{e+i}, v{vD2}, v{vD2}")
            for i in range(8):
                ops.append(f"v_rcp_f32 v{e+i}, v{e+i}")
                ops.append(f"v_mul_f32 v{g+i}, v{g+i}, v{u+i}")
            for i in range(8): ops.append(f"v_mul_f32 v{g+i}, v{g+i}, v{e+i}")
            for i in range(4): ops.append(f"v_cvt_pk_bf16_f32 v{pk+i}, v{g+2*i}, v{g+2*i+1}")
            if t == 2: sts.append(f"s_add_u32 s{so}, s{so}, 4096")
            sts.append(f"buffer_store_dwordx4 v[{pk}:{pk+3}], v{vSF}, s[{SRDW}:{SRDW+3}], s{so} offen offset:{(t&1)*512} sc1")
            if (t + 1) % nb == 0:
                ops.append("; ".join(sts)); sts = []
        return ops
    def epi_f_tail(self, acc, so):
        ops = [f"v_mov_b32 v{vR}, v{vD2}", f"v_mov_b32 v{vT}, v{vC1}", f"v_mov_b32 v{vT-1}, v{vC1}"]
        p2 = lambda r: f"v[{r}:{r+1}]"
        for t in range(4):
            g = EP + 32 * (t & 1); u = g + 8; e = g + 16; pk = g + 24
            A = acc + 16 * t
            for i in range(8): ops.append(f"v_accvgpr_read_b32 v{g+i}, a{A+i}")
            for i in range(4): ops.append(f"v_pk_mul_f32 {p2(e+2*i)}, {p2(vT-1)}, {p2(g+2*i)}")
            for i in range(8):
                ops.append(f"v_exp_f32 v{e+i}, v{e+i}")
                ops.append(f"v_accvgpr_read_b32 v{u+i}, a{A+8+i}")
            for i in range(4): ops.append(f"v_pk_fma_f32 {p2(e+2*i)}, {p2(e+2*i)}, {p2(vD2)}, {p2(vD2)}")
            for i in range(8): ops.append(f"v_rcp_f32 v{e+i}, v{e+i}")
            for i in range(4): ops.append(f"v_pk_mul_f32 {p2(g+2*i)}, {p2(g+2*i)}, {p2(u+2*i)}")
            for i in range(4): ops.append(f"v_pk_mul_f32 {p2(g+2*i)}, {p2(g+2*i)}, {p2(e+2*i)}")
            for i in range(4): ops.append(f"v_cvt_pk_bf16_f32 v{pk+i}, v{g+2*i}, v{g+2*i+1}")
            if t == 2: ops.append(f"s_add_u32 s{so}, s{so}, 4096")
            ops.append(f"buffer_store_dwordx4 v[{pk}:{pk+3}], v{vSF}, s[{SRDW}:{SRDW+3}], s{so} offen offset:{(t&1)*512} sc1")
        return ops
    def epi_q(self, acc, so):
        ops = [f"s_add_u32 s{so-1}, s{so}, 4096"]; sts = []; nb = self.cfg["stb"]
        for t in range(4):
            g = EP; pk = EP + 16 + 8 * t
            A = acc + 16 * t
            for i in range(16): ops.append(f"v_accvgpr_read_b32 v{g+i}, a{A+i}")
            for i in range(16): ops.append(f"v_mul_f32 v{g+i}, v{vR}, v{g+i}")
            for i in range(8): ops.append(f"v_cvt_pk_bf16_f32 v{pk+i}, v{g+2*i}, v{g+2*i+1}")
            for q in range(4):
                grp = 4 * t + 2 * (q & 1)
                sts.append(f"buffer_store_dwordx2 v[{pk+2*q}:{pk+2*q+1}], v{vL8}, s[{SRDW}:{SRDW+3}], s{so-(q>>1)} offen offset:{grp*256} sc1")
            if (t + 1) % nb == 0:
                if self.cfg.get("stq", True): ops.append("; ".join(sts))
                else: ops += sts
                sts = []
        return ops
    def publish(self, level, after):
        a = self.a
        for tg in after: self.vm.wait(a, tg)
        a(f"v_mov_b64 v[{self.vPub}:{self.vPub+1}], s[{sTok}:{sTok+1}]")
        a(f"s_add_u32 s{sA+8}, s{sFlag}, {level*8192}")
        a("s_mov_b64 exec, 1")
        self.vm.issue(a, f"buffer_store_dwordx2 v[{self.vPub}:{self.vPub+1}], off, s[{SRDW}:{SRDW+3}], s{sA+8} sc1", "fl")
        a("s_mov_b64 exec, -1")
    def retouch(self, kind, so=None):
        if kind not in self.cfg.get("rt", ""): return
        a = self.a; r = 88 if kind == "P" else self.vPub - 2
        if kind == "P":
            a(f"v_lshlrev_b32 v{r}, 7, v0\ns_mov_b64 exec, 0xff")
            for ch in range(4): self.vm.issue(a, f"buffer_load_dword v{r+1}, v{r}, s[{SRDW}:{SRDW+3}], s{PK+5+ch} offen", "rt")
            a("s_mov_b64 exec, -1")
        elif kind == "Q":
            a(f"v_lshlrev_b32 v{r}, 7, v0")
            self.vm.issue(a, f"buffer_load_dword v{r}, v{r}, s[{SRDW}:{SRDW+3}], s{so} offen", "rt")
        else:
            a(f"v_and_b32 v{r}, 16, v0\nv_add_u32 v{r}, v{r}, v0\nv_lshlrev_b32 v{r}, 7, v{r}\ns_sub_u32 s{sA+8}, s{so}, 4096\ns_mov_b32 exec_hi, 0")
            self.vm.issue(a, f"buffer_load_dword v{r}, v{r}, s[{SRDW}:{SRDW+3}], s{sA+8} offen", "rt")
            a("s_mov_b32 exec_hi, -1")
    def flag_ld(self, reg, soff, level, off, sc):
        return [f"s_add_u32 s{sA+8}, s{soff}, {level*8192}",
                f"buffer_load_dwordx2 v[{reg}:{reg+1}], v{vL8}, s[{SRDW}:{SRDW+3}], s{sA+8} offen offset:{off} {sc}"]
    def flag_load(self, reg, soff, tag, level, off=0):
        l = self.flag_ld(reg, soff, level, off, "")
        self.a(l[0]); self.vm.issue(self.a, l[1], tag)
    def flag_check(self, reg, soff, tag, level, half=False, off=0):
        a = self.a; L = a.newlabel("fc")
        self.vm.wait(a, tag)
        test = f"v_cmp_ne_u64 vcc, s[{sTok}:{sTok+1}], v[{reg}:{reg+1}]\n"
        if half and self.cfg.get("p2x"): test += f"s_nop 0\ns_or_b32 s{sA+8}, vcc_lo, vcc_hi\ns_and_b32 s{sA+8}, s{sA+8}, s{sHalf}"
        elif half: test += f"s_cmp_eq_u32 s{sHalf}, 0\ns_cselect_b32 s{sA+8}, vcc_lo, vcc_hi\ns_cmp_lg_u32 s{sA+8}, 0"
        else: test += "s_nop 0\ns_cmp_lg_u64 vcc, 0"
        a(test)
        a(f"s_cbranch_scc1 {L}_slow")
        a.label(f"{L}_ok")
        l = self.flag_ld(reg, soff, level, off, "sc1")
        self.slow.append(f"""
        {L}_slow:
        s_mov_b32 s{sA+9}, 0
        {L}_spin:
        {l[0]}
        {l[1]}
        s_add_u32 s{sA+9}, s{sA+9}, 1
        s_cmp_gt_u32 s{sA+9}, {self.cfg["spin"]}
        s_waitcnt vmcnt(0)
        s_cbranch_scc1 {L}_ok
        {test}
        s_cbranch_scc0 {L}_ok
        s_sleep {self.cfg.get("sleep", 4)}
        s_branch {L}_spin
        """)

    def body(self, T, work, ntask, wrange=(4, 156), center=False, extra=None, vq=None, vq1=1, vq2=1, before=None):
        a = self.a; cfg = self.cfg; acc = ACC[T & 1]; LA = cfg["LA"]
        ngap = 160
        per = [[] for _ in range(ngap)]
        def cost(op):
            if not isinstance(op, str): return 3.0
            if op.startswith(("v_exp", "v_rcp")): return 2.0
            if op.startswith("buffer_"): return 3.0 * (1 + op.count(";"))
            return 1.0 + op.count(";")
        def is_bar(S):
            n1 = 10 * T + (S >> 2) + 1
            if (S & 3) != 1 or n1 >= 10 * ntask: return False
            return (n1 % 2 == 0) if cfg["bar2"] else True
        cap = []
        for g in range(ngap):
            c = cfg["cap"] - ([3, 3, 2, 0] if is_bar(g >> 2) else cfg["rpat"])[g & 3]
            if (g & 3) == cfg["dmagap"] or ((g & 3) == 0 and vq): c -= 2.5
            if (g & 3) == 3: c -= 1
            if (g & 3) == 3 and is_bar(g >> 2): c = 0
            cap.append(max(c, 0.0))
        if center:
            for st in range(cfg["nc"], 10):
                d, c = self.center_ops(st)
                base = 16 * (st - 1)
                per[base] += d
                cg = [base + x for x in (1, 3, 4, 5, 8, 9, 11, 12, 13)]
                for i, op in enumerate(c): per[cg[i * len(cg) // 16]].append(op)
        used = lambda g: sum(cost(o) for o in per[g])
        self.ends = {}
        for g00, fn in (extra or {}).items():
            if not isinstance(fn, list): per[g00].append(fn)
        for g00, fn in (extra or {}).items():
            if isinstance(fn, list):
                g = g00; room = 0.0
                for op in fn:
                    while room <= 0:
                        room = cap[g] - used(g); g += 1
                    per[g - 1].append(op); room -= cost(op)
                self.ends[g00] = g - 1
        for a_, b_ in (before or []): assert self.ends[a_] < b_, (a_, self.ends[a_], b_)
        if work:
            g0, g1 = wrange
            cap = [max(cap[g] - used(g), 0.0) for g in range(ngap)]
            scale = sum(cost(o) for o in work) / sum(cap[g0:g1])
            if cfg.get("verbose"): print("body", T, "work scale", scale)
            g = g0; room = cap[g] * scale
            for op in work:
                while room <= 0 and g < g1 - 1:
                    g += 1; room += cap[g] * scale
                per[g].append(op); room -= cost(op)
        vq = list(vq or [])
        for S in range(40):
            i, s = S >> 2, S & 3
            G = 40 * T + S; n = 10 * T + i
            rd = self.tr_reads(G + 2) if G + 2 < 40 * ntask else []
            if s == 2:
                k = 0
                while self.next <= n + LA and self.next < 10 * ntask and k < 2 and self.cands(("B", self.next)):
                    self.pend += self.dma_items(self.next); self.next += 1; k += 1
            for t in range(4):
                gap = 4 * S + t
                if t == 0: a(f"s_waitcnt lgkmcnt({8 if G + 1 < 40 * ntask else 0})")
                A = acc + 16 * t; w = WF + 16 * (G % NWB) + 4 * t; x = XB + 4 * S
                c = "0" if S == 0 else f"a[{A}:{A+15}]"
                a(f"v_mfma_f32_32x32x16_bf16 a[{A}:{A+15}], a[{w}:{w+3}], v[{x}:{x+3}], {c}")
                pat = [3, 3, 2, 0] if is_bar(S) else cfg["rpat"]
                for _ in range(pat[t]):
                    if rd: a(rd.pop(0))
                nld = sum(1 for p_ in self.pend if p_[0] == "ld")
                if self.pend and (t == cfg["dmagap"] or (nld > 4 and t == 0)): self.pop_ld()
                elif vq and ((t == 0 and S % vq1 == 0) or (t == cfg["dmagap"] and not self.pend and S % vq2 == 0)):
                    for j_, it_ in enumerate(vq):
                        if it_[0](gap):
                            vq.pop(j_)[1](); break
                if t == cfg["dmagap"] - 1: self.pop_ops()
                if T == cfg.get("markT", 2) and gap % 16 == 9: self.mark(gap // 16)
                for op in per[gap]:
                    if callable(op): op()
                    else: self.emit(op, f"E{T-1}")
                if t == 3 and is_bar(S):
                    last = n + 2 if cfg["bar2"] and n + 2 < 10 * ntask else n + 1
                    self.vm.wait(a, f"B{last}", 4)
                    a("s_barrier")
                    self.lastbar = n
            assert not rd
        return vq

    def att_loads(self, al=True):
        a = self.a
        out = []
        for kv in range(2):
            for i in range(5):
                def f(kv=kv, i=i):
                    assert not self.pend
                    a(f"s_add_u32 m0, s{sM0}, {(7+kv)*16384 + i*640 - 256*i}")
                    if i == 0: a(f"s_add_u32 s{sA+6}, s{sKV}, {(kv+1)*40960}")
                    a("s_mov_b32 exec_hi, 0xff")
                    self.vm.issue(a, f"buffer_load_dwordx4 v{vKa}, s[{SRDW}:{SRDW+3}], s{sA+6} offen offset:{256*i} sc1 lds", "KV")
                    a("s_mov_b32 exec_hi, -1")
                out.append(f)
        for i in range(5):
            out.append(lambda i=i: self.vm.issue(a, f"buffer_load_dwordx2 v[{XB+2*i}:{XB+2*i+1}], v{vQa}, s[{SRDW}:{SRDW+3}], s{sKV} offen offset:{256*i} sc1", "KV"))
        return out
    def attention(self, inter):
        a = self.a; vm = self.vm
        Q = XB; AK = 1; AK2 = 2; RW = 3; L = 4; P = 236; O = 216
        kvb = [[196, 200, 204, 208, 212], [106, 110, 252, 12, 26]]
        code = []; e = code.append
        def rd(n):
            m = n & 3
            if n == 4:
                e(f"v_add_u32 v{AK}, 16384, v{AK}"); e(f"v_add_u32 v{AK2}, 16384, v{AK2}")
            for i in range(5):
                b = kvb[n & 1][i]; o = (i % 3) * 80 + 16 - 4 * m
                e(f"ds_read2_b64 v[{b}:{b+3}], v{AK if i < 3 else AK2} offset0:{o} offset1:{o-2}")
        a(f"""
        s_add_u32 s{sA}, s{sM0}, {7*16384}
        v_add_u32 v{AK}, s{sA}, v{vL8}
        v_add_u32 v{AK2}, 1920, v{AK}
        s_mov_b32 s{sA+1}, 0x{C_SM:x}
        """)
        vm.wait(a, "KV", 15)
        self.mark(23)
        rd(0)
        for n in range(8):
            m = n & 3; B = kvb[n & 1]
            e("s_waitcnt lgkmcnt(0)")
            if n < 4:
                for i in range(10):
                    for h in range(2):
                        src = f"v{Q+i}, v{B[i>>1] + 2*h + (i&1)}"
                        e(f"v_dot2_f32_bf16 v{L+2*m+h}, {src}, 0" if i == 0 else f"v_dot2c_f32_bf16 v{L+2*m+h}, {src}")
                    if i == 0: rd(n + 1)
            else:
                if n + 1 < 8: rd(n + 1)
                for h in range(2):
                    w = 2 * m + h
                    for i in range(10):
                        for j in range(2):
                            src = f"v{B[i>>1] + 2*h + (i&1)}, v{P+2*w+j}"
                            e(f"v_dot2_f32_bf16 v{O+2*i+j}, {src}, 0" if w == 0 else f"v_dot2c_f32_bf16 v{O+2*i+j}, {src}")
            if n == 3:
                Lm = a.newlabel("am")
                blk = [f"s_cmp_lg_u32 s{sMb64}, 0", f"s_cbranch_scc1 {Lm}", f"v_mov_b32 v{P}, 0xce6e6b28"]
                for ww in range(1, 8):
                    blk += [f"v_cmp_gt_u32 vcc, {2*ww}, v0", "s_nop 1", f"v_cndmask_b32 v{L+ww}, v{L+ww}, v{P}, vcc"]
                blk += [f"{Lm}:"]
                e("\n".join(blk))
                e(f"v_max3_f32 v{P}, v{L}, v{L+1}, v{L+2}")
                e(f"v_max3_f32 v{P}, v{P}, v{L+3}, v{L+4}")
                e(f"v_max3_f32 v{P}, v{P}, v{L+5}, v{L+6}")
                e(f"v_max_f32 v{P}, v{P}, v{L+7}")
                e(f"v_mul_f32 v{P}, s{sA+1}, v{P}")
                for ww in range(8): e(f"v_fma_f32 v{L+ww}, v{L+ww}, s{sA+1}, -v{P}")
                for ww in range(8): e(f"v_exp_f32 v{L+ww}, v{L+ww}")
                e(f"v_pk_add_f32 v[{P}:{P+1}], v[{L}:{L+1}], v[{L+2}:{L+3}]")
                e(f"v_pk_add_f32 v[{P+2}:{P+3}], v[{L+4}:{L+5}], v[{L+6}:{L+7}]")
                e(f"v_pk_add_f32 v[{P}:{P+1}], v[{P}:{P+1}], v[{P+2}:{P+3}]")
                e(f"v_add_f32 v{P}, v{P}, v{P+1}")
                e(f"v_rcp_f32 v{P}, v{P}\ns_nop 0")
                for ww in range(4): e(f"v_pk_mul_f32 v[{L+2*ww}:{L+2*ww+1}], v[{L+2*ww}:{L+2*ww+1}], v[{P}:{P+1}] op_sel_hi:[1,0]")
                for ww in range(8):
                    e(f"v_cvt_pk_bf16_f32 v{P+2*ww}, v{L+ww}, 0")
                    e(f"v_cvt_pk_bf16_f32 v{P+2*ww+1}, 0, v{L+ww}")
        e(f"s_mul_i32 s{sA}, s{sWave}, 2560\ns_add_u32 s{sA}, s{sA}, {9*16384}\nv_add_u32 v{AK}, s{sA}, v{vL8}")
        e(f"s_mul_i32 s{sA}, s{sWave}, 3\ns_and_b32 s{sA}, s{sA}, 13\ns_min_u32 s{sA}, s{sA}, 5\ns_lshl_b32 s{sA}, s{sA}, 9\ns_add_u32 s{sA}, s{sA}, {9*16384}\nv_add_u32 v{AK2}, s{sA}, v{vL8}")
        e(f"v_lshrrev_b32 v{RW}, 4, v0"); e(f"v_mul_u32_u24 v{RW}, {20480-256}, v{RW}"); e(f"v_add_u32 v{RW}, v{RW}, v{vL16}")
        for i in range(5):
            e(f"v_cvt_pk_bf16_f32 v{Q+2*i}, v{O+4*i}, v{O+4*i+1}")
            e(f"v_cvt_pk_bf16_f32 v{Q+2*i+1}, v{O+4*i+2}, v{O+4*i+3}")
            e(f"ds_write_b64 v{AK}, v[{Q+2*i}:{Q+2*i+1}] offset:{512*i}")
        inter = list(inter); n = len(code); k = len(inter); j = 0
        for i, ins in enumerate(code):
            a(ins)
            while j < k and j < (i + 1) * k // (n - 10):
                inter[j](); j += 1
        self.mark(25)
        if self.cfg["nokb"]: vm.wait(a, "WO", 25)
        a("s_waitcnt lgkmcnt(0)\ns_barrier")
        for r in range(3): a(f"ds_read2st64_b64 v[{4+4*r}:{7+4*r}], v{AK2} offset0:{8*r} offset1:{8*r+2}")
        return [lambda r=r: (a(f"s_waitcnt lgkmcnt({2-r})"),
                             vm.issue(a, f"buffer_store_dwordx4 v[{4+4*r}:{7+4*r}], v{RW}, s[{SRDW}:{SRDW+3}], s{sOst2 if r == 2 else sOst} offen offset:{1024*r} sc1", "O")) for r in range(3)]

    BSLOT = ["a176", "a196", "a216", "a236", "v116", "v136", "v156", "v176", "a64", "a84", "a104", "a128", "a148", "v96"]
    ASLOT = ["v32", "v48", "v64", "v80", "v196", "v216", "v32", "v48", "v64", "v80", "v196", "v32", "v48", "v64"]
    AEARLY = [0, 0, 0, 0, 0, 0, 1, 2, 3, 4, 5, 7, 8, 9]
    @staticmethod
    def rr(base, off, n=4):
        return f"{base[0]}[{int(base[1:])+off}:{int(base[1:])+off+n-1}]"
    def b_loads(self, k):
        a = self.a; out = []
        for u in range(5):
            def f(u=u):
                if u == 0: a(f"s_add_u32 s{sGb}, s{sBb if k < 12 else sBb2}, {k*5120}")
                if u == 4: a(f"s_add_u32 s{sGb}, s{sGb}, 4096")
                self.vm.issue(a, f"buffer_load_dwordx4 {self.rr(self.BSLOT[k], 4*u)}, v{vL16}, s[{SRDW}:{SRDW+3}], s{sGb} offen offset:{1024*(u&3)} sc1", f"PB{k}")
            out.append(f)
        return out
    def a_loads(self, k):
        a = self.a; out = []
        for i in range(4):
            def f(i=i):
                if i == 0: a(f"s_add_u32 s{sGa}, s{sAb if k < 12 else sAb2}, {k*4096}")
                self.vm.issue(a, f"buffer_load_dwordx4 {self.rr(self.ASLOT[k], 4*i)}, v{vA[i]}, s[{SRDW}:{SRDW+3}], s{sGa} offen sc1", f"PA{k}")
            out.append(f)
        return out
    def wo_loads(self, s):
        a = self.a; out = []
        for j in range(4 if s < 6 else 1):
            def f(j=j):
                assert not self.pend
                if j == 0 and self.owner[s] != ("WO", s): self.alloc(("WO", s), s)
                if self.m0 != ("WO", s):
                    if s < 6:
                        a(f"s_add_u32 m0, s{sM0}, {s*16384}\ns_add_u32 s{sA+7}, s{sWOb}, {s*16384}")
                    else:
                        a(f"s_lshr_b32 s{sA+7}, s{sM0}, 2\ns_add_u32 m0, s{sA+7}, {6*16384}\ns_sub_u32 s{sA+7}, s{sWOb}, s{sM0}\ns_add_u32 s{sA+7}, s{sA+7}, m0")
                self.m0mark = (len(a.lines), ("WO", s))
                self.vm.issue(a, f"buffer_load_dwordx4 v{vL16}, s[{SRDW}:{SRDW+3}], s{sA+7} offen offset:{1024*j} sc1 lds", "WO")
            out.append(f)
        return out
    @property
    def m0(self):
        mk = getattr(self, "m0mark", None)
        if not mk: return None
        for l in self.a.lines[mk[0]:]:
            if " m0," in l or f"s{sA+7}," in l.split(",")[0] + "," and l.strip().startswith("s_") or l.endswith(("_join:", "_two:")): return None
        return mk[1]

    def build(self):
        a = self.a; cfg = self.cfg; label = self.label
        vm = self.vm
        sX = sA + 9
        a.begin_kernel(label)
        a(f"""
        s_cmp_ge_u32 s2, 256
        s_cbranch_scc1 {label}_end
        s_load_dwordx2 s[4:5], s[0:1], 0
        s_load_dwordx2 s[{pQKV}:{pQKV+1}], s[0:1], 8
        s_load_dwordx2 s[{pWO}:{pWO+1}], s[0:1], 16
        s_load_dwordx4 s[{pG}:{pG+3}], s[0:1], 32
        s_load_dwordx2 s[{pDN}:{pDN+1}], s[0:1], 48
        s_load_dwordx2 s[6:7], s[0:1], 56
        s_load_dwordx2 s[{pWS}:{pWS+1}], s[0:1], 72
        """)
        self.stamp(0)
        if self.stamps: a(f"s_memrealtime s[{sTok}:{sTok+1}]")
        NL = cfg.get("codelines", 11)
        a(f"""
        s_getpc_b64 s[{sA}:{sA+1}]
        s_lshr_b32 s{sA+2}, s2, 3
        s_mul_i32 s{sA+2}, s{sA+2}, {NL*128}
        v_lshlrev_b32 v{vT}, 7, v0
        v_add_u32 v{vT}, s{sA+2}, v{vT}
        v_min_u32 v{vT}, {label}_end-{label}-128, v{vT}
        v_cmp_gt_u32 vcc, {NL}, v0
        s_and_saveexec_b64 s[{sA+2}:{sA+3}], vcc
        s_cbranch_execz {label}_nt
        global_load_dword v95, v{vT}, s[{sA}:{sA+1}]
        {label}_nt:
        s_mov_b64 exec, -1
        v_lshrrev_b32 v{vT}, 6, v0
        v_and_b32 v0, 63, v0
        s_and_b32 s{sA}, s2, 7
        v_readfirstlane_b32 s{sWave}, v{vT}
        """)
        if cfg.get("map2"):
            a(f"""
            s_lshr_b32 s{sA+2}, s2, 7
            s_lshl_b32 s{sMb}, s{sA}, 1
            s_add_u32 s{sMb}, s{sMb}, s{sA+2}
            s_bfe_u32 s{sHalf}, s2, 0x10006
            s_bfe_u32 s{sJ}, s2, 0x30003
            s_lshl_b32 s{sA+3}, s{sA}, 2
            s_lshr_b32 s{sRot}, {cfg.get("rot2", 0x43210432)}, s{sA+3}
            s_and_b32 s{sRot}, s{sRot}, 15
            s_mul_i32 s{sA+3}, s{sA+2}, {cfg.get("rot2m", 5)}
            s_add_u32 s{sRot}, s{sRot}, s{sA+3}
            s_add_u32 s{sRot}, s{sRot}, s{sJ}
            s_lshl_b32 s{sA+3}, s{sHalf}, 1
            s_add_u32 s{sRot}, s{sRot}, s{sA+3}
            """)
        elif not cfg.get("map8"):
            a(f"""
            s_lshr_b32 s{sA+1}, s2, 3
            s_and_b32 s{sHalf}, s{sA}, 1
            s_lshr_b32 s{sA}, s{sA}, 1
            s_lshl_b32 s{sA}, s{sA}, 2
            s_lshr_b32 s{sA+2}, s{sA+1}, 3
            s_add_u32 s{sMb}, s{sA}, s{sA+2}
            s_and_b32 s{sJ}, s{sA+1}, 7
            s_lshl_b32 s{sRot}, s{sA+2}, 2
            s_lshr_b32 s{sRot}, {cfg["rotm"]}, s{sRot}
            s_and_b32 s{sRot}, s{sRot}, 15
            s_add_u32 s{sRot}, s{sRot}, s{sJ}
            s_lshr_b32 s{sA+3}, {cfg["rotx"]}, s{sA}
            s_and_b32 s{sA+3}, s{sA+3}, 15
            s_add_u32 s{sRot}, s{sRot}, s{sA+3}
            s_mul_i32 s{sA+3}, s{sHalf}, {cfg.get("roth", 0)}
            s_add_u32 s{sRot}, s{sRot}, s{sA+3}
            """)
        else:
            a(f"""
            s_lshr_b32 s{sA+2}, s2, 5
            s_and_b32 s{sMb}, s{sA}, 4
            s_lshl_b32 s{sMb}, s{sMb}, 1
            s_add_u32 s{sMb}, s{sMb}, s{sA+2}
            s_bfe_u32 s{sHalf}, s2, 0x10001
            s_bfe_u32 s{sA+1}, s2, 0x20003
            s_and_b32 s{sJ}, s2, 1
            s_lshl_b32 s{sJ}, s{sJ}, 2
            s_add_u32 s{sJ}, s{sJ}, s{sA+1}
            s_lshl_b32 s{sRot}, s{sA+1}, 2
            s_lshr_b32 s{sRot}, 0x7520, s{sRot}
            s_and_b32 s{sRot}, s{sRot}, 15
            s_lshl_b32 s{sA+3}, s{sA+2}, 2
            s_lshr_b32 s{sA+3}, {cfg.get("rot8", 0x43210210)}, s{sA+3}
            s_and_b32 s{sA+3}, s{sA+3}, 15
            s_add_u32 s{sRot}, s{sRot}, s{sA+3}
            s_lshr_b32 s{sA+3}, s{sA}, 2
            s_mul_i32 s{sA+3}, s{sA+3}, 5
            s_add_u32 s{sRot}, s{sRot}, s{sA+3}
            s_and_b32 s{sA+3}, s2, 1
            s_add_u32 s{sRot}, s{sRot}, s{sA+3}
            """)
        a(f"""
        s_lshl_b32 s{sM0}, s{sWave}, 12
        s_sub_u32 s{sA+3}, s{sRot}, 10
        s_min_u32 s{sRot}, s{sRot}, s{sA+3}
        s_lshl_b32 s{sX}, s{sRot}, 7
        s_lshl_b32 s{sA}, s{sMb}, 7
        s_lshl_b32 s{sA+1}, s{sWave}, 5
        s_add_u32 s{sA}, s{sA}, s{sA+1}
        s_mul_i32 s{sA}, s{sA}, 1280
        v_lshrrev_b32 v{vT}, 3, v0
        v_mul_u32_u24 v{vT}, 1280, v{vT}
        v_add_u32 v{vT}, s{sA}, v{vT}
        v_lshrrev_b32 v{vT+1}, 4, v0
        v_and_b32 v{vT+2}, 7, v0
        v_xor_b32 v{vT+1}, v{vT+1}, v{vT+2}
        v_xor_b32 v{vT+2}, 4, v{vT+1}
        v_lshl_add_u32 v{EP+4}, v{vT+1}, 4, v{vT}
        v_lshl_add_u32 v{EP+5}, v{vT+2}, 4, v{vT}
        v_add_u32 v{EP+5}, {8*1280-1024}, v{EP+5}
        v_add_u32 v{EP+6}, {2*(8*1280-1024)}, v{EP+4}
        v_add_u32 v{EP+7}, {2*(8*1280-1024)}, v{EP+5}
        s_mov_b32 s{SRDX+2}, {2048*1280}
        s_mov_b32 s{SRDX+3}, 0x20000
        s_mov_b32 m0, s{sM0}
        """)
        sS = sA + 7; sC = sA + 8
        setup = lines(f"""
        s_mov_b32 s{sOOB}, {OOB}
        s_lshl_b32 s{sS}, s{sHalf}, 3
        s_add_u32 s{sS}, s{sS}, s{sJ}
        v_lshrrev_b32 v{vRow}, 3, v0
        s_and_b32 s{sA}, s{sWave}, 1
        s_lshl_b32 s{sA}, s{sA}, 5
        v_add_u32 v{vRow}, s{sA}, v{vRow}
        v_bfe_u32 v{vT}, v0, 1, 2
        v_bfe_u32 v{vT+1}, v0, 4, 1
        s_and_b32 s{sA}, s{sWave}, 2
        v_or_b32 v{vT+1}, s{sA}, v{vT+1}
        v_xor_b32 v{vT}, v{vT}, v{vT+1}
        v_and_b32 v{vT+1}, 1, v0
        v_lshlrev_b32 v{vT+1}, 4, v{vT+1}
        v_lshl_add_u32 v{vCol}, v{vT}, 5, v{vT+1}
        s_add_u32 s{sC}, s{sS}, {cfg["qsh"]}
        s_and_b32 s{sC}, s{sC}, 15
        """) + self.q_params(PB[0], sC) + self.switch_ops(PB[0])
        ptr = [o for o in setup if f"s{pQKV}" in o or f"s{pQKV+1}" in o]
        for o in setup:
            if o not in ptr: self.emit(o)
        a(f"s_waitcnt lgkmcnt(0)\ns_mov_b32 s{SRDX}, s4\ns_mov_b32 s{SRDX+1}, s5")
        if self.stamps: a(f"s_mov_b32 s1, s{sTok}")
        setup = ptr + ([f"s_add_u32 s{pWS}, s{pWS}, {cfg['wsoff']}; s_addc_u32 s{pWS+1}, s{pWS+1}, 0"] if cfg.get("wsoff") else []) + lines(f"""
        s_add_u32 s{sA}, s{pWS}, {WS_EPOCH}; s_addc_u32 s{sA+1}, s{pWS+1}, 0
        s_load_dwordx2 s[{sTok}:{sTok+1}], s[{sA}:{sA+1}], 0
        """)
        n_first = len(setup)
        setup += lines(f"""
        s_mov_b32 s{sOne}, 0x3f803f80
        s_mov_b32 s{sLo}, 0x00003f80
        s_mov_b32 s{sHi}, 0x3f800000
        v_and_b32 v{vT}, 31, v0
        v_lshlrev_b32 v{vT+1}, 7, v{vT}
        v_add_u32 v{vT+1}, s{sM0}, v{vT+1}
        v_bfe_u32 v{vT}, v0, 1, 3
        v_lshrrev_b32 v{vT+2}, 5, v0
        v_xor_b32 v{vT}, v{vT}, v{vT+2}
        """)
        XA = EP + 8
        for s in range(4):
            setup.append(f"v_xor_b32 v{vT+2}, {2*s}, v{vT}")
            setup.append(f"v_lshl_add_u32 v{XA+s}, v{vT+2}, 4, v{vT+1}")
            setup.append(f"v_add_u32 v{XA+4+s}, 0x10000, v{XA+s}")
            setup.append(f"v_add_u32 v{XA+8+s}, 0x20000, v{XA+s}")
        setup += lines(f"""
        v_mov_b32 v{vSum}, 0
        v_mov_b32 v{vSq}, 0
        v_lshlrev_b32 v{vL16}, 4, v0
        v_lshlrev_b32 v{vL8}, 3, v0
        v_bfe_u32 v{vT}, v0, 4, 1
        v_bfe_u32 v{vT+1}, v0, 2, 2
        v_lshrrev_b32 v{vT+2}, 5, v0
        v_lshl_add_u32 v{vT+2}, v{vT+2}, 3, v{vT+1}
        v_lshlrev_b32 v{vT+2}, 7, v{vT+2}
        v_lshl_add_u32 v{vT+2}, v{vT}, 13, v{vT+2}
        v_and_b32 v{EP}, 3, v0
        v_lshl_add_u32 v{vT+2}, v{EP}, 3, v{vT+2}
        v_lshrrev_b32 v{vT+1}, 1, v{vT+1}
        v_lshl_add_u32 v{vT}, v{vT}, 1, v{vT+1}
        """)
        for t in range(4):
            setup.append(f"v_xor_b32 v{vT+1}, {t}, v{vT}")
            setup.append(f"v_lshl_add_u32 v{vTr+t}, v{vT+1}, 5, v{vT+2}")
            setup.append(f"v_add_u32 v{vTr+4+t}, 0x10000, v{vTr+t}")
            setup.append(f"v_add_u32 v{vTr+8+t}, 0x20000, v{vTr+t}")
        setup += lines(f"""
        v_bfe_u32 v{vT}, v0, 4, 1
        v_lshlrev_b32 v{vT}, 10, v{vT}
        v_lshrrev_b32 v{vT+1}, 5, v0
        v_lshl_add_u32 v{vT}, v{vT+1}, 8, v{vT}
        v_and_b32 v{vT+1}, 15, v0
        v_lshl_add_u32 v{vSF}, v{vT+1}, 4, v{vT}
        s_mov_b32 s{SRDW}, s{pWS}
        s_mov_b32 s{SRDW+1}, s{pWS+1}
        s_mov_b32 s{SRDW+2}, {WS_SIZE}
        s_mov_b32 s{SRDW+3}, 0x20000
        s_lshl_b32 s{sMb64}, s{sMb}, 1
        s_add_u32 s{sMb64}, s{sMb64}, s{sHalf}
        s_lshl_b32 s{sFlag}, s{sMb}, 4
        s_add_u32 s{sFlag}, s{sFlag}, s{sS}
        s_lshl_b32 s{sFlag}, s{sFlag}, 2
        s_add_u32 s{sFlag}, s{sFlag}, s{sWave}
        s_lshl_b32 s{sFlag}, s{sFlag}, 3
        s_add_u32 s{sFlag}, s{sFlag}, {WS_FLAG}
        """) + (lines(f"""
        s_lshr_b32 s{sA}, s{sS}, 2
        s_sub_u32 s{sC}, s{sS}, s{sA}
        s_add_u32 s{sC}, s{sC}, 16
        s_and_b32 s{sA}, s{sS}, 3
        s_cmp_lt_u32 s{sA}, 3; s_cselect_b32 s{sC}, s{sC}, 31
        s_cmp_lt_u32 s{sC}, 27; s_cselect_b32 s{sThree}, 1, 0
        """) if cfg.get("map8") == 2 else lines(f"""
        s_mul_i32 s{sC}, s{sHalf}, 3
        s_add_u32 s{sC}, s{sC}, s{sJ}
        s_add_u32 s{sC}, s{sC}, 16
        s_add_u32 s{sA}, s{sS}, 5
        s_and_b32 s{sA}, s{sA}, 15
        s_cmp_lt_u32 s{sA}, 11; s_cselect_b32 s{sC}, s{sC}, 31; s_cselect_b32 s{sThree}, 1, 0
        """)) + lines(f"""
        """) + self.f_params(PB[1], sS) + self.f_params(PB[2], sC) + self.pack_params() + lines(f"""
        v_lshrrev_b32 v{vT}, 5, v0
        v_lshlrev_b32 v{vT}, 4, v{vT}
        v_bfe_u32 v{vT+1}, v0, 4, 1
        v_lshl_add_u32 v{vT}, v{vT+1}, 2, v{vT}
        v_bfe_u32 v{vT+1}, v0, 2, 2
        v_add_u32 v{vT}, v{vT}, v{vT+1}
        v_lshlrev_b32 v{vT}, 7, v{vT}
        v_and_b32 v{vT+2}, 3, v0
        v_lshl_add_u32 v{vT}, v{vT+2}, 3, v{vT}
        v_add_u32 v{vT}, s{sM0}, v{vT}
        v_lshrrev_b32 v{vT+1}, 1, v{vT+1}
        s_and_b32 s{sA+2}, s{sWave}, 2
        v_or_b32 v{vT+1}, s{sA+2}, v{vT+1}
        """)
        for ch in range(4):
            setup.append(f"v_xor_b32 v{PR+20+ch}, {ch}, v{vT+1}")
            setup.append(f"v_lshl_add_u32 v{PR+20+ch}, v{PR+20+ch}, 5, v{vT}")
        setup += [f"v_mul_u32_u24 v{PR+16}, 1280, v{vRow}", f"v_add_u32 v{PR+16}, v{vCol}, v{PR+16}"]
        setup += [f"v_add_u32 v{PR+16+j}, {j*(8*1280-1024)}, v{PR+16}" for j in range(1, 4)]
        setup += lines(f"""
        s_lshl_b32 s{sA}, s2, 1
        s_and_b32 s{sA+1}, s{sWave}, 1
        s_add_u32 s{sA}, s{sA}, s{sA+1}
        s_mul_i32 s{sA+1}, s{sA}, 20
        v_add_u32 v{vT}, s{sA+1}, v0
        v_lshrrev_b32 v{vT+1}, 4, v{vT}
        v_mul_u32_u24 v{vT+1}, {3456-2048}, v{vT+1}
        v_lshl_add_u32 v94, v{vT}, 7, v{vT+1}
        s_mul_i32 s{sA+1}, s{sA}, 14
        v_add_u32 v{vT}, s{sA+1}, v0
        v_mul_u32_u24 v{vT+1}, {(1<<20)//11+1}, v{vT}
        v_lshrrev_b32 v{vT+1}, 20, v{vT+1}
        v_mul_u32_u24 v{vT+1}, 2048, v{vT+1}
        v_lshl_add_u32 v91, v{vT}, 7, v{vT+1}
        s_lshr_b32 s{sDuty}, s2, 3
        s_and_b32 s{sDuty}, s{sDuty}, 3
        """) + self.p2_params()
        if cfg.get("verbose"): print("setup ops", len(setup), "first", n_first)
        order = list(cfg.get("order", ["X0", "X1", "X2", "X3", "X4", "X5", "X6", "X7", "X8", "X9", "B", "B", "B", "B"]))
        def queue_next():
            o = order.pop(0)
            if o[0] == "T":
                r0, n = {"Ta": (0, 8), "Tb": (256, 12), "Tc": (0, 4), "Td": (128, 16)}[o]
                self.emit(f"s_lshl_b32 s{sA+6}, s{sMb}, 1; s_and_b32 s{sA+5}, s{sWave}, 1; s_add_u32 s{sA+6}, s{sA+6}, s{sA+5}; s_mul_i32 s{sA+6}, s{sA+6}, {n}; "
                          f"s_lshl_b32 s{sA+5}, s{sRot}, 6; s_add_u32 s{sA+6}, s{sA+6}, s{sA+5}; s_add_u32 s{sA+6}, s{sA+6}, {r0}; v_add_u32 v90, s{sA+6}, v0; "
                          f"v_subrev_u32 v89, 640, v90; v_min_u32 v90, v89, v90; v_mul_u32_u24 v90, 3840, v90; s_mov_b64 exec, {(1<<n)-1}; "
                          f"buffer_load_dword v90, v90, s[{PB[0]}:{PB[0]+3}], s{PB[0]+5} offen; s_mov_b64 exec, -1", "T")
                if not order: return
                o = order.pop(0)
            if o == "B":
                self.pend += self.dma_items(self.next); self.next += 1
            else:
                i = int(o[1:]); sl = self.alloc(("X", i))
                if i: self.pend.append(("op", f"s_add_u32 m0, s{sM0}, {sl*16384}; s_add_u32 s{sX}, s{sX}, 128; s_cmp_eq_u32 s{sX}, 1280; s_cselect_b32 s{sX}, 0, s{sX}"))
                self.pend += [("ld", f"buffer_load_dwordx4 v{EP+4+j}, s[{SRDX}:{SRDX+3}], s{sX} offen offset:{1024*j} lds", f"X{i}") for j in range(4)]
        XW = cfg["XW"]; spl = cfg.get("spl", 12); done = 0
        for g in range(XW):
            if order[0] == "B": assert done >= n_first
            queue_next()
            for j in range(4):
                self.pop_ld()
                sp_ = cfg.get("spl0", spl) if g < 2 else spl
                if 4 * g + j + 1 == cfg.get("xw1", -1): sp_ = 1000
                for o in setup[done:done + sp_]: self.emit(o)
                done += sp_
        for o in setup[done:]: self.emit(o)
        self.stamp(1, True)
        def stats(i, j):
            for r in range(4 * j, 4 * j + 4):
                x = XB + 16 * i + r
                a(f"v_dot2c_f32_bf16 v{vSum}, s{sOne}, v{x}")
                a(f"v_dot2c_f32_bf16 v{vSq}, v{x}, v{x}")
        for i in range(10):
            vm.wait(a, f"X{i}", 4)
            if i in (0, 2, 4, 6, 8): self.stamp(2 + i // 2, True)
            sl = self.slot[("X", i)]
            for s in range(4):
                x = XB + 4 * (4 * i + s)
                a(f"ds_read_b128 v[{x}:{x+3}], v{XA+4*(sl>>2)+s} offset:{(sl&3)*16384}")
            if order and (order[0] != "B" or self.next < cfg["PB"]): queue_next()
            for j in range(4):
                if self.pend: self.pop_ld()
                if i: stats(i - 1, j)
            a("s_waitcnt lgkmcnt(0)")
            self.xdone.add(("X", i))
        a(f"s_xor_b32 s{sTok+1}, s{sTok+1}, 0x{TOKX:x}\ns_add_u32 s{sTok}, s{sTok}, 1")
        for j in range(4): stats(9, j)
        self.stamp(1)
        a(f"""
        s_mov_b32 s{sA}, 0x3acccccd
        s_nop 1
        v_mov_b32 v{vT}, v{vSum}
        v_mov_b32 v{vR}, v{vSq}
        s_nop 0
        v_permlane32_swap_b32 v{vSum}, v{vT}
        v_permlane32_swap_b32 v{vSq}, v{vR}
        s_nop 0
        v_add_f32 v{vSum}, v{vSum}, v{vT}
        v_add_f32 v{vSq}, v{vSq}, v{vR}
        v_mul_f32 v{vSum}, s{sA}, v{vSum}
        v_mul_f32 v{vSq}, s{sA}, v{vSq}
        v_cvt_pk_bf16_f32 v{vNegM}, 0, -v{vSum}
        v_fma_f32 v{vSq}, -v{vSum}, v{vSum}, v{vSq}
        """)
        NC = cfg["nc"]
        def first_frags():
            self.stamp(8, True)
            vm.wait(a, "B1" if cfg["bar2"] else "B0", 4)
            a("s_barrier")
            self.stamp(7, True)
            for G in range(2):
                for r in self.tr_reads(G): a(r)
        for st_ in range(NC):
            d0, c0 = self.center_ops(st_)
            if st_ == NC - 1:
                while order or self.pend:
                    if not self.pend: queue_next()
                    self.pop_ld()
                for op in d0: a(op)
                first_frags()
                for op in c0: a(op)
            else:
                if order and not self.pend: queue_next()
                for j, op in enumerate(d0 + c0):
                    a(op)
                    if j % 12 == 0 and self.pend: self.pop_ld()
        self.stamp(2)
        extra = Uniq()
        extra[130] = lines(f"""
            v_max_f32 v{vSq}, 0, v{vSq}
            v_cvt_pk_bf16_f32 v{vR}, 0, v{vSq}
            v_add_f32 v{vR}, 0x3727c5ac, v{vR}
            v_cvt_pk_bf16_f32 v{vR}, 0, v{vR}
            v_sqrt_f32 v{vR}, v{vR}; s_nop 0
            v_cvt_pk_bf16_f32 v{vD2}, 0, v{vR}
            v_rcp_f32 v{vR}, v{vD2}
            v_mul_f32 v{vD2}, v{vD2}, v{vD2}
            v_mul_f32 v{vC1}, 0x{NLOG2E:x}, v{vR}
            """)
        def pack_issue():
            sl = self.alloc("P")
            self.pend += [("op", f"s_add_u32 m0, s{sM0}, {sl*16384}")]
            self.pend += [("ld", f"buffer_load_dwordx4 v{PR+16+j}, s[{PK}:{PK+3}], s{PK+4} offen offset:{1024*j} lds", "PK") for j in range(4)]
        pk0 = cfg["pk0"]; pk1 = cfg["pk1"]
        extra[pk0] = pack_issue
        extra[pk0 + 1] = [lambda ch=ch: a(f"v_add_u32 v{PR+20+ch}, {self.slot['P']*16384}, v{PR+20+ch}") for ch in range(4)]
        rdl = [lambda: vm.wait(a, "PK", 4)]
        for ch in range(4):
            rdl.append(f"ds_read_b64_tr_b16 v[{PR+4*ch}:{PR+4*ch+1}], v{PR+20+ch}")
            rdl.append(f"ds_read_b64_tr_b16 v[{PR+4*ch+2}:{PR+4*ch+3}], v{PR+20+ch} offset:1024")
        extra[pk1] = rdl
        stl = []
        for ch in range(4):
            stl.append(lambda ch=ch: (self.xdone.add("P"), vm.issue(a, f"buffer_store_dwordx4 v[{PR+4*ch}:{PR+4*ch+3}], v{vL16}, s[{SRDW}:{SRDW+3}], s{PK+5+ch} offen sc1", "I")))
        extra[pk1 + 24] = [lambda: [f() for f in stl]] if cfg['stb'] > 1 else stl
        def touch(which, duty=None):
            def f():
                r, n, off = ((94, 20, 0), (91, 14, 2048))[which]
                ins = f"buffer_load_dword v{r}, v{r}, s[{PB[1]}:{PB[1]+3}], 0 offen offset:{off}"
                if duty is None:
                    a(f"s_mov_b64 exec, {(1 << n) - 1}"); vm.issue(a, ins, "T"); a("s_mov_b64 exec, -1")
                else:
                    L = a.newlabel("du")
                    a(f"s_cmp_lg_u32 s{sDuty}, {duty}\ns_cbranch_scc1 {L}\ns_mov_b64 exec, {(1 << n) - 1}\n{ins}\ns_mov_b64 exec, -1\n{L}:")
            return f
        for which, key in ((0, "tch"), (1, "tch2")):
            g_ = cfg[key]
            if isinstance(g_, list):
                for d_, gg in enumerate(g_): extra[gg] = touch(which, d_)
            elif 0 <= g_ < 160: extra[g_] = touch(which)
        if cfg["pub1"] < 160: extra[cfg["pub1"]] = lambda: (self.publish(1, ["I"]), self.retouch("P"))
        vq0 = None
        if cfg.get("b0fake"):
            vq0 = [((lambda gap: gap >= cfg["b0fake"]), (lambda k=k, u=u: vm.issue(a, f"buffer_load_dwordx4 {self.rr(self.BSLOT[k], 4*u)}, v{vLd + (u & 3)}, s[{PB[0]}:{PB[0]+3}], s{PB[0]+6} offen offset:{k*512}", f"PB{k}"))) for k in range(4) for u in range(5)]
        self.body(0, None, 3, center=True, extra=extra, vq=vq0, before=[(pk0 + 1, pk1), (pk1, pk1 + 16), (pk1 + 24, cfg["pub1"])])
        self.stamp(3)
        self.vPub = 86
        extra = Uniq()
        if cfg["tch2"] >= 160: extra[cfg["tch2"] - 160] = touch(1)
        if cfg["pub1"] >= 160: extra[cfg["pub1"] - 160] = lambda: self.publish(1, ["I"])
        extra[cfg["pub2"]] = lambda: (self.publish(2, ["E0"]), self.retouch("Q", PB[0] + 7))
        GR = 88
        def epoch():
            L = a.newlabel("ep")
            a(f"""
            s_or_b32 s{sA+8}, s2, s{sWave}
            s_cbranch_scc1 {L}
            v_mov_b32 v{GR}, s{sTok}
            s_mov_b32 s{sA+8}, {WS_EPOCH}
            s_mov_b64 exec, 1
            buffer_store_dword v{GR}, off, s[{SRDW}:{SRDW+3}], s{sA+8}
            s_mov_b64 exec, -1
            {L}:
            """)
        gc = cfg["gck"]
        assert gc % 16 == 6 and (not cfg["bar2"] or (gc // 16) % 2 == 1)
        gb = gc + 2
        extra[gb + 1] = epoch
        for j in range(4):
            extra[gc - 42 + 4 * j] = lambda j=j: self.flag_load(GR + 2 * j, sFlG, f"G{j}", 1, 512 * j)
            extra[gc - 9 + [0, 2, 4, 8][j]] = lambda j=j: self.flag_check(GR + 2 * j, sFlG, f"G{j}", 1, off=512 * j)
        after = lambda g0: (lambda gap: gap >= g0)
        vq = [(after(gb), f) for k in range(4) for f in self.b_loads(k)] if not cfg.get('b0fake') else []
        rest1 = self.body(1, self.epi_q(ACC[0], PB[0] + 7), 3, wrange=(4, cfg["w1"]), extra=extra, vq=vq, vq1=cfg["b1vq"])
        while self.pend: self.pop_ld()
        self.stamp(4)
        vm_split = list(vm.q)
        a(f"s_cmp_eq_u32 s{sThree}, 0")
        a(f"s_cbranch_scc1 {label}_two")
        self.vPub = 62
        pre = []
        def P(fn): pre.append(fn); return fn
        extra = Uniq()
        vq = [(after(0), P(f)) for _, f in rest1]
        st = {"q": False}
        q_l0 = lambda: self.flag_load(XB, sFl0, "Q0", 2)
        q_l1 = lambda: self.flag_load(XB + 2, sFl1, "Q1", 2)
        q_c0 = lambda: self.flag_check(XB, sFl0, "Q0", 2)
        def q_c1():
            self.flag_check(XB + 2, sFl1, "Q1", 2); st["q"] = True
        qc = cfg["qck"]
        extra[qc - 33] = q_l0; extra[qc - 29] = q_l1; extra[qc - 1] = q_c0; extra[qc + 3] = q_c1
        attl = []
        lastkv = [-100]
        def att_ok(gap, j):
            if not st["q"] or gap - lastkv[0] < cfg["kvgap"]: return False
            attl or attl.extend(self.att_loads(False))
            if j < 10:
                if self.next < 30 or self.pend: return False
                if "K" not in self.slot:
                    if not (self.free(7) and self.free(8)): return False
                    self.alloc("K", 7); self.alloc("V", 8)
            lastkv[0] = gap
            return True
        bq = []
        l0 = len(a.lines)
        def acc_free(b):
            return lambda gap: sum(1 for l in a.lines[l0:] if l.startswith("    v_accvgpr_read_b32") and b <= int(l.rsplit("a", 1)[1]) < b + 20) == 20
        grp_ = {k: [(after(4 * (5 * (k - 4) + 10)), f) for f in self.b_loads(k)] for k in range(4, 8)}
        for k in (8, 9, 10): grp_[k] = [(acc_free(int(self.BSLOT[k][1:])), f) for f in self.b_loads(k)]
        cur = [None]
        def seq(k, u, c):
            def ok(gap):
                if cur[0] not in (None, k) or not c(gap): return False
                cur[0] = k if u < 4 else None
                return True
            return ok
        for k in cfg["b2order"]: bq += [(seq(k, u, c), f) for u, (c, f) in enumerate(grp_[k])]
        for k in (4, 5): [P(f) for _, f in grp_[k]]
        P(q_l0); P(q_l1)
        for k in (6, 7): [P(f) for _, f in grp_[k]]
        P(q_c0); P(q_c1)
        pre.append("att")
        for k in (8, 9, 10): [P(f) for _, f in grp_[k]]
        for j in list(range(10, 15)) + list(range(10)): vq.append((lambda gap, j=j: att_ok(gap, j), lambda j=j: attl[j]()))
        vq += bq
        wq = []
        for s in range(7):
            ok = lambda gap, s=s: self.next >= 30 and not self.pend and (self.owner[s] == ("WO", s) or self.free(s))
            wq += [(ok, f) for f in self.wo_loads(s)]
        vq += wq
        extra[cfg["pub3"]] = lambda: (self.publish(3, ["E1"]), self.retouch("F", PB[1] + 7))
        rest = self.body(2, self.epi_f(ACC[1], PB[1] + 7), 3, wrange=(4, cfg["w2"]), extra=extra, vq=vq, vq1=cfg["vq1"], vq2=cfg["vq2"])
        self.stamp(5)
        wfs = [f for _, f in wq]
        if cur[0] is not None:
            cf = [f for _, f in grp_[cur[0]]]
            rest = [x for x in rest if x[1] in cf] + [x for x in rest if x[1] not in cf]
        late = [f for c_, f in rest if f not in wfs] + [P(f) for k in (11, 12) for f in self.b_loads(k)]
        late += [f for c_, f in rest if f in wfs and c_(160)]
        ntail = cfg["ntail"]
        assert 15 - vm.q.count("KV") <= ntail and "K" in self.slot
        post = late[ntail:]; late = late[:ntail]
        wrest = [f for c_, f in rest if f in wfs and f not in late]
        post = [f for f in post if f not in wfs]
        pre[:] = [f for f in pre if f not in post]
        for f in wfs:
            if f not in wrest: P(f)
        def tail(ops, inter, tag):
            inter = list(inter); n = len(ops); k = len(inter); j = 0
            for i, op in enumerate(ops):
                self.emit(op, tag)
                while j < k and j < (i + 1) * k // n:
                    inter[j](); j += 1
        a("s_nop 5")
        if cfg.get("f3tail"): late.insert(cfg["f3tail"], P(lambda: self.flag_load(vFl, sFl0, "F3", 3)))
        tail(self.epi_f_tail(ACC[0], PB[2] + 7), late, "E2")
        if cfg.get("verbose"): print("tail loads", len(late), "after join: B loads", len(post), "wo loads", len(wrest))
        self.lastbar = 100
        self.alloc("O", 9)
        a.label(f"{label}_join")
        self.stamp(6)
        self.vPub = 20
        if not cfg.get("f3tail"): self.flag_load(vFl, sFl0, "F3", 3)
        a(f"s_lshr_b32 s{sA}, s{sM0}, 2\nv_add_u32 v{vA[0]}, s{sA}, v{vL16}")
        for i in range(1, 4): a(f"v_add_u32 v{vA[i]}, 1024, v{vA[i-1]}\nv_and_b32 v{vA[i]}, 4095, v{vA[i]}")
        a("s_barrier")
        def xaddr(j, d, t1, t2):
            return [f"v_add_u32 v{t1}, {64*j}, v0", f"v_mul_u32_u24 v{t2}, {(1<<16)//10+1}, v{t1}", f"v_lshrrev_b32 v{t2}, 16, v{t2}",
                    f"v_mul_u32_u24 v{t2}, {1280-160}, v{t2}", f"v_lshl_add_u32 v{t2}, v{t1}, 4, v{t2}", f"v_add_u32 v{d}, s{sXo}, v{t2}"]
        def xl(j):
            for o in xaddr(j, 114, 114, 115): a(o)
            a(f"v_accvgpr_write_b32 a{60+j}, v114")
            a(f"s_mul_i32 s{sA+2}, s{sWave}, 2560\ns_add_u32 m0, s{sA+2}, {102400 + 1024*j}")
            a("s_mov_b32 exec_hi, 0" if j == 2 else "s_nop 0")
            vm.issue(a, f"global_load_lds_dwordx4 v114, s[4:5]", "XO")
            if j == 2: a("s_mov_b32 exec_hi, -1")
        assert not post
        free_ = [lambda j=j: xl(j) for j in range(3)] + post + wrest
        n1 = cfg["natt1"]; n2 = cfg["natt2"]
        al = free_[n1:]
        aa = [f for k in range(4) for f in self.a_loads(k)]
        n0 = cfg.get("natt0", n1)
        inter = free_[:n0] + [lambda: self.flag_check(vFl, sFl0, "F3", 3)]
        mix = list(aa[:n2])
        for j_, f_ in enumerate(free_[n0:n1]): mix.insert((j_ + 1) * (n2 + n1 - n0) // (n1 - n0) - 1, f_)
        inter += mix
        inter.insert(min(len(inter), cfg["pub4"]), lambda: self.publish(4, ["E2"]))
        ost = self.attention(inter)
        self.stamp(8)
        XR = 4; vX = 14; vW = 25; vRd = 28; vXo = [1, 2, 29]
        KF = cfg["kf"]
        wl = [f for f in al if f not in post]
        Q_ = [(0, f) for f in ost + aa[n2:] + [f for f in al if f in post]]
        grp = lambda e, fs: [(e, f) for f in fs]
        A_ = lambda k: grp(max(self.AEARLY[k], KF if k >= 8 else 0), self.a_loads(k))
        B_ = lambda k: grp(0, self.b_loads(k))
        for it in cfg["forder"]:
            Q_ += A_(int(it[1:])) if it[0] == "A" else B_(int(it[1:])) if it[0] == "B" else grp(0, wl) if it == "W" else grp(5, ["x0", "x1", "x2"])
        OA = 176
        def wo_reads(T):
            b = WR[T % 6]
            return [f"ds_read_b128 v[{b+4*u}:{b+4*u+3}], v{vL16 if T < 12 else 15} offset:{(T % 12)*5120 + u*1024}" for u in range(5)]
        def o_load(T):
            def f():
                if T % 4 == 0: a(f"s_add_u32 s{sGb}, s{sOld}, {T*1024}")
                vm.issue(a, f"buffer_load_dwordx4 a[{OA+4*T}:{OA+4*T+3}], v{vL16}, s[{SRDW}:{SRDW+3}], s{sGb} offen offset:{1024*(T&3)} sc1", f"PO{T//2}")
            return f
        KB = cfg["kbar"]; KO = cfg["ko"]; ns = cfg["nside"]; NOF = cfg["no_f"]; KX = cfg["kx"]
        R = 32; FO = 236; SQ = [92, 4, 8, 16, 20]; XU = 216
        WR = [116, 136, 156, 176, 196, 96]
        lq = LQ()
        def mf(k, i, u):
            t_ = (i * 5 + u) * 4
            d = f"a[{t_-20}:{t_-17}]" if i else f"v[{FO+t_}:{FO+t_+3}]"
            a(f"v_mfma_f32_16x16x32_bf16 {d}, {self.rr(self.BSLOT[k], 4*u)}, {self.rr(self.ASLOT[k], 4*i)}, {'0' if k == 0 else d}")
        def wait_ab(k):
            assert vm.q.count(f"PB{k}") == 5 and vm.q.count(f"PA{k}") == 4
            vm.wait(a, f"PA{k}" if vm.last(f"PA{k}") > vm.last(f"PB{k}") else f"PB{k}")
        olist = [o_load(T) for T in range(20)]
        for k in range(KX):
            if k % 2 == 0: self.mark(10 + k // 2)
            wait_ab(k)
            side = []
            if k == KF - 2: side += [lambda: self.flag_load(vFl, sFl0, "F4", 4)]
            if k == cfg.get("kp5", 3) and not cfg["nokb"]: side += [lambda: self.publish(5, ["O"])]
            if cfg["nokb"] and k == 2:
                side += [lambda o=o: a(o) for o in (f"v_and_b32 v1, 15, v0", f"v_mul_u32_u24 v2, 160, v1", f"v_lshrrev_b32 v1, 4, v0", f"v_lshl_add_u32 v2, v1, 3, v2",
                                                     f"s_add_u32 s{sA+2}, s{sA+2}, 102400", f"v_add_u32 v1, s{sA+2}, v2")]
            late_side = []
            if cfg["nokb"] and k == 3:
                side += [lambda: (vm.wait(a, "O"), [lq.issue(a, f"ds_read_b64 v[{XR+2*u}:{XR+2*u+1}], v1 offset:{32*u}", "XL") for u in range(5)])]
                late_side = [lambda: a(f"v_mov_b32 v{vX}, v2"), lambda: (lq.wait(a, "XL"), self.publish(5, []))]
            if k == KF: self.flag_check(vFl, sFl0, "F4", 4)
            if k == KO - 2: side += [lambda: self.flag_load(vFl, sFl0, "F5", 5)]
            if k == KO: self.flag_check(vFl, sFl0, "F5", 5, half=True)
            room = ns[k] - (1 if side else 0)
            for it in list(Q_):
                if room > 0 and it[0] <= k:
                    Q_.remove(it); room -= 1
                    side.append((lambda j=int(it[1][1]): xl(j)) if isinstance(it[1], str) else it[1])
            if k >= KO and not Q_ and room > 0: side += olist[:room]; olist = olist[room:]
            if k == 4:
                side += [lambda j=j: a(f"v_accvgpr_read_b32 v{vXo[j]}, a{60+j}") for j in range(3)]
            if k == 5:
                side += [lambda o=o: a(o) for o in lines(f"""
                    v_add_u32 v15, {12*5120}, v{vL16}
                    s_mov_b32 s{sA}, 0x{NLOG2E:x}
                    s_mov_b32 s{sA+1}, 0xffff0000
                    """)]
            if k == 6:
                for i in range(4):
                    d = vRd if i == 0 else vW + i - 1
                    side += [lambda o=o: a(o) for o in (f"v_lshrrev_b32 v3, 10, v{vA[i]}", f"v_mul_u32_u24 v3, 15360, v3",
                                                         f"v_add_u32 v3, {102400 + max(i-1, 0)*5120}, v3", f"v_add_u32 v{d}, v3, v{vL16}")]
            side += late_side
            if k == KB - 1 and not cfg['nokb']:
                side += [lambda: (vm.wait(a, "XO", 3), a(f"s_add_u32 s{sA+2}, s{sA+2}, 102400\nv_add_u32 v3, s{sA+2}, v{vX}"))]
                side += [lambda u=u: lq.issue(a, f"ds_read_b64 v[{XR+2*u}:{XR+2*u+1}], v3 offset:{32*u}", "XL") for u in range(5)]
            if k == KB and not cfg['nokb']:
                lq.wait(a, "XL"); vm.wait(a, "WO", 25); a("s_barrier")
            nsd = len(side); j = 0
            for i in range(4):
                for u in range(5):
                    mf(k, i, u)
                    while j < nsd and j < (i * 5 + u + 1) * nsd // 20:
                        side[j](); j += 1
        assert not Q_, len(Q_)
        assert KB < KX and KO < KX and KX >= 10
        self.mark(16)
        nk = 14 - KX
        base_side = olist[:max(NOF - (20 - len(olist)), 0)]; olist = olist[len(base_side):]
        ol_ = base_side
        base_side = [lambda r=r, T=T: lq.issue(a, r, f"W{T}") for T in range(5) for r in wo_reads(T)]
        base_side += [lambda j=j: a(f"v_and_b32 v{XU+j}, s{sA+1}, v{XR+(j>>1)}" if j & 1 else f"v_lshlrev_b32 v{XU+j}, 16, v{XR+(j>>1)}") for j in range(20)]
        for j_, f_ in enumerate(ol_): base_side.insert(j_ * (45 + len(ol_)) // len(ol_), f_)
        nb_ = len(base_side); jb = 0; m = 0
        for ri, i in enumerate((1, 2, 3, 0)):
            pw = []
            if ri:
                ip = (1, 2, 3)[ri - 1]
                pw = [f"ds_write_b128 v{vW+ip-1}, a[{(ip*5+u)*4-20}:{(ip*5+u)*4-17}] offset:{u*1024}" for u in range(5)]
            mm = 0
            for k in range(KX, 14):
                if ri == 0: wait_ab(k)
                for u in range(5):
                    mf(k, i, u); m += 1; mm += 1
                    if pw and mm >= 4 and (mm - 4) * 5 >= (5 - len(pw)) * (5 * nk - 4): lq.issue(a, pw.pop(0), "PW")
                    else:
                        while jb < nb_ and jb < m * nb_ // (20 * nk):
                            base_side[jb](); jb += 1
            for w_ in pw: lq.issue(a, w_, "PW")
        while jb < nb_:
            base_side[jb](); jb += 1
        self.stamp(7)
        work = [("f", f) for f in olist[:2]] + [("bar",)]
        for j in range(15): work.append(("l", f"ds_read_b128 v[{R+4*j}:{R+4*j+3}], v{vRd} offset:{j*1024}", "PR"))
        work += [("f", f) for f in olist[2:]]
        pk2 = lambda op, d, x, y: "\n".join(f"{op} v[{d+2*j}:{d+2*j+1}], v[{x+2*j}:{x+2*j+1}], {y(j)}" for j in range(10))
        work.append(("v", f"v_sub_u32 v3, v{vRd}, v{vL16}")); work.append(("v", f"v_add_u32 v3, v3, v{vX}"))
        work.append(("lw", "PR"))
        work.append(("v", "\n".join([pk2("v_pk_add_f32", FO, FO, lambda j: f"v[{R+2*j}:{R+2*j+1}]"),
                                     pk2("v_pk_add_f32", R+20, R+20, lambda j: f"v[{R+40+2*j}:{R+40+2*j+1}]"),
                                     pk2("v_pk_add_f32", FO, FO, lambda j: f"v[{R+20+2*j}:{R+20+2*j+1}]"),
                                     pk2("v_pk_mul_f32", R, FO, lambda j: f"s[{sA}:{sA+1}] op_sel_hi:[1,0]")])))
        for j in range(20): work.append(("v", f"v_exp_f32 v{R+j}, v{R+j}"))
        for j in range(20): work.append(("v", f"v_add_f32 v{R+j}, 1.0, v{R+j}"))
        for j in range(20): work.append(("v", f"v_rcp_f32 v{R+j}, v{R+j}"))
        def do(wk):
            if wk[0] == "v": a(wk[1])
            elif wk[0] == "f": wk[1]()
            elif wk[0] == "l": lq.issue(a, wk[1], wk[2])
            elif wk[0] == "lw": lq.wait(a, wk[1])
            elif wk[0] == "bar":
                lq.wait(a, "PW"); self.mark(20); a("s_barrier"); self.mark(21)
        for j in range(20): work.append(("v", f"v_mul_f32 v{FO+j}, v{FO+j}, v{R+j}"))
        nw = len(work); done = 0; m = 0
        TU = cfg["tu"]; NM = 5 * TU
        def smf(T, u):
            d = f"v[{SQ[u]}:{SQ[u]+3}]"; b = WR[T % 6]
            a(f"v_mfma_f32_16x16x32_bf16 {d}, v[{b+4*u}:{b+4*u+3}], a[{OA+4*T}:{OA+4*T+3}], {'0' if T == 0 else d}")
        for T in range(TU):
            if T % 4 == 0: vm.wait(a, f"PO{T//2+1}", 2)
            if T in (0, 10): self.mark({0: 17, 10: 18}[T])
            if T % 3 == 0: lq.wait(a, f"W{T+2}")
            rd = wo_reads(T + 5) if T + 5 < 20 else []
            for u in range(5):
                smf(T, u); m += 1
                if rd: lq.issue(a, rd.pop(0), f"W{T+5}")
                while done < nw and done < m * nw // NM:
                    do(work[done]); done += 1
        assert done == nw and TU >= 15
        self.mark(19)
        vm.wait(a, "PO9", 2); lq.wait(a, "W19")
        def comb(u):
            f0 = FO + 4 * u; o = 64 + 2 * u
            return [f"v_fma_f32 v{f0+j}, v{f0+j}, v{SQ[u]+j}, v{XU+4*u+j}" for j in range(4)] + \
                   [f"v_cvt_pk_bf16_f32 v{o}, v{f0}, v{f0+1}", f"v_cvt_pk_bf16_f32 v{o+1}, v{f0+2}, v{f0+3}", f"ds_write_b64 v3, v[{o}:{o+1}] offset:{32*u}"]
        for u in range(5):
            c_ = comb(u - 2) if u >= 2 else []
            if u == 2: a(f"s_nop {max(8 - (20 - TU) - 2, 0)}")
            for T in range(TU, 20):
                smf(T, u)
                for o in c_[:2]: a(o)
                c_ = c_[2:]
            for o in c_: a(o)
        for o in comb(3): a(o)
        a("s_nop 0")
        for o in comb(4): a(o)
        a("s_waitcnt lgkmcnt(0)")
        for j in range(3): a(f"ds_read_b128 v[{76+4*j}:{79+4*j}], v{vRd} offset:{1024*j}")
        for j in range(3):
            a(f"s_waitcnt lgkmcnt({2-j})")
            if j == 2: a("s_mov_b32 exec_hi, 0")
            a(f"global_store_dwordx4 v{vXo[j]}, v[{76+4*j}:{79+4*j}], s[6:7] {cfg.get('scO', '')}")
        a("s_mov_b32 exec_hi, -1")
        self.mark(22)
        if self.stamps:
            a("s_waitcnt vmcnt(0)")
            a(f"s_memtime s[{sA}:{sA+1}]")
            a(f"s_memrealtime s[{sA+2}:{sA+3}]")
            a("s_waitcnt lgkmcnt(0)")
            for i in range(1, 8):
                a(f"s_sub_u32 s{sA+4}, s{ST0+2*(i-1)}, s0\nv_mov_b32 v{32+i}, s{sA+4}")
            a(f"s_sub_u32 s{sA+4}, s{sA}, s0\nv_mov_b32 v40, s{sA+4}\nv_mov_b32 v41, s{sA+2}")
            a(f"s_sub_u32 s{sA+4}, s{ST0+14}, s0\nv_mov_b32 v42, s{sA+4}")
            a(f"""
            v_mov_b32 v32, s1
            s_lshl_b32 s{sA}, s2, 2
            s_add_u32 s{sA}, s{sA}, s{sWave}
            s_lshl_b32 s{sA}, s{sA}, 6
            s_add_u32 s{sA}, s{sA}, {WS_STAMP}
            s_mov_b64 exec, 1
            buffer_store_dwordx4 v[32:35], off, s[{SRDW}:{SRDW+3}], s{sA}
            buffer_store_dwordx4 v[36:39], off, s[{SRDW}:{SRDW+3}], s{sA} offset:16
            buffer_store_dwordx4 v[40:43], off, s[{SRDW}:{SRDW+3}], s{sA} offset:32
            """)
        a("s_endpgm")
        a.label(f"{label}_two")
        self.stamp(5)
        self.vm = vm = VM()
        self.vPub = 62
        self.vm.q = list(vm_split)
        self.vm.wait(a, [t_ for t_ in self.vm.q if t_[0] == "B" and t_[1:].isdigit()][-1])
        a("s_waitcnt lgkmcnt(0)\ns_barrier\ns_nop 4")
        flat = []
        for f in pre: flat += self.att_loads() if f == "att" else [f]
        nb_ = cfg["nbtail"]
        tail(self.epi_f_tail(ACC[1], PB[1] + 7), flat[:nb_], "E1")
        for i, f in enumerate(flat[nb_:]):
            if i == cfg["nbpub"]:
                self.publish(3, ["E1"]); a("s_nop 1"); self.publish(4, []); self.retouch("F", PB[1] + 7)
            if i % 8 == 3 and cfg.get("markT", 2) == 2: self.mark(i // 8)
            f()
        a("s_waitcnt vmcnt(0)")
        a(f"s_branch {label}_join")
        for s in self.slow: a(s)
        a.label(f"{label}_end")
        a("s_endpgm")
        a.end_kernel(label, 512, 102, 256, 256, 256, 163840)
        return a.text("""Generated by dev/fused2.py (own generator). One persistent kernel, 256 workgroups of 4 waves, one per CU.
kernarg: 0 A_x, 8 A_wqkv, 16 A_wo, 24 B_x (unused by the reference), 32 w_gate, 40 w_up, 48 w_down, 56 out, 64 debug, 72 ws
Phase 1: 128 rows of x per workgroup stay in registers (LayerNorm: centred in place, 1/std applied in the epilogues);
  up to three 128-column tasks of x@[wqkv | w_gate,w_up] with the weights streamed through an LDS ring (LDS-DMA + transposing reads);
  q,k,v and h = silu(g)*u go to ws; w_down / wo are repacked into MFMA fragment order in ws.
Attention: 64 rows x 4 heads per workgroup (true row max softmax), result to ws.
Phase 2: 64x80 output tile per workgroup: h@w_down (K split over the waves), o@wo, out = x + s*silu(f).
Hand-offs between workgroups: write-through stores, then a per-wave flag holding a token that is new in every launch
  (derived from a word in ws that workgroup 0 advances), consumers look at the flags before they load.""")

if __name__ == "__main__":
    stamps = "--stamps" in sys.argv
    pos = [x for x in sys.argv[1:] if not x.startswith("--")]
    cfg = json.loads(pos[1]) if len(pos) > 1 else {}
    open(pos[0], "w").write(Gen(cfg, stamps).build())
```

```python
import sys, json, struct; sys.path.insert(0, "dev")
from asmlib import *

WS_H = 0
WS_O = 0x780000
WS_WD = 0xA00000
WS_WO = 0xD00000
WS_QKV = 0x1000000
WS_FLAG = 0x1800000
WS_EPOCH = WS_FLAG - 256
WS_STAMP = 0x1900000
WS_SIZE = 0x2000000
OOB = 0x4000000
TOKX = 0x5bd1e995
NLOG2E = 0xbfb8aa3b
def f2u(x): return struct.unpack("<I", struct.pack("<f", x))[0]
C_SM = f2u(20 ** -0.5 * 1.4426950408889634)

XB = 96; EP = 32; ACC = [0, 64]; WF = 128; NWB = 3
vLd = 1; vTr = 5
vSF = 17; vL8 = 18; vC1 = 19; vD2 = 20; vR = 21; vNegM = 22; vSum = 23; vSq = 24
vRow = 25; vCol = 26; vT = 27
vDbg = 30; vL16 = 31
vFl = 22
vQa = 28; vKa = 29
vA = [16, 17, 19, 24]
PR = 64
sOOB = 3
pQKV = 76; pWS = 78; pWO = 80; pDN = 82; pG = 84; pU = 86
sWave = 8; sMb64 = 9; sHalf = 10; sM0 = 11; sSoff = 12; sStep = 13; sWrap = 14; sThree = 15
SRDW = 16
SRDX = 20
sGa = 20; sGb = 21; sDuty = 96
PB = [24, 32, 40]
PK = 48
sOne = 57; sLo = 58; sHi = 59
sTok = 60
sFlag = 62; sFl0 = 63; sFl1 = 64; sFlG = 65
sAb = 66; sAb2 = 67; sBb = 68; sBb2 = 69; sOld = 70; sWOb = 71; sOst = 72; sOst2 = 73; sKV = 74; sXo = 75
ST0 = 76
sMb = 88; sJ = 89; sRot = 90; sNb = 91
sA = 92

class VM:
    def __init__(self): self.q = []
    def issue(self, a, ins, tag):
        a(ins); self.q.append(tag)
    def last(self, tag): return max(i for i, t in enumerate(self.q) if t == tag)
    def wait(self, a, tag, cnt=None):
        if cnt is not None: assert self.q.count(tag) == cnt, (tag, self.q.count(tag))
        a(f"s_waitcnt vmcnt({min(len(self.q) - 1 - self.last(tag), 63)})")
class LQ:
    def __init__(self): self.q = []
    def issue(self, a, ins, tag):
        a(ins); self.q.append(tag)
    def wait(self, a, tag):
        idx = max(i for i, t in enumerate(self.q) if t == tag)
        a(f"s_waitcnt lgkmcnt({min(len(self.q) - 1 - idx, 15)})")
class Uniq(dict):
    def __setitem__(self, k, v):
        assert k not in self, ("duplicate gap", k)
        dict.__setitem__(self, k, v)
def lines(s): return [l.split(";;")[0].strip() for l in s.split("\n") if l.split(";;")[0].strip()]
DIV5 = (1 << 16) // 5 + 1
DIV3 = (1 << 16) // 3 + 1

class Gen:
    KS = 7
    def __init__(self, cfg, stamps):
        self.cfg = dict(dict(LA=6, XW=4, spl=20, PB=2, bar2=True, rpat=[2, 2, 2, 2], dmagap=2, spin=3000, cap=5.0,
                             rotm=0x1010, rotx=0x7520, tch=-1, tch2=110, pk0=18, pk1=70, pub1=124, pub2=124, gck=118, qck=70, pub3=126, qsh=15,
                             w1=100, w2=96, b1vq=1, vq1=1, vq2=1, ntail=20, natt1=30, natt2=16, pub4=12,
                             nside=[5] * 14, kvgap=6, tu=16, nokb=1, nc=3, p2x=2, nbtail=14, nbpub=12, stb=1, stq=False, kf=4, b2order=[4, 8, 5, 9, 6, 10, 7], forder=['A4', 'A5', 'A6', 'A7', 'W', 'A8', 'A9', 'A10', 'A11', 'A12', 'A13', 'B13'], kbar=10, ko=10, no_f=16, kx=11), **cfg)
        self.stamps = stamps
        self.a = Asm(); self.vm = VM()
        self.label = NAME + "_kernel"
        self.slot = {}; self.owner = [None] * 10
        self.xdone = set(); self.lastbar = -10
        self.next = 0; self.pend = []; self.slow = []
        self.vPub = 92
    def stamp(self, i, pro=False):
        if self.cfg.get("pst") and i and not pro: return
        if pro and not self.cfg.get("pst"): return
        if self.stamps: self.a(f"s_memtime s[{ST0+2*(i-1)}:{ST0+2*(i-1)+1}]" if i else "s_memtime s[0:1]")
    def mark(self, i):
        if self.cfg.get("marks"):
            r = 22
            self.a(f"""
            s_memtime s[{r}:{r+1}]
            s_waitcnt lgkmcnt(0)
            s_sub_u32 s{r}, s{r}, s0
            v_mov_b32 v{vDbg}, s{r}
            s_lshl_b32 s{r}, s2, 2
            s_add_u32 s{r}, s{r}, s{sWave}
            s_lshl_b32 s{r}, s{r}, 7
            s_add_u32 s{r}, s{r}, {WS_STAMP + 0x40000 + 4*i}
            s_mov_b64 exec, 1
            """)
            self.vm.issue(self.a, f"buffer_store_dword v{vDbg}, off, s[{SRDW}:{SRDW+3}], s{r}", "mk")
            self.a("s_mov_b64 exec, -1\ns_nop 1")
    def emit(self, op, tag="st"):
        for o in op.split(";"):
            o = o.strip()
            if o.startswith(("global_", "buffer_")): self.vm.issue(self.a, o, tag)
            else: self.a(o)
    def free(self, s):
        o = self.owner[s]
        if o is None: return True
        if o[0] == "B": return o[1] <= self.lastbar - 1
        return o in self.xdone
    def cands(self, name):
        c = [s for s in range(10) if self.free(s)]
        if name[0] == "B" and name[1] >= self.cfg.get("avoid_from", 23): c = [s for s in reversed(c) if s not in (7, 8)]
        return c
    def alloc(self, name, want=None):
        c = self.cands(name) if want is None else [s for s in range(10) if self.free(s) and s == want]
        assert c, ("no free slot", name, self.owner, self.lastbar)
        s = c[0]; self.owner[s] = name; self.slot[name] = s
        return s

    def pos_ops(self, f, d):
        t = sA + 4
        return [f"s_lshr_b32 s{t}, s{f}, 2", f"s_mul_i32 s{t}, s{t}, 6", f"s_lshl_b32 s{d}, s{f}, 1", f"s_add_u32 s{t}, s{t}, s{d}",
                f"s_sub_u32 s{t+1}, s{f}, 16", f"s_mul_i32 s{t+1}, s{t+1}, {DIV3}", f"s_lshr_b32 s{t+1}, s{t+1}, 16", f"s_lshl_b32 s{t+1}, s{t+1}, 3",
                f"s_add_u32 s{t+1}, s{t+1}, s{d}", f"s_sub_u32 s{t+1}, s{t+1}, 24",
                f"s_cmp_lt_u32 s{f}, 16; s_cselect_b32 s{d}, s{t}, s{t+1}"]
    def f_params(self, P, code):
        t = sA
        return lines(f"""
        s_mov_b32 s{P+3}, 0x20000
        s_cmp_lt_u32 s{sWave}, 2; s_cselect_b32 s{P}, s{pG}, s{pU}; s_cselect_b32 s{P+1}, s{pG+1}, s{pU+1}
        s_cmp_lt_u32 s{code}, 27; s_cselect_b32 s{P+2}, {640*3456}, 0
        s_movk_i32 s{P+4}, 3456
        s_lshl_b32 s{P+5}, s{code}, 7
        s_mul_i32 s{P+6}, s{sRot}, {64*3456}
        """) + self.pos_ops(code, P + 7) + lines(f"""
        s_lshl_b32 s{t}, s{sMb}, 1
        s_lshr_b32 s{t+1}, s{sWave}, 1
        s_add_u32 s{t}, s{t}, s{t+1}
        s_mul_i32 s{t}, s{t}, 56
        s_add_u32 s{P+7}, s{P+7}, s{t}
        s_lshl_b32 s{P+7}, s{P+7}, 12
        s_and_b32 s{t+1}, s{sWave}, 1
        s_lshl_b32 s{t+1}, s{t+1}, 11
        s_add_u32 s{P+7}, s{P+7}, s{t+1}
        """)
    def q_params(self, P, q):
        t = sA
        return lines(f"""
        s_mov_b32 s{P+3}, 0x20000
        s_mov_b32 s{P}, s{pQKV}
        s_mov_b32 s{P+1}, s{pQKV+1}
        s_movk_i32 s{P+4}, 3840
        s_lshr_b32 s{t}, s{sWave}, 1
        s_lshl_b32 s{P+5}, s{q}, 1
        s_add_u32 s{P+5}, s{P+5}, s{t}
        s_lshl_b32 s{P+5}, s{P+5}, 7
        s_mul_i32 s{P+6}, s{sRot}, {64*3840}
        s_lshl_b32 s{t}, s{sMb}, 2
        s_add_u32 s{t}, s{t}, s{sWave}
        s_mul_i32 s{t}, s{t}, 122880
        s_lshl_b32 s{t+1}, s{q}, 13
        s_add_u32 s{t}, s{t}, s{t+1}
        s_add_u32 s{t}, s{t}, {WS_QKV}
        s_cmp_lt_u32 s{q}, 15; s_cselect_b32 s{P+2}, {640*3840}, 0; s_cselect_b32 s{P+7}, s{t}, s{sOOB}
        """)
    def pack_params(self):
        P = PK; t = sA
        r = lines(f"""
        s_mov_b32 s{P+3}, 0x20000
        s_mov_b32 s{t+2}, {640*1280}
        s_cmp_lt_u32 s2, 135; s_cselect_b32 s{P}, s{pDN}, s{pWO}; s_cselect_b32 s{P+1}, s{pDN+1}, s{pWO+1}; s_cselect_b32 s{P+2}, {1728*1280}, s{t+2}; s_cselect_b32 s{t}, 0, 135
        s_sub_u32 s{t}, s2, s{t}
        s_mul_i32 s{t+2}, s{t}, {DIV5}
        s_lshr_b32 s{t+2}, s{t+2}, 16
        s_mul_i32 s{t+3}, s{t+2}, 5
        s_sub_u32 s{t+1}, s{t}, s{t+3}
        s_mul_i32 s{P+4}, s{t+2}, {64*1280}
        s_lshl_b32 s{t+3}, s{t+1}, 8
        s_add_u32 s{P+4}, s{P+4}, s{t+3}
        s_lshr_b32 s{t+3}, s{sWave}, 1
        s_lshl_b32 s{t+3}, s{t+3}, 7
        s_add_u32 s{P+4}, s{P+4}, s{t+3}
        """) + self.pos_ops(t + 2, t + 3) + lines(f"""
        s_lshl_b32 s{t+2}, s{t+2}, 1
        s_mov_b32 s{t}, {WS_WO}
        s_movk_i32 s{t+6}, 100
        s_cmp_lt_u32 s2, 135; s_cselect_b32 s{t+3}, s{t+3}, s{t+2}; s_cselect_b32 s{t}, {WS_WD}, s{t}; s_cselect_b32 s{t+6}, 280, s{t+6}
        s_and_b32 s{t+2}, s{sWave}, 1
        s_add_u32 s{t+3}, s{t+3}, s{t+2}
        s_mul_i32 s{t+3}, s{t+3}, 5120
        s_add_u32 s{t}, s{t}, s{t+3}
        s_cmp_lt_u32 s2, 185; s_cselect_b32 s{P+2}, s{P+2}, 0; s_cselect_b32 s{t}, s{t}, s{sOOB}
        s_lshl_b32 s{t+1}, s{t+1}, 3
        s_and_b32 s{t+2}, s{sWave}, 2
        s_lshl_b32 s{t+2}, s{t+2}, 1
        s_add_u32 s{t+1}, s{t+1}, s{t+2}
        s_sub_u32 s{t+6}, s{t+6}, 5
        """)
        for ch in range(4):
            r += lines(f"""
            s_add_u32 s{t+2}, s{t+1}, {ch}
            s_mul_i32 s{t+3}, s{t+2}, {DIV5}
            s_lshr_b32 s{t+3}, s{t+3}, 16
            s_mul_i32 s{t+3}, s{t+3}, s{t+6}
            s_add_u32 s{t+3}, s{t+3}, s{t+2}
            s_lshl_b32 s{t+3}, s{t+3}, 10
            s_add_u32 s{P+5+ch}, s{t+3}, s{t}
            """)
        return r
    def p2_params(self):
        t = sA
        if self.cfg.get("p2x") == 2:
            return lines(f"""
            s_lshr_b32 s{t}, s{sJ}, 1
            s_add_u32 s{sNb}, s{sMb}, s{t}
            s_and_b32 s{sNb}, s{sNb}, 3
            s_lshl_b32 s{t}, s{sHalf}, 2
            s_or_b32 s{sNb}, s{sNb}, s{t}
            s_and_b32 s{t}, s{sJ}, 1
            s_lshl_b32 s{sMb64}, s{sMb}, 1
            s_add_u32 s{sMb64}, s{sMb64}, s{t}
            s_lshl_b32 s{t}, s{t}, 2
            s_lshl_b32 s{sHalf}, 0x0f0f0f0f, s{t}
            """) + self.p2_params0()[5:]
        if self.cfg.get("p2x"):
            r = self.p2_params0()[5:]
            return lines(f"""
            s_add_u32 s{sNb}, s{sMb}, s{sJ}
            s_and_b32 s{sNb}, s{sNb}, 3
            s_lshl_b32 s{t}, s{sHalf}, 2
            s_or_b32 s{sNb}, s{sNb}, s{t}
            s_lshr_b32 s{t}, s{sJ}, 2
            s_lshl_b32 s{sMb64}, s{sMb}, 1
            s_add_u32 s{sMb64}, s{sMb64}, s{t}
            s_lshl_b32 s{t}, s{t}, 4
            s_lshl_b32 s{sHalf}, 0xffff, s{t}
            """) + r
        return self.p2_params0()
    def p2_params0(self):
        t = sA
        return lines(f"""
        s_lshl_b32 s{sNb}, s{sMb}, {0 if self.cfg.get("map8") else 1}
        s_add_u32 s{sNb}, s{sNb}, s{sJ}
        s_and_b32 s{sNb}, s{sNb}, {3 if self.cfg.get("map8") else 7}
        s_and_b32 s{t}, s{sJ}, {4 if self.cfg.get("map8") else 0}
        s_or_b32 s{sNb}, s{sNb}, s{t}
        s_mul_i32 s{t}, s{sWave}, 14
        s_mul_i32 s{sAb}, s{sMb64}, 56
        s_add_u32 s{sAb}, s{sAb}, s{t}
        s_lshl_b32 s{sAb}, s{sAb}, 12
        s_mul_i32 s{sBb}, s{sNb}, 56
        s_add_u32 s{sBb}, s{sBb}, s{t}
        s_mul_i32 s{sBb}, s{sBb}, 5120
        s_add_u32 s{sBb}, s{sBb}, {WS_WD}
        s_cmp_lt_u32 s{sWave}, 3; s_cselect_b32 s{sAb2}, s{sAb}, s{sOOB}; s_cselect_b32 s{sBb2}, s{sBb}, s{sOOB}
        s_mul_i32 s{t}, s{sMb64}, 81920
        s_add_u32 s{t}, s{t}, {WS_O}
        s_mul_i32 s{sOld}, s{sWave}, 20480
        s_add_u32 s{sOld}, s{sOld}, s{t}
        s_mul_i32 s{sOst}, s{sNb}, 10
        s_add_u32 s{sOst}, s{sOst}, s{sWave}
        s_lshl_b32 s{sOst}, s{sOst}, 8
        s_add_u32 s{sOst}, s{sOst}, s{t}
        s_cmp_lt_u32 s{sWave}, 2; s_cselect_b32 s{sOst2}, s{sOst}, s{sOOB}
        s_mul_i32 s{sWOb}, s{sNb}, 102400
        s_add_u32 s{sWOb}, s{sWOb}, {WS_WO}
        s_add_u32 s{sWOb}, s{sWOb}, s{sM0}
        s_lshl_b32 s{sKV}, s{sNb}, 2
        s_add_u32 s{sKV}, s{sKV}, s{sWave}
        s_mul_i32 s{sKV}, s{sKV}, 1280
        s_add_u32 s{sKV}, s{sKV}, {WS_QKV}
        s_lshl_b32 s{sXo}, s{sMb64}, 2
        s_add_u32 s{sXo}, s{sXo}, s{sWave}
        s_mul_i32 s{sXo}, s{sXo}, {16*1280}
        s_mul_i32 s{t}, s{sNb}, 160
        s_add_u32 s{sXo}, s{sXo}, s{t}
        s_lshl_b32 s{sFl0}, s{sMb}, 9
        s_add_u32 s{sFl0}, s{sFl0}, {WS_FLAG}
        s_max_u32 s{sFl1}, s{sMb}, 1
        s_lshl_b32 s{sFl1}, s{sFl1}, 9
        s_add_u32 s{sFl1}, s{sFl1}, {WS_FLAG - 512}
        s_lshl_b32 s{sFlG}, s{sWave}, 11
        s_add_u32 s{sFlG}, s{sFlG}, {WS_FLAG}
        s_lshl_b32 s{t}, s{sMb64}, 1
        v_lshrrev_b32 v{vQa}, 5, v0
        v_add_u32 v{vQa}, s{t}, v{vQa}
        v_mul_u32_u24 v{vQa}, 122880, v{vQa}
        v_and_b32 v{vKa}, 31, v0
        v_lshl_add_u32 v{vQa}, v{vKa}, 3, v{vQa}
        v_add_u32 v{vKa}, 8, v0
        v_lshrrev_b32 v{vT}, 4, v{vKa}
        v_add_u32 v{vT}, s{t}, v{vT}
        v_max_u32 v{vT}, 1, v{vT}
        v_subrev_u32 v{vT}, 1, v{vT}
        v_mul_u32_u24 v{vT}, 122880, v{vT}
        v_and_b32 v{vKa}, 15, v{vKa}
        v_lshl_add_u32 v{vKa}, v{vKa}, 4, v{vT}
        """)
    def switch_ops(self, P):
        t = sA
        return [f"v_mad_u32_u24 v{vLd}, v{vRow}, s{P+4}, v{vCol}",
                f"s_lshl_b32 s{sStep}, s{P+4}, 6",
                f"s_lshl_b32 s{t}, s{P+4}, 3",
                f"s_sub_u32 s{t}, s{t}, 1024",
                f"v_add_u32 v{vLd}, s{P+5}, v{vLd}",
                f"s_mul_i32 s{sWrap}, s{sStep}, 10",
                f"s_mov_b32 s{sSoff}, s{P+6}",
                f"v_add_u32 v{vLd+1}, s{t}, v{vLd}",
                f"v_add_u32 v{vLd+2}, s{t}, v{vLd+1}",
                f"v_add_u32 v{vLd+3}, s{t}, v{vLd+2}"]
    def dma_items(self, g):
        P = PB[g // 10]; slot = self.alloc(("B", g))
        it = [("op", f"s_add_u32 m0, s{sM0}, {slot*16384}")]
        if g % 10 == 0 and g > 0: it += [("op", o) for o in self.switch_ops(P)]
        elif g % 10: it.append(("op", f"s_add_u32 s{sSoff}, s{sSoff}, s{sStep}; s_cmp_eq_u32 s{sSoff}, s{sWrap}; s_cselect_b32 s{sSoff}, 0, s{sSoff}"))
        it += [("ld", f"buffer_load_dwordx4 v{vLd+j}, s[{P}:{P+3}], s{sSoff} offen offset:{1024*j} lds", f"B{g}") for j in range(4)]
        return it
    def pop_ops(self):
        p = self.pend
        while p and p[0][0] != "ld": self.emit(p.pop(0)[1])
    def pop_ld(self):
        a = self.a; p = self.pend
        self.pop_ops()
        if p:
            if " m0," in a.lines[-1]: a("s_nop 0")
            _, l, tag = p.pop(0); self.vm.issue(a, l, tag)
    def tr_reads(self, G):
        g, s = G >> 2, G & 3
        slot = self.slot[("B", g)]; reg = slot >> 2
        o = (slot & 3) * 16384 + 16 * s * 128
        r = []
        for t in range(4):
            b = WF + 16 * (G % NWB) + 4 * t
            r += [f"ds_read_b64_tr_b16 a[{b}:{b+1}], v{vTr+4*reg+t} offset:{o}",
                  f"ds_read_b64_tr_b16 a[{b+2}:{b+3}], v{vTr+4*reg+t} offset:{o+512}"]
        return r
    def center_ops(self, stage):
        x = XB + 16 * stage; t = EP
        d = []
        for i in range(16):
            d.append(f"v_dot2_f32_bf16 v{t+2*i}, v{x+i}, s{sLo}, v{vNegM}")
            d.append(f"v_dot2_f32_bf16 v{t+2*i+1}, v{x+i}, s{sHi}, v{vNegM}")
        c = [f"v_cvt_pk_bf16_f32 v{x+i}, v{t+2*i}, v{t+2*i+1}" for i in range(16)]
        return d, c
    def epi_f(self, acc, so):
        ops = []; sts = []; nb = self.cfg["stb"]
        for t in range(4):
            g = EP + 32 * (t & 1); u = g + 8; e = g + 16; pk = g + 24 + 4 * (t >> 1)
            A = acc + 16 * t
            for i in range(8): ops.append(f"v_accvgpr_read_b32 v{g+i}, a{A+i}")
            for i in range(8): ops.append(f"v_mul_f32 v{e+i}, v{vC1}, v{g+i}")
            for i in range(8):
                ops.append(f"v_exp_f32 v{e+i}, v{e+i}")
                ops.append(f"v_accvgpr_read_b32 v{u+i}, a{A+8+i}")
            for i in range(8): ops.append(f"v_fma_f32 v{e+i}, v{e+i}, v{vD2}, v{vD2}")
            for i in range(8):
                ops.append(f"v_rcp_f32 v{e+i}, v{e+i}")
                ops.append(f"v_mul_f32 v{g+i}, v{g+i}, v{u+i}")
            for i in range(8): ops.append(f"v_mul_f32 v{g+i}, v{g+i}, v{e+i}")
            for i in range(4): ops.append(f"v_cvt_pk_bf16_f32 v{pk+i}, v{g+2*i}, v{g+2*i+1}")
            if t == 2: sts.append(f"s_add_u32 s{so}, s{so}, 4096")
            sts.append(f"buffer_store_dwordx4 v[{pk}:{pk+3}], v{vSF}, s[{SRDW}:{SRDW+3}], s{so} offen offset:{(t&1)*512} sc1")
            if (t + 1) % nb == 0:
                ops.append("; ".join(sts)); sts = []
        return ops
    def epi_f_tail(self, acc, so):
        ops = [f"v_mov_b32 v{vR}, v{vD2}", f"v_mov_b32 v{vT}, v{vC1}", f"v_mov_b32 v{vT-1}, v{vC1}"]
        p2 = lambda r: f"v[{r}:{r+1}]"
        for t in range(4):
            g = EP + 32 * (t & 1); u = g + 8; e = g + 16; pk = g + 24
            A = acc + 16 * t
            for i in range(8): ops.append(f"v_accvgpr_read_b32 v{g+i}, a{A+i}")
            for i in range(4): ops.append(f"v_pk_mul_f32 {p2(e+2*i)}, {p2(vT-1)}, {p2(g+2*i)}")
            for i in range(8):
                ops.append(f"v_exp_f32 v{e+i}, v{e+i}")
                ops.append(f"v_accvgpr_read_b32 v{u+i}, a{A+8+i}")
            for i in range(4): ops.append(f"v_pk_fma_f32 {p2(e+2*i)}, {p2(e+2*i)}, {p2(vD2)}, {p2(vD2)}")
            for i in range(8): ops.append(f"v_rcp_f32 v{e+i}, v{e+i}")
            for i in range(4): ops.append(f"v_pk_mul_f32 {p2(g+2*i)}, {p2(g+2*i)}, {p2(u+2*i)}")
            for i in range(4): ops.append(f"v_pk_mul_f32 {p2(g+2*i)}, {p2(g+2*i)}, {p2(e+2*i)}")
            for i in range(4): ops.append(f"v_cvt_pk_bf16_f32 v{pk+i}, v{g+2*i}, v{g+2*i+1}")
            if t == 2: ops.append(f"s_add_u32 s{so}, s{so}, 4096")
            ops.append(f"buffer_store_dwordx4 v[{pk}:{pk+3}], v{vSF}, s[{SRDW}:{SRDW+3}], s{so} offen offset:{(t&1)*512} sc1")
        return ops
    def epi_q(self, acc, so):
        ops = [f"s_add_u32 s{so-1}, s{so}, 4096"]; sts = []; nb = self.cfg["stb"]
        for t in range(4):
            g = EP; pk = EP + 16 + 8 * t
            A = acc + 16 * t
            for i in range(16): ops.append(f"v_accvgpr_read_b32 v{g+i}, a{A+i}")
            for i in range(16): ops.append(f"v_mul_f32 v{g+i}, v{vR}, v{g+i}")
            for i in range(8): ops.append(f"v_cvt_pk_bf16_f32 v{pk+i}, v{g+2*i}, v{g+2*i+1}")
            for q in range(4):
                grp = 4 * t + 2 * (q & 1)
                sts.append(f"buffer_store_dwordx2 v[{pk+2*q}:{pk+2*q+1}], v{vL8}, s[{SRDW}:{SRDW+3}], s{so-(q>>1)} offen offset:{grp*256} sc1")
            if (t + 1) % nb == 0:
                if self.cfg.get("stq", True): ops.append("; ".join(sts))
                else: ops += sts
                sts = []
        return ops
    def publish(self, level, after):
        a = self.a
        for tg in after: self.vm.wait(a, tg)
        a(f"v_mov_b64 v[{self.vPub}:{self.vPub+1}], s[{sTok}:{sTok+1}]")
        a(f"s_add_u32 s{sA+8}, s{sFlag}, {level*8192}")
        a("s_mov_b64 exec, 1")
        self.vm.issue(a, f"buffer_store_dwordx2 v[{self.vPub}:{self.vPub+1}], off, s[{SRDW}:{SRDW+3}], s{sA+8} sc1", "fl")
        a("s_mov_b64 exec, -1")
    def retouch(self, kind, so=None):
        if kind not in self.cfg.get("rt", ""): return
        a = self.a; r = 88 if kind == "P" else self.vPub - 2
        if kind == "P":
            a(f"v_lshlrev_b32 v{r}, 7, v0\ns_mov_b64 exec, 0xff")
            for ch in range(4): self.vm.issue(a, f"buffer_load_dword v{r+1}, v{r}, s[{SRDW}:{SRDW+3}], s{PK+5+ch} offen", "rt")
            a("s_mov_b64 exec, -1")
        elif kind == "Q":
            a(f"v_lshlrev_b32 v{r}, 7, v0")
            self.vm.issue(a, f"buffer_load_dword v{r}, v{r}, s[{SRDW}:{SRDW+3}], s{so} offen", "rt")
        else:
            a(f"v_and_b32 v{r}, 16, v0\nv_add_u32 v{r}, v{r}, v0\nv_lshlrev_b32 v{r}, 7, v{r}\ns_sub_u32 s{sA+8}, s{so}, 4096\ns_mov_b32 exec_hi, 0")
            self.vm.issue(a, f"buffer_load_dword v{r}, v{r}, s[{SRDW}:{SRDW+3}], s{sA+8} offen", "rt")
            a("s_mov_b32 exec_hi, -1")
    def flag_ld(self, reg, soff, level, off, sc):
        return [f"s_add_u32 s{sA+8}, s{soff}, {level*8192}",
                f"buffer_load_dwordx2 v[{reg}:{reg+1}], v{vL8}, s[{SRDW}:{SRDW+3}], s{sA+8} offen offset:{off} {sc}"]
    def flag_load(self, reg, soff, tag, level, off=0):
        l = self.flag_ld(reg, soff, level, off, "")
        self.a(l[0]); self.vm.issue(self.a, l[1], tag)
    def flag_check(self, reg, soff, tag, level, half=False, off=0):
        a = self.a; L = a.newlabel("fc")
        self.vm.wait(a, tag)
        test = f"v_cmp_ne_u64 vcc, s[{sTok}:{sTok+1}], v[{reg}:{reg+1}]\n"
        if half and self.cfg.get("p2x"): test += f"s_nop 0\ns_or_b32 s{sA+8}, vcc_lo, vcc_hi\ns_and_b32 s{sA+8}, s{sA+8}, s{sHalf}"
        elif half: test += f"s_cmp_eq_u32 s{sHalf}, 0\ns_cselect_b32 s{sA+8}, vcc_lo, vcc_hi\ns_cmp_lg_u32 s{sA+8}, 0"
        else: test += "s_nop 0\ns_cmp_lg_u64 vcc, 0"
        a(test)
        a(f"s_cbranch_scc1 {L}_slow")
        a.label(f"{L}_ok")
        l = self.flag_ld(reg, soff, level, off, "sc1")
        self.slow.append(f"""
        {L}_slow:
        s_mov_b32 s{sA+9}, 0
        {L}_spin:
        {l[0]}
        {l[1]}
        s_add_u32 s{sA+9}, s{sA+9}, 1
        s_cmp_gt_u32 s{sA+9}, {self.cfg["spin"]}
        s_waitcnt vmcnt(0)
        s_cbranch_scc1 {L}_ok
        {test}
        s_cbranch_scc0 {L}_ok
        s_sleep {self.cfg.get("sleep", 4)}
        s_branch {L}_spin
        """)

    def body(self, T, work, ntask, wrange=(4, 156), center=False, extra=None, vq=None, vq1=1, vq2=1, before=None):
        a = self.a; cfg = self.cfg; acc = ACC[T & 1]; LA = cfg["LA"]
        ngap = 160
        per = [[] for _ in range(ngap)]
        def cost(op):
            if not isinstance(op, str): return 3.0
            if op.startswith(("v_exp", "v_rcp")): return 2.0
            if op.startswith("buffer_"): return 3.0 * (1 + op.count(";"))
            return 1.0 + op.count(";")
        def is_bar(S):
            n1 = 10 * T + (S >> 2) + 1
            if (S & 3) != 1 or n1 >= 10 * ntask: return False
            return (n1 % 2 == 0) if cfg["bar2"] else True
        cap = []
        for g in range(ngap):
            c = cfg["cap"] - ([3, 3, 2, 0] if is_bar(g >> 2) else cfg["rpat"])[g & 3]
            if (g & 3) == cfg["dmagap"] or ((g & 3) == 0 and vq): c -= 2.5
            if (g & 3) == 3: c -= 1
            if (g & 3) == 3 and is_bar(g >> 2): c = 0
            cap.append(max(c, 0.0))
        if center:
            for st in range(cfg["nc"], 10):
                d, c = self.center_ops(st)
                base = 16 * (st - 1)
                per[base] += d
                cg = [base + x for x in (1, 3, 4, 5, 8, 9, 11, 12, 13)]
                for i, op in enumerate(c): per[cg[i * len(cg) // 16]].append(op)
        used = lambda g: sum(cost(o) for o in per[g])
        self.ends = {}
        for g00, fn in (extra or {}).items():
            if not isinstance(fn, list): per[g00].append(fn)
        for g00, fn in (extra or {}).items():
            if isinstance(fn, list):
                g = g00; room = 0.0
                for op in fn:
                    while room <= 0:
                        room = cap[g] - used(g); g += 1
                    per[g - 1].append(op); room -= cost(op)
                self.ends[g00] = g - 1
        for a_, b_ in (before or []): assert self.ends[a_] < b_, (a_, self.ends[a_], b_)
        if work:
            g0, g1 = wrange
            cap = [max(cap[g] - used(g), 0.0) for g in range(ngap)]
            scale = sum(cost(o) for o in work) / sum(cap[g0:g1])
            if cfg.get("verbose"): print("body", T, "work scale", scale)
            g = g0; room = cap[g] * scale
            for op in work:
                while room <= 0 and g < g1 - 1:
                    g += 1; room += cap[g] * scale
                per[g].append(op); room -= cost(op)
        vq = list(vq or [])
        for S in range(40):
            i, s = S >> 2, S & 3
            G = 40 * T + S; n = 10 * T + i
            rd = self.tr_reads(G + 2) if G + 2 < 40 * ntask else []
            if s == 2:
                k = 0
                while self.next <= n + LA and self.next < 10 * ntask and k < 2 and self.cands(("B", self.next)):
                    self.pend += self.dma_items(self.next); self.next += 1; k += 1
            for t in range(4):
                gap = 4 * S + t
                if t == 0: a(f"s_waitcnt lgkmcnt({8 if G + 1 < 40 * ntask else 0})")
                A = acc + 16 * t; w = WF + 16 * (G % NWB) + 4 * t; x = XB + 4 * S
                c = "0" if S == 0 else f"a[{A}:{A+15}]"
                a(f"v_mfma_f32_32x32x16_bf16 a[{A}:{A+15}], a[{w}:{w+3}], v[{x}:{x+3}], {c}")
                pat = [3, 3, 2, 0] if is_bar(S) else cfg["rpat"]
                for _ in range(pat[t]):
                    if rd: a(rd.pop(0))
                nld = sum(1 for p_ in self.pend if p_[0] == "ld")
                if self.pend and (t == cfg["dmagap"] or (nld > 4 and t == 0)): self.pop_ld()
                elif vq and ((t == 0 and S % vq1 == 0) or (t == cfg["dmagap"] and not self.pend and S % vq2 == 0)):
                    for j_, it_ in enumerate(vq):
                        if it_[0](gap):
                            vq.pop(j_)[1](); break
                if t == cfg["dmagap"] - 1: self.pop_ops()
                if T == cfg.get("markT", 2) and gap % 16 == 9: self.mark(gap // 16)
                for op in per[gap]:
                    if callable(op): op()
                    else: self.emit(op, f"E{T-1}")
                if t == 3 and is_bar(S):
                    last = n + 2 if cfg["bar2"] and n + 2 < 10 * ntask else n + 1
                    self.vm.wait(a, f"B{last}", 4)
                    a("s_barrier")
                    self.lastbar = n
            assert not rd
        return vq

    def att_loads(self, al=True):
        a = self.a
        out = []
        for kv in range(2):
            for i in range(5):
                def f(kv=kv, i=i):
                    assert not self.pend
                    a(f"s_add_u32 m0, s{sM0}, {(self.KS+kv)*16384 + i*640 - 256*i}")
                    if i == 0: a(f"s_add_u32 s{sA+6}, s{sKV}, {(kv+1)*40960}")
                    a("s_mov_b32 exec_hi, 0xff")
                    self.vm.issue(a, f"buffer_load_dwordx4 v{vKa}, s[{SRDW}:{SRDW+3}], s{sA+6} offen offset:{256*i} sc1 lds", "KV")
                    a("s_mov_b32 exec_hi, -1")
                out.append(f)
        for i in range(5):
            out.append(lambda i=i: self.vm.issue(a, f"buffer_load_dwordx2 v[{XB+2*i}:{XB+2*i+1}], v{vQa}, s[{SRDW}:{SRDW+3}], s{sKV} offen offset:{256*i} sc1", "KV"))
        return out
    def attention(self, inter):
        a = self.a; vm = self.vm
        Q = XB; AK = 1; AK2 = 2; RW = 3; L = 4; P = 236; O = 216
        kvb = [[196, 200, 204, 208, 212], [106, 110, 252, 12, 26]]
        code = []; e = code.append
        def rd(n):
            m = n & 3
            if n == 4:
                e(f"v_add_u32 v{AK}, 16384, v{AK}"); e(f"v_add_u32 v{AK2}, 16384, v{AK2}")
            for i in range(5):
                b = kvb[n & 1][i]; o = (i % 3) * 80 + 16 - 4 * m
                e(f"ds_read2_b64 v[{b}:{b+3}], v{AK if i < 3 else AK2} offset0:{o} offset1:{o-2}")
        a(f"""
        s_add_u32 s{sA}, s{sM0}, {self.KS*16384}
        v_add_u32 v{AK}, s{sA}, v{vL8}
        v_add_u32 v{AK2}, 1920, v{AK}
        s_mov_b32 s{sA+1}, 0x{C_SM:x}
        """)
        vm.wait(a, "KV", 15)
        self.mark(23)
        rd(0)
        for n in range(8):
            m = n & 3; B = kvb[n & 1]
            e("s_waitcnt lgkmcnt(0)")
            if n < 4:
                for i in range(10):
                    for h in range(2):
                        src = f"v{Q+i}, v{B[i>>1] + 2*h + (i&1)}"
                        e(f"v_dot2_f32_bf16 v{L+2*m+h}, {src}, 0" if i == 0 else f"v_dot2c_f32_bf16 v{L+2*m+h}, {src}")
                    if i == 0: rd(n + 1)
            else:
                if n + 1 < 8: rd(n + 1)
                for h in range(2):
                    w = 2 * m + h
                    for i in range(10):
                        for j in range(2):
                            src = f"v{B[i>>1] + 2*h + (i&1)}, v{P+2*w+j}"
                            e(f"v_dot2_f32_bf16 v{O+2*i+j}, {src}, 0" if w == 0 else f"v_dot2c_f32_bf16 v{O+2*i+j}, {src}")
            if n == 3:
                Lm = a.newlabel("am")
                blk = [f"s_cmp_lg_u32 s{sMb64}, 0", f"s_cbranch_scc1 {Lm}", f"v_mov_b32 v{P}, 0xce6e6b28"]
                for ww in range(1, 8):
                    blk += [f"v_cmp_gt_u32 vcc, {2*ww}, v0", "s_nop 1", f"v_cndmask_b32 v{L+ww}, v{L+ww}, v{P}, vcc"]
                blk += [f"{Lm}:"]
                e("\n".join(blk))
                e(f"v_max3_f32 v{P}, v{L}, v{L+1}, v{L+2}")
                e(f"v_max3_f32 v{P}, v{P}, v{L+3}, v{L+4}")
                e(f"v_max3_f32 v{P}, v{P}, v{L+5}, v{L+6}")
                e(f"v_max_f32 v{P}, v{P}, v{L+7}")
                e(f"v_mul_f32 v{P}, s{sA+1}, v{P}")
                for ww in range(8): e(f"v_fma_f32 v{L+ww}, v{L+ww}, s{sA+1}, -v{P}")
                for ww in range(8): e(f"v_exp_f32 v{L+ww}, v{L+ww}")
                e(f"v_pk_add_f32 v[{P}:{P+1}], v[{L}:{L+1}], v[{L+2}:{L+3}]")
                e(f"v_pk_add_f32 v[{P+2}:{P+3}], v[{L+4}:{L+5}], v[{L+6}:{L+7}]")
                e(f"v_pk_add_f32 v[{P}:{P+1}], v[{P}:{P+1}], v[{P+2}:{P+3}]")
                e(f"v_add_f32 v{P}, v{P}, v{P+1}")
                e(f"v_rcp_f32 v{P}, v{P}\ns_nop 0")
                for ww in range(4): e(f"v_pk_mul_f32 v[{L+2*ww}:{L+2*ww+1}], v[{L+2*ww}:{L+2*ww+1}], v[{P}:{P+1}] op_sel_hi:[1,0]")
                for ww in range(8):
                    e(f"v_cvt_pk_bf16_f32 v{P+2*ww}, v{L+ww}, 0")
                    e(f"v_cvt_pk_bf16_f32 v{P+2*ww+1}, 0, v{L+ww}")
        e(f"s_mul_i32 s{sA}, s{sWave}, 2560\ns_add_u32 s{sA}, s{sA}, {(self.KS+2)*16384}\nv_add_u32 v{AK}, s{sA}, v{vL8}")
        e(f"s_mul_i32 s{sA}, s{sWave}, 3\ns_and_b32 s{sA}, s{sA}, 13\ns_min_u32 s{sA}, s{sA}, 5\ns_lshl_b32 s{sA}, s{sA}, 9\ns_add_u32 s{sA}, s{sA}, {(self.KS+2)*16384}\nv_add_u32 v{AK2}, s{sA}, v{vL8}")
        e(f"v_lshrrev_b32 v{RW}, 4, v0"); e(f"v_mul_u32_u24 v{RW}, {20480-256}, v{RW}"); e(f"v_add_u32 v{RW}, v{RW}, v{vL16}")
        for i in range(5):
            e(f"v_cvt_pk_bf16_f32 v{Q+2*i}, v{O+4*i}, v{O+4*i+1}")
            e(f"v_cvt_pk_bf16_f32 v{Q+2*i+1}, v{O+4*i+2}, v{O+4*i+3}")
            e(f"ds_write_b64 v{AK}, v[{Q+2*i}:{Q+2*i+1}] offset:{512*i}")
        inter = list(inter); n = len(code); k = len(inter); j = 0
        for i, ins in enumerate(code):
            a(ins)
            while j < k and j < (i + 1) * k // (n - 10):
                inter[j](); j += 1
        self.mark(25)
        if self.cfg["nokb"]: vm.wait(a, "WO", 25)
        a("s_waitcnt lgkmcnt(0)\ns_barrier")
        for r in range(3): a(f"ds_read2st64_b64 v[{4+4*r}:{7+4*r}], v{AK2} offset0:{8*r} offset1:{8*r+2}")
        return [lambda r=r: (a(f"s_waitcnt lgkmcnt({2-r})"),
                             vm.issue(a, f"buffer_store_dwordx4 v[{4+4*r}:{7+4*r}], v{RW}, s[{SRDW}:{SRDW+3}], s{sOst2 if r == 2 else sOst} offen offset:{1024*r} sc1", "O")) for r in range(3)]

    BSLOT = ["a176", "a196", "a216", "a236", "v116", "v136", "v156", "v176", "a64", "a84", "a104", "a128", "a148", "v96"]
    ASLOT = ["v32", "v48", "v64", "v80", "v196", "v216", "v32", "v48", "v64", "v80", "v196", "v32", "v48", "v64"]
    AEARLY = [0, 0, 0, 0, 0, 0, 1, 2, 3, 4, 5, 7, 8, 9]
    @staticmethod
    def rr(base, off, n=4):
        return f"{base[0]}[{int(base[1:])+off}:{int(base[1:])+off+n-1}]"
    def b_loads(self, k):
        a = self.a; out = []
        for u in range(5):
            def f(u=u):
                if u == 0: a(f"s_add_u32 s{sGb}, s{sBb if k < 12 else sBb2}, {k*5120}")
                if u == 4: a(f"s_add_u32 s{sGb}, s{sGb}, 4096")
                self.vm.issue(a, f"buffer_load_dwordx4 {self.rr(self.BSLOT[k], 4*u)}, v{vL16}, s[{SRDW}:{SRDW+3}], s{sGb} offen offset:{1024*(u&3)} sc1", f"PB{k}")
            out.append(f)
        return out
    def a_loads(self, k):
        a = self.a; out = []
        for i in range(4):
            def f(i=i):
                if i == 0: a(f"s_add_u32 s{sGa}, s{sAb if k < 12 else sAb2}, {k*4096}")
                self.vm.issue(a, f"buffer_load_dwordx4 {self.rr(self.ASLOT[k], 4*i)}, v{vA[i]}, s[{SRDW}:{SRDW+3}], s{sGa} offen sc1", f"PA{k}")
            out.append(f)
        return out
    def wo_loads(self, s):
        a = self.a; out = []
        for j in range(4 if s < 6 else 1):
            def f(j=j):
                assert not self.pend
                if j == 0 and self.owner[s] != ("WO", s): self.alloc(("WO", s), s)
                if self.m0 != ("WO", s):
                    if s < 6:
                        a(f"s_add_u32 m0, s{sM0}, {s*16384}\ns_add_u32 s{sA+7}, s{sWOb}, {s*16384}")
                    else:
                        a(f"s_lshr_b32 s{sA+7}, s{sM0}, 2\ns_add_u32 m0, s{sA+7}, {6*16384}\ns_sub_u32 s{sA+7}, s{sWOb}, s{sM0}\ns_add_u32 s{sA+7}, s{sA+7}, m0")
                self.m0mark = (len(a.lines), ("WO", s))
                self.vm.issue(a, f"buffer_load_dwordx4 v{vL16}, s[{SRDW}:{SRDW+3}], s{sA+7} offen offset:{1024*j} sc1 lds", "WO")
            out.append(f)
        return out
    @property
    def m0(self):
        mk = getattr(self, "m0mark", None)
        if not mk: return None
        for l in self.a.lines[mk[0]:]:
            if " m0," in l or f"s{sA+7}," in l.split(",")[0] + "," and l.strip().startswith("s_") or l.endswith(("_join:", "_two:")): return None
        return mk[1]

    def build(self):
        a = self.a; cfg = self.cfg; label = self.label
        vm = self.vm
        sX = sA + 9
        a.begin_kernel(label)
        a(f"""
        s_cmp_ge_u32 s2, 256
        s_cbranch_scc1 {label}_end
        s_load_dwordx2 s[4:5], s[0:1], 0
        s_load_dwordx2 s[{pQKV}:{pQKV+1}], s[0:1], 8
        s_load_dwordx2 s[{pWO}:{pWO+1}], s[0:1], 16
        s_load_dwordx4 s[{pG}:{pG+3}], s[0:1], 32
        s_load_dwordx2 s[{pDN}:{pDN+1}], s[0:1], 48
        s_load_dwordx2 s[6:7], s[0:1], 56
        s_load_dwordx2 s[{pWS}:{pWS+1}], s[0:1], 72
        """)
        self.stamp(0)
        if self.stamps: a(f"s_memrealtime s[{sTok}:{sTok+1}]")
        NL = cfg.get("codelines", 11)
        a(f"""
        s_getpc_b64 s[{sA}:{sA+1}]
        s_lshr_b32 s{sA+2}, s2, 3
        s_mul_i32 s{sA+2}, s{sA+2}, {NL*128}
        v_lshlrev_b32 v{vT}, 7, v0
        v_add_u32 v{vT}, s{sA+2}, v{vT}
        v_min_u32 v{vT}, {label}_end-{label}-128, v{vT}
        v_cmp_gt_u32 vcc, {NL}, v0
        s_and_saveexec_b64 s[{sA+2}:{sA+3}], vcc
        s_cbranch_execz {label}_nt
        global_load_dword v95, v{vT}, s[{sA}:{sA+1}]
        {label}_nt:
        s_mov_b64 exec, -1
        v_lshrrev_b32 v{vT}, 6, v0
        v_and_b32 v0, 63, v0
        s_and_b32 s{sA}, s2, 7
        v_readfirstlane_b32 s{sWave}, v{vT}
        """)
        if cfg.get("map2"):
            a(f"""
            s_lshr_b32 s{sA+2}, s2, 7
            s_lshl_b32 s{sMb}, s{sA}, 1
            s_add_u32 s{sMb}, s{sMb}, s{sA+2}
            s_bfe_u32 s{sHalf}, s2, 0x10006
            s_bfe_u32 s{sJ}, s2, 0x30003
            s_lshl_b32 s{sA+3}, s{sA}, 2
            s_lshr_b32 s{sRot}, {cfg.get("rot2", 0x43210432)}, s{sA+3}
            s_and_b32 s{sRot}, s{sRot}, 15
            s_mul_i32 s{sA+3}, s{sA+2}, {cfg.get("rot2m", 5)}
            s_add_u32 s{sRot}, s{sRot}, s{sA+3}
            s_add_u32 s{sRot}, s{sRot}, s{sJ}
            s_lshl_b32 s{sA+3}, s{sHalf}, 1
            s_add_u32 s{sRot}, s{sRot}, s{sA+3}
            """)
        elif not cfg.get("map8"):
            a(f"""
            s_lshr_b32 s{sA+1}, s2, 3
            s_and_b32 s{sHalf}, s{sA}, 1
            s_lshr_b32 s{sA}, s{sA}, 1
            s_lshl_b32 s{sA}, s{sA}, 2
            s_lshr_b32 s{sA+2}, s{sA+1}, 3
            s_add_u32 s{sMb}, s{sA}, s{sA+2}
            s_and_b32 s{sJ}, s{sA+1}, 7
            s_lshl_b32 s{sRot}, s{sA+2}, 2
            s_lshr_b32 s{sRot}, {cfg["rotm"]}, s{sRot}
            s_and_b32 s{sRot}, s{sRot}, 15
            s_add_u32 s{sRot}, s{sRot}, s{sJ}
            s_lshr_b32 s{sA+3}, {cfg["rotx"]}, s{sA}
            s_and_b32 s{sA+3}, s{sA+3}, 15
            s_add_u32 s{sRot}, s{sRot}, s{sA+3}
            s_mul_i32 s{sA+3}, s{sHalf}, {cfg.get("roth", 0)}
            s_add_u32 s{sRot}, s{sRot}, s{sA+3}
            """)
        else:
            a(f"""
            s_lshr_b32 s{sA+2}, s2, 5
            s_and_b32 s{sMb}, s{sA}, 4
            s_lshl_b32 s{sMb}, s{sMb}, 1
            s_add_u32 s{sMb}, s{sMb}, s{sA+2}
            s_bfe_u32 s{sHalf}, s2, 0x10001
            s_bfe_u32 s{sA+1}, s2, 0x20003
            s_and_b32 s{sJ}, s2, 1
            s_lshl_b32 s{sJ}, s{sJ}, 2
            s_add_u32 s{sJ}, s{sJ}, s{sA+1}
            s_lshl_b32 s{sRot}, s{sA+1}, 2
            s_lshr_b32 s{sRot}, 0x7520, s{sRot}
            s_and_b32 s{sRot}, s{sRot}, 15
            s_lshl_b32 s{sA+3}, s{sA+2}, 2
            s_lshr_b32 s{sA+3}, {cfg.get("rot8", 0x43210210)}, s{sA+3}
            s_and_b32 s{sA+3}, s{sA+3}, 15
            s_add_u32 s{sRot}, s{sRot}, s{sA+3}
            s_lshr_b32 s{sA+3}, s{sA}, 2
            s_mul_i32 s{sA+3}, s{sA+3}, 5
            s_add_u32 s{sRot}, s{sRot}, s{sA+3}
            s_and_b32 s{sA+3}, s2, 1
            s_add_u32 s{sRot}, s{sRot}, s{sA+3}
            """)
        a(f"""
        s_lshl_b32 s{sM0}, s{sWave}, 12
        s_sub_u32 s{sA+3}, s{sRot}, 10
        s_min_u32 s{sRot}, s{sRot}, s{sA+3}
        s_lshl_b32 s{sX}, s{sRot}, 7
        s_lshl_b32 s{sA}, s{sMb}, 7
        s_lshl_b32 s{sA+1}, s{sWave}, 5
        s_add_u32 s{sA}, s{sA}, s{sA+1}
        s_mul_i32 s{sA}, s{sA}, 1280
        v_lshrrev_b32 v{vT}, 3, v0
        v_mul_u32_u24 v{vT}, 1280, v{vT}
        v_add_u32 v{vT}, s{sA}, v{vT}
        v_lshrrev_b32 v{vT+1}, 4, v0
        v_and_b32 v{vT+2}, 7, v0
        v_xor_b32 v{vT+1}, v{vT+1}, v{vT+2}
        v_xor_b32 v{vT+2}, 4, v{vT+1}
        v_lshl_add_u32 v{EP+4}, v{vT+1}, 4, v{vT}
        v_lshl_add_u32 v{EP+5}, v{vT+2}, 4, v{vT}
        v_add_u32 v{EP+5}, {8*1280-1024}, v{EP+5}
        v_add_u32 v{EP+6}, {2*(8*1280-1024)}, v{EP+4}
        v_add_u32 v{EP+7}, {2*(8*1280-1024)}, v{EP+5}
        s_mov_b32 s{SRDX+2}, {2048*1280}
        s_mov_b32 s{SRDX+3}, 0x20000
        s_mov_b32 m0, s{sM0}
        """)
        sS = sA + 7; sC = sA + 8
        setup = lines(f"""
        s_mov_b32 s{sOOB}, {OOB}
        s_lshl_b32 s{sS}, s{sHalf}, 3
        s_add_u32 s{sS}, s{sS}, s{sJ}
        v_lshrrev_b32 v{vRow}, 3, v0
        s_and_b32 s{sA}, s{sWave}, 1
        s_lshl_b32 s{sA}, s{sA}, 5
        v_add_u32 v{vRow}, s{sA}, v{vRow}
        v_bfe_u32 v{vT}, v0, 1, 2
        v_bfe_u32 v{vT+1}, v0, 4, 1
        s_and_b32 s{sA}, s{sWave}, 2
        v_or_b32 v{vT+1}, s{sA}, v{vT+1}
        v_xor_b32 v{vT}, v{vT}, v{vT+1}
        v_and_b32 v{vT+1}, 1, v0
        v_lshlrev_b32 v{vT+1}, 4, v{vT+1}
        v_lshl_add_u32 v{vCol}, v{vT}, 5, v{vT+1}
        s_add_u32 s{sC}, s{sS}, {cfg["qsh"]}
        s_and_b32 s{sC}, s{sC}, 15
        """) + self.q_params(PB[0], sC) + self.switch_ops(PB[0])
        ptr = [o for o in setup if f"s{pQKV}" in o or f"s{pQKV+1}" in o]
        for o in setup:
            if o not in ptr: self.emit(o)
        a(f"s_waitcnt lgkmcnt(0)\ns_mov_b32 s{SRDX}, s4\ns_mov_b32 s{SRDX+1}, s5")
        if self.stamps: a(f"s_mov_b32 s1, s{sTok}")
        setup = ptr + ([f"s_add_u32 s{pWS}, s{pWS}, {cfg['wsoff']}; s_addc_u32 s{pWS+1}, s{pWS+1}, 0"] if cfg.get("wsoff") else []) + lines(f"""
        s_add_u32 s{sA}, s{pWS}, {WS_EPOCH}; s_addc_u32 s{sA+1}, s{pWS+1}, 0
        s_load_dwordx2 s[{sTok}:{sTok+1}], s[{sA}:{sA+1}], 0
        """)
        n_first = len(setup)
        setup += lines(f"""
        s_mov_b32 s{sOne}, 0x3f803f80
        s_mov_b32 s{sLo}, 0x00003f80
        s_mov_b32 s{sHi}, 0x3f800000
        v_and_b32 v{vT}, 31, v0
        v_lshlrev_b32 v{vT+1}, 7, v{vT}
        v_add_u32 v{vT+1}, s{sM0}, v{vT+1}
        v_bfe_u32 v{vT}, v0, 1, 3
        v_lshrrev_b32 v{vT+2}, 5, v0
        v_xor_b32 v{vT}, v{vT}, v{vT+2}
        """)
        XA = EP + 8
        for s in range(4):
            setup.append(f"v_xor_b32 v{vT+2}, {2*s}, v{vT}")
            setup.append(f"v_lshl_add_u32 v{XA+s}, v{vT+2}, 4, v{vT+1}")
            setup.append(f"v_add_u32 v{XA+4+s}, 0x10000, v{XA+s}")
            setup.append(f"v_add_u32 v{XA+8+s}, 0x20000, v{XA+s}")
        setup += lines(f"""
        v_mov_b32 v{vSum}, 0
        v_mov_b32 v{vSq}, 0
        v_lshlrev_b32 v{vL16}, 4, v0
        v_lshlrev_b32 v{vL8}, 3, v0
        v_bfe_u32 v{vT}, v0, 4, 1
        v_bfe_u32 v{vT+1}, v0, 2, 2
        v_lshrrev_b32 v{vT+2}, 5, v0
        v_lshl_add_u32 v{vT+2}, v{vT+2}, 3, v{vT+1}
        v_lshlrev_b32 v{vT+2}, 7, v{vT+2}
        v_lshl_add_u32 v{vT+2}, v{vT}, 13, v{vT+2}
        v_and_b32 v{EP}, 3, v0
        v_lshl_add_u32 v{vT+2}, v{EP}, 3, v{vT+2}
        v_lshrrev_b32 v{vT+1}, 1, v{vT+1}
        v_lshl_add_u32 v{vT}, v{vT}, 1, v{vT+1}
        """)
        for t in range(4):
            setup.append(f"v_xor_b32 v{vT+1}, {t}, v{vT}")
            setup.append(f"v_lshl_add_u32 v{vTr+t}, v{vT+1}, 5, v{vT+2}")
            setup.append(f"v_add_u32 v{vTr+4+t}, 0x10000, v{vTr+t}")
            setup.append(f"v_add_u32 v{vTr+8+t}, 0x20000, v{vTr+t}")
        setup += lines(f"""
        v_bfe_u32 v{vT}, v0, 4, 1
        v_lshlrev_b32 v{vT}, 10, v{vT}
        v_lshrrev_b32 v{vT+1}, 5, v0
        v_lshl_add_u32 v{vT}, v{vT+1}, 8, v{vT}
        v_and_b32 v{vT+1}, 15, v0
        v_lshl_add_u32 v{vSF}, v{vT+1}, 4, v{vT}
        s_mov_b32 s{SRDW}, s{pWS}
        s_mov_b32 s{SRDW+1}, s{pWS+1}
        s_mov_b32 s{SRDW+2}, {WS_SIZE}
        s_mov_b32 s{SRDW+3}, 0x20000
        s_lshl_b32 s{sMb64}, s{sMb}, 1
        s_add_u32 s{sMb64}, s{sMb64}, s{sHalf}
        s_lshl_b32 s{sFlag}, s{sMb}, 4
        s_add_u32 s{sFlag}, s{sFlag}, s{sS}
        s_lshl_b32 s{sFlag}, s{sFlag}, 2
        s_add_u32 s{sFlag}, s{sFlag}, s{sWave}
        s_lshl_b32 s{sFlag}, s{sFlag}, 3
        s_add_u32 s{sFlag}, s{sFlag}, {WS_FLAG}
        """) + (lines(f"""
        s_lshr_b32 s{sA}, s{sS}, 2
        s_sub_u32 s{sC}, s{sS}, s{sA}
        s_add_u32 s{sC}, s{sC}, 16
        s_and_b32 s{sA}, s{sS}, 3
        s_cmp_lt_u32 s{sA}, 3; s_cselect_b32 s{sC}, s{sC}, 31
        s_cmp_lt_u32 s{sC}, 27; s_cselect_b32 s{sThree}, 1, 0
        """) if cfg.get("map8") == 2 else lines(f"""
        s_mul_i32 s{sC}, s{sHalf}, 3
        s_add_u32 s{sC}, s{sC}, s{sJ}
        s_add_u32 s{sC}, s{sC}, 16
        s_add_u32 s{sA}, s{sS}, 5
        s_and_b32 s{sA}, s{sA}, 15
        s_cmp_lt_u32 s{sA}, 11; s_cselect_b32 s{sC}, s{sC}, 31; s_cselect_b32 s{sThree}, 1, 0
        """)) + lines(f"""
        """) + self.f_params(PB[1], sS) + self.f_params(PB[2], sC) + self.pack_params() + lines(f"""
        v_lshrrev_b32 v{vT}, 5, v0
        v_lshlrev_b32 v{vT}, 4, v{vT}
        v_bfe_u32 v{vT+1}, v0, 4, 1
        v_lshl_add_u32 v{vT}, v{vT+1}, 2, v{vT}
        v_bfe_u32 v{vT+1}, v0, 2, 2
        v_add_u32 v{vT}, v{vT}, v{vT+1}
        v_lshlrev_b32 v{vT}, 7, v{vT}
        v_and_b32 v{vT+2}, 3, v0
        v_lshl_add_u32 v{vT}, v{vT+2}, 3, v{vT}
        v_add_u32 v{vT}, s{sM0}, v{vT}
        v_lshrrev_b32 v{vT+1}, 1, v{vT+1}
        s_and_b32 s{sA+2}, s{sWave}, 2
        v_or_b32 v{vT+1}, s{sA+2}, v{vT+1}
        """)
        for ch in range(4):
            setup.append(f"v_xor_b32 v{PR+20+ch}, {ch}, v{vT+1}")
            setup.append(f"v_lshl_add_u32 v{PR+20+ch}, v{PR+20+ch}, 5, v{vT}")
        setup += [f"v_mul_u32_u24 v{PR+16}, 1280, v{vRow}", f"v_add_u32 v{PR+16}, v{vCol}, v{PR+16}"]
        setup += [f"v_add_u32 v{PR+16+j}, {j*(8*1280-1024)}, v{PR+16}" for j in range(1, 4)]
        setup += lines(f"""
        s_lshl_b32 s{sA}, s2, 1
        s_and_b32 s{sA+1}, s{sWave}, 1
        s_add_u32 s{sA}, s{sA}, s{sA+1}
        s_mul_i32 s{sA+1}, s{sA}, 20
        v_add_u32 v{vT}, s{sA+1}, v0
        v_lshrrev_b32 v{vT+1}, 4, v{vT}
        v_mul_u32_u24 v{vT+1}, {3456-2048}, v{vT+1}
        v_lshl_add_u32 v94, v{vT}, 7, v{vT+1}
        s_mul_i32 s{sA+1}, s{sA}, 14
        v_add_u32 v{vT}, s{sA+1}, v0
        v_mul_u32_u24 v{vT+1}, {(1<<20)//11+1}, v{vT}
        v_lshrrev_b32 v{vT+1}, 20, v{vT+1}
        v_mul_u32_u24 v{vT+1}, 2048, v{vT+1}
        v_lshl_add_u32 v91, v{vT}, 7, v{vT+1}
        s_lshr_b32 s{sDuty}, s2, 3
        s_and_b32 s{sDuty}, s{sDuty}, 3
        """) + self.p2_params()
        if cfg.get("verbose"): print("setup ops", len(setup), "first", n_first)
        order = list(cfg.get("order", ["X0", "X1", "X2", "X3", "X4", "X5", "X6", "X7", "X8", "X9", "B", "B", "B", "B"]))
        def queue_next():
            o = order.pop(0)
            if o[0] == "T":
                r0, n = {"Ta": (0, 8), "Tb": (256, 12), "Tc": (0, 4), "Td": (128, 16)}[o]
                self.emit(f"s_lshl_b32 s{sA+6}, s{sMb}, 1; s_and_b32 s{sA+5}, s{sWave}, 1; s_add_u32 s{sA+6}, s{sA+6}, s{sA+5}; s_mul_i32 s{sA+6}, s{sA+6}, {n}; "
                          f"s_lshl_b32 s{sA+5}, s{sRot}, 6; s_add_u32 s{sA+6}, s{sA+6}, s{sA+5}; s_add_u32 s{sA+6}, s{sA+6}, {r0}; v_add_u32 v90, s{sA+6}, v0; "
                          f"v_subrev_u32 v89, 640, v90; v_min_u32 v90, v89, v90; v_mul_u32_u24 v90, 3840, v90; s_mov_b64 exec, {(1<<n)-1}; "
                          f"buffer_load_dword v90, v90, s[{PB[0]}:{PB[0]+3}], s{PB[0]+5} offen; s_mov_b64 exec, -1", "T")
                if not order: return
                o = order.pop(0)
            if o == "B":
                self.pend += self.dma_items(self.next); self.next += 1
            else:
                i = int(o[1:]); sl = self.alloc(("X", i))
                if i: self.pend.append(("op", f"s_add_u32 m0, s{sM0}, {sl*16384}; s_add_u32 s{sX}, s{sX}, 128; s_cmp_eq_u32 s{sX}, 1280; s_cselect_b32 s{sX}, 0, s{sX}"))
                self.pend += [("ld", f"buffer_load_dwordx4 v{EP+4+j}, s[{SRDX}:{SRDX+3}], s{sX} offen offset:{1024*j} lds", f"X{i}") for j in range(4)]
        XW = cfg["XW"]; spl = cfg.get("spl", 12); done = 0
        for g in range(XW):
            if order[0] == "B": assert done >= n_first
            queue_next()
            for j in range(4):
                self.pop_ld()
                sp_ = cfg.get("spl0", spl) if g < 2 else spl
                if 4 * g + j + 1 == cfg.get("xw1", -1): sp_ = 1000
                for o in setup[done:done + sp_]: self.emit(o)
                done += sp_
        for o in setup[done:]: self.emit(o)
        self.stamp(1, True)
        def stats(i, j):
            for r in range(4 * j, 4 * j + 4):
                x = XB + 16 * i + r
                a(f"v_dot2c_f32_bf16 v{vSum}, s{sOne}, v{x}")
                a(f"v_dot2c_f32_bf16 v{vSq}, v{x}, v{x}")
        for i in range(10):
            vm.wait(a, f"X{i}", 4)
            if i in (0, 2, 4, 6, 8): self.stamp(2 + i // 2, True)
            sl = self.slot[("X", i)]
            for s in range(4):
                x = XB + 4 * (4 * i + s)
                a(f"ds_read_b128 v[{x}:{x+3}], v{XA+4*(sl>>2)+s} offset:{(sl&3)*16384}")
            if order and (order[0] != "B" or self.next < cfg["PB"]): queue_next()
            for j in range(4):
                if self.pend: self.pop_ld()
                if i: stats(i - 1, j)
            a("s_waitcnt lgkmcnt(0)")
            self.xdone.add(("X", i))
        a(f"s_xor_b32 s{sTok+1}, s{sTok+1}, 0x{TOKX:x}\ns_add_u32 s{sTok}, s{sTok}, 1")
        for j in range(4): stats(9, j)
        self.stamp(1)
        a(f"""
        s_mov_b32 s{sA}, 0x3acccccd
        s_nop 1
        v_mov_b32 v{vT}, v{vSum}
        v_mov_b32 v{vR}, v{vSq}
        s_nop 0
        v_permlane32_swap_b32 v{vSum}, v{vT}
        v_permlane32_swap_b32 v{vSq}, v{vR}
        s_nop 0
        v_add_f32 v{vSum}, v{vSum}, v{vT}
        v_add_f32 v{vSq}, v{vSq}, v{vR}
        v_mul_f32 v{vSum}, s{sA}, v{vSum}
        v_mul_f32 v{vSq}, s{sA}, v{vSq}
        v_cvt_pk_bf16_f32 v{vNegM}, 0, -v{vSum}
        v_fma_f32 v{vSq}, -v{vSum}, v{vSum}, v{vSq}
        """)
        NC = cfg["nc"]
        def first_frags():
            self.stamp(8, True)
            vm.wait(a, "B1" if cfg["bar2"] else "B0", 4)
            a("s_barrier")
            self.stamp(7, True)
            for G in range(2):
                for r in self.tr_reads(G): a(r)
        for st_ in range(NC):
            d0, c0 = self.center_ops(st_)
            if st_ == NC - 1:
                while order or self.pend:
                    if not self.pend: queue_next()
                    self.pop_ld()
                for op in d0: a(op)
                first_frags()
                for op in c0: a(op)
            else:
                if order and not self.pend: queue_next()
                for j, op in enumerate(d0 + c0):
                    a(op)
                    if j % 12 == 0 and self.pend: self.pop_ld()
        self.stamp(2)
        extra = Uniq()
        extra[130] = lines(f"""
            v_max_f32 v{vSq}, 0, v{vSq}
            v_cvt_pk_bf16_f32 v{vR}, 0, v{vSq}
            v_add_f32 v{vR}, 0x3727c5ac, v{vR}
            v_cvt_pk_bf16_f32 v{vR}, 0, v{vR}
            v_sqrt_f32 v{vR}, v{vR}; s_nop 0
            v_cvt_pk_bf16_f32 v{vD2}, 0, v{vR}
            v_rcp_f32 v{vR}, v{vD2}
            v_mul_f32 v{vD2}, v{vD2}, v{vD2}
            v_mul_f32 v{vC1}, 0x{NLOG2E:x}, v{vR}
            """)
        def pack_issue():
            sl = self.alloc("P")
            self.pend += [("op", f"s_add_u32 m0, s{sM0}, {sl*16384}")]
            self.pend += [("ld", f"buffer_load_dwordx4 v{PR+16+j}, s[{PK}:{PK+3}], s{PK+4} offen offset:{1024*j} lds", "PK") for j in range(4)]
        pk0 = cfg["pk0"]; pk1 = cfg["pk1"]
        extra[pk0] = pack_issue
        extra[pk0 + 1] = [lambda ch=ch: a(f"v_add_u32 v{PR+20+ch}, {self.slot['P']*16384}, v{PR+20+ch}") for ch in range(4)]
        rdl = [lambda: vm.wait(a, "PK", 4)]
        for ch in range(4):
            rdl.append(f"ds_read_b64_tr_b16 v[{PR+4*ch}:{PR+4*ch+1}], v{PR+20+ch}")
            rdl.append(f"ds_read_b64_tr_b16 v[{PR+4*ch+2}:{PR+4*ch+3}], v{PR+20+ch} offset:1024")
        extra[pk1] = rdl
        stl = []
        for ch in range(4):
            stl.append(lambda ch=ch: (self.xdone.add("P"), vm.issue(a, f"buffer_store_dwordx4 v[{PR+4*ch}:{PR+4*ch+3}], v{vL16}, s[{SRDW}:{SRDW+3}], s{PK+5+ch} offen sc1", "I")))
        extra[pk1 + 24] = [lambda: [f() for f in stl]] if cfg['stb'] > 1 else stl
        def touch(which, duty=None):
            def f():
                r, n, off = ((94, 20, 0), (91, 14, 2048))[which]
                ins = f"buffer_load_dword v{r}, v{r}, s[{PB[1]}:{PB[1]+3}], 0 offen offset:{off}"
                if duty is None:
                    a(f"s_mov_b64 exec, {(1 << n) - 1}"); vm.issue(a, ins, "T"); a("s_mov_b64 exec, -1")
                else:
                    L = a.newlabel("du")
                    a(f"s_cmp_lg_u32 s{sDuty}, {duty}\ns_cbranch_scc1 {L}\ns_mov_b64 exec, {(1 << n) - 1}\n{ins}\ns_mov_b64 exec, -1\n{L}:")
            return f
        for which, key in ((0, "tch"), (1, "tch2")):
            g_ = cfg[key]
            if isinstance(g_, list):
                for d_, gg in enumerate(g_): extra[gg] = touch(which, d_)
            elif 0 <= g_ < 160: extra[g_] = touch(which)
        if cfg["pub1"] < 160: extra[cfg["pub1"]] = lambda: (self.publish(1, ["I"]), self.retouch("P"))
        vq0 = None
        if cfg.get("b0fake"):
            vq0 = [((lambda gap: gap >= cfg["b0fake"]), (lambda k=k, u=u: vm.issue(a, f"buffer_load_dwordx4 {self.rr(self.BSLOT[k], 4*u)}, v{vLd + (u & 3)}, s[{PB[0]}:{PB[0]+3}], s{PB[0]+6} offen offset:{k*512}", f"PB{k}"))) for k in range(4) for u in range(5)]
        self.body(0, None, 3, center=True, extra=extra, vq=vq0, before=[(pk0 + 1, pk1), (pk1, pk1 + 16), (pk1 + 24, cfg["pub1"])])
        self.stamp(3)
        self.vPub = 86
        extra = Uniq()
        if cfg["tch2"] >= 160: extra[cfg["tch2"] - 160] = touch(1)
        if cfg["pub1"] >= 160: extra[cfg["pub1"] - 160] = lambda: self.publish(1, ["I"])
        extra[cfg["pub2"]] = lambda: (self.publish(2, ["E0"]), self.retouch("Q", PB[0] + 7))
        GR = 88
        def epoch():
            L = a.newlabel("ep")
            a(f"""
            s_or_b32 s{sA+8}, s2, s{sWave}
            s_cbranch_scc1 {L}
            v_mov_b32 v{GR}, s{sTok}
            s_mov_b32 s{sA+8}, {WS_EPOCH}
            s_mov_b64 exec, 1
            buffer_store_dword v{GR}, off, s[{SRDW}:{SRDW+3}], s{sA+8}
            s_mov_b64 exec, -1
            {L}:
            """)
        gc = cfg["gck"]
        assert gc % 16 == 6 and (not cfg["bar2"] or (gc // 16) % 2 == 1)
        gb = gc + 2
        extra[gb + 1] = epoch
        for j in range(4):
            extra[gc - 42 + 4 * j] = lambda j=j: self.flag_load(GR + 2 * j, sFlG, f"G{j}", 1, 512 * j)
            extra[gc - 9 + [0, 2, 4, 8][j]] = lambda j=j: self.flag_check(GR + 2 * j, sFlG, f"G{j}", 1, off=512 * j)
        after = lambda g0: (lambda gap: gap >= g0)
        vq = [(after(gb), f) for k in range(4) for f in self.b_loads(k)] if not cfg.get('b0fake') else []
        rest1 = self.body(1, self.epi_q(ACC[0], PB[0] + 7), 3, wrange=(4, cfg["w1"]), extra=extra, vq=vq, vq1=cfg["b1vq"])
        while self.pend: self.pop_ld()
        self.stamp(4)
        vm_split = list(vm.q)
        a(f"s_cmp_eq_u32 s{sThree}, 0")
        a(f"s_cbranch_scc1 {label}_two")
        self.vPub = 62
        pre = []
        def P(fn): pre.append(fn); return fn
        extra = Uniq()
        vq = [(after(0), P(f)) for _, f in rest1]
        st = {"q": False}
        q_l0 = lambda: self.flag_load(XB, sFl0, "Q0", 2)
        q_l1 = lambda: self.flag_load(XB + 2, sFl1, "Q1", 2)
        q_c0 = lambda: self.flag_check(XB, sFl0, "Q0", 2)
        def q_c1():
            self.flag_check(XB + 2, sFl1, "Q1", 2); st["q"] = True
        qc = cfg["qck"]
        extra[qc - 33] = q_l0; extra[qc - 29] = q_l1; extra[qc - 1] = q_c0; extra[qc + 3] = q_c1
        attl = []
        lastkv = [-100]
        def att_ok(gap, j):
            if not st["q"] or gap - lastkv[0] < cfg["kvgap"]: return False
            attl or attl.extend(self.att_loads(False))
            if j < 10:
                if self.next < 30 or self.pend: return False
                if "K" not in self.slot:
                    if not (self.free(7) and self.free(8)): return False
                    self.alloc("K", 7); self.alloc("V", 8)
            lastkv[0] = gap
            return True
        bq = []
        l0 = len(a.lines)
        def acc_free(b):
            return lambda gap: sum(1 for l in a.lines[l0:] if l.startswith("    v_accvgpr_read_b32") and b <= int(l.rsplit("a", 1)[1]) < b + 20) == 20
        grp_ = {k: [(after(4 * (5 * (k - 4) + 10)), f) for f in self.b_loads(k)] for k in range(4, 8)}
        for k in (8, 9, 10): grp_[k] = [(acc_free(int(self.BSLOT[k][1:])), f) for f in self.b_loads(k)]
        cur = [None]
        def seq(k, u, c):
            def ok(gap):
                if cur[0] not in (None, k) or not c(gap): return False
                cur[0] = k if u < 4 else None
                return True
            return ok
        for k in cfg["b2order"]: bq += [(seq(k, u, c), f) for u, (c, f) in enumerate(grp_[k])]
        for k in (4, 5): [P(f) for _, f in grp_[k]]
        P(q_l0); P(q_l1)
        for k in (6, 7): [P(f) for _, f in grp_[k]]
        P(q_c0); P(q_c1)
        pre.append("att")
        for k in (8, 9, 10): [P(f) for _, f in grp_[k]]
        for j in list(range(10, 15)) + list(range(10)): vq.append((lambda gap, j=j: att_ok(gap, j), lambda j=j: attl[j]()))
        vq += bq
        wq = []
        for s in range(7):
            ok = lambda gap, s=s: self.next >= 30 and not self.pend and (self.owner[s] == ("WO", s) or self.free(s))
            wq += [(ok, f) for f in self.wo_loads(s)]
        vq += wq
        extra[cfg["pub3"]] = lambda: (self.publish(3, ["E1"]), self.retouch("F", PB[1] + 7))
        rest = self.body(2, self.epi_f(ACC[1], PB[1] + 7), 3, wrange=(4, cfg["w2"]), extra=extra, vq=vq, vq1=cfg["vq1"], vq2=cfg["vq2"])
        self.stamp(5)
        wfs = [f for _, f in wq]
        if cur[0] is not None:
            cf = [f for _, f in grp_[cur[0]]]
            rest = [x for x in rest if x[1] in cf] + [x for x in rest if x[1] not in cf]
        late = [f for c_, f in rest if f not in wfs] + [P(f) for k in (11, 12) for f in self.b_loads(k)]
        late += [f for c_, f in rest if f in wfs and c_(160)]
        ntail = cfg["ntail"]
        assert 15 - vm.q.count("KV") <= ntail and "K" in self.slot
        post = late[ntail:]; late = late[:ntail]
        wrest = [f for c_, f in rest if f in wfs and f not in late]
        post = [f for f in post if f not in wfs]
        pre[:] = [f for f in pre if f not in post]
        for f in wfs:
            if f not in wrest: P(f)
        def tail(ops, inter, tag):
            inter = list(inter); n = len(ops); k = len(inter); j = 0
            for i, op in enumerate(ops):
                self.emit(op, tag)
                while j < k and j < (i + 1) * k // n:
                    inter[j](); j += 1
        a("s_nop 5")
        if cfg.get("f3tail"): late.insert(cfg["f3tail"], P(lambda: self.flag_load(vFl, sFl0, "F3", 3)))
        tail(self.epi_f_tail(ACC[0], PB[2] + 7), late, "E2")
        if cfg.get("verbose"): print("tail loads", len(late), "after join: B loads", len(post), "wo loads", len(wrest))
        self.lastbar = 100
        self.alloc("O", 9)
        a.label(f"{label}_join")
        self.stamp(6)
        self.vPub = 20
        if not cfg.get("f3tail"): self.flag_load(vFl, sFl0, "F3", 3)
        a(f"s_lshr_b32 s{sA}, s{sM0}, 2\nv_add_u32 v{vA[0]}, s{sA}, v{vL16}")
        for i in range(1, 4): a(f"v_add_u32 v{vA[i]}, 1024, v{vA[i-1]}\nv_and_b32 v{vA[i]}, 4095, v{vA[i]}")
        a("s_barrier")
        def xaddr(j, d, t1, t2):
            return [f"v_add_u32 v{t1}, {64*j}, v0", f"v_mul_u32_u24 v{t2}, {(1<<16)//10+1}, v{t1}", f"v_lshrrev_b32 v{t2}, 16, v{t2}",
                    f"v_mul_u32_u24 v{t2}, {1280-160}, v{t2}", f"v_lshl_add_u32 v{t2}, v{t1}, 4, v{t2}", f"v_add_u32 v{d}, s{sXo}, v{t2}"]
        def xl(j):
            for o in xaddr(j, 114, 114, 115): a(o)
            a(f"v_accvgpr_write_b32 a{60+j}, v114")
            a(f"s_mul_i32 s{sA+2}, s{sWave}, 2560\ns_add_u32 m0, s{sA+2}, {102400 + 1024*j}")
            a("s_mov_b32 exec_hi, 0" if j == 2 else "s_nop 0")
            vm.issue(a, f"global_load_lds_dwordx4 v114, s[4:5]", "XO")
            if j == 2: a("s_mov_b32 exec_hi, -1")
        assert not post
        free_ = [lambda j=j: xl(j) for j in range(3)] + post + wrest
        n1 = cfg["natt1"]; n2 = cfg["natt2"]
        al = free_[n1:]
        aa = [f for k in range(4) for f in self.a_loads(k)]
        n0 = cfg.get("natt0", n1)
        inter = free_[:n0] + [lambda: self.flag_check(vFl, sFl0, "F3", 3)]
        mix = list(aa[:n2])
        for j_, f_ in enumerate(free_[n0:n1]): mix.insert((j_ + 1) * (n2 + n1 - n0) // (n1 - n0) - 1, f_)
        inter += mix
        inter.insert(min(len(inter), cfg["pub4"]), lambda: self.publish(4, ["E2"]))
        ost = self.attention(inter)
        self.stamp(8)
        XR = 4; vX = 14; vW = 25; vRd = 28; vXo = [1, 2, 29]
        KF = cfg["kf"]
        wl = [f for f in al if f not in post]
        Q_ = [(0, f) for f in ost + aa[n2:] + [f for f in al if f in post]]
        grp = lambda e, fs: [(e, f) for f in fs]
        A_ = lambda k: grp(max(self.AEARLY[k], KF if k >= 8 else 0), self.a_loads(k))
        B_ = lambda k: grp(0, self.b_loads(k))
        for it in cfg["forder"]:
            Q_ += A_(int(it[1:])) if it[0] == "A" else B_(int(it[1:])) if it[0] == "B" else grp(0, wl) if it == "W" else grp(5, ["x0", "x1", "x2"])
        OA = 176
        def wo_reads(T):
            b = WR[T % 6]
            return [f"ds_read_b128 v[{b+4*u}:{b+4*u+3}], v{vL16 if T < 12 else 15} offset:{(T % 12)*5120 + u*1024}" for u in range(5)]
        def o_load(T):
            def f():
                if T % 4 == 0: a(f"s_add_u32 s{sGb}, s{sOld}, {T*1024}")
                vm.issue(a, f"buffer_load_dwordx4 a[{OA+4*T}:{OA+4*T+3}], v{vL16}, s[{SRDW}:{SRDW+3}], s{sGb} offen offset:{1024*(T&3)} sc1", f"PO{T//2}")
            return f
        KB = cfg["kbar"]; KO = cfg["ko"]; ns = cfg["nside"]; NOF = cfg["no_f"]; KX = cfg["kx"]
        R = 32; FO = 236; SQ = [92, 4, 8, 16, 20]; XU = 216
        WR = [116, 136, 156, 176, 196, 96]
        lq = LQ()
        def mf(k, i, u):
            t_ = (i * 5 + u) * 4
            d = f"a[{t_-20}:{t_-17}]" if i else f"v[{FO+t_}:{FO+t_+3}]"
            a(f"v_mfma_f32_16x16x32_bf16 {d}, {self.rr(self.BSLOT[k], 4*u)}, {self.rr(self.ASLOT[k], 4*i)}, {'0' if k == 0 else d}")
        def wait_ab(k):
            assert vm.q.count(f"PB{k}") == 5 and vm.q.count(f"PA{k}") == 4
            vm.wait(a, f"PA{k}" if vm.last(f"PA{k}") > vm.last(f"PB{k}") else f"PB{k}")
        olist = [o_load(T) for T in range(20)]
        for k in range(KX):
            if k % 2 == 0: self.mark(10 + k // 2)
            wait_ab(k)
            side = []
            if k == KF - 2: side += [lambda: self.flag_load(vFl, sFl0, "F4", 4)]
            if k == cfg.get("kp5", 3) and not cfg["nokb"]: side += [lambda: self.publish(5, ["O"])]
            if cfg["nokb"] and k == 2:
                side += [lambda o=o: a(o) for o in (f"v_and_b32 v1, 15, v0", f"v_mul_u32_u24 v2, 160, v1", f"v_lshrrev_b32 v1, 4, v0", f"v_lshl_add_u32 v2, v1, 3, v2",
                                                     f"s_add_u32 s{sA+2}, s{sA+2}, 102400", f"v_add_u32 v1, s{sA+2}, v2")]
            late_side = []
            if cfg["nokb"] and k == 3:
                side += [lambda: (vm.wait(a, "O"), [lq.issue(a, f"ds_read_b64 v[{XR+2*u}:{XR+2*u+1}], v1 offset:{32*u}", "XL") for u in range(5)])]
                late_side = [lambda: a(f"v_mov_b32 v{vX}, v2"), lambda: (lq.wait(a, "XL"), self.publish(5, []))]
            if k == KF: self.flag_check(vFl, sFl0, "F4", 4)
            if k == KO - 2: side += [lambda: self.flag_load(vFl, sFl0, "F5", 5)]
            if k == KO: self.flag_check(vFl, sFl0, "F5", 5, half=True)
            room = ns[k] - (1 if side else 0)
            for it in list(Q_):
                if room > 0 and it[0] <= k:
                    Q_.remove(it); room -= 1
                    side.append((lambda j=int(it[1][1]): xl(j)) if isinstance(it[1], str) else it[1])
            if k >= KO and not Q_ and room > 0: side += olist[:room]; olist = olist[room:]
            if k == 4:
                side += [lambda j=j: a(f"v_accvgpr_read_b32 v{vXo[j]}, a{60+j}") for j in range(3)]
            if k == 5:
                side += [lambda o=o: a(o) for o in lines(f"""
                    v_add_u32 v15, {12*5120}, v{vL16}
                    s_mov_b32 s{sA}, 0x{NLOG2E:x}
                    s_mov_b32 s{sA+1}, 0xffff0000
                    """)]
            if k == 6:
                for i in range(4):
                    d = vRd if i == 0 else vW + i - 1
                    side += [lambda o=o: a(o) for o in (f"v_lshrrev_b32 v3, 10, v{vA[i]}", f"v_mul_u32_u24 v3, 15360, v3",
                                                         f"v_add_u32 v3, {102400 + max(i-1, 0)*5120}, v3", f"v_add_u32 v{d}, v3, v{vL16}")]
            side += late_side
            if k == KB - 1 and not cfg['nokb']:
                side += [lambda: (vm.wait(a, "XO", 3), a(f"s_add_u32 s{sA+2}, s{sA+2}, 102400\nv_add_u32 v3, s{sA+2}, v{vX}"))]
                side += [lambda u=u: lq.issue(a, f"ds_read_b64 v[{XR+2*u}:{XR+2*u+1}], v3 offset:{32*u}", "XL") for u in range(5)]
            if k == KB and not cfg['nokb']:
                lq.wait(a, "XL"); vm.wait(a, "WO", 25); a("s_barrier")
            nsd = len(side); j = 0
            for i in range(4):
                for u in range(5):
                    mf(k, i, u)
                    while j < nsd and j < (i * 5 + u + 1) * nsd // 20:
                        side[j](); j += 1
        assert not Q_, len(Q_)
        assert KB < KX and KO < KX and KX >= 10
        self.mark(16)
        nk = 14 - KX
        base_side = olist[:max(NOF - (20 - len(olist)), 0)]; olist = olist[len(base_side):]
        ol_ = base_side
        base_side = [lambda r=r, T=T: lq.issue(a, r, f"W{T}") for T in range(5) for r in wo_reads(T)]
        base_side += [lambda j=j: a(f"v_and_b32 v{XU+j}, s{sA+1}, v{XR+(j>>1)}" if j & 1 else f"v_lshlrev_b32 v{XU+j}, 16, v{XR+(j>>1)}") for j in range(20)]
        for j_, f_ in enumerate(ol_): base_side.insert(j_ * (45 + len(ol_)) // len(ol_), f_)
        nb_ = len(base_side); jb = 0; m = 0
        for ri, i in enumerate((1, 2, 3, 0)):
            pw = []
            if ri:
                ip = (1, 2, 3)[ri - 1]
                pw = [f"ds_write_b128 v{vW+ip-1}, a[{(ip*5+u)*4-20}:{(ip*5+u)*4-17}] offset:{u*1024}" for u in range(5)]
            mm = 0
            for k in range(KX, 14):
                if ri == 0: wait_ab(k)
                for u in range(5):
                    mf(k, i, u); m += 1; mm += 1
                    if pw and mm >= 4 and (mm - 4) * 5 >= (5 - len(pw)) * (5 * nk - 4): lq.issue(a, pw.pop(0), "PW")
                    else:
                        while jb < nb_ and jb < m * nb_ // (20 * nk):
                            base_side[jb](); jb += 1
            for w_ in pw: lq.issue(a, w_, "PW")
        while jb < nb_:
            base_side[jb](); jb += 1
        self.stamp(7)
        work = [("f", f) for f in olist[:2]] + [("bar",)]
        for j in range(15): work.append(("l", f"ds_read_b128 v[{R+4*j}:{R+4*j+3}], v{vRd} offset:{j*1024}", "PR"))
        work += [("f", f) for f in olist[2:]]
        pk2 = lambda op, d, x, y: "\n".join(f"{op} v[{d+2*j}:{d+2*j+1}], v[{x+2*j}:{x+2*j+1}], {y(j)}" for j in range(10))
        work.append(("v", f"v_sub_u32 v3, v{vRd}, v{vL16}")); work.append(("v", f"v_add_u32 v3, v3, v{vX}"))
        work.append(("lw", "PR"))
        work.append(("v", "\n".join([pk2("v_pk_add_f32", FO, FO, lambda j: f"v[{R+2*j}:{R+2*j+1}]"),
                                     pk2("v_pk_add_f32", R+20, R+20, lambda j: f"v[{R+40+2*j}:{R+40+2*j+1}]"),
                                     pk2("v_pk_add_f32", FO, FO, lambda j: f"v[{R+20+2*j}:{R+20+2*j+1}]"),
                                     pk2("v_pk_mul_f32", R, FO, lambda j: f"s[{sA}:{sA+1}] op_sel_hi:[1,0]")])))
        for j in range(20): work.append(("v", f"v_exp_f32 v{R+j}, v{R+j}"))
        for j in range(20): work.append(("v", f"v_add_f32 v{R+j}, 1.0, v{R+j}"))
        for j in range(20): work.append(("v", f"v_rcp_f32 v{R+j}, v{R+j}"))
        def do(wk):
            if wk[0] == "v": a(wk[1])
            elif wk[0] == "f": wk[1]()
            elif wk[0] == "l": lq.issue(a, wk[1], wk[2])
            elif wk[0] == "lw": lq.wait(a, wk[1])
            elif wk[0] == "bar":
                lq.wait(a, "PW"); self.mark(20); a("s_barrier"); self.mark(21)
        for j in range(20): work.append(("v", f"v_mul_f32 v{FO+j}, v{FO+j}, v{R+j}"))
        nw = len(work); done = 0; m = 0
        TU = cfg["tu"]; NM = 5 * TU
        def smf(T, u):
            d = f"v[{SQ[u]}:{SQ[u]+3}]"; b = WR[T % 6]
            a(f"v_mfma_f32_16x16x32_bf16 {d}, v[{b+4*u}:{b+4*u+3}], a[{OA+4*T}:{OA+4*T+3}], {'0' if T == 0 else d}")
        for T in range(TU):
            if T % 4 == 0: vm.wait(a, f"PO{T//2+1}", 2)
            if T in (0, 10): self.mark({0: 17, 10: 18}[T])
            if T % 3 == 0: lq.wait(a, f"W{T+2}")
            rd = wo_reads(T + 5) if T + 5 < 20 else []
            for u in range(5):
                smf(T, u); m += 1
                if rd: lq.issue(a, rd.pop(0), f"W{T+5}")
                while done < nw and done < m * nw // NM:
                    do(work[done]); done += 1
        assert done == nw and TU >= 15
        self.mark(19)
        vm.wait(a, "PO9", 2); lq.wait(a, "W19")
        def comb(u):
            f0 = FO + 4 * u; o = 64 + 2 * u
            return [f"v_fma_f32 v{f0+j}, v{f0+j}, v{SQ[u]+j}, v{XU+4*u+j}" for j in range(4)] + \
                   [f"v_cvt_pk_bf16_f32 v{o}, v{f0}, v{f0+1}", f"v_cvt_pk_bf16_f32 v{o+1}, v{f0+2}, v{f0+3}", f"ds_write_b64 v3, v[{o}:{o+1}] offset:{32*u}"]
        for u in range(5):
            c_ = comb(u - 2) if u >= 2 else []
            if u == 2: a(f"s_nop {max(8 - (20 - TU) - 2, 0)}")
            for T in range(TU, 20):
                smf(T, u)
                for o in c_[:2]: a(o)
                c_ = c_[2:]
            for o in c_: a(o)
        for o in comb(3): a(o)
        a("s_nop 0")
        for o in comb(4): a(o)
        a("s_waitcnt lgkmcnt(0)")
        for j in range(3): a(f"ds_read_b128 v[{76+4*j}:{79+4*j}], v{vRd} offset:{1024*j}")
        for j in range(3):
            a(f"s_waitcnt lgkmcnt({2-j})")
            if j == 2: a("s_mov_b32 exec_hi, 0")
            a(f"global_store_dwordx4 v{vXo[j]}, v[{76+4*j}:{79+4*j}], s[6:7] {cfg.get('scO', '')}")
        a("s_mov_b32 exec_hi, -1")
        self.mark(22)
        if self.stamps:
            a("s_waitcnt vmcnt(0)")
            a(f"s_memtime s[{sA}:{sA+1}]")
            a(f"s_memrealtime s[{sA+2}:{sA+3}]")
            a("s_waitcnt lgkmcnt(0)")
            for i in range(1, 8):
                a(f"s_sub_u32 s{sA+4}, s{ST0+2*(i-1)}, s0\nv_mov_b32 v{32+i}, s{sA+4}")
            a(f"s_sub_u32 s{sA+4}, s{sA}, s0\nv_mov_b32 v40, s{sA+4}\nv_mov_b32 v41, s{sA+2}")
            a(f"s_sub_u32 s{sA+4}, s{ST0+14}, s0\nv_mov_b32 v42, s{sA+4}")
            a(f"""
            v_mov_b32 v32, s1
            s_lshl_b32 s{sA}, s2, 2
            s_add_u32 s{sA}, s{sA}, s{sWave}
            s_lshl_b32 s{sA}, s{sA}, 6
            s_add_u32 s{sA}, s{sA}, {WS_STAMP}
            s_mov_b64 exec, 1
            buffer_store_dwordx4 v[32:35], off, s[{SRDW}:{SRDW+3}], s{sA}
            buffer_store_dwordx4 v[36:39], off, s[{SRDW}:{SRDW+3}], s{sA} offset:16
            buffer_store_dwordx4 v[40:43], off, s[{SRDW}:{SRDW+3}], s{sA} offset:32
            """)
        a("s_endpgm")
        a.label(f"{label}_two")
        self.stamp(5)
        self.vm = vm = VM()
        self.vPub = 62
        self.vm.q = list(vm_split)
        self.vm.wait(a, [t_ for t_ in self.vm.q if t_[0] == "B" and t_[1:].isdigit()][-1])
        a("s_waitcnt lgkmcnt(0)\ns_barrier\ns_nop 4")
        flat = []
        for f in pre: flat += self.att_loads() if f == "att" else [f]
        nb_ = cfg["nbtail"]
        tail(self.epi_f_tail(ACC[1], PB[1] + 7), flat[:nb_], "E1")
        for i, f in enumerate(flat[nb_:]):
            if i == cfg["nbpub"]:
                self.publish(3, ["E1"]); a("s_nop 1"); self.publish(4, []); self.retouch("F", PB[1] + 7)
            if i % 8 == 3 and cfg.get("markT", 2) == 2: self.mark(i // 8)
            f()
        a("s_waitcnt vmcnt(0)")
        a(f"s_branch {label}_join")
        for s in self.slow: a(s)
        a.label(f"{label}_end")
        a("s_endpgm")
        a.end_kernel(label, 512, 102, 256, 256, 256, 163840)
        return a.text("""Generated by dev/fused2.py (own generator). One persistent kernel, 256 workgroups of 4 waves, one per CU.
kernarg: 0 A_x, 8 A_wqkv, 16 A_wo, 24 B_x (unused by the reference), 32 w_gate, 40 w_up, 48 w_down, 56 out, 64 debug, 72 ws
Phase 1: 128 rows of x per workgroup stay in registers (LayerNorm: centred in place, 1/std applied in the epilogues);
  up to three 128-column tasks of x@[wqkv | w_gate,w_up] with the weights streamed through an LDS ring (LDS-DMA + transposing reads);
  q,k,v and h = silu(g)*u go to ws; w_down / wo are repacked into MFMA fragment order in ws.
Attention: 64 rows x 4 heads per workgroup (true row max softmax), result to ws.
Phase 2: 64x80 output tile per workgroup: h@w_down (K split over the waves), o@wo, out = x + s*silu(f).
Hand-offs between workgroups: write-through stores, then a per-wave flag holding a token that is new in every launch
  (derived from a word in ws that workgroup 0 advances), consumers look at the flags before they load.""")

if __name__ == "__main__":
    stamps = "--stamps" in sys.argv
    pos = [x for x in sys.argv[1:] if not x.startswith("--")]
    cfg = json.loads(pos[1]) if len(pos) > 1 else {}
    open(pos[0], "w").write(Gen(cfg, stamps).build())
```

```python
import sys, json; sys.path.insert(0, "dev")
from asmlib import *
import fused2 as F
from fused2 import *

rTok = 0; rLd = 2; rTr = 3; rSF = 7; rL8 = 8; rC1 = 9; rD2 = 10; rR = 11; rW = 12; rAcc = 32
sJS = 22

class Dual(Gen):
    KS = 1
    def __init__(self, cfg, stamps):
        super().__init__(dict(dict(map8=2, p2x=0, nokb=0, prio=2, psleep=8, xw=4, pb=2, pubgap=70, spl=14), **cfg), stamps)
    def ids(self):
        a = self.a; cfg = self.cfg
        a(f"""
        v_lshrrev_b32 v{vT}, 6, v0
        v_and_b32 v0, 63, v0
        s_and_b32 s{sA}, s2, 7
        v_readfirstlane_b32 s{sWave}, v{vT}
        s_lshr_b32 s{sA+2}, s2, 5
        s_and_b32 s{sMb}, s{sA}, 4
        s_lshl_b32 s{sMb}, s{sMb}, 1
        s_add_u32 s{sMb}, s{sMb}, s{sA+2}
        s_bfe_u32 s{sHalf}, s2, 0x10001
        s_bfe_u32 s{sA+1}, s2, 0x20003
        s_and_b32 s{sJ}, s2, 1
        s_lshl_b32 s{sJ}, s{sJ}, 2
        s_add_u32 s{sJ}, s{sJ}, s{sA+1}
        s_lshl_b32 s{sRot}, s{sA+1}, 2
        s_lshr_b32 s{sRot}, 0x7520, s{sRot}
        s_and_b32 s{sRot}, s{sRot}, 15
        s_lshl_b32 s{sA+3}, s{sA+2}, 2
        s_lshr_b32 s{sA+3}, {cfg.get("rot8", 0x43210210)}, s{sA+3}
        s_and_b32 s{sA+3}, s{sA+3}, 15
        s_add_u32 s{sRot}, s{sRot}, s{sA+3}
        s_lshr_b32 s{sA+3}, s{sA}, 2
        s_mul_i32 s{sA+3}, s{sA+3}, 5
        s_add_u32 s{sRot}, s{sRot}, s{sA+3}
        s_and_b32 s{sA+3}, s2, 1
        s_add_u32 s{sRot}, s{sRot}, s{sA+3}
        s_sub_u32 s{sA+3}, s{sRot}, 10
        s_min_u32 s{sRot}, s{sRot}, s{sA+3}
        s_lshl_b32 s{sM0}, s{sWave}, 12
        s_mov_b32 s{sOOB}, {OOB}
        s_lshl_b32 s{sA+7}, s{sHalf}, 3
        s_add_u32 s{sA+7}, s{sA+7}, s{sJ}
        """)
    def common(self):
        sS = sA + 7
        return lines(f"""
        s_add_u32 s{sA}, s{pWS}, {WS_EPOCH}; s_addc_u32 s{sA+1}, s{pWS+1}, 0
        s_load_dwordx2 s[{sTok}:{sTok+1}], s[{sA}:{sA+1}], 0
        s_mov_b32 s{SRDW}, s{pWS}
        s_mov_b32 s{SRDW+1}, s{pWS+1}
        s_mov_b32 s{SRDW+2}, {WS_SIZE}
        s_mov_b32 s{SRDW+3}, 0x20000
        s_lshl_b32 s{sMb64}, s{sMb}, 1
        s_add_u32 s{sMb64}, s{sMb64}, s{sHalf}
        s_lshl_b32 s{sFlag}, s{sMb}, 4
        s_add_u32 s{sFlag}, s{sFlag}, s{sS}
        s_lshl_b32 s{sFlag}, s{sFlag}, 2
        s_add_u32 s{sFlag}, s{sFlag}, s{sWave}
        s_lshl_b32 s{sFlag}, s{sFlag}, 3
        s_add_u32 s{sFlag}, s{sFlag}, {WS_FLAG}
        """)
    def rowcol(self, row, col, t0, t1):
        return lines(f"""
        v_lshrrev_b32 v{row}, 3, v0
        s_and_b32 s{sA}, s{sWave}, 1
        s_lshl_b32 s{sA}, s{sA}, 5
        v_add_u32 v{row}, s{sA}, v{row}
        v_bfe_u32 v{t0}, v0, 1, 2
        v_bfe_u32 v{t1}, v0, 4, 1
        s_and_b32 s{sA}, s{sWave}, 2
        v_or_b32 v{t1}, s{sA}, v{t1}
        v_xor_b32 v{t0}, v{t0}, v{t1}
        v_and_b32 v{t1}, 1, v0
        v_lshlrev_b32 v{t1}, 4, v{t1}
        v_lshl_add_u32 v{col}, v{t0}, 5, v{t1}
        """)
    def stamp_out(self, off):
        a = self.a
        if not self.stamps: return
        a(f"s_waitcnt vmcnt(0)\ns_memtime s[{sA}:{sA+1}]\ns_memrealtime s[{sA+2}:{sA+3}]\ns_waitcnt lgkmcnt(0)")
        for i in range(1, 8): a(f"s_sub_u32 s{sA+4}, s{ST0+2*(i-1)}, s0\nv_mov_b32 v{32+i}, s{sA+4}")
        a(f"s_sub_u32 s{sA+4}, s{sA}, s0\nv_mov_b32 v40, s{sA+4}\nv_mov_b32 v41, s{sA+2}\ns_sub_u32 s{sA+4}, s{ST0+14}, s0\nv_mov_b32 v42, s{sA+4}")
        a(f"""
        v_mov_b32 v32, s1
        s_lshl_b32 s{sA}, s2, 2
        s_add_u32 s{sA}, s{sA}, s{sWave}
        s_lshl_b32 s{sA}, s{sA}, 6
        s_add_u32 s{sA}, s{sA}, {WS_STAMP + off}
        s_mov_b64 exec, 1
        buffer_store_dwordx4 v[32:35], off, s[{SRDW}:{SRDW+3}], s{sA}
        buffer_store_dwordx4 v[36:39], off, s[{SRDW}:{SRDW+3}], s{sA} offset:16
        buffer_store_dwordx4 v[40:43], off, s[{SRDW}:{SRDW+3}], s{sA} offset:32
        """)

    def pub1(self, level, after):
        a = self.a
        for tg in after: self.vm.wait(a, tg)
        a(f"s_add_u32 s{sA+8}, s{sFlag}, {level*8192}\ns_mov_b64 exec, 1")
        self.vm.issue(a, f"buffer_store_dwordx2 v[{rTok}:{rTok+1}], off, s[{SRDW}:{SRDW+3}], s{sA+8} sc1", "fl")
        a("s_mov_b64 exec, -1")
    def group(self, g):
        P = PB[g // 10]; it = [("op", f"s_add_u32 m0, s{sM0}, {(g % 5)*16384}")]
        if g % 10 == 0:
            if g == 10:
                it += [("op", o) for o in (f"v_lshrrev_b32 v{rTok}, 6, v{rL8}", f"s_and_b32 s{sA}, s{sWave}, 1", f"s_lshl_b32 s{sA}, s{sA}, 5", f"v_add_u32 v{rTok}, s{sA}, v{rTok}",
                                           f"v_mul_u32_u24 v{rTok}, 384, v{rTok}", f"v_sub_u32 v{rLd}, v{rLd}, v{rTok}", f"v_mov_b32 v{rTok}, s{sTok}")]
            it += [("op", o) for o in (f"s_lshl_b32 s{sStep}, s{P+4}, 6", f"s_lshl_b32 s{sJS}, s{P+4}, 3", f"s_sub_u32 s{sJS}, s{sJS}, 1024",
                                       f"s_mul_i32 s{sWrap}, s{sStep}, 10", f"s_add_u32 s{sWrap}, s{sWrap}, s{P+5}", f"s_add_u32 s{sSoff}, s{P+6}, s{P+5}")]
        else: it.append(("op", f"s_add_u32 s{sSoff}, s{sSoff}, s{sStep}; s_cmp_eq_u32 s{sSoff}, s{sWrap}; s_cselect_b32 s{sSoff}, s{P+5}, s{sSoff}"))
        for j in range(4):
            if j: it.append(("op", f"s_add_u32 s{sJS+1}, s{sSoff if j == 1 else sJS+1}, s{sJS}"))
            it.append(("ld", f"buffer_load_dwordx4 v{rLd}, s[{P}:{P+3}], s{sSoff if j == 0 else sJS+1} offen offset:{1024*j} lds", f"B{g}"))
        return it
    def frag(self, n):
        st, s, t = n >> 4, (n >> 2) & 3, n & 3
        sl = st % 5; b = rW + 4 * (n % 5); o = min(sl, 3) * 16384 + s * 2048
        r = []
        if sl == 4 and s == 0: r.append(f"v_add_u32 v{rTr+t}, 16384, v{rTr+t}")
        r += [f"ds_read_b64_tr_b16 v[{b}:{b+1}], v{rTr+t} offset:{o}", f"ds_read_b64_tr_b16 v[{b+2}:{b+3}], v{rTr+t} offset:{o+512}"]
        if sl == 4 and s == 3: r.append(f"v_subrev_u32 v{rTr+t}, 16384, v{rTr+t}")
        return r
    def body1(self, T, extra):
        a = self.a
        for n in range(4):
            for r in self.frag(n): a(r)
        for n in range(160):
            S, t = n >> 2, n & 3; st = n >> 4; g = 10 * T + st
            a(f"s_waitcnt lgkmcnt({2 * min(3, 159 - n)})")
            A = rAcc + 16 * t; w = rW + 4 * (n % 5); x = XB + 4 * S
            a(f"v_mfma_f32_32x32x16_bf16 v[{A}:{A+15}], v[{w}:{w+3}], v[{x}:{x+3}], {'0' if S == 0 else f'v[{A}:{A+15}]'}")
            if n % 16 == 12 and g + 1 < 30:
                self.vm.wait(a, f"B{g+1}", 4); a("s_barrier")
                while self.next <= g + 4 and self.next < 30:
                    self.pend += self.group(self.next); self.next += 1
            if n + 4 < 160:
                for r in self.frag(n + 4): a(r)
            nld = sum(1 for p_ in self.pend if p_[0] == "ld")
            if self.pend and (n % 3 == 1 or nld > 4): self.pop_ld()
            elif self.pend and n % 3 == 0: self.pop_ops()
            if n in extra: extra[n]()
        while self.pend: self.pop_ld()
        a("s_nop 7\ns_nop 1")
    def epi1_f(self, so, tag):
        p2 = lambda r: f"v[{r}:{r+1}]"
        for t in range(4):
            g = rAcc + 16 * t; u = g + 8; e = rW + 8 * (t & 1); ops = []
            for i in range(4): ops.append(f"v_pk_mul_f32 {p2(e+2*i)}, {p2(rC1-1)}, {p2(g+2*i)} op_sel:[1,0]")
            for i in range(8): ops.append(f"v_exp_f32 v{e+i}, v{e+i}")
            for i in range(4): ops.append(f"v_pk_mul_f32 {p2(g+2*i)}, {p2(g+2*i)}, {p2(u+2*i)}")
            for i in range(4): ops.append(f"v_pk_fma_f32 {p2(e+2*i)}, {p2(e+2*i)}, {p2(rD2)}, {p2(rD2)} op_sel_hi:[1,0,0]")
            for i in range(8): ops.append(f"v_rcp_f32 v{e+i}, v{e+i}")
            for i in range(4): ops.append(f"v_pk_mul_f32 {p2(g+2*i)}, {p2(g+2*i)}, {p2(e+2*i)}")
            for i in range(4): ops.append(f"v_cvt_pk_bf16_f32 v{u+i}, v{g+2*i}, v{g+2*i+1}")
            if t == 2: ops.append(f"s_add_u32 s{so}, s{so}, 4096")
            ops.append(f"buffer_store_dwordx4 v[{u}:{u+3}], v{rSF}, s[{SRDW}:{SRDW+3}], s{so} offen offset:{(t&1)*512} sc1")
            for o in ops: self.emit(o, tag)
    def epi1_q(self, so, tag):
        self.a(f"s_add_u32 s{so-1}, s{so}, 4096")
        for t in range(4):
            g = rAcc + 16 * t
            for i in range(8): self.a(f"v_pk_mul_f32 v[{g+2*i}:{g+2*i+1}], v[{g+2*i}:{g+2*i+1}], v[{rD2}:{rD2+1}] op_sel:[0,1]")
            for i in range(8): self.a(f"v_cvt_pk_bf16_f32 v{g+i}, v{g+2*i}, v{g+2*i+1}")
            for q in range(4):
                self.emit(f"buffer_store_dwordx2 v[{g+2*q}:{g+2*q+1}], v{rL8}, s[{SRDW}:{SRDW+3}], s{so-(q>>1)} offen offset:{(4*t+2*(q&1))*256} sc1", tag)
    def role1(self):
        a = self.a; cfg = self.cfg; vm = self.vm; label = self.label
        sX = sA + 9; sS = sA + 7; sC = sA + 8; SX = PK; t0 = 64; XV = 68; XA = 72; Sum = 76; Sq = 77; Neg = 78
        a(f"""
        s_setprio {cfg["prio"]}
        s_lshl_b32 s{sX}, s{sRot}, 7
        s_lshl_b32 s{sA}, s{sMb}, 7
        s_lshl_b32 s{sA+1}, s{sWave}, 5
        s_add_u32 s{sA}, s{sA}, s{sA+1}
        s_mul_i32 s{sA}, s{sA}, 1280
        v_lshrrev_b32 v{t0}, 3, v0
        v_mul_u32_u24 v{t0}, 1280, v{t0}
        v_add_u32 v{t0}, s{sA}, v{t0}
        v_lshrrev_b32 v{t0+1}, 4, v0
        v_and_b32 v{t0+2}, 7, v0
        v_xor_b32 v{t0+1}, v{t0+1}, v{t0+2}
        v_xor_b32 v{t0+2}, 4, v{t0+1}
        v_lshl_add_u32 v{XV}, v{t0+1}, 4, v{t0}
        v_lshl_add_u32 v{XV+1}, v{t0+2}, 4, v{t0}
        v_add_u32 v{XV+1}, {8*1280-1024}, v{XV+1}
        v_add_u32 v{XV+2}, {2*(8*1280-1024)}, v{XV}
        v_add_u32 v{XV+3}, {2*(8*1280-1024)}, v{XV+1}
        s_mov_b32 s{SX+2}, {2048*1280}
        s_mov_b32 s{SX+3}, 0x20000
        s_mov_b32 m0, s{sM0}
        s_waitcnt lgkmcnt(0)
        s_mov_b32 s{SX}, s4
        s_mov_b32 s{SX+1}, s5
        """)
        if self.stamps: a(f"s_mov_b32 s1, s{sTok}")
        setup = self.common() + self.rowcol(80, 81, t0, t0 + 1) + lines(f"""
        v_mul_u32_u24 v{rLd}, 3840, v80
        v_add_u32 v{rLd}, v{rLd}, v81
        s_mov_b32 s{sOne}, 0x3f803f80
        s_mov_b32 s{sLo}, 0x00003f80
        s_mov_b32 s{sHi}, 0x3f800000
        v_and_b32 v{t0}, 31, v0
        v_lshlrev_b32 v{t0+1}, 7, v{t0}
        v_add_u32 v{t0+1}, s{sM0}, v{t0+1}
        v_bfe_u32 v{t0}, v0, 1, 3
        v_lshrrev_b32 v{t0+2}, 5, v0
        v_xor_b32 v{t0}, v{t0}, v{t0+2}
        """)
        for s in range(4):
            setup += [f"v_xor_b32 v{t0+2}, {2*s}, v{t0}", f"v_lshl_add_u32 v{XA+s}, v{t0+2}, 4, v{t0+1}", f"v_add_u32 v{84+s}, 0x10000, v{XA+s}"]
        setup += lines(f"""
        v_mov_b64 v[{Sum}:{Sq}], 0
        v_lshlrev_b32 v{rL8}, 3, v0
        v_bfe_u32 v{t0}, v0, 4, 1
        v_bfe_u32 v{t0+1}, v0, 2, 2
        v_lshrrev_b32 v{t0+2}, 5, v0
        v_lshl_add_u32 v{t0+2}, v{t0+2}, 3, v{t0+1}
        v_lshlrev_b32 v{t0+2}, 7, v{t0+2}
        v_lshl_add_u32 v{t0+2}, v{t0}, 13, v{t0+2}
        v_and_b32 v{t0+3}, 3, v0
        v_lshl_add_u32 v{t0+2}, v{t0+3}, 3, v{t0+2}
        v_lshrrev_b32 v{t0+1}, 1, v{t0+1}
        v_lshl_add_u32 v{t0}, v{t0}, 1, v{t0+1}
        """)
        for t in range(4): setup += [f"v_xor_b32 v{t0+1}, {t}, v{t0}", f"v_lshl_add_u32 v{rTr+t}, v{t0+1}, 5, v{t0+2}"]
        setup += lines(f"""
        v_bfe_u32 v{t0}, v0, 4, 1
        v_lshlrev_b32 v{t0}, 10, v{t0}
        v_lshrrev_b32 v{t0+1}, 5, v0
        v_lshl_add_u32 v{t0}, v{t0+1}, 8, v{t0}
        v_and_b32 v{t0+1}, 15, v0
        v_lshl_add_u32 v{rSF}, v{t0+1}, 4, v{t0}
        s_add_u32 s{sC}, s{sS}, 15
        s_and_b32 s{sC}, s{sC}, 15
        """) + self.q_params(PB[0], sC) + lines(f"""
        s_lshr_b32 s{sA}, s{sS}, 2
        s_sub_u32 s{sC}, s{sS}, s{sA}
        s_add_u32 s{sC}, s{sC}, 16
        s_and_b32 s{sA}, s{sS}, 3
        s_cmp_lt_u32 s{sA}, 3; s_cselect_b32 s{sC}, s{sC}, 31
        s_cmp_lt_u32 s{sC}, 27; s_cselect_b32 s{sThree}, 1, 0
        """) + self.f_params(PB[1], sS) + self.f_params(PB[2], sC)
        def xg(i):
            if i: self.pend.append(("op", f"s_add_u32 m0, s{sM0}, {(i % 5)*16384}; s_add_u32 s{sX}, s{sX}, 128; s_cmp_eq_u32 s{sX}, 1280; s_cselect_b32 s{sX}, 0, s{sX}"))
            self.pend += [("ld", f"buffer_load_dwordx4 v{XV+j}, s[{SX}:{SX+3}], s{sX} offen offset:{1024*j} lds", f"X{i}") for j in range(4)]
        done = 0; spl = cfg["spl"]
        for i in range(4):
            xg(i)
            for j in range(4):
                self.pop_ld()
                for o in setup[done:done + spl]: self.emit(o)
                done += spl
        for o in setup[done:]: self.emit(o)
        def stats(i, j):
            for r in range(4 * j, 4 * j + 4):
                x = XB + 16 * i + r
                a(f"v_dot2c_f32_bf16 v{Sum}, s{sOne}, v{x}\nv_dot2c_f32_bf16 v{Sq}, v{x}, v{x}")
        for i in range(10):
            vm.wait(a, f"X{i}", 4)
            for s in range(4):
                x = XB + 4 * (4 * i + s)
                a(f"ds_read_b128 v[{x}:{x+3}], v{(84 if i % 5 == 4 else XA)+s} offset:{(i % 5 % 4)*16384}")
            if i + 4 < 10: xg(i + 4)
            elif self.next < cfg["pb"]:
                self.pend += self.group(self.next); self.next += 1
            for j in range(4):
                if self.pend: self.pop_ld()
                if i: stats(i - 1, j)
            a("s_waitcnt lgkmcnt(0)")
        a(f"s_xor_b32 s{sTok+1}, s{sTok+1}, 0x{TOKX:x}\ns_add_u32 s{sTok}, s{sTok}, 1")
        for j in range(4): stats(9, j)
        self.stamp(1)
        a(f"""
        v_mov_b64 v[{rTok}:{rTok+1}], s[{sTok}:{sTok+1}]
        s_nop 1
        v_mov_b64 v[{t0}:{t0+1}], v[{Sum}:{Sq}]
        s_nop 1
        v_permlane32_swap_b32 v{Sum}, v{t0}
        v_permlane32_swap_b32 v{Sq}, v{t0+1}
        s_nop 0
        v_pk_add_f32 v[{Sum}:{Sq}], v[{Sum}:{Sq}], v[{t0}:{t0+1}]
        v_mul_f32 v{Sum}, 0x3acccccd, v{Sum}
        v_mul_f32 v{Sq}, 0x3acccccd, v{Sq}
        v_cvt_pk_bf16_f32 v{Neg}, 0, -v{Sum}
        v_fma_f32 v{Sq}, -v{Sum}, v{Sum}, v{Sq}
        v_max_f32 v{Sq}, 0, v{Sq}
        v_cvt_pk_bf16_f32 v{rR}, 0, v{Sq}
        v_add_f32 v{rR}, 0x3727c5ac, v{rR}
        v_cvt_pk_bf16_f32 v{rR}, 0, v{rR}
        v_sqrt_f32 v{rR}, v{rR}
        s_nop 0
        v_cvt_pk_bf16_f32 v{rD2}, 0, v{rR}
        v_rcp_f32 v{rR}, v{rD2}
        v_mul_f32 v{rD2}, v{rD2}, v{rD2}
        v_mul_f32 v{rC1}, 0x{NLOG2E:x}, v{rR}
        """)
        for st in range(10):
            x = XB + 16 * st
            ops = [f"v_dot2_f32_bf16 v{32+2*i+h}, v{x+i}, s{sHi if h else sLo}, v{Neg}" for i in range(16) for h in range(2)]
            ops += [f"v_cvt_pk_bf16_f32 v{x+i}, v{32+2*i}, v{33+2*i}" for i in range(16)]
            if self.next < 5 and not self.pend and st % 2 == 1:
                self.pend += self.group(self.next); self.next += 1
            for j, o in enumerate(ops):
                a(o)
                if j % 24 == 0 and self.pend: self.pop_ld()
            if st == cfg.get("pub0", 6): self.pub1(0, [])
        while self.pend: self.pop_ld()
        vm.wait(a, "B0", 4); a("s_barrier")
        self.stamp(2)
        pg = cfg["pubgap"]
        self.body1(0, {})
        self.stamp(3)
        self.epi1_q(PB[0] + 7, "E0")
        self.body1(1, {pg: lambda: self.pub1(2, ["E0"])})
        self.stamp(4)
        self.epi1_f(PB[1] + 7, "E1")
        a(f"s_cmp_eq_u32 s{sThree}, 0\ns_cbranch_scc1 {label}_two")
        self.body1(2, {pg: lambda: self.pub1(3, ["E1"])})
        self.stamp(5)
        self.epi1_f(PB[2] + 7, "E2")
        a.label(f"{label}_fin1")
        self.stamp(6)
        a("s_waitcnt vmcnt(0)")
        self.pub1(4, [])
        self.stamp_out(0x10000)
        a("s_endpgm")
        a.label(f"{label}_two")
        self.stamp(5)
        a("s_waitcnt vmcnt(0)")
        self.pub1(3, [])
        a(f"s_branch {label}_fin1")

    def wait_flags(self, specs, allw=False):
        a = self.a; L = a.newlabel("wf")
        if not allw: a(f"s_cmp_lg_u32 s{sWave}, 0\ns_cbranch_scc1 {L}_done")
        for i, (soff, level, off, mask) in enumerate(specs):
            l = self.flag_ld(vFl, soff, level, off, "sc1")
            test = {None: "s_nop 0\ns_cmp_lg_u64 vcc, 0", "half": f"s_cmp_eq_u32 s{sHalf}, 0\ns_cselect_b32 s{sA+8}, vcc_lo, vcc_hi\ns_cmp_lg_u32 s{sA+8}, 0",
                    "one": f"s_nop 0\ns_and_b32 s{sA+8}, vcc_lo, 1"}[mask]
            a(f"""
            s_mov_b32 s{sA+9}, 0
            {L}_{i}:
            {l[0]}
            {l[1]}
            s_add_u32 s{sA+9}, s{sA+9}, 1
            s_cmp_gt_u32 s{sA+9}, {self.cfg["spin"]}
            s_waitcnt vmcnt(0)
            s_cbranch_scc1 {L}_{i}k
            v_cmp_ne_u64 vcc, s[{sTok}:{sTok+1}], v[{vFl}:{vFl+1}]
            {test}
            s_cbranch_scc0 {L}_{i}k
            s_sleep {self.cfg["psleep"]}
            s_branch {L}_{i}
            {L}_{i}k:
            """)
        a.label(f"{L}_done")
        a("s_barrier")
    def role2(self):
        a = self.a; cfg = self.cfg; self.vm = vm = VM(); self.pend = []
        a("s_waitcnt lgkmcnt(0)")
        if self.stamps: a(f"s_mov_b32 s1, s{sTok}")
        setup = self.common() + self.rowcol(vRow, vCol, vT, vT + 1) + [f"v_lshlrev_b32 v{vL16}, 4, v0", f"v_lshlrev_b32 v{vL8}, 3, v0"] + self.pack_params() + lines(f"""
        v_lshrrev_b32 v{vT}, 5, v0
        v_lshlrev_b32 v{vT}, 4, v{vT}
        v_bfe_u32 v{vT+1}, v0, 4, 1
        v_lshl_add_u32 v{vT}, v{vT+1}, 2, v{vT}
        v_bfe_u32 v{vT+1}, v0, 2, 2
        v_add_u32 v{vT}, v{vT}, v{vT+1}
        v_lshlrev_b32 v{vT}, 7, v{vT}
        v_and_b32 v{vT+2}, 3, v0
        v_lshl_add_u32 v{vT}, v{vT+2}, 3, v{vT}
        v_add_u32 v{vT}, s{sM0}, v{vT}
        v_lshrrev_b32 v{vT+1}, 1, v{vT+1}
        s_and_b32 s{sA+2}, s{sWave}, 2
        v_or_b32 v{vT+1}, s{sA+2}, v{vT+1}
        """)
        for ch in range(4): setup += [f"v_xor_b32 v{PR+20+ch}, {ch}, v{vT+1}", f"v_lshl_add_u32 v{PR+20+ch}, v{PR+20+ch}, 5, v{vT}"]
        setup += [f"v_mul_u32_u24 v{PR+16}, 1280, v{vRow}", f"v_add_u32 v{PR+16}, v{vCol}, v{PR+16}"]
        setup += [f"v_add_u32 v{PR+16+j}, {j*(8*1280-1024)}, v{PR+16}" for j in range(1, 4)]
        setup += lines(f"""
        s_cmp_lt_u32 s{sWave}, 2; s_cselect_b32 s{PB[1]}, s{pG}, s{pU}; s_cselect_b32 s{PB[1]+1}, s{pG+1}, s{pU+1}
        s_mov_b32 s{PB[1]+2}, {640*3456}
        s_mov_b32 s{PB[1]+3}, 0x20000
        s_lshl_b32 s{sA}, s2, 1
        s_and_b32 s{sA+1}, s{sWave}, 1
        s_add_u32 s{sA}, s{sA}, s{sA+1}
        s_mul_i32 s{sA+1}, s{sA}, 14
        v_add_u32 v{vT}, s{sA+1}, v0
        v_mul_u32_u24 v{vT+1}, {(1<<20)//11+1}, v{vT}
        v_lshrrev_b32 v{vT+1}, 20, v{vT+1}
        v_mul_u32_u24 v{vT+1}, 2048, v{vT+1}
        v_lshl_add_u32 v91, v{vT}, 7, v{vT+1}
        """) + self.p2_params()
        for o in setup: self.emit(o)
        vO = [1, 2, 3, 15]
        a(f"s_lshr_b32 s{sA}, s{sM0}, 2\nv_add_u32 v{vA[0]}, s{sA}, v{vL16}")
        for i in range(1, 4): a(f"v_add_u32 v{vA[i]}, 1024, v{vA[i-1]}\nv_and_b32 v{vA[i]}, 4095, v{vA[i]}")
        a(f"""
        s_mul_i32 s{sA}, s{sWave}, {20480-5120}
        s_sub_u32 s{sOld}, s{sOld}, s{sA}
        s_mul_i32 s{sA}, s{sWave}, {25600-4096}
        s_add_u32 s{sWOb}, s{sWOb}, s{sA}
        s_waitcnt lgkmcnt(0)
        s_xor_b32 s{sTok+1}, s{sTok+1}, 0x{TOKX:x}
        s_add_u32 s{sTok}, s{sTok}, 1
        s_mov_b32 m0, s{sM0}
        """)
        self.vPub = 20
        self.wait_flags([(sFlag, 0, 0, "one")])
        self.stamp(1)
        for j in range(4): vm.issue(a, f"buffer_load_dwordx4 v{PR+16+j}, s[{PK}:{PK+3}], s{PK+4} offen offset:{1024*j} lds", "PK")
        a("s_waitcnt vmcnt(0)")
        for ch in range(4): a(f"ds_read_b64_tr_b16 v[{PR+4*ch}:{PR+4*ch+1}], v{PR+20+ch}\nds_read_b64_tr_b16 v[{PR+4*ch+2}:{PR+4*ch+3}], v{PR+20+ch} offset:1024")
        a("s_waitcnt lgkmcnt(0)")
        for ch in range(4): vm.issue(a, f"buffer_store_dwordx4 v[{PR+4*ch}:{PR+4*ch+3}], v{vL16}, s[{SRDW}:{SRDW+3}], s{PK+5+ch} offen sc1", "I")
        self.publish(1, ["I"])
        a(f"s_mov_b64 exec, {(1 << 14) - 1}\nbuffer_load_dword v91, v91, s[{PB[1]}:{PB[1]+3}], 0 offen offset:2048\ns_mov_b64 exec, -1")
        self.wait_flags([(sFl0, 2, 0, None), (sFl1, 2, 0, None)])
        self.stamp(2)
        for f in self.att_loads(): f()
        self.wait_flags([(sFlG, 1, 512 * j, None) for j in range(4)], allw=True)
        L = a.newlabel("ep")
        a(f"""
        s_or_b32 s{sA+8}, s2, s{sWave}
        s_cbranch_scc1 {L}
        v_mov_b32 v88, s{sTok}
        s_mov_b32 s{sA+8}, {WS_EPOCH}
        s_mov_b64 exec, 1
        buffer_store_dword v88, off, s[{SRDW}:{SRDW+3}], s{sA+8}
        s_mov_b64 exec, -1
        {L}:
        """)
        BR = [116, 136, 156, 96]; AR = [32, 48, 64, 80]; FO = 236; AC = 176
        steps = [("s", k) for k in range(5)] + [("f", k) for k in range(14)]
        def bl(n):
            kind, k = steps[n]; b = BR[n % 4]; out = []
            for u in range(5):
                def f(u=u):
                    if u == 0: a(f"s_add_u32 s{sGb}, s{sWOb if kind == 's' else sBb if k < 12 else sBb2}, {k*5120}")
                    if u == 4: a(f"s_add_u32 s{sGb}, s{sGb}, 4096")
                    vm.issue(a, f"buffer_load_dwordx4 v[{b+4*u}:{b+4*u+3}], v{vL16}, s[{SRDW}:{SRDW+3}], s{sGb} offen offset:{1024*(u&3)} sc1", f"PB{n}")
                out.append(f)
            return out
        def al(n):
            kind, k = steps[n]; b = AR[n % 4]; out = []
            for i in range(4):
                def f(i=i):
                    if i == 0: a(f"s_add_u32 s{sGa}, s{sOld if kind == 's' else sAb if k < 12 else sAb2}, {k*(1024 if kind == 's' else 4096)}")
                    vm.issue(a, f"buffer_load_dwordx4 v[{b+4*i}:{b+4*i+3}], v{(vO if kind == 's' else vA)[i]}, s[{SRDW}:{SRDW+3}], s{sGa} offen sc1", f"PA{n}")
                out.append(f)
            return out
        def xaddr(j, d, t1, t2):
            return [f"v_add_u32 v{t1}, {64*j}, v0", f"v_mul_u32_u24 v{t2}, {(1<<16)//10+1}, v{t1}", f"v_lshrrev_b32 v{t2}, 16, v{t2}",
                    f"v_mul_u32_u24 v{t2}, {1280-160}, v{t2}", f"v_lshl_add_u32 v{t2}, v{t1}, 4, v{t2}", f"v_add_u32 v{d}, s{sXo}, v{t2}"]
        def xl(j):
            for o in xaddr(j, 114, 114, 115): a(o)
            a(f"s_add_u32 m0, s{sM0}, {1024*j}")
            a("s_mov_b32 exec_hi, 0" if j == 2 else "s_nop 0")
            vm.issue(a, "global_load_lds_dwordx4 v114, s[4:5]", "XO")
            if j == 2: a("s_mov_b32 exec_hi, -1")
        ost = self.attention([lambda j=j: xl(j) for j in range(3)] + bl(0) + bl(1) + bl(2))
        for f in ost + bl(3): f()
        vX = 14; vW = 25; vRd = 28; vS = 29; XR = 4
        vm.wait(a, "O")
        a(f"v_and_b32 v3, 15, v0\nv_mul_u32_u24 v{vX}, 160, v3\nv_lshrrev_b32 v3, 4, v0\nv_lshl_add_u32 v{vX}, v3, 3, v{vX}\nv_add_u32 v3, s{sM0}, v{vX}")
        for u in range(5): a(f"ds_read_b64 v[{XR+2*u}:{XR+2*u+1}], v3 offset:{32*u}")
        self.publish(5, [])
        for i in range(4):
            a(f"v_lshrrev_b32 v{vS}, 10, v{vA[i]}\nv_mul_u32_u24 v{vO[i]}, 20480, v{vS}\nv_add_u32 v{vO[i]}, v{vO[i]}, v{vL16}")
            d = vRd if i == 0 else vW + i - 1
            a(f"v_mul_u32_u24 v{d}, 15360, v{vS}\nv_add_u32 v{d}, {max(i-1, 0)*5120}, v{d}\nv_add_u32 v{d}, v{d}, v{vL16}")
        a(f"s_mul_i32 s{sA}, s{sWave}, 5120\ns_add_u32 s{sA}, s{sA}, 61440\nv_add_u32 v{vS}, s{sA}, v{vL16}\ns_waitcnt lgkmcnt(0)")
        self.stamp(3)
        def run(n0, n1, first):
            for n in range(n0, min(n0 + 4, n1)):
                for f in al(n): f()
            for n in range(n0, n1):
                vm.wait(a, f"PA{n}" if vm.last(f"PA{n}") > vm.last(f"PB{n}") else f"PB{n}")
                na = al(n + 4) if n + 4 < n1 else []
                nb = bl(n + 3) if n > n0 and n + 3 < 19 else []
                for i in range(4):
                    for u in range(5):
                        t_ = (FO if i == 0 else AC - 20) + (i * 5 + u) * 4; d = f"v[{t_}:{t_+3}]"
                        a(f"v_mfma_f32_16x16x32_bf16 {d}, v[{BR[n%4]+4*u}:{BR[n%4]+4*u+3}], v[{AR[n%4]+4*i}:{AR[n%4]+4*i+3}], {'0' if first and n == n0 else d}")
                        if nb and (i * 5 + u) % 4 == 1: nb.pop(0)()
                    if na: na[i]()
            if n1 + 3 < 19:
                for f in bl(n1 + 3): f()
        pk2 = lambda op, d, x, y: "\n".join(f"{op} v[{d+2*j}:{d+2*j+1}], v[{x+2*j}:{x+2*j+1}], {y(j)}" for j in range(10))
        def reduce():
            a("s_nop 7")
            for j in range(15): a(f"ds_write_b128 v{vW+j//5}, v[{AC+4*j}:{AC+4*j+3}] offset:{(j%5)*1024}")
            a("s_waitcnt lgkmcnt(0)\ns_barrier")
            for j in range(15): a(f"ds_read_b128 v[{32+4*j}:{35+4*j}], v{vRd} offset:{j*1024}")
        def radd():
            a(pk2("v_pk_add_f32", FO, FO, lambda j: f"v[{32+2*j}:{33+2*j}]"))
            a(pk2("v_pk_add_f32", 52, 52, lambda j: f"v[{72+2*j}:{73+2*j}]"))
            a(pk2("v_pk_add_f32", FO, FO, lambda j: f"v[{52+2*j}:{53+2*j}]"))
        self.wait_flags([(sFl0, 5, 0, "half")])
        run(0, 5, True)
        reduce(); a("s_waitcnt lgkmcnt(0)"); radd()
        for u in range(5): a(f"ds_write_b128 v{vS}, v[{FO+4*u}:{FO+4*u+3}] offset:{u*1024}")
        a("s_waitcnt lgkmcnt(0)")
        self.stamp(4)
        self.wait_flags([(sFl0, 3, 0, None)])
        self.stamp(5)
        run(5, 13, True)
        for j in range(3):
            for o in xaddr(j, [1, 2, 15][j], 3, 30): a(o)
        a(f"v_sub_u32 v3, v{vRd}, v{vL16}\nv_add_u32 v3, v3, v{vX}\ns_mov_b32 s{sA}, 0x{NLOG2E:x}\ns_mov_b32 s{sA+1}, 0xffff0000")
        self.stamp(6)
        self.wait_flags([(sFl0, 4, 0, None)])
        self.stamp(8)
        run(13, 19, False)
        self.stamp(7)
        reduce()
        SV = 96; XU = 116
        for u in range(5): a(f"ds_read_b128 v[{SV+4*u}:{SV+4*u+3}], v{vS} offset:{u*1024}")
        for j in range(20): a(f"v_and_b32 v{XU+j}, s{sA+1}, v{XR+(j>>1)}" if j & 1 else f"v_lshlrev_b32 v{XU+j}, 16, v{XR+(j>>1)}")
        a("s_waitcnt lgkmcnt(0)")
        radd()
        a(pk2("v_pk_mul_f32", 32, FO, lambda j: f"s[{sA}:{sA+1}] op_sel_hi:[1,0]"))
        for j in range(20): a(f"v_exp_f32 v{32+j}, v{32+j}")
        a(pk2("v_pk_mul_f32", FO, FO, lambda j: f"v[{SV+2*j}:{SV+2*j+1}]"))
        a(pk2("v_pk_add_f32", 32, 32, lambda j: "1.0 op_sel_hi:[1,0]"))
        for j in range(20): a(f"v_rcp_f32 v{32+j}, v{32+j}")
        for u in range(5):
            for h in range(2):
                r = 4 * u + 2 * h
                a(f"v_pk_fma_f32 v[{FO+r}:{FO+r+1}], v[{FO+r}:{FO+r+1}], v[{32+r}:{33+r}], v[{XU+r}:{XU+r+1}]")
            a(f"v_cvt_pk_bf16_f32 v{64+2*u}, v{FO+4*u}, v{FO+4*u+1}\nv_cvt_pk_bf16_f32 v{65+2*u}, v{FO+4*u+2}, v{FO+4*u+3}\nds_write_b64 v3, v[{64+2*u}:{65+2*u}] offset:{32*u}")
        a("s_waitcnt lgkmcnt(0)")
        for j in range(3): a(f"ds_read_b128 v[{76+4*j}:{79+4*j}], v{vRd} offset:{1024*j}")
        for j in range(3):
            a(f"s_waitcnt lgkmcnt({2-j})")
            if j == 2: a("s_mov_b32 exec_hi, 0")
            a(f"global_store_dwordx4 v{[1, 2, 15][j]}, v[{76+4*j}:{79+4*j}], s[6:7]")
        a("s_mov_b32 exec_hi, -1")
        self.stamp_out(0)
        a("s_endpgm")

    def build(self):
        a = self.a; label = self.label
        a.begin_kernel(label)
        a(f"""
        s_cmp_ge_u32 s2, 512
        s_cbranch_scc1 {label}_end
        s_load_dwordx2 s[4:5], s[0:1], 0
        s_load_dwordx2 s[{pQKV}:{pQKV+1}], s[0:1], 8
        s_load_dwordx2 s[{pWO}:{pWO+1}], s[0:1], 16
        s_load_dwordx4 s[{pG}:{pG+3}], s[0:1], 32
        s_load_dwordx2 s[{pDN}:{pDN+1}], s[0:1], 48
        s_load_dwordx2 s[6:7], s[0:1], 56
        s_load_dwordx2 s[{pWS}:{pWS+1}], s[0:1], 72
        """)
        self.stamp(0)
        if self.stamps: a(f"s_memrealtime s[{sTok}:{sTok+1}]")
        a(f"""
        s_getpc_b64 s[{sA}:{sA+1}]
        s_lshr_b32 s{sA+2}, s2, 3
        s_mul_i32 s{sA+2}, s{sA+2}, {5*128}
        v_lshlrev_b32 v{vT}, 7, v0
        v_add_u32 v{vT}, s{sA+2}, v{vT}
        v_min_u32 v{vT}, {label}_end-{label}-128, v{vT}
        v_cmp_gt_u32 vcc, 5, v0
        s_and_saveexec_b64 s[{sA+2}:{sA+3}], vcc
        s_cbranch_execz {label}_nt
        global_load_dword v95, v{vT}, s[{sA}:{sA+1}]
        {label}_nt:
        s_mov_b64 exec, -1
        s_lshr_b32 s{sThree}, s2, 8
        s_and_b32 s2, s2, 255
        """)
        self.ids()
        a(f"s_cmp_lg_u32 s{sThree}, 0\ns_cbranch_scc1 {label}_r2")
        self.role1()
        a.label(f"{label}_r2")
        n0 = len(a.lines)
        self.role2()
        a.label(f"{label}_end")
        a("s_endpgm")
        a.end_kernel(label, 256, 102, 256, 512, 256, 81920)
        return a.text("generated by dev/dual.py")
Gen = Dual
if __name__ == "__main__":
    stamps = "--stamps" in sys.argv
    pos = [x for x in sys.argv[1:] if not x.startswith("--")]
    open(pos[0], "w").write(Dual(json.loads(pos[1]) if len(pos) > 1 else {}, stamps).build())
```

```python
import sys, json, struct; sys.path.insert(0, "dev")
from asmlib import *

WS_H = 0
WS_O = 0x780000
WS_WD = 0xA00000
WS_WO = 0xD00000
WS_QKV = 0x1000000
WS_FLAG = 0x1800000
WS_EPOCH = WS_FLAG - 256
WS_STAMP = 0x1900000
WS_SIZE = 0x2000000
OOB = 0x4000000
TOKX = 0x5bd1e995
NLOG2E = 0xbfb8aa3b
def f2u(x): return struct.unpack("<I", struct.pack("<f", x))[0]
C_SM = f2u(20 ** -0.5 * 1.4426950408889634)

XB = 96; EP = 32; ACC = [0, 64]; WF = 128; NWB = 3
vLd = 1; vTr = 5
vSF = 17; vL8 = 18; vC1 = 19; vD2 = 20; vR = 21; vNegM = 22; vSum = 23; vSq = 24
vRow = 25; vCol = 26; vT = 27
vDbg = 30; vL16 = 31
vFl = 22
vQa = 28; vKa = 29
vA = [16, 17, 19, 24]
PR = 64
sOOB = 3
pQKV = 76; pWS = 78; pWO = 80; pDN = 82; pG = 84; pU = 86
sWave = 8; sMb64 = 9; sHalf = 10; sM0 = 11; sSoff = 12; sStep = 13; sWrap = 14; sThree = 15
SRDW = 16
SRDX = 20
sGa = 20; sGb = 21; sDuty = 96
PB = [24, 32, 40]
PK = 48
sOne = 57; sLo = 58; sHi = 59
sTok = 60
sFlag = 62; sFl0 = 63; sFl1 = 64; sFlG = 65
sAb = 66; sAb2 = 67; sBb = 68; sBb2 = 69; sOld = 70; sWOb = 71; sOst = 72; sOst2 = 73; sKV = 74; sXo = 75
ST0 = 76
sMb = 88; sJ = 89; sRot = 90; sNb = 91
sA = 92

class VM:
    def __init__(self): self.q = []
    def issue(self, a, ins, tag):
        a(ins); self.q.append(tag)
    def last(self, tag): return max(i for i, t in enumerate(self.q) if t == tag)
    def wait(self, a, tag, cnt=None):
        if cnt is not None: assert self.q.count(tag) == cnt, (tag, self.q.count(tag))
        a(f"s_waitcnt vmcnt({min(len(self.q) - 1 - self.last(tag), 63)})")
class LQ:
    def __init__(self): self.q = []
    def issue(self, a, ins, tag):
        a(ins); self.q.append(tag)
    def wait(self, a, tag):
        idx = max(i for i, t in enumerate(self.q) if t == tag)
        a(f"s_waitcnt lgkmcnt({min(len(self.q) - 1 - idx, 15)})")
class Uniq(dict):
    def __setitem__(self, k, v):
        assert k not in self, ("duplicate gap", k)
        dict.__setitem__(self, k, v)
def lines(s): return [l.split(";;")[0].strip() for l in s.split("\n") if l.split(";;")[0].strip()]
DIV5 = (1 << 16) // 5 + 1
DIV3 = (1 << 16) // 3 + 1

class Gen:
    KS = 7
    def __init__(self, cfg, stamps):
        self.cfg = dict(dict(LA=6, XW=4, spl=20, PB=2, bar2=True, rpat=[2, 2, 2, 2], dmagap=2, spin=3000, cap=5.0,
                             rotm=0x1010, rotx=0x7520, tch=-1, tch2=110, pk0=18, pk1=70, pub1=124, pub2=124, gck=118, qck=70, pub3=126, qsh=15,
                             w1=100, w2=96, b1vq=1, vq1=1, vq2=1, ntail=20, natt1=30, natt2=16, pub4=12,
                             nside=[5] * 14, kvgap=6, tu=16, nokb=1, nc=3, p2x=2, nbtail=14, nbpub=12, stb=1, stq=False, kf=4, b2order=[4, 8, 5, 9, 6, 10, 7], forder=['A4', 'A5', 'A6', 'A7', 'W', 'A8', 'A9', 'A10', 'A11', 'A12', 'A13', 'B13'], kbar=10, ko=10, no_f=16, kx=11), **cfg)
        self.stamps = stamps
        self.a = Asm(); self.vm = VM()
        self.label = NAME + "_kernel"
        self.slot = {}; self.owner = [None] * 10
        self.xdone = set(); self.lastbar = -10
        self.next = 0; self.pend = []; self.slow = []
        self.vPub = 92
    def stamp(self, i, pro=False):
        if self.cfg.get("pst") and i and not pro: return
        if pro and not self.cfg.get("pst"): return
        if self.stamps: self.a(f"s_memtime s[{ST0+2*(i-1)}:{ST0+2*(i-1)+1}]" if i else "s_memtime s[0:1]")
    def mark(self, i):
        if self.cfg.get("marks"):
            r = 22
            self.a(f"""
            s_memtime s[{r}:{r+1}]
            s_waitcnt lgkmcnt(0)
            s_sub_u32 s{r}, s{r}, s0
            v_mov_b32 v{vDbg}, s{r}
            s_lshl_b32 s{r}, s2, 2
            s_add_u32 s{r}, s{r}, s{sWave}
            s_lshl_b32 s{r}, s{r}, 7
            s_add_u32 s{r}, s{r}, {WS_STAMP + 0x40000 + 4*i}
            s_mov_b64 exec, 1
            """)
            self.vm.issue(self.a, f"buffer_store_dword v{vDbg}, off, s[{SRDW}:{SRDW+3}], s{r}", "mk")
            self.a("s_mov_b64 exec, -1\ns_nop 1")
    def emit(self, op, tag="st"):
        for o in op.split(";"):
            o = o.strip()
            if o.startswith(("global_", "buffer_")): self.vm.issue(self.a, o, tag)
            else: self.a(o)
    def free(self, s):
        o = self.owner[s]
        if o is None: return True
        if o[0] == "B": return o[1] <= self.lastbar - 1
        return o in self.xdone
    def cands(self, name):
        c = [s for s in range(10) if self.free(s)]
        if name[0] == "B" and name[1] >= self.cfg.get("avoid_from", 23): c = [s for s in reversed(c) if s not in (7, 8)]
        return c
    def alloc(self, name, want=None):
        c = self.cands(name) if want is None else [s for s in range(10) if self.free(s) and s == want]
        assert c, ("no free slot", name, self.owner, self.lastbar)
        s = c[0]; self.owner[s] = name; self.slot[name] = s
        return s

    def pos_ops(self, f, d):
        t = sA + 4
        return [f"s_lshr_b32 s{t}, s{f}, 2", f"s_mul_i32 s{t}, s{t}, 6", f"s_lshl_b32 s{d}, s{f}, 1", f"s_add_u32 s{t}, s{t}, s{d}",
                f"s_sub_u32 s{t+1}, s{f}, 16", f"s_mul_i32 s{t+1}, s{t+1}, {DIV3}", f"s_lshr_b32 s{t+1}, s{t+1}, 16", f"s_lshl_b32 s{t+1}, s{t+1}, 3",
                f"s_add_u32 s{t+1}, s{t+1}, s{d}", f"s_sub_u32 s{t+1}, s{t+1}, 24",
                f"s_cmp_lt_u32 s{f}, 16; s_cselect_b32 s{d}, s{t}, s{t+1}"]
    def f_params(self, P, code):
        t = sA
        return lines(f"""
        s_mov_b32 s{P+3}, 0x20000
        s_cmp_lt_u32 s{sWave}, 2; s_cselect_b32 s{P}, s{pG}, s{pU}; s_cselect_b32 s{P+1}, s{pG+1}, s{pU+1}
        s_cmp_lt_u32 s{code}, 27; s_cselect_b32 s{P+2}, {640*3456}, 0
        s_movk_i32 s{P+4}, 3456
        s_lshl_b32 s{P+5}, s{code}, 7
        s_mul_i32 s{P+6}, s{sRot}, {64*3456}
        """) + self.pos_ops(code, P + 7) + lines(f"""
        s_lshl_b32 s{t}, s{sMb}, 1
        s_lshr_b32 s{t+1}, s{sWave}, 1
        s_add_u32 s{t}, s{t}, s{t+1}
        s_mul_i32 s{t}, s{t}, 56
        s_add_u32 s{P+7}, s{P+7}, s{t}
        s_lshl_b32 s{P+7}, s{P+7}, 12
        s_and_b32 s{t+1}, s{sWave}, 1
        s_lshl_b32 s{t+1}, s{t+1}, 11
        s_add_u32 s{P+7}, s{P+7}, s{t+1}
        """)
    def q_params(self, P, q):
        t = sA
        return lines(f"""
        s_mov_b32 s{P+3}, 0x20000
        s_mov_b32 s{P}, s{pQKV}
        s_mov_b32 s{P+1}, s{pQKV+1}
        s_movk_i32 s{P+4}, 3840
        s_lshr_b32 s{t}, s{sWave}, 1
        s_lshl_b32 s{P+5}, s{q}, 1
        s_add_u32 s{P+5}, s{P+5}, s{t}
        s_lshl_b32 s{P+5}, s{P+5}, 7
        s_mul_i32 s{P+6}, s{sRot}, {64*3840}
        s_lshl_b32 s{t}, s{sMb}, 2
        s_add_u32 s{t}, s{t}, s{sWave}
        s_mul_i32 s{t}, s{t}, 122880
        s_lshl_b32 s{t+1}, s{q}, 13
        s_add_u32 s{t}, s{t}, s{t+1}
        s_add_u32 s{t}, s{t}, {WS_QKV}
        s_cmp_lt_u32 s{q}, 15; s_cselect_b32 s{P+2}, {640*3840}, 0; s_cselect_b32 s{P+7}, s{t}, s{sOOB}
        """)
    def pack_params(self):
        P = PK; t = sA
        r = lines(f"""
        s_mov_b32 s{P+3}, 0x20000
        s_mov_b32 s{t+2}, {640*1280}
        s_cmp_lt_u32 s2, 135; s_cselect_b32 s{P}, s{pDN}, s{pWO}; s_cselect_b32 s{P+1}, s{pDN+1}, s{pWO+1}; s_cselect_b32 s{P+2}, {1728*1280}, s{t+2}; s_cselect_b32 s{t}, 0, 135
        s_sub_u32 s{t}, s2, s{t}
        s_mul_i32 s{t+2}, s{t}, {DIV5}
        s_lshr_b32 s{t+2}, s{t+2}, 16
        s_mul_i32 s{t+3}, s{t+2}, 5
        s_sub_u32 s{t+1}, s{t}, s{t+3}
        s_mul_i32 s{P+4}, s{t+2}, {64*1280}
        s_lshl_b32 s{t+3}, s{t+1}, 8
        s_add_u32 s{P+4}, s{P+4}, s{t+3}
        s_lshr_b32 s{t+3}, s{sWave}, 1
        s_lshl_b32 s{t+3}, s{t+3}, 7
        s_add_u32 s{P+4}, s{P+4}, s{t+3}
        """) + self.pos_ops(t + 2, t + 3) + lines(f"""
        s_lshl_b32 s{t+2}, s{t+2}, 1
        s_mov_b32 s{t}, {WS_WO}
        s_movk_i32 s{t+6}, 100
        s_cmp_lt_u32 s2, 135; s_cselect_b32 s{t+3}, s{t+3}, s{t+2}; s_cselect_b32 s{t}, {WS_WD}, s{t}; s_cselect_b32 s{t+6}, 280, s{t+6}
        s_and_b32 s{t+2}, s{sWave}, 1
        s_add_u32 s{t+3}, s{t+3}, s{t+2}
        s_mul_i32 s{t+3}, s{t+3}, 5120
        s_add_u32 s{t}, s{t}, s{t+3}
        s_cmp_lt_u32 s2, 185; s_cselect_b32 s{P+2}, s{P+2}, 0; s_cselect_b32 s{t}, s{t}, s{sOOB}
        s_lshl_b32 s{t+1}, s{t+1}, 3
        s_and_b32 s{t+2}, s{sWave}, 2
        s_lshl_b32 s{t+2}, s{t+2}, 1
        s_add_u32 s{t+1}, s{t+1}, s{t+2}
        s_sub_u32 s{t+6}, s{t+6}, 5
        """)
        for ch in range(4):
            r += lines(f"""
            s_add_u32 s{t+2}, s{t+1}, {ch}
            s_mul_i32 s{t+3}, s{t+2}, {DIV5}
            s_lshr_b32 s{t+3}, s{t+3}, 16
            s_mul_i32 s{t+3}, s{t+3}, s{t+6}
            s_add_u32 s{t+3}, s{t+3}, s{t+2}
            s_lshl_b32 s{t+3}, s{t+3}, 10
            s_add_u32 s{P+5+ch}, s{t+3}, s{t}
            """)
        return r
    def p2_params(self):
        t = sA
        if self.cfg.get("p2x") == 2:
            return lines(f"""
            s_lshr_b32 s{t}, s{sJ}, 1
            s_add_u32 s{sNb}, s{sMb}, s{t}
            s_and_b32 s{sNb}, s{sNb}, 3
            s_lshl_b32 s{t}, s{sHalf}, 2
            s_or_b32 s{sNb}, s{sNb}, s{t}
            s_and_b32 s{t}, s{sJ}, 1
            s_lshl_b32 s{sMb64}, s{sMb}, 1
            s_add_u32 s{sMb64}, s{sMb64}, s{t}
            s_lshl_b32 s{t}, s{t}, 2
            s_lshl_b32 s{sHalf}, 0x0f0f0f0f, s{t}
            """) + self.p2_params0()[5:]
        if self.cfg.get("p2x"):
            r = self.p2_params0()[5:]
            return lines(f"""
            s_add_u32 s{sNb}, s{sMb}, s{sJ}
            s_and_b32 s{sNb}, s{sNb}, 3
            s_lshl_b32 s{t}, s{sHalf}, 2
            s_or_b32 s{sNb}, s{sNb}, s{t}
            s_lshr_b32 s{t}, s{sJ}, 2
            s_lshl_b32 s{sMb64}, s{sMb}, 1
            s_add_u32 s{sMb64}, s{sMb64}, s{t}
            s_lshl_b32 s{t}, s{t}, 4
            s_lshl_b32 s{sHalf}, 0xffff, s{t}
            """) + r
        return self.p2_params0()
    def p2_params0(self):
        t = sA
        return lines(f"""
        s_lshl_b32 s{sNb}, s{sMb}, {0 if self.cfg.get("map8") else 1}
        s_add_u32 s{sNb}, s{sNb}, s{sJ}
        s_and_b32 s{sNb}, s{sNb}, {3 if self.cfg.get("map8") else 7}
        s_and_b32 s{t}, s{sJ}, {4 if self.cfg.get("map8") else 0}
        s_or_b32 s{sNb}, s{sNb}, s{t}
        s_mul_i32 s{t}, s{sWave}, 14
        s_mul_i32 s{sAb}, s{sMb64}, 56
        s_add_u32 s{sAb}, s{sAb}, s{t}
        s_lshl_b32 s{sAb}, s{sAb}, 12
        s_mul_i32 s{sBb}, s{sNb}, 56
        s_add_u32 s{sBb}, s{sBb}, s{t}
        s_mul_i32 s{sBb}, s{sBb}, 5120
        s_add_u32 s{sBb}, s{sBb}, {WS_WD}
        s_cmp_lt_u32 s{sWave}, 3; s_cselect_b32 s{sAb2}, s{sAb}, s{sOOB}; s_cselect_b32 s{sBb2}, s{sBb}, s{sOOB}
        s_mul_i32 s{t}, s{sMb64}, 81920
        s_add_u32 s{t}, s{t}, {WS_O}
        s_mul_i32 s{sOld}, s{sWave}, 20480
        s_add_u32 s{sOld}, s{sOld}, s{t}
        s_mul_i32 s{sOst}, s{sNb}, 10
        s_add_u32 s{sOst}, s{sOst}, s{sWave}
        s_lshl_b32 s{sOst}, s{sOst}, 8
        s_add_u32 s{sOst}, s{sOst}, s{t}
        s_cmp_lt_u32 s{sWave}, 2; s_cselect_b32 s{sOst2}, s{sOst}, s{sOOB}
        s_mul_i32 s{sWOb}, s{sNb}, 102400
        s_add_u32 s{sWOb}, s{sWOb}, {WS_WO}
        s_add_u32 s{sWOb}, s{sWOb}, s{sM0}
        s_lshl_b32 s{sKV}, s{sNb}, 2
        s_add_u32 s{sKV}, s{sKV}, s{sWave}
        s_mul_i32 s{sKV}, s{sKV}, 1280
        s_add_u32 s{sKV}, s{sKV}, {WS_QKV}
        s_lshl_b32 s{sXo}, s{sMb64}, 2
        s_add_u32 s{sXo}, s{sXo}, s{sWave}
        s_mul_i32 s{sXo}, s{sXo}, {16*1280}
        s_mul_i32 s{t}, s{sNb}, 160
        s_add_u32 s{sXo}, s{sXo}, s{t}
        s_lshl_b32 s{sFl0}, s{sMb}, 9
        s_add_u32 s{sFl0}, s{sFl0}, {WS_FLAG}
        s_max_u32 s{sFl1}, s{sMb}, 1
        s_lshl_b32 s{sFl1}, s{sFl1}, 9
        s_add_u32 s{sFl1}, s{sFl1}, {WS_FLAG - 512}
        s_lshl_b32 s{sFlG}, s{sWave}, 11
        s_add_u32 s{sFlG}, s{sFlG}, {WS_FLAG}
        s_lshl_b32 s{t}, s{sMb64}, 1
        v_lshrrev_b32 v{vQa}, 5, v0
        v_add_u32 v{vQa}, s{t}, v{vQa}
        v_mul_u32_u24 v{vQa}, 122880, v{vQa}
        v_and_b32 v{vKa}, 31, v0
        v_lshl_add_u32 v{vQa}, v{vKa}, 3, v{vQa}
        v_add_u32 v{vKa}, 8, v0
        v_lshrrev_b32 v{vT}, 4, v{vKa}
        v_add_u32 v{vT}, s{t}, v{vT}
        v_max_u32 v{vT}, 1, v{vT}
        v_subrev_u32 v{vT}, 1, v{vT}
        v_mul_u32_u24 v{vT}, 122880, v{vT}
        v_and_b32 v{vKa}, 15, v{vKa}
        v_lshl_add_u32 v{vKa}, v{vKa}, 4, v{vT}
        """)
    def switch_ops(self, P):
        t = sA
        return [f"v_mad_u32_u24 v{vLd}, v{vRow}, s{P+4}, v{vCol}",
                f"s_lshl_b32 s{sStep}, s{P+4}, 6",
                f"s_lshl_b32 s{t}, s{P+4}, 3",
                f"s_sub_u32 s{t}, s{t}, 1024",
                f"v_add_u32 v{vLd}, s{P+5}, v{vLd}",
                f"s_mul_i32 s{sWrap}, s{sStep}, 10",
                f"s_mov_b32 s{sSoff}, s{P+6}",
                f"v_add_u32 v{vLd+1}, s{t}, v{vLd}",
                f"v_add_u32 v{vLd+2}, s{t}, v{vLd+1}",
                f"v_add_u32 v{vLd+3}, s{t}, v{vLd+2}"]
    def dma_items(self, g):
        P = PB[g // 10]; slot = self.alloc(("B", g))
        it = [("op", f"s_add_u32 m0, s{sM0}, {slot*16384}")]
        if g % 10 == 0 and g > 0: it += [("op", o) for o in self.switch_ops(P)]
        elif g % 10: it.append(("op", f"s_add_u32 s{sSoff}, s{sSoff}, s{sStep}; s_cmp_eq_u32 s{sSoff}, s{sWrap}; s_cselect_b32 s{sSoff}, 0, s{sSoff}"))
        it += [("ld", f"buffer_load_dwordx4 v{vLd+j}, s[{P}:{P+3}], s{sSoff} offen offset:{1024*j} lds", f"B{g}") for j in range(4)]
        return it
    def pop_ops(self):
        p = self.pend
        while p and p[0][0] != "ld": self.emit(p.pop(0)[1])
    def pop_ld(self):
        a = self.a; p = self.pend
        self.pop_ops()
        if p:
            if " m0," in a.lines[-1]: a("s_nop 0")
            _, l, tag = p.pop(0); self.vm.issue(a, l, tag)
    def tr_reads(self, G):
        g, s = G >> 2, G & 3
        slot = self.slot[("B", g)]; reg = slot >> 2
        o = (slot & 3) * 16384 + 16 * s * 128
        r = []
        for t in range(4):
            b = WF + 16 * (G % NWB) + 4 * t
            r += [f"ds_read_b64_tr_b16 a[{b}:{b+1}], v{vTr+4*reg+t} offset:{o}",
                  f"ds_read_b64_tr_b16 a[{b+2}:{b+3}], v{vTr+4*reg+t} offset:{o+512}"]
        return r
    def center_ops(self, stage):
        x = XB + 16 * stage; t = EP
        d = []
        for i in range(16):
            d.append(f"v_dot2_f32_bf16 v{t+2*i}, v{x+i}, s{sLo}, v{vNegM}")
            d.append(f"v_dot2_f32_bf16 v{t+2*i+1}, v{x+i}, s{sHi}, v{vNegM}")
        c = [f"v_cvt_pk_bf16_f32 v{x+i}, v{t+2*i}, v{t+2*i+1}" for i in range(16)]
        return d, c
    def epi_f(self, acc, so):
        ops = []; sts = []; nb = self.cfg["stb"]
        for t in range(4):
            g = EP + 32 * (t & 1); u = g + 8; e = g + 16; pk = g + 24 + 4 * (t >> 1)
            A = acc + 16 * t
            for i in range(8): ops.append(f"v_accvgpr_read_b32 v{g+i}, a{A+i}")
            for i in range(8): ops.append(f"v_mul_f32 v{e+i}, v{vC1}, v{g+i}")
            for i in range(8):
                ops.append(f"v_exp_f32 v{e+i}, v{e+i}")
                ops.append(f"v_accvgpr_read_b32 v{u+i}, a{A+8+i}")
            for i in range(8): ops.append(f"v_fma_f32 v{e+i}, v{e+i}, v{vD2}, v{vD2}")
            for i in range(8):
                ops.append(f"v_rcp_f32 v{e+i}, v{e+i}")
                ops.append(f"v_mul_f32 v{g+i}, v{g+i}, v{u+i}")
            for i in range(8): ops.append(f"v_mul_f32 v{g+i}, v{g+i}, v{e+i}")
            for i in range(4): ops.append(f"v_cvt_pk_bf16_f32 v{pk+i}, v{g+2*i}, v{g+2*i+1}")
            if t == 2: sts.append(f"s_add_u32 s{so}, s{so}, 4096")
            sts.append(f"buffer_store_dwordx4 v[{pk}:{pk+3}], v{vSF}, s[{SRDW}:{SRDW+3}], s{so} offen offset:{(t&1)*512} sc1")
            if (t + 1) % nb == 0:
                ops.append("; ".join(sts)); sts = []
        return ops
    def epi_f_tail(self, acc, so):
        ops = [f"v_mov_b32 v{vR}, v{vD2}", f"v_mov_b32 v{vT}, v{vC1}", f"v_mov_b32 v{vT-1}, v{vC1}"]
        p2 = lambda r: f"v[{r}:{r+1}]"
        for t in range(4):
            g = EP + 32 * (t & 1); u = g + 8; e = g + 16; pk = g + 24
            A = acc + 16 * t
            for i in range(8): ops.append(f"v_accvgpr_read_b32 v{g+i}, a{A+i}")
            for i in range(4): ops.append(f"v_pk_mul_f32 {p2(e+2*i)}, {p2(vT-1)}, {p2(g+2*i)}")
            for i in range(8):
                ops.append(f"v_exp_f32 v{e+i}, v{e+i}")
                ops.append(f"v_accvgpr_read_b32 v{u+i}, a{A+8+i}")
            for i in range(4): ops.append(f"v_pk_fma_f32 {p2(e+2*i)}, {p2(e+2*i)}, {p2(vD2)}, {p2(vD2)}")
            for i in range(8): ops.append(f"v_rcp_f32 v{e+i}, v{e+i}")
            for i in range(4): ops.append(f"v_pk_mul_f32 {p2(g+2*i)}, {p2(g+2*i)}, {p2(u+2*i)}")
            for i in range(4): ops.append(f"v_pk_mul_f32 {p2(g+2*i)}, {p2(g+2*i)}, {p2(e+2*i)}")
            for i in range(4): ops.append(f"v_cvt_pk_bf16_f32 v{pk+i}, v{g+2*i}, v{g+2*i+1}")
            if t == 2: ops.append(f"s_add_u32 s{so}, s{so}, 4096")
            ops.append(f"buffer_store_dwordx4 v[{pk}:{pk+3}], v{vSF}, s[{SRDW}:{SRDW+3}], s{so} offen offset:{(t&1)*512} sc1")
        return ops
    def epi_q(self, acc, so):
        ops = [f"s_add_u32 s{so-1}, s{so}, 4096"]; sts = []; nb = self.cfg["stb"]
        for t in range(4):
            g = EP; pk = EP + 16 + 8 * t
            A = acc + 16 * t
            for i in range(16): ops.append(f"v_accvgpr_read_b32 v{g+i}, a{A+i}")
            for i in range(16): ops.append(f"v_mul_f32 v{g+i}, v{vR}, v{g+i}")
            for i in range(8): ops.append(f"v_cvt_pk_bf16_f32 v{pk+i}, v{g+2*i}, v{g+2*i+1}")
            for q in range(4):
                grp = 4 * t + 2 * (q & 1)
                sts.append(f"buffer_store_dwordx2 v[{pk+2*q}:{pk+2*q+1}], v{vL8}, s[{SRDW}:{SRDW+3}], s{so-(q>>1)} offen offset:{grp*256} sc1")
            if (t + 1) % nb == 0:
                if self.cfg.get("stq", True): ops.append("; ".join(sts))
                else: ops += sts
                sts = []
        return ops
    def publish(self, level, after):
        a = self.a
        for tg in after: self.vm.wait(a, tg)
        a(f"v_mov_b64 v[{self.vPub}:{self.vPub+1}], s[{sTok}:{sTok+1}]")
        a(f"s_add_u32 s{sA+8}, s{sFlag}, {level*8192}")
        a("s_mov_b64 exec, 1")
        self.vm.issue(a, f"buffer_store_dwordx2 v[{self.vPub}:{self.vPub+1}], off, s[{SRDW}:{SRDW+3}], s{sA+8} sc1", "fl")
        a("s_mov_b64 exec, -1")
    def retouch(self, kind, so=None):
        if kind not in self.cfg.get("rt", ""): return
        a = self.a; r = 88 if kind == "P" else self.vPub - 2
        if kind == "P":
            a(f"v_lshlrev_b32 v{r}, 7, v0\ns_mov_b64 exec, 0xff")
            for ch in range(4): self.vm.issue(a, f"buffer_load_dword v{r+1}, v{r}, s[{SRDW}:{SRDW+3}], s{PK+5+ch} offen", "rt")
            a("s_mov_b64 exec, -1")
        elif kind == "Q":
            a(f"v_lshlrev_b32 v{r}, 7, v0")
            self.vm.issue(a, f"buffer_load_dword v{r}, v{r}, s[{SRDW}:{SRDW+3}], s{so} offen", "rt")
        else:
            a(f"v_and_b32 v{r}, 16, v0\nv_add_u32 v{r}, v{r}, v0\nv_lshlrev_b32 v{r}, 7, v{r}\ns_sub_u32 s{sA+8}, s{so}, 4096\ns_mov_b32 exec_hi, 0")
            self.vm.issue(a, f"buffer_load_dword v{r}, v{r}, s[{SRDW}:{SRDW+3}], s{sA+8} offen", "rt")
            a("s_mov_b32 exec_hi, -1")
    def flag_ld(self, reg, soff, level, off, sc):
        return [f"s_add_u32 s{sA+8}, s{soff}, {level*8192}",
                f"buffer_load_dwordx2 v[{reg}:{reg+1}], v{vL8}, s[{SRDW}:{SRDW+3}], s{sA+8} offen offset:{off} {sc}"]
    def flag_load(self, reg, soff, tag, level, off=0):
        l = self.flag_ld(reg, soff, level, off, "")
        self.a(l[0]); self.vm.issue(self.a, l[1], tag)
    def flag_check(self, reg, soff, tag, level, half=False, off=0):
        a = self.a; L = a.newlabel("fc")
        self.vm.wait(a, tag)
        test = f"v_cmp_ne_u64 vcc, s[{sTok}:{sTok+1}], v[{reg}:{reg+1}]\n"
        if half and self.cfg.get("p2x"): test += f"s_nop 0\ns_or_b32 s{sA+8}, vcc_lo, vcc_hi\ns_and_b32 s{sA+8}, s{sA+8}, s{sHalf}"
        elif half: test += f"s_cmp_eq_u32 s{sHalf}, 0\ns_cselect_b32 s{sA+8}, vcc_lo, vcc_hi\ns_cmp_lg_u32 s{sA+8}, 0"
        else: test += "s_nop 0\ns_cmp_lg_u64 vcc, 0"
        a(test)
        a(f"s_cbranch_scc1 {L}_slow")
        a.label(f"{L}_ok")
        l = self.flag_ld(reg, soff, level, off, "sc1")
        self.slow.append(f"""
        {L}_slow:
        s_mov_b32 s{sA+9}, 0
        {L}_spin:
        {l[0]}
        {l[1]}
        s_add_u32 s{sA+9}, s{sA+9}, 1
        s_cmp_gt_u32 s{sA+9}, {self.cfg["spin"]}
        s_waitcnt vmcnt(0)
        s_cbranch_scc1 {L}_ok
        {test}
        s_cbranch_scc0 {L}_ok
        s_sleep {self.cfg.get("sleep", 4)}
        s_branch {L}_spin
        """)

    def body(self, T, work, ntask, wrange=(4, 156), center=False, extra=None, vq=None, vq1=1, vq2=1, before=None):
        a = self.a; cfg = self.cfg; acc = ACC[T & 1]; LA = cfg["LA"]
        ngap = 160
        per = [[] for _ in range(ngap)]
        def cost(op):
            if not isinstance(op, str): return 3.0
            if op.startswith(("v_exp", "v_rcp")): return 2.0
            if op.startswith("buffer_"): return 3.0 * (1 + op.count(";"))
            return 1.0 + op.count(";")
        def is_bar(S):
            n1 = 10 * T + (S >> 2) + 1
            if (S & 3) != 1 or n1 >= 10 * ntask: return False
            return (n1 % 2 == 0) if cfg["bar2"] else True
        cap = []
        for g in range(ngap):
            c = cfg["cap"] - ([3, 3, 2, 0] if is_bar(g >> 2) else cfg["rpat"])[g & 3]
            if (g & 3) == cfg["dmagap"] or ((g & 3) == 0 and vq): c -= 2.5
            if (g & 3) == 3: c -= 1
            if (g & 3) == 3 and is_bar(g >> 2): c = 0
            cap.append(max(c, 0.0))
        if center:
            for st in range(cfg["nc"], 10):
                d, c = self.center_ops(st)
                base = 16 * (st - 1)
                per[base] += d
                cg = [base + x for x in (1, 3, 4, 5, 8, 9, 11, 12, 13)]
                for i, op in enumerate(c): per[cg[i * len(cg) // 16]].append(op)
        used = lambda g: sum(cost(o) for o in per[g])
        self.ends = {}
        for g00, fn in (extra or {}).items():
            if not isinstance(fn, list): per[g00].append(fn)
        for g00, fn in (extra or {}).items():
            if isinstance(fn, list):
                g = g00; room = 0.0
                for op in fn:
                    while room <= 0:
                        room = cap[g] - used(g); g += 1
                    per[g - 1].append(op); room -= cost(op)
                self.ends[g00] = g - 1
        for a_, b_ in (before or []): assert self.ends[a_] < b_, (a_, self.ends[a_], b_)
        if work:
            g0, g1 = wrange
            cap = [max(cap[g] - used(g), 0.0) for g in range(ngap)]
            scale = sum(cost(o) for o in work) / sum(cap[g0:g1])
            if cfg.get("verbose"): print("body", T, "work scale", scale)
            g = g0; room = cap[g] * scale
            for op in work:
                while room <= 0 and g < g1 - 1:
                    g += 1; room += cap[g] * scale
                per[g].append(op); room -= cost(op)
        vq = list(vq or [])
        for S in range(40):
            i, s = S >> 2, S & 3
            G = 40 * T + S; n = 10 * T + i
            rd = self.tr_reads(G + 2) if G + 2 < 40 * ntask else []
            if s == 2:
                k = 0
                while self.next <= n + LA and self.next < 10 * ntask and k < 2 and self.cands(("B", self.next)):
                    self.pend += self.dma_items(self.next); self.next += 1; k += 1
            for t in range(4):
                gap = 4 * S + t
                if t == 0: a(f"s_waitcnt lgkmcnt({8 if G + 1 < 40 * ntask else 0})")
                A = acc + 16 * t; w = WF + 16 * (G % NWB) + 4 * t; x = XB + 4 * S
                c = "0" if S == 0 else f"a[{A}:{A+15}]"
                a(f"v_mfma_f32_32x32x16_bf16 a[{A}:{A+15}], a[{w}:{w+3}], v[{x}:{x+3}], {c}")
                pat = [3, 3, 2, 0] if is_bar(S) else cfg["rpat"]
                for _ in range(pat[t]):
                    if rd: a(rd.pop(0))
                nld = sum(1 for p_ in self.pend if p_[0] == "ld")
                if self.pend and (t == cfg["dmagap"] or (nld > 4 and t == 0)): self.pop_ld()
                elif vq and ((t == 0 and S % vq1 == 0) or (t == cfg["dmagap"] and not self.pend and S % vq2 == 0)):
                    for j_, it_ in enumerate(vq):
                        if it_[0](gap):
                            vq.pop(j_)[1](); break
                if t == cfg["dmagap"] - 1: self.pop_ops()
                if T == cfg.get("markT", 2) and gap % 16 == 9: self.mark(gap // 16)
                for op in per[gap]:
                    if callable(op): op()
                    else: self.emit(op, f"E{T-1}")
                if t == 3 and is_bar(S):
                    last = n + 2 if cfg["bar2"] and n + 2 < 10 * ntask else n + 1
                    self.vm.wait(a, f"B{last}", 4)
                    a("s_barrier")
                    self.lastbar = n
            assert not rd
        return vq

    def att_loads(self, al=True):
        a = self.a
        out = []
        for kv in range(2):
            for i in range(5):
                def f(kv=kv, i=i):
                    assert not self.pend
                    a(f"s_add_u32 m0, s{sM0}, {(self.KS+kv)*16384 + i*640 - 256*i}")
                    if i == 0: a(f"s_add_u32 s{sA+6}, s{sKV}, {(kv+1)*40960}")
                    a("s_mov_b32 exec_hi, 0xff")
                    self.vm.issue(a, f"buffer_load_dwordx4 v{vKa}, s[{SRDW}:{SRDW+3}], s{sA+6} offen offset:{256*i} sc1 lds", "KV")
                    a("s_mov_b32 exec_hi, -1")
                out.append(f)
        for i in range(5):
            out.append(lambda i=i: self.vm.issue(a, f"buffer_load_dwordx2 v[{XB+2*i}:{XB+2*i+1}], v{vQa}, s[{SRDW}:{SRDW+3}], s{sKV} offen offset:{256*i} sc1", "KV"))
        return out
    def attention(self, inter):
        a = self.a; vm = self.vm
        Q = XB; AK = 1; AK2 = 2; RW = 3; L = 4; P = 236; O = 216
        kvb = [[196, 200, 204, 208, 212], [106, 110, 252, 12, 26]]
        code = []; e = code.append
        def rd(n):
            m = n & 3
            if n == 4:
                e(f"v_add_u32 v{AK}, 16384, v{AK}"); e(f"v_add_u32 v{AK2}, 16384, v{AK2}")
            for i in range(5):
                b = kvb[n & 1][i]; o = (i % 3) * 80 + 16 - 4 * m
                e(f"ds_read2_b64 v[{b}:{b+3}], v{AK if i < 3 else AK2} offset0:{o} offset1:{o-2}")
        a(f"""
        s_add_u32 s{sA}, s{sM0}, {self.KS*16384}
        v_add_u32 v{AK}, s{sA}, v{vL8}
        v_add_u32 v{AK2}, 1920, v{AK}
        s_mov_b32 s{sA+1}, 0x{C_SM:x}
        """)
        vm.wait(a, "KV", 15)
        self.mark(23)
        rd(0)
        for n in range(8):
            m = n & 3; B = kvb[n & 1]
            e("s_waitcnt lgkmcnt(0)")
            if n < 4:
                for i in range(10):
                    for h in range(2):
                        src = f"v{Q+i}, v{B[i>>1] + 2*h + (i&1)}"
                        e(f"v_dot2_f32_bf16 v{L+2*m+h}, {src}, 0" if i == 0 else f"v_dot2c_f32_bf16 v{L+2*m+h}, {src}")
                    if i == 0: rd(n + 1)
            else:
                if n + 1 < 8: rd(n + 1)
                for h in range(2):
                    w = 2 * m + h
                    for i in range(10):
                        for j in range(2):
                            src = f"v{B[i>>1] + 2*h + (i&1)}, v{P+2*w+j}"
                            e(f"v_dot2_f32_bf16 v{O+2*i+j}, {src}, 0" if w == 0 else f"v_dot2c_f32_bf16 v{O+2*i+j}, {src}")
            if n == 3:
                Lm = a.newlabel("am")
                blk = [f"s_cmp_lg_u32 s{sMb64}, 0", f"s_cbranch_scc1 {Lm}", f"v_mov_b32 v{P}, 0xce6e6b28"]
                for ww in range(1, 8):
                    blk += [f"v_cmp_gt_u32 vcc, {2*ww}, v0", "s_nop 1", f"v_cndmask_b32 v{L+ww}, v{L+ww}, v{P}, vcc"]
                blk += [f"{Lm}:"]
                e("\n".join(blk))
                e(f"v_max3_f32 v{P}, v{L}, v{L+1}, v{L+2}")
                e(f"v_max3_f32 v{P}, v{P}, v{L+3}, v{L+4}")
                e(f"v_max3_f32 v{P}, v{P}, v{L+5}, v{L+6}")
                e(f"v_max_f32 v{P}, v{P}, v{L+7}")
                e(f"v_mul_f32 v{P}, s{sA+1}, v{P}")
                for ww in range(8): e(f"v_fma_f32 v{L+ww}, v{L+ww}, s{sA+1}, -v{P}")
                for ww in range(8): e(f"v_exp_f32 v{L+ww}, v{L+ww}")
                e(f"v_pk_add_f32 v[{P}:{P+1}], v[{L}:{L+1}], v[{L+2}:{L+3}]")
                e(f"v_pk_add_f32 v[{P+2}:{P+3}], v[{L+4}:{L+5}], v[{L+6}:{L+7}]")
                e(f"v_pk_add_f32 v[{P}:{P+1}], v[{P}:{P+1}], v[{P+2}:{P+3}]")
                e(f"v_add_f32 v{P}, v{P}, v{P+1}")
                e(f"v_rcp_f32 v{P}, v{P}\ns_nop 0")
                for ww in range(4): e(f"v_pk_mul_f32 v[{L+2*ww}:{L+2*ww+1}], v[{L+2*ww}:{L+2*ww+1}], v[{P}:{P+1}] op_sel_hi:[1,0]")
                for ww in range(8):
                    e(f"v_cvt_pk_bf16_f32 v{P+2*ww}, v{L+ww}, 0")
                    e(f"v_cvt_pk_bf16_f32 v{P+2*ww+1}, 0, v{L+ww}")
        e(f"s_mul_i32 s{sA}, s{sWave}, 2560\ns_add_u32 s{sA}, s{sA}, {(self.KS+2)*16384}\nv_add_u32 v{AK}, s{sA}, v{vL8}")
        e(f"s_mul_i32 s{sA}, s{sWave}, 3\ns_and_b32 s{sA}, s{sA}, 13\ns_min_u32 s{sA}, s{sA}, 5\ns_lshl_b32 s{sA}, s{sA}, 9\ns_add_u32 s{sA}, s{sA}, {(self.KS+2)*16384}\nv_add_u32 v{AK2}, s{sA}, v{vL8}")
        e(f"v_lshrrev_b32 v{RW}, 4, v0"); e(f"v_mul_u32_u24 v{RW}, {20480-256}, v{RW}"); e(f"v_add_u32 v{RW}, v{RW}, v{vL16}")
        for i in range(5):
            e(f"v_cvt_pk_bf16_f32 v{Q+2*i}, v{O+4*i}, v{O+4*i+1}")
            e(f"v_cvt_pk_bf16_f32 v{Q+2*i+1}, v{O+4*i+2}, v{O+4*i+3}")
            e(f"ds_write_b64 v{AK}, v[{Q+2*i}:{Q+2*i+1}] offset:{512*i}")
        inter = list(inter); n = len(code); k = len(inter); j = 0
        for i, ins in enumerate(code):
            a(ins)
            while j < k and j < (i + 1) * k // (n - 10):
                inter[j](); j += 1
        self.mark(25)
        if self.cfg["nokb"]: vm.wait(a, "WO", 25)
        a("s_waitcnt lgkmcnt(0)\ns_barrier")
        for r in range(3): a(f"ds_read2st64_b64 v[{4+4*r}:{7+4*r}], v{AK2} offset0:{8*r} offset1:{8*r+2}")
        return [lambda r=r: (a(f"s_waitcnt lgkmcnt({2-r})"),
                             vm.issue(a, f"buffer_store_dwordx4 v[{4+4*r}:{7+4*r}], v{RW}, s[{SRDW}:{SRDW+3}], s{sOst2 if r == 2 else sOst} offen offset:{1024*r} sc1", "O")) for r in range(3)]

    BSLOT = ["a176", "a196", "a216", "a236", "v116", "v136", "v156", "v176", "a64", "a84", "a104", "a128", "a148", "v96"]
    ASLOT = ["v32", "v48", "v64", "v80", "v196", "v216", "v32", "v48", "v64", "v80", "v196", "v32", "v48", "v64"]
    AEARLY = [0, 0, 0, 0, 0, 0, 1, 2, 3, 4, 5, 7, 8, 9]
    @staticmethod
    def rr(base, off, n=4):
        return f"{base[0]}[{int(base[1:])+off}:{int(base[1:])+off+n-1}]"
    def b_loads(self, k):
        a = self.a; out = []
        for u in range(5):
            def f(u=u):
                if u == 0: a(f"s_add_u32 s{sGb}, s{sBb if k < 12 else sBb2}, {k*5120}")
                if u == 4: a(f"s_add_u32 s{sGb}, s{sGb}, 4096")
                self.vm.issue(a, f"buffer_load_dwordx4 {self.rr(self.BSLOT[k], 4*u)}, v{vL16}, s[{SRDW}:{SRDW+3}], s{sGb} offen offset:{1024*(u&3)} sc1", f"PB{k}")
            out.append(f)
        return out
    def a_loads(self, k):
        a = self.a; out = []
        for i in range(4):
            def f(i=i):
                if i == 0: a(f"s_add_u32 s{sGa}, s{sAb if k < 12 else sAb2}, {k*4096}")
                self.vm.issue(a, f"buffer_load_dwordx4 {self.rr(self.ASLOT[k], 4*i)}, v{vA[i]}, s[{SRDW}:{SRDW+3}], s{sGa} offen sc1", f"PA{k}")
            out.append(f)
        return out
    def wo_loads(self, s):
        a = self.a; out = []
        for j in range(4 if s < 6 else 1):
            def f(j=j):
                assert not self.pend
                if j == 0 and self.owner[s] != ("WO", s): self.alloc(("WO", s), s)
                if self.m0 != ("WO", s):
                    if s < 6:
                        a(f"s_add_u32 m0, s{sM0}, {s*16384}\ns_add_u32 s{sA+7}, s{sWOb}, {s*16384}")
                    else:
                        a(f"s_lshr_b32 s{sA+7}, s{sM0}, 2\ns_add_u32 m0, s{sA+7}, {6*16384}\ns_sub_u32 s{sA+7}, s{sWOb}, s{sM0}\ns_add_u32 s{sA+7}, s{sA+7}, m0")
                self.m0mark = (len(a.lines), ("WO", s))
                self.vm.issue(a, f"buffer_load_dwordx4 v{vL16}, s[{SRDW}:{SRDW+3}], s{sA+7} offen offset:{1024*j} sc1 lds", "WO")
            out.append(f)
        return out
    @property
    def m0(self):
        mk = getattr(self, "m0mark", None)
        if not mk: return None
        for l in self.a.lines[mk[0]:]:
            if " m0," in l or f"s{sA+7}," in l.split(",")[0] + "," and l.strip().startswith("s_") or l.endswith(("_join:", "_two:")): return None
        return mk[1]

    def build(self):
        a = self.a; cfg = self.cfg; label = self.label
        vm = self.vm
        sX = sA + 9
        a.begin_kernel(label)
        a(f"""
        s_cmp_ge_u32 s2, 256
        s_cbranch_scc1 {label}_end
        s_load_dwordx2 s[4:5], s[0:1], 0
        s_load_dwordx2 s[{pQKV}:{pQKV+1}], s[0:1], 8
        s_load_dwordx2 s[{pWO}:{pWO+1}], s[0:1], 16
        s_load_dwordx4 s[{pG}:{pG+3}], s[0:1], 32
        s_load_dwordx2 s[{pDN}:{pDN+1}], s[0:1], 48
        s_load_dwordx2 s[6:7], s[0:1], 56
        s_load_dwordx2 s[{pWS}:{pWS+1}], s[0:1], 72
        """)
        self.stamp(0)
        if self.stamps: a(f"s_memrealtime s[{sTok}:{sTok+1}]")
        NL = cfg.get("codelines", 11)
        a(f"""
        s_getpc_b64 s[{sA}:{sA+1}]
        s_lshr_b32 s{sA+2}, s2, 3
        s_mul_i32 s{sA+2}, s{sA+2}, {NL*128}
        v_lshlrev_b32 v{vT}, 7, v0
        v_add_u32 v{vT}, s{sA+2}, v{vT}
        v_min_u32 v{vT}, {label}_end-{label}-128, v{vT}
        v_cmp_gt_u32 vcc, {NL}, v0
        s_and_saveexec_b64 s[{sA+2}:{sA+3}], vcc
        s_cbranch_execz {label}_nt
        global_load_dword v95, v{vT}, s[{sA}:{sA+1}]
        {label}_nt:
        s_mov_b64 exec, -1
        v_lshrrev_b32 v{vT}, 6, v0
        v_and_b32 v0, 63, v0
        s_and_b32 s{sA}, s2, 7
        v_readfirstlane_b32 s{sWave}, v{vT}
        """)
        if cfg.get("map2"):
            a(f"""
            s_lshr_b32 s{sA+2}, s2, 7
            s_lshl_b32 s{sMb}, s{sA}, 1
            s_add_u32 s{sMb}, s{sMb}, s{sA+2}
            s_bfe_u32 s{sHalf}, s2, 0x10006
            s_bfe_u32 s{sJ}, s2, 0x30003
            s_lshl_b32 s{sA+3}, s{sA}, 2
            s_lshr_b32 s{sRot}, {cfg.get("rot2", 0x43210432)}, s{sA+3}
            s_and_b32 s{sRot}, s{sRot}, 15
            s_mul_i32 s{sA+3}, s{sA+2}, {cfg.get("rot2m", 5)}
            s_add_u32 s{sRot}, s{sRot}, s{sA+3}
            s_add_u32 s{sRot}, s{sRot}, s{sJ}
            s_lshl_b32 s{sA+3}, s{sHalf}, 1
            s_add_u32 s{sRot}, s{sRot}, s{sA+3}
            """)
        elif not cfg.get("map8"):
            a(f"""
            s_lshr_b32 s{sA+1}, s2, 3
            s_and_b32 s{sHalf}, s{sA}, 1
            s_lshr_b32 s{sA}, s{sA}, 1
            s_lshl_b32 s{sA}, s{sA}, 2
            s_lshr_b32 s{sA+2}, s{sA+1}, 3
            s_add_u32 s{sMb}, s{sA}, s{sA+2}
            s_and_b32 s{sJ}, s{sA+1}, 7
            s_lshl_b32 s{sRot}, s{sA+2}, 2
            s_lshr_b32 s{sRot}, {cfg["rotm"]}, s{sRot}
            s_and_b32 s{sRot}, s{sRot}, 15
            s_add_u32 s{sRot}, s{sRot}, s{sJ}
            s_lshr_b32 s{sA+3}, {cfg["rotx"]}, s{sA}
            s_and_b32 s{sA+3}, s{sA+3}, 15
            s_add_u32 s{sRot}, s{sRot}, s{sA+3}
            s_mul_i32 s{sA+3}, s{sHalf}, {cfg.get("roth", 0)}
            s_add_u32 s{sRot}, s{sRot}, s{sA+3}
            """)
        else:
            a(f"""
            s_lshr_b32 s{sA+2}, s2, 5
            s_and_b32 s{sMb}, s{sA}, 4
            s_lshl_b32 s{sMb}, s{sMb}, 1
            s_add_u32 s{sMb}, s{sMb}, s{sA+2}
            s_bfe_u32 s{sHalf}, s2, 0x10001
            s_bfe_u32 s{sA+1}, s2, 0x20003
            s_and_b32 s{sJ}, s2, 1
            s_lshl_b32 s{sJ}, s{sJ}, 2
            s_add_u32 s{sJ}, s{sJ}, s{sA+1}
            s_lshl_b32 s{sRot}, s{sA+1}, 2
            s_lshr_b32 s{sRot}, 0x7520, s{sRot}
            s_and_b32 s{sRot}, s{sRot}, 15
            s_lshl_b32 s{sA+3}, s{sA+2}, 2
            s_lshr_b32 s{sA+3}, {cfg.get("rot8", 0x43210210)}, s{sA+3}
            s_and_b32 s{sA+3}, s{sA+3}, 15
            s_add_u32 s{sRot}, s{sRot}, s{sA+3}
            s_lshr_b32 s{sA+3}, s{sA}, 2
            s_mul_i32 s{sA+3}, s{sA+3}, 5
            s_add_u32 s{sRot}, s{sRot}, s{sA+3}
            s_and_b32 s{sA+3}, s2, 1
            s_add_u32 s{sRot}, s{sRot}, s{sA+3}
            """)
        a(f"""
        s_lshl_b32 s{sM0}, s{sWave}, 12
        s_sub_u32 s{sA+3}, s{sRot}, 10
        s_min_u32 s{sRot}, s{sRot}, s{sA+3}
        s_lshl_b32 s{sX}, s{sRot}, 7
        s_lshl_b32 s{sA}, s{sMb}, 7
        s_lshl_b32 s{sA+1}, s{sWave}, 5
        s_add_u32 s{sA}, s{sA}, s{sA+1}
        s_mul_i32 s{sA}, s{sA}, 1280
        v_lshrrev_b32 v{vT}, 3, v0
        v_mul_u32_u24 v{vT}, 1280, v{vT}
        v_add_u32 v{vT}, s{sA}, v{vT}
        v_lshrrev_b32 v{vT+1}, 4, v0
        v_and_b32 v{vT+2}, 7, v0
        v_xor_b32 v{vT+1}, v{vT+1}, v{vT+2}
        v_xor_b32 v{vT+2}, 4, v{vT+1}
        v_lshl_add_u32 v{EP+4}, v{vT+1}, 4, v{vT}
        v_lshl_add_u32 v{EP+5}, v{vT+2}, 4, v{vT}
        v_add_u32 v{EP+5}, {8*1280-1024}, v{EP+5}
        v_add_u32 v{EP+6}, {2*(8*1280-1024)}, v{EP+4}
        v_add_u32 v{EP+7}, {2*(8*1280-1024)}, v{EP+5}
        s_mov_b32 s{SRDX+2}, {2048*1280}
        s_mov_b32 s{SRDX+3}, 0x20000
        s_mov_b32 m0, s{sM0}
        """)
        sS = sA + 7; sC = sA + 8
        setup = lines(f"""
        s_mov_b32 s{sOOB}, {OOB}
        s_lshl_b32 s{sS}, s{sHalf}, 3
        s_add_u32 s{sS}, s{sS}, s{sJ}
        v_lshrrev_b32 v{vRow}, 3, v0
        s_and_b32 s{sA}, s{sWave}, 1
        s_lshl_b32 s{sA}, s{sA}, 5
        v_add_u32 v{vRow}, s{sA}, v{vRow}
        v_bfe_u32 v{vT}, v0, 1, 2
        v_bfe_u32 v{vT+1}, v0, 4, 1
        s_and_b32 s{sA}, s{sWave}, 2
        v_or_b32 v{vT+1}, s{sA}, v{vT+1}
        v_xor_b32 v{vT}, v{vT}, v{vT+1}
        v_and_b32 v{vT+1}, 1, v0
        v_lshlrev_b32 v{vT+1}, 4, v{vT+1}
        v_lshl_add_u32 v{vCol}, v{vT}, 5, v{vT+1}
        s_add_u32 s{sC}, s{sS}, {cfg["qsh"]}
        s_and_b32 s{sC}, s{sC}, 15
        """) + self.q_params(PB[0], sC) + self.switch_ops(PB[0])
        ptr = [o for o in setup if f"s{pQKV}" in o or f"s{pQKV+1}" in o]
        for o in setup:
            if o not in ptr: self.emit(o)
        a(f"s_waitcnt lgkmcnt(0)\ns_mov_b32 s{SRDX}, s4\ns_mov_b32 s{SRDX+1}, s5")
        if self.stamps: a(f"s_mov_b32 s1, s{sTok}")
        setup = ptr + ([f"s_add_u32 s{pWS}, s{pWS}, {cfg['wsoff']}; s_addc_u32 s{pWS+1}, s{pWS+1}, 0"] if cfg.get("wsoff") else []) + lines(f"""
        s_add_u32 s{sA}, s{pWS}, {WS_EPOCH}; s_addc_u32 s{sA+1}, s{pWS+1}, 0
        s_load_dwordx2 s[{sTok}:{sTok+1}], s[{sA}:{sA+1}], 0
        """)
        n_first = len(setup)
        setup += lines(f"""
        s_mov_b32 s{sOne}, 0x3f803f80
        s_mov_b32 s{sLo}, 0x00003f80
        s_mov_b32 s{sHi}, 0x3f800000
        v_and_b32 v{vT}, 31, v0
        v_lshlrev_b32 v{vT+1}, 7, v{vT}
        v_add_u32 v{vT+1}, s{sM0}, v{vT+1}
        v_bfe_u32 v{vT}, v0, 1, 3
        v_lshrrev_b32 v{vT+2}, 5, v0
        v_xor_b32 v{vT}, v{vT}, v{vT+2}
        """)
        XA = EP + 8
        for s in range(4):
            setup.append(f"v_xor_b32 v{vT+2}, {2*s}, v{vT}")
            setup.append(f"v_lshl_add_u32 v{XA+s}, v{vT+2}, 4, v{vT+1}")
            setup.append(f"v_add_u32 v{XA+4+s}, 0x10000, v{XA+s}")
            setup.append(f"v_add_u32 v{XA+8+s}, 0x20000, v{XA+s}")
        setup += lines(f"""
        v_mov_b32 v{vSum}, 0
        v_mov_b32 v{vSq}, 0
        v_lshlrev_b32 v{vL16}, 4, v0
        v_lshlrev_b32 v{vL8}, 3, v0
        v_bfe_u32 v{vT}, v0, 4, 1
        v_bfe_u32 v{vT+1}, v0, 2, 2
        v_lshrrev_b32 v{vT+2}, 5, v0
        v_lshl_add_u32 v{vT+2}, v{vT+2}, 3, v{vT+1}
        v_lshlrev_b32 v{vT+2}, 7, v{vT+2}
        v_lshl_add_u32 v{vT+2}, v{vT}, 13, v{vT+2}
        v_and_b32 v{EP}, 3, v0
        v_lshl_add_u32 v{vT+2}, v{EP}, 3, v{vT+2}
        v_lshrrev_b32 v{vT+1}, 1, v{vT+1}
        v_lshl_add_u32 v{vT}, v{vT}, 1, v{vT+1}
        """)
        for t in range(4):
            setup.append(f"v_xor_b32 v{vT+1}, {t}, v{vT}")
            setup.append(f"v_lshl_add_u32 v{vTr+t}, v{vT+1}, 5, v{vT+2}")
            setup.append(f"v_add_u32 v{vTr+4+t}, 0x10000, v{vTr+t}")
            setup.append(f"v_add_u32 v{vTr+8+t}, 0x20000, v{vTr+t}")
        setup += lines(f"""
        v_bfe_u32 v{vT}, v0, 4, 1
        v_lshlrev_b32 v{vT}, 10, v{vT}
        v_lshrrev_b32 v{vT+1}, 5, v0
        v_lshl_add_u32 v{vT}, v{vT+1}, 8, v{vT}
        v_and_b32 v{vT+1}, 15, v0
        v_lshl_add_u32 v{vSF}, v{vT+1}, 4, v{vT}
        s_mov_b32 s{SRDW}, s{pWS}
        s_mov_b32 s{SRDW+1}, s{pWS+1}
        s_mov_b32 s{SRDW+2}, {WS_SIZE}
        s_mov_b32 s{SRDW+3}, 0x20000
        s_lshl_b32 s{sMb64}, s{sMb}, 1
        s_add_u32 s{sMb64}, s{sMb64}, s{sHalf}
        s_lshl_b32 s{sFlag}, s{sMb}, 4
        s_add_u32 s{sFlag}, s{sFlag}, s{sS}
        s_lshl_b32 s{sFlag}, s{sFlag}, 2
        s_add_u32 s{sFlag}, s{sFlag}, s{sWave}
        s_lshl_b32 s{sFlag}, s{sFlag}, 3
        s_add_u32 s{sFlag}, s{sFlag}, {WS_FLAG}
        """) + (lines(f"""
        s_lshr_b32 s{sA}, s{sS}, 2
        s_sub_u32 s{sC}, s{sS}, s{sA}
        s_add_u32 s{sC}, s{sC}, 16
        s_and_b32 s{sA}, s{sS}, 3
        s_cmp_lt_u32 s{sA}, 3; s_cselect_b32 s{sC}, s{sC}, 31
        s_cmp_lt_u32 s{sC}, 27; s_cselect_b32 s{sThree}, 1, 0
        """) if cfg.get("map8") == 2 else lines(f"""
        s_mul_i32 s{sC}, s{sHalf}, 3
        s_add_u32 s{sC}, s{sC}, s{sJ}
        s_add_u32 s{sC}, s{sC}, 16
        s_add_u32 s{sA}, s{sS}, 5
        s_and_b32 s{sA}, s{sA}, 15
        s_cmp_lt_u32 s{sA}, 11; s_cselect_b32 s{sC}, s{sC}, 31; s_cselect_b32 s{sThree}, 1, 0
        """)) + lines(f"""
        """) + self.f_params(PB[1], sS) + self.f_params(PB[2], sC) + self.pack_params() + lines(f"""
        v_lshrrev_b32 v{vT}, 5, v0
        v_lshlrev_b32 v{vT}, 4, v{vT}
        v_bfe_u32 v{vT+1}, v0, 4, 1
        v_lshl_add_u32 v{vT}, v{vT+1}, 2, v{vT}
        v_bfe_u32 v{vT+1}, v0, 2, 2
        v_add_u32 v{vT}, v{vT}, v{vT+1}
        v_lshlrev_b32 v{vT}, 7, v{vT}
        v_and_b32 v{vT+2}, 3, v0
        v_lshl_add_u32 v{vT}, v{vT+2}, 3, v{vT}
        v_add_u32 v{vT}, s{sM0}, v{vT}
        v_lshrrev_b32 v{vT+1}, 1, v{vT+1}
        s_and_b32 s{sA+2}, s{sWave}, 2
        v_or_b32 v{vT+1}, s{sA+2}, v{vT+1}
        """)
        for ch in range(4):
            setup.append(f"v_xor_b32 v{PR+20+ch}, {ch}, v{vT+1}")
            setup.append(f"v_lshl_add_u32 v{PR+20+ch}, v{PR+20+ch}, 5, v{vT}")
        setup += [f"v_mul_u32_u24 v{PR+16}, 1280, v{vRow}", f"v_add_u32 v{PR+16}, v{vCol}, v{PR+16}"]
        setup += [f"v_add_u32 v{PR+16+j}, {j*(8*1280-1024)}, v{PR+16}" for j in range(1, 4)]
        setup += lines(f"""
        s_lshl_b32 s{sA}, s2, 1
        s_and_b32 s{sA+1}, s{sWave}, 1
        s_add_u32 s{sA}, s{sA}, s{sA+1}
        s_mul_i32 s{sA+1}, s{sA}, 20
        v_add_u32 v{vT}, s{sA+1}, v0
        v_lshrrev_b32 v{vT+1}, 4, v{vT}
        v_mul_u32_u24 v{vT+1}, {3456-2048}, v{vT+1}
        v_lshl_add_u32 v94, v{vT}, 7, v{vT+1}
        s_mul_i32 s{sA+1}, s{sA}, 14
        v_add_u32 v{vT}, s{sA+1}, v0
        v_mul_u32_u24 v{vT+1}, {(1<<20)//11+1}, v{vT}
        v_lshrrev_b32 v{vT+1}, 20, v{vT+1}
        v_mul_u32_u24 v{vT+1}, 2048, v{vT+1}
        v_lshl_add_u32 v91, v{vT}, 7, v{vT+1}
        s_lshr_b32 s{sDuty}, s2, 3
        s_and_b32 s{sDuty}, s{sDuty}, 3
        """) + self.p2_params()
        if cfg.get("verbose"): print("setup ops", len(setup), "first", n_first)
        order = list(cfg.get("order", ["X0", "X1", "X2", "X3", "X4", "X5", "X6", "X7", "X8", "X9", "B", "B", "B", "B"]))
        def queue_next():
            o = order.pop(0)
            if o[0] == "T":
                r0, n = {"Ta": (0, 8), "Tb": (256, 12), "Tc": (0, 4), "Td": (128, 16)}[o]
                self.emit(f"s_lshl_b32 s{sA+6}, s{sMb}, 1; s_and_b32 s{sA+5}, s{sWave}, 1; s_add_u32 s{sA+6}, s{sA+6}, s{sA+5}; s_mul_i32 s{sA+6}, s{sA+6}, {n}; "
                          f"s_lshl_b32 s{sA+5}, s{sRot}, 6; s_add_u32 s{sA+6}, s{sA+6}, s{sA+5}; s_add_u32 s{sA+6}, s{sA+6}, {r0}; v_add_u32 v90, s{sA+6}, v0; "
                          f"v_subrev_u32 v89, 640, v90; v_min_u32 v90, v89, v90; v_mul_u32_u24 v90, 3840, v90; s_mov_b64 exec, {(1<<n)-1}; "
                          f"buffer_load_dword v90, v90, s[{PB[0]}:{PB[0]+3}], s{PB[0]+5} offen; s_mov_b64 exec, -1", "T")
                if not order: return
                o = order.pop(0)
            if o == "B":
                self.pend += self.dma_items(self.next); self.next += 1
            else:
                i = int(o[1:]); sl = self.alloc(("X", i))
                if i: self.pend.append(("op", f"s_add_u32 m0, s{sM0}, {sl*16384}; s_add_u32 s{sX}, s{sX}, 128; s_cmp_eq_u32 s{sX}, 1280; s_cselect_b32 s{sX}, 0, s{sX}"))
                self.pend += [("ld", f"buffer_load_dwordx4 v{EP+4+j}, s[{SRDX}:{SRDX+3}], s{sX} offen offset:{1024*j} lds", f"X{i}") for j in range(4)]
        XW = cfg["XW"]; spl = cfg.get("spl", 12); done = 0
        for g in range(XW):
            if order[0] == "B": assert done >= n_first
            if g == cfg.get("tlbat", 1) and cfg.get("tlb"):
                G_ = cfg["tlb"]; L = a.newlabel("tl")
                bufs = [[(pG, 640*3456), (pWS, 0x1A00000)], [(pU, 640*3456), (6, 2048*1280)], [(pDN, 1728*1280), (pWO, 640*1280)], [(pQKV, 640*3840)]]
                for w_, bl_ in enumerate(bufs):
                    a(f"s_cmp_lg_u32 s{sWave}, {w_}\ns_cbranch_scc1 {L}_{w_}")
                    for ptr_, size in bl_:
                        g2 = max(G_, 21) if size > (64 << G_) else G_
                        n_ = min(64, (size >> g2) + 2)
                        a(f"v_lshlrev_b32 v93, {g2}, v0\nv_min_u32 v93, {size-4}, v93\ns_mov_b64 exec, {(1 << n_) - 1 if n_ < 32 else -1}")
                        a(f"global_load_dword v92, v93, s[{ptr_}:{ptr_+1}]\ns_mov_b64 exec, -1")
                    a.label(f"{L}_{w_}")
            queue_next()
            for j in range(4):
                self.pop_ld()
                sp_ = cfg.get("spl0", spl) if g < 2 else spl
                if 4 * g + j + 1 == cfg.get("xw1", -1): sp_ = 1000
                for o in setup[done:done + sp_]: self.emit(o)
                done += sp_
        for o in setup[done:]: self.emit(o)
        self.stamp(1, True)
        def stats(i, j):
            for r in range(4 * j, 4 * j + 4):
                x = XB + 16 * i + r
                a(f"v_dot2c_f32_bf16 v{vSum}, s{sOne}, v{x}")
                a(f"v_dot2c_f32_bf16 v{vSq}, v{x}, v{x}")
        for i in range(10):
            vm.wait(a, f"X{i}", 4)
            if i in (0, 2, 4, 6, 8): self.stamp(2 + i // 2, True)
            sl = self.slot[("X", i)]
            for s in range(4):
                x = XB + 4 * (4 * i + s)
                a(f"ds_read_b128 v[{x}:{x+3}], v{XA+4*(sl>>2)+s} offset:{(sl&3)*16384}")
            if order and (order[0] != "B" or self.next < cfg["PB"]): queue_next()
            for j in range(4):
                if self.pend: self.pop_ld()
                if i: stats(i - 1, j)
            a("s_waitcnt lgkmcnt(0)")
            self.xdone.add(("X", i))
        a(f"s_xor_b32 s{sTok+1}, s{sTok+1}, 0x{TOKX:x}\ns_add_u32 s{sTok}, s{sTok}, 1")
        for j in range(4): stats(9, j)
        self.stamp(1)
        a(f"""
        s_mov_b32 s{sA}, 0x3acccccd
        s_nop 1
        v_mov_b32 v{vT}, v{vSum}
        v_mov_b32 v{vR}, v{vSq}
        s_nop 0
        v_permlane32_swap_b32 v{vSum}, v{vT}
        v_permlane32_swap_b32 v{vSq}, v{vR}
        s_nop 0
        v_add_f32 v{vSum}, v{vSum}, v{vT}
        v_add_f32 v{vSq}, v{vSq}, v{vR}
        v_mul_f32 v{vSum}, s{sA}, v{vSum}
        v_mul_f32 v{vSq}, s{sA}, v{vSq}
        v_cvt_pk_bf16_f32 v{vNegM}, 0, -v{vSum}
        v_fma_f32 v{vSq}, -v{vSum}, v{vSum}, v{vSq}
        """)
        NC = cfg["nc"]
        def first_frags():
            self.stamp(8, True)
            vm.wait(a, "B1" if cfg["bar2"] else "B0", 4)
            a("s_barrier")
            self.stamp(7, True)
            for G in range(2):
                for r in self.tr_reads(G): a(r)
        for st_ in range(NC):
            d0, c0 = self.center_ops(st_)
            if st_ == NC - 1:
                while order or self.pend:
                    if not self.pend: queue_next()
                    self.pop_ld()
                for op in d0: a(op)
                first_frags()
                for op in c0: a(op)
            else:
                if order and not self.pend: queue_next()
                for j, op in enumerate(d0 + c0):
                    a(op)
                    if j % 12 == 0 and self.pend: self.pop_ld()
        self.stamp(2)
        extra = Uniq()
        extra[130] = lines(f"""
            v_max_f32 v{vSq}, 0, v{vSq}
            v_cvt_pk_bf16_f32 v{vR}, 0, v{vSq}
            v_add_f32 v{vR}, 0x3727c5ac, v{vR}
            v_cvt_pk_bf16_f32 v{vR}, 0, v{vR}
            v_sqrt_f32 v{vR}, v{vR}; s_nop 0
            v_cvt_pk_bf16_f32 v{vD2}, 0, v{vR}
            v_rcp_f32 v{vR}, v{vD2}
            v_mul_f32 v{vD2}, v{vD2}, v{vD2}
            v_mul_f32 v{vC1}, 0x{NLOG2E:x}, v{vR}
            """)
        def pack_issue():
            sl = self.alloc("P")
            self.pend += [("op", f"s_add_u32 m0, s{sM0}, {sl*16384}")]
            self.pend += [("ld", f"buffer_load_dwordx4 v{PR+16+j}, s[{PK}:{PK+3}], s{PK+4} offen offset:{1024*j} lds", "PK") for j in range(4)]
        pk0 = cfg["pk0"]; pk1 = cfg["pk1"]
        extra[pk0] = pack_issue
        extra[pk0 + 1] = [lambda ch=ch: a(f"v_add_u32 v{PR+20+ch}, {self.slot['P']*16384}, v{PR+20+ch}") for ch in range(4)]
        rdl = [lambda: vm.wait(a, "PK", 4)]
        for ch in range(4):
            rdl.append(f"ds_read_b64_tr_b16 v[{PR+4*ch}:{PR+4*ch+1}], v{PR+20+ch}")
            rdl.append(f"ds_read_b64_tr_b16 v[{PR+4*ch+2}:{PR+4*ch+3}], v{PR+20+ch} offset:1024")
        extra[pk1] = rdl
        stl = []
        for ch in range(4):
            stl.append(lambda ch=ch: (self.xdone.add("P"), vm.issue(a, f"buffer_store_dwordx4 v[{PR+4*ch}:{PR+4*ch+3}], v{vL16}, s[{SRDW}:{SRDW+3}], s{PK+5+ch} offen sc1", "I")))
        extra[pk1 + 24] = [lambda: [f() for f in stl]] if cfg['stb'] > 1 else stl
        def touch(which, duty=None):
            def f():
                r, n, off = ((94, 20, 0), (91, 14, 2048))[which]
                ins = f"buffer_load_dword v{r}, v{r}, s[{PB[1]}:{PB[1]+3}], 0 offen offset:{off}"
                if duty is None:
                    a(f"s_mov_b64 exec, {(1 << n) - 1}"); vm.issue(a, ins, "T"); a("s_mov_b64 exec, -1")
                else:
                    L = a.newlabel("du")
                    a(f"s_cmp_lg_u32 s{sDuty}, {duty}\ns_cbranch_scc1 {L}\ns_mov_b64 exec, {(1 << n) - 1}\n{ins}\ns_mov_b64 exec, -1\n{L}:")
            return f
        for which, key in ((0, "tch"), (1, "tch2")):
            g_ = cfg[key]
            if isinstance(g_, list):
                for d_, gg in enumerate(g_): extra[gg] = touch(which, d_)
            elif 0 <= g_ < 160: extra[g_] = touch(which)
        if cfg["pub1"] < 160: extra[cfg["pub1"]] = lambda: (self.publish(1, ["I"]), self.retouch("P"))
        vq0 = None
        if cfg.get("b0fake"):
            vq0 = [((lambda gap: gap >= cfg["b0fake"]), (lambda k=k, u=u: vm.issue(a, f"buffer_load_dwordx4 {self.rr(self.BSLOT[k], 4*u)}, v{vLd + (u & 3)}, s[{PB[0]}:{PB[0]+3}], s{PB[0]+6} offen offset:{k*512}", f"PB{k}"))) for k in range(4) for u in range(5)]
        self.body(0, None, 3, center=True, extra=extra, vq=vq0, before=[(pk0 + 1, pk1), (pk1, pk1 + 16), (pk1 + 24, cfg["pub1"])])
        self.stamp(3)
        self.vPub = 86
        extra = Uniq()
        if cfg["tch2"] >= 160: extra[cfg["tch2"] - 160] = touch(1)
        if cfg["pub1"] >= 160: extra[cfg["pub1"] - 160] = lambda: self.publish(1, ["I"])
        extra[cfg["pub2"]] = lambda: (self.publish(2, ["E0"]), self.retouch("Q", PB[0] + 7))
        GR = 88
        def epoch():
            L = a.newlabel("ep")
            a(f"""
            s_or_b32 s{sA+8}, s2, s{sWave}
            s_cbranch_scc1 {L}
            v_mov_b32 v{GR}, s{sTok}
            s_mov_b32 s{sA+8}, {WS_EPOCH}
            s_mov_b64 exec, 1
            buffer_store_dword v{GR}, off, s[{SRDW}:{SRDW+3}], s{sA+8}
            s_mov_b64 exec, -1
            {L}:
            """)
        gc = cfg["gck"]
        assert gc % 16 == 6 and (not cfg["bar2"] or (gc // 16) % 2 == 1)
        gb = gc + 2
        extra[gb + 1] = epoch
        for j in range(4):
            extra[gc - 42 + 4 * j] = lambda j=j: self.flag_load(GR + 2 * j, sFlG, f"G{j}", 1, 512 * j)
            extra[gc - 9 + [0, 2, 4, 8][j]] = lambda j=j: self.flag_check(GR + 2 * j, sFlG, f"G{j}", 1, off=512 * j)
        after = lambda g0: (lambda gap: gap >= g0)
        vq = [(after(gb), f) for k in range(4) for f in self.b_loads(k)] if not cfg.get('b0fake') else []
        rest1 = self.body(1, self.epi_q(ACC[0], PB[0] + 7), 3, wrange=(4, cfg["w1"]), extra=extra, vq=vq, vq1=cfg["b1vq"])
        while self.pend: self.pop_ld()
        self.stamp(4)
        vm_split = list(vm.q)
        a(f"s_cmp_eq_u32 s{sThree}, 0")
        a(f"s_cbranch_scc1 {label}_two")
        self.vPub = 62
        pre = []
        def P(fn): pre.append(fn); return fn
        extra = Uniq()
        vq = [(after(0), P(f)) for _, f in rest1]
        st = {"q": False}
        q_l0 = lambda: self.flag_load(XB, sFl0, "Q0", 2)
        q_l1 = lambda: self.flag_load(XB + 2, sFl1, "Q1", 2)
        q_c0 = lambda: self.flag_check(XB, sFl0, "Q0", 2)
        def q_c1():
            self.flag_check(XB + 2, sFl1, "Q1", 2); st["q"] = True
        qc = cfg["qck"]
        extra[qc - 33] = q_l0; extra[qc - 29] = q_l1; extra[qc - 1] = q_c0; extra[qc + 3] = q_c1
        attl = []
        lastkv = [-100]
        def att_ok(gap, j):
            if not st["q"] or gap - lastkv[0] < cfg["kvgap"]: return False
            attl or attl.extend(self.att_loads(False))
            if j < 10:
                if self.next < 30 or self.pend: return False
                if "K" not in self.slot:
                    if not (self.free(7) and self.free(8)): return False
                    self.alloc("K", 7); self.alloc("V", 8)
            lastkv[0] = gap
            return True
        bq = []
        l0 = len(a.lines)
        def acc_free(b):
            return lambda gap: sum(1 for l in a.lines[l0:] if l.startswith("    v_accvgpr_read_b32") and b <= int(l.rsplit("a", 1)[1]) < b + 20) == 20
        grp_ = {k: [(after(4 * (5 * (k - 4) + 10)), f) for f in self.b_loads(k)] for k in range(4, 8)}
        for k in (8, 9, 10): grp_[k] = [(acc_free(int(self.BSLOT[k][1:])), f) for f in self.b_loads(k)]
        cur = [None]
        def seq(k, u, c):
            def ok(gap):
                if cur[0] not in (None, k) or not c(gap): return False
                cur[0] = k if u < 4 else None
                return True
            return ok
        for k in cfg["b2order"]: bq += [(seq(k, u, c), f) for u, (c, f) in enumerate(grp_[k])]
        for k in (4, 5): [P(f) for _, f in grp_[k]]
        P(q_l0); P(q_l1)
        for k in (6, 7): [P(f) for _, f in grp_[k]]
        P(q_c0); P(q_c1)
        pre.append("att")
        for k in (8, 9, 10): [P(f) for _, f in grp_[k]]
        for j in list(range(10, 15)) + list(range(10)): vq.append((lambda gap, j=j: att_ok(gap, j), lambda j=j: attl[j]()))
        vq += bq
        wq = []
        for s in range(7):
            ok = lambda gap, s=s: self.next >= 30 and not self.pend and (self.owner[s] == ("WO", s) or self.free(s))
            wq += [(ok, f) for f in self.wo_loads(s)]
        vq += wq
        extra[cfg["pub3"]] = lambda: (self.publish(3, ["E1"]), self.retouch("F", PB[1] + 7))
        rest = self.body(2, self.epi_f(ACC[1], PB[1] + 7), 3, wrange=(4, cfg["w2"]), extra=extra, vq=vq, vq1=cfg["vq1"], vq2=cfg["vq2"])
        self.stamp(5)
        wfs = [f for _, f in wq]
        if cur[0] is not None:
            cf = [f for _, f in grp_[cur[0]]]
            rest = [x for x in rest if x[1] in cf] + [x for x in rest if x[1] not in cf]
        late = [f for c_, f in rest if f not in wfs] + [P(f) for k in (11, 12) for f in self.b_loads(k)]
        late += [f for c_, f in rest if f in wfs and c_(160)]
        ntail = cfg["ntail"]
        assert 15 - vm.q.count("KV") <= ntail and "K" in self.slot
        post = late[ntail:]; late = late[:ntail]
        wrest = [f for c_, f in rest if f in wfs and f not in late]
        post = [f for f in post if f not in wfs]
        pre[:] = [f for f in pre if f not in post]
        for f in wfs:
            if f not in wrest: P(f)
        def tail(ops, inter, tag):
            inter = list(inter); n = len(ops); k = len(inter); j = 0
            for i, op in enumerate(ops):
                self.emit(op, tag)
                while j < k and j < (i + 1) * k // n:
                    inter[j](); j += 1
        a("s_nop 5")
        if cfg.get("f3tail"): late.insert(cfg["f3tail"], P(lambda: self.flag_load(vFl, sFl0, "F3", 3)))
        tail(self.epi_f_tail(ACC[0], PB[2] + 7), late, "E2")
        if cfg.get("verbose"): print("tail loads", len(late), "after join: B loads", len(post), "wo loads", len(wrest))
        self.lastbar = 100
        self.alloc("O", 9)
        a.label(f"{label}_join")
        self.stamp(6)
        self.vPub = 20
        if not cfg.get("f3tail"): self.flag_load(vFl, sFl0, "F3", 3)
        a(f"s_lshr_b32 s{sA}, s{sM0}, 2\nv_add_u32 v{vA[0]}, s{sA}, v{vL16}")
        for i in range(1, 4): a(f"v_add_u32 v{vA[i]}, 1024, v{vA[i-1]}\nv_and_b32 v{vA[i]}, 4095, v{vA[i]}")
        a("s_barrier")
        def xaddr(j, d, t1, t2):
            return [f"v_add_u32 v{t1}, {64*j}, v0", f"v_mul_u32_u24 v{t2}, {(1<<16)//10+1}, v{t1}", f"v_lshrrev_b32 v{t2}, 16, v{t2}",
                    f"v_mul_u32_u24 v{t2}, {1280-160}, v{t2}", f"v_lshl_add_u32 v{t2}, v{t1}, 4, v{t2}", f"v_add_u32 v{d}, s{sXo}, v{t2}"]
        def xl(j):
            for o in xaddr(j, 114, 114, 115): a(o)
            a(f"v_accvgpr_write_b32 a{60+j}, v114")
            a(f"s_mul_i32 s{sA+2}, s{sWave}, 2560\ns_add_u32 m0, s{sA+2}, {102400 + 1024*j}")
            a("s_mov_b32 exec_hi, 0" if j == 2 else "s_nop 0")
            vm.issue(a, f"global_load_lds_dwordx4 v114, s[4:5]", "XO")
            if j == 2: a("s_mov_b32 exec_hi, -1")
        assert not post
        free_ = [lambda j=j: xl(j) for j in range(3)] + post + wrest
        n1 = cfg["natt1"]; n2 = cfg["natt2"]
        al = free_[n1:]
        aa = [f for k in range(4) for f in self.a_loads(k)]
        n0 = cfg.get("natt0", n1)
        inter = free_[:n0] + [lambda: self.flag_check(vFl, sFl0, "F3", 3)]
        mix = list(aa[:n2])
        for j_, f_ in enumerate(free_[n0:n1]): mix.insert((j_ + 1) * (n2 + n1 - n0) // (n1 - n0) - 1, f_)
        inter += mix
        inter.insert(min(len(inter), cfg["pub4"]), lambda: self.publish(4, ["E2"]))
        ost = self.attention(inter)
        self.stamp(8)
        XR = 4; vX = 14; vW = 25; vRd = 28; vXo = [1, 2, 29]
        KF = cfg["kf"]
        wl = [f for f in al if f not in post]
        Q_ = [(0, f) for f in ost + aa[n2:] + [f for f in al if f in post]]
        grp = lambda e, fs: [(e, f) for f in fs]
        A_ = lambda k: grp(max(self.AEARLY[k], KF if k >= 8 else 0), self.a_loads(k))
        B_ = lambda k: grp(0, self.b_loads(k))
        for it in cfg["forder"]:
            Q_ += A_(int(it[1:])) if it[0] == "A" else B_(int(it[1:])) if it[0] == "B" else grp(0, wl) if it == "W" else grp(5, ["x0", "x1", "x2"])
        OA = 176
        def wo_reads(T):
            b = WR[T % 6]
            return [f"ds_read_b128 v[{b+4*u}:{b+4*u+3}], v{vL16 if T < 12 else 15} offset:{(T % 12)*5120 + u*1024}" for u in range(5)]
        def o_load(T):
            def f():
                if T % 4 == 0: a(f"s_add_u32 s{sGb}, s{sOld}, {T*1024}")
                vm.issue(a, f"buffer_load_dwordx4 a[{OA+4*T}:{OA+4*T+3}], v{vL16}, s[{SRDW}:{SRDW+3}], s{sGb} offen offset:{1024*(T&3)} sc1", f"PO{T//2}")
            return f
        KB = cfg["kbar"]; KO = cfg["ko"]; ns = cfg["nside"]; NOF = cfg["no_f"]; KX = cfg["kx"]
        R = 32; FO = 236; SQ = [92, 4, 8, 16, 20]; XU = 216
        WR = [116, 136, 156, 176, 196, 96]
        lq = LQ()
        def mf(k, i, u):
            t_ = (i * 5 + u) * 4
            d = f"a[{t_-20}:{t_-17}]" if i else f"v[{FO+t_}:{FO+t_+3}]"
            a(f"v_mfma_f32_16x16x32_bf16 {d}, {self.rr(self.BSLOT[k], 4*u)}, {self.rr(self.ASLOT[k], 4*i)}, {'0' if k == 0 else d}")
        def wait_ab(k):
            assert vm.q.count(f"PB{k}") == 5 and vm.q.count(f"PA{k}") == 4
            vm.wait(a, f"PA{k}" if vm.last(f"PA{k}") > vm.last(f"PB{k}") else f"PB{k}")
        olist = [o_load(T) for T in range(20)]
        for k in range(KX):
            if k % 2 == 0: self.mark(10 + k // 2)
            wait_ab(k)
            side = []
            if k == KF - 2: side += [lambda: self.flag_load(vFl, sFl0, "F4", 4)]
            if k == cfg.get("kp5", 3) and not cfg["nokb"]: side += [lambda: self.publish(5, ["O"])]
            if cfg["nokb"] and k == 2:
                side += [lambda o=o: a(o) for o in (f"v_and_b32 v1, 15, v0", f"v_mul_u32_u24 v2, 160, v1", f"v_lshrrev_b32 v1, 4, v0", f"v_lshl_add_u32 v2, v1, 3, v2",
                                                     f"s_add_u32 s{sA+2}, s{sA+2}, 102400", f"v_add_u32 v1, s{sA+2}, v2")]
            late_side = []
            if cfg["nokb"] and k == 3:
                side += [lambda: (vm.wait(a, "O"), [lq.issue(a, f"ds_read_b64 v[{XR+2*u}:{XR+2*u+1}], v1 offset:{32*u}", "XL") for u in range(5)])]
                late_side = [lambda: a(f"v_mov_b32 v{vX}, v2"), lambda: (lq.wait(a, "XL"), self.publish(5, []))]
            if k == KF: self.flag_check(vFl, sFl0, "F4", 4)
            if k == KO - 2: side += [lambda: self.flag_load(vFl, sFl0, "F5", 5)]
            if k == KO: self.flag_check(vFl, sFl0, "F5", 5, half=True)
            room = ns[k] - (1 if side else 0)
            for it in list(Q_):
                if room > 0 and it[0] <= k:
                    Q_.remove(it); room -= 1
                    side.append((lambda j=int(it[1][1]): xl(j)) if isinstance(it[1], str) else it[1])
            if k >= KO and not Q_ and room > 0: side += olist[:room]; olist = olist[room:]
            if k == 4:
                side += [lambda j=j: a(f"v_accvgpr_read_b32 v{vXo[j]}, a{60+j}") for j in range(3)]
            if k == 5:
                side += [lambda o=o: a(o) for o in lines(f"""
                    v_add_u32 v15, {12*5120}, v{vL16}
                    s_mov_b32 s{sA}, 0x{NLOG2E:x}
                    s_mov_b32 s{sA+1}, 0xffff0000
                    """)]
            if k == 6:
                for i in range(4):
                    d = vRd if i == 0 else vW + i - 1
                    side += [lambda o=o: a(o) for o in (f"v_lshrrev_b32 v3, 10, v{vA[i]}", f"v_mul_u32_u24 v3, 15360, v3",
                                                         f"v_add_u32 v3, {102400 + max(i-1, 0)*5120}, v3", f"v_add_u32 v{d}, v3, v{vL16}")]
            side += late_side
            if k == KB - 1 and not cfg['nokb']:
                side += [lambda: (vm.wait(a, "XO", 3), a(f"s_add_u32 s{sA+2}, s{sA+2}, 102400\nv_add_u32 v3, s{sA+2}, v{vX}"))]
                side += [lambda u=u: lq.issue(a, f"ds_read_b64 v[{XR+2*u}:{XR+2*u+1}], v3 offset:{32*u}", "XL") for u in range(5)]
            if k == KB and not cfg['nokb']:
                lq.wait(a, "XL"); vm.wait(a, "WO", 25); a("s_barrier")
            nsd = len(side); j = 0
            for i in range(4):
                for u in range(5):
                    mf(k, i, u)
                    while j < nsd and j < (i * 5 + u + 1) * nsd // 20:
                        side[j](); j += 1
        assert not Q_, len(Q_)
        assert KB < KX and KO < KX and KX >= 10
        self.mark(16)
        nk = 14 - KX
        base_side = olist[:max(NOF - (20 - len(olist)), 0)]; olist = olist[len(base_side):]
        ol_ = base_side
        base_side = [lambda r=r, T=T: lq.issue(a, r, f"W{T}") for T in range(5) for r in wo_reads(T)]
        base_side += [lambda j=j: a(f"v_and_b32 v{XU+j}, s{sA+1}, v{XR+(j>>1)}" if j & 1 else f"v_lshlrev_b32 v{XU+j}, 16, v{XR+(j>>1)}") for j in range(20)]
        for j_, f_ in enumerate(ol_): base_side.insert(j_ * (45 + len(ol_)) // len(ol_), f_)
        nb_ = len(base_side); jb = 0; m = 0
        for ri, i in enumerate((1, 2, 3, 0)):
            pw = []
            if ri:
                ip = (1, 2, 3)[ri - 1]
                pw = [f"ds_write_b128 v{vW+ip-1}, a[{(ip*5+u)*4-20}:{(ip*5+u)*4-17}] offset:{u*1024}" for u in range(5)]
            mm = 0
            for k in range(KX, 14):
                if ri == 0: wait_ab(k)
                for u in range(5):
                    mf(k, i, u); m += 1; mm += 1
                    if pw and mm >= 4 and (mm - 4) * 5 >= (5 - len(pw)) * (5 * nk - 4): lq.issue(a, pw.pop(0), "PW")
                    else:
                        while jb < nb_ and jb < m * nb_ // (20 * nk):
                            base_side[jb](); jb += 1
            for w_ in pw: lq.issue(a, w_, "PW")
        while jb < nb_:
            base_side[jb](); jb += 1
        self.stamp(7)
        work = [("f", f) for f in olist[:2]] + [("bar",)]
        for j in range(15): work.append(("l", f"ds_read_b128 v[{R+4*j}:{R+4*j+3}], v{vRd} offset:{j*1024}", "PR"))
        work += [("f", f) for f in olist[2:]]
        pk2 = lambda op, d, x, y: "\n".join(f"{op} v[{d+2*j}:{d+2*j+1}], v[{x+2*j}:{x+2*j+1}], {y(j)}" for j in range(10))
        work.append(("v", f"v_sub_u32 v3, v{vRd}, v{vL16}")); work.append(("v", f"v_add_u32 v3, v3, v{vX}"))
        work.append(("lw", "PR"))
        work.append(("v", "\n".join([pk2("v_pk_add_f32", FO, FO, lambda j: f"v[{R+2*j}:{R+2*j+1}]"),
                                     pk2("v_pk_add_f32", R+20, R+20, lambda j: f"v[{R+40+2*j}:{R+40+2*j+1}]"),
                                     pk2("v_pk_add_f32", FO, FO, lambda j: f"v[{R+20+2*j}:{R+20+2*j+1}]"),
                                     pk2("v_pk_mul_f32", R, FO, lambda j: f"s[{sA}:{sA+1}] op_sel_hi:[1,0]")])))
        for j in range(20): work.append(("v", f"v_exp_f32 v{R+j}, v{R+j}"))
        for j in range(20): work.append(("v", f"v_add_f32 v{R+j}, 1.0, v{R+j}"))
        for j in range(20): work.append(("v", f"v_rcp_f32 v{R+j}, v{R+j}"))
        def do(wk):
            if wk[0] == "v": a(wk[1])
            elif wk[0] == "f": wk[1]()
            elif wk[0] == "l": lq.issue(a, wk[1], wk[2])
            elif wk[0] == "lw": lq.wait(a, wk[1])
            elif wk[0] == "bar":
                lq.wait(a, "PW"); self.mark(20); a("s_barrier"); self.mark(21)
        for j in range(20): work.append(("v", f"v_mul_f32 v{FO+j}, v{FO+j}, v{R+j}"))
        nw = len(work); done = 0; m = 0
        TU = cfg["tu"]; NM = 5 * TU
        def smf(T, u):
            d = f"v[{SQ[u]}:{SQ[u]+3}]"; b = WR[T % 6]
            a(f"v_mfma_f32_16x16x32_bf16 {d}, v[{b+4*u}:{b+4*u+3}], a[{OA+4*T}:{OA+4*T+3}], {'0' if T == 0 else d}")
        for T in range(TU):
            if T % 4 == 0: vm.wait(a, f"PO{T//2+1}", 2)
            if T in (0, 10): self.mark({0: 17, 10: 18}[T])
            if T % 3 == 0: lq.wait(a, f"W{T+2}")
            rd = wo_reads(T + 5) if T + 5 < 20 else []
            for u in range(5):
                smf(T, u); m += 1
                if rd: lq.issue(a, rd.pop(0), f"W{T+5}")
                while done < nw and done < m * nw // NM:
                    do(work[done]); done += 1
        assert done == nw and TU >= 15
        self.mark(19)
        vm.wait(a, "PO9", 2); lq.wait(a, "W19")
        def comb(u):
            f0 = FO + 4 * u; o = 64 + 2 * u
            return [f"v_fma_f32 v{f0+j}, v{f0+j}, v{SQ[u]+j}, v{XU+4*u+j}" for j in range(4)] + \
                   [f"v_cvt_pk_bf16_f32 v{o}, v{f0}, v{f0+1}", f"v_cvt_pk_bf16_f32 v{o+1}, v{f0+2}, v{f0+3}", f"ds_write_b64 v3, v[{o}:{o+1}] offset:{32*u}"]
        for u in range(5):
            c_ = comb(u - 2) if u >= 2 else []
            if u == 2: a(f"s_nop {max(8 - (20 - TU) - 2, 0)}")
            for T in range(TU, 20):
                smf(T, u)
                for o in c_[:2]: a(o)
                c_ = c_[2:]
            for o in c_: a(o)
        for o in comb(3): a(o)
        a("s_nop 0")
        for o in comb(4): a(o)
        a("s_waitcnt lgkmcnt(0)")
        for j in range(3): a(f"ds_read_b128 v[{76+4*j}:{79+4*j}], v{vRd} offset:{1024*j}")
        for j in range(3):
            a(f"s_waitcnt lgkmcnt({2-j})")
            if j == 2: a("s_mov_b32 exec_hi, 0")
            a(f"global_store_dwordx4 v{vXo[j]}, v[{76+4*j}:{79+4*j}], s[6:7] {cfg.get('scO', '')}")
        a("s_mov_b32 exec_hi, -1")
        self.mark(22)
        if self.stamps:
            a("s_waitcnt vmcnt(0)")
            a(f"s_memtime s[{sA}:{sA+1}]")
            a(f"s_memrealtime s[{sA+2}:{sA+3}]")
            a("s_waitcnt lgkmcnt(0)")
            for i in range(1, 8):
                a(f"s_sub_u32 s{sA+4}, s{ST0+2*(i-1)}, s0\nv_mov_b32 v{32+i}, s{sA+4}")
            a(f"s_sub_u32 s{sA+4}, s{sA}, s0\nv_mov_b32 v40, s{sA+4}\nv_mov_b32 v41, s{sA+2}")
            a(f"s_sub_u32 s{sA+4}, s{ST0+14}, s0\nv_mov_b32 v42, s{sA+4}")
            a(f"""
            v_mov_b32 v32, s1
            s_lshl_b32 s{sA}, s2, 2
            s_add_u32 s{sA}, s{sA}, s{sWave}
            s_lshl_b32 s{sA}, s{sA}, 6
            s_add_u32 s{sA}, s{sA}, {WS_STAMP}
            s_mov_b64 exec, 1
            buffer_store_dwordx4 v[32:35], off, s[{SRDW}:{SRDW+3}], s{sA}
            buffer_store_dwordx4 v[36:39], off, s[{SRDW}:{SRDW+3}], s{sA} offset:16
            buffer_store_dwordx4 v[40:43], off, s[{SRDW}:{SRDW+3}], s{sA} offset:32
            """)
        a("s_endpgm")
        a.label(f"{label}_two")
        self.stamp(5)
        self.vm = vm = VM()
        self.vPub = 62
        self.vm.q = list(vm_split)
        self.vm.wait(a, [t_ for t_ in self.vm.q if t_[0] == "B" and t_[1:].isdigit()][-1])
        a("s_waitcnt lgkmcnt(0)\ns_barrier\ns_nop 4")
        flat = []
        for f in pre: flat += self.att_loads() if f == "att" else [f]
        nb_ = cfg["nbtail"]
        tail(self.epi_f_tail(ACC[1], PB[1] + 7), flat[:nb_], "E1")
        for i, f in enumerate(flat[nb_:]):
            if i == cfg["nbpub"]:
                self.publish(3, ["E1"]); a("s_nop 1"); self.publish(4, []); self.retouch("F", PB[1] + 7)
            if i % 8 == 3 and cfg.get("markT", 2) == 2: self.mark(i // 8)
            f()
        a("s_waitcnt vmcnt(0)")
        a(f"s_branch {label}_join")
        for s in self.slow: a(s)
        a.label(f"{label}_end")
        a("s_endpgm")
        a.end_kernel(label, 512, 102, 256, 256, 256, 163840)
        return a.text("""Generated by dev/fused2.py (own generator). One persistent kernel, 256 workgroups of 4 waves, one per CU.
kernarg: 0 A_x, 8 A_wqkv, 16 A_wo, 24 B_x (unused by the reference), 32 w_gate, 40 w_up, 48 w_down, 56 out, 64 debug, 72 ws
Phase 1: 128 rows of x per workgroup stay in registers (LayerNorm: centred in place, 1/std applied in the epilogues);
  up to three 128-column tasks of x@[wqkv | w_gate,w_up] with the weights streamed through an LDS ring (LDS-DMA + transposing reads);
  q,k,v and h = silu(g)*u go to ws; w_down / wo are repacked into MFMA fragment order in ws.
Attention: 64 rows x 4 heads per workgroup (true row max softmax), result to ws.
Phase 2: 64x80 output tile per workgroup: h@w_down (K split over the waves), o@wo, out = x + s*silu(f).
Hand-offs between workgroups: write-through stores, then a per-wave flag holding a token that is new in every launch
  (derived from a word in ws that workgroup 0 advances), consumers look at the flags before they load.""")

if __name__ == "__main__":
    stamps = "--stamps" in sys.argv
    pos = [x for x in sys.argv[1:] if not x.startswith("--")]
    cfg = json.loads(pos[1]) if len(pos) > 1 else {}
    open(pos[0], "w").write(Gen(cfg, stamps).build())
```

```python
import sys, json, struct; sys.path.insert(0, "dev")
from asmlib import *

WS_H = 0
WS_O = 0x780000
WS_WD = 0xA00000
WS_WO = 0xD00000
WS_QKV = 0x1000000
WS_FLAG = 0x1800000
WS_EPOCH = WS_FLAG - 256
WS_STAMP = 0x1900000
WS_SIZE = 0x2000000
OOB = 0x4000000
TOKX = 0x5bd1e995
NLOG2E = 0xbfb8aa3b
def f2u(x): return struct.unpack("<I", struct.pack("<f", x))[0]
C_SM = f2u(20 ** -0.5 * 1.4426950408889634)

XB = 96; EP = 32; ACC = [0, 64]; WF = 128; NWB = 3
vLd = 1; vTr = 5
vSF = 17; vL8 = 18; vD2 = 20; vC1 = 22; vR = [19, 24]; vNegM = 92; vSum = 56
vRow = 25; vCol = 26; vT = 27
vDbg = 30; vL16 = 31
vFl = 22
vQa = 28; vKa = 29
vA = [16, 17, 19, 24]
PR = 64
sOOB = 3
pQKV = 76; pWS = 78; pWO = 80; pDN = 82; pG = 84; pU = 86
sWave = 8; sMb64 = 9; sHalf = 10; sM0 = 11; sSoff = 12; sStep = 13; sWrap = 14; sThree = 15
SRDW = 16
SRDX = 20
sGa = 20; sGb = 21; sDuty = 96
PB = [24, 32, 40]
PK = 48
sOne = 57; sLo = 58; sHi = 59
sTok = 60
sFlag = 62; sFl0 = 63; sFl1 = 64; sFlG = 65
sAb = 66; sAb2 = 67; sBb = 68; sBb2 = 69; sOld = 70; sWOb = 71; sOst = 72; sOst2 = 73; sKV = 74; sXo = 75
ST0 = 76
sMb = 88; sJ = 89; sRot = 90; sNb = 91
sA = 92

class VM:
    def __init__(self): self.q = []
    def issue(self, a, ins, tag):
        a(ins); self.q.append(tag)
    def last(self, tag): return max(i for i, t in enumerate(self.q) if t == tag)
    def wait(self, a, tag, cnt=None):
        if cnt is not None: assert self.q.count(tag) == cnt, (tag, self.q.count(tag))
        a(f"s_waitcnt vmcnt({min(len(self.q) - 1 - self.last(tag), 63)})")
class LQ:
    def __init__(self): self.q = []
    def issue(self, a, ins, tag):
        a(ins); self.q.append(tag)
    def wait(self, a, tag):
        idx = max(i for i, t in enumerate(self.q) if t == tag)
        a(f"s_waitcnt lgkmcnt({min(len(self.q) - 1 - idx, 15)})")
class Uniq(dict):
    def __setitem__(self, k, v):
        assert k not in self, ("duplicate gap", k)
        dict.__setitem__(self, k, v)
def lines(s): return [l.split(";;")[0].strip() for l in s.split("\n") if l.split(";;")[0].strip()]
DIV5 = (1 << 16) // 5 + 1
DIV3 = (1 << 16) // 3 + 1

class Gen:
    KS = 7
    def __init__(self, cfg, stamps):
        self.cfg = dict(dict(LA=6, XW=4, spl=20, PB=2, bar2=True, rpat=[2, 2, 2, 2], dmagap=2, spin=3000, cap=5.0,
                             rotm=0x1010, rotx=0x7520, tch=-1, tch2=110, pk0=18, pk1=70, pub1=124, pub2=124, gck=118, qck=70, pub3=126, qsh=15,
                             w1=100, w2=96, b1vq=1, vq1=1, vq2=1, ntail=20, natt1=30, natt2=16, pub4=12,
                             nside=[5] * 14, kvgap=6, mid=0.5, tu=16, nokb=1, nc=3, p2x=2, nbtail=14, nbpub=12, stb=1, stq=False, kf=4, b2order=[4, 8, 5, 9, 6, 10, 7], forder=['A4', 'A5', 'A6', 'A7', 'W', 'A8', 'A9', 'A10', 'A11', 'A12', 'A13', 'B13'], kbar=10, ko=10, no_f=16, kx=11), **cfg)
        self.stamps = stamps
        self.a = Asm(); self.vm = VM()
        self.label = NAME + "_kernel"
        self.slot = {}; self.owner = [None] * 10
        self.xdone = set(); self.lastbar = -10
        self.next = 0; self.pend = []; self.slow = []
        self.vPub = 80
    def stamp(self, i, pro=False):
        if self.cfg.get("pst") and i and not pro: return
        if pro and not self.cfg.get("pst"): return
        if self.stamps: self.a(f"s_memtime s[{ST0+2*(i-1)}:{ST0+2*(i-1)+1}]" if i else "s_memtime s[0:1]")
    def mark(self, i):
        if self.cfg.get("marks"):
            r = 22
            self.a(f"""
            s_memtime s[{r}:{r+1}]
            s_waitcnt lgkmcnt(0)
            s_sub_u32 s{r}, s{r}, s0
            v_mov_b32 v{vDbg}, s{r}
            s_lshl_b32 s{r}, s2, 2
            s_add_u32 s{r}, s{r}, s{sWave}
            s_lshl_b32 s{r}, s{r}, 7
            s_add_u32 s{r}, s{r}, {WS_STAMP + 0x40000 + 4*i}
            s_mov_b64 exec, 1
            """)
            self.vm.issue(self.a, f"buffer_store_dword v{vDbg}, off, s[{SRDW}:{SRDW+3}], s{r}", "mk")
            self.a("s_mov_b64 exec, -1\ns_nop 1")
    def emit(self, op, tag="st"):
        for o in op.split(";"):
            o = o.strip()
            if o.startswith(("global_", "buffer_")): self.vm.issue(self.a, o, tag)
            else: self.a(o)
    def free(self, s):
        o = self.owner[s]
        if o is None: return True
        if o[0] == "B": return o[1] <= self.lastbar - 1
        return o in self.xdone
    def cands(self, name):
        c = [s for s in range(10) if self.free(s)]
        if name[0] == "B" and name[1] >= self.cfg.get("avoid_from", 23): c = [s for s in reversed(c) if s not in (7, 8)]
        return c
    def alloc(self, name, want=None):
        c = self.cands(name) if want is None else [s for s in range(10) if self.free(s) and s == want]
        assert c, ("no free slot", name, self.owner, self.lastbar)
        s = c[0]; self.owner[s] = name; self.slot[name] = s
        return s

    def pos_ops(self, f, d):
        t = sA + 4
        return [f"s_lshr_b32 s{t}, s{f}, 2", f"s_mul_i32 s{t}, s{t}, 6", f"s_lshl_b32 s{d}, s{f}, 1", f"s_add_u32 s{t}, s{t}, s{d}",
                f"s_sub_u32 s{t+1}, s{f}, 16", f"s_mul_i32 s{t+1}, s{t+1}, {DIV3}", f"s_lshr_b32 s{t+1}, s{t+1}, 16", f"s_lshl_b32 s{t+1}, s{t+1}, 3",
                f"s_add_u32 s{t+1}, s{t+1}, s{d}", f"s_sub_u32 s{t+1}, s{t+1}, 24",
                f"s_cmp_lt_u32 s{f}, 16; s_cselect_b32 s{d}, s{t}, s{t+1}"]
    def f_params(self, P, code):
        t = sA
        return lines(f"""
        s_mov_b32 s{P+3}, 0x20000
        s_cmp_lt_u32 s{sWave}, 2; s_cselect_b32 s{P}, s{pG}, s{pU}; s_cselect_b32 s{P+1}, s{pG+1}, s{pU+1}
        s_cmp_lt_u32 s{code}, 27; s_cselect_b32 s{P+2}, {640*3456}, 0
        s_movk_i32 s{P+4}, 3456
        s_lshl_b32 s{P+5}, s{code}, 7
        s_mul_i32 s{P+6}, s{sRot}, {64*3456}
        """) + self.pos_ops(code, P + 7) + lines(f"""
        s_lshl_b32 s{t}, s{sMb}, 1
        s_lshr_b32 s{t+1}, s{sWave}, 1
        s_add_u32 s{t}, s{t}, s{t+1}
        s_mul_i32 s{t}, s{t}, 56
        s_add_u32 s{P+7}, s{P+7}, s{t}
        s_lshl_b32 s{P+7}, s{P+7}, 12
        s_and_b32 s{t+1}, s{sWave}, 1
        s_lshl_b32 s{t+1}, s{t+1}, 11
        s_add_u32 s{P+7}, s{P+7}, s{t+1}
        """)
    def q_params(self, P, q):
        t = sA
        return lines(f"""
        s_mov_b32 s{P+3}, 0x20000
        s_mov_b32 s{P}, s{pQKV}
        s_mov_b32 s{P+1}, s{pQKV+1}
        s_movk_i32 s{P+4}, 3840
        s_lshr_b32 s{t}, s{sWave}, 1
        s_lshl_b32 s{P+5}, s{q}, 1
        s_add_u32 s{P+5}, s{P+5}, s{t}
        s_lshl_b32 s{P+5}, s{P+5}, 7
        s_mul_i32 s{P+6}, s{sRot}, {64*3840}
        s_lshl_b32 s{t}, s{sMb}, 2
        s_add_u32 s{t}, s{t}, s{sWave}
        s_mul_i32 s{t}, s{t}, 122880
        s_lshl_b32 s{t+1}, s{q}, 13
        s_add_u32 s{t}, s{t}, s{t+1}
        s_add_u32 s{t}, s{t}, {WS_QKV}
        s_cmp_lt_u32 s{q}, 15; s_cselect_b32 s{P+2}, {640*3840}, 0; s_cselect_b32 s{P+7}, s{t}, s{sOOB}
        """)
    def pack_params(self):
        P = PK; t = sA
        r = lines(f"""
        s_mov_b32 s{P+3}, 0x20000
        s_mov_b32 s{t+2}, {640*1280}
        s_cmp_lt_u32 s2, 135; s_cselect_b32 s{P}, s{pDN}, s{pWO}; s_cselect_b32 s{P+1}, s{pDN+1}, s{pWO+1}; s_cselect_b32 s{P+2}, {1728*1280}, s{t+2}; s_cselect_b32 s{t}, 0, 135
        s_sub_u32 s{t}, s2, s{t}
        s_mul_i32 s{t+2}, s{t}, {DIV5}
        s_lshr_b32 s{t+2}, s{t+2}, 16
        s_mul_i32 s{t+3}, s{t+2}, 5
        s_sub_u32 s{t+1}, s{t}, s{t+3}
        s_mul_i32 s{P+4}, s{t+2}, {64*1280}
        s_lshl_b32 s{t+3}, s{t+1}, 8
        s_add_u32 s{P+4}, s{P+4}, s{t+3}
        s_lshr_b32 s{t+3}, s{sWave}, 1
        s_lshl_b32 s{t+3}, s{t+3}, 7
        s_add_u32 s{P+4}, s{P+4}, s{t+3}
        """) + self.pos_ops(t + 2, t + 3) + lines(f"""
        s_lshl_b32 s{t+2}, s{t+2}, 1
        s_mov_b32 s{t}, {WS_WO}
        s_movk_i32 s{t+6}, 100
        s_cmp_lt_u32 s2, 135; s_cselect_b32 s{t+3}, s{t+3}, s{t+2}; s_cselect_b32 s{t}, {WS_WD}, s{t}; s_cselect_b32 s{t+6}, 280, s{t+6}
        s_and_b32 s{t+2}, s{sWave}, 1
        s_add_u32 s{t+3}, s{t+3}, s{t+2}
        s_mul_i32 s{t+3}, s{t+3}, 5120
        s_add_u32 s{t}, s{t}, s{t+3}
        s_cmp_lt_u32 s2, 185; s_cselect_b32 s{P+2}, s{P+2}, 0; s_cselect_b32 s{t}, s{t}, s{sOOB}
        s_lshl_b32 s{t+1}, s{t+1}, 3
        s_and_b32 s{t+2}, s{sWave}, 2
        s_lshl_b32 s{t+2}, s{t+2}, 1
        s_add_u32 s{t+1}, s{t+1}, s{t+2}
        s_sub_u32 s{t+6}, s{t+6}, 5
        """)
        for ch in range(4):
            r += lines(f"""
            s_add_u32 s{t+2}, s{t+1}, {ch}
            s_mul_i32 s{t+3}, s{t+2}, {DIV5}
            s_lshr_b32 s{t+3}, s{t+3}, 16
            s_mul_i32 s{t+3}, s{t+3}, s{t+6}
            s_add_u32 s{t+3}, s{t+3}, s{t+2}
            s_lshl_b32 s{t+3}, s{t+3}, 10
            s_add_u32 s{P+5+ch}, s{t+3}, s{t}
            """)
        return r
    def p2_params(self):
        t = sA
        if self.cfg.get("p2x") == 2:
            return lines(f"""
            s_lshr_b32 s{t}, s{sJ}, 1
            s_add_u32 s{sNb}, s{sMb}, s{t}
            s_and_b32 s{sNb}, s{sNb}, 3
            s_lshl_b32 s{t}, s{sHalf}, 2
            s_or_b32 s{sNb}, s{sNb}, s{t}
            s_and_b32 s{t}, s{sJ}, 1
            s_lshl_b32 s{sMb64}, s{sMb}, 1
            s_add_u32 s{sMb64}, s{sMb64}, s{t}
            s_lshl_b32 s{t}, s{t}, 2
            s_lshl_b32 s{sHalf}, 0x0f0f0f0f, s{t}
            """) + self.p2_params0()[5:]
        if self.cfg.get("p2x"):
            r = self.p2_params0()[5:]
            return lines(f"""
            s_add_u32 s{sNb}, s{sMb}, s{sJ}
            s_and_b32 s{sNb}, s{sNb}, 3
            s_lshl_b32 s{t}, s{sHalf}, 2
            s_or_b32 s{sNb}, s{sNb}, s{t}
            s_lshr_b32 s{t}, s{sJ}, 2
            s_lshl_b32 s{sMb64}, s{sMb}, 1
            s_add_u32 s{sMb64}, s{sMb64}, s{t}
            s_lshl_b32 s{t}, s{t}, 4
            s_lshl_b32 s{sHalf}, 0xffff, s{t}
            """) + r
        return self.p2_params0()
    def p2_params0(self):
        t = sA
        return lines(f"""
        s_lshl_b32 s{sNb}, s{sMb}, {0 if self.cfg.get("map8") else 1}
        s_add_u32 s{sNb}, s{sNb}, s{sJ}
        s_and_b32 s{sNb}, s{sNb}, {3 if self.cfg.get("map8") else 7}
        s_and_b32 s{t}, s{sJ}, {4 if self.cfg.get("map8") else 0}
        s_or_b32 s{sNb}, s{sNb}, s{t}
        s_mul_i32 s{t}, s{sWave}, 14
        s_mul_i32 s{sAb}, s{sMb64}, 56
        s_add_u32 s{sAb}, s{sAb}, s{t}
        s_lshl_b32 s{sAb}, s{sAb}, 12
        s_mul_i32 s{sBb}, s{sNb}, 56
        s_add_u32 s{sBb}, s{sBb}, s{t}
        s_mul_i32 s{sBb}, s{sBb}, 5120
        s_add_u32 s{sBb}, s{sBb}, {WS_WD}
        s_cmp_lt_u32 s{sWave}, 3; s_cselect_b32 s{sAb2}, s{sAb}, s{sOOB}; s_cselect_b32 s{sBb2}, s{sBb}, s{sOOB}
        s_mul_i32 s{t}, s{sMb64}, 81920
        s_add_u32 s{t}, s{t}, {WS_O}
        s_mul_i32 s{sOld}, s{sWave}, 20480
        s_add_u32 s{sOld}, s{sOld}, s{t}
        s_mul_i32 s{sOst}, s{sNb}, 10
        s_add_u32 s{sOst}, s{sOst}, s{sWave}
        s_lshl_b32 s{sOst}, s{sOst}, 8
        s_add_u32 s{sOst}, s{sOst}, s{t}
        s_cmp_lt_u32 s{sWave}, 2; s_cselect_b32 s{sOst2}, s{sOst}, s{sOOB}
        s_mul_i32 s{sWOb}, s{sNb}, 102400
        s_add_u32 s{sWOb}, s{sWOb}, {WS_WO}
        s_add_u32 s{sWOb}, s{sWOb}, s{sM0}
        s_lshl_b32 s{sKV}, s{sNb}, 2
        s_add_u32 s{sKV}, s{sKV}, s{sWave}
        s_mul_i32 s{sKV}, s{sKV}, 1280
        s_add_u32 s{sKV}, s{sKV}, {WS_QKV}
        s_lshl_b32 s{sXo}, s{sMb64}, 2
        s_add_u32 s{sXo}, s{sXo}, s{sWave}
        s_mul_i32 s{sXo}, s{sXo}, {16*1280}
        s_mul_i32 s{t}, s{sNb}, 160
        s_add_u32 s{sXo}, s{sXo}, s{t}
        s_lshl_b32 s{sFl0}, s{sMb}, 9
        s_add_u32 s{sFl0}, s{sFl0}, {WS_FLAG}
        s_max_u32 s{sFl1}, s{sMb}, 1
        s_lshl_b32 s{sFl1}, s{sFl1}, 9
        s_add_u32 s{sFl1}, s{sFl1}, {WS_FLAG - 512}
        s_lshl_b32 s{sFlG}, s{sWave}, 11
        s_add_u32 s{sFlG}, s{sFlG}, {WS_FLAG}
        s_lshl_b32 s{t}, s{sMb64}, 1
        v_lshrrev_b32 v{vQa}, 5, v0
        v_add_u32 v{vQa}, s{t}, v{vQa}
        v_mul_u32_u24 v{vQa}, 122880, v{vQa}
        v_and_b32 v{vKa}, 31, v0
        v_lshl_add_u32 v{vQa}, v{vKa}, 3, v{vQa}
        v_add_u32 v{vKa}, 8, v0
        v_lshrrev_b32 v{vT}, 4, v{vKa}
        v_add_u32 v{vT}, s{t}, v{vT}
        v_max_u32 v{vT}, 1, v{vT}
        v_subrev_u32 v{vT}, 1, v{vT}
        v_mul_u32_u24 v{vT}, 122880, v{vT}
        v_and_b32 v{vKa}, 15, v{vKa}
        v_lshl_add_u32 v{vKa}, v{vKa}, 4, v{vT}
        """)
    def switch_ops(self, P):
        t = sA
        return [f"v_mad_u32_u24 v{vLd}, v{vRow}, s{P+4}, v{vCol}",
                f"s_lshl_b32 s{sStep}, s{P+4}, 6",
                f"s_lshl_b32 s{t}, s{P+4}, 3",
                f"s_sub_u32 s{t}, s{t}, 1024",
                f"v_add_u32 v{vLd}, s{P+5}, v{vLd}",
                f"s_mul_i32 s{sWrap}, s{sStep}, 10",
                f"s_mov_b32 s{sSoff}, s{P+6}",
                f"v_xor_b32 v{vLd+1}, 64, v{vLd}",
                f"v_add_u32 v{vLd+1}, s{t}, v{vLd+1}",
                f"s_lshl_b32 s{t}, s{t}, 1",
                f"v_add_u32 v{vLd+2}, s{t}, v{vLd}",
                f"v_add_u32 v{vLd+3}, s{t}, v{vLd+1}"]
    def dma_items(self, g):
        P = PB[g // 10]; slot = self.alloc(("B", g))
        it = [("op", f"s_add_u32 m0, s{sM0}, {slot*16384}")]
        if g % 10 == 0 and g > 0: it += [("op", o) for o in self.switch_ops(P)]
        elif g % 10: it.append(("op", f"s_add_u32 s{sSoff}, s{sSoff}, s{sStep}; s_cmp_eq_u32 s{sSoff}, s{sWrap}; s_cselect_b32 s{sSoff}, 0, s{sSoff}"))
        it += [("ld", f"buffer_load_dwordx4 v{vLd+j}, s[{P}:{P+3}], s{sSoff} offen offset:{1024*j} lds", f"B{g}") for j in range(4)]
        return it
    def pop_ops(self):
        p = self.pend
        while p and p[0][0] != "ld": self.emit(p.pop(0)[1])
    def pop_ld(self):
        a = self.a; p = self.pend
        self.pop_ops()
        if p:
            if " m0," in a.lines[-1]: a("s_nop 0")
            _, l, tag = p.pop(0); self.vm.issue(a, l, tag)
    def tr_reads(self, G):
        g, s = G >> 2, G & 3
        slot = self.slot[("B", g)]; reg = slot >> 2
        o = (slot & 3) * 16384 + (s & 1) * 8192 + (s >> 1) * 4096
        r = []
        for t in range(4):
            b = WF + 16 * (G % NWB) + 4 * t
            r += [f"ds_read_b64_tr_b16 a[{b}:{b+1}], v{vTr+4*reg+t} offset:{o}",
                  f"ds_read_b64_tr_b16 a[{b+2}:{b+3}], v{vTr+4*reg+t} offset:{o+512}"]
        return r
    def center_ops(self, stage):
        x = XB + 16 * stage; t = EP
        d = []
        for i in range(16):
            d.append(f"v_dot2_f32_bf16 v{t+2*i}, v{x+i}, s{sLo}, v{vNegM + ((i >> 2) & 1)}")
            d.append(f"v_dot2_f32_bf16 v{t+2*i+1}, v{x+i}, s{sHi}, v{vNegM + ((i >> 2) & 1)}")
        c = [f"v_cvt_pk_bf16_f32 v{x+i}, v{t+2*i}, v{t+2*i+1}" for i in range(16)]
        return d, c
    def epi_f(self, acc, so):
        ops = []; sts = []; nb = self.cfg["stb"]
        for t in range(4):
            g = EP + 32 * (t & 1); u = g + 8; e = g + 16; pk = g + 24 + 4 * (t >> 1)
            A = acc + 16 * t
            for i in range(8): ops.append(f"v_accvgpr_read_b32 v{g+i}, a{A+i}")
            for i in range(8): ops.append(f"v_mul_f32 v{e+i}, v{vC1+(t&1)}, v{g+i}")
            for i in range(8):
                ops.append(f"v_exp_f32 v{e+i}, v{e+i}")
                ops.append(f"v_accvgpr_read_b32 v{u+i}, a{A+8+i}")
            for i in range(8): ops.append(f"v_fma_f32 v{e+i}, v{e+i}, v{vD2+(t&1)}, v{vD2+(t&1)}")
            for i in range(8):
                ops.append(f"v_rcp_f32 v{e+i}, v{e+i}")
                ops.append(f"v_mul_f32 v{g+i}, v{g+i}, v{u+i}")
            for i in range(8): ops.append(f"v_mul_f32 v{g+i}, v{g+i}, v{e+i}")
            for i in range(4): ops.append(f"v_cvt_pk_bf16_f32 v{pk+i}, v{g+2*i}, v{g+2*i+1}")
            if t == 2: sts.append(f"s_add_u32 s{so}, s{so}, 4096")
            sts.append(f"buffer_store_dwordx4 v[{pk}:{pk+3}], v{vL16}, s[{SRDW}:{SRDW+3}], s{so} offen offset:{(t&1)*1024} sc1")
            if (t + 1) % nb == 0:
                ops.append("; ".join(sts)); sts = []
        return ops
    def epi_f_tail(self, acc, so):
        ops = []
        p2 = lambda r: f"v[{r}:{r+1}]"
        for t in range(4):
            g = EP + 32 * (t & 1); u = g + 8; e = g + 16; pk = g + 24
            A = acc + 16 * t
            for i in range(8): ops.append(f"v_accvgpr_read_b32 v{g+i}, a{A+i}")
            for i in range(4): ops.append(f"v_pk_mul_f32 {p2(e+2*i)}, {p2(vC1)}, {p2(g+2*i)} op_sel:[{t&1},0] op_sel_hi:[{t&1},1]")
            for i in range(8):
                ops.append(f"v_exp_f32 v{e+i}, v{e+i}")
                ops.append(f"v_accvgpr_read_b32 v{u+i}, a{A+8+i}")
            for i in range(4): ops.append(f"v_pk_fma_f32 {p2(e+2*i)}, {p2(e+2*i)}, {p2(vD2)}, {p2(vD2)} op_sel:[0,{t&1},{t&1}] op_sel_hi:[1,{t&1},{t&1}]")
            for i in range(8): ops.append(f"v_rcp_f32 v{e+i}, v{e+i}")
            for i in range(4): ops.append(f"v_pk_mul_f32 {p2(g+2*i)}, {p2(g+2*i)}, {p2(u+2*i)}")
            for i in range(4): ops.append(f"v_pk_mul_f32 {p2(g+2*i)}, {p2(g+2*i)}, {p2(e+2*i)}")
            for i in range(4): ops.append(f"v_cvt_pk_bf16_f32 v{pk+i}, v{g+2*i}, v{g+2*i+1}")
            if t == 2: ops.append(f"s_add_u32 s{so}, s{so}, 4096")
            ops.append(f"buffer_store_dwordx4 v[{pk}:{pk+3}], v{vL16}, s[{SRDW}:{SRDW+3}], s{so} offen offset:{(t&1)*1024} sc1")
        return ops
    def epi_q(self, acc, so):
        ops = [f"s_add_u32 s{so-1}, s{so}, 4096"]; sts = []; nb = self.cfg["stb"]
        for t in range(4):
            g = EP; pk = EP + 16 + 8 * t
            A = acc + 16 * t
            for i in range(16): ops.append(f"v_accvgpr_read_b32 v{g+i}, a{A+i}")
            for i in range(16): ops.append(f"v_mul_f32 v{g+i}, v{vR[t&1]}, v{g+i}")
            for i in range(8): ops.append(f"v_cvt_pk_bf16_f32 v{pk+i}, v{g+2*i}, v{g+2*i+1}")
            for q in range(4):
                sts.append(f"buffer_store_dwordx2 v[{pk+2*q}:{pk+2*q+1}], v{vSF}, s[{SRDW}:{SRDW+3}], s{so-(q>>1)} offen offset:{(2*(t>>1)+(q&1))*1024 + (t&1)*128} sc1")
            if (t + 1) % nb == 0:
                if self.cfg.get("stq", True): ops.append("; ".join(sts))
                else: ops += sts
                sts = []
        return ops
    def publish(self, level, after):
        a = self.a
        for tg in after: self.vm.wait(a, tg)
        a(f"v_mov_b64 v[{self.vPub}:{self.vPub+1}], s[{sTok}:{sTok+1}]")
        a(f"s_add_u32 s{sA+8}, s{sFlag}, {level*8192}")
        a("s_mov_b64 exec, 1")
        self.vm.issue(a, f"buffer_store_dwordx2 v[{self.vPub}:{self.vPub+1}], off, s[{SRDW}:{SRDW+3}], s{sA+8} sc1", "fl")
        a("s_mov_b64 exec, -1")
    def retouch(self, kind, so=None):
        if kind not in self.cfg.get("rt", ""): return
        a = self.a; r = 88 if kind == "P" else self.vPub - 2
        if kind == "P":
            a(f"v_lshlrev_b32 v{r}, 7, v0\ns_mov_b64 exec, 0xff")
            for ch in range(4): self.vm.issue(a, f"buffer_load_dword v{r+1}, v{r}, s[{SRDW}:{SRDW+3}], s{PK+5+ch} offen", "rt")
            a("s_mov_b64 exec, -1")
        elif kind == "Q":
            a(f"v_lshlrev_b32 v{r}, 7, v0")
            self.vm.issue(a, f"buffer_load_dword v{r}, v{r}, s[{SRDW}:{SRDW+3}], s{so} offen", "rt")
        else:
            a(f"v_and_b32 v{r}, 16, v0\nv_add_u32 v{r}, v{r}, v0\nv_lshlrev_b32 v{r}, 7, v{r}\ns_sub_u32 s{sA+8}, s{so}, 4096\ns_mov_b32 exec_hi, 0")
            self.vm.issue(a, f"buffer_load_dword v{r}, v{r}, s[{SRDW}:{SRDW+3}], s{sA+8} offen", "rt")
            a("s_mov_b32 exec_hi, -1")
    def flag_ld(self, reg, soff, level, off, sc):
        return [f"s_add_u32 s{sA+8}, s{soff}, {level*8192}",
                f"buffer_load_dwordx2 v[{reg}:{reg+1}], v{vL8}, s[{SRDW}:{SRDW+3}], s{sA+8} offen offset:{off} {sc}"]
    def flag_load(self, reg, soff, tag, level, off=0):
        l = self.flag_ld(reg, soff, level, off, "")
        self.a(l[0]); self.vm.issue(self.a, l[1], tag)
    def flag_check(self, reg, soff, tag, level, half=False, off=0):
        a = self.a; L = a.newlabel("fc")
        self.vm.wait(a, tag)
        test = f"v_cmp_ne_u64 vcc, s[{sTok}:{sTok+1}], v[{reg}:{reg+1}]\n"
        if half and self.cfg.get("p2x"): test += f"s_nop 0\ns_or_b32 s{sA+8}, vcc_lo, vcc_hi\ns_and_b32 s{sA+8}, s{sA+8}, s{sHalf}"
        elif half: test += f"s_cmp_eq_u32 s{sHalf}, 0\ns_cselect_b32 s{sA+8}, vcc_lo, vcc_hi\ns_cmp_lg_u32 s{sA+8}, 0"
        else: test += "s_nop 0\ns_cmp_lg_u64 vcc, 0"
        a(test)
        a(f"s_cbranch_scc1 {L}_slow")
        a.label(f"{L}_ok")
        l = self.flag_ld(reg, soff, level, off, "sc1")
        self.slow.append(f"""
        {L}_slow:
        s_mov_b32 s{sA+9}, 0
        {L}_spin:
        {l[0]}
        {l[1]}
        s_add_u32 s{sA+9}, s{sA+9}, 1
        s_cmp_gt_u32 s{sA+9}, {self.cfg["spin"]}
        s_waitcnt vmcnt(0)
        s_cbranch_scc1 {L}_ok
        {test}
        s_cbranch_scc0 {L}_ok
        s_sleep {self.cfg.get("sleep", 4)}
        s_branch {L}_spin
        """)

    def body(self, T, work, ntask, wrange=(4, 156), center=False, extra=None, vq=None, vq1=1, vq2=1, before=None):
        a = self.a; cfg = self.cfg; acc = ACC[T & 1]; LA = cfg["LA"]
        ngap = 160
        per = [[] for _ in range(ngap)]
        def cost(op):
            if not isinstance(op, str): return 3.0
            if op.startswith(("v_exp", "v_rcp")): return 2.0
            if op.startswith("buffer_"): return 3.0 * (1 + op.count(";"))
            return 1.0 + op.count(";")
        def is_bar(S):
            n1 = 10 * T + (S >> 2) + 1
            if (S & 3) != 1 or n1 >= 10 * ntask: return False
            return (n1 % 2 == 0) if cfg["bar2"] else True
        cap = []
        for g in range(ngap):
            c = cfg["cap"] - ([3, 3, 2, 0] if is_bar(g >> 2) else cfg["rpat"])[g & 3]
            if (g & 3) == cfg["dmagap"] or ((g & 3) == 0 and vq): c -= 2.5
            if (g & 3) == 3: c -= 1
            if (g & 3) == 3 and is_bar(g >> 2): c = 0
            cap.append(max(c, 0.0))
        if center:
            for st in range(cfg["nc"], 10):
                d, c = self.center_ops(st)
                base = 16 * (st - 1)
                per[base] += d
                cg = [base + x for x in (1, 3, 4, 5, 8, 9, 11, 12, 13)]
                for i, op in enumerate(c): per[cg[i * len(cg) // 16]].append(op)
        used = lambda g: sum(cost(o) for o in per[g])
        self.ends = {}
        for g00, fn in (extra or {}).items():
            if not isinstance(fn, list): per[g00].append(fn)
        for g00, fn in (extra or {}).items():
            if isinstance(fn, list):
                g = g00; room = 0.0
                for op in fn:
                    while room <= 0:
                        room = cap[g] - used(g); g += 1
                    per[g - 1].append(op); room -= cost(op)
                self.ends[g00] = g - 1
        for a_, b_ in (before or []): assert self.ends[a_] < b_, (a_, self.ends[a_], b_)
        if work:
            g0, g1 = wrange
            cap = [max(cap[g] - used(g), 0.0) for g in range(ngap)]
            scale = sum(cost(o) for o in work) / sum(cap[g0:g1])
            if cfg.get("verbose"): print("body", T, "work scale", scale)
            g = g0; room = cap[g] * scale
            for op in work:
                while room <= 0 and g < g1 - 1:
                    g += 1; room += cap[g] * scale
                per[g].append(op); room -= cost(op)
        vq = list(vq or [])
        for S in range(40):
            i, s = S >> 2, S & 3
            G = 40 * T + S; n = 10 * T + i
            rd = self.tr_reads(G + 2) if G + 2 < 40 * ntask else []
            if s == 2:
                k = 0
                while self.next <= n + LA and self.next < 10 * ntask and k < 2 and self.cands(("B", self.next)):
                    self.pend += self.dma_items(self.next); self.next += 1; k += 1
            for t in range(4):
                gap = 4 * S + t
                if t == 0: a(f"s_waitcnt lgkmcnt({8 if G + 1 < 40 * ntask else 0})")
                w = WF + 16 * (G % NWB) + 4 * t; x = XB + 8 * (S >> 1)
                def mm(m):
                    A = acc + 16 * (2 * (t >> 1) + m) + 8 * (S & 1) + 4 * (t & 1)
                    return f"v_mfma_f32_16x16x32_bf16 a[{A}:{A+3}], a[{w}:{w+3}], v[{x+4*m}:{x+4*m+3}], {'0' if S < 2 else f'a[{A}:{A+3}]'}"
                a(mm(0)); l0_ = len(a.lines)
                pat = [3, 3, 2, 0] if is_bar(S) else cfg["rpat"]
                for _ in range(pat[t]):
                    if rd: a(rd.pop(0))
                nld = sum(1 for p_ in self.pend if p_[0] == "ld")
                if self.pend and (t == cfg["dmagap"] or (nld > 4 and t == 0)): self.pop_ld()
                elif vq and ((t == 0 and S % vq1 == 0) or (t == cfg["dmagap"] and not self.pend and S % vq2 == 0)):
                    for j_, it_ in enumerate(vq):
                        if it_[0](gap):
                            vq.pop(j_)[1](); break
                if t == cfg["dmagap"] - 1: self.pop_ops()
                if T == cfg.get("markT", 2) and gap % 16 == 9: self.mark(gap // 16)
                for op in per[gap]:
                    if callable(op): op()
                    else: self.emit(op, f"E{T-1}")
                fl_ = a.lines[l0_:]; cs_ = [5.0 if "buffer_" in l else 2.0 if ("v_exp" in l or "v_rcp" in l) else 1.0 for l in fl_]
                ok_ = [0]; dep = 0
                for j_, l in enumerate(fl_):
                    if "v_dot2" in l: break
                    if "exec" in l: dep = 0 if l.strip().endswith("-1") else 1
                    if "s_cbranch" in l and "_slow" not in l: dep = 2
                    if l.endswith(":") and dep == 2: dep = 0
                    if dep == 0 and "s_cbranch" not in l: ok_.append(j_ + 1)
                best = min(ok_, key=lambda p_: abs(sum(cs_[:p_]) - (sum(cs_) + (1 if t == 3 else 0)) * cfg["mid"])) if not any("v_dot2" in l for l in fl_) else ok_[-1]
                a.lines.insert(l0_ + best, "    " + mm(1))
                if t == 3 and is_bar(S):
                    last = n + 2 if cfg["bar2"] and n + 2 < 10 * ntask else n + 1
                    self.vm.wait(a, f"B{last}", 4)
                    a("s_barrier")
                    self.lastbar = n
            assert not rd
        return vq

    def att_loads(self, al=True):
        a = self.a
        out = []
        for kv in range(2):
            for i in range(5):
                def f(kv=kv, i=i):
                    assert not self.pend
                    a(f"s_add_u32 m0, s{sM0}, {(self.KS+kv)*16384 + i*640 - 256*i}")
                    if i == 0: a(f"s_add_u32 s{sA+6}, s{sKV}, {(kv+1)*40960}")
                    a("s_mov_b32 exec_hi, 0xff")
                    self.vm.issue(a, f"buffer_load_dwordx4 v{vKa}, s[{SRDW}:{SRDW+3}], s{sA+6} offen offset:{256*i} sc1 lds", "KV")
                    a("s_mov_b32 exec_hi, -1")
                out.append(f)
        for i in range(5):
            out.append(lambda i=i: self.vm.issue(a, f"buffer_load_dwordx2 v[{XB+2*i}:{XB+2*i+1}], v{vQa}, s[{SRDW}:{SRDW+3}], s{sKV} offen offset:{256*i} sc1", "KV"))
        return out
    def attention(self, inter):
        a = self.a; vm = self.vm
        Q = XB; AK = 1; AK2 = 2; RW = 3; L = 4; P = 236; O = 216
        kvb = [[196, 200, 204, 208, 212], [106, 110, 252, 12, 26]]
        code = []; e = code.append
        def rd(n):
            m = n & 3
            if n == 4:
                e(f"v_add_u32 v{AK}, 16384, v{AK}"); e(f"v_add_u32 v{AK2}, 16384, v{AK2}")
            for i in range(5):
                b = kvb[n & 1][i]; o = (i % 3) * 80 + 16 - 4 * m
                e(f"ds_read2_b64 v[{b}:{b+3}], v{AK if i < 3 else AK2} offset0:{o} offset1:{o-2}")
        a(f"""
        s_add_u32 s{sA}, s{sM0}, {self.KS*16384}
        v_add_u32 v{AK}, s{sA}, v{vL8}
        v_add_u32 v{AK2}, 1920, v{AK}
        s_mov_b32 s{sA+1}, 0x{C_SM:x}
        """)
        vm.wait(a, "KV", 15)
        self.mark(23)
        rd(0)
        for n in range(8):
            m = n & 3; B = kvb[n & 1]
            e("s_waitcnt lgkmcnt(0)")
            if n < 4:
                for i in range(10):
                    for h in range(2):
                        src = f"v{Q+i}, v{B[i>>1] + 2*h + (i&1)}"
                        e(f"v_dot2_f32_bf16 v{L+2*m+h}, {src}, 0" if i == 0 else f"v_dot2c_f32_bf16 v{L+2*m+h}, {src}")
                    if i == 0: rd(n + 1)
            else:
                if n + 1 < 8: rd(n + 1)
                for h in range(2):
                    w = 2 * m + h
                    for i in range(10):
                        for j in range(2):
                            src = f"v{B[i>>1] + 2*h + (i&1)}, v{P+2*w+j}"
                            e(f"v_dot2_f32_bf16 v{O+2*i+j}, {src}, 0" if w == 0 else f"v_dot2c_f32_bf16 v{O+2*i+j}, {src}")
            if n == 3:
                Lm = a.newlabel("am")
                blk = [f"s_cmp_lg_u32 s{sMb64}, 0", f"s_cbranch_scc1 {Lm}", f"v_mov_b32 v{P}, 0xce6e6b28"]
                for ww in range(1, 8):
                    blk += [f"v_cmp_gt_u32 vcc, {2*ww}, v0", "s_nop 1", f"v_cndmask_b32 v{L+ww}, v{L+ww}, v{P}, vcc"]
                blk += [f"{Lm}:"]
                e("\n".join(blk))
                e(f"v_max3_f32 v{P}, v{L}, v{L+1}, v{L+2}")
                e(f"v_max3_f32 v{P}, v{P}, v{L+3}, v{L+4}")
                e(f"v_max3_f32 v{P}, v{P}, v{L+5}, v{L+6}")
                e(f"v_max_f32 v{P}, v{P}, v{L+7}")
                e(f"v_mul_f32 v{P}, s{sA+1}, v{P}")
                for ww in range(8): e(f"v_fma_f32 v{L+ww}, v{L+ww}, s{sA+1}, -v{P}")
                for ww in range(8): e(f"v_exp_f32 v{L+ww}, v{L+ww}")
                e(f"v_pk_add_f32 v[{P}:{P+1}], v[{L}:{L+1}], v[{L+2}:{L+3}]")
                e(f"v_pk_add_f32 v[{P+2}:{P+3}], v[{L+4}:{L+5}], v[{L+6}:{L+7}]")
                e(f"v_pk_add_f32 v[{P}:{P+1}], v[{P}:{P+1}], v[{P+2}:{P+3}]")
                e(f"v_add_f32 v{P}, v{P}, v{P+1}")
                e(f"v_rcp_f32 v{P}, v{P}\ns_nop 0")
                for ww in range(4): e(f"v_pk_mul_f32 v[{L+2*ww}:{L+2*ww+1}], v[{L+2*ww}:{L+2*ww+1}], v[{P}:{P+1}] op_sel_hi:[1,0]")
                for ww in range(8):
                    e(f"v_cvt_pk_bf16_f32 v{P+2*ww}, v{L+ww}, 0")
                    e(f"v_cvt_pk_bf16_f32 v{P+2*ww+1}, 0, v{L+ww}")
        e(f"s_mul_i32 s{sA}, s{sWave}, 2560\ns_add_u32 s{sA}, s{sA}, {(self.KS+2)*16384}\nv_add_u32 v{AK}, s{sA}, v{vL8}")
        e(f"s_mul_i32 s{sA}, s{sWave}, 3\ns_and_b32 s{sA}, s{sA}, 13\ns_min_u32 s{sA}, s{sA}, 5\ns_lshl_b32 s{sA}, s{sA}, 9\ns_add_u32 s{sA}, s{sA}, {(self.KS+2)*16384}\nv_add_u32 v{AK2}, s{sA}, v{vL8}")
        e(f"v_lshrrev_b32 v{RW}, 4, v0"); e(f"v_mul_u32_u24 v{RW}, {20480-256}, v{RW}"); e(f"v_add_u32 v{RW}, v{RW}, v{vL16}")
        for i in range(5):
            e(f"v_cvt_pk_bf16_f32 v{Q+2*i}, v{O+4*i}, v{O+4*i+1}")
            e(f"v_cvt_pk_bf16_f32 v{Q+2*i+1}, v{O+4*i+2}, v{O+4*i+3}")
            e(f"ds_write_b64 v{AK}, v[{Q+2*i}:{Q+2*i+1}] offset:{512*i}")
        inter = list(inter); n = len(code); k = len(inter); j = 0
        for i, ins in enumerate(code):
            a(ins)
            while j < k and j < (i + 1) * k // (n - 10):
                inter[j](); j += 1
        self.mark(25)
        if self.cfg["nokb"]: vm.wait(a, "WO", 25)
        a("s_waitcnt lgkmcnt(0)\ns_barrier")
        for r in range(3): a(f"ds_read2st64_b64 v[{4+4*r}:{7+4*r}], v{AK2} offset0:{8*r} offset1:{8*r+2}")
        return [lambda r=r: (a(f"s_waitcnt lgkmcnt({2-r})"),
                             vm.issue(a, f"buffer_store_dwordx4 v[{4+4*r}:{7+4*r}], v{RW}, s[{SRDW}:{SRDW+3}], s{sOst2 if r == 2 else sOst} offen offset:{1024*r} sc1", "O")) for r in range(3)]

    BSLOT = ["a176", "a196", "a216", "a236", "v116", "v136", "v156", "v176", "a64", "a84", "a104", "a128", "a148", "v96"]
    ASLOT = ["v32", "v48", "v64", "v80", "v196", "v216", "v32", "v48", "v64", "v80", "v196", "v32", "v48", "v64"]
    AEARLY = [0, 0, 0, 0, 0, 0, 1, 2, 3, 4, 5, 7, 8, 9]
    @staticmethod
    def rr(base, off, n=4):
        return f"{base[0]}[{int(base[1:])+off}:{int(base[1:])+off+n-1}]"
    def b_loads(self, k):
        a = self.a; out = []
        for u in range(5):
            def f(u=u):
                if u == 0: a(f"s_add_u32 s{sGb}, s{sBb if k < 12 else sBb2}, {k*5120}")
                if u == 4: a(f"s_add_u32 s{sGb}, s{sGb}, 4096")
                self.vm.issue(a, f"buffer_load_dwordx4 {self.rr(self.BSLOT[k], 4*u)}, v{vL16}, s[{SRDW}:{SRDW+3}], s{sGb} offen offset:{1024*(u&3)} sc1", f"PB{k}")
            out.append(f)
        return out
    def a_loads(self, k):
        a = self.a; out = []
        for i in range(4):
            def f(i=i):
                if i == 0: a(f"s_add_u32 s{sGa}, s{sAb if k < 12 else sAb2}, {k*4096}")
                self.vm.issue(a, f"buffer_load_dwordx4 {self.rr(self.ASLOT[k], 4*i)}, v{vA[i]}, s[{SRDW}:{SRDW+3}], s{sGa} offen sc1", f"PA{k}")
            out.append(f)
        return out
    def wo_loads(self, s):
        a = self.a; out = []
        for j in range(4 if s < 6 else 1):
            def f(j=j):
                assert not self.pend
                if j == 0 and self.owner[s] != ("WO", s): self.alloc(("WO", s), s)
                if self.m0 != ("WO", s):
                    if s < 6:
                        a(f"s_add_u32 m0, s{sM0}, {s*16384}\ns_add_u32 s{sA+7}, s{sWOb}, {s*16384}")
                    else:
                        a(f"s_lshr_b32 s{sA+7}, s{sM0}, 2\ns_add_u32 m0, s{sA+7}, {6*16384}\ns_sub_u32 s{sA+7}, s{sWOb}, s{sM0}\ns_add_u32 s{sA+7}, s{sA+7}, m0")
                self.m0mark = (len(a.lines), ("WO", s))
                self.vm.issue(a, f"buffer_load_dwordx4 v{vL16}, s[{SRDW}:{SRDW+3}], s{sA+7} offen offset:{1024*j} sc1 lds", "WO")
            out.append(f)
        return out
    @property
    def m0(self):
        mk = getattr(self, "m0mark", None)
        if not mk: return None
        for l in self.a.lines[mk[0]:]:
            if " m0," in l or f"s{sA+7}," in l.split(",")[0] + "," and l.strip().startswith("s_") or l.endswith(("_join:", "_two:")): return None
        return mk[1]

    def build(self):
        a = self.a; cfg = self.cfg; label = self.label
        vm = self.vm
        sX = sA + 9
        a.begin_kernel(label)
        a(f"""
        s_cmp_ge_u32 s2, 256
        s_cbranch_scc1 {label}_end
        s_load_dwordx2 s[4:5], s[0:1], 0
        s_load_dwordx2 s[{pQKV}:{pQKV+1}], s[0:1], 8
        s_load_dwordx2 s[{pWO}:{pWO+1}], s[0:1], 16
        s_load_dwordx4 s[{pG}:{pG+3}], s[0:1], 32
        s_load_dwordx2 s[{pDN}:{pDN+1}], s[0:1], 48
        s_load_dwordx2 s[6:7], s[0:1], 56
        s_load_dwordx2 s[{pWS}:{pWS+1}], s[0:1], 72
        """)
        self.stamp(0)
        if self.stamps: a(f"s_memrealtime s[{sTok}:{sTok+1}]")
        NL = cfg.get("codelines", 11)
        a(f"""
        s_getpc_b64 s[{sA}:{sA+1}]
        s_lshr_b32 s{sA+2}, s2, 3
        s_mul_i32 s{sA+2}, s{sA+2}, {NL*128}
        v_lshlrev_b32 v{vT}, 7, v0
        v_add_u32 v{vT}, s{sA+2}, v{vT}
        v_min_u32 v{vT}, {label}_end-{label}-128, v{vT}
        v_cmp_gt_u32 vcc, {NL}, v0
        s_and_saveexec_b64 s[{sA+2}:{sA+3}], vcc
        s_cbranch_execz {label}_nt
        global_load_dword v95, v{vT}, s[{sA}:{sA+1}]
        {label}_nt:
        s_mov_b64 exec, -1
        v_lshrrev_b32 v{vT}, 6, v0
        v_and_b32 v0, 63, v0
        s_and_b32 s{sA}, s2, 7
        v_readfirstlane_b32 s{sWave}, v{vT}
        """)
        if cfg.get("map2"):
            a(f"""
            s_lshr_b32 s{sA+2}, s2, 7
            s_lshl_b32 s{sMb}, s{sA}, 1
            s_add_u32 s{sMb}, s{sMb}, s{sA+2}
            s_bfe_u32 s{sHalf}, s2, 0x10006
            s_bfe_u32 s{sJ}, s2, 0x30003
            s_lshl_b32 s{sA+3}, s{sA}, 2
            s_lshr_b32 s{sRot}, {cfg.get("rot2", 0x43210432)}, s{sA+3}
            s_and_b32 s{sRot}, s{sRot}, 15
            s_mul_i32 s{sA+3}, s{sA+2}, {cfg.get("rot2m", 5)}
            s_add_u32 s{sRot}, s{sRot}, s{sA+3}
            s_add_u32 s{sRot}, s{sRot}, s{sJ}
            s_lshl_b32 s{sA+3}, s{sHalf}, 1
            s_add_u32 s{sRot}, s{sRot}, s{sA+3}
            """)
        elif not cfg.get("map8"):
            a(f"""
            s_lshr_b32 s{sA+1}, s2, 3
            s_and_b32 s{sHalf}, s{sA}, 1
            s_lshr_b32 s{sA}, s{sA}, 1
            s_lshl_b32 s{sA}, s{sA}, 2
            s_lshr_b32 s{sA+2}, s{sA+1}, 3
            s_add_u32 s{sMb}, s{sA}, s{sA+2}
            s_and_b32 s{sJ}, s{sA+1}, 7
            s_lshl_b32 s{sRot}, s{sA+2}, 2
            s_lshr_b32 s{sRot}, {cfg["rotm"]}, s{sRot}
            s_and_b32 s{sRot}, s{sRot}, 15
            s_add_u32 s{sRot}, s{sRot}, s{sJ}
            s_lshr_b32 s{sA+3}, {cfg["rotx"]}, s{sA}
            s_and_b32 s{sA+3}, s{sA+3}, 15
            s_add_u32 s{sRot}, s{sRot}, s{sA+3}
            s_mul_i32 s{sA+3}, s{sHalf}, {cfg.get("roth", 0)}
            s_add_u32 s{sRot}, s{sRot}, s{sA+3}
            """)
        else:
            a(f"""
            s_lshr_b32 s{sA+2}, s2, 5
            s_and_b32 s{sMb}, s{sA}, 4
            s_lshl_b32 s{sMb}, s{sMb}, 1
            s_add_u32 s{sMb}, s{sMb}, s{sA+2}
            s_bfe_u32 s{sHalf}, s2, 0x10001
            s_bfe_u32 s{sA+1}, s2, 0x20003
            s_and_b32 s{sJ}, s2, 1
            s_lshl_b32 s{sJ}, s{sJ}, 2
            s_add_u32 s{sJ}, s{sJ}, s{sA+1}
            s_lshl_b32 s{sRot}, s{sA+1}, 2
            s_lshr_b32 s{sRot}, 0x7520, s{sRot}
            s_and_b32 s{sRot}, s{sRot}, 15
            s_lshl_b32 s{sA+3}, s{sA+2}, 2
            s_lshr_b32 s{sA+3}, {cfg.get("rot8", 0x43210210)}, s{sA+3}
            s_and_b32 s{sA+3}, s{sA+3}, 15
            s_add_u32 s{sRot}, s{sRot}, s{sA+3}
            s_lshr_b32 s{sA+3}, s{sA}, 2
            s_mul_i32 s{sA+3}, s{sA+3}, 5
            s_add_u32 s{sRot}, s{sRot}, s{sA+3}
            s_and_b32 s{sA+3}, s2, 1
            s_add_u32 s{sRot}, s{sRot}, s{sA+3}
            """)
        a(f"""
        s_lshl_b32 s{sM0}, s{sWave}, 12
        s_sub_u32 s{sA+3}, s{sRot}, 10
        s_min_u32 s{sRot}, s{sRot}, s{sA+3}
        s_lshl_b32 s{sX}, s{sRot}, 7
        s_lshl_b32 s{sA}, s{sMb}, 7
        s_lshl_b32 s{sA+1}, s{sWave}, 5
        s_add_u32 s{sA}, s{sA}, s{sA+1}
        s_mul_i32 s{sA}, s{sA}, 1280
        v_lshrrev_b32 v{vT}, 3, v0
        v_mul_u32_u24 v{vT}, 1280, v{vT}
        v_add_u32 v{vT}, s{sA}, v{vT}
        v_lshrrev_b32 v{vT+1}, 4, v0
        v_and_b32 v{vT+2}, 7, v0
        v_xor_b32 v{vT+1}, v{vT+1}, v{vT+2}
        v_xor_b32 v{vT+2}, 4, v{vT+1}
        v_lshl_add_u32 v{EP+4}, v{vT+1}, 4, v{vT}
        v_lshl_add_u32 v{EP+5}, v{vT+2}, 4, v{vT}
        v_add_u32 v{EP+5}, {8*1280-1024}, v{EP+5}
        v_add_u32 v{EP+6}, {2*(8*1280-1024)}, v{EP+4}
        v_add_u32 v{EP+7}, {2*(8*1280-1024)}, v{EP+5}
        s_mov_b32 s{SRDX+2}, {2048*1280}
        s_mov_b32 s{SRDX+3}, 0x20000
        s_mov_b32 m0, s{sM0}
        """)
        sS = sA + 7; sC = sA + 8
        setup = lines(f"""
        s_mov_b32 s{sOOB}, {OOB}
        s_lshl_b32 s{sS}, s{sHalf}, 3
        s_add_u32 s{sS}, s{sS}, s{sJ}
        v_lshrrev_b32 v{vRow}, 3, v0
        s_and_b32 s{sA}, s{sWave}, 1
        s_lshl_b32 s{sA}, s{sA}, 5
        v_add_u32 v{vRow}, s{sA}, v{vRow}
        v_bfe_u32 v{vT}, v0, 1, 2
        v_bfe_u32 v{vT+1}, v0, 4, 1
        v_xor_b32 v{vT}, v{vT}, v{vT+1}
        v_and_b32 v{vT+1}, 1, v0
        v_lshlrev_b32 v{vT+1}, 4, v{vT+1}
        v_lshl_add_u32 v{vCol}, v{vT}, 5, v{vT+1}
        s_add_u32 s{sC}, s{sS}, {cfg["qsh"]}
        s_and_b32 s{sC}, s{sC}, 15
        """) + self.q_params(PB[0], sC) + self.switch_ops(PB[0])
        ptr = [o for o in setup if f"s{pQKV}" in o or f"s{pQKV+1}" in o]
        for o in setup:
            if o not in ptr: self.emit(o)
        a(f"s_waitcnt lgkmcnt(0)\ns_mov_b32 s{SRDX}, s4\ns_mov_b32 s{SRDX+1}, s5")
        if self.stamps: a(f"s_mov_b32 s1, s{sTok}")
        setup = ptr + ([f"s_add_u32 s{pWS}, s{pWS}, {cfg['wsoff']}; s_addc_u32 s{pWS+1}, s{pWS+1}, 0"] if cfg.get("wsoff") else []) + lines(f"""
        s_add_u32 s{sA}, s{pWS}, {WS_EPOCH}; s_addc_u32 s{sA+1}, s{pWS+1}, 0
        s_load_dwordx2 s[{sTok}:{sTok+1}], s[{sA}:{sA+1}], 0
        """)
        n_first = len(setup)
        setup += lines(f"""
        s_mov_b32 s{sOne}, 0x3f803f80
        s_mov_b32 s{sLo}, 0x00003f80
        s_mov_b32 s{sHi}, 0x3f800000
        v_and_b32 v{vT}, 15, v0
        v_lshlrev_b32 v{vT+1}, 7, v{vT}
        v_add_u32 v{vT+1}, s{sM0}, v{vT+1}
        v_bfe_u32 v{vT}, v0, 1, 3
        v_lshrrev_b32 v{vT+2}, 4, v0
        v_xor_b32 v{vT}, v{vT}, v{vT+2}
        """)
        XA = EP + 8
        for s in range(2):
            setup.append(f"v_xor_b32 v{vT+2}, {4*s}, v{vT}")
            setup.append(f"v_lshl_add_u32 v{XA+s}, v{vT+2}, 4, v{vT+1}")
            setup.append(f"v_add_u32 v{XA+4+s}, 0x10000, v{XA+s}")
            setup.append(f"v_add_u32 v{XA+8+s}, 0x20000, v{XA+s}")
        setup += lines(f"""
        v_mov_b64 v[{vSum}:{vSum+1}], 0
        v_mov_b64 v[{vSum+2}:{vSum+3}], 0
        v_lshlrev_b32 v{vL16}, 4, v0
        v_lshlrev_b32 v{vL8}, 3, v0
        v_bfe_u32 v{vT}, v0, 4, 1
        v_bfe_u32 v{vT+1}, v0, 2, 2
        v_lshrrev_b32 v{vT+2}, 4, v0
        v_lshl_add_u32 v{vT+2}, v{vT+2}, 3, v{vT+1}
        v_lshlrev_b32 v{vT+2}, 7, v{vT+2}
        v_and_b32 v{EP}, 3, v0
        v_lshl_add_u32 v{vT+2}, v{EP}, 3, v{vT+2}
        v_lshrrev_b32 v{vT+1}, 1, v{vT+1}
        v_lshl_add_u32 v{vT}, v{vT}, 1, v{vT+1}
        """)
        for t in range(4):
            setup.append(f"v_xor_b32 v{vT+1}, {t}, v{vT}")
            setup.append(f"v_lshl_add_u32 v{vTr+t}, v{vT+1}, 5, v{vT+2}")
            setup.append(f"v_add_u32 v{vTr+4+t}, 0x10000, v{vTr+t}")
            setup.append(f"v_add_u32 v{vTr+8+t}, 0x20000, v{vTr+t}")
        setup += lines(f"""
        v_lshrrev_b32 v{vT}, 4, v0
        v_lshlrev_b32 v{vT}, 8, v{vT}
        v_and_b32 v{vT+1}, 15, v0
        v_lshl_add_u32 v{vSF}, v{vT+1}, 3, v{vT}
        s_mov_b32 s{SRDW}, s{pWS}
        s_mov_b32 s{SRDW+1}, s{pWS+1}
        s_mov_b32 s{SRDW+2}, {WS_SIZE}
        s_mov_b32 s{SRDW+3}, 0x20000
        s_lshl_b32 s{sMb64}, s{sMb}, 1
        s_add_u32 s{sMb64}, s{sMb64}, s{sHalf}
        s_lshl_b32 s{sFlag}, s{sMb}, 4
        s_add_u32 s{sFlag}, s{sFlag}, s{sS}
        s_lshl_b32 s{sFlag}, s{sFlag}, 2
        s_add_u32 s{sFlag}, s{sFlag}, s{sWave}
        s_lshl_b32 s{sFlag}, s{sFlag}, 3
        s_add_u32 s{sFlag}, s{sFlag}, {WS_FLAG}
        """) + (lines(f"""
        s_lshr_b32 s{sA}, s{sS}, 2
        s_sub_u32 s{sC}, s{sS}, s{sA}
        s_add_u32 s{sC}, s{sC}, 16
        s_and_b32 s{sA}, s{sS}, 3
        s_cmp_lt_u32 s{sA}, 3; s_cselect_b32 s{sC}, s{sC}, 31
        s_cmp_lt_u32 s{sC}, 27; s_cselect_b32 s{sThree}, 1, 0
        """) if cfg.get("map8") == 2 else lines(f"""
        s_mul_i32 s{sC}, s{sHalf}, 3
        s_add_u32 s{sC}, s{sC}, s{sJ}
        s_add_u32 s{sC}, s{sC}, 16
        s_add_u32 s{sA}, s{sS}, 5
        s_and_b32 s{sA}, s{sA}, 15
        s_cmp_lt_u32 s{sA}, 11; s_cselect_b32 s{sC}, s{sC}, 31; s_cselect_b32 s{sThree}, 1, 0
        """)) + lines(f"""
        """) + self.f_params(PB[1], sS) + self.f_params(PB[2], sC) + self.pack_params() + lines(f"""
        s_cmp_lt_u32 s2, 135; s_cselect_b32 s{sA+2}, 0, 8; s_cselect_b32 s{sA+3}, 16, 8
        v_lshrrev_b32 v{vT}, 2, v0
        v_lshrrev_b32 v{vT+1}, 5, v0
        v_mad_u32_u24 v{vT}, v{vT+1}, s{sA+2}, v{vT}
        """)
        for h in range(2):
            if h: setup.append(f"v_add_u32 v{vT}, s{sA+3}, v{vT}")
            setup += [f"v_bfe_u32 v{vT+1}, v{vT}, 1, 1", f"v_bfe_u32 v{vT+2}, v{vT}, 3, 1", f"v_lshl_add_u32 v{vT+1}, v{vT+2}, 1, v{vT+1}",
                      f"v_and_b32 v{vT+2}, 3, v0", f"v_lshlrev_b32 v{vT+2}, 3, v{vT+2}", f"v_lshl_add_u32 v{vT+2}, v{vT}, 7, v{vT+2}", f"v_add_u32 v{vT+2}, s{sM0}, v{vT+2}"]
            for ch in range(4):
                setup.append(f"v_xor_b32 v{PR+20+4*h+ch}, {ch}, v{vT+1}")
                setup.append(f"v_lshl_add_u32 v{PR+20+4*h+ch}, v{PR+20+4*h+ch}, 5, v{vT+2}")
        setup += [f"v_mul_u32_u24 v{PR+16}, 1280, v{vRow}", f"v_add_u32 v{PR+16}, v{vCol}, v{PR+16}"]
        setup += [f"v_xor_b32 v{PR+17}, 64, v{PR+16}", f"v_add_u32 v{PR+17}, {8*1280-1024}, v{PR+17}",
                  f"v_add_u32 v{PR+18}, {2*(8*1280-1024)}, v{PR+16}", f"v_add_u32 v{PR+19}, {2*(8*1280-1024)}, v{PR+17}"]
        setup += lines(f"""
        s_lshl_b32 s{sA}, s2, 1
        s_and_b32 s{sA+1}, s{sWave}, 1
        s_add_u32 s{sA}, s{sA}, s{sA+1}
        s_mul_i32 s{sA+1}, s{sA}, 14
        v_add_u32 v{vT}, s{sA+1}, v0
        v_mul_u32_u24 v{vT+1}, {(1<<20)//11+1}, v{vT}
        v_lshrrev_b32 v{vT+1}, 20, v{vT+1}
        v_mul_u32_u24 v{vT+1}, 2048, v{vT+1}
        v_lshl_add_u32 v94, v{vT}, 7, v{vT+1}
        s_lshr_b32 s{sDuty}, s2, 3
        s_and_b32 s{sDuty}, s{sDuty}, 3
        """) + self.p2_params()
        if cfg.get("verbose"): print("setup ops", len(setup), "first", n_first)
        order = list(cfg.get("order", ["X0", "X1", "X2", "X3", "X4", "X5", "X6", "X7", "X8", "X9", "B", "B", "B", "B"]))
        def queue_next():
            o = order.pop(0)
            if o[0] == "T":
                r0, n = {"Ta": (0, 8), "Tb": (256, 12), "Tc": (0, 4), "Td": (128, 16)}[o]
                self.emit(f"s_lshl_b32 s{sA+6}, s{sMb}, 1; s_and_b32 s{sA+5}, s{sWave}, 1; s_add_u32 s{sA+6}, s{sA+6}, s{sA+5}; s_mul_i32 s{sA+6}, s{sA+6}, {n}; "
                          f"s_lshl_b32 s{sA+5}, s{sRot}, 6; s_add_u32 s{sA+6}, s{sA+6}, s{sA+5}; s_add_u32 s{sA+6}, s{sA+6}, {r0}; v_add_u32 v90, s{sA+6}, v0; "
                          f"v_subrev_u32 v89, 640, v90; v_min_u32 v90, v89, v90; v_mul_u32_u24 v90, 3840, v90; s_mov_b64 exec, {(1<<n)-1}; "
                          f"buffer_load_dword v90, v90, s[{PB[0]}:{PB[0]+3}], s{PB[0]+5} offen; s_mov_b64 exec, -1", "T")
                if not order: return
                o = order.pop(0)
            if o == "B":
                self.pend += self.dma_items(self.next); self.next += 1
            else:
                i = int(o[1:]); sl = self.alloc(("X", i))
                if i: self.pend.append(("op", f"s_add_u32 m0, s{sM0}, {sl*16384}; s_add_u32 s{sX}, s{sX}, 128; s_cmp_eq_u32 s{sX}, 1280; s_cselect_b32 s{sX}, 0, s{sX}"))
                self.pend += [("ld", f"buffer_load_dwordx4 v{EP+4+j}, s[{SRDX}:{SRDX+3}], s{sX} offen offset:{1024*j} lds", f"X{i}") for j in range(4)]
        XW = cfg["XW"]; spl = cfg.get("spl", 12); done = 0
        for g in range(XW):
            if order[0] == "B": assert done >= n_first
            if g == cfg.get("tlbat", 1) and cfg.get("tlb"):
                G_ = cfg["tlb"]; L = a.newlabel("tl")
                bufs = [[(pG, 640*3456), (pWS, 0x1A00000)], [(pU, 640*3456), (6, 2048*1280)], [(pDN, 1728*1280), (pWO, 640*1280)], [(pQKV, 640*3840)]]
                for w_, bl_ in enumerate(bufs):
                    a(f"s_cmp_lg_u32 s{sWave}, {w_}\ns_cbranch_scc1 {L}_{w_}")
                    for ptr_, size in bl_:
                        g2 = max(G_, 21) if size > (64 << G_) else G_
                        n_ = min(64, (size >> g2) + 2)
                        a(f"v_lshlrev_b32 v93, {g2}, v0\nv_min_u32 v93, {size-4}, v93\ns_mov_b64 exec, {(1 << n_) - 1 if n_ < 32 else -1}")
                        a(f"global_load_dword v92, v93, s[{ptr_}:{ptr_+1}]\ns_mov_b64 exec, -1")
                    a.label(f"{L}_{w_}")
            queue_next()
            for j in range(4):
                self.pop_ld()
                sp_ = cfg.get("spl0", spl) if g < 2 else spl
                if 4 * g + j + 1 == cfg.get("xw1", -1): sp_ = 1000
                for o in setup[done:done + sp_]: self.emit(o)
                done += sp_
        for o in setup[done:]: self.emit(o)
        self.stamp(1, True)
        def stats(i, j):
            for r in range(4 * j, 4 * j + 4):
                x = XB + 16 * i + r
                a(f"v_dot2c_f32_bf16 v{vSum+(j&1)}, s{sOne}, v{x}")
                a(f"v_dot2c_f32_bf16 v{vSum+2+(j&1)}, v{x}, v{x}")
        for i in range(10):
            vm.wait(a, f"X{i}", 4)
            if i in (0, 2, 4, 6, 8): self.stamp(2 + i // 2, True)
            sl = self.slot[("X", i)]
            for s in range(4):
                x = XB + 4 * (4 * i + s)
                a(f"ds_read_b128 v[{x}:{x+3}], v{XA+4*(sl>>2)+(s>>1)} offset:{(sl&3)*16384 + (s&1)*2048}")
            if order and (order[0] != "B" or self.next < cfg["PB"]): queue_next()
            for j in range(4):
                if self.pend: self.pop_ld()
                if i: stats(i - 1, j)
            a("s_waitcnt lgkmcnt(0)")
            self.xdone.add(("X", i))
        a(f"s_xor_b32 s{sTok+1}, s{sTok+1}, 0x{TOKX:x}\ns_add_u32 s{sTok}, s{sTok}, 1")
        for j in range(4): stats(9, j)
        self.stamp(1)
        a("s_nop 2")
        for op in ("v_permlane16_swap_b32", "v_permlane32_swap_b32"):
            a(f"v_mov_b64 v[60:61], v[{vSum}:{vSum+1}]\nv_mov_b64 v[62:63], v[{vSum+2}:{vSum+3}]\ns_nop 0")
            for j in range(4): a(f"{op} v{vSum+j}, v{60+j}")
            a(f"s_nop 0\nv_pk_add_f32 v[{vSum}:{vSum+1}], v[{vSum}:{vSum+1}], v[60:61]\nv_pk_add_f32 v[{vSum+2}:{vSum+3}], v[{vSum+2}:{vSum+3}], v[62:63]")
        seq_ = lambda m: lines(f"""
        v_mul_f32 v{vSum+m}, 0x3acccccd, v{vSum+m}
        v_mul_f32 v{vSum+2+m}, 0x3acccccd, v{vSum+2+m}
        v_cvt_pk_bf16_f32 v{vNegM+m}, 0, -v{vSum+m}
        v_fma_f32 v{vR[m]}, -v{vSum+m}, v{vSum+m}, v{vSum+2+m}
        """)
        for x_, y_ in zip(seq_(0), seq_(1)): a(x_); a(y_)
        NC = cfg["nc"]
        def first_frags():
            self.stamp(8, True)
            vm.wait(a, "B1" if cfg["bar2"] else "B0", 4)
            a("s_barrier")
            self.stamp(7, True)
            for G in range(2):
                for r in self.tr_reads(G): a(r)
        for st_ in range(NC):
            d0, c0 = self.center_ops(st_)
            if st_ == NC - 1:
                while order or self.pend:
                    if not self.pend: queue_next()
                    self.pop_ld()
                for op in d0: a(op)
                first_frags()
                for op in c0: a(op)
            else:
                if order and not self.pend: queue_next()
                for j, op in enumerate(d0 + c0):
                    a(op)
                    if j % 12 == 0 and self.pend: self.pop_ld()
        self.stamp(2)
        extra = Uniq()
        seq_ = lambda m: lines(f"""
            v_max_f32 v{vR[m]}, 0, v{vR[m]}
            v_cvt_pk_bf16_f32 v{vR[m]}, 0, v{vR[m]}
            v_add_f32 v{vR[m]}, 0x3727c5ac, v{vR[m]}
            v_cvt_pk_bf16_f32 v{vR[m]}, 0, v{vR[m]}
            v_sqrt_f32 v{vR[m]}, v{vR[m]}
            v_cvt_pk_bf16_f32 v{vD2+m}, 0, v{vR[m]}
            v_rcp_f32 v{vR[m]}, v{vD2+m}
            v_mul_f32 v{vD2+m}, v{vD2+m}, v{vD2+m}
            v_mul_f32 v{vC1+m}, 0x{NLOG2E:x}, v{vR[m]}
            """)
        extra[3] = [o for xy in zip(seq_(0), seq_(1)) for o in xy]
        def pack_issue():
            sl = self.alloc("P")
            self.pend += [("op", f"s_add_u32 m0, s{sM0}, {sl*16384}")]
            self.pend += [("ld", f"buffer_load_dwordx4 v{PR+16+j}, s[{PK}:{PK+3}], s{PK+4} offen offset:{1024*j} lds", "PK") for j in range(4)]
        pk0 = cfg["pk0"]; pk1 = cfg["pk1"]
        extra[pk0] = pack_issue
        extra[pk0 + 1] = [lambda ch=ch: a(f"v_add_u32 v{PR+20+ch}, {self.slot['P']*16384}, v{PR+20+ch}") for ch in range(8)]
        rdl = [lambda: vm.wait(a, "PK", 4)]
        for ch in range(4):
            rdl.append(f"ds_read_b64_tr_b16 v[{PR+4*ch}:{PR+4*ch+1}], v{PR+20+ch}")
            rdl.append(f"ds_read_b64_tr_b16 v[{PR+4*ch+2}:{PR+4*ch+3}], v{PR+24+ch}")
        extra[pk1] = rdl
        stl = []
        for ch in range(4):
            stl.append(lambda ch=ch: (self.xdone.add("P"), vm.issue(a, f"buffer_store_dwordx4 v[{PR+4*ch}:{PR+4*ch+3}], v{vL16}, s[{SRDW}:{SRDW+3}], s{PK+5+ch} offen sc1", "I")))
        extra[pk1 + 24] = [lambda: [f() for f in stl]] if cfg['stb'] > 1 else stl
        def touch(which, duty=None):
            def f():
                r, n, off = (None, (94, 14, 2048))[which]
                ins = f"buffer_load_dword v{r}, v{r}, s[{PB[1]}:{PB[1]+3}], 0 offen offset:{off}"
                if duty is None:
                    a(f"s_mov_b64 exec, {(1 << n) - 1}"); vm.issue(a, ins, "T"); a("s_mov_b64 exec, -1")
                else:
                    L = a.newlabel("du")
                    a(f"s_cmp_lg_u32 s{sDuty}, {duty}\ns_cbranch_scc1 {L}\ns_mov_b64 exec, {(1 << n) - 1}\n{ins}\ns_mov_b64 exec, -1\n{L}:")
            return f
        for which, key in ((0, "tch"), (1, "tch2")):
            g_ = cfg[key]
            if isinstance(g_, list):
                for d_, gg in enumerate(g_): extra[gg] = touch(which, d_)
            elif 0 <= g_ < 160: extra[g_] = touch(which)
        if cfg["pub1"] < 160: extra[cfg["pub1"]] = lambda: (self.publish(1, ["I"]), self.retouch("P"))
        vq0 = None
        if cfg.get("b0fake"):
            vq0 = [((lambda gap: gap >= cfg["b0fake"]), (lambda k=k, u=u: vm.issue(a, f"buffer_load_dwordx4 {self.rr(self.BSLOT[k], 4*u)}, v{vLd + (u & 3)}, s[{PB[0]}:{PB[0]+3}], s{PB[0]+6} offen offset:{k*512}", f"PB{k}"))) for k in range(4) for u in range(5)]
        self.body(0, None, 3, center=True, extra=extra, vq=vq0, before=[(pk0 + 1, pk1), (pk1, pk1 + 16), (pk1 + 24, cfg["pub1"])])
        self.stamp(3)
        self.vPub = 86
        extra = Uniq()
        if cfg["tch2"] >= 160: extra[cfg["tch2"] - 160] = touch(1)
        if cfg["pub1"] >= 160: extra[cfg["pub1"] - 160] = lambda: self.publish(1, ["I"])
        extra[cfg["pub2"]] = lambda: (self.publish(2, ["E0"]), self.retouch("Q", PB[0] + 7))
        GR = 88
        def epoch():
            L = a.newlabel("ep")
            a(f"""
            s_or_b32 s{sA+8}, s2, s{sWave}
            s_cbranch_scc1 {L}
            v_mov_b32 v{GR}, s{sTok}
            s_mov_b32 s{sA+8}, {WS_EPOCH}
            s_mov_b64 exec, 1
            buffer_store_dword v{GR}, off, s[{SRDW}:{SRDW+3}], s{sA+8}
            s_mov_b64 exec, -1
            {L}:
            """)
        gc = cfg["gck"]
        assert gc % 16 == 6 and (not cfg["bar2"] or (gc // 16) % 2 == 1)
        gb = gc + 2
        extra[gb + 1] = epoch
        for j in range(4):
            extra[gc - 42 + 4 * j] = lambda j=j: self.flag_load(GR + 2 * j, sFlG, f"G{j}", 1, 512 * j)
            extra[gc - 9 + [0, 2, 4, 8][j]] = lambda j=j: self.flag_check(GR + 2 * j, sFlG, f"G{j}", 1, off=512 * j)
        after = lambda g0: (lambda gap: gap >= g0)
        vq = [(after(gb), f) for k in range(4) for f in self.b_loads(k)] if not cfg.get('b0fake') else []
        rest1 = self.body(1, self.epi_q(ACC[0], PB[0] + 7), 3, wrange=(4, cfg["w1"]), extra=extra, vq=vq, vq1=cfg["b1vq"])
        while self.pend: self.pop_ld()
        self.stamp(4)
        vm_split = list(vm.q)
        a(f"s_cmp_eq_u32 s{sThree}, 0")
        a(f"s_cbranch_scc1 {label}_two")
        self.vPub = 62
        pre = []
        def P(fn): pre.append(fn); return fn
        extra = Uniq()
        vq = [(after(0), P(f)) for _, f in rest1]
        st = {"q": False}
        q_l0 = lambda: self.flag_load(XB, sFl0, "Q0", 2)
        q_l1 = lambda: self.flag_load(XB + 2, sFl1, "Q1", 2)
        q_c0 = lambda: self.flag_check(XB, sFl0, "Q0", 2)
        def q_c1():
            self.flag_check(XB + 2, sFl1, "Q1", 2); st["q"] = True
        qc = cfg["qck"]
        extra[qc - 33] = q_l0; extra[qc - 29] = q_l1; extra[qc - 1] = q_c0; extra[qc + 3] = q_c1
        attl = []
        lastkv = [-100]
        def att_ok(gap, j):
            if not st["q"] or gap - lastkv[0] < cfg["kvgap"]: return False
            attl or attl.extend(self.att_loads(False))
            if j < 10:
                if self.next < 30 or self.pend: return False
                if "K" not in self.slot:
                    if not (self.free(7) and self.free(8)): return False
                    self.alloc("K", 7); self.alloc("V", 8)
            lastkv[0] = gap
            return True
        bq = []
        l0 = len(a.lines)
        def acc_free(b):
            return lambda gap: sum(1 for l in a.lines[l0:] if l.startswith("    v_accvgpr_read_b32") and b <= int(l.rsplit("a", 1)[1]) < b + 20) == 20
        grp_ = {k: [(after(4 * (2 * ((20 * (k - 4) + 39) // 8) + 2)), f) for f in self.b_loads(k)] for k in range(4, 8)}
        for k in (8, 9, 10): grp_[k] = [(acc_free(int(self.BSLOT[k][1:])), f) for f in self.b_loads(k)]
        cur = [None]
        def seq(k, u, c):
            def ok(gap):
                if cur[0] not in (None, k) or not c(gap): return False
                cur[0] = k if u < 4 else None
                return True
            return ok
        for k in cfg["b2order"]: bq += [(seq(k, u, c), f) for u, (c, f) in enumerate(grp_[k])]
        for k in (4, 5): [P(f) for _, f in grp_[k]]
        P(q_l0); P(q_l1)
        for k in (6, 7): [P(f) for _, f in grp_[k]]
        P(q_c0); P(q_c1)
        pre.append("att")
        for k in (8, 9, 10): [P(f) for _, f in grp_[k]]
        for j in list(range(10, 15)) + list(range(10)): vq.append((lambda gap, j=j: att_ok(gap, j), lambda j=j: attl[j]()))
        vq += bq
        wq = []
        for s in range(7):
            ok = lambda gap, s=s: self.next >= 30 and not self.pend and (self.owner[s] == ("WO", s) or self.free(s))
            wq += [(ok, f) for f in self.wo_loads(s)]
        vq += wq
        extra[cfg["pub3"]] = lambda: (self.publish(3, ["E1"]), self.retouch("F", PB[1] + 7))
        rest = self.body(2, self.epi_f(ACC[1], PB[1] + 7), 3, wrange=(4, cfg["w2"]), extra=extra, vq=vq, vq1=cfg["vq1"], vq2=cfg["vq2"])
        self.stamp(5)
        wfs = [f for _, f in wq]
        if cur[0] is not None:
            cf = [f for _, f in grp_[cur[0]]]
            rest = [x for x in rest if x[1] in cf] + [x for x in rest if x[1] not in cf]
        late = [f for c_, f in rest if f not in wfs] + [P(f) for k in (11, 12) for f in self.b_loads(k)]
        late += [f for c_, f in rest if f in wfs and c_(160)]
        ntail = cfg["ntail"]
        assert 15 - vm.q.count("KV") <= ntail and "K" in self.slot
        post = late[ntail:]; late = late[:ntail]
        wrest = [f for c_, f in rest if f in wfs and f not in late]
        post = [f for f in post if f not in wfs]
        pre[:] = [f for f in pre if f not in post]
        for f in wfs:
            if f not in wrest: P(f)
        def tail(ops, inter, tag):
            inter = list(inter); n = len(ops); k = len(inter); j = 0
            for i, op in enumerate(ops):
                self.emit(op, tag)
                while j < k and j < (i + 1) * k // n:
                    inter[j](); j += 1
        a("s_nop 7")
        if cfg.get("f3tail"): late.insert(cfg["f3tail"], P(lambda: self.flag_load(vFl, sFl0, "F3", 3)))
        tail(self.epi_f_tail(ACC[0], PB[2] + 7), late, "E2")
        if cfg.get("verbose"): print("tail loads", len(late), "after join: B loads", len(post), "wo loads", len(wrest))
        self.lastbar = 100
        self.alloc("O", 9)
        a.label(f"{label}_join")
        self.stamp(6)
        self.vPub = 20
        if not cfg.get("f3tail"): self.flag_load(vFl, sFl0, "F3", 3)
        a(f"s_lshr_b32 s{sA}, s{sM0}, 2\nv_add_u32 v{vA[0]}, s{sA}, v{vL16}")
        for i in range(1, 4): a(f"v_add_u32 v{vA[i]}, 1024, v{vA[i-1]}\nv_and_b32 v{vA[i]}, 4095, v{vA[i]}")
        a("s_barrier")
        def xaddr(j, d, t1, t2):
            return [f"v_add_u32 v{t1}, {64*j}, v0", f"v_mul_u32_u24 v{t2}, {(1<<16)//10+1}, v{t1}", f"v_lshrrev_b32 v{t2}, 16, v{t2}",
                    f"v_mul_u32_u24 v{t2}, {1280-160}, v{t2}", f"v_lshl_add_u32 v{t2}, v{t1}, 4, v{t2}", f"v_add_u32 v{d}, s{sXo}, v{t2}"]
        def xl(j):
            for o in xaddr(j, 114, 114, 115): a(o)
            a(f"v_accvgpr_write_b32 a{60+j}, v114")
            a(f"s_mul_i32 s{sA+2}, s{sWave}, 2560\ns_add_u32 m0, s{sA+2}, {102400 + 1024*j}")
            a("s_mov_b32 exec_hi, 0" if j == 2 else "s_nop 0")
            vm.issue(a, f"global_load_lds_dwordx4 v114, s[4:5]", "XO")
            if j == 2: a("s_mov_b32 exec_hi, -1")
        assert not post
        free_ = [lambda j=j: xl(j) for j in range(3)] + post + wrest
        n1 = cfg["natt1"]; n2 = cfg["natt2"]
        al = free_[n1:]
        aa = [f for k in range(4) for f in self.a_loads(k)]
        n0 = cfg.get("natt0", n1)
        inter = free_[:n0] + [lambda: self.flag_check(vFl, sFl0, "F3", 3)]
        mix = list(aa[:n2])
        for j_, f_ in enumerate(free_[n0:n1]): mix.insert((j_ + 1) * (n2 + n1 - n0) // (n1 - n0) - 1, f_)
        inter += mix
        inter.insert(min(len(inter), cfg["pub4"]), lambda: self.publish(4, ["E2"]))
        ost = self.attention(inter)
        self.stamp(8)
        XR = 4; vX = 14; vW = 25; vRd = 28; vXo = [1, 2, 29]
        KF = cfg["kf"]
        wl = [f for f in al if f not in post]
        Q_ = [(0, f) for f in ost + aa[n2:] + [f for f in al if f in post]]
        grp = lambda e, fs: [(e, f) for f in fs]
        A_ = lambda k: grp(max(self.AEARLY[k], KF if k >= 8 else 0), self.a_loads(k))
        B_ = lambda k: grp(0, self.b_loads(k))
        for it in cfg["forder"]:
            Q_ += A_(int(it[1:])) if it[0] == "A" else B_(int(it[1:])) if it[0] == "B" else grp(0, wl) if it == "W" else grp(5, ["x0", "x1", "x2"])
        OA = 176
        def wo_reads(T):
            b = WR[T % 6]
            return [f"ds_read_b128 v[{b+4*u}:{b+4*u+3}], v{vL16 if T < 12 else 15} offset:{(T % 12)*5120 + u*1024}" for u in range(5)]
        def o_load(T):
            def f():
                if T % 4 == 0: a(f"s_add_u32 s{sGb}, s{sOld}, {T*1024}")
                vm.issue(a, f"buffer_load_dwordx4 a[{OA+4*T}:{OA+4*T+3}], v{vL16}, s[{SRDW}:{SRDW+3}], s{sGb} offen offset:{1024*(T&3)} sc1", f"PO{T//2}")
            return f
        KB = cfg["kbar"]; KO = cfg["ko"]; ns = cfg["nside"]; NOF = cfg["no_f"]; KX = cfg["kx"]
        R = 32; FO = 236; SQ = [92, 4, 8, 16, 20]; XU = 216
        WR = [116, 136, 156, 176, 196, 96]
        lq = LQ()
        def mf(k, i, u):
            t_ = (i * 5 + u) * 4
            d = f"a[{t_-20}:{t_-17}]" if i else f"v[{FO+t_}:{FO+t_+3}]"
            a(f"v_mfma_f32_16x16x32_bf16 {d}, {self.rr(self.BSLOT[k], 4*u)}, {self.rr(self.ASLOT[k], 4*i)}, {'0' if k == 0 else d}")
        def wait_ab(k):
            assert vm.q.count(f"PB{k}") == 5 and vm.q.count(f"PA{k}") == 4
            vm.wait(a, f"PA{k}" if vm.last(f"PA{k}") > vm.last(f"PB{k}") else f"PB{k}")
        olist = [o_load(T) for T in range(20)]
        for k in range(KX):
            if k % 2 == 0: self.mark(10 + k // 2)
            wait_ab(k)
            side = []
            if k == KF - 2: side += [lambda: self.flag_load(vFl, sFl0, "F4", 4)]
            if k == cfg.get("kp5", 3) and not cfg["nokb"]: side += [lambda: self.publish(5, ["O"])]
            if cfg["nokb"] and k == 2:
                side += [lambda o=o: a(o) for o in (f"v_and_b32 v1, 15, v0", f"v_mul_u32_u24 v2, 160, v1", f"v_lshrrev_b32 v1, 4, v0", f"v_lshl_add_u32 v2, v1, 3, v2",
                                                     f"s_add_u32 s{sA+2}, s{sA+2}, 102400", f"v_add_u32 v1, s{sA+2}, v2")]
            late_side = []
            if cfg["nokb"] and k == 3:
                side += [lambda: (vm.wait(a, "O"), [lq.issue(a, f"ds_read_b64 v[{XR+2*u}:{XR+2*u+1}], v1 offset:{32*u}", "XL") for u in range(5)])]
                late_side = [lambda: a(f"v_mov_b32 v{vX}, v2"), lambda: (lq.wait(a, "XL"), self.publish(5, []))]
            if k == KF: self.flag_check(vFl, sFl0, "F4", 4)
            if k == KO - 2: side += [lambda: self.flag_load(vFl, sFl0, "F5", 5)]
            if k == KO: self.flag_check(vFl, sFl0, "F5", 5, half=True)
            room = ns[k] - (1 if side else 0)
            for it in list(Q_):
                if room > 0 and it[0] <= k:
                    Q_.remove(it); room -= 1
                    side.append((lambda j=int(it[1][1]): xl(j)) if isinstance(it[1], str) else it[1])
            if k >= KO and not Q_ and room > 0: side += olist[:room]; olist = olist[room:]
            if k == 4:
                side += [lambda j=j: a(f"v_accvgpr_read_b32 v{vXo[j]}, a{60+j}") for j in range(3)]
            if k == 5:
                side += [lambda o=o: a(o) for o in lines(f"""
                    v_add_u32 v15, {12*5120}, v{vL16}
                    s_mov_b32 s{sA}, 0x{NLOG2E:x}
                    s_mov_b32 s{sA+1}, 0xffff0000
                    """)]
            if k == 6:
                for i in range(4):
                    d = vRd if i == 0 else vW + i - 1
                    side += [lambda o=o: a(o) for o in (f"v_lshrrev_b32 v3, 10, v{vA[i]}", f"v_mul_u32_u24 v3, 15360, v3",
                                                         f"v_add_u32 v3, {102400 + max(i-1, 0)*5120}, v3", f"v_add_u32 v{d}, v3, v{vL16}")]
            side += late_side
            if k == KB - 1 and not cfg['nokb']:
                side += [lambda: (vm.wait(a, "XO", 3), a(f"s_add_u32 s{sA+2}, s{sA+2}, 102400\nv_add_u32 v3, s{sA+2}, v{vX}"))]
                side += [lambda u=u: lq.issue(a, f"ds_read_b64 v[{XR+2*u}:{XR+2*u+1}], v3 offset:{32*u}", "XL") for u in range(5)]
            if k == KB and not cfg['nokb']:
                lq.wait(a, "XL"); vm.wait(a, "WO", 25); a("s_barrier")
            nsd = len(side); j = 0
            for i in range(4):
                for u in range(5):
                    mf(k, i, u)
                    while j < nsd and j < (i * 5 + u + 1) * nsd // 20:
                        side[j](); j += 1
        assert not Q_, len(Q_)
        assert KB < KX and KO < KX and KX >= 10
        self.mark(16)
        nk = 14 - KX
        base_side = olist[:max(NOF - (20 - len(olist)), 0)]; olist = olist[len(base_side):]
        ol_ = base_side
        base_side = [lambda r=r, T=T: lq.issue(a, r, f"W{T}") for T in range(5) for r in wo_reads(T)]
        base_side += [lambda j=j: a(f"v_and_b32 v{XU+j}, s{sA+1}, v{XR+(j>>1)}" if j & 1 else f"v_lshlrev_b32 v{XU+j}, 16, v{XR+(j>>1)}") for j in range(20)]
        for j_, f_ in enumerate(ol_): base_side.insert(j_ * (45 + len(ol_)) // len(ol_), f_)
        nb_ = len(base_side); jb = 0; m = 0
        for ri, i in enumerate((1, 2, 3, 0)):
            pw = []
            if ri:
                ip = (1, 2, 3)[ri - 1]
                pw = [f"ds_write_b128 v{vW+ip-1}, a[{(ip*5+u)*4-20}:{(ip*5+u)*4-17}] offset:{u*1024}" for u in range(5)]
            mm = 0
            for k in range(KX, 14):
                if ri == 0: wait_ab(k)
                for u in range(5):
                    mf(k, i, u); m += 1; mm += 1
                    if pw and mm >= 4 and (mm - 4) * 5 >= (5 - len(pw)) * (5 * nk - 4): lq.issue(a, pw.pop(0), "PW")
                    else:
                        while jb < nb_ and jb < m * nb_ // (20 * nk):
                            base_side[jb](); jb += 1
            for w_ in pw: lq.issue(a, w_, "PW")
        while jb < nb_:
            base_side[jb](); jb += 1
        self.stamp(7)
        work = [("f", f) for f in olist[:2]] + [("bar",)]
        for j in range(15): work.append(("l", f"ds_read_b128 v[{R+4*j}:{R+4*j+3}], v{vRd} offset:{j*1024}", "PR"))
        work += [("f", f) for f in olist[2:]]
        pk2 = lambda op, d, x, y: "\n".join(f"{op} v[{d+2*j}:{d+2*j+1}], v[{x+2*j}:{x+2*j+1}], {y(j)}" for j in range(10))
        work.append(("v", f"v_sub_u32 v3, v{vRd}, v{vL16}")); work.append(("v", f"v_add_u32 v3, v3, v{vX}"))
        work.append(("lw", "PR"))
        work.append(("v", "\n".join([pk2("v_pk_add_f32", FO, FO, lambda j: f"v[{R+2*j}:{R+2*j+1}]"),
                                     pk2("v_pk_add_f32", R+20, R+20, lambda j: f"v[{R+40+2*j}:{R+40+2*j+1}]"),
                                     pk2("v_pk_add_f32", FO, FO, lambda j: f"v[{R+20+2*j}:{R+20+2*j+1}]"),
                                     pk2("v_pk_mul_f32", R, FO, lambda j: f"s[{sA}:{sA+1}] op_sel_hi:[1,0]")])))
        for j in range(20): work.append(("v", f"v_exp_f32 v{R+j}, v{R+j}"))
        for j in range(20): work.append(("v", f"v_add_f32 v{R+j}, 1.0, v{R+j}"))
        for j in range(20): work.append(("v", f"v_rcp_f32 v{R+j}, v{R+j}"))
        def do(wk):
            if wk[0] == "v": a(wk[1])
            elif wk[0] == "f": wk[1]()
            elif wk[0] == "l": lq.issue(a, wk[1], wk[2])
            elif wk[0] == "lw": lq.wait(a, wk[1])
            elif wk[0] == "bar":
                lq.wait(a, "PW"); self.mark(20); a("s_barrier"); self.mark(21)
        for j in range(20): work.append(("v", f"v_mul_f32 v{FO+j}, v{FO+j}, v{R+j}"))
        nw = len(work); done = 0; m = 0
        TU = cfg["tu"]; NM = 5 * TU
        def smf(T, u):
            d = f"v[{SQ[u]}:{SQ[u]+3}]"; b = WR[T % 6]
            a(f"v_mfma_f32_16x16x32_bf16 {d}, v[{b+4*u}:{b+4*u+3}], a[{OA+4*T}:{OA+4*T+3}], {'0' if T == 0 else d}")
        for T in range(TU):
            if T % 4 == 0: vm.wait(a, f"PO{T//2+1}", 2)
            if T in (0, 10): self.mark({0: 17, 10: 18}[T])
            if T % 3 == 0: lq.wait(a, f"W{T+2}")
            rd = wo_reads(T + 5) if T + 5 < 20 else []
            for u in range(5):
                smf(T, u); m += 1
                if rd: lq.issue(a, rd.pop(0), f"W{T+5}")
                while done < nw and done < m * nw // NM:
                    do(work[done]); done += 1
        assert done == nw and TU >= 15
        self.mark(19)
        vm.wait(a, "PO9", 2); lq.wait(a, "W19")
        def comb(u):
            f0 = FO + 4 * u; o = 64 + 2 * u
            return [f"v_fma_f32 v{f0+j}, v{f0+j}, v{SQ[u]+j}, v{XU+4*u+j}" for j in range(4)] + \
                   [f"v_cvt_pk_bf16_f32 v{o}, v{f0}, v{f0+1}", f"v_cvt_pk_bf16_f32 v{o+1}, v{f0+2}, v{f0+3}", f"ds_write_b64 v3, v[{o}:{o+1}] offset:{32*u}"]
        for u in range(5):
            c_ = comb(u - 2) if u >= 2 else []
            if u == 2: a(f"s_nop {max(8 - (20 - TU) - 2, 0)}")
            for T in range(TU, 20):
                smf(T, u)
                for o in c_[:2]: a(o)
                c_ = c_[2:]
            for o in c_: a(o)
        for o in comb(3): a(o)
        a("s_nop 0")
        for o in comb(4): a(o)
        a("s_waitcnt lgkmcnt(0)")
        for j in range(3): a(f"ds_read_b128 v[{76+4*j}:{79+4*j}], v{vRd} offset:{1024*j}")
        for j in range(3):
            a(f"s_waitcnt lgkmcnt({2-j})")
            if j == 2: a("s_mov_b32 exec_hi, 0")
            a(f"global_store_dwordx4 v{vXo[j]}, v[{76+4*j}:{79+4*j}], s[6:7] {cfg.get('scO', '')}")
        a("s_mov_b32 exec_hi, -1")
        self.mark(22)
        if self.stamps:
            a("s_waitcnt vmcnt(0)")
            a(f"s_memtime s[{sA}:{sA+1}]")
            a(f"s_memrealtime s[{sA+2}:{sA+3}]")
            a("s_waitcnt lgkmcnt(0)")
            for i in range(1, 8):
                a(f"s_sub_u32 s{sA+4}, s{ST0+2*(i-1)}, s0\nv_mov_b32 v{32+i}, s{sA+4}")
            a(f"s_sub_u32 s{sA+4}, s{sA}, s0\nv_mov_b32 v40, s{sA+4}\nv_mov_b32 v41, s{sA+2}")
            a(f"s_sub_u32 s{sA+4}, s{ST0+14}, s0\nv_mov_b32 v42, s{sA+4}")
            a(f"""
            v_mov_b32 v32, s1
            s_lshl_b32 s{sA}, s2, 2
            s_add_u32 s{sA}, s{sA}, s{sWave}
            s_lshl_b32 s{sA}, s{sA}, 6
            s_add_u32 s{sA}, s{sA}, {WS_STAMP}
            s_mov_b64 exec, 1
            buffer_store_dwordx4 v[32:35], off, s[{SRDW}:{SRDW+3}], s{sA}
            buffer_store_dwordx4 v[36:39], off, s[{SRDW}:{SRDW+3}], s{sA} offset:16
            buffer_store_dwordx4 v[40:43], off, s[{SRDW}:{SRDW+3}], s{sA} offset:32
            """)
        a("s_endpgm")
        a.label(f"{label}_two")
        self.stamp(5)
        self.vm = vm = VM()
        self.vPub = 62
        self.vm.q = list(vm_split)
        self.vm.wait(a, [t_ for t_ in self.vm.q if t_[0] == "B" and t_[1:].isdigit()][-1])
        a("s_waitcnt lgkmcnt(0)\ns_barrier\ns_nop 4")
        flat = []
        for f in pre: flat += self.att_loads() if f == "att" else [f]
        nb_ = cfg["nbtail"]
        tail(self.epi_f_tail(ACC[1], PB[1] + 7), flat[:nb_], "E1")
        for i, f in enumerate(flat[nb_:]):
            if i == cfg["nbpub"]:
                self.publish(3, ["E1"]); a("s_nop 1"); self.publish(4, []); self.retouch("F", PB[1] + 7)
            if i % 8 == 3 and cfg.get("markT", 2) == 2: self.mark(i // 8)
            f()
        a("s_waitcnt vmcnt(0)")
        a(f"s_branch {label}_join")
        for s in self.slow: a(s)
        a.label(f"{label}_end")
        a("s_endpgm")
        a.end_kernel(label, 512, 102, 256, 256, 256, 163840)
        return a.text("""Generated by dev/fused2.py (own generator). One persistent kernel, 256 workgroups of 4 waves, one per CU.
kernarg: 0 A_x, 8 A_wqkv, 16 A_wo, 24 B_x (unused by the reference), 32 w_gate, 40 w_up, 48 w_down, 56 out, 64 debug, 72 ws
Phase 1: 128 rows of x per workgroup stay in registers (LayerNorm: centred in place, 1/std applied in the epilogues);
  up to three 128-column tasks of x@[wqkv | w_gate,w_up] with the weights streamed through an LDS ring (LDS-DMA + transposing reads);
  q,k,v and h = silu(g)*u go to ws; w_down / wo are repacked into MFMA fragment order in ws.
Attention: 64 rows x 4 heads per workgroup (true row max softmax), result to ws.
Phase 2: 64x80 output tile per workgroup: h@w_down (K split over the waves), o@wo, out = x + s*silu(f).
Hand-offs between workgroups: write-through stores, then a per-wave flag holding a token that is new in every launch
  (derived from a word in ws that workgroup 0 advances), consumers look at the flags before they load.""")

if __name__ == "__main__":
    stamps = "--stamps" in sys.argv
    pos = [x for x in sys.argv[1:] if not x.startswith("--")]
    cfg = json.loads(pos[1]) if len(pos) > 1 else {}
    open(pos[0], "w").write(Gen(cfg, stamps).build())
```

```python
import sys, json, struct; sys.path.insert(0, "dev")
from asmlib import *

WS_H = 0
WS_O = 0x780000
WS_WD = 0xA00000
WS_WO = 0xD00000
WS_QKV = 0x1000000
WS_FLAG = 0x1800000
WS_EPOCH = WS_FLAG - 256
WS_STAMP = 0x1900000
WS_SIZE = 0x2000000
OOB = 0x4000000
TOKX = 0x5bd1e995
NLOG2E = 0xbfb8aa3b
def f2u(x): return struct.unpack("<I", struct.pack("<f", x))[0]
C_SM = f2u(20 ** -0.5 * 1.4426950408889634)

XB = 96; EP = 32; ACC = [0, 64]; WF = 128; NWB = 3
vLd = 1; vTr = 5
vSF = 17; vL8 = 18; vD2 = 20; vC1 = 22; vR = [19, 24]; vNegM = 92; vSum = 56
vRow = 25; vCol = 26; vT = 27
vDbg = 30; vL16 = 31
vFl = 22
vQa = 28; vKa = 29
vA = [16, 17, 19, 24]
PR = 64
sOOB = 3
pQKV = 76; pWS = 78; pWO = 80; pDN = 82; pG = 84; pU = 86
sWave = 8; sMb64 = 9; sHalf = 10; sM0 = 11; sSoff = 12; sStep = 13; sWrap = 14; sThree = 15
SRDW = 16
SRDX = 20
sGa = 20; sGb = 21; sDuty = 96
PB = [24, 32, 40]
PK = 48
sOne = 57; sLo = 58; sHi = 59
sTok = 60
sFlag = 62; sFl0 = 63; sFl1 = 64; sFlG = 65
sAb = 66; sAb2 = 67; sBb = 68; sBb2 = 69; sOld = 70; sWOb = 71; sOst = 72; sOst2 = 73; sKV = 74; sXo = 75
ST0 = 76
sMb = 88; sJ = 89; sRot = 90; sNb = 91
sA = 92

class VM:
    def __init__(self): self.q = []
    def issue(self, a, ins, tag):
        a(ins); self.q.append(tag)
    def last(self, tag): return max(i for i, t in enumerate(self.q) if t == tag)
    def wait(self, a, tag, cnt=None):
        if cnt is not None: assert self.q.count(tag) == cnt, (tag, self.q.count(tag))
        a(f"s_waitcnt vmcnt({min(len(self.q) - 1 - self.last(tag), 63)})")
class LQ:
    def __init__(self): self.q = []
    def issue(self, a, ins, tag):
        a(ins); self.q.append(tag)
    def wait(self, a, tag):
        idx = max(i for i, t in enumerate(self.q) if t == tag)
        a(f"s_waitcnt lgkmcnt({min(len(self.q) - 1 - idx, 15)})")
class Uniq(dict):
    def __setitem__(self, k, v):
        assert k not in self, ("duplicate gap", k)
        dict.__setitem__(self, k, v)
def lines(s): return [l.split(";;")[0].strip() for l in s.split("\n") if l.split(";;")[0].strip()]
DIV5 = (1 << 16) // 5 + 1
DIV3 = (1 << 16) // 3 + 1

class Gen:
    KS = 7
    def __init__(self, cfg, stamps):
        self.cfg = dict(dict(LA=7, XW=4, spl=20, PB=2, bar2=True, rpat=[2, 2, 2, 2], dmagap=2, spin=3000, cap=5.0,
                             rotm=0x1010, rotx=0x7520, tch=-1, tch2=110, pk0=18, pk1=70, pub1=124, pub2=124, gck=118, qck=70, pub3=126, qsh=15,
                             w1=100, w2=96, b1vq=1, vq1=1, vq2=1, ntail=20, natt1=30, natt2=16, pub4=12,
                             nside=[5] * 14, kvgap=6, mid=0.5, split=0, vc=5.0, tu=16, nokb=1, nc=3, p2x=2, nbtail=14, nbpub=12, stb=1, stq=False, kf=4, b2order=[4, 8, 5, 9, 6, 10, 7], forder=['A4', 'A5', 'A6', 'A7', 'W', 'A8', 'A9', 'A10', 'A11', 'A12', 'A13', 'B13'], kbar=10, ko=10, no_f=16, kx=11), **cfg)
        self.stamps = stamps
        self.a = Asm(); self.vm = VM()
        self.label = NAME + "_kernel"
        self.slot = {}; self.owner = [None] * 10
        self.xdone = set(); self.lastbar = -10
        self.next = 0; self.pend = []; self.slow = []
        self.vPub = 80
    def stamp(self, i, pro=False):
        if self.cfg.get("pst") and i and not pro: return
        if pro and not self.cfg.get("pst"): return
        if self.stamps: self.a(f"s_memtime s[{ST0+2*(i-1)}:{ST0+2*(i-1)+1}]" if i else "s_memtime s[0:1]")
    def mark(self, i):
        if self.cfg.get("marks"):
            r = 22
            self.a(f"""
            s_memtime s[{r}:{r+1}]
            s_waitcnt lgkmcnt(0)
            s_sub_u32 s{r}, s{r}, s0
            v_mov_b32 v{vDbg}, s{r}
            s_lshl_b32 s{r}, s2, 2
            s_add_u32 s{r}, s{r}, s{sWave}
            s_lshl_b32 s{r}, s{r}, 7
            s_add_u32 s{r}, s{r}, {WS_STAMP + 0x40000 + 4*i}
            s_mov_b64 exec, 1
            """)
            self.vm.issue(self.a, f"buffer_store_dword v{vDbg}, off, s[{SRDW}:{SRDW+3}], s{r}", "mk")
            self.a("s_mov_b64 exec, -1\ns_nop 1")
    def emit(self, op, tag="st"):
        for o in op.split(";"):
            o = o.strip()
            if o.startswith(("global_", "buffer_")): self.vm.issue(self.a, o, tag)
            else: self.a(o)
    def free(self, s):
        o = self.owner[s]
        if o is None: return True
        if o[0] == "B": return o[1] <= self.lastbar - 1
        return o in self.xdone
    def cands(self, name):
        c = [s for s in range(10) if self.free(s)]
        if name[0] == "B" and name[1] >= self.cfg.get("avoid_from", 23): c = [s for s in reversed(c) if s not in (7, 8)]
        return c
    def alloc(self, name, want=None):
        c = self.cands(name) if want is None else [s for s in range(10) if self.free(s) and s == want]
        assert c, ("no free slot", name, self.owner, self.lastbar)
        s = c[0]; self.owner[s] = name; self.slot[name] = s
        return s

    def pos_ops(self, f, d):
        t = sA + 4
        return [f"s_lshr_b32 s{t}, s{f}, 2", f"s_mul_i32 s{t}, s{t}, 6", f"s_lshl_b32 s{d}, s{f}, 1", f"s_add_u32 s{t}, s{t}, s{d}",
                f"s_sub_u32 s{t+1}, s{f}, 16", f"s_mul_i32 s{t+1}, s{t+1}, {DIV3}", f"s_lshr_b32 s{t+1}, s{t+1}, 16", f"s_lshl_b32 s{t+1}, s{t+1}, 3",
                f"s_add_u32 s{t+1}, s{t+1}, s{d}", f"s_sub_u32 s{t+1}, s{t+1}, 24",
                f"s_cmp_lt_u32 s{f}, 16; s_cselect_b32 s{d}, s{t}, s{t+1}"]
    def f_params(self, P, code):
        t = sA
        return lines(f"""
        s_mov_b32 s{P+3}, 0x20000
        s_cmp_lt_u32 s{sWave}, 2; s_cselect_b32 s{P}, s{pG}, s{pU}; s_cselect_b32 s{P+1}, s{pG+1}, s{pU+1}
        s_cmp_lt_u32 s{code}, 27; s_cselect_b32 s{P+2}, {640*3456}, 0
        s_movk_i32 s{P+4}, 3456
        s_lshl_b32 s{P+5}, s{code}, 7
        s_mul_i32 s{P+6}, s{sRot}, {64*3456}
        """) + self.pos_ops(code, P + 7) + lines(f"""
        s_lshl_b32 s{t}, s{sMb}, 1
        s_lshr_b32 s{t+1}, s{sWave}, 1
        s_add_u32 s{t}, s{t}, s{t+1}
        s_mul_i32 s{t}, s{t}, 56
        s_add_u32 s{P+7}, s{P+7}, s{t}
        s_lshl_b32 s{P+7}, s{P+7}, 12
        s_and_b32 s{t+1}, s{sWave}, 1
        s_lshl_b32 s{t+1}, s{t+1}, 11
        s_add_u32 s{P+7}, s{P+7}, s{t+1}
        """)
    def q_params(self, P, q):
        t = sA
        return lines(f"""
        s_mov_b32 s{P+3}, 0x20000
        s_mov_b32 s{P}, s{pQKV}
        s_mov_b32 s{P+1}, s{pQKV+1}
        s_movk_i32 s{P+4}, 3840
        s_lshr_b32 s{t}, s{sWave}, 1
        s_lshl_b32 s{P+5}, s{q}, 1
        s_add_u32 s{P+5}, s{P+5}, s{t}
        s_lshl_b32 s{P+5}, s{P+5}, 7
        s_mul_i32 s{P+6}, s{sRot}, {64*3840}
        s_lshl_b32 s{t}, s{sMb}, 2
        s_add_u32 s{t}, s{t}, s{sWave}
        s_mul_i32 s{t}, s{t}, 122880
        s_lshl_b32 s{t+1}, s{q}, 13
        s_add_u32 s{t}, s{t}, s{t+1}
        s_add_u32 s{t}, s{t}, {WS_QKV}
        s_cmp_lt_u32 s{q}, 15; s_cselect_b32 s{P+2}, {640*3840}, 0; s_cselect_b32 s{P+7}, s{t}, s{sOOB}
        """)
    def pack_params(self):
        P = PK; t = sA
        r = lines(f"""
        s_mov_b32 s{P+3}, 0x20000
        s_mov_b32 s{t+2}, {640*1280}
        s_cmp_lt_u32 s2, 135; s_cselect_b32 s{P}, s{pDN}, s{pWO}; s_cselect_b32 s{P+1}, s{pDN+1}, s{pWO+1}; s_cselect_b32 s{P+2}, {1728*1280}, s{t+2}; s_cselect_b32 s{t}, 0, 135
        s_sub_u32 s{t}, s2, s{t}
        s_mul_i32 s{t+2}, s{t}, {DIV5}
        s_lshr_b32 s{t+2}, s{t+2}, 16
        s_mul_i32 s{t+3}, s{t+2}, 5
        s_sub_u32 s{t+1}, s{t}, s{t+3}
        s_mul_i32 s{P+4}, s{t+2}, {64*1280}
        s_lshl_b32 s{t+3}, s{t+1}, 8
        s_add_u32 s{P+4}, s{P+4}, s{t+3}
        s_lshr_b32 s{t+3}, s{sWave}, 1
        s_lshl_b32 s{t+3}, s{t+3}, 7
        s_add_u32 s{P+4}, s{P+4}, s{t+3}
        """) + self.pos_ops(t + 2, t + 3) + lines(f"""
        s_lshl_b32 s{t+2}, s{t+2}, 1
        s_mov_b32 s{t}, {WS_WO}
        s_movk_i32 s{t+6}, 100
        s_cmp_lt_u32 s2, 135; s_cselect_b32 s{t+3}, s{t+3}, s{t+2}; s_cselect_b32 s{t}, {WS_WD}, s{t}; s_cselect_b32 s{t+6}, 280, s{t+6}
        s_and_b32 s{t+2}, s{sWave}, 1
        s_add_u32 s{t+3}, s{t+3}, s{t+2}
        s_mul_i32 s{t+3}, s{t+3}, 5120
        s_add_u32 s{t}, s{t}, s{t+3}
        s_cmp_lt_u32 s2, 185; s_cselect_b32 s{P+2}, s{P+2}, 0; s_cselect_b32 s{t}, s{t}, s{sOOB}
        s_lshl_b32 s{t+1}, s{t+1}, 3
        s_and_b32 s{t+2}, s{sWave}, 2
        s_lshl_b32 s{t+2}, s{t+2}, 1
        s_add_u32 s{t+1}, s{t+1}, s{t+2}
        s_sub_u32 s{t+6}, s{t+6}, 5
        """)
        for ch in range(4):
            r += lines(f"""
            s_add_u32 s{t+2}, s{t+1}, {ch}
            s_mul_i32 s{t+3}, s{t+2}, {DIV5}
            s_lshr_b32 s{t+3}, s{t+3}, 16
            s_mul_i32 s{t+3}, s{t+3}, s{t+6}
            s_add_u32 s{t+3}, s{t+3}, s{t+2}
            s_lshl_b32 s{t+3}, s{t+3}, 10
            s_add_u32 s{P+5+ch}, s{t+3}, s{t}
            """)
        return r
    def p2_params(self):
        t = sA
        if self.cfg.get("p2x") == 2:
            return lines(f"""
            s_lshr_b32 s{t}, s{sJ}, 1
            s_add_u32 s{sNb}, s{sMb}, s{t}
            s_and_b32 s{sNb}, s{sNb}, 3
            s_lshl_b32 s{t}, s{sHalf}, 2
            s_or_b32 s{sNb}, s{sNb}, s{t}
            s_and_b32 s{t}, s{sJ}, 1
            s_lshl_b32 s{sMb64}, s{sMb}, 1
            s_add_u32 s{sMb64}, s{sMb64}, s{t}
            s_lshl_b32 s{t}, s{t}, 2
            s_lshl_b32 s{sHalf}, 0x0f0f0f0f, s{t}
            """) + self.p2_params0()[5:]
        if self.cfg.get("p2x"):
            r = self.p2_params0()[5:]
            return lines(f"""
            s_add_u32 s{sNb}, s{sMb}, s{sJ}
            s_and_b32 s{sNb}, s{sNb}, 3
            s_lshl_b32 s{t}, s{sHalf}, 2
            s_or_b32 s{sNb}, s{sNb}, s{t}
            s_lshr_b32 s{t}, s{sJ}, 2
            s_lshl_b32 s{sMb64}, s{sMb}, 1
            s_add_u32 s{sMb64}, s{sMb64}, s{t}
            s_lshl_b32 s{t}, s{t}, 4
            s_lshl_b32 s{sHalf}, 0xffff, s{t}
            """) + r
        return self.p2_params0()
    def p2_params0(self):
        t = sA
        return lines(f"""
        s_lshl_b32 s{sNb}, s{sMb}, {0 if self.cfg.get("map8") else 1}
        s_add_u32 s{sNb}, s{sNb}, s{sJ}
        s_and_b32 s{sNb}, s{sNb}, {3 if self.cfg.get("map8") else 7}
        s_and_b32 s{t}, s{sJ}, {4 if self.cfg.get("map8") else 0}
        s_or_b32 s{sNb}, s{sNb}, s{t}
        s_mul_i32 s{t}, s{sWave}, 14
        s_mul_i32 s{sAb}, s{sMb64}, 56
        s_add_u32 s{sAb}, s{sAb}, s{t}
        s_lshl_b32 s{sAb}, s{sAb}, 12
        s_mul_i32 s{sBb}, s{sNb}, 56
        s_add_u32 s{sBb}, s{sBb}, s{t}
        s_mul_i32 s{sBb}, s{sBb}, 5120
        s_add_u32 s{sBb}, s{sBb}, {WS_WD}
        s_cmp_lt_u32 s{sWave}, 3; s_cselect_b32 s{sAb2}, s{sAb}, s{sOOB}; s_cselect_b32 s{sBb2}, s{sBb}, s{sOOB}
        s_mul_i32 s{t}, s{sMb64}, 81920
        s_add_u32 s{t}, s{t}, {WS_O}
        s_mul_i32 s{sOld}, s{sWave}, 20480
        s_add_u32 s{sOld}, s{sOld}, s{t}
        s_mul_i32 s{sOst}, s{sNb}, 10
        s_add_u32 s{sOst}, s{sOst}, s{sWave}
        s_lshl_b32 s{sOst}, s{sOst}, 8
        s_add_u32 s{sOst}, s{sOst}, s{t}
        s_cmp_lt_u32 s{sWave}, 2; s_cselect_b32 s{sOst2}, s{sOst}, s{sOOB}
        s_mul_i32 s{sWOb}, s{sNb}, 102400
        s_add_u32 s{sWOb}, s{sWOb}, {WS_WO}
        s_add_u32 s{sWOb}, s{sWOb}, s{sM0}
        s_lshl_b32 s{sKV}, s{sNb}, 2
        s_add_u32 s{sKV}, s{sKV}, s{sWave}
        s_mul_i32 s{sKV}, s{sKV}, 1280
        s_add_u32 s{sKV}, s{sKV}, {WS_QKV}
        s_lshl_b32 s{sXo}, s{sMb64}, 2
        s_add_u32 s{sXo}, s{sXo}, s{sWave}
        s_mul_i32 s{sXo}, s{sXo}, {16*1280}
        s_mul_i32 s{t}, s{sNb}, 160
        s_add_u32 s{sXo}, s{sXo}, s{t}
        s_lshl_b32 s{sFl0}, s{sMb}, 9
        s_add_u32 s{sFl0}, s{sFl0}, {WS_FLAG}
        s_max_u32 s{sFl1}, s{sMb}, 1
        s_lshl_b32 s{sFl1}, s{sFl1}, 9
        s_add_u32 s{sFl1}, s{sFl1}, {WS_FLAG - 512}
        s_lshl_b32 s{sFlG}, s{sWave}, 11
        s_add_u32 s{sFlG}, s{sFlG}, {WS_FLAG}
        s_lshl_b32 s{t}, s{sMb64}, 1
        v_lshrrev_b32 v{vQa}, 5, v0
        v_add_u32 v{vQa}, s{t}, v{vQa}
        v_mul_u32_u24 v{vQa}, 122880, v{vQa}
        v_and_b32 v{vKa}, 31, v0
        v_lshl_add_u32 v{vQa}, v{vKa}, 3, v{vQa}
        v_add_u32 v{vKa}, 8, v0
        v_lshrrev_b32 v{vT}, 4, v{vKa}
        v_add_u32 v{vT}, s{t}, v{vT}
        v_max_u32 v{vT}, 1, v{vT}
        v_subrev_u32 v{vT}, 1, v{vT}
        v_mul_u32_u24 v{vT}, 122880, v{vT}
        v_and_b32 v{vKa}, 15, v{vKa}
        v_lshl_add_u32 v{vKa}, v{vKa}, 4, v{vT}
        """)
    def switch_ops(self, P):
        t = sA
        return [f"v_mad_u32_u24 v{vLd}, v{vRow}, s{P+4}, v{vCol}",
                f"s_lshl_b32 s{sStep}, s{P+4}, 6",
                f"s_lshl_b32 s{t}, s{P+4}, 3",
                f"s_sub_u32 s{t}, s{t}, 1024",
                f"v_add_u32 v{vLd}, s{P+5}, v{vLd}",
                f"s_mul_i32 s{sWrap}, s{sStep}, 9",
                f"s_mov_b32 s{sSoff}, s{P+6}",
                f"v_xor_b32 v{vLd+1}, 64, v{vLd}",
                f"v_add_u32 v{vLd+1}, s{t}, v{vLd+1}",
                f"s_lshl_b32 s{t}, s{t}, 1",
                f"v_add_u32 v{vLd+2}, s{t}, v{vLd}",
                f"v_add_u32 v{vLd+3}, s{t}, v{vLd+1}"]
    def dma_items(self, g):
        P = PB[g // 10]; slot = self.alloc(("B", g))
        it = [("op", f"s_add_u32 m0, s{sM0}, {slot*16384}")]
        if g % 10 == 0 and g > 0: it += [("op", o) for o in self.switch_ops(P)]
        elif g % 10: it.append(("op", f"s_sub_u32 s{sSoff}, s{sSoff}, s{sStep}; s_cselect_b32 s{sSoff}, s{sWrap}, s{sSoff}"))
        it += [("ld", f"buffer_load_dwordx4 v{vLd+j}, s[{P}:{P+3}], s{sSoff} offen offset:{1024*j} lds", f"B{g}") for j in range(4)]
        return it
    def pop_ops(self):
        p = self.pend
        while p and p[0][0] != "ld": self.emit(p.pop(0)[1])
    def pop_ld(self):
        a = self.a; p = self.pend
        self.pop_ops()
        if p:
            if " m0," in a.lines[-1]: a("s_nop 0")
            _, l, tag = p.pop(0); self.vm.issue(a, l, tag)
    def tr_reads(self, G):
        g, s = G >> 2, G & 3
        slot = self.slot[("B", g)]; reg = slot >> 2
        o = (slot & 3) * 16384 + (s & 1) * 8192 + (s >> 1) * 4096
        r = []
        for t in range(4):
            b = WF + 16 * (G % NWB) + 4 * t
            r += [f"ds_read_b64_tr_b16 a[{b}:{b+1}], v{vTr+4*reg+t} offset:{o}",
                  f"ds_read_b64_tr_b16 a[{b+2}:{b+3}], v{vTr+4*reg+t} offset:{o+512}"]
        return r
    def center_ops(self, stage):
        x = XB + 16 * stage; t = EP
        d = []
        for i in range(16):
            d.append(f"v_dot2_f32_bf16 v{t+2*i}, v{x+i}, s{sLo}, v{vNegM + ((i >> 2) & 1)}")
            d.append(f"v_dot2_f32_bf16 v{t+2*i+1}, v{x+i}, s{sHi}, v{vNegM + ((i >> 2) & 1)}")
        c = [f"v_cvt_pk_bf16_f32 v{x+i}, v{t+2*i}, v{t+2*i+1}" for i in range(16)]
        return d, c
    def epi_f(self, acc, so):
        ops = []; sts = []; nb = self.cfg["stb"]
        for t in range(4):
            g = EP + 32 * (t & 1); u = g + 8; e = g + 16; pk = g + 24 + 4 * (t >> 1)
            A = acc + 16 * t
            for i in range(8): ops.append(f"v_accvgpr_read_b32 v{g+i}, a{A+i}")
            for i in range(8): ops.append(f"v_mul_f32 v{e+i}, v{vC1+(t&1)}, v{g+i}")
            for i in range(8):
                ops.append(f"v_exp_f32 v{e+i}, v{e+i}")
                ops.append(f"v_accvgpr_read_b32 v{u+i}, a{A+8+i}")
            for i in range(8): ops.append(f"v_fma_f32 v{e+i}, v{e+i}, v{vD2+(t&1)}, v{vD2+(t&1)}")
            for i in range(8):
                ops.append(f"v_rcp_f32 v{e+i}, v{e+i}")
                ops.append(f"v_mul_f32 v{g+i}, v{g+i}, v{u+i}")
            for i in range(8): ops.append(f"v_mul_f32 v{g+i}, v{g+i}, v{e+i}")
            for i in range(4): ops.append(f"v_cvt_pk_bf16_f32 v{pk+i}, v{g+2*i}, v{g+2*i+1}")
            if t == 2: sts.append(f"s_add_u32 s{so}, s{so}, 4096")
            sts.append(f"buffer_store_dwordx4 v[{pk}:{pk+3}], v{vL16}, s[{SRDW}:{SRDW+3}], s{so} offen offset:{(t&1)*1024} sc1")
            if (t + 1) % nb == 0:
                ops.append("; ".join(sts)); sts = []
        return ops
    def epi_f_tail(self, acc, so):
        ops = []
        p2 = lambda r: f"v[{r}:{r+1}]"
        for t in range(4):
            g = EP + 32 * (t & 1); u = g + 8; e = g + 16; pk = g + 24
            A = acc + 16 * t
            for i in range(8): ops.append(f"v_accvgpr_read_b32 v{g+i}, a{A+i}")
            for i in range(4): ops.append(f"v_pk_mul_f32 {p2(e+2*i)}, {p2(vC1)}, {p2(g+2*i)} op_sel:[{t&1},0] op_sel_hi:[{t&1},1]")
            for i in range(8):
                ops.append(f"v_exp_f32 v{e+i}, v{e+i}")
                ops.append(f"v_accvgpr_read_b32 v{u+i}, a{A+8+i}")
            for i in range(4): ops.append(f"v_pk_fma_f32 {p2(e+2*i)}, {p2(e+2*i)}, {p2(vD2)}, {p2(vD2)} op_sel:[0,{t&1},{t&1}] op_sel_hi:[1,{t&1},{t&1}]")
            for i in range(8): ops.append(f"v_rcp_f32 v{e+i}, v{e+i}")
            for i in range(4): ops.append(f"v_pk_mul_f32 {p2(g+2*i)}, {p2(g+2*i)}, {p2(u+2*i)}")
            for i in range(4): ops.append(f"v_pk_mul_f32 {p2(g+2*i)}, {p2(g+2*i)}, {p2(e+2*i)}")
            for i in range(4): ops.append(f"v_cvt_pk_bf16_f32 v{pk+i}, v{g+2*i}, v{g+2*i+1}")
            if t == 2: ops.append(f"s_add_u32 s{so}, s{so}, 4096")
            ops.append(f"buffer_store_dwordx4 v[{pk}:{pk+3}], v{vL16}, s[{SRDW}:{SRDW+3}], s{so} offen offset:{(t&1)*1024} sc1")
        return ops
    def epi_q(self, acc, so):
        ops = [f"s_add_u32 s{so-1}, s{so}, 4096"]; sts = []; nb = self.cfg["stb"]
        for t in range(4):
            g = EP; pk = EP + 16 + 8 * t
            A = acc + 16 * t
            for i in range(16): ops.append(f"v_accvgpr_read_b32 v{g+i}, a{A+i}")
            for i in range(16): ops.append(f"v_mul_f32 v{g+i}, v{vR[t&1]}, v{g+i}")
            for i in range(8): ops.append(f"v_cvt_pk_bf16_f32 v{pk+i}, v{g+2*i}, v{g+2*i+1}")
            for q in range(4):
                sts.append(f"buffer_store_dwordx2 v[{pk+2*q}:{pk+2*q+1}], v{vSF}, s[{SRDW}:{SRDW+3}], s{so-(q>>1)} offen offset:{(2*(t>>1)+(q&1))*1024 + (t&1)*128} sc1")
            if (t + 1) % nb == 0:
                if self.cfg.get("stq", True): ops.append("; ".join(sts))
                else: ops += sts
                sts = []
        return ops
    def publish(self, level, after):
        a = self.a
        for tg in after: self.vm.wait(a, tg)
        a(f"v_mov_b64 v[{self.vPub}:{self.vPub+1}], s[{sTok}:{sTok+1}]")
        a(f"s_add_u32 s{sA+8}, s{sFlag}, {level*8192}")
        a("s_mov_b64 exec, 1")
        self.vm.issue(a, f"buffer_store_dwordx2 v[{self.vPub}:{self.vPub+1}], off, s[{SRDW}:{SRDW+3}], s{sA+8} sc1", "fl")
        a("s_mov_b64 exec, -1")
    def retouch(self, kind, so=None):
        if kind not in self.cfg.get("rt", ""): return
        a = self.a; r = 88 if kind == "P" else self.vPub - 2
        if kind == "P":
            a(f"v_lshlrev_b32 v{r}, 7, v0\ns_mov_b64 exec, 0xff")
            for ch in range(4): self.vm.issue(a, f"buffer_load_dword v{r+1}, v{r}, s[{SRDW}:{SRDW+3}], s{PK+5+ch} offen", "rt")
            a("s_mov_b64 exec, -1")
        elif kind == "Q":
            a(f"v_lshlrev_b32 v{r}, 7, v0")
            self.vm.issue(a, f"buffer_load_dword v{r}, v{r}, s[{SRDW}:{SRDW+3}], s{so} offen", "rt")
        else:
            a(f"v_and_b32 v{r}, 16, v0\nv_add_u32 v{r}, v{r}, v0\nv_lshlrev_b32 v{r}, 7, v{r}\ns_sub_u32 s{sA+8}, s{so}, 4096\ns_mov_b32 exec_hi, 0")
            self.vm.issue(a, f"buffer_load_dword v{r}, v{r}, s[{SRDW}:{SRDW+3}], s{sA+8} offen", "rt")
            a("s_mov_b32 exec_hi, -1")
    def flag_ld(self, reg, soff, level, off, sc):
        return [f"s_add_u32 s{sA+8}, s{soff}, {level*8192}",
                f"buffer_load_dwordx2 v[{reg}:{reg+1}], v{vL8}, s[{SRDW}:{SRDW+3}], s{sA+8} offen offset:{off} {sc}"]
    def flag_load(self, reg, soff, tag, level, off=0):
        l = self.flag_ld(reg, soff, level, off, "")
        self.a(l[0]); self.vm.issue(self.a, l[1], tag)
    def flag_check(self, reg, soff, tag, level, half=False, off=0):
        a = self.a; L = a.newlabel("fc")
        self.vm.wait(a, tag)
        test = f"v_cmp_ne_u64 vcc, s[{sTok}:{sTok+1}], v[{reg}:{reg+1}]\n"
        if half and self.cfg.get("p2x"): test += f"s_nop 0\ns_or_b32 s{sA+8}, vcc_lo, vcc_hi\ns_and_b32 s{sA+8}, s{sA+8}, s{sHalf}"
        elif half: test += f"s_cmp_eq_u32 s{sHalf}, 0\ns_cselect_b32 s{sA+8}, vcc_lo, vcc_hi\ns_cmp_lg_u32 s{sA+8}, 0"
        else: test += "s_nop 0\ns_cmp_lg_u64 vcc, 0"
        a(test)
        a(f"s_cbranch_scc1 {L}_slow")
        a.label(f"{L}_ok")
        l = self.flag_ld(reg, soff, level, off, "sc1")
        self.slow.append(f"""
        {L}_slow:
        s_mov_b32 s{sA+9}, 0
        {L}_spin:
        {l[0]}
        {l[1]}
        s_add_u32 s{sA+9}, s{sA+9}, 1
        s_cmp_gt_u32 s{sA+9}, {self.cfg["spin"]}
        s_waitcnt vmcnt(0)
        s_cbranch_scc1 {L}_ok
        {test}
        s_cbranch_scc0 {L}_ok
        s_sleep {self.cfg.get("sleep", 4)}
        s_branch {L}_spin
        """)

    def body(self, T, work, ntask, wrange=(4, 156), center=False, extra=None, vq=None, vq1=1, vq2=1, before=None):
        a = self.a; cfg = self.cfg; acc = ACC[T & 1]; LA = cfg["LA"]
        ngap = 160
        per = [[] for _ in range(ngap)]
        def cost(op):
            if not isinstance(op, str): return 3.0
            if op.startswith(("v_exp", "v_rcp")): return 2.0
            if op.startswith("buffer_"): return 3.0 * (1 + op.count(";"))
            return 1.0 + op.count(";")
        def is_bar(S):
            n1 = 10 * T + (S >> 2) + 1
            if (S & 3) != 1 or n1 >= 10 * ntask: return False
            return (n1 % 2 == 0) if cfg["bar2"] else True
        cap = []
        for g in range(ngap):
            c = cfg["cap"] - ([3, 3, 2, 0] if is_bar(g >> 2) else cfg["rpat"])[g & 3]
            if (g & 3) == cfg["dmagap"] or ((g & 3) == 0 and vq): c -= 2.5
            if (g & 3) == 3: c -= 1
            if (g & 3) == 3 and is_bar(g >> 2): c = 0
            cap.append(max(c, 0.0))
        if center:
            for st in range(cfg["nc"], 10):
                d, c = self.center_ops(st)
                base = 16 * (st - 1)
                per[base] += d
                cg = [base + x for x in (1, 3, 4, 5, 8, 9, 11, 12, 13)]
                for i, op in enumerate(c): per[cg[i * len(cg) // 16]].append(op)
        used = lambda g: sum(cost(o) for o in per[g])
        self.ends = {}
        for g00, fn in (extra or {}).items():
            if not isinstance(fn, list): per[g00].append(fn)
        for g00, fn in (extra or {}).items():
            if isinstance(fn, list):
                g = g00; room = 0.0
                for op in fn:
                    while room <= 0:
                        room = cap[g] - used(g); g += 1
                    per[g - 1].append(op); room -= cost(op)
                self.ends[g00] = g - 1
        for a_, b_ in (before or []): assert self.ends[a_] < b_, (a_, self.ends[a_], b_)
        if work:
            g0, g1 = wrange
            cap = [max(cap[g] - used(g), 0.0) for g in range(ngap)]
            scale = sum(cost(o) for o in work) / sum(cap[g0:g1])
            if cfg.get("verbose"): print("body", T, "work scale", scale)
            g = g0; room = cap[g] * scale
            for op in work:
                while room <= 0 and g < g1 - 1:
                    g += 1; room += cap[g] * scale
                per[g].append(op); room -= cost(op)
        vq = list(vq or [])
        for S in range(40):
            i, s = S >> 2, S & 3
            G = 40 * T + S; n = 10 * T + i
            rd = self.tr_reads(G + 2) if G + 2 < 40 * ntask else []
            if s == 2:
                k = 0
                while self.next <= n + LA and self.next < 10 * ntask and k < 2 and self.cands(("B", self.next)):
                    self.pend += self.dma_items(self.next); self.next += 1; k += 1
            for t in range(4):
                gap = 4 * S + t
                if t == 0: a(f"s_waitcnt lgkmcnt({8 if G + 1 < 40 * ntask else 0})")
                w = WF + 16 * (G % NWB) + 4 * t; x = XB + 8 * (S >> 1)
                def mm(m):
                    A = acc + 16 * (2 * (t >> 1) + m) + 8 * (S & 1) + 4 * (t & 1)
                    return f"v_mfma_f32_16x16x32_bf16 a[{A}:{A+3}], a[{w}:{w+3}], v[{x+4*m}:{x+4*m+3}], {'0' if S < 2 else f'a[{A}:{A+3}]'}"
                a(mm(0)); l0_ = len(a.lines)
                pat = [3, 3, 2, 0] if is_bar(S) else cfg["rpat"]
                r2_ = []
                for q_ in range(pat[t]):
                    if rd and cfg["split"] and q_ >= (pat[t] + 1) // 2: r2_.append(rd.pop(0))
                    elif rd: a(rd.pop(0))
                nld = sum(1 for p_ in self.pend if p_[0] == "ld")
                if self.pend and (t == cfg["dmagap"] or (nld > 4 and t == 0)): self.pop_ld()
                elif vq and ((t == 0 and S % vq1 == 0) or (t == cfg["dmagap"] and not self.pend and S % vq2 == 0)):
                    for j_, it_ in enumerate(vq):
                        if it_[0](gap):
                            vq.pop(j_)[1](); break
                if t == cfg["dmagap"] - 1: self.pop_ops()
                if T == cfg.get("markT", 2) and gap % 16 == 9: self.mark(gap // 16)
                for op in per[gap]:
                    if callable(op): op()
                    else: self.emit(op, f"E{T-1}")
                fl_ = a.lines[l0_:]; cs_ = [cfg["vc"] if "buffer_" in l else 2.0 if ("v_exp" in l or "v_rcp" in l) else 1.0 for l in fl_]
                ok_ = [0]; dep = 0
                for j_, l in enumerate(fl_):
                    if "v_dot2" in l: break
                    if "exec" in l: dep = 0 if l.strip().endswith("-1") else 1
                    if "s_cbranch" in l and "_slow" not in l: dep = 2
                    if l.endswith(":") and dep == 2: dep = 0
                    if dep == 0 and "s_cbranch" not in l: ok_.append(j_ + 1)
                best = min(ok_, key=lambda p_: abs(sum(cs_[:p_]) - (sum(cs_) + len(r2_) + (1 if t == 3 else 0)) * cfg["mid"])) if not any("v_dot2" in l for l in fl_) else ok_[-1]
                a.lines[l0_ + best:l0_ + best] = ["    " + l for l in [mm(1)] + r2_]
                if t == 3 and is_bar(S):
                    last = n + 2 if cfg["bar2"] and n + 2 < 10 * ntask else n + 1
                    self.vm.wait(a, f"B{last}", 4)
                    a("s_barrier")
                    self.lastbar = n
            assert not rd
        return vq

    def att_loads(self, al=True):
        a = self.a
        out = []
        for kv in range(2):
            for i in range(5):
                def f(kv=kv, i=i):
                    assert not self.pend
                    a(f"s_add_u32 m0, s{sM0}, {(self.KS+kv)*16384 + i*640 - 256*i}")
                    if i == 0: a(f"s_add_u32 s{sA+6}, s{sKV}, {(kv+1)*40960}")
                    a("s_mov_b32 exec_hi, 0xff")
                    self.vm.issue(a, f"buffer_load_dwordx4 v{vKa}, s[{SRDW}:{SRDW+3}], s{sA+6} offen offset:{256*i} sc1 lds", "KV")
                    a("s_mov_b32 exec_hi, -1")
                out.append(f)
        for i in range(5):
            out.append(lambda i=i: self.vm.issue(a, f"buffer_load_dwordx2 v[{XB+2*i}:{XB+2*i+1}], v{vQa}, s[{SRDW}:{SRDW+3}], s{sKV} offen offset:{256*i} sc1", "KV"))
        return out
    def attention(self, inter):
        a = self.a; vm = self.vm
        Q = XB; AK = 1; AK2 = 2; RW = 3; L = 4; P = 236; O = 216
        kvb = [[196, 200, 204, 208, 212], [106, 110, 252, 12, 26]]
        code = []; e = code.append
        def rd(n):
            m = n & 3
            if n == 4:
                e(f"v_add_u32 v{AK}, 16384, v{AK}"); e(f"v_add_u32 v{AK2}, 16384, v{AK2}")
            for i in range(5):
                b = kvb[n & 1][i]; o = (i % 3) * 80 + 16 - 4 * m
                e(f"ds_read2_b64 v[{b}:{b+3}], v{AK if i < 3 else AK2} offset0:{o} offset1:{o-2}")
        a(f"""
        s_add_u32 s{sA}, s{sM0}, {self.KS*16384}
        v_add_u32 v{AK}, s{sA}, v{vL8}
        v_add_u32 v{AK2}, 1920, v{AK}
        s_mov_b32 s{sA+1}, 0x{C_SM:x}
        """)
        vm.wait(a, "KV", 15)
        self.mark(23)
        rd(0)
        for n in range(8):
            m = n & 3; B = kvb[n & 1]
            e("s_waitcnt lgkmcnt(0)")
            if n < 4:
                for i in range(10):
                    for h in range(2):
                        src = f"v{Q+i}, v{B[i>>1] + 2*h + (i&1)}"
                        e(f"v_dot2_f32_bf16 v{L+2*m+h}, {src}, 0" if i == 0 else f"v_dot2c_f32_bf16 v{L+2*m+h}, {src}")
                    if i == 0: rd(n + 1)
            else:
                if n + 1 < 8: rd(n + 1)
                for h in range(2):
                    w = 2 * m + h
                    for i in range(10):
                        for j in range(2):
                            src = f"v{B[i>>1] + 2*h + (i&1)}, v{P+2*w+j}"
                            e(f"v_dot2_f32_bf16 v{O+2*i+j}, {src}, 0" if w == 0 else f"v_dot2c_f32_bf16 v{O+2*i+j}, {src}")
            if n == 3:
                Lm = a.newlabel("am")
                blk = [f"s_cmp_lg_u32 s{sMb64}, 0", f"s_cbranch_scc1 {Lm}", f"v_mov_b32 v{P}, 0xce6e6b28"]
                for ww in range(1, 8):
                    blk += [f"v_cmp_gt_u32 vcc, {2*ww}, v0", "s_nop 1", f"v_cndmask_b32 v{L+ww}, v{L+ww}, v{P}, vcc"]
                blk += [f"{Lm}:"]
                e("\n".join(blk))
                e(f"v_max3_f32 v{P}, v{L}, v{L+1}, v{L+2}")
                e(f"v_max3_f32 v{P}, v{P}, v{L+3}, v{L+4}")
                e(f"v_max3_f32 v{P}, v{P}, v{L+5}, v{L+6}")
                e(f"v_max_f32 v{P}, v{P}, v{L+7}")
                e(f"v_mul_f32 v{P}, s{sA+1}, v{P}")
                for ww in range(8): e(f"v_fma_f32 v{L+ww}, v{L+ww}, s{sA+1}, -v{P}")
                for ww in range(8): e(f"v_exp_f32 v{L+ww}, v{L+ww}")
                e(f"v_pk_add_f32 v[{P}:{P+1}], v[{L}:{L+1}], v[{L+2}:{L+3}]")
                e(f"v_pk_add_f32 v[{P+2}:{P+3}], v[{L+4}:{L+5}], v[{L+6}:{L+7}]")
                e(f"v_pk_add_f32 v[{P}:{P+1}], v[{P}:{P+1}], v[{P+2}:{P+3}]")
                e(f"v_add_f32 v{P}, v{P}, v{P+1}")
                e(f"v_rcp_f32 v{P}, v{P}\ns_nop 0")
                for ww in range(4): e(f"v_pk_mul_f32 v[{L+2*ww}:{L+2*ww+1}], v[{L+2*ww}:{L+2*ww+1}], v[{P}:{P+1}] op_sel_hi:[1,0]")
                for ww in range(8):
                    e(f"v_cvt_pk_bf16_f32 v{P+2*ww}, v{L+ww}, 0")
                    e(f"v_cvt_pk_bf16_f32 v{P+2*ww+1}, 0, v{L+ww}")
        e(f"s_mul_i32 s{sA}, s{sWave}, 2560\ns_add_u32 s{sA}, s{sA}, {(self.KS+2)*16384}\nv_add_u32 v{AK}, s{sA}, v{vL8}")
        e(f"s_mul_i32 s{sA}, s{sWave}, 3\ns_and_b32 s{sA}, s{sA}, 13\ns_min_u32 s{sA}, s{sA}, 5\ns_lshl_b32 s{sA}, s{sA}, 9\ns_add_u32 s{sA}, s{sA}, {(self.KS+2)*16384}\nv_add_u32 v{AK2}, s{sA}, v{vL8}")
        e(f"v_lshrrev_b32 v{RW}, 4, v0"); e(f"v_mul_u32_u24 v{RW}, {20480-256}, v{RW}"); e(f"v_add_u32 v{RW}, v{RW}, v{vL16}")
        for i in range(5):
            e(f"v_cvt_pk_bf16_f32 v{Q+2*i}, v{O+4*i}, v{O+4*i+1}")
            e(f"v_cvt_pk_bf16_f32 v{Q+2*i+1}, v{O+4*i+2}, v{O+4*i+3}")
            e(f"ds_write_b64 v{AK}, v[{Q+2*i}:{Q+2*i+1}] offset:{512*i}")
        inter = list(inter); n = len(code); k = len(inter); j = 0
        for i, ins in enumerate(code):
            a(ins)
            while j < k and j < (i + 1) * k // (n - 10):
                inter[j](); j += 1
        self.mark(25)
        if self.cfg["nokb"]: vm.wait(a, "WO", 25)
        a("s_waitcnt lgkmcnt(0)\ns_barrier")
        for r in range(3): a(f"ds_read2st64_b64 v[{4+4*r}:{7+4*r}], v{AK2} offset0:{8*r} offset1:{8*r+2}")
        return [lambda r=r: (a(f"s_waitcnt lgkmcnt({2-r})"),
                             vm.issue(a, f"buffer_store_dwordx4 v[{4+4*r}:{7+4*r}], v{RW}, s[{SRDW}:{SRDW+3}], s{sOst2 if r == 2 else sOst} offen offset:{1024*r} sc1", "O")) for r in range(3)]

    BSLOT = ["a176", "a196", "a216", "a236", "v116", "v136", "v156", "v176", "a64", "a84", "a104", "a128", "a148", "v96"]
    ASLOT = ["v32", "v48", "v64", "v80", "v196", "v216", "v32", "v48", "v64", "v80", "v196", "v32", "v48", "v64"]
    AEARLY = [0, 0, 0, 0, 0, 0, 1, 2, 3, 4, 5, 7, 8, 9]
    @staticmethod
    def rr(base, off, n=4):
        return f"{base[0]}[{int(base[1:])+off}:{int(base[1:])+off+n-1}]"
    def b_loads(self, k):
        a = self.a; out = []
        for u in range(5):
            def f(u=u):
                if u == 0: a(f"s_add_u32 s{sGb}, s{sBb if k < 12 else sBb2}, {k*5120}")
                if u == 4: a(f"s_add_u32 s{sGb}, s{sGb}, 4096")
                self.vm.issue(a, f"buffer_load_dwordx4 {self.rr(self.BSLOT[k], 4*u)}, v{vL16}, s[{SRDW}:{SRDW+3}], s{sGb} offen offset:{1024*(u&3)} sc1", f"PB{k}")
            out.append(f)
        return out
    def a_loads(self, k):
        a = self.a; out = []
        for i in range(4):
            def f(i=i):
                if i == 0: a(f"s_add_u32 s{sGa}, s{sAb if k < 12 else sAb2}, {k*4096}")
                self.vm.issue(a, f"buffer_load_dwordx4 {self.rr(self.ASLOT[k], 4*i)}, v{vA[i]}, s[{SRDW}:{SRDW+3}], s{sGa} offen sc1", f"PA{k}")
            out.append(f)
        return out
    def wo_loads(self, s):
        a = self.a; out = []
        for j in range(4 if s < 6 else 1):
            def f(j=j):
                assert not self.pend
                if j == 0 and self.owner[s] != ("WO", s): self.alloc(("WO", s), s)
                if self.m0 != ("WO", s):
                    if s < 6:
                        a(f"s_add_u32 m0, s{sM0}, {s*16384}\ns_add_u32 s{sA+7}, s{sWOb}, {s*16384}")
                    else:
                        a(f"s_lshr_b32 s{sA+7}, s{sM0}, 2\ns_add_u32 m0, s{sA+7}, {6*16384}\ns_sub_u32 s{sA+7}, s{sWOb}, s{sM0}\ns_add_u32 s{sA+7}, s{sA+7}, m0")
                self.m0mark = (len(a.lines), ("WO", s))
                self.vm.issue(a, f"buffer_load_dwordx4 v{vL16}, s[{SRDW}:{SRDW+3}], s{sA+7} offen offset:{1024*j} sc1 lds", "WO")
            out.append(f)
        return out
    @property
    def m0(self):
        mk = getattr(self, "m0mark", None)
        if not mk: return None
        for l in self.a.lines[mk[0]:]:
            if " m0," in l or f"s{sA+7}," in l.split(",")[0] + "," and l.strip().startswith("s_") or l.endswith(("_join:", "_two:")): return None
        return mk[1]

    def build(self):
        a = self.a; cfg = self.cfg; label = self.label
        vm = self.vm
        sX = sA + 9
        a.begin_kernel(label)
        a(f"""
        s_cmp_ge_u32 s2, 256
        s_cbranch_scc1 {label}_end
        s_load_dwordx2 s[4:5], s[0:1], 0
        s_load_dwordx2 s[{pQKV}:{pQKV+1}], s[0:1], 8
        s_load_dwordx2 s[{pWO}:{pWO+1}], s[0:1], 16
        s_load_dwordx4 s[{pG}:{pG+3}], s[0:1], 32
        s_load_dwordx2 s[{pDN}:{pDN+1}], s[0:1], 48
        s_load_dwordx2 s[6:7], s[0:1], 56
        s_load_dwordx2 s[{pWS}:{pWS+1}], s[0:1], 72
        """)
        self.stamp(0)
        if self.stamps: a(f"s_memrealtime s[{sTok}:{sTok+1}]")
        NL = cfg.get("codelines", 11)
        a(f"""
        s_getpc_b64 s[{sA}:{sA+1}]
        s_lshr_b32 s{sA+2}, s2, 3
        s_mul_i32 s{sA+2}, s{sA+2}, {NL*128}
        v_lshlrev_b32 v{vT}, 7, v0
        v_add_u32 v{vT}, s{sA+2}, v{vT}
        v_min_u32 v{vT}, {label}_end-{label}-128, v{vT}
        v_cmp_gt_u32 vcc, {NL}, v0
        s_and_saveexec_b64 s[{sA+2}:{sA+3}], vcc
        s_cbranch_execz {label}_nt
        global_load_dword v95, v{vT}, s[{sA}:{sA+1}]
        {label}_nt:
        s_mov_b64 exec, -1
        v_lshrrev_b32 v{vT}, 6, v0
        v_and_b32 v0, 63, v0
        s_and_b32 s{sA}, s2, 7
        v_readfirstlane_b32 s{sWave}, v{vT}
        """)
        if cfg.get("map2"):
            a(f"""
            s_lshr_b32 s{sA+2}, s2, 7
            s_lshl_b32 s{sMb}, s{sA}, 1
            s_add_u32 s{sMb}, s{sMb}, s{sA+2}
            s_bfe_u32 s{sHalf}, s2, 0x10006
            s_bfe_u32 s{sJ}, s2, 0x30003
            s_lshl_b32 s{sA+3}, s{sA}, 2
            s_lshr_b32 s{sRot}, {cfg.get("rot2", 0x43210432)}, s{sA+3}
            s_and_b32 s{sRot}, s{sRot}, 15
            s_mul_i32 s{sA+3}, s{sA+2}, {cfg.get("rot2m", 5)}
            s_add_u32 s{sRot}, s{sRot}, s{sA+3}
            s_add_u32 s{sRot}, s{sRot}, s{sJ}
            s_lshl_b32 s{sA+3}, s{sHalf}, 1
            s_add_u32 s{sRot}, s{sRot}, s{sA+3}
            """)
        elif not cfg.get("map8"):
            a(f"""
            s_lshr_b32 s{sA+1}, s2, 3
            s_and_b32 s{sHalf}, s{sA}, 1
            s_lshr_b32 s{sA}, s{sA}, 1
            s_lshl_b32 s{sA}, s{sA}, 2
            s_lshr_b32 s{sA+2}, s{sA+1}, 3
            s_add_u32 s{sMb}, s{sA}, s{sA+2}
            s_and_b32 s{sJ}, s{sA+1}, 7
            s_lshl_b32 s{sRot}, s{sA+2}, 2
            s_lshr_b32 s{sRot}, {cfg["rotm"]}, s{sRot}
            s_and_b32 s{sRot}, s{sRot}, 15
            s_add_u32 s{sRot}, s{sRot}, s{sJ}
            s_lshr_b32 s{sA+3}, {cfg["rotx"]}, s{sA}
            s_and_b32 s{sA+3}, s{sA+3}, 15
            s_add_u32 s{sRot}, s{sRot}, s{sA+3}
            s_mul_i32 s{sA+3}, s{sHalf}, {cfg.get("roth", 0)}
            s_add_u32 s{sRot}, s{sRot}, s{sA+3}
            """)
        else:
            a(f"""
            s_lshr_b32 s{sA+2}, s2, 5
            s_and_b32 s{sMb}, s{sA}, 4
            s_lshl_b32 s{sMb}, s{sMb}, 1
            s_add_u32 s{sMb}, s{sMb}, s{sA+2}
            s_bfe_u32 s{sHalf}, s2, 0x10001
            s_bfe_u32 s{sA+1}, s2, 0x20003
            s_and_b32 s{sJ}, s2, 1
            s_lshl_b32 s{sJ}, s{sJ}, 2
            s_add_u32 s{sJ}, s{sJ}, s{sA+1}
            s_lshl_b32 s{sRot}, s{sA+1}, 2
            s_lshr_b32 s{sRot}, 0x7520, s{sRot}
            s_and_b32 s{sRot}, s{sRot}, 15
            s_lshl_b32 s{sA+3}, s{sA+2}, 2
            s_lshr_b32 s{sA+3}, {cfg.get("rot8", 0x43210210)}, s{sA+3}
            s_and_b32 s{sA+3}, s{sA+3}, 15
            s_add_u32 s{sRot}, s{sRot}, s{sA+3}
            s_lshr_b32 s{sA+3}, s{sA}, 2
            s_mul_i32 s{sA+3}, s{sA+3}, 5
            s_add_u32 s{sRot}, s{sRot}, s{sA+3}
            s_and_b32 s{sA+3}, s2, 1
            s_add_u32 s{sRot}, s{sRot}, s{sA+3}
            """)
        a(f"""
        s_lshl_b32 s{sM0}, s{sWave}, 12
        s_sub_u32 s{sA+3}, s{sRot}, 10
        s_min_u32 s{sRot}, s{sRot}, s{sA+3}
        s_lshl_b32 s{sX}, s{sRot}, 7
        s_lshl_b32 s{sA}, s{sMb}, 7
        s_lshl_b32 s{sA+1}, s{sWave}, 5
        s_add_u32 s{sA}, s{sA}, s{sA+1}
        s_mul_i32 s{sA}, s{sA}, 1280
        v_lshrrev_b32 v{vT}, 3, v0
        v_mul_u32_u24 v{vT}, 1280, v{vT}
        v_add_u32 v{vT}, s{sA}, v{vT}
        v_lshrrev_b32 v{vT+1}, 4, v0
        v_and_b32 v{vT+2}, 7, v0
        v_xor_b32 v{vT+1}, v{vT+1}, v{vT+2}
        v_xor_b32 v{vT+2}, 4, v{vT+1}
        v_lshl_add_u32 v{EP+4}, v{vT+1}, 4, v{vT}
        v_lshl_add_u32 v{EP+5}, v{vT+2}, 4, v{vT}
        v_add_u32 v{EP+5}, {8*1280-1024}, v{EP+5}
        v_add_u32 v{EP+6}, {2*(8*1280-1024)}, v{EP+4}
        v_add_u32 v{EP+7}, {2*(8*1280-1024)}, v{EP+5}
        s_mov_b32 s{SRDX+2}, {2048*1280}
        s_mov_b32 s{SRDX+3}, 0x20000
        s_mov_b32 m0, s{sM0}
        """)
        sS = sA + 7; sC = sA + 8
        setup = lines(f"""
        s_mov_b32 s{sOOB}, {OOB}
        s_lshl_b32 s{sS}, s{sHalf}, 3
        s_add_u32 s{sS}, s{sS}, s{sJ}
        v_lshrrev_b32 v{vRow}, 3, v0
        s_and_b32 s{sA}, s{sWave}, 1
        s_lshl_b32 s{sA}, s{sA}, 5
        v_add_u32 v{vRow}, s{sA}, v{vRow}
        v_bfe_u32 v{vT}, v0, 1, 2
        v_bfe_u32 v{vT+1}, v0, 4, 1
        v_xor_b32 v{vT}, v{vT}, v{vT+1}
        v_and_b32 v{vT+1}, 1, v0
        v_lshlrev_b32 v{vT+1}, 4, v{vT+1}
        v_lshl_add_u32 v{vCol}, v{vT}, 5, v{vT+1}
        s_add_u32 s{sC}, s{sS}, {cfg["qsh"]}
        s_and_b32 s{sC}, s{sC}, 15
        """) + self.q_params(PB[0], sC) + self.switch_ops(PB[0])
        ptr = [o for o in setup if f"s{pQKV}" in o or f"s{pQKV+1}" in o]
        for o in setup:
            if o not in ptr: self.emit(o)
        a(f"s_waitcnt lgkmcnt(0)\ns_mov_b32 s{SRDX}, s4\ns_mov_b32 s{SRDX+1}, s5")
        if self.stamps: a(f"s_mov_b32 s1, s{sTok}")
        setup = ptr + ([f"s_add_u32 s{pWS}, s{pWS}, {cfg['wsoff']}; s_addc_u32 s{pWS+1}, s{pWS+1}, 0"] if cfg.get("wsoff") else []) + lines(f"""
        s_add_u32 s{sA}, s{pWS}, {WS_EPOCH}; s_addc_u32 s{sA+1}, s{pWS+1}, 0
        s_load_dwordx2 s[{sTok}:{sTok+1}], s[{sA}:{sA+1}], 0
        """)
        n_first = len(setup)
        setup += lines(f"""
        s_mov_b32 s{sOne}, 0x3f803f80
        s_mov_b32 s{sLo}, 0x00003f80
        s_mov_b32 s{sHi}, 0x3f800000
        v_and_b32 v{vT}, 15, v0
        v_lshlrev_b32 v{vT+1}, 7, v{vT}
        v_add_u32 v{vT+1}, s{sM0}, v{vT+1}
        v_bfe_u32 v{vT}, v0, 1, 3
        v_lshrrev_b32 v{vT+2}, 4, v0
        v_xor_b32 v{vT}, v{vT}, v{vT+2}
        """)
        XA = EP + 8
        for s in range(2):
            setup.append(f"v_xor_b32 v{vT+2}, {4*s}, v{vT}")
            setup.append(f"v_lshl_add_u32 v{XA+s}, v{vT+2}, 4, v{vT+1}")
            setup.append(f"v_add_u32 v{XA+4+s}, 0x10000, v{XA+s}")
            setup.append(f"v_add_u32 v{XA+8+s}, 0x20000, v{XA+s}")
        setup += lines(f"""
        v_mov_b64 v[{vSum}:{vSum+1}], 0
        v_mov_b64 v[{vSum+2}:{vSum+3}], 0
        v_lshlrev_b32 v{vL16}, 4, v0
        v_lshlrev_b32 v{vL8}, 3, v0
        v_bfe_u32 v{vT}, v0, 4, 1
        v_bfe_u32 v{vT+1}, v0, 2, 2
        v_lshrrev_b32 v{vT+2}, 4, v0
        v_lshl_add_u32 v{vT+2}, v{vT+2}, 3, v{vT+1}
        v_lshlrev_b32 v{vT+2}, 7, v{vT+2}
        v_and_b32 v{EP}, 3, v0
        v_lshl_add_u32 v{vT+2}, v{EP}, 3, v{vT+2}
        v_lshrrev_b32 v{vT+1}, 1, v{vT+1}
        v_lshl_add_u32 v{vT}, v{vT}, 1, v{vT+1}
        """)
        for t in range(4):
            setup.append(f"v_xor_b32 v{vT+1}, {t}, v{vT}")
            setup.append(f"v_lshl_add_u32 v{vTr+t}, v{vT+1}, 5, v{vT+2}")
            setup.append(f"v_add_u32 v{vTr+4+t}, 0x10000, v{vTr+t}")
            setup.append(f"v_add_u32 v{vTr+8+t}, 0x20000, v{vTr+t}")
        setup += lines(f"""
        v_lshrrev_b32 v{vT}, 4, v0
        v_lshlrev_b32 v{vT}, 8, v{vT}
        v_and_b32 v{vT+1}, 15, v0
        v_lshl_add_u32 v{vSF}, v{vT+1}, 3, v{vT}
        s_mov_b32 s{SRDW}, s{pWS}
        s_mov_b32 s{SRDW+1}, s{pWS+1}
        s_mov_b32 s{SRDW+2}, {WS_SIZE}
        s_mov_b32 s{SRDW+3}, 0x20000
        s_lshl_b32 s{sMb64}, s{sMb}, 1
        s_add_u32 s{sMb64}, s{sMb64}, s{sHalf}
        s_lshl_b32 s{sFlag}, s{sMb}, 4
        s_add_u32 s{sFlag}, s{sFlag}, s{sS}
        s_lshl_b32 s{sFlag}, s{sFlag}, 2
        s_add_u32 s{sFlag}, s{sFlag}, s{sWave}
        s_lshl_b32 s{sFlag}, s{sFlag}, 3
        s_add_u32 s{sFlag}, s{sFlag}, {WS_FLAG}
        """) + (lines(f"""
        s_lshr_b32 s{sA}, s{sS}, 2
        s_sub_u32 s{sC}, s{sS}, s{sA}
        s_add_u32 s{sC}, s{sC}, 16
        s_and_b32 s{sA}, s{sS}, 3
        s_cmp_lt_u32 s{sA}, 3; s_cselect_b32 s{sC}, s{sC}, 31
        s_cmp_lt_u32 s{sC}, 27; s_cselect_b32 s{sThree}, 1, 0
        """) if cfg.get("map8") == 2 else lines(f"""
        s_mul_i32 s{sC}, s{sHalf}, 3
        s_add_u32 s{sC}, s{sC}, s{sJ}
        s_add_u32 s{sC}, s{sC}, 16
        s_add_u32 s{sA}, s{sS}, 5
        s_and_b32 s{sA}, s{sA}, 15
        s_cmp_lt_u32 s{sA}, 11; s_cselect_b32 s{sC}, s{sC}, 31; s_cselect_b32 s{sThree}, 1, 0
        """)) + lines(f"""
        """) + self.f_params(PB[1], sS) + self.f_params(PB[2], sC) + self.pack_params() + lines(f"""
        s_cmp_lt_u32 s2, 135; s_cselect_b32 s{sA+2}, 0, 8; s_cselect_b32 s{sA+3}, 16, 8
        v_lshrrev_b32 v{vT}, 2, v0
        v_lshrrev_b32 v{vT+1}, 5, v0
        v_mad_u32_u24 v{vT}, v{vT+1}, s{sA+2}, v{vT}
        """)
        for h in range(2):
            if h: setup.append(f"v_add_u32 v{vT}, s{sA+3}, v{vT}")
            setup += [f"v_bfe_u32 v{vT+1}, v{vT}, 1, 1", f"v_bfe_u32 v{vT+2}, v{vT}, 3, 1", f"v_lshl_add_u32 v{vT+1}, v{vT+2}, 1, v{vT+1}",
                      f"v_and_b32 v{vT+2}, 3, v0", f"v_lshlrev_b32 v{vT+2}, 3, v{vT+2}", f"v_lshl_add_u32 v{vT+2}, v{vT}, 7, v{vT+2}", f"v_add_u32 v{vT+2}, s{sM0}, v{vT+2}"]
            for ch in range(4):
                setup.append(f"v_xor_b32 v{PR+20+4*h+ch}, {ch}, v{vT+1}")
                setup.append(f"v_lshl_add_u32 v{PR+20+4*h+ch}, v{PR+20+4*h+ch}, 5, v{vT+2}")
        setup += [f"v_mul_u32_u24 v{PR+16}, 1280, v{vRow}", f"v_add_u32 v{PR+16}, v{vCol}, v{PR+16}"]
        setup += [f"v_xor_b32 v{PR+17}, 64, v{PR+16}", f"v_add_u32 v{PR+17}, {8*1280-1024}, v{PR+17}",
                  f"v_add_u32 v{PR+18}, {2*(8*1280-1024)}, v{PR+16}", f"v_add_u32 v{PR+19}, {2*(8*1280-1024)}, v{PR+17}"]
        setup += lines(f"""
        s_lshl_b32 s{sA}, s2, 1
        s_and_b32 s{sA+1}, s{sWave}, 1
        s_add_u32 s{sA}, s{sA}, s{sA+1}
        s_mul_i32 s{sA+1}, s{sA}, 14
        v_add_u32 v{vT}, s{sA+1}, v0
        v_mul_u32_u24 v{vT+1}, {(1<<20)//11+1}, v{vT}
        v_lshrrev_b32 v{vT+1}, 20, v{vT+1}
        v_mul_u32_u24 v{vT+1}, 2048, v{vT+1}
        v_lshl_add_u32 v94, v{vT}, 7, v{vT+1}
        s_lshr_b32 s{sDuty}, s2, 3
        s_and_b32 s{sDuty}, s{sDuty}, 3
        """) + self.p2_params()
        if cfg.get("verbose"): print("setup ops", len(setup), "first", n_first)
        order = list(cfg.get("order", ["X0", "X1", "X2", "X3", "X4", "X5", "X6", "X7", "X8", "X9", "B", "B", "B", "B"]))
        def queue_next():
            o = order.pop(0)
            if o[0] == "T":
                r0, n = {"Ta": (0, 8), "Tb": (256, 12), "Tc": (0, 4), "Td": (128, 16)}[o]
                self.emit(f"s_lshl_b32 s{sA+6}, s{sMb}, 1; s_and_b32 s{sA+5}, s{sWave}, 1; s_add_u32 s{sA+6}, s{sA+6}, s{sA+5}; s_mul_i32 s{sA+6}, s{sA+6}, {n}; "
                          f"s_lshl_b32 s{sA+5}, s{sRot}, 6; s_add_u32 s{sA+6}, s{sA+6}, s{sA+5}; s_add_u32 s{sA+6}, s{sA+6}, {r0}; v_add_u32 v90, s{sA+6}, v0; "
                          f"v_subrev_u32 v89, 640, v90; v_min_u32 v90, v89, v90; v_mul_u32_u24 v90, 3840, v90; s_mov_b64 exec, {(1<<n)-1}; "
                          f"buffer_load_dword v90, v90, s[{PB[0]}:{PB[0]+3}], s{PB[0]+5} offen; s_mov_b64 exec, -1", "T")
                if not order: return
                o = order.pop(0)
            if o == "B":
                self.pend += self.dma_items(self.next); self.next += 1
            else:
                i = int(o[1:]); sl = self.alloc(("X", i))
                if i: self.pend.append(("op", f"s_add_u32 m0, s{sM0}, {sl*16384}; s_sub_u32 s{sX}, s{sX}, 128; s_cselect_b32 s{sX}, 1152, s{sX}"))
                self.pend += [("ld", f"buffer_load_dwordx4 v{EP+4+j}, s[{SRDX}:{SRDX+3}], s{sX} offen offset:{1024*j} lds", f"X{i}") for j in range(4)]
        XW = cfg["XW"]; spl = cfg.get("spl", 12); done = 0
        for g in range(XW):
            if order[0] == "B": assert done >= n_first
            if g == cfg.get("tlbat", 1) and cfg.get("tlb"):
                G_ = cfg["tlb"]; L = a.newlabel("tl")
                bufs = [[(pG, 640*3456), (pWS, 0x1A00000)], [(pU, 640*3456), (6, 2048*1280)], [(pDN, 1728*1280), (pWO, 640*1280)], [(pQKV, 640*3840)]]
                for w_, bl_ in enumerate(bufs):
                    a(f"s_cmp_lg_u32 s{sWave}, {w_}\ns_cbranch_scc1 {L}_{w_}")
                    for ptr_, size in bl_:
                        g2 = max(G_, 21) if size > (64 << G_) else G_
                        n_ = min(64, (size >> g2) + 2)
                        a(f"v_lshlrev_b32 v93, {g2}, v0\nv_min_u32 v93, {size-4}, v93\ns_mov_b64 exec, {(1 << n_) - 1 if n_ < 32 else -1}")
                        a(f"global_load_dword v92, v93, s[{ptr_}:{ptr_+1}]\ns_mov_b64 exec, -1")
                    a.label(f"{L}_{w_}")
            queue_next()
            for j in range(4):
                self.pop_ld()
                sp_ = cfg.get("spl0", spl) if g < 2 else spl
                if 4 * g + j + 1 == cfg.get("xw1", -1): sp_ = 1000
                for o in setup[done:done + sp_]: self.emit(o)
                done += sp_
        for o in setup[done:]: self.emit(o)
        self.stamp(1, True)
        def stats(i, j):
            for r in range(4 * j, 4 * j + 4):
                x = XB + 16 * i + r
                a(f"v_dot2c_f32_bf16 v{vSum+(j&1)}, s{sOne}, v{x}")
                a(f"v_dot2c_f32_bf16 v{vSum+2+(j&1)}, v{x}, v{x}")
        for i in range(10):
            vm.wait(a, f"X{i}", 4)
            if i in (0, 2, 4, 6, 8): self.stamp(2 + i // 2, True)
            sl = self.slot[("X", i)]
            for s in range(4):
                x = XB + 4 * (4 * i + s)
                a(f"ds_read_b128 v[{x}:{x+3}], v{XA+4*(sl>>2)+(s>>1)} offset:{(sl&3)*16384 + (s&1)*2048}")
            if order and (order[0] != "B" or self.next < cfg["PB"]): queue_next()
            for j in range(4):
                if self.pend: self.pop_ld()
                if i: stats(i - 1, j)
            a("s_waitcnt lgkmcnt(0)")
            self.xdone.add(("X", i))
        a(f"s_xor_b32 s{sTok+1}, s{sTok+1}, 0x{TOKX:x}\ns_add_u32 s{sTok}, s{sTok}, 1")
        for j in range(4): stats(9, j)
        self.stamp(1)
        a("s_nop 2")
        for op in ("v_permlane16_swap_b32", "v_permlane32_swap_b32"):
            a(f"v_mov_b64 v[60:61], v[{vSum}:{vSum+1}]\nv_mov_b64 v[62:63], v[{vSum+2}:{vSum+3}]\ns_nop 0")
            for j in range(4): a(f"{op} v{vSum+j}, v{60+j}")
            a(f"s_nop 0\nv_pk_add_f32 v[{vSum}:{vSum+1}], v[{vSum}:{vSum+1}], v[60:61]\nv_pk_add_f32 v[{vSum+2}:{vSum+3}], v[{vSum+2}:{vSum+3}], v[62:63]")
        seq_ = lambda m: lines(f"""
        v_mul_f32 v{vSum+m}, 0x3acccccd, v{vSum+m}
        v_mul_f32 v{vSum+2+m}, 0x3acccccd, v{vSum+2+m}
        v_cvt_pk_bf16_f32 v{vNegM+m}, 0, -v{vSum+m}
        v_fma_f32 v{vR[m]}, -v{vSum+m}, v{vSum+m}, v{vSum+2+m}
        """)
        for x_, y_ in zip(seq_(0), seq_(1)): a(x_); a(y_)
        NC = cfg["nc"]
        def first_frags():
            self.stamp(8, True)
            vm.wait(a, "B1" if cfg["bar2"] else "B0", 4)
            a("s_barrier")
            self.stamp(7, True)
            for G in range(2):
                for r in self.tr_reads(G): a(r)
        for st_ in range(NC):
            d0, c0 = self.center_ops(st_)
            if st_ == NC - 1:
                while order or self.pend:
                    if not self.pend: queue_next()
                    self.pop_ld()
                for op in d0: a(op)
                first_frags()
                for op in c0: a(op)
            else:
                if order and not self.pend: queue_next()
                for j, op in enumerate(d0 + c0):
                    a(op)
                    if j % 12 == 0 and self.pend: self.pop_ld()
        self.stamp(2)
        extra = Uniq()
        seq_ = lambda m: lines(f"""
            v_max_f32 v{vR[m]}, 0, v{vR[m]}
            v_cvt_pk_bf16_f32 v{vR[m]}, 0, v{vR[m]}
            v_add_f32 v{vR[m]}, 0x3727c5ac, v{vR[m]}
            v_cvt_pk_bf16_f32 v{vR[m]}, 0, v{vR[m]}
            v_sqrt_f32 v{vR[m]}, v{vR[m]}
            v_cvt_pk_bf16_f32 v{vD2+m}, 0, v{vR[m]}
            v_rcp_f32 v{vR[m]}, v{vD2+m}
            v_mul_f32 v{vD2+m}, v{vD2+m}, v{vD2+m}
            v_mul_f32 v{vC1+m}, 0x{NLOG2E:x}, v{vR[m]}
            """)
        extra[3] = [o for xy in zip(seq_(0), seq_(1)) for o in xy]
        def pack_issue():
            sl = self.alloc("P")
            self.pend += [("op", f"s_add_u32 m0, s{sM0}, {sl*16384}")]
            self.pend += [("ld", f"buffer_load_dwordx4 v{PR+16+j}, s[{PK}:{PK+3}], s{PK+4} offen offset:{1024*j} lds", "PK") for j in range(4)]
        pk0 = cfg["pk0"]; pk1 = cfg["pk1"]
        extra[pk0] = pack_issue
        extra[pk0 + 1] = [lambda ch=ch: a(f"v_add_u32 v{PR+20+ch}, {self.slot['P']*16384}, v{PR+20+ch}") for ch in range(8)]
        rdl = [lambda: vm.wait(a, "PK", 4)]
        for ch in range(4):
            rdl.append(f"ds_read_b64_tr_b16 v[{PR+4*ch}:{PR+4*ch+1}], v{PR+20+ch}")
            rdl.append(f"ds_read_b64_tr_b16 v[{PR+4*ch+2}:{PR+4*ch+3}], v{PR+24+ch}")
        extra[pk1] = rdl
        stl = []
        for ch in range(4):
            stl.append(lambda ch=ch: (self.xdone.add("P"), vm.issue(a, f"buffer_store_dwordx4 v[{PR+4*ch}:{PR+4*ch+3}], v{vL16}, s[{SRDW}:{SRDW+3}], s{PK+5+ch} offen sc1", "I")))
        extra[pk1 + 24] = [lambda: [f() for f in stl]] if cfg['stb'] > 1 else stl
        def touch(which, duty=None):
            def f():
                r, n, off = (None, (94, 14, 2048))[which]
                ins = f"buffer_load_dword v{r}, v{r}, s[{PB[1]}:{PB[1]+3}], 0 offen offset:{off}"
                if duty is None:
                    a(f"s_mov_b64 exec, {(1 << n) - 1}"); vm.issue(a, ins, "T"); a("s_mov_b64 exec, -1")
                else:
                    L = a.newlabel("du")
                    a(f"s_cmp_lg_u32 s{sDuty}, {duty}\ns_cbranch_scc1 {L}\ns_mov_b64 exec, {(1 << n) - 1}\n{ins}\ns_mov_b64 exec, -1\n{L}:")
            return f
        for which, key in ((0, "tch"), (1, "tch2")):
            g_ = cfg[key]
            if isinstance(g_, list):
                for d_, gg in enumerate(g_): extra[gg] = touch(which, d_)
            elif 0 <= g_ < 160: extra[g_] = touch(which)
        if cfg["pub1"] < 160: extra[cfg["pub1"]] = lambda: (self.publish(1, ["I"]), self.retouch("P"))
        vq0 = None
        if cfg.get("b0fake"):
            vq0 = [((lambda gap: gap >= cfg["b0fake"]), (lambda k=k, u=u: vm.issue(a, f"buffer_load_dwordx4 {self.rr(self.BSLOT[k], 4*u)}, v{vLd + (u & 3)}, s[{PB[0]}:{PB[0]+3}], s{PB[0]+6} offen offset:{k*512}", f"PB{k}"))) for k in range(4) for u in range(5)]
        self.body(0, None, 3, center=True, extra=extra, vq=vq0, before=[(pk0 + 1, pk1), (pk1, pk1 + 16), (pk1 + 24, cfg["pub1"])])
        self.stamp(3)
        self.vPub = 86
        extra = Uniq()
        if cfg["tch2"] >= 160: extra[cfg["tch2"] - 160] = touch(1)
        if cfg["pub1"] >= 160: extra[cfg["pub1"] - 160] = lambda: self.publish(1, ["I"])
        extra[cfg["pub2"]] = lambda: (self.publish(2, ["E0"]), self.retouch("Q", PB[0] + 7))
        GR = 88
        def epoch():
            L = a.newlabel("ep")
            a(f"""
            s_or_b32 s{sA+8}, s2, s{sWave}
            s_cbranch_scc1 {L}
            v_mov_b32 v{GR}, s{sTok}
            s_mov_b32 s{sA+8}, {WS_EPOCH}
            s_mov_b64 exec, 1
            buffer_store_dword v{GR}, off, s[{SRDW}:{SRDW+3}], s{sA+8}
            s_mov_b64 exec, -1
            {L}:
            """)
        gc = cfg["gck"]
        assert gc % 16 == 6 and (not cfg["bar2"] or (gc // 16) % 2 == 1)
        gb = gc + 2
        extra[gb + 1] = epoch
        for j in range(4):
            extra[gc - 42 + 4 * j] = lambda j=j: self.flag_load(GR + 2 * j, sFlG, f"G{j}", 1, 512 * j)
            extra[gc - 9 + [0, 2, 4, 8][j]] = lambda j=j: self.flag_check(GR + 2 * j, sFlG, f"G{j}", 1, off=512 * j)
        after = lambda g0: (lambda gap: gap >= g0)
        vq = [(after(gb), f) for k in range(4) for f in self.b_loads(k)] if not cfg.get('b0fake') else []
        rest1 = self.body(1, self.epi_q(ACC[0], PB[0] + 7), 3, wrange=(4, cfg["w1"]), extra=extra, vq=vq, vq1=cfg["b1vq"])
        while self.pend: self.pop_ld()
        self.stamp(4)
        vm_split = list(vm.q)
        a(f"s_cmp_eq_u32 s{sThree}, 0")
        a(f"s_cbranch_scc1 {label}_two")
        self.vPub = 62
        pre = []
        def P(fn): pre.append(fn); return fn
        extra = Uniq()
        vq = [(after(0), P(f)) for _, f in rest1]
        st = {"q": False}
        q_l0 = lambda: self.flag_load(XB, sFl0, "Q0", 2)
        q_l1 = lambda: self.flag_load(XB + 2, sFl1, "Q1", 2)
        q_c0 = lambda: self.flag_check(XB, sFl0, "Q0", 2)
        def q_c1():
            self.flag_check(XB + 2, sFl1, "Q1", 2); st["q"] = True
        qc = cfg["qck"]
        extra[qc - 33] = q_l0; extra[qc - 29] = q_l1; extra[qc - 1] = q_c0; extra[qc + 3] = q_c1
        attl = []
        lastkv = [-100]
        def att_ok(gap, j):
            if not st["q"] or gap - lastkv[0] < cfg["kvgap"]: return False
            attl or attl.extend(self.att_loads(False))
            if j < 10:
                if self.next < 30 or self.pend: return False
                if "K" not in self.slot:
                    if not (self.free(7) and self.free(8)): return False
                    self.alloc("K", 7); self.alloc("V", 8)
            lastkv[0] = gap
            return True
        bq = []
        l0 = len(a.lines)
        def acc_free(b):
            return lambda gap: sum(1 for l in a.lines[l0:] if l.startswith("    v_accvgpr_read_b32") and b <= int(l.rsplit("a", 1)[1]) < b + 20) == 20
        grp_ = {k: [(after(4 * (2 * ((20 * (k - 4) + 39) // 8) + 2)), f) for f in self.b_loads(k)] for k in range(4, 8)}
        for k in (8, 9, 10): grp_[k] = [(acc_free(int(self.BSLOT[k][1:])), f) for f in self.b_loads(k)]
        cur = [None]
        def seq(k, u, c):
            def ok(gap):
                if cur[0] not in (None, k) or not c(gap): return False
                cur[0] = k if u < 4 else None
                return True
            return ok
        for k in cfg["b2order"]: bq += [(seq(k, u, c), f) for u, (c, f) in enumerate(grp_[k])]
        for k in (4, 5): [P(f) for _, f in grp_[k]]
        P(q_l0); P(q_l1)
        for k in (6, 7): [P(f) for _, f in grp_[k]]
        P(q_c0); P(q_c1)
        pre.append("att")
        for k in (8, 9, 10): [P(f) for _, f in grp_[k]]
        for j in list(range(10, 15)) + list(range(10)): vq.append((lambda gap, j=j: att_ok(gap, j), lambda j=j: attl[j]()))
        vq += bq
        wq = []
        for s in range(7):
            ok = lambda gap, s=s: self.next >= 30 and not self.pend and (self.owner[s] == ("WO", s) or self.free(s))
            wq += [(ok, f) for f in self.wo_loads(s)]
        vq += wq
        extra[cfg["pub3"]] = lambda: (self.publish(3, ["E1"]), self.retouch("F", PB[1] + 7))
        rest = self.body(2, self.epi_f(ACC[1], PB[1] + 7), 3, wrange=(4, cfg["w2"]), extra=extra, vq=vq, vq1=cfg["vq1"], vq2=cfg["vq2"])
        self.stamp(5)
        wfs = [f for _, f in wq]
        if cur[0] is not None:
            cf = [f for _, f in grp_[cur[0]]]
            rest = [x for x in rest if x[1] in cf] + [x for x in rest if x[1] not in cf]
        late = [f for c_, f in rest if f not in wfs] + [P(f) for k in (11, 12) for f in self.b_loads(k)]
        late += [f for c_, f in rest if f in wfs and c_(160)]
        ntail = cfg["ntail"]
        assert 15 - vm.q.count("KV") <= ntail and "K" in self.slot
        post = late[ntail:]; late = late[:ntail]
        wrest = [f for c_, f in rest if f in wfs and f not in late]
        post = [f for f in post if f not in wfs]
        pre[:] = [f for f in pre if f not in post]
        for f in wfs:
            if f not in wrest: P(f)
        def tail(ops, inter, tag):
            inter = list(inter); n = len(ops); k = len(inter); j = 0
            for i, op in enumerate(ops):
                self.emit(op, tag)
                while j < k and j < (i + 1) * k // n:
                    inter[j](); j += 1
        a("s_nop 7")
        if cfg.get("f3tail"): late.insert(cfg["f3tail"], P(lambda: self.flag_load(vFl, sFl0, "F3", 3)))
        tail(self.epi_f_tail(ACC[0], PB[2] + 7), late, "E2")
        if cfg.get("verbose"): print("tail loads", len(late), "after join: B loads", len(post), "wo loads", len(wrest))
        self.lastbar = 100
        self.alloc("O", 9)
        a.label(f"{label}_join")
        self.stamp(6)
        self.vPub = 20
        if not cfg.get("f3tail"): self.flag_load(vFl, sFl0, "F3", 3)
        a(f"s_lshr_b32 s{sA}, s{sM0}, 2\nv_add_u32 v{vA[0]}, s{sA}, v{vL16}")
        for i in range(1, 4): a(f"v_add_u32 v{vA[i]}, 1024, v{vA[i-1]}\nv_and_b32 v{vA[i]}, 4095, v{vA[i]}")
        a("s_barrier")
        def xaddr(j, d, t1, t2):
            return [f"v_add_u32 v{t1}, {64*j}, v0", f"v_mul_u32_u24 v{t2}, {(1<<16)//10+1}, v{t1}", f"v_lshrrev_b32 v{t2}, 16, v{t2}",
                    f"v_mul_u32_u24 v{t2}, {1280-160}, v{t2}", f"v_lshl_add_u32 v{t2}, v{t1}, 4, v{t2}", f"v_add_u32 v{d}, s{sXo}, v{t2}"]
        def xl(j):
            for o in xaddr(j, 114, 114, 115): a(o)
            a(f"v_accvgpr_write_b32 a{60+j}, v114")
            a(f"s_mul_i32 s{sA+2}, s{sWave}, 2560\ns_add_u32 m0, s{sA+2}, {102400 + 1024*j}")
            a("s_mov_b32 exec_hi, 0" if j == 2 else "s_nop 0")
            vm.issue(a, f"global_load_lds_dwordx4 v114, s[4:5]", "XO")
            if j == 2: a("s_mov_b32 exec_hi, -1")
        assert not post
        free_ = [lambda j=j: xl(j) for j in range(3)] + post + wrest
        n1 = cfg["natt1"]; n2 = cfg["natt2"]
        al = free_[n1:]
        aa = [f for k in range(4) for f in self.a_loads(k)]
        n0 = cfg.get("natt0", n1)
        inter = free_[:n0] + [lambda: self.flag_check(vFl, sFl0, "F3", 3)]
        mix = list(aa[:n2])
        for j_, f_ in enumerate(free_[n0:n1]): mix.insert((j_ + 1) * (n2 + n1 - n0) // (n1 - n0) - 1, f_)
        inter += mix
        inter.insert(min(len(inter), cfg["pub4"]), lambda: self.publish(4, ["E2"]))
        ost = self.attention(inter)
        self.stamp(8)
        XR = 4; vX = 14; vW = 25; vRd = 28; vXo = [1, 2, 29]
        KF = cfg["kf"]
        wl = [f for f in al if f not in post]
        Q_ = [(0, f) for f in ost + aa[n2:] + [f for f in al if f in post]]
        grp = lambda e, fs: [(e, f) for f in fs]
        A_ = lambda k: grp(max(self.AEARLY[k], KF if k >= 8 else 0), self.a_loads(k))
        B_ = lambda k: grp(0, self.b_loads(k))
        for it in cfg["forder"]:
            Q_ += A_(int(it[1:])) if it[0] == "A" else B_(int(it[1:])) if it[0] == "B" else grp(0, wl) if it == "W" else grp(5, ["x0", "x1", "x2"])
        OA = 176
        def wo_reads(T):
            b = WR[T % 6]
            return [f"ds_read_b128 v[{b+4*u}:{b+4*u+3}], v{vL16 if T < 12 else 15} offset:{(T % 12)*5120 + u*1024}" for u in range(5)]
        def o_load(T):
            def f():
                if T % 4 == 0: a(f"s_add_u32 s{sGb}, s{sOld}, {T*1024}")
                vm.issue(a, f"buffer_load_dwordx4 a[{OA+4*T}:{OA+4*T+3}], v{vL16}, s[{SRDW}:{SRDW+3}], s{sGb} offen offset:{1024*(T&3)} sc1", f"PO{T//2}")
            return f
        KB = cfg["kbar"]; KO = cfg["ko"]; ns = cfg["nside"]; NOF = cfg["no_f"]; KX = cfg["kx"]
        R = 32; FO = 236; SQ = [92, 4, 8, 16, 20]; XU = 216
        WR = [116, 136, 156, 176, 196, 96]
        lq = LQ()
        def mf(k, i, u):
            t_ = (i * 5 + u) * 4
            d = f"a[{t_-20}:{t_-17}]" if i else f"v[{FO+t_}:{FO+t_+3}]"
            a(f"v_mfma_f32_16x16x32_bf16 {d}, {self.rr(self.BSLOT[k], 4*u)}, {self.rr(self.ASLOT[k], 4*i)}, {'0' if k == 0 else d}")
        def wait_ab(k):
            assert vm.q.count(f"PB{k}") == 5 and vm.q.count(f"PA{k}") == 4
            vm.wait(a, f"PA{k}" if vm.last(f"PA{k}") > vm.last(f"PB{k}") else f"PB{k}")
        olist = [o_load(T) for T in range(20)]
        for k in range(KX):
            if k % 2 == 0: self.mark(10 + k // 2)
            wait_ab(k)
            side = []
            if k == KF - 2: side += [lambda: self.flag_load(vFl, sFl0, "F4", 4)]
            if k == cfg.get("kp5", 3) and not cfg["nokb"]: side += [lambda: self.publish(5, ["O"])]
            if cfg["nokb"] and k == 2:
                side += [lambda o=o: a(o) for o in (f"v_and_b32 v1, 15, v0", f"v_mul_u32_u24 v2, 160, v1", f"v_lshrrev_b32 v1, 4, v0", f"v_lshl_add_u32 v2, v1, 3, v2",
                                                     f"s_add_u32 s{sA+2}, s{sA+2}, 102400", f"v_add_u32 v1, s{sA+2}, v2")]
            late_side = []
            if cfg["nokb"] and k == 3:
                side += [lambda: (vm.wait(a, "O"), [lq.issue(a, f"ds_read_b64 v[{XR+2*u}:{XR+2*u+1}], v1 offset:{32*u}", "XL") for u in range(5)])]
                late_side = [lambda: a(f"v_mov_b32 v{vX}, v2"), lambda: (lq.wait(a, "XL"), self.publish(5, []))]
            if k == KF: self.flag_check(vFl, sFl0, "F4", 4)
            if k == KO - 2: side += [lambda: self.flag_load(vFl, sFl0, "F5", 5)]
            if k == KO: self.flag_check(vFl, sFl0, "F5", 5, half=True)
            room = ns[k] - (1 if side else 0)
            for it in list(Q_):
                if room > 0 and it[0] <= k:
                    Q_.remove(it); room -= 1
                    side.append((lambda j=int(it[1][1]): xl(j)) if isinstance(it[1], str) else it[1])
            if k >= KO and not Q_ and room > 0: side += olist[:room]; olist = olist[room:]
            if k == 4:
                side += [lambda j=j: a(f"v_accvgpr_read_b32 v{vXo[j]}, a{60+j}") for j in range(3)]
            if k == 5:
                side += [lambda o=o: a(o) for o in lines(f"""
                    v_add_u32 v15, {12*5120}, v{vL16}
                    s_mov_b32 s{sA}, 0x{NLOG2E:x}
                    s_mov_b32 s{sA+1}, 0xffff0000
                    """)]
            if k == 6:
                for i in range(4):
                    d = vRd if i == 0 else vW + i - 1
                    side += [lambda o=o: a(o) for o in (f"v_lshrrev_b32 v3, 10, v{vA[i]}", f"v_mul_u32_u24 v3, 15360, v3",
                                                         f"v_add_u32 v3, {102400 + max(i-1, 0)*5120}, v3", f"v_add_u32 v{d}, v3, v{vL16}")]
            side += late_side
            if k == KB - 1 and not cfg['nokb']:
                side += [lambda: (vm.wait(a, "XO", 3), a(f"s_add_u32 s{sA+2}, s{sA+2}, 102400\nv_add_u32 v3, s{sA+2}, v{vX}"))]
                side += [lambda u=u: lq.issue(a, f"ds_read_b64 v[{XR+2*u}:{XR+2*u+1}], v3 offset:{32*u}", "XL") for u in range(5)]
            if k == KB and not cfg['nokb']:
                lq.wait(a, "XL"); vm.wait(a, "WO", 25); a("s_barrier")
            nsd = len(side); j = 0
            for i in range(4):
                for u in range(5):
                    mf(k, i, u)
                    while j < nsd and j < (i * 5 + u + 1) * nsd // 20:
                        side[j](); j += 1
        assert not Q_, len(Q_)
        assert KB < KX and KO < KX and KX >= 10
        self.mark(16)
        nk = 14 - KX
        base_side = olist[:max(NOF - (20 - len(olist)), 0)]; olist = olist[len(base_side):]
        ol_ = base_side
        base_side = [lambda r=r, T=T: lq.issue(a, r, f"W{T}") for T in range(5) for r in wo_reads(T)]
        base_side += [lambda j=j: a(f"v_and_b32 v{XU+j}, s{sA+1}, v{XR+(j>>1)}" if j & 1 else f"v_lshlrev_b32 v{XU+j}, 16, v{XR+(j>>1)}") for j in range(20)]
        for j_, f_ in enumerate(ol_): base_side.insert(j_ * (45 + len(ol_)) // len(ol_), f_)
        nb_ = len(base_side); jb = 0; m = 0
        for ri, i in enumerate((1, 2, 3, 0)):
            pw = []
            if ri:
                ip = (1, 2, 3)[ri - 1]
                pw = [f"ds_write_b128 v{vW+ip-1}, a[{(ip*5+u)*4-20}:{(ip*5+u)*4-17}] offset:{u*1024}" for u in range(5)]
            mm = 0
            for k in range(KX, 14):
                if ri == 0: wait_ab(k)
                for u in range(5):
                    mf(k, i, u); m += 1; mm += 1
                    if pw and mm >= 4 and (mm - 4) * 5 >= (5 - len(pw)) * (5 * nk - 4): lq.issue(a, pw.pop(0), "PW")
                    else:
                        while jb < nb_ and jb < m * nb_ // (20 * nk):
                            base_side[jb](); jb += 1
            for w_ in pw: lq.issue(a, w_, "PW")
        while jb < nb_:
            base_side[jb](); jb += 1
        self.stamp(7)
        work = [("f", f) for f in olist[:2]] + [("bar",)]
        for j in range(15): work.append(("l", f"ds_read_b128 v[{R+4*j}:{R+4*j+3}], v{vRd} offset:{j*1024}", "PR"))
        work += [("f", f) for f in olist[2:]]
        pk2 = lambda op, d, x, y: "\n".join(f"{op} v[{d+2*j}:{d+2*j+1}], v[{x+2*j}:{x+2*j+1}], {y(j)}" for j in range(10))
        work.append(("v", f"v_sub_u32 v3, v{vRd}, v{vL16}")); work.append(("v", f"v_add_u32 v3, v3, v{vX}"))
        work.append(("lw", "PR"))
        work.append(("v", "\n".join([pk2("v_pk_add_f32", FO, FO, lambda j: f"v[{R+2*j}:{R+2*j+1}]"),
                                     pk2("v_pk_add_f32", R+20, R+20, lambda j: f"v[{R+40+2*j}:{R+40+2*j+1}]"),
                                     pk2("v_pk_add_f32", FO, FO, lambda j: f"v[{R+20+2*j}:{R+20+2*j+1}]"),
                                     pk2("v_pk_mul_f32", R, FO, lambda j: f"s[{sA}:{sA+1}] op_sel_hi:[1,0]")])))
        for j in range(20): work.append(("v", f"v_exp_f32 v{R+j}, v{R+j}"))
        for j in range(20): work.append(("v", f"v_add_f32 v{R+j}, 1.0, v{R+j}"))
        for j in range(20): work.append(("v", f"v_rcp_f32 v{R+j}, v{R+j}"))
        def do(wk):
            if wk[0] == "v": a(wk[1])
            elif wk[0] == "f": wk[1]()
            elif wk[0] == "l": lq.issue(a, wk[1], wk[2])
            elif wk[0] == "lw": lq.wait(a, wk[1])
            elif wk[0] == "bar":
                lq.wait(a, "PW"); self.mark(20); a("s_barrier"); self.mark(21)
        for j in range(20): work.append(("v", f"v_mul_f32 v{FO+j}, v{FO+j}, v{R+j}"))
        nw = len(work); done = 0; m = 0
        TU = cfg["tu"]; NM = 5 * TU
        def smf(T, u):
            d = f"v[{SQ[u]}:{SQ[u]+3}]"; b = WR[T % 6]
            a(f"v_mfma_f32_16x16x32_bf16 {d}, v[{b+4*u}:{b+4*u+3}], a[{OA+4*T}:{OA+4*T+3}], {'0' if T == 0 else d}")
        for T in range(TU):
            if T % 4 == 0: vm.wait(a, f"PO{T//2+1}", 2)
            if T in (0, 10): self.mark({0: 17, 10: 18}[T])
            if T % 3 == 0: lq.wait(a, f"W{T+2}")
            rd = wo_reads(T + 5) if T + 5 < 20 else []
            for u in range(5):
                smf(T, u); m += 1
                if rd: lq.issue(a, rd.pop(0), f"W{T+5}")
                while done < nw and done < m * nw // NM:
                    do(work[done]); done += 1
        assert done == nw and TU >= 15
        self.mark(19)
        vm.wait(a, "PO9", 2); lq.wait(a, "W19")
        def comb(u):
            f0 = FO + 4 * u; o = 64 + 2 * u
            return [f"v_fma_f32 v{f0+j}, v{f0+j}, v{SQ[u]+j}, v{XU+4*u+j}" for j in range(4)] + \
                   [f"v_cvt_pk_bf16_f32 v{o}, v{f0}, v{f0+1}", f"v_cvt_pk_bf16_f32 v{o+1}, v{f0+2}, v{f0+3}", f"ds_write_b64 v3, v[{o}:{o+1}] offset:{32*u}"]
        for u in range(5):
            c_ = comb(u - 2) if u >= 2 else []
            if u == 2: a(f"s_nop {max(8 - (20 - TU) - 2, 0)}")
            for T in range(TU, 20):
                smf(T, u)
                for o in c_[:2]: a(o)
                c_ = c_[2:]
            for o in c_: a(o)
        for o in comb(3): a(o)
        a("s_nop 0")
        for o in comb(4): a(o)
        a("s_waitcnt lgkmcnt(0)")
        for j in range(3): a(f"ds_read_b128 v[{76+4*j}:{79+4*j}], v{vRd} offset:{1024*j}")
        for j in range(3):
            a(f"s_waitcnt lgkmcnt({2-j})")
            if j == 2: a("s_mov_b32 exec_hi, 0")
            a(f"global_store_dwordx4 v{vXo[j]}, v[{76+4*j}:{79+4*j}], s[6:7] {cfg.get('scO', '')}")
        a("s_mov_b32 exec_hi, -1")
        self.mark(22)
        if self.stamps:
            a("s_waitcnt vmcnt(0)")
            a(f"s_memtime s[{sA}:{sA+1}]")
            a(f"s_memrealtime s[{sA+2}:{sA+3}]")
            a("s_waitcnt lgkmcnt(0)")
            for i in range(1, 8):
                a(f"s_sub_u32 s{sA+4}, s{ST0+2*(i-1)}, s0\nv_mov_b32 v{32+i}, s{sA+4}")
            a(f"s_sub_u32 s{sA+4}, s{sA}, s0\nv_mov_b32 v40, s{sA+4}\nv_mov_b32 v41, s{sA+2}")
            a(f"s_sub_u32 s{sA+4}, s{ST0+14}, s0\nv_mov_b32 v42, s{sA+4}")
            a(f"""
            v_mov_b32 v32, s1
            s_lshl_b32 s{sA}, s2, 2
            s_add_u32 s{sA}, s{sA}, s{sWave}
            s_lshl_b32 s{sA}, s{sA}, 6
            s_add_u32 s{sA}, s{sA}, {WS_STAMP}
            s_mov_b64 exec, 1
            buffer_store_dwordx4 v[32:35], off, s[{SRDW}:{SRDW+3}], s{sA}
            buffer_store_dwordx4 v[36:39], off, s[{SRDW}:{SRDW+3}], s{sA} offset:16
            buffer_store_dwordx4 v[40:43], off, s[{SRDW}:{SRDW+3}], s{sA} offset:32
            """)
        a("s_endpgm")
        a.label(f"{label}_two")
        self.stamp(5)
        self.vm = vm = VM()
        self.vPub = 62
        self.vm.q = list(vm_split)
        self.vm.wait(a, [t_ for t_ in self.vm.q if t_[0] == "B" and t_[1:].isdigit()][-1])
        a("s_waitcnt lgkmcnt(0)\ns_barrier\ns_nop 4")
        flat = []
        for f in pre: flat += self.att_loads() if f == "att" else [f]
        nb_ = cfg["nbtail"]
        tail(self.epi_f_tail(ACC[1], PB[1] + 7), flat[:nb_], "E1")
        for i, f in enumerate(flat[nb_:]):
            if i == cfg["nbpub"]:
                self.publish(3, ["E1"]); a("s_nop 1"); self.publish(4, []); self.retouch("F", PB[1] + 7)
            if i % 8 == 3 and cfg.get("markT", 2) == 2: self.mark(i // 8)
            f()
        a("s_waitcnt vmcnt(0)")
        a(f"s_branch {label}_join")
        for s in self.slow: a(s)
        a.label(f"{label}_end")
        a("s_endpgm")
        a.end_kernel(label, 512, 102, 256, 256, 256, 163840)
        return a.text("""Generated by dev/fused5.py (own generator). One persistent kernel, 256 workgroups of 4 waves, one per CU.
kernarg: 0 A_x, 8 A_wqkv, 16 A_wo, 24 B_x (unused by the reference), 32 w_gate, 40 w_up, 48 w_down, 56 out, 64 debug, 72 ws
Phase 1: 128 rows of x per workgroup stay in registers (LayerNorm: centred in place, 1/std applied in the epilogues);
  up to three 128-column tasks of x@[wqkv | w_gate,w_up] with the weights streamed through an LDS ring (LDS-DMA + transposing reads);
  q,k,v and h = silu(g)*u go to ws; w_down / wo are repacked into MFMA fragment order in ws.
Attention: 64 rows x 4 heads per workgroup (true row max softmax), result to ws.
Phase 2: 64x80 output tile per workgroup: h@w_down (K split over the waves), o@wo, out = x + s*silu(f).
Hand-offs between workgroups: write-through stores, then a per-wave flag holding a token that is new in every launch
  (derived from a word in ws that workgroup 0 advances), consumers look at the flags before they load.""")

if __name__ == "__main__":
    stamps = "--stamps" in sys.argv
    pos = [x for x in sys.argv[1:] if not x.startswith("--")]
    cfg = json.loads(pos[1]) if len(pos) > 1 else {}
    open(pos[0], "w").write(Gen(cfg, stamps).build())
```
